```python
import torch

def _softmax(x, axis=-1):
    return torch.softmax(x, dim=axis)
def _gelu(x):
    return torch.nn.functional.gelu(x, approximate="tanh")
def _silu(x):
    return torch.nn.functional.silu(x)
def _sigmoid(x):
    return torch.sigmoid(x)
def _layernorm(x, axis=-1, eps=1e-5):
    m = x.mean(dim=axis, keepdim=True)
    v = x.var(dim=axis, keepdim=True, unbiased=False)
    return (x - m) / torch.sqrt(v + eps)
def _scatter_add(tgt, idx, src, axis=0):
    return tgt.clone().index_add_(axis, idx, src)
def _segment_sum(src, seg, n):
    out = torch.zeros((n,) + src.shape[1:], dtype=src.dtype)
    return out.index_add_(0, seg, src)
def _pad(x, pw):
    flat = tuple(v for pair in reversed(pw) for v in pair)
    return torch.nn.functional.pad(x, flat)

kernel_name = 'sequential_preLN__compressed_kv_cla__glu_gated_reglu__decode'

def setup_inputs():

    _w = (lambda a: (lambda t: t.to(torch.bfloat16) if t.is_floating_point() else t)(torch.as_tensor(a)))
    def _A_setup():
        B, H, Sq, Sk, D, M = 1, 32, 1, 4096, 128, 640
        Dc = 4 * D
        return {
            "x": _w((lambda *s: torch.randn(*s, dtype=torch.bfloat16) * 0.05)(B, Sq, M)),
            "c_kv": _w((lambda *s: torch.randn(*s, dtype=torch.bfloat16) * 0.8)(B, Sk, Dc)),
            "w_q": _w((lambda *s: torch.randn(*s, dtype=torch.bfloat16) * 1.6)(M, H, D) * (M ** -0.5)),
            "w_uk": _w((lambda *s: torch.randn(*s, dtype=torch.bfloat16) * 1.6)(Dc, H, D) * (Dc ** -0.5)),
            "w_uv": _w((lambda *s: torch.randn(*s, dtype=torch.bfloat16) * 0.8)(Dc, H, D) * (Dc ** -0.5)),
            "w_o": _w((lambda *s: torch.randn(*s, dtype=torch.bfloat16) * 0.8)(H, D, M) * ((H * D) ** -0.5)),
        }
    _A_in = _A_setup()

    def _B_setup():
        B, S, D, F = 1, 1, 640, 1728
        return {
            "x": _w((lambda *s: torch.randn(*s, dtype=torch.bfloat16) * 0.05)(B, S, D)),
            "W_gate": _w((lambda *s: torch.randn(*s, dtype=torch.bfloat16) * 0.4)(D, F) * (2.0 / D) ** 0.5),
            "W_up": _w((lambda *s: torch.randn(*s, dtype=torch.bfloat16) * 0.4)(D, F) * (2.0 / D) ** 0.5),
            "W_down": _w((lambda *s: torch.randn(*s, dtype=torch.bfloat16) * 0.4)(F, D) * (1.0 / F) ** 0.5),
        }
    _B_in = _B_setup()

    return {
        "A_x": _A_in["x"],
        "A_c_kv": _A_in["c_kv"],
        "A_w_q": _A_in["w_q"],
        "A_w_uk": _A_in["w_uk"],
        "A_w_uv": _A_in["w_uv"],
        "A_w_o": _A_in["w_o"],
        "B_x": _B_in["x"],
        "B_W_gate": _B_in["W_gate"],
        "B_W_up": _B_in["W_up"],
        "B_W_down": _B_in["W_down"],
    }

def reference(A_x, A_c_kv, A_w_q, A_w_uk, A_w_uv, A_w_o, B_x, B_W_gate, B_W_up, B_W_down):
    def _A_ref(x, c_kv, w_q, w_uk, w_uv, w_o):
        B, Sq, M = x.shape[0], x.shape[1], x.shape[2]
        Sk = c_kv.shape[1]
        H, D = w_q.shape[1], w_q.shape[2]
        q = torch.einsum("bqm,mhd->bhqd", x, w_q)
        k = torch.einsum("bkc,chd->bhkd", c_kv, w_uk)
        v = torch.einsum("bkc,chd->bhkd", c_kv, w_uv)
        scores = torch.einsum("bhqd,bhkd->bhqk", q, k) * (D ** -0.5)
        off = Sk - Sq
        qi = torch.arange(Sq)[:, None]
        kj = torch.arange(Sk)[None, :]
        cmask = kj <= (qi + off)
        scores = torch.where(cmask[None, None], scores, -1e9)
        p = _softmax(scores, axis=-1)
        ctx = torch.einsum("bhqk,bhkd->bhqd", p, v)
        return torch.einsum("bhqd,hdm->bqm", ctx, w_o)

    def _B_ref(x, W_gate, W_up, W_down):
        gate = torch.einsum("bsd,df->bsf", x, W_gate)
        up = torch.einsum("bsd,df->bsf", x, W_up)
        gate = gate * (lambda x, dt: x.to(dt))(gate > 0, gate.dtype)
        h = gate * up
        return torch.einsum("bsf,fd->bsd", h, W_down)

    x = A_x
    h = x + _A_ref(_layernorm(x, axis=-1), A_c_kv, A_w_q, A_w_uk, A_w_uv, A_w_o)
    h2 = h + _B_ref(_layernorm(h, axis=-1), B_W_gate, B_W_up, B_W_down)
    return h2
```

```python
import sys, struct

KN = 'sequential_preLN__compressed_kv_cla__glu_gated_reglu__decode_kernel'

EPOCH = 0
Q1L = 0x10000
Q1G = 0x50000
QA = 0x90000
ML = 0xA0000
C4L = 0xA8000
C4G = 0xC8000
OUTP = 0xE8000
O2P = 0x100000
OP = 0x200000
STAMPS = 0x800000

L_XN = 0
L_QB = 256
L_MB = 512
L_LB = 768
L_PB = 1024
L_CT = 3072
L_CB = 3584
L_OT = 4608
L_HB = 4864
L_ST = 6144
L_GU = 6400
L_QL = 8192
L_TILE = 24576
LDS_BYTES = 90112

S_X, S_CKV, S_WQ, S_WUK, S_WUV, S_WO, S_WG, S_WU, S_WD, S_OUT, S_DBG, S_WS = (
    's[8:9]', 's[10:11]', 's[12:13]', 's[14:15]', 's[16:17]', 's[18:19]', 's[22:23]', 's[24:25]', 's[26:27]',
    's[28:29]', 's[30:31]', 's[32:33]')
sXCD, sR, sWAVE, sH, sJ, sTAG = 's34', 's35', 's36', 's37', 's38', 's39'
POLL_LIMIT = 1 << 17


def f2u(x):
    return struct.unpack('<I', struct.pack('<f', x))[0]


class Gen:
    def __init__(s, stamps=False, stop_after=None):
        s.L = []
        s.n = 0
        s.stamps = stamps
        s.stop_after = stop_after
        s.nstamp = 0

    def __call__(s, txt):
        for line in txt.strip('\n').split('\n'):
            line = line.strip()
            if line:
                s.L.append('    ' + line)

    def label(s, name):
        s.L.append(name + ':')

    def uniq(s, base):
        s.n += 1
        return f'{base}_{s.n}'

    def nop(s, n):
        while n > 0:
            k = min(n, 16)
            s(f's_nop {k-1}')
            n -= k

    def stamp(s, idx):
        if s.stamps:
            s(f's_memrealtime s[{64+2*idx}:{65+2*idx}]')

    def stamp_flush(s, nst=16):
        if not s.stamps:
            return
        s('s_waitcnt lgkmcnt(0)')
        s('s_mov_b64 exec, 1')
        s(f's_lshl_b32 s48, s2, 3')
        s(f's_add_u32 s48, s48, {sWAVE}')
        s(f's_lshl_b32 s48, s48, 7')
        s(f's_add_u32 s48, s48, {STAMPS}')
        s('v_mov_b32 v1, s48')
        for i in range(nst):
            s(f'v_mov_b32 v2, s{64+2*i}')
            s(f'v_mov_b32 v3, s{65+2*i}')
            s(f'global_store_dwordx2 v1, v[2:3], {S_WS} offset:{8*i}')
            s('s_nop 1')
        s('s_waitcnt vmcnt(0)')

    def addr(s, dst, src, off):
        d = int(dst[2:].split(':')[0]); sr = int(src[2:].split(':')[0])
        s(f's_add_u32 s{d}, s{sr}, {off}')
        s(f's_addc_u32 s{d+1}, s{sr+1}, 0')

    def set_exec(s, mask):
        if mask == (1 << 64) - 1:
            s('s_mov_b64 exec, -1')
        else:
            s(f's_mov_b32 exec_lo, {mask & 0xffffffff:#x}')
            s(f's_mov_b32 exec_hi, {mask >> 32:#x}')

    def wave_reduce(s, regs, tmps, op='add'):
        ins = {'add': 'v_add_f32', 'max': 'v_max_f32'}[op]
        n = len(regs)
        pad = max(0, 2 - (n - 1))
        s.nop(2)
        for ctl in ['quad_perm:[1,0,3,2]', 'quad_perm:[2,3,0,1]', 'row_half_mirror', 'row_mirror']:
            for r in regs:
                s(f'{ins}_dpp v{r}, v{r}, v{r} {ctl} row_mask:0xf bank_mask:0xf')
            s.nop(pad)
        s.row_reduce(regs, tmps, op)

    def row_reduce(s, regs, tmps, op='add'):
        ins = {'add': 'v_add_f32', 'max': 'v_max_f32'}[op]
        n = len(regs)
        for sw in ['v_permlane16_swap_b32', 'v_permlane32_swap_b32']:
            for r, t in zip(regs, tmps):
                s(f'v_mov_b32 v{t}, v{r}')
            s.nop(max(0, 2 - (n - 1)))
            for r, t in zip(regs, tmps):
                s(f'{sw} v{t}, v{r}')
            s.nop(1 if n == 1 else 0)
            for r, t in zip(regs, tmps):
                s(f'{ins} v{r}, v{r}, v{t}')
            s.nop(0)

    def check_tags(s, regs, t0, t1, done_label):
        tags = []
        for r in regs:
            tags += [r + 1, r + 3]
        if len(tags) == 2:
            s(f'v_cmp_eq_u32 vcc, {sTAG}, v{tags[0]}')
            s(f'v_cmp_eq_u32 s[46:47], {sTAG}, v{tags[1]}')
        else:
            s(f'v_min3_u32 v{t0}, v{tags[0]}, v{tags[1]}, v{tags[2]}')
            s(f'v_max3_u32 v{t1}, v{tags[0]}, v{tags[1]}, v{tags[2]}')
            rest = tags[3:]
            while rest:
                if len(rest) >= 2:
                    s(f'v_min3_u32 v{t0}, v{t0}, v{rest[0]}, v{rest[1]}')
                    s(f'v_max3_u32 v{t1}, v{t1}, v{rest[0]}, v{rest[1]}')
                    rest = rest[2:]
                else:
                    s(f'v_min_u32 v{t0}, v{t0}, v{rest[0]}')
                    s(f'v_max_u32 v{t1}, v{t1}, v{rest[0]}')
                    rest = rest[1:]
            s(f'v_cmp_eq_u32 vcc, {sTAG}, v{t0}')
            s(f'v_cmp_eq_u32 s[46:47], {sTAG}, v{t1}')
        s('s_and_b64 vcc, vcc, s[46:47]')
        s('s_cmp_eq_u64 vcc, exec')
        s(f's_cbranch_scc1 {done_label}')

    def poll(s, name, emit_loads, regs, t0, t1, first_hook=None, alt=None):
        top = s.uniq(name + '_top'); done = s.uniq(name + '_done'); fail = s.uniq(name + '_fail')
        s(f's_mov_b32 s50, 0')
        if first_hook is not None:
            emit_loads(alt[0] if alt else None)
            first_hook()
            s('s_waitcnt vmcnt(0)')
            s.check_tags(regs, t0, t1, done)
        s.label(top)
        if alt:
            s('s_add_u32 s50, s50, 1')
            s('s_and_b32 s51, s50, 7')
            s('s_cmp_eq_u32 s51, 0')
            s(f's_cselect_b64 s[44:45], {alt[1]}, {alt[0]}')
            emit_loads('s[44:45]')
        else:
            s('s_add_u32 s50, s50, 1')
            emit_loads(None)
        s('s_waitcnt vmcnt(0)')
        s.check_tags(regs, t0, t1, done)
        s(f's_cmp_lt_u32 s50, {POLL_LIMIT}')
        s(f's_cbranch_scc1 {top}')
        s(f's_mov_b64 s[46:47], exec')
        s('s_mov_b64 exec, 1')
        s(f'v_mov_b32 v{t0}, {4*(s.n % 60)}')
        s(f'v_mov_b32 v{t1}, {0x1000 + s.n}')
        s(f'global_store_dword v{t0}, v{t1}, {S_DBG}')
        s(f's_mov_b64 exec, s[46:47]')
        s.label(done)

    def text(s):
        return '\n'.join(s.L) + '\n'


KAPPA = (128 ** -0.5) * 1.4426950408889634


def gen_sel(g, base, t0, t1):
    g(f'v_and_b32 v{t0}, 7, v0')
    g(f'v_and_b32 v{t1}, 1, v0')
    for par in range(2):
        lo = 0x0c0c0000 | ((2 * par + 1) << 8) | (2 * par)
        hi = ((2 * par + 1) << 24) | ((2 * par) << 16) | 0x0c0c
        g(f'v_cmp_eq_u32 vcc, 1, v{t1}')
        g(f'v_mov_b32 v{base+par}, {lo:#x}')
        g(f'v_mov_b32 v{base+2+par}, {hi:#x}')
        g(f'v_cndmask_b32 v{base+par}, v{base+par}, v{base+2+par}, vcc')
    g(f'v_lshrrev_b32 v{t0}, 1, v{t0}')
    g(f'v_mov_b32 v{t1}, 0x0c0c0c0c')
    for v in [3, 2, 1, 0]:
        g(f'v_cmp_eq_u32 vcc, {v}, v{t0}')
        g.nop(1)
        for par in range(2):
            g(f'v_cndmask_b32 v{base+2*v+par}, v{t1}, v{base+par}, vcc')


def gen_mask(g, base, t0, t1):
    g(f'v_and_b32 v{t0}, 7, v0')
    g(f'v_and_b32 v{t1}, 1, v0')
    g(f'v_cmp_eq_u32 vcc, 1, v{t1}')
    g(f'v_mov_b32 v{base}, 0xffff')
    g(f'v_mov_b32 v{base+1}, 0xffff0000')
    g(f'v_cndmask_b32 v{t1}, v{base}, v{base+1}, vcc')
    g(f'v_lshrrev_b32 v{t0}, 1, v{t0}')
    for v in range(4):
        g(f'v_cmp_eq_u32 vcc, {v}, v{t0}')
        g.nop(1)
        g(f'v_cndmask_b32 v{base+v}, 0, v{t1}, vcc')


def get_tag(g, vreg):
    g.nop(1)
    g(f'v_readfirstlane_b32 {sTAG}, v{vreg}')
    g.nop(4)
    g(f's_mul_i32 {sTAG}, {sTAG}, 5')
    g(f's_add_u32 {sTAG}, {sTAG}, 0x9E3779B9')


def rnd_bf16(g, r):
    g(f'v_cvt_pk_bf16_f32 v{r}, v{r}, v{r}')
    g(f'v_and_b32 v{r}, 0xffff0000, v{r}')


def ln_scalars(g, s1, s2, piv_sgpr, vm, vrs, t0):
    g(f's_mov_b32 s52, {f2u(1.0/640):#x}')
    g(f'v_mul_f32 v{s1}, s52, v{s1}')
    g(f'v_mul_f32 v{s2}, s52, v{s2}')
    g(f'v_fma_f32 v{s2}, -v{s1}, v{s1}, v{s2}')
    g(f'v_max_f32 v{s2}, 0, v{s2}')
    g(f'v_add_f32 v{vm}, {piv_sgpr}, v{s1}')
    rnd_bf16(g, vm)
    rnd_bf16(g, s2)
    g(f'v_add_f32 v{s2}, 0x3727c5ac, v{s2}')
    rnd_bf16(g, s2)
    g(f'v_sqrt_f32 v{s2}, v{s2}')
    g.nop(1)
    rnd_bf16(g, s2)
    g(f'v_rcp_f32 v{vrs}, v{s2}')
    g.nop(1)


def build(stamps=False, stop_after=None):
    g = Gen(stamps, stop_after)
    g('s_cmp_ge_u32 s2, 256')
    g('s_cbranch_scc1 L_end')
    g('s_load_dwordx16 s[8:23], s[0:1], 0')
    g('s_load_dwordx8 s[24:31], s[0:1], 64')
    g('s_load_dwordx2 s[32:33], s[0:1], 96')
    g.stamp(0)
    g('v_lshrrev_b32 v1, 6, v0')
    g('v_and_b32 v0, 63, v0')
    g(f'v_readfirstlane_b32 {sWAVE}, v1')
    g(f's_and_b32 {sXCD}, s2, 7')
    g(f's_lshr_b32 {sR}, s2, 3')
    g(f's_lshr_b32 {sH}, {sR}, 3')
    g(f's_lshl_b32 s48, {sXCD}, 2')
    g(f's_add_u32 {sH}, {sH}, s48')
    g(f's_and_b32 {sJ}, {sR}, 7')
    g('v_mov_b32 v1, 0')
    g('v_lshlrev_b32 v3, 4, v0')
    g('s_waitcnt lgkmcnt(0)')
    g(f'global_load_dword v2, v1, {S_WS} sc1')
    g(f's_cmp_eq_u32 {sWAVE}, 0')
    g('s_cbranch_scc1 L_w0')
    g(f's_cmp_le_u32 {sWAVE}, 4')
    g('s_cbranch_scc1 L_w14')
    g(f's_cmp_eq_u32 {sWAVE}, 5')
    g('s_cbranch_scc1 L_w5')
    g(f's_cmp_eq_u32 {sWAVE}, 7')
    g('s_cbranch_scc1 L_w7')
    g('s_waitcnt vmcnt(0)')
    get_tag(g, 2)
    g('s_branch L_b1')

    g.label('L_w7')
    g('s_getpc_b64 s[40:41]')
    g.label('L_pc_ref')
    g(f's_lshl_b32 s48, {sR}, 10')
    g(f's_add_u32 s40, s40, s48')
    g('s_addc_u32 s41, s41, 0')
    g('global_load_dwordx4 v[4:7], v3, s[40:41]')
    g('s_waitcnt vmcnt(0)')
    get_tag(g, 2)
    g('s_branch L_b1')

    g.label('L_w5')
    g('v_mov_b32 v4, 0')
    g('v_lshlrev_b32 v5, 2, v0')
    g(f'ds_write_b32 v5, v4 offset:{L_CT}')
    g(f'ds_write_b32 v5, v4 offset:{L_CT+256}')
    g(f'ds_write_b32 v5, v4 offset:{L_OT}')
    g(f'ds_write_b32 v5, v4 offset:{L_GU}')
    g(f'ds_write_b32 v5, v4 offset:{L_ST}')
    g('s_waitcnt vmcnt(0) lgkmcnt(0)')
    get_tag(g, 2)
    g('s_branch L_b1')

    g.label('L_w0')
    g('v_lshlrev_b32 v4, 2, v0')
    for k in range(5):
        g(f'global_load_dword v{10+k}, v4, {S_X} offset:{256*k}')
    g('v_min_u32 v5, 39, v0')
    g('v_lshlrev_b32 v5, 2, v5')
    g(f's_mul_i32 s48, {sJ}, 160')
    g('v_add_u32 v5, s48, v5')
    g(f'global_load_dword v15, v5, {S_X}')
    g('v_lshrrev_b32 v6, 4, v0')
    g('v_and_b32 v7, 15, v0')
    g(f's_mov_b32 s49, {20*8192}')
    g('v_mul_lo_u32 v8, v6, s49')
    g('v_lshl_add_u32 v8, v7, 4, v8')
    g(f's_mul_i32 s48, {sJ}, {80*8192}')
    g(f's_lshl_b32 s49, {sH}, 8')
    g('s_add_u32 s48, s48, s49')
    g.addr('s[40:41]', S_WQ, 's48')
    for t in range(20):
        g(f'global_load_dwordx4 v[{32+4*t}:{35+4*t}], v8, s[40:41] nt')
        if t < 19:
            g('s_add_u32 s40, s40, 8192')
            g('s_addc_u32 s41, s41, 0')
    gen_sel(g, 192, 16, 17)
    g('s_waitcnt vmcnt(20)')
    g.stamp(1)
    get_tag(g, 2)
    for k in range(5):
        g(f'v_lshlrev_b32 v{16+2*k}, 16, v{10+k}')
        g(f'v_and_b32 v{17+2*k}, 0xffff0000, v{10+k}')
    g('v_readfirstlane_b32 s53, v16')
    g.nop(2)
    for k in range(10):
        g(f'v_subrev_f32 v{16+k}, s53, v{16+k}')
    g('v_mul_f32 v27, v16, v16')
    g('v_add_f32 v26, v16, v17')
    g('v_fmac_f32 v27, v17, v17')
    for k in range(2, 10):
        g(f'v_add_f32 v26, v26, v{16+k}')
        g(f'v_fmac_f32 v27, v{16+k}, v{16+k}')
    g.wave_reduce([26, 27], [28, 29])
    ln_scalars(g, 26, 27, 's53', 28, 29, 30)
    g('v_lshlrev_b32 v16, 16, v15')
    g('v_and_b32 v17, 0xffff0000, v15')
    g('v_sub_f32 v16, v16, v28')
    g('v_sub_f32 v17, v17, v28')
    g('v_cvt_pk_bf16_f32 v18, v16, v17')
    g('v_lshlrev_b32 v16, 16, v18')
    g('v_and_b32 v17, 0xffff0000, v18')
    g('v_mul_f32 v16, v16, v29')
    g('v_mul_f32 v17, v17, v29')
    g('v_cvt_pk_bf16_f32 v18, v16, v17')
    g(f'ds_write_b32 v4, v18 offset:{L_XN}')
    g('v_mul_u32_u24 v19, 40, v6')
    g('s_waitcnt lgkmcnt(0)')
    for k in range(5):
        g(f'ds_read_b64 v[{16+2*k}:{17+2*k}], v19 offset:{L_XN+8*k}')
    for rr in (205, 207, 209, 211):
        g(f'v_mov_b32 v{rr}, {sTAG}')
    g('v_lshlrev_b32 v9, 6, v7')
    g('v_lshl_add_u32 v9, v6, 5, v9')
    g(f's_lshl_b32 s48, {sH}, 3')
    g(f's_add_u32 s48, s48, {sJ}')
    g('s_lshl_b32 s48, s48, 10')
    g(f's_add_u32 s49, s48, {Q1L}')
    g.addr('s[40:41]', S_WS, 's49')
    g(f's_add_u32 s49, s48, {Q1G}')
    g.addr('s[42:43]', S_WS, 's49')
    g('s_waitcnt lgkmcnt(0)')

    def perms(t):
        a = 112 + 4 * (t % 2)
        for v in range(4):
            g(f'v_perm_b32 v{a+v}, v{16+t//2}, v{16+t//2}, v{192+2*v+(t&1)}')
    perms(0)
    for t in range(20):
        if t + 1 < 20:
            perms(t + 1)
        else:
            g.nop(2)
        g(f's_waitcnt vmcnt({19-t})')
        a = 112 + 4 * (t % 2)
        c = '0' if t == 0 else 'v[200:203]'
        g(f'v_mfma_f32_16x16x32_bf16 v[200:203], v[{a}:{a+3}], v[{32+4*t}:{35+4*t}], {c}')
    g.nop(8)
    g('v_mov_b32 v204, v200')
    g('v_mov_b32 v206, v201')
    g('v_mov_b32 v208, v202')
    g('v_mov_b32 v210, v203')
    g.set_exec(0xffffffff)
    g('global_store_dwordx4 v9, v[204:207], s[40:41]')
    g('global_store_dwordx4 v9, v[208:211], s[40:41] offset:16')
    g('global_store_dwordx4 v9, v[204:207], s[42:43] sc1')
    g('global_store_dwordx4 v9, v[208:211], s[42:43] offset:16 sc1')
    g('s_mov_b64 exec, -1')
    g.stamp(2)
    g('s_branch L_b1')

    g.label('L_w14')
    g(f's_sub_u32 s54, {sWAVE}, 1')
    g('v_and_b32 v7, 15, v0')
    g('v_lshrrev_b32 v6, 4, v0')
    g('v_lshlrev_b32 v8, 13, v7')
    g('v_lshl_add_u32 v8, v6, 4, v8')
    g(f's_lshl_b32 s48, {sJ}, 2')
    g('s_add_u32 s48, s48, s54')
    g('s_lshl_b32 s48, s48, 17')
    g(f's_lshl_b32 s49, {sH}, 8')
    g('s_add_u32 s48, s48, s49')
    g.addr('s[40:41]', S_WUK, 's48')
    for t in range(4):
        g(f'global_load_dwordx4 v[{64+4*t}:{67+4*t}], v8, s[40:41] offset:{64*t} nt')
    g('s_waitcnt vmcnt(4)')
    get_tag(g, 2)
    g(f's_cmp_eq_u32 {sWAVE}, 1')
    g('s_cbranch_scc0 L_b1')
    g(f's_lshl_b32 s48, {sH}, 13')
    g(f's_add_u32 s49, s48, {Q1L}')
    g.addr('s[40:41]', S_WS, 's49')
    g(f's_add_u32 s49, s48, {Q1G}')
    g.addr('s[42:43]', S_WS, 's49')
    g('v_add_u32 v4, 4096, v3')

    def q1_loads(base):
        for k in range(8):
            vo = 'v3' if k < 4 else 'v4'
            g(f'global_load_dwordx4 v[{32+4*k}:{35+4*k}], {vo}, {base} offset:{1024*(k%4)} sc1')
    g.poll('q1', q1_loads, [32 + 4 * k for k in range(8)], 10, 11, alt=('s[40:41]', 's[42:43]'))
    g.stamp(3)
    g('v_add_f32 v12, v32, v36')
    g('v_add_f32 v13, v34, v38')
    for k in range(2, 8):
        g(f'v_add_f32 v12, v12, v{32+4*k}')
        g(f'v_add_f32 v13, v13, v{34+4*k}')
    g('v_cvt_pk_bf16_f32 v12, v12, v13')
    g('v_lshlrev_b32 v14, 2, v0')
    g(f'ds_write_b32 v14, v12 offset:{L_QB}')
    g('s_waitcnt lgkmcnt(0)')

    g.label('L_b1')
    g('s_barrier')
    g(f's_sub_u32 s54, {sWAVE}, 1')
    g('s_cmp_lt_u32 s54, 4')
    g('s_cbranch_scc0 L_b2')
    g('v_lshlrev_b32 v9, 4, v6')
    for t in range(4):
        g(f'ds_read_b128 v[{80+4*t}:{83+4*t}], v9 offset:{L_QB+64*t}')
    g(f'v_mov_b32 v101, {sTAG}')
    g(f'v_mov_b32 v103, {sTAG}')
    g(f's_lshl_b32 s48, {sH}, 11')
    g(f's_lshl_b32 s49, {sJ}, 8')
    g('s_add_u32 s48, s48, s49')
    g('s_lshl_b32 s49, s54, 6')
    g('s_add_u32 s48, s48, s49')
    g(f's_add_u32 s48, s48, {QA}')
    g.addr('s[40:41]', S_WS, 's48')
    g(f's_mov_b32 s52, {f2u(KAPPA):#x}')
    g('s_waitcnt vmcnt(0)')
    for t in range(4):
        g(f's_waitcnt lgkmcnt({3-t})')
        c = '0' if t == 0 else 'v[96:99]'
        g(f'v_mfma_f32_16x16x32_bf16 v[96:99], v[{64+4*t}:{67+4*t}], v[{80+4*t}:{83+4*t}], {c}')
    g.nop(8)
    for k in range(4):
        g(f'v_mul_f32 v{96+k}, s52, v{96+k}')
    g('v_cvt_pk_bf16_f32 v100, v96, v97')
    g('v_cvt_pk_bf16_f32 v102, v98, v99')
    g('s_mov_b32 exec_lo, 0x00010001')
    g('s_mov_b32 exec_hi, 0x00010001')
    g('global_store_dwordx4 v9, v[100:103], s[40:41] sc1')
    g('s_mov_b64 exec, -1')
    g.stamp(4)
    g.label('L_b2')
    g('s_barrier')
    if stop_after == 2:
        g('s_branch L_fin')
    g(f's_cmp_ge_u32 {sR}, 16')
    g('s_cbranch_scc1 L_pathB')

    g(f's_and_b32 s55, {sR}, 1')
    g(f's_lshr_b32 s56, {sR}, 1')
    g(f's_lshl_b32 s57, {sXCD}, 3')
    g('s_add_u32 s57, s57, s56')
    g('s_lshl_b32 s48, s57, 6')
    g(f's_lshl_b32 s49, {sWAVE}, 3')
    g('s_add_u32 s48, s48, s49')
    g('s_lshl_b32 s48, s48, 10')
    g.addr('s[40:41]', S_CKV, 's48')
    g(f's_lshl_b32 s49, {sWAVE}, 13')
    g(f's_add_u32 s49, s49, {L_TILE}')
    g('s_mov_b32 m0, s49')
    for i in range(8):
        if i == 4:
            g('s_add_u32 s49, s49, 4096')
            g('s_mov_b32 m0, s49')
            g('s_add_u32 s40, s40, 4096')
            g('s_addc_u32 s41, s41, 0')
        g(f'v_xor_b32 v4, {32*i}, v3')
        g(f'global_load_lds_dwordx4 v4, s[40:41] offset:{1024*(i%4)} nt')
    g('v_and_b32 v7, 15, v0')
    g('v_lshrrev_b32 v6, 4, v0')
    g('v_and_b32 v8, 7, v0')
    g('v_lshlrev_b32 v8, 1, v8')
    for tl in range(4):
        g(f'v_add_u32 v9, {4*tl}, v6')
        g('v_xor_b32 v9, v9, v8')
        g('v_lshlrev_b32 v9, 4, v9')
        g(f'v_lshl_add_u32 v{32+tl}, v7, 10, v9')
    g(f's_lshl_b32 s48, {sWAVE}, 14')
    g(f's_add_u32 s48, s48, {L_TILE}')
    for tl in range(4):
        g(f'v_add_u32 v{36+tl}, s48, v{32+tl}')
    g('v_lshrrev_b32 v9, 2, v0')
    g('v_and_b32 v10, 7, v9')
    g('v_lshlrev_b32 v9, 10, v9')
    g('v_and_b32 v11, 3, v0')
    g('v_lshl_add_u32 v9, v11, 3, v9')
    g(f's_lshr_b32 s48, {sWAVE}, 1')
    g('s_lshl_b32 s48, s48, 8')
    g(f's_add_u32 s48, s48, {L_TILE}')
    g('v_add_u32 v9, s48, v9')
    g(f's_and_b32 s48, {sWAVE}, 1')
    g('s_lshl_b32 s48, s48, 2')
    for nn in range(4):
        g(f's_add_u32 s49, s48, {nn}')
        g('v_xor_b32 v11, s49, v10')
        g(f'v_lshl_add_u32 v{40+nn}, v11, 5, v9')
    g('v_lshrrev_b32 v9, 1, v0')
    g('v_and_b32 v10, 1, v0')
    g('v_lshlrev_b32 v10, 3, v10')
    for ih in range(2):
        g(f's_lshl_b32 s48, {sWAVE}, 1')
        g(f's_add_u32 s48, s48, {ih}')
        g('s_and_b32 s49, s48, 7')
        g('s_lshl_b32 s49, s49, 1')
        g('v_xor_b32 v11, s49, v9')
        g('v_lshl_add_u32 v11, v11, 4, v10')
        g('s_lshl_b32 s48, s48, 10')
        g(f's_add_u32 s48, s48, {L_QL}')
        g(f'v_add_u32 v{44+ih}, s48, v11')
    g('s_lshl_b32 s48, s55, 15')
    g(f's_lshl_b32 s49, {sWAVE}, 12')
    g('s_add_u32 s48, s48, s49')
    g(f's_add_u32 s48, s48, {QA}')
    g.addr('s[40:41]', S_WS, 's48')

    def qa_loads(_):
        for i in range(4):
            g(f'global_load_dwordx4 v[{16+4*i}:{19+4*i}], v3, s[40:41] offset:{1024*i} sc1')

    FA = 64
    FT = 128
    FQ = 160

    def frag_hook():
        g('s_waitcnt vmcnt(4)')
        g('s_barrier')
        skip = g.uniq('skipfa')
        g(f's_cmp_lt_u32 {sWAVE}, 4')
        g(f's_cbranch_scc0 {skip}')
        for t in range(16):
            g(f'ds_read_b128 v[{FA+4*t}:{FA+4*t+3}], v{36+(t%4)} offset:{256*(t//4)}')
        g.label(skip)
        for nn in range(4):
            for b in range(4):
                d = FT + nn * 8 + (b // 2) * 4 + (b % 2) * 2
                g(f'ds_read_b64_tr_b16 v[{d}:{d+1}], v{40+nn} offset:{16384*b}')
    g.poll('qa', qa_loads, [16, 20, 24, 28], 10, 11, first_hook=frag_hook)
    g.stamp(5)
    for i in range(4):
        o = 128 * (i & 1)
        g(f'ds_write2_b32 v{44+(i>>1)}, v{16+4*i}, v{18+4*i} offset0:{o} offset1:{o+1}')
    g('s_waitcnt lgkmcnt(0)')
    g('s_barrier')
    g(f's_cmp_lt_u32 {sWAVE}, 4')
    g('s_cbranch_scc0 L_a_b5')
    for t in range(16):
        g(f'ds_read_b128 v[{FQ+4*t}:{FQ+4*t+3}], v{32+(t%4)} offset:{L_QL+256*(t//4)}')
    for t in range(16):
        g(f's_waitcnt lgkmcnt({15-t})')
        c = '0' if t == 0 else 'v[48:51]'
        g(f'v_mfma_f32_16x16x32_bf16 v[48:51], v[{FA+4*t}:{FA+4*t+3}], v[{FQ+4*t}:{FQ+4*t+3}], {c}')
    g('v_lshlrev_b32 v12, 4, v7')
    g(f's_lshl_b32 s48, {sWAVE}, 2')
    g('v_add_u32 v13, s48, v12')
    g.nop(6)
    g('v_max_f32 v52, v48, v49')
    g('v_max3_f32 v52, v52, v50, v51')
    g.row_reduce([52], [53], 'max')
    g(f'ds_write_b32 v13, v52 offset:{L_MB}')
    g('s_waitcnt lgkmcnt(0)')
    g.label('L_a_b5')
    g('s_barrier')
    g(f's_cmp_lt_u32 {sWAVE}, 4')
    g('s_cbranch_scc0 L_a_b6')
    g(f'ds_read_b128 v[52:55], v12 offset:{L_MB}')
    g('s_waitcnt lgkmcnt(0)')
    g('v_max_f32 v52, v52, v53')
    g('v_max3_f32 v52, v52, v54, v55')
    for k in range(4):
        g(f'v_sub_f32 v{48+k}, v{48+k}, v52')
    for k in range(4):
        g(f'v_exp_f32 v{48+k}, v{48+k}')
    g.nop(1)
    g('v_cvt_pk_bf16_f32 v54, v48, v49')
    g('v_cvt_pk_bf16_f32 v55, v50, v51')
    g('v_lshlrev_b32 v14, 3, v0')
    g(f's_lshl_b32 s48, {sWAVE}, 9')
    g('v_add_u32 v14, s48, v14')
    g(f'ds_write_b64 v14, v[54:55] offset:{L_PB}')
    g('v_add_f32 v52, v48, v49')
    g('v_add_f32 v53, v50, v51')
    g('v_add_f32 v52, v52, v53')
    g.row_reduce([52], [53], 'add')
    g(f'ds_write_b32 v13, v52 offset:{L_LB}')
    g('s_waitcnt lgkmcnt(0)')
    g.label('L_a_b6')
    g('s_barrier')
    g('v_lshlrev_b32 v14, 3, v0')
    for b in range(4):
        g(f'ds_read_b64 v[{48+2*b}:{49+2*b}], v14 offset:{L_PB+512*b}')
    g(f's_cmp_eq_u32 {sWAVE}, 7')
    g('s_cbranch_scc0 L_a_pv')
    g('v_lshlrev_b32 v12, 4, v7')
    g(f'ds_read_b128 v[16:19], v12 offset:{L_MB}')
    g(f'ds_read_b128 v[20:23], v12 offset:{L_LB}')
    g('s_lshl_b32 s48, s55, 14')
    g('s_lshl_b32 s49, s57, 4')
    g('s_add_u32 s48, s48, s49')
    g(f's_add_u32 s48, s48, {ML}')
    g.addr('s[42:43]', S_WS, 's48')
    g('v_lshlrev_b32 v12, 10, v7')
    g('s_waitcnt lgkmcnt(0)')
    g('v_max_f32 v16, v16, v17')
    g('v_max3_f32 v16, v16, v18, v19')
    g('v_add_f32 v20, v20, v21')
    g('v_add_f32 v22, v22, v23')
    g('v_add_f32 v18, v20, v22')
    g(f'v_mov_b32 v17, {sTAG}')
    g(f'v_mov_b32 v19, {sTAG}')
    g.set_exec(0xffff)
    g('global_store_dwordx4 v12, v[16:19], s[42:43] sc1')
    g('s_mov_b64 exec, -1')
    g.label('L_a_pv')
    g('s_lshl_b32 s48, s55, 21')
    g(f's_lshr_b32 s49, {sWAVE}, 1')
    g('s_lshl_b32 s49, s49, 15')
    g('s_add_u32 s48, s48, s49')
    g(f's_and_b32 s49, {sWAVE}, 1')
    g('s_lshl_b32 s49, s49, 14')
    g('s_add_u32 s48, s48, s49')
    g('s_lshl_b32 s49, s57, 6')
    g('s_add_u32 s48, s48, s49')
    g(f's_add_u32 s48, s48, {OP}')
    g.addr('s[40:41]', S_WS, 's48')
    g('v_lshlrev_b32 v12, 17, v7')
    g('v_lshl_add_u32 v12, v6, 4, v12')
    g('s_waitcnt lgkmcnt(0)')
    for nn in range(4):
        for s2 in range(2):
            c = '0' if s2 == 0 else f'v[{224+4*nn}:{227+4*nn}]'
            a = FT + nn * 8 + s2 * 4
            g(f'v_mfma_f32_16x16x32_bf16 v[{224+4*nn}:{227+4*nn}], v[{a}:{a+3}], v[{48+4*s2}:{51+4*s2}], {c}')
    for nn in range(4):
        g(f'v_mov_b32 v{17+4*nn}, {sTAG}')
        g(f'v_mov_b32 v{19+4*nn}, {sTAG}')
    for nn in range(4):
        if nn == 3:
            pass
        g(f'v_cvt_pk_bf16_f32 v{16+4*nn}, v{224+4*nn}, v{225+4*nn}')
        g(f'v_cvt_pk_bf16_f32 v{18+4*nn}, v{226+4*nn}, v{227+4*nn}')
        g(f'global_store_dwordx4 v12, v[{16+4*nn}:{19+4*nn}], s[40:41] sc1')
        g('s_add_u32 s40, s40, 4096')
        g('s_addc_u32 s41, s41, 0')
    g.stamp(6)
    if stop_after == 3:
        g('s_branch L_fin')

    g(f's_lshr_b32 s55, {sR}, 2')
    g(f's_lshl_b32 s48, {sXCD}, 2')
    g('s_add_u32 s56, s55, s48')
    g(f's_and_b32 s57, {sR}, 3')
    g('s_lshl_b32 s48, s57, 3')
    g(f's_add_u32 s48, s48, {sWAVE}')
    g('s_lshl_b32 s48, s48, 17')
    g('s_lshl_b32 s49, s56, 8')
    g('s_add_u32 s48, s48, s49')
    g.addr('s[40:41]', S_WUV, 's48')
    g('v_lshlrev_b32 v8, 13, v6')
    g('v_lshl_add_u32 v8, v7, 4, v8')
    for tt in range(4):
        g(f'global_load_dwordx4 v[{64+4*tt}:{67+4*tt}], v8, s[40:41] nt')
        if tt < 3:
            g('s_add_u32 s40, s40, 32768')
            g('s_addc_u32 s41, s41, 0')
    gen_mask(g, 80, 9, 10)
    g('s_lshl_b32 s48, s56, 10')
    g(f's_add_u32 s48, s48, {ML}')
    g.addr('s[40:41]', S_WS, 's48')

    def ml_loads(_):
        g('global_load_dwordx4 v[16:19], v3, s[40:41] sc1')
    g.poll('ml', ml_loads, [16], 10, 11)
    g('v_mov_b32 v20, v16')
    g.wave_reduce([20], [21], 'max')
    g('v_sub_f32 v16, v16, v20')
    g('v_exp_f32 v16, v16')
    g.nop(1)
    g('v_mul_f32 v20, v16, v18')
    g.wave_reduce([20], [21], 'add')
    g('v_rcp_f32 v20, v20')
    g.nop(1)
    g('v_mul_f32 v16, v16, v20')
    g('v_lshrrev_b32 v9, 2, v0')
    g('v_lshlrev_b32 v9, 2, v9')
    for i in range(4):
        g(f'v_add_u32 v10, {64*i}, v9')
        g(f'ds_bpermute_b32 v{20+i}, v10, v16')
    g('s_lshl_b32 s48, s56, 2')
    g('s_add_u32 s48, s48, s57')
    g('s_lshl_b32 s48, s48, 3')
    g(f's_add_u32 s48, s48, {sWAVE}')
    g('s_lshl_b32 s48, s48, 12')
    g(f's_add_u32 s48, s48, {OP}')
    g.addr('s[40:41]', S_WS, 's48')

    def o_loads(_):
        for i in range(4):
            g(f'global_load_dwordx4 v[{32+4*i}:{35+4*i}], v3, s[40:41] offset:{1024*i} sc1')
    g.poll('op', o_loads, [32, 36, 40, 44], 10, 11)
    g.stamp(7)
    g('s_waitcnt lgkmcnt(0)')
    for i in range(4):
        for half, src in ((0, 32 + 4 * i), (1, 34 + 4 * i)):
            g(f'v_lshlrev_b32 v10, 16, v{src}')
            g(f'v_and_b32 v11, 0xffff0000, v{src}')
            for k, tmp in ((0, 10), (1, 11)):
                acc = 24 + 2 * half + k
                if i == 0:
                    g(f'v_mul_f32 v{acc}, v{20+i}, v{tmp}')
                else:
                    g(f'v_fmac_f32 v{acc}, v{20+i}, v{tmp}')
    g.nop(2)
    g('v_permlane32_swap_b32 v24, v26')
    g('v_permlane32_swap_b32 v25, v27')
    g.nop(1)
    g('v_add_f32 v24, v24, v26')
    g('v_add_f32 v25, v25, v27')
    g.nop(2)
    g('v_permlane16_swap_b32 v24, v25')
    g.nop(1)
    g('v_add_f32 v24, v24, v25')
    g.nop(2)
    g('v_add_f32_dpp v24, v24, v24 row_ror:4 row_mask:0xf bank_mask:0xf')
    g.nop(2)
    g('v_add_f32_dpp v24, v24, v24 row_ror:8 row_mask:0xf bank_mask:0xf')
    g('v_cvt_pk_bf16_f32 v24, v24, v24')
    g.nop(2)
    for tt in range(4):
        a = 84 + 4 * (tt % 2)
        for v in range(4):
            g(f'v_and_b32_dpp v{a+v}, v24, v{80+v} quad_perm:[{tt},{tt},{tt},{tt}] row_mask:0xf bank_mask:0xf')
        g.nop(2)
        c = '0' if tt == 0 else 'v[92:95]'
        g(f'v_mfma_f32_16x16x32_bf16 v[92:95], v[{a}:{a+3}], v[{64+4*tt}:{67+4*tt}], {c}')
    g('v_lshlrev_b32 v12, 5, v7')
    g('v_lshl_add_u32 v12, v6, 4, v12')
    g.nop(6)
    g.set_exec(0xffffffff)
    for k in range(4):
        g(f'ds_add_f32 v12, v{92+k} offset:{L_CT+4*k}')
    g('s_mov_b64 exec, -1')
    g('s_waitcnt lgkmcnt(0)')
    g('s_barrier')
    g(f's_cmp_eq_u32 {sWAVE}, 0')
    g('s_cbranch_scc0 L_a_red')
    g('v_lshlrev_b32 v12, 3, v0')
    g(f'ds_read_b64 v[16:17], v12 offset:{L_CT}')
    g(f's_lshl_b32 s48, {sXCD}, 4')
    g(f's_add_u32 s48, s48, {sR}')
    g('s_lshl_b32 s48, s48, 10')
    g(f's_add_u32 s49, s48, {C4L}')
    g.addr('s[40:41]', S_WS, 's49')
    g(f's_add_u32 s49, s48, {C4G}')
    g.addr('s[42:43]', S_WS, 's49')
    g(f'v_mov_b32 v21, {sTAG}')
    g(f'v_mov_b32 v23, {sTAG}')
    g('s_waitcnt lgkmcnt(0)')
    g('v_mov_b32 v20, v16')
    g('v_mov_b32 v22, v17')
    g.nop(1)
    g('global_store_dwordx4 v3, v[20:23], s[40:41]')
    g('global_store_dwordx4 v3, v[20:23], s[42:43] sc1')
    g.stamp(8)
    g.label('L_a_red')
    if stop_after == 4:
        g('s_branch L_fin')
    g(f's_cmp_eq_u32 {sWAVE}, 7')
    g('s_cbranch_scc0 L_fin')
    g(f's_cmp_lt_u32 {sR}, 10')
    g('s_cbranch_scc0 L_fin')
    g(f's_mul_i32 s55, {sXCD}, 10')
    g(f's_add_u32 s55, s55, {sR}')
    g('v_and_b32 v7, 3, v0')
    g('v_lshrrev_b32 v6, 5, v0')
    g('v_lshl_add_u32 v8, v7, 1, v6')
    g('s_lshl_b32 s48, s55, 3')
    g('v_add_u32 v8, s48, v8')
    g('v_lshlrev_b32 v8, 1, v8')
    g(f'global_load_ushort v30, v8, {S_X}')
    g('v_bfe_u32 v9, v0, 2, 3')
    g('v_mul_u32_u24 v9, 5120, v9')
    g('v_lshl_add_u32 v9, v7, 4, v9')
    g('s_lshl_b32 s48, s55, 6')
    g(f's_add_u32 s48, s48, {OUTP}')
    g.addr('s[40:41]', S_WS, 's48')

    def h_loads(_):
        g('global_load_dwordx4 v[16:19], v9, s[40:41] sc1')
    g.poll('hf', h_loads, [16], 10, 11)
    g('v_cmp_le_u32 vcc, 32, v0')
    g.nop(1)
    g('v_cndmask_b32 v16, v16, v18, vcc')
    g('v_mov_b32 v17, v16')
    g.nop(2)
    g('v_permlane16_swap_b32 v17, v16')
    g.nop(1)
    g('v_add_f32 v16, v16, v17')
    g.nop(2)
    g('v_add_f32_dpp v16, v16, v16 row_ror:4 row_mask:0xf bank_mask:0xf')
    g.nop(2)
    g('v_add_f32_dpp v16, v16, v16 row_ror:8 row_mask:0xf bank_mask:0xf')
    rnd_bf16(g, 16)
    g('v_lshlrev_b32 v30, 16, v30')
    g('v_add_f32 v30, v30, v16')
    rnd_bf16(g, 30)
    g('s_lshl_b32 s48, s55, 12')
    g(f's_add_u32 s48, s48, {O2P}')
    g.addr('s[40:41]', S_WS, 's48')
    g('v_mov_b32 v44, 0')
    g(f'v_mov_b32 v45, {sTAG}')
    g('v_mov_b32 v46, 0')
    g(f'v_mov_b32 v47, {sTAG}')

    def o2_loads(_):
        for i in range(3):
            g(f'global_load_dwordx4 v[{32+4*i}:{35+4*i}], v3, s[40:41] offset:{1024*i} sc1')
        g.set_exec(0xffffff)
        g('global_load_dwordx4 v[44:47], v3, s[40:41] offset:3072 sc1')
        g('s_mov_b64 exec, -1')
    g.poll('o2', o2_loads, [32, 36, 40, 44], 10, 11)
    g.stamp(9)
    g('v_add_f32 v16, v32, v36')
    g('v_add_f32 v17, v34, v38')
    g('v_add_f32 v18, v40, v44')
    g('v_add_f32 v19, v42, v46')
    g('v_add_f32 v16, v16, v18')
    g('v_add_f32 v17, v17, v19')
    g.nop(2)
    g('v_permlane32_swap_b32 v16, v17')
    g.nop(1)
    g('v_add_f32 v16, v16, v17')
    g('v_mov_b32 v17, v16')
    g.nop(2)
    g('v_permlane16_swap_b32 v17, v16')
    g.nop(1)
    g('v_add_f32 v16, v16, v17')
    g.nop(2)
    g('v_add_f32_dpp v16, v16, v16 row_ror:4 row_mask:0xf bank_mask:0xf')
    g.nop(2)
    g('v_add_f32_dpp v16, v16, v16 row_ror:8 row_mask:0xf bank_mask:0xf')
    rnd_bf16(g, 16)
    g('v_add_f32 v16, v16, v30')
    g('v_cvt_pk_bf16_f32 v16, v16, v16')
    g('s_mov_b32 exec_lo, 0xf')
    g('s_mov_b32 exec_hi, 0xf')
    g(f'global_store_short v8, v16, {S_OUT}')
    g('s_mov_b64 exec, -1')
    g('s_cmp_eq_u32 s55, 0')
    g('s_cbranch_scc0 L_fin')
    g('s_mov_b64 exec, 1')
    g('v_mov_b32 v1, 0')
    g(f'v_mov_b32 v2, {sTAG}')
    g(f'global_store_dword v1, v2, {S_WS} sc1')
    g('s_mov_b64 exec, -1')
    g('s_branch L_fin')

    g.label('L_pathB')
    if stop_after in (3, 4):
        g('s_branch L_fin')
    g('v_and_b32 v7, 15, v0')
    g('v_lshrrev_b32 v6, 4, v0')
    g('v_lshrrev_b32 v8, 3, v7')
    g('v_and_b32 v9, 7, v0')
    g('v_lshl_add_u32 v10, v8, 2, v6')
    g('s_mov_b32 s58, -1')
    g(f's_cmp_ge_u32 {sR}, 26')
    g('s_cbranch_scc0 L_b_r1')
    g(f's_sub_u32 s48, {sR}, 26')
    g('s_lshr_b32 s49, s48, 1')
    g('s_lshl_b32 s49, s49, 3')
    g(f's_add_u32 s49, s49, {sXCD}')
    g('s_lshl_b32 s49, s49, 1')
    g('s_and_b32 s48, s48, 1')
    g('s_add_u32 s58, s49, s48')
    g('s_branch L_b_r2')
    g.label('L_b_r1')
    g(f's_cmp_ge_u32 {sR}, 24')
    g('s_cbranch_scc0 L_b_r2')
    g(f's_cmp_lt_u32 {sXCD}, 3')
    g('s_cbranch_scc0 L_b_r2')
    g(f's_add_u32 s49, {sXCD}, 24')
    g('s_lshl_b32 s49, s49, 1')
    g(f's_sub_u32 s48, {sR}, 24')
    g('s_add_u32 s58, s49, s48')
    g.label('L_b_r2')
    g(f's_cmp_lt_u32 {sR}, 26')
    g('s_cbranch_scc0 L_b_nowo')
    g(f's_lshl_b32 s48, {sXCD}, 3')
    g(f's_add_u32 s48, s48, {sWAVE}')
    g(f's_mul_i32 s48, s48, {64*1280}')
    g(f's_sub_u32 s49, {sR}, 16')
    g('s_lshl_b32 s49, s49, 7')
    g('s_add_u32 s48, s48, s49')
    g.addr('s[40:41]', S_WO, 's48')
    g(f'v_mul_u32_u24 v11, {8*1280}, v10')
    g('v_lshl_add_u32 v11, v9, 4, v11')
    g('v_add_u32 v12, 5120, v11')
    for t in range(8):
        vo = 'v11' if t < 4 else 'v12'
        g(f'global_load_dwordx4 v[{32+4*t}:{35+4*t}], {vo}, s[40:41] offset:{1280*(t%4)} nt')
    g.label('L_b_nowo')
    g('s_cmp_eq_u32 s58, -1')
    g('s_cbranch_scc1 L_b_nomlp')
    g('v_cmp_le_u32 vcc, 4, v9')
    g(f'v_mov_b32 v12, s22')
    g(f'v_mov_b32 v13, s24')
    g(f'v_mov_b32 v14, s23')
    g(f'v_mov_b32 v15, s25')
    g('v_cndmask_b32 v12, v12, v13, vcc')
    g('v_cndmask_b32 v13, v14, v15, vcc')
    g('v_and_b32 v14, 3, v0')
    g('v_lshlrev_b32 v14, 4, v14')
    g('s_lshl_b32 s48, s58, 6')
    g(f's_mul_i32 s49, {sWAVE}, {80*3456}')
    g('s_add_u32 s48, s48, s49')
    g('v_add_u32 v14, s48, v14')
    g(f'v_mul_u32_u24 v15, {8*3456}, v10')
    g('v_add_u32 v15, v15, v14')
    g(f'v_mul_u32_u24 v16, {2*3456}, v10')
    g('v_add_u32 v16, v16, v14')
    g(f'v_add_u32 v16, {64*3456}, v16')
    for t in range(10):
        if t == 0:
            src = 15
        elif t == 8:
            src = 16
        g(f'v_add_co_u32 v18, vcc, v12, v{src}')
        g.nop(2)
        g('v_addc_co_u32 v19, vcc, 0, v13, vcc')
        g(f'global_load_dwordx4 v[{64+4*t}:{67+4*t}], v[18:19], off nt')
        g(f'v_add_u32 v{src}, 3456, v{src}')
    g('s_lshl_b32 s48, s58, 5')
    g(f's_mul_i32 s48, s48, 1280')
    g(f's_lshl_b32 s49, {sWAVE}, 7')
    g('s_add_u32 s48, s48, s49')
    g.addr('s[40:41]', S_WD, 's48')
    g(f'v_mul_u32_u24 v11, {4*1280}, v10')
    g('v_lshl_add_u32 v11, v9, 4, v11')
    for t in range(4):
        g(f'global_load_dwordx4 v[{104+4*t}:{107+4*t}], v11, s[40:41] offset:{1280*t} nt')
    g(f's_cmp_lt_u32 {sWAVE}, 2')
    g('s_cbranch_scc0 L_b_nod2')
    g('s_add_u32 s40, s40, 1024')
    g('s_addc_u32 s41, s41, 0')
    for t in range(4):
        g(f'global_load_dwordx4 v[{120+4*t}:{123+4*t}], v11, s[40:41] offset:{1280*t} nt')
    g.label('L_b_nod2')
    g(f's_lshl_b32 s48, {sWAVE}, 8')
    g('s_min_u32 s48, s48, 1024')
    g('v_lshlrev_b32 v17, 2, v0')
    g('v_add_u32 v17, s48, v17')
    g(f'global_load_dword v140, v17, {S_X}')
    g('v_mov_b32 v17, 0')
    g(f'global_load_ushort v141, v17, {S_X}')
    g('s_waitcnt vmcnt(0)')
    g('v_lshlrev_b32 v141, 16, v141')
    g.nop(1)
    g('v_readfirstlane_b32 s53, v141')
    g.label('L_b_nomlp')
    gen_sel(g, 192, 16, 17)
    g(f's_cmp_lt_u32 {sR}, 26')
    g('s_cbranch_scc0 L_b_mlp')
    g(f's_lshr_b32 s48, {sWAVE}, 1')
    g(f's_lshl_b32 s49, {sXCD}, 2')
    g('s_add_u32 s48, s48, s49')
    g('s_lshl_b32 s48, s48, 12')
    g(f's_and_b32 s49, {sWAVE}, 1')
    g('s_lshl_b32 s49, s49, 9')
    g('s_add_u32 s48, s48, s49')
    g(f's_add_u32 s49, s48, {C4L}')
    g.addr('s[40:41]', S_WS, 's49')
    g(f's_add_u32 s49, s48, {C4G}')
    g.addr('s[42:43]', S_WS, 's49')
    g('v_and_b32 v11, 31, v0')
    g('v_lshlrev_b32 v11, 4, v11')
    g('v_lshrrev_b32 v12, 5, v0')
    g('v_lshl_add_u32 v11, v12, 10, v11')

    def c4_loads(base):
        g(f'global_load_dwordx4 v[16:19], v11, {base} sc1')
        g(f'global_load_dwordx4 v[20:23], v11, {base} offset:2048 sc1')
    g.poll('c4', c4_loads, [16, 20], 13, 14, alt=('s[40:41]', 's[42:43]'))
    g.stamp(5)
    g('v_add_f32 v16, v16, v20')
    g('v_add_f32 v18, v18, v22')
    g.nop(2)
    g('v_permlane32_swap_b32 v16, v18')
    g.nop(1)
    g('v_add_f32 v16, v16, v18')
    g('v_cvt_pk_bf16_f32 v16, v16, v16')
    g('v_and_b32 v13, 31, v0')
    g('v_lshlrev_b32 v13, 2, v13')
    g('v_lshl_add_u32 v13, v12, 1, v13')
    g(f's_lshl_b32 s48, {sWAVE}, 7')
    g('v_add_u32 v13, s48, v13')
    g(f'ds_write_b16 v13, v16 offset:{L_CB}')
    g('v_lshlrev_b32 v13, 4, v10')
    g('v_add_u32 v13, s48, v13')
    g('s_waitcnt lgkmcnt(0)')
    g(f'ds_read_b128 v[16:19], v13 offset:{L_CB}')
    g('s_waitcnt lgkmcnt(0)')
    for t in range(8):
        a = 112 + 4 * (t % 2) + 100
        for v in range(4):
            g(f'v_perm_b32 v{a+v}, v{16+t//2}, v{16+t//2}, v{192+2*v+(t&1)}')
        g.nop(2)
        c = '0' if t == 0 else 'v[200:203]'
        g(f'v_mfma_f32_16x16x32_bf16 v[200:203], v[{a}:{a+3}], v[{32+4*t}:{35+4*t}], {c}')
    g('v_and_b32 v13, 1, v6')
    g('v_lshlrev_b32 v13, 4, v13')
    g('v_lshl_add_u32 v13, v9, 5, v13')
    g.nop(6)
    g('s_mov_b32 exec_lo, 0x00ff00ff')
    g('s_mov_b32 exec_hi, 0xff00ff00')
    for k in range(4):
        g(f'ds_add_f32 v13, v{200+k} offset:{L_OT+4*k}')
    g('s_mov_b64 exec, -1')
    g('s_waitcnt lgkmcnt(0)')
    g('s_barrier')
    g(f's_cmp_eq_u32 {sWAVE}, 0')
    g('s_cbranch_scc0 L_b_wo_done')
    g('v_lshlrev_b32 v13, 3, v0')
    g.set_exec(0xffffffff)
    g(f'ds_read_b64 v[16:17], v13 offset:{L_OT}')
    g(f's_mul_i32 s48, {sXCD}, 5120')
    g(f's_sub_u32 s49, {sR}, 16')
    g('s_lshl_b32 s49, s49, 9')
    g('s_add_u32 s48, s48, s49')
    g(f's_add_u32 s48, s48, {OUTP}')
    g.addr('s[40:41]', S_WS, 's48')
    g(f'v_mov_b32 v21, {sTAG}')
    g(f'v_mov_b32 v23, {sTAG}')
    g('s_waitcnt lgkmcnt(0)')
    g('v_mov_b32 v20, v16')
    g('v_mov_b32 v22, v17')
    g.nop(1)
    g('global_store_dwordx4 v3, v[20:23], s[40:41] sc1')
    g('s_mov_b64 exec, -1')
    g.stamp(6)
    g.label('L_b_wo_done')
    if stop_after == 5:
        g('s_branch L_fin')
    g('s_cmp_eq_u32 s58, -1')
    g('s_cbranch_scc1 L_fin')

    g.label('L_b_mlp')
    if stop_after == 5:
        g('s_branch L_fin')
    g(f's_cmp_lt_u32 {sWAVE}, 5')
    g('s_cbranch_scc0 L_m_b1')
    g(f's_lshl_b32 s48, {sWAVE}, 10')
    g(f's_add_u32 s48, s48, {OUTP}')
    g.addr('s[40:41]', S_WS, 's48')
    for k in range(1, 8):
        g(f'v_add_u32 v{144+k}, {5120*k}, v3')

    def out_loads(_):
        for k in range(8):
            vo = 'v3' if k == 0 else f'v{144+k}'
            g(f'global_load_dwordx4 v[{160+4*k}:{163+4*k}], {vo}, s[40:41] sc1')
    g.poll('outp', out_loads, [160 + 4 * k for k in range(8)], 13, 14)
    g.stamp(7)
    g('v_add_f32 v16, v160, v164')
    g('v_add_f32 v17, v162, v166')
    for k in range(2, 8):
        g(f'v_add_f32 v16, v16, v{160+4*k}')
        g(f'v_add_f32 v17, v17, v{162+4*k}')
    g('v_cvt_pk_bf16_f32 v16, v16, v17')
    g('v_lshlrev_b32 v18, 16, v16')
    g('v_and_b32 v19, 0xffff0000, v16')
    g('v_lshlrev_b32 v20, 16, v140')
    g('v_and_b32 v21, 0xffff0000, v140')
    g('v_add_f32 v18, v18, v20')
    g('v_add_f32 v19, v19, v21')
    g('v_cvt_pk_bf16_f32 v16, v18, v19')
    g('v_lshlrev_b32 v17, 2, v0')
    g(f's_lshl_b32 s48, {sWAVE}, 8')
    g('v_add_u32 v17, s48, v17')
    g(f'ds_write_b32 v17, v16 offset:{L_HB}')
    g('v_lshlrev_b32 v18, 16, v16')
    g('v_and_b32 v19, 0xffff0000, v16')
    g('v_subrev_f32 v18, s53, v18')
    g('v_subrev_f32 v19, s53, v19')
    g('v_add_f32 v20, v18, v19')
    g('v_mul_f32 v21, v18, v18')
    g('v_fmac_f32 v21, v19, v19')
    g.wave_reduce([20, 21], [22, 23])
    g('v_mov_b32 v17, 0')
    g('s_mov_b64 exec, 1')
    g(f'ds_add_f32 v17, v20 offset:{L_ST}')
    g(f'ds_add_f32 v17, v21 offset:{L_ST+4}')
    g('s_mov_b64 exec, -1')
    g('s_waitcnt lgkmcnt(0)')
    g.label('L_m_b1')
    g('s_waitcnt vmcnt(0)')
    g('s_barrier')
    g('v_mov_b32 v17, 0')
    g(f'ds_read_b64 v[20:21], v17 offset:{L_ST}')
    g(f's_mul_i32 s48, {sWAVE}, 160')
    g('v_lshlrev_b32 v13, 4, v10')
    g('v_add_u32 v13, s48, v13')
    g(f'ds_read_b128 v[24:27], v13 offset:{L_HB}')
    g('v_lshlrev_b32 v13, 2, v10')
    g('v_add_u32 v13, s48, v13')
    g(f'ds_read_b32 v28, v13 offset:{L_HB+128}')
    g('s_waitcnt lgkmcnt(0)')
    ln_scalars(g, 20, 21, 's53', 22, 23, 30)
    for k in range(5):
        g(f'v_lshlrev_b32 v16, 16, v{24+k}')
        g(f'v_and_b32 v17, 0xffff0000, v{24+k}')
        g('v_sub_f32 v16, v16, v22')
        g('v_sub_f32 v17, v17, v22')
        g('v_cvt_pk_bf16_f32 v16, v16, v17')
        g('v_and_b32 v17, 0xffff0000, v16')
        g('v_lshlrev_b32 v16, 16, v16')
        g('v_mul_f32 v16, v16, v23')
        g('v_mul_f32 v17, v17, v23')
        g(f'v_cvt_pk_bf16_f32 v{24+k}, v16, v17')
    for t in range(10):
        a = 212 + 4 * (t % 2)
        for v in range(4):
            g(f'v_perm_b32 v{a+v}, v{24+t//2}, v{24+t//2}, v{192+2*v+(t&1)}')
        g.nop(2)
        c = '0' if t == 0 else 'v[200:203]'
        g(f'v_mfma_f32_16x16x32_bf16 v[200:203], v[{a}:{a+3}], v[{64+4*t}:{67+4*t}], {c}')
    g('v_and_b32 v13, 1, v6')
    g('v_lshlrev_b32 v13, 4, v13')
    g('v_lshl_add_u32 v13, v9, 5, v13')
    g.nop(6)
    g('s_mov_b32 exec_lo, 0x00ff00ff')
    g('s_mov_b32 exec_hi, 0xff00ff00')
    for k in range(4):
        g(f'ds_add_f32 v13, v{200+k} offset:{L_GU+4*k}')
    g('s_mov_b64 exec, -1')
    g('s_waitcnt lgkmcnt(0)')
    g('s_barrier')
    g('v_and_b32 v14, 31, v0')
    g('v_lshlrev_b32 v13, 2, v14')
    g(f'ds_read_b32 v16, v13 offset:{L_GU}')
    g(f'ds_read_b32 v17, v13 offset:{L_GU+128}')
    g('s_waitcnt lgkmcnt(0)')
    rnd_bf16(g, 16)
    rnd_bf16(g, 17)
    g('v_max_f32 v16, 0, v16')
    g('v_mul_f32 v16, v16, v17')
    g('v_cvt_pk_bf16_f32 v16, v16, v16')
    g(f's_lshl_b32 s48, {sWAVE}, 7')
    g('v_lshlrev_b32 v13, 1, v14')
    g('v_add_u32 v13, s48, v13')
    g(f'ds_write_b16 v13, v16 offset:{L_CB}')
    g('v_lshlrev_b32 v13, 3, v10')
    g('v_add_u32 v13, s48, v13')
    g('s_waitcnt lgkmcnt(0)')
    g(f'ds_read_b64 v[16:17], v13 offset:{L_CB}')
    g('s_waitcnt lgkmcnt(0)')
    g('v_lshlrev_b32 v14, 12, v9')
    g('v_and_b32 v15, 1, v6')
    g('v_lshl_add_u32 v14, v15, 5, v14')
    g('s_lshl_b32 s48, s58, 6')
    g(f's_lshl_b32 s49, {sWAVE}, 15')
    g('s_add_u32 s48, s48, s49')
    g(f's_add_u32 s48, s48, {O2P}')
    g.addr('s[40:41]', S_WS, 's48')
    g('v_add_u32 v15, 40, v0')
    g('v_lshlrev_b32 v15, 2, v15')
    for rr in (21, 23, 25, 27):
        g(f'v_mov_b32 v{rr}, {sTAG}')

    def down(base):
        for t in range(4):
            a = 212 + 4 * (t % 2)
            for v in range(4):
                g(f'v_perm_b32 v{a+v}, v{16+t//2}, v{16+t//2}, v{192+2*v+(t&1)}')
            g.nop(2)
            c = '0' if t == 0 else 'v[200:203]'
            g(f'v_mfma_f32_16x16x32_bf16 v[200:203], v[{a}:{a+3}], v[{base+4*t}:{base+4*t+3}], {c}')
        g.nop(8)
        for k in range(4):
            g(f'ds_bpermute_b32 v{204+k}, v15, v{200+k}')
        g('s_waitcnt lgkmcnt(0)')
        g('v_add_f32 v20, v200, v204')
        g('v_add_f32 v22, v201, v205')
        g('v_add_f32 v24, v202, v206')
        g('v_add_f32 v26, v203, v207')
        g.set_exec(0x00ff00ff)
        g('global_store_dwordx4 v14, v[20:23], s[40:41] sc1')
        g('global_store_dwordx4 v14, v[24:27], s[40:41] offset:16 sc1')
        g('s_mov_b64 exec, -1')
    down(104)
    g(f's_cmp_lt_u32 {sWAVE}, 2')
    g('s_cbranch_scc0 L_m_done')
    g(f's_add_u32 s40, s40, {8<<15}')
    g('s_addc_u32 s41, s41, 0')
    g.nop(2)
    down(120)
    g.label('L_m_done')
    g.stamp(8)

    g.label('L_fin')
    g.stamp(15)
    g.stamp_flush()
    g.label('L_end')
    g('s_endpgm')
    body = g.text()

    hdr = open('cdna_kernels/' + KN[:-7] + '.s.ref').read().split('\n')
    head = []
    for line in hdr:
        if line.startswith('; @launch'):
            head.append(f'; @launch grid=(256,1,1) block=(512,1,1) lds={LDS_BYTES}')
        elif line.startswith(';'):
            head.append(line)
        else:
            break
    out = '\n'.join(head) + '\n'
    out += '.amdgcn_target "amdgcn-amd-amdhsa--gfx950"\n.text\n'
    out += f'.globl {KN}\n.p2align 8\n.type {KN},@function\n{KN}:\n'
    out += body
    out += f'''.section .rodata,"a"
.p2align 6
.amdhsa_kernel {KN}
  .amdhsa_next_free_vgpr 256
  .amdhsa_next_free_sgpr 102
  .amdhsa_accum_offset 256
  .amdhsa_group_segment_fixed_size 0
  .amdhsa_kernarg_size 104
  .amdhsa_user_sgpr_count 2
  .amdhsa_user_sgpr_kernarg_segment_ptr 1
  .amdhsa_system_sgpr_workgroup_id_x 1
.end_amdhsa_kernel
'''
    return out


if __name__ == '__main__':
    import argparse
    ap = argparse.ArgumentParser()
    ap.add_argument('-o', default='k.s')
    ap.add_argument('--stamps', action='store_true')
    ap.add_argument('--stop', type=int, default=None)
    a = ap.parse_args()
    open(a.o, 'w').write(build(a.stamps, a.stop))
```

```python
import sys, struct

KN = 'sequential_preLN__compressed_kv_cla__glu_gated_reglu__decode_kernel'

EPOCH = 0
XID = 0x1000
Q1L = 0x10000
Q1G = 0x50000
QA = 0x90000
MLL = 0xA0000
C4 = 0xA8000
MLX = 0xC8000
OUTP = 0xE8000
O2P = 0x100000
OX = 0x180000
OPL = 0x200000
STAMPS = 0x800000

L_XN = 0
L_QB = 256
L_MB = 512
L_LB = 768
L_PB = 1024
L_RED = 3072
L_CB = 7168
L_HB = 8192
L_ST = 9472
L_MODE = 9728
L_TAG = 9732
L_QL = 10240
L_TILE = 26624
LDS_BYTES = 92160

S_X, S_CKV, S_WQ, S_WUK, S_WUV, S_WO, S_WG, S_WU, S_WD, S_OUT, S_DBG, S_WS = (
    's[8:9]', 's[10:11]', 's[12:13]', 's[14:15]', 's[16:17]', 's[18:19]', 's[22:23]', 's[24:25]', 's[26:27]',
    's[28:29]', 's[30:31]', 's[32:33]')
sXCD, sR, sWAVE, sH, sJ, sTAG = 's34', 's35', 's36', 's37', 's38', 's39'
POLL_LIMIT = 1 << 17


def f2u(x):
    return struct.unpack('<I', struct.pack('<f', x))[0]


class Gen:
    def __init__(s, stamps=False, stop_after=None):
        s.L = []
        s.n = 0
        s.stamps = stamps
        s.stop_after = stop_after
        s.nstamp = 0

    def __call__(s, txt):
        for line in txt.strip('\n').split('\n'):
            line = line.strip()
            if line:
                s.L.append('    ' + line)

    def label(s, name):
        s.L.append(name + ':')

    def uniq(s, base):
        s.n += 1
        return f'{base}_{s.n}'

    def nop(s, n):
        while n > 0:
            k = min(n, 16)
            s(f's_nop {k-1}')
            n -= k

    def stamp(s, idx):
        if s.stamps:
            s(f's_memrealtime s[{64+2*idx}:{65+2*idx}]')

    def stamp_flush(s, nst=16):
        if not s.stamps:
            return
        s('s_waitcnt lgkmcnt(0)')
        s('s_mov_b64 exec, 1')
        s(f's_lshl_b32 s48, s2, 3')
        s(f's_add_u32 s48, s48, {sWAVE}')
        s(f's_lshl_b32 s48, s48, 7')
        s(f's_add_u32 s48, s48, {STAMPS}')
        s('v_mov_b32 v1, s48')
        for i in range(nst):
            s(f'v_mov_b32 v2, s{64+2*i}')
            s(f'v_mov_b32 v3, s{65+2*i}')
            s(f'global_store_dwordx2 v1, v[2:3], {S_WS} offset:{8*i}')
            s('s_nop 1')
        s('s_waitcnt vmcnt(0)')

    def addr(s, dst, src, off):
        d = int(dst[2:].split(':')[0]); sr = int(src[2:].split(':')[0])
        s(f's_add_u32 s{d}, s{sr}, {off}')
        s(f's_addc_u32 s{d+1}, s{sr+1}, 0')

    def set_exec(s, mask):
        if mask == (1 << 64) - 1:
            s('s_mov_b64 exec, -1')
        else:
            s(f's_mov_b32 exec_lo, {mask & 0xffffffff:#x}')
            s(f's_mov_b32 exec_hi, {mask >> 32:#x}')

    def wave_reduce(s, regs, tmps, op='add'):
        ins = {'add': 'v_add_f32', 'max': 'v_max_f32'}[op]
        n = len(regs)
        pad = max(0, 2 - (n - 1))
        s.nop(2)
        for ctl in ['quad_perm:[1,0,3,2]', 'quad_perm:[2,3,0,1]', 'row_half_mirror', 'row_mirror']:
            for r in regs:
                s(f'{ins}_dpp v{r}, v{r}, v{r} {ctl} row_mask:0xf bank_mask:0xf')
            s.nop(pad)
        s.row_reduce(regs, tmps, op)

    def row_reduce(s, regs, tmps, op='add'):
        ins = {'add': 'v_add_f32', 'max': 'v_max_f32'}[op]
        n = len(regs)
        for sw in ['v_permlane16_swap_b32', 'v_permlane32_swap_b32']:
            for r, t in zip(regs, tmps):
                s(f'v_mov_b32 v{t}, v{r}')
            s.nop(max(0, 2 - (n - 1)))
            for r, t in zip(regs, tmps):
                s(f'{sw} v{t}, v{r}')
            s.nop(1 if n == 1 else 0)
            for r, t in zip(regs, tmps):
                s(f'{ins} v{r}, v{r}, v{t}')
            s.nop(0)

    def check_tags(s, regs, t0, t1, done_label):
        tags = []
        for r in regs:
            tags += [r + 1, r + 3]
        if len(tags) == 2:
            s(f'v_cmp_eq_u32 vcc, {sTAG}, v{tags[0]}')
            s(f'v_cmp_eq_u32 s[46:47], {sTAG}, v{tags[1]}')
        else:
            s(f'v_min3_u32 v{t0}, v{tags[0]}, v{tags[1]}, v{tags[2]}')
            s(f'v_max3_u32 v{t1}, v{tags[0]}, v{tags[1]}, v{tags[2]}')
            rest = tags[3:]
            while rest:
                if len(rest) >= 2:
                    s(f'v_min3_u32 v{t0}, v{t0}, v{rest[0]}, v{rest[1]}')
                    s(f'v_max3_u32 v{t1}, v{t1}, v{rest[0]}, v{rest[1]}')
                    rest = rest[2:]
                else:
                    s(f'v_min_u32 v{t0}, v{t0}, v{rest[0]}')
                    s(f'v_max_u32 v{t1}, v{t1}, v{rest[0]}')
                    rest = rest[1:]
            s(f'v_cmp_eq_u32 vcc, {sTAG}, v{t0}')
            s(f'v_cmp_eq_u32 s[46:47], {sTAG}, v{t1}')
        s('s_and_b64 vcc, vcc, s[46:47]')
        s('s_cmp_eq_u64 vcc, exec')
        s(f's_cbranch_scc1 {done_label}')

    def poll(s, name, emit_loads, regs, t0, t1, first_hook=None, alt=None):
        top = s.uniq(name + '_top'); done = s.uniq(name + '_done'); fail = s.uniq(name + '_fail')
        s(f's_mov_b32 s50, 0')
        if first_hook is not None:
            emit_loads(alt[0] if alt else None)
            first_hook()
            s('s_waitcnt vmcnt(0)')
            s.check_tags(regs, t0, t1, done)
        s.label(top)
        if alt:
            s('s_add_u32 s50, s50, 1')
            s('s_and_b32 s51, s50, 7')
            s('s_cmp_eq_u32 s51, 0')
            s(f's_cselect_b64 s[44:45], {alt[1]}, {alt[0]}')
            emit_loads('s[44:45]')
        else:
            s('s_add_u32 s50, s50, 1')
            emit_loads(None)
        s('s_waitcnt vmcnt(0)')
        s.check_tags(regs, t0, t1, done)
        s(f's_cmp_lt_u32 s50, {POLL_LIMIT}')
        s(f's_cbranch_scc1 {top}')
        s(f's_mov_b64 s[46:47], exec')
        s('s_mov_b64 exec, 1')
        s(f'v_mov_b32 v{t0}, {4*(s.n % 60)}')
        s(f'v_mov_b32 v{t1}, {0x1000 + s.n}')
        s(f'global_store_dword v{t0}, v{t1}, {S_DBG}')
        s(f's_mov_b64 exec, s[46:47]')
        s.label(done)

    def text(s):
        return '\n'.join(s.L) + '\n'


KAPPA = (128 ** -0.5) * 1.4426950408889634


def gen_sel(g, base, t0, t1):
    g(f'v_and_b32 v{t0}, 7, v0')
    g(f'v_and_b32 v{t1}, 1, v0')
    for par in range(2):
        lo = 0x0c0c0000 | ((2 * par + 1) << 8) | (2 * par)
        hi = ((2 * par + 1) << 24) | ((2 * par) << 16) | 0x0c0c
        g(f'v_cmp_eq_u32 vcc, 1, v{t1}')
        g(f'v_mov_b32 v{base+par}, {lo:#x}')
        g(f'v_mov_b32 v{base+2+par}, {hi:#x}')
        g(f'v_cndmask_b32 v{base+par}, v{base+par}, v{base+2+par}, vcc')
    g(f'v_lshrrev_b32 v{t0}, 1, v{t0}')
    g(f'v_mov_b32 v{t1}, 0x0c0c0c0c')
    for v in [3, 2, 1, 0]:
        g(f'v_cmp_eq_u32 vcc, {v}, v{t0}')
        g.nop(1)
        for par in range(2):
            g(f'v_cndmask_b32 v{base+2*v+par}, v{t1}, v{base+par}, vcc')


def gen_mask(g, base, t0, t1):
    g(f'v_and_b32 v{t0}, 7, v0')
    g(f'v_and_b32 v{t1}, 1, v0')
    g(f'v_cmp_eq_u32 vcc, 1, v{t1}')
    g(f'v_mov_b32 v{base}, 0xffff')
    g(f'v_mov_b32 v{base+1}, 0xffff0000')
    g(f'v_cndmask_b32 v{t1}, v{base}, v{base+1}, vcc')
    g(f'v_lshrrev_b32 v{t0}, 1, v{t0}')
    for v in range(4):
        g(f'v_cmp_eq_u32 vcc, {v}, v{t0}')
        g.nop(1)
        g(f'v_cndmask_b32 v{base+v}, 0, v{t1}, vcc')


def get_tag(g, vreg):
    g.nop(1)
    g(f'v_readfirstlane_b32 {sTAG}, v{vreg}')
    g.nop(4)
    g(f's_mul_i32 {sTAG}, {sTAG}, 5')
    g(f's_add_u32 {sTAG}, {sTAG}, 0x9E3779B9')


def rnd_bf16(g, r):
    g(f'v_cvt_pk_bf16_f32 v{r}, v{r}, v{r}')
    g(f'v_and_b32 v{r}, 0xffff0000, v{r}')


def ln_scalars(g, s1, s2, piv_sgpr, vm, vrs, t0):
    g(f's_mov_b32 s52, {f2u(1.0/640):#x}')
    g(f'v_mul_f32 v{s1}, s52, v{s1}')
    g(f'v_mul_f32 v{s2}, s52, v{s2}')
    g(f'v_fma_f32 v{s2}, -v{s1}, v{s1}, v{s2}')
    g(f'v_max_f32 v{s2}, 0, v{s2}')
    g(f'v_add_f32 v{vm}, {piv_sgpr}, v{s1}')
    rnd_bf16(g, vm)
    rnd_bf16(g, s2)
    g(f'v_add_f32 v{s2}, 0x3727c5ac, v{s2}')
    rnd_bf16(g, s2)
    g(f'v_sqrt_f32 v{s2}, v{s2}')
    g.nop(1)
    rnd_bf16(g, s2)
    g(f'v_rcp_f32 v{vrs}, v{s2}')
    g.nop(1)


def class_combine(g, d):
    for k in range(4):
        g(f'v_mov_b32_dpp v{d+k}, v{d+k} row_ror:8 row_mask:0xc bank_mask:0xf')
    g.nop(1)
    g(f'v_permlane32_swap_b32 v{d}, v{d+1}')
    g(f'v_permlane32_swap_b32 v{d+2}, v{d+3}')
    g.nop(1)
    g(f'v_add_f32 v{d}, v{d}, v{d+1}')
    g(f'v_add_f32 v{d+2}, v{d+2}, v{d+3}')


def mode_store(g, ins_no_flag, smode):
    a = g.uniq('ms_fast'); b = g.uniq('ms_done')
    g(f's_cmp_eq_u32 {smode}, 1')
    g(f's_cbranch_scc1 {a}')
    for ins in ins_no_flag:
        g(ins + ' sc1')
    g(f's_branch {b}')
    g.label(a)
    for ins in ins_no_flag:
        g(ins)
    g.label(b)


def reduce8(g, ctlop, r):
    for ctl in ['quad_perm:[1,0,3,2]', 'quad_perm:[2,3,0,1]', 'row_half_mirror']:
        g.nop(2)
        g(f'{ctlop}_dpp v{r}, v{r}, v{r} {ctl} row_mask:0xf bank_mask:0xf')


def voff(g, dst, sexpr_reg, base_v):
    g(f'v_add_u32 v{dst}, {sexpr_reg}, v{base_v}')


def build(stamps=False, stop_after=None, opts=()):
    g = Gen(stamps, stop_after)
    sMODE = 's59'
    WS = S_WS
    if 'pf0' in opts:
        g('s_getpc_b64 s[42:43]')
        g('v_lshlrev_b32 v1, 4, v0')
        g('global_load_dwordx4 v[232:235], v1, s[42:43]')
    g('s_cmp_ge_u32 s2, 256')
    g('s_cbranch_scc1 L_end')
    g('s_load_dwordx16 s[8:23], s[0:1], 0')
    g('s_load_dwordx8 s[24:31], s[0:1], 64')
    g('s_load_dwordx2 s[32:33], s[0:1], 96')
    g.stamp(0)
    if g.stamps:
        g('s_memtime s[90:91]')
    g('v_lshrrev_b32 v1, 6, v0')
    g('v_and_b32 v0, 63, v0')
    g(f'v_readfirstlane_b32 {sWAVE}, v1')
    g(f's_and_b32 {sXCD}, s2, 7')
    g(f's_lshr_b32 {sR}, s2, 3')
    g(f's_lshr_b32 {sH}, {sR}, 3')
    g(f's_lshl_b32 s48, {sXCD}, 2')
    g(f's_add_u32 {sH}, {sH}, s48')
    g(f's_and_b32 {sJ}, {sR}, 7')
    g('v_mov_b32 v1, 0')
    g('v_lshlrev_b32 v3, 4, v0')
    g('v_and_b32 v7, 15, v0')
    g('v_lshrrev_b32 v6, 4, v0')
    g(f's_cmp_eq_u32 {sWAVE}, 1')
    g('s_cbranch_scc1 L_w1')
    g('s_waitcnt lgkmcnt(0)')
    g(f'global_load_dword v2, v1, {WS} sc1')
    g(f's_cmp_eq_u32 {sWAVE}, 0')
    g('s_cbranch_scc1 L_w0')

    def wuk_loads():
        le = g.uniq('ew_e')
        g(f's_cmp_ge_u32 {sR}, 16')
        g(f's_cbranch_scc0 {le}')
        g(f's_sub_u32 s54, {sR}, 16')
        g('s_lshr_b32 s48, s54, 2')
        g(f's_lshl_b32 s49, {sXCD}, 2')
        g('s_add_u32 s48, s48, s49')
        g('s_lshl_b32 s48, s48, 8')
        g('s_and_b32 s49, s54, 3')
        g('s_lshl_b32 s49, s49, 3')
        g(f's_add_u32 s49, s49, {sWAVE}')
        g('s_lshl_b32 s49, s49, 17')
        g('s_add_u32 s48, s48, s49')
        g.addr('s[40:41]', S_WUK, 's48')
        g('v_lshlrev_b32 v8, 13, v7')
        g('v_lshl_add_u32 v8, v6, 4, v8')
        for t in range(4):
            g(f'global_load_dwordx4 v[{64+4*t}:{67+4*t}], v8, s[40:41] offset:{64*t} nt')
        g.label(le)

    g('s_waitcnt vmcnt(0)')
    if 'wuk_late' not in opts:
        wuk_loads()
    g(f's_cmp_eq_u32 {sWAVE}, 7')
    g('s_cbranch_scc0 L_nw7')
    if 'pf0' in opts:
        g(f's_and_b32 s48, {sR}, 7')
        g('s_lshl_b32 s48, s48, 10')
        g('s_add_u32 s48, s48, 8192')
        g(f's_min_u32 s48, s48, L_end-{KN}-1024')
    else:
        g('s_getpc_b64 s[42:43]')
        g(f's_lshl_b32 s48, {sR}, 10')
    g('s_add_u32 s42, s42, s48')
    g('s_addc_u32 s43, s43, 0')
    g('global_load_dwordx4 v[232:235], v3, s[42:43]')
    g.label('L_nw7')
    g(f's_cmp_eq_u32 {sWAVE}, 2')
    g('s_cbranch_scc0 L_b0')
    get_tag(g, 2)
    g('s_getreg_b32 s48, hwreg(HW_REG_XCC_ID)')
    g('s_and_b32 s48, s48, 0xf')
    g('v_mov_b32 v12, s48')
    g(f'v_mov_b32 v13, {sTAG}')
    g('v_mov_b32 v14, s48')
    g(f'v_mov_b32 v15, {sTAG}')
    g(f's_lshl_b32 s48, {sXCD}, 5')
    g(f's_add_u32 s48, s48, {sR}')
    g('s_lshl_b32 s48, s48, 4')
    g(f's_add_u32 s48, s48, {XID}')
    g('v_mov_b32 v16, s48')
    g('s_mov_b64 exec, 1')
    g(f'global_store_dwordx4 v16, v[12:15], {WS} sc1')
    g('s_mov_b64 exec, -1')
    g('s_branch L_b0')

    g.label('L_w0')
    g('v_lshlrev_b32 v4, 2, v0')
    for k in range(5):
        g(f'global_load_dword v{10+k}, v4, {S_X} offset:{256*k}')
    g('v_min_u32 v5, 39, v0')
    g('v_lshlrev_b32 v5, 2, v5')
    g(f's_mul_i32 s48, {sJ}, 160')
    g('v_add_u32 v5, s48, v5')
    g(f'global_load_dword v15, v5, {S_X}')
    g('s_waitcnt vmcnt(6)')
    get_tag(g, 2)
    g(f'v_mov_b32 v31, {sTAG}')
    g(f'ds_write_b32 v1, v31 offset:{L_TAG}')
    g('s_waitcnt vmcnt(1)')
    g.stamp(1)
    for k in range(5):
        g(f'v_lshlrev_b32 v{16+2*k}, 16, v{10+k}')
        g(f'v_and_b32 v{17+2*k}, 0xffff0000, v{10+k}')
    g('v_readfirstlane_b32 s53, v16')
    g(f's_mov_b32 s52, {f2u(1.0/640):#x}')
    g.nop(1)
    for k in range(10):
        g(f'v_subrev_f32 v{16+k}, s53, v{16+k}')
    g('v_pk_mul_f32 v[26:27], v[16:17], v[16:17]')
    g('v_pk_add_f32 v[28:29], v[16:17], v[18:19]')
    for k in range(1, 5):
        g(f'v_pk_fma_f32 v[26:27], v[{16+2*k}:{17+2*k}], v[{16+2*k}:{17+2*k}], v[26:27]')
        if k >= 2:
            g(f'v_pk_add_f32 v[28:29], v[28:29], v[{16+2*k}:{17+2*k}]')
    g('v_add_f32 v27, v26, v27')
    g('v_add_f32 v26, v28, v29')
    g.wave_reduce([26, 27], [28, 29])
    ln_scalars(g, 26, 27, 's53', 28, 29, 30)
    g('s_waitcnt vmcnt(0)')
    g('v_lshlrev_b32 v16, 16, v15')
    g('v_and_b32 v17, 0xffff0000, v15')
    g('v_sub_f32 v16, v16, v28')
    g('v_sub_f32 v17, v17, v28')
    g('v_cvt_pk_bf16_f32 v18, v16, v17')
    g('v_lshlrev_b32 v16, 16, v18')
    g('v_and_b32 v17, 0xffff0000, v18')
    g('v_mul_f32 v16, v16, v29')
    g('v_mul_f32 v17, v17, v29')
    g('v_cvt_pk_bf16_f32 v18, v16, v17')
    g(f'ds_write_b32 v4, v18 offset:{L_XN}')
    g('s_waitcnt lgkmcnt(0)')
    g.stamp(2)
    g('s_branch L_b0')

    g.label('L_w1')
    g(f's_mov_b32 s49, {20*8192}')
    g('v_mul_lo_u32 v8, v6, s49')
    g('v_lshl_add_u32 v8, v7, 4, v8')
    g(f's_mul_i32 s48, {sJ}, {80*8192}')
    g(f's_lshl_b32 s49, {sH}, 8')
    g('s_add_u32 s48, s48, s49')
    g('s_waitcnt lgkmcnt(0)')
    g.addr('s[40:41]', S_WQ, 's48')
    for t in range(20):
        g(f'global_load_dwordx4 v[{80+4*t}:{83+4*t}], v8, s[40:41] nt')
        if t < 19:
            g('s_add_u32 s40, s40, 8192')
            g('s_addc_u32 s41, s41, 0')
    wuk_loads()
    g(f's_cmp_ge_u32 {sR}, 16')
    g('s_cbranch_scc1 L_w1_nd')
    for t in range(4):
        g(f'global_load_dword v{64+t}, v1, {S_X}')
    g.label('L_w1_nd')
    g.stamp(1)
    gen_sel(g, 192, 16, 17)
    g('v_lshlrev_b32 v9, 6, v7')
    g('v_lshl_add_u32 v9, v6, 5, v9')
    g(f's_lshl_b32 s48, {sH}, 3')
    g(f's_add_u32 s48, s48, {sJ}')
    g('s_lshl_b32 s48, s48, 10')
    g(f's_add_u32 s49, s48, {Q1L}')
    g('v_add_u32 v10, s49, v9')
    g(f's_add_u32 s49, s48, {Q1G}')
    g('v_add_u32 v11, s49, v9')
    g('v_mul_u32_u24 v19, 40, v6')
    if 'wqst' in opts:
        g('s_waitcnt vmcnt(23)')
        g.stamp(11)
        g('s_waitcnt vmcnt(14)')
        g.stamp(12)
        g('s_waitcnt vmcnt(4)')
        g.stamp(13)
    g('s_barrier')
    g(f'ds_read_b32 v2, v1 offset:{L_TAG}')
    for k in range(5):
        g(f'ds_read_b64 v[{16+2*k}:{17+2*k}], v19 offset:{L_XN+8*k}')
    g('s_waitcnt lgkmcnt(0)')
    g(f'v_readfirstlane_b32 {sTAG}, v2')
    for rr in (205, 207, 209, 211):
        g(f'v_mov_b32 v{rr}, v2')

    def perms(t):
        a = 160 + 4 * (t % 2)
        for v in range(4):
            g(f'v_perm_b32 v{a+v}, v{16+t//2}, v{16+t//2}, v{192+2*v+(t&1)}')
    perms(0)
    for t in range(20):
        if t + 1 < 20:
            perms(t + 1)
        else:
            g.nop(2)
        g(f's_waitcnt vmcnt({19-t+4})')
        a = 160 + 4 * (t % 2)
        c = '0' if t == 0 else 'v[200:203]'
        g(f'v_mfma_f32_16x16x32_bf16 v[200:203], v[{a}:{a+3}], v[{80+4*t}:{83+4*t}], {c}')
    g.set_exec(0xffffffff)
    g.nop(6)
    g('v_mov_b32 v204, v200')
    g('v_mov_b32 v206, v201')
    g('v_mov_b32 v208, v202')
    g('v_mov_b32 v210, v203')
    g(f'global_store_dwordx4 v10, v[204:207], {WS}')
    g(f'global_store_dwordx4 v10, v[208:211], {WS} offset:16')
    g(f'global_store_dwordx4 v11, v[204:207], {WS} sc1')
    g(f'global_store_dwordx4 v11, v[208:211], {WS} offset:16 sc1')
    g('s_mov_b64 exec, -1')
    g.stamp(2)
    g('s_branch L_split')

    g.label('L_b0')
    g('s_barrier')
    g(f'ds_read_b32 v2, v1 offset:{L_TAG}')
    g('s_waitcnt lgkmcnt(0)')
    g(f'v_readfirstlane_b32 {sTAG}, v2')
    g.label('L_split')
    g(f's_cmp_ge_u32 {sR}, 16')
    g('s_cbranch_scc1 L_pathB')

    g(f's_and_b32 s55, {sR}, 1')
    g(f's_lshr_b32 s56, {sR}, 1')
    g('v_and_b32 v8, 7, v0')
    g('v_lshlrev_b32 v8, 1, v8')
    g(f's_lshl_b32 s48, {sWAVE}, 14')
    g(f's_add_u32 s48, s48, {L_TILE}')
    for tl in range(4):
        g(f'v_add_u32 v9, {4*tl}, v6')
        g('v_xor_b32 v9, v9, v8')
        g('v_lshlrev_b32 v9, 4, v9')
        g(f'v_lshl_add_u32 v{32+tl}, v7, 10, v9')
        g(f'v_add_u32 v{36+tl}, s48, v{32+tl}')
    g('v_lshrrev_b32 v9, 2, v0')
    g('v_and_b32 v10, 7, v9')
    g('v_lshlrev_b32 v9, 10, v9')
    g('v_and_b32 v11, 3, v0')
    g('v_lshl_add_u32 v9, v11, 3, v9')
    g(f's_lshr_b32 s48, {sWAVE}, 1')
    g('s_lshl_b32 s48, s48, 8')
    g(f's_add_u32 s48, s48, {L_TILE}')
    g('v_add_u32 v9, s48, v9')
    g(f's_and_b32 s48, {sWAVE}, 1')
    g('s_lshl_b32 s48, s48, 2')
    for nn in range(4):
        g(f's_add_u32 s49, s48, {nn}')
        g('v_xor_b32 v11, s49, v10')
        g(f'v_lshl_add_u32 v{40+nn}, v11, 5, v9')
    g('v_lshrrev_b32 v9, 1, v0')
    g('v_and_b32 v10, 1, v0')
    g('v_lshlrev_b32 v10, 3, v10')
    for ih in range(2):
        g(f's_lshl_b32 s48, {sWAVE}, 1')
        g(f's_add_u32 s48, s48, {ih}')
        g('s_and_b32 s49, s48, 7')
        g('s_lshl_b32 s49, s49, 1')
        g('v_xor_b32 v11, s49, v9')
        g('v_lshl_add_u32 v11, v11, 4, v10')
        g('s_lshl_b32 s48, s48, 10')
        g(f's_add_u32 s48, s48, {L_QL}')
        g(f'v_add_u32 v{44+ih}, s48, v11')
    gen_mask(g, 240, 9, 10)
    g('v_lshlrev_b32 v46, 4, v7')
    g(f's_lshl_b32 s48, {sWAVE}, 2')
    g('v_add_u32 v47, s48, v46')
    g('v_lshlrev_b32 v57, 3, v0')
    g(f's_lshl_b32 s48, {sWAVE}, 9')
    g('v_add_u32 v56, s48, v57')
    g('s_lshl_b32 s48, s55, 15')
    g(f's_lshl_b32 s49, {sWAVE}, 12')
    g('s_add_u32 s48, s48, s49')
    g(f's_add_u32 s48, s48, {QA}')
    g('v_add_u32 v248, s48, v3')
    g(f's_lshl_b32 s48, {sXCD}, 19')
    g('s_lshl_b32 s49, s55, 18')
    g('s_add_u32 s48, s48, s49')
    g('s_lshl_b32 s49, s56, 15')
    g('s_add_u32 s48, s48, s49')
    g(f's_lshl_b32 s49, {sWAVE}, 12')
    g('s_add_u32 s48, s48, s49')
    g(f's_add_u32 s48, s48, {OPL}')
    g('v_add_u32 v58, s48, v3')
    g(f's_lshl_b32 s48, {sXCD}, 12')
    g('s_lshl_b32 s49, s55, 11')
    g('s_add_u32 s48, s48, s49')
    g('s_lshl_b32 s49, s56, 4')
    g('s_add_u32 s48, s48, s49')
    g(f's_add_u32 s48, s48, {MLL}')
    g('v_lshlrev_b32 v249, 7, v7')
    g('v_add_u32 v249, s48, v249')
    g(f's_lshr_b32 s60, {sR}, 3')
    g(f's_and_b32 s58, {sR}, 7')
    g(f's_and_b32 s57, {sWAVE}, 3')
    g(f's_lshl_b32 s48, {sXCD}, 12')
    g('s_lshl_b32 s49, s60, 11')
    g('s_add_u32 s48, s48, s49')
    g(f's_add_u32 s48, s48, {MLL}')
    g('v_add_u32 v59, s48, v3')
    g('s_lshl_b32 s48, s57, 9')
    g(f's_add_u32 s48, s48, {L_RED}')
    g('v_lshlrev_b32 v60, 2, v0')
    g('v_add_u32 v60, s48, v60')
    g('v_lshlrev_b32 v61, 5, v7')
    g('v_add_u32 v61, s48, v61')
    g(f's_lshl_b32 s48, {sXCD}, 19')
    g('s_lshl_b32 s49, s60, 18')
    g('s_add_u32 s48, s48, s49')
    g('s_lshl_b32 s49, s58, 12')
    g('s_add_u32 s48, s48, s49')
    g('s_lshl_b32 s49, s57, 10')
    g('s_add_u32 s48, s48, s49')
    g(f's_add_u32 s48, s48, {OPL}')
    g('v_add_u32 v224, s48, v3')
    for k in range(1, 8):
        g(f'v_add_u32 v{224+k}, {32768*k}, v224')
    g('s_lshl_b32 s48, s60, 18')
    g(f's_lshl_b32 s49, {sXCD}, 11')
    g('s_add_u32 s48, s48, s49')
    g('s_lshl_b32 s49, s58, 8')
    g('s_add_u32 s48, s48, s49')
    g('s_lshl_b32 s49, s57, 6')
    g('s_add_u32 s48, s48, s49')
    g(f's_add_u32 s48, s48, {OX}')
    g('v_lshlrev_b32 v244, 14, v7')
    g('v_lshl_add_u32 v244, v6, 4, v244')
    g('v_add_u32 v244, s48, v244')
    g('s_lshl_b32 s48, s60, 11')
    g(f's_lshl_b32 s49, {sXCD}, 4')
    g('s_add_u32 s48, s48, s49')
    g(f's_add_u32 s48, s48, {MLX}')
    g('v_lshrrev_b32 v250, 3, v0')
    g('v_lshlrev_b32 v250, 7, v250')
    g('v_add_u32 v250, s48, v250')
    g('v_and_b32 v9, 7, v0')
    g('v_lshlrev_b32 v9, 4, v9')
    g('v_lshrrev_b32 v12, 5, v0')
    g(f's_lshr_b32 s48, {sR}, 2')
    g(f's_lshl_b32 s49, {sXCD}, 2')
    g('s_add_u32 s61, s48, s49')
    g(f's_and_b32 s62, {sR}, 3')
    g('s_lshl_b32 s48, s61, 7')
    g(f's_add_u32 s48, s48, {MLX}')
    g('v_add_u32 v251, s48, v9')
    g('s_lshl_b32 s48, s61, 14')
    g('s_lshl_b32 s49, s62, 9')
    g('s_add_u32 s48, s48, s49')
    g(f's_lshl_b32 s49, {sWAVE}, 6')
    g('s_add_u32 s48, s48, s49')
    g(f's_add_u32 s48, s48, {OX}')
    g('v_bfe_u32 v13, v0, 2, 3')
    g('v_lshlrev_b32 v252, 2, v13')
    g('v_lshlrev_b32 v13, 11, v13')
    g('v_and_b32 v14, 3, v0')
    g('v_lshl_add_u32 v13, v14, 4, v13')
    g('v_lshl_add_u32 v13, v12, 3, v13')
    g('v_add_u32 v245, s48, v13')
    g('v_lshlrev_b32 v247, 5, v7')
    g('v_lshl_add_u32 v247, v6, 4, v247')
    g(f's_lshl_b32 s48, {sWAVE}, 9')
    g('v_add_u32 v247, s48, v247')
    g(f's_lshl_b32 s48, {sXCD}, 4')
    g(f's_add_u32 s48, s48, {sR}')
    g('s_lshl_b32 s48, s48, 10')
    g(f's_add_u32 s48, s48, {C4}')
    g('v_add_u32 v253, s48, v3')
    if 'dma_early' not in opts:
        g('s_barrier')
    g(f's_lshl_b32 s57, {sXCD}, 3')
    g('s_add_u32 s57, s57, s56')
    g('s_lshl_b32 s48, s57, 6')
    g(f's_lshl_b32 s49, {sWAVE}, 3')
    g('s_add_u32 s48, s48, s49')
    g('s_lshl_b32 s48, s48, 10')
    g.addr('s[40:41]', S_CKV, 's48')
    g('s_lshl_b32 s49, s49, 10')
    g(f's_add_u32 s49, s49, {L_TILE}')
    g('s_mov_b32 m0, s49')
    for i in range(8):
        if i == 4:
            g('s_add_u32 s49, s49, 4096')
            g('s_mov_b32 m0, s49')
            g('s_add_u32 s40, s40, 4096')
            g('s_addc_u32 s41, s41, 0')
        g(f'v_xor_b32 v4, {32*i}, v3')
        g(f'global_load_lds_dwordx4 v4, s[40:41] offset:{1024*(i%4)} nt')
    if 'dmast' in opts:
        g.stamp(1)
    if 'nopre' not in opts:
        g(f'global_load_dword v233, v58, {WS} sc1')
        g(f'global_load_dword v234, v224, {WS} sc1')
        g(f'global_load_dword v235, v231, {WS} sc1')
    if 'dmast' in opts:
        g(f's_waitcnt vmcnt({0 if "nopre" in opts else 3})')
        g.stamp(2)
        g('s_waitcnt vmcnt(0)')
        g.stamp(9)
    g(f's_cmp_eq_u32 {sWAVE}, 3')
    g('s_cbranch_scc0 L_a_nochk')
    g(f's_lshl_b32 s48, {sXCD}, 9')
    g(f's_add_u32 s48, s48, {XID}')
    g('v_and_b32 v9, 31, v0')
    g('v_lshlrev_b32 v9, 4, v9')
    g('v_add_u32 v9, s48, v9')
    g('s_getreg_b32 s52, hwreg(HW_REG_XCC_ID)')
    g('s_and_b32 s52, s52, 0xf')
    g('s_mov_b32 s50, 0')
    g(f's_mov_b32 {sMODE}, 0')
    g.label('L_a_chk')
    g(f'global_load_dwordx4 v[12:15], v9, {WS} sc1')
    g('s_add_u32 s50, s50, 1')
    g('s_waitcnt vmcnt(0)')
    g(f'v_cmp_eq_u32 vcc, {sTAG}, v13')
    g(f'v_cmp_eq_u32 s[46:47], {sTAG}, v15')
    g('s_and_b64 vcc, vcc, s[46:47]')
    g('s_cmp_eq_u64 vcc, exec')
    g('s_cbranch_scc1 L_a_chk_ok')
    g('s_cmp_lt_u32 s50, 64')
    g('s_cbranch_scc1 L_a_chk')
    g('s_branch L_a_chk_done')
    g.label('L_a_chk_ok')
    g('v_cmp_eq_u32 vcc, s52, v12')
    g('v_cmp_eq_u32 s[46:47], s52, v14')
    g('s_and_b64 vcc, vcc, s[46:47]')
    g('s_cmp_eq_u64 vcc, exec')
    g(f's_cselect_b32 {sMODE}, 1, 0')
    g.label('L_a_chk_done')
    g(f'v_mov_b32 v12, {sMODE}')
    g(f'ds_write_b32 v1, v12 offset:{L_MODE}')
    g.label('L_a_nochk')
    g('s_waitcnt vmcnt(0) lgkmcnt(0)')
    g('s_barrier')
    FA = 96
    FT = 160
    skip = g.uniq('skipfa')
    g(f's_cmp_lt_u32 {sWAVE}, 4')
    g(f's_cbranch_scc0 {skip}')
    for t in range(16):
        g(f'ds_read_b128 v[{FA+4*t}:{FA+4*t+3}], v{36+(t%4)} offset:{256*(t//4)}')
    g.label(skip)
    for nn in range(4):
        for b in range(4):
            d = FT + nn * 8 + (b // 2) * 4 + (b % 2) * 2
            g(f'ds_read_b64_tr_b16 v[{d}:{d+1}], v{40+nn} offset:{16384*b}')
    g(f'ds_read_b32 v12, v1 offset:{L_MODE}')
    g(f's_mov_b32 s63, {f2u(KAPPA):#x}')
    g('s_waitcnt lgkmcnt(0)')
    g(f'v_readfirstlane_b32 {sMODE}, v12')
    g.stamp(3)

    g('s_lshl_b32 s48, s61, 8')
    g('s_lshl_b32 s49, s62, 3')
    g(f's_add_u32 s49, s49, {sWAVE}')
    g('s_lshl_b32 s49, s49, 17')
    g('s_add_u32 s48, s48, s49')
    g.addr('s[42:43]', S_WUV, 's48')
    g('v_lshlrev_b32 v254, 13, v6')
    g('v_lshl_add_u32 v254, v7, 4, v254')

    def qa_loads(_):
        for i in range(4):
            g(f'global_load_dwordx4 v[{16+4*i}:{19+4*i}], v248, {WS} offset:{1024*i} sc1')
    g.poll('qa', qa_loads, [16, 20, 24, 28], 10, 11)
    for i in range(4):
        o = 128 * (i & 1)
        g(f'ds_write2_b32 v{44+(i>>1)}, v{16+4*i}, v{18+4*i} offset0:{o} offset1:{o+1}')
    g.stamp(4)
    g('s_waitcnt lgkmcnt(0)')
    g('s_barrier')
    wuv_ins = []
    for tt in range(4):
        wuv_ins.append(f'global_load_dwordx4 v[{64+4*tt}:{67+4*tt}], v254, s[42:43] nt')
        if tt < 3:
            wuv_ins.append('s_add_u32 s42, s42, 32768')
            wuv_ins.append('s_addc_u32 s43, s43, 0')
    g(f's_cmp_lt_u32 {sWAVE}, 4')
    g('s_cbranch_scc1 L_a_s')
    for ins in wuv_ins:
        g(ins)
    g('s_branch L_a_b5')
    g.label('L_a_s')
    qreg = [192 + 4 * t for t in range(8)] + [16 + 4 * t for t in range(4)] + [80 + 4 * t for t in range(4)]
    for t in range(16):
        g(f'ds_read_b128 v[{qreg[t]}:{qreg[t]+3}], v{32+(t%4)} offset:{L_QL+256*(t//4)}')
    for t in range(16):
        g(f's_waitcnt lgkmcnt({15-t})')
        c = '0' if t == 0 else 'v[48:51]'
        g(f'v_mfma_f32_16x16x32_bf16 v[48:51], v[{FA+4*t}:{FA+4*t+3}], v[{qreg[t]}:{qreg[t]+3}], {c}')
        if 2 <= t < 2 + len(wuv_ins):
            g(wuv_ins[t - 2])
    g.nop(8)
    g('v_max_f32 v52, v48, v49')
    g('v_max3_f32 v52, v52, v50, v51')
    g.row_reduce([52], [53], 'max')
    g(f'ds_write_b32 v47, v52 offset:{L_MB}')
    g('s_waitcnt lgkmcnt(0)')
    g.label('L_a_b5')
    g('s_barrier')
    g.stamp(12)
    g(f's_cmp_lt_u32 {sWAVE}, 4')
    g('s_cbranch_scc1 L_a_sm')
    g(f's_cmp_eq_u32 {sWAVE}, 7')
    g('s_cbranch_scc0 L_a_b6')
    g(f'ds_read_b128 v[84:87], v46 offset:{L_MB}')
    for k in range(4):
        g(f'v_mov_b32 v{88+k}, 0x3f803f80')
    g('s_waitcnt lgkmcnt(0)')
    g('v_max_f32 v84, v84, v85')
    g('v_max3_f32 v84, v84, v86, v87')
    g('v_mul_f32 v84, s63, v84')
    g(f'v_mov_b32 v85, {sTAG}')
    g(f'v_mov_b32 v87, {sTAG}')
    g('s_branch L_a_b6')
    g.label('L_a_sm')
    g(f'ds_read_b128 v[52:55], v46 offset:{L_MB}')
    g('s_waitcnt lgkmcnt(0)')
    g('v_max_f32 v52, v52, v53')
    g('v_max3_f32 v52, v52, v54, v55')
    g('v_mul_f32 v52, s63, v52')
    for k in range(4):
        g(f'v_fma_f32 v{48+k}, v{48+k}, s63, -v52')
    for k in range(4):
        g(f'v_exp_f32 v{48+k}, v{48+k}')
    g.nop(1)
    g('v_cvt_pk_bf16_f32 v54, v48, v49')
    g('v_cvt_pk_bf16_f32 v55, v50, v51')
    g(f'ds_write_b64 v56, v[54:55] offset:{L_PB}')
    g('s_waitcnt lgkmcnt(0)')
    g.label('L_a_b6')
    for nn in range(4):
        g(f'v_mov_b32 v{17+4*nn}, {sTAG}')
        g(f'v_mov_b32 v{19+4*nn}, {sTAG}')
    g('s_barrier')
    for b in range(4):
        g(f'ds_read_b64 v[{48+2*b}:{49+2*b}], v57 offset:{L_PB+512*b}')
    PD = 208
    g('s_waitcnt lgkmcnt(0)')
    g.stamp(10)
    g(f's_cmp_eq_u32 {sWAVE}, 7')
    g('s_cbranch_scc0 L_a_pv')
    g('v_mfma_f32_16x16x32_bf16 v[92:95], v[88:91], v[48:51], 0')
    g('v_mfma_f32_16x16x32_bf16 v[92:95], v[88:91], v[52:55], v[92:95]')
    g.label('L_a_pv')
    for nn in range(4):
        for s2 in range(2):
            c = '0' if s2 == 0 else f'v[{PD+4*nn}:{PD+3+4*nn}]'
            a = FT + nn * 8 + s2 * 4
            g(f'v_mfma_f32_16x16x32_bf16 v[{PD+4*nn}:{PD+3+4*nn}], v[{a}:{a+3}], v[{48+4*s2}:{51+4*s2}], {c}')
    g(f's_cmp_eq_u32 {sWAVE}, 7')
    g('s_cbranch_scc0 L_a_pv2')
    g('v_mov_b32 v86, v92')
    g.set_exec(0xffff)
    mode_store(g, [f'global_store_dwordx4 v249, v[84:87], {WS}'], sMODE)
    g('s_mov_b64 exec, -1')
    g.label('L_a_pv2')
    g.nop(2)
    for nn in range(4):
        g(f'v_cvt_pk_bf16_f32 v{16+4*nn}, v{PD+4*nn}, v{PD+1+4*nn}')
        g(f'v_cvt_pk_bf16_f32 v{18+4*nn}, v{PD+2+4*nn}, v{PD+3+4*nn}')
    g.stamp(11)
    mode_store(g, [f'global_store_dwordx4 v58, v[{16+4*nn}:{19+4*nn}], {WS} offset:{1024*nn}' for nn in range(4)], sMODE)
    g.stamp(5)
    if stop_after == 3:
        g('s_branch L_fin')

    g(f's_cmp_ge_u32 {sWAVE}, 4')
    g('s_cbranch_scc0 L_a_s4')
    MR = 96
    OR_ = 128

    def mll_loads(_):
        g(f'global_load_dwordx4 v[{MR}:{MR+3}], v59, {WS} sc1')
        g(f'global_load_dwordx4 v[{MR+4}:{MR+7}], v59, {WS} offset:1024 sc1')
    g.poll('mll', mll_loads, [MR, MR + 4], 10, 11)
    g(f'v_mov_b32 v20, v{MR}')
    g(f'v_mov_b32 v24, v{MR+4}')
    g.nop(1)
    for ctl in ['quad_perm:[1,0,3,2]', 'quad_perm:[2,3,0,1]', 'row_half_mirror']:
        g(f'v_max_f32_dpp v20, v20, v20 {ctl} row_mask:0xf bank_mask:0xf')
        g(f'v_max_f32_dpp v24, v24, v24 {ctl} row_mask:0xf bank_mask:0xf')
        g.nop(1)
    g(f'v_sub_f32 v{MR}, v{MR}, v20')
    g(f'v_sub_f32 v{MR+4}, v{MR+4}, v24')
    g(f'v_exp_f32 v{MR}, v{MR}')
    g(f'v_exp_f32 v{MR+4}, v{MR+4}')
    g.nop(1)
    g(f'ds_write_b32 v60, v{MR}')
    g(f'ds_write_b32 v60, v{MR+4} offset:256')
    g(f'v_mul_f32 v22, v{MR}, v{MR+2}')
    g(f'v_mul_f32 v26, v{MR+4}, v{MR+6}')
    g('s_waitcnt lgkmcnt(0)')
    g(f'ds_read_b128 v[{MR+8}:{MR+11}], v61')
    g(f'ds_read_b128 v[{MR+12}:{MR+15}], v61 offset:16')
    for ctl in ['quad_perm:[1,0,3,2]', 'quad_perm:[2,3,0,1]', 'row_half_mirror']:
        g(f'v_add_f32_dpp v22, v22, v22 {ctl} row_mask:0xf bank_mask:0xf')
        g(f'v_add_f32_dpp v26, v26, v26 {ctl} row_mask:0xf bank_mask:0xf')
        g.nop(1)
    g('s_cmp_eq_u32 s58, 0')
    g('s_cbranch_scc0 L_a_nomlx')
    g(f's_cmp_eq_u32 {sWAVE}, 4')
    g('s_cbranch_scc0 L_a_nomlx')
    for rr in (21, 23, 25, 27):
        g(f'v_mov_b32 v{rr}, {sTAG}')
    g.set_exec(0x0101010101010101)
    g(f'global_store_dwordx4 v250, v[20:23], {WS} sc1')
    g(f'global_store_dwordx4 v250, v[24:27], {WS} offset:1024 sc1')
    g('s_mov_b64 exec, -1')
    g.label('L_a_nomlx')
    g(f'v_mov_b32 v49, {sTAG}')
    g(f'v_mov_b32 v51, {sTAG}')

    def opl_loads(_):
        for k in range(8):
            g(f'global_load_dwordx4 v[{OR_+4*k}:{OR_+4*k+3}], v{224+k}, {WS} sc1')
    g.poll('opl', opl_loads, [OR_ + 4 * k for k in range(8)], 10, 11)
    g.stamp(6)
    g('s_waitcnt lgkmcnt(0)')
    for k in range(8):
        wr = MR + 8 + (k & ~1)
        sel = k & 1
        for half in range(2):
            src = OR_ + 4 * k + 2 * half
            t = 10 + 2 * half
            g(f'v_lshlrev_b32 v{t}, 16, v{src}')
            g(f'v_and_b32 v{t+1}, 0xffff0000, v{src}')
            acc = 52 + 2 * half
            if k == 0:
                g(f'v_pk_mul_f32 v[{acc}:{acc+1}], v[{t}:{t+1}], v[{wr}:{wr+1}] op_sel_hi:[1,0]')
            else:
                g(f'v_pk_fma_f32 v[{acc}:{acc+1}], v[{t}:{t+1}], v[{wr}:{wr+1}], v[{acc}:{acc+1}] op_sel:[0,{sel},0] op_sel_hi:[1,{sel},1]')
    g('v_cvt_pk_bf16_f32 v48, v52, v53')
    g('v_cvt_pk_bf16_f32 v50, v54, v55')
    g(f'global_store_dwordx4 v244, v[48:51], {WS} sc1')
    g.stamp(7)
    g.label('L_a_s4')
    g('s_barrier')

    top = g.uniq('ox_top'); done = g.uniq('ox_done')
    g('s_mov_b32 s50, 0')
    g.label(top)
    g(f'global_load_dwordx4 v[16:19], v251, {WS} sc1')
    g(f'global_load_dwordx2 v[20:21], v245, {WS} sc1')
    g('s_add_u32 s50, s50, 1')
    g('s_waitcnt vmcnt(0)')
    g('v_min3_u32 v10, v17, v19, v21')
    g('v_max3_u32 v11, v17, v19, v21')
    g(f'v_cmp_eq_u32 vcc, {sTAG}, v10')
    g(f'v_cmp_eq_u32 s[46:47], {sTAG}, v11')
    g('s_and_b64 vcc, vcc, s[46:47]')
    g('s_cmp_eq_u64 vcc, exec')
    g(f's_cbranch_scc1 {done}')
    g(f's_cmp_lt_u32 s50, {POLL_LIMIT}')
    g(f's_cbranch_scc1 {top}')
    g.label(done)
    g.stamp(8)
    g('v_mov_b32 v22, v16')
    g('v_lshlrev_b32 v25, 16, v20')
    g('v_and_b32 v26, 0xffff0000, v20')
    g('v_max_f32_dpp v22, v22, v22 quad_perm:[1,0,3,2] row_mask:0xf bank_mask:0xf')
    g.nop(2)
    g('v_max_f32_dpp v22, v22, v22 quad_perm:[2,3,0,1] row_mask:0xf bank_mask:0xf')
    g.nop(2)
    g('v_max_f32_dpp v22, v22, v22 row_half_mirror row_mask:0xf bank_mask:0xf')
    g('v_sub_f32 v16, v16, v22')
    g('v_exp_f32 v16, v16')
    g.nop(1)
    g('ds_bpermute_b32 v24, v252, v16')
    g('v_mul_f32 v22, v16, v18')
    reduce8(g, 'v_add_f32', 22)
    g('v_rcp_f32 v22, v22')
    g('s_waitcnt lgkmcnt(0)')
    g('v_mul_f32 v24, v24, v22')
    g('v_mul_f32 v25, v25, v24')
    g('v_mul_f32 v26, v26, v24')
    g.nop(2)
    g('v_permlane16_swap_b32 v25, v26')
    g.nop(1)
    g('v_add_f32 v25, v25, v26')
    g.nop(2)
    g('v_add_f32_dpp v25, v25, v25 row_ror:4 row_mask:0xf bank_mask:0xf')
    g.nop(2)
    g('v_add_f32_dpp v25, v25, v25 row_ror:8 row_mask:0xf bank_mask:0xf')
    g('v_cvt_pk_bf16_f32 v25, v25, v25')
    g.nop(2)

    def ands(tt):
        a = 84 + 4 * (tt % 2)
        for v in range(4):
            g(f'v_and_b32_dpp v{a+v}, v25, v{240+v} quad_perm:[{tt},{tt},{tt},{tt}] row_mask:0xf bank_mask:0xf')
    ands(0)
    for tt in range(4):
        if tt < 3:
            ands(tt + 1)
        else:
            g.nop(2)
        a = 84 + 4 * (tt % 2)
        c = '0' if tt == 0 else 'v[92:95]'
        g(f'v_mfma_f32_16x16x32_bf16 v[92:95], v[{a}:{a+3}], v[{64+4*tt}:{67+4*tt}], {c}')
    g.set_exec(0xffffffff)
    g.nop(6)
    g(f'ds_write_b128 v247, v[92:95] offset:{L_RED}')
    g('s_mov_b64 exec, -1')
    g('s_waitcnt lgkmcnt(0)')
    g('s_barrier')
    g(f's_cmp_eq_u32 {sWAVE}, 0')
    g('s_cbranch_scc0 L_a_red')
    for w in range(8):
        g(f'ds_read_b64 v[{32+2*w}:{33+2*w}], v57 offset:{L_RED+512*w}')
    g(f'v_mov_b32 v21, {sTAG}')
    g(f'v_mov_b32 v23, {sTAG}')
    g('s_waitcnt lgkmcnt(0)')
    g('v_pk_add_f32 v[32:33], v[32:33], v[34:35]')
    g('v_pk_add_f32 v[36:37], v[36:37], v[38:39]')
    g('v_pk_add_f32 v[40:41], v[40:41], v[42:43]')
    g('v_pk_add_f32 v[44:45], v[44:45], v[46:47]')
    g('v_pk_add_f32 v[32:33], v[32:33], v[36:37]')
    g('v_pk_add_f32 v[40:41], v[40:41], v[44:45]')
    g('v_add_f32 v20, v32, v40')
    g('v_add_f32 v22, v33, v41')
    mode_store(g, [f'global_store_dwordx4 v253, v[20:23], {WS}'], sMODE)
    g.stamp(9)
    g.label('L_a_red')
    if stop_after == 4:
        g('s_branch L_fin')
    g(f's_cmp_eq_u32 {sWAVE}, 7')
    g('s_cbranch_scc0 L_fin')
    g(f's_cmp_lt_u32 {sR}, 10')
    g('s_cbranch_scc0 L_fin')
    g(f's_mul_i32 s55, {sXCD}, 10')
    g(f's_add_u32 s55, s55, {sR}')
    g('v_and_b32 v7, 3, v0')
    g('v_lshrrev_b32 v6, 5, v0')
    g('v_lshl_add_u32 v8, v7, 1, v6')
    g('s_lshl_b32 s48, s55, 3')
    g('v_add_u32 v8, s48, v8')
    g('v_lshlrev_b32 v8, 1, v8')
    g(f'global_load_ushort v30, v8, {S_X}')
    g('v_bfe_u32 v9, v0, 2, 3')
    g('v_mul_u32_u24 v9, 5120, v9')
    g('v_lshl_add_u32 v9, v7, 4, v9')
    g('s_lshl_b32 s48, s55, 6')
    g(f's_add_u32 s48, s48, {OUTP}')
    g('v_add_u32 v9, s48, v9')
    g('s_lshl_b32 s48, s55, 6')
    g(f's_add_u32 s48, s48, {O2P}')
    g('v_lshrrev_b32 v12, 2, v0')
    g('v_mul_u32_u24 v12, 5120, v12')
    g('v_lshl_add_u32 v12, v7, 4, v12')
    g('v_add_u32 v12, s48, v12')
    g(f'v_add_u32 v13, {16*5120}, v12')
    g(f'v_add_u32 v14, {32*5120}, v12')
    g(f'v_add_u32 v15, {48*5120}, v12')
    g('v_mov_b32 v44, 0')
    g(f'v_mov_b32 v45, {sTAG}')
    g('v_mov_b32 v46, 0')
    g(f'v_mov_b32 v47, {sTAG}')

    def h_loads(_):
        g(f'global_load_dwordx4 v[16:19], v9, {WS} sc1')
    g.poll('hf', h_loads, [16], 10, 11)
    g('v_cmp_le_u32 vcc, 32, v0')
    g.nop(1)
    g('v_cndmask_b32 v16, v16, v18, vcc')
    g('v_mov_b32 v17, v16')
    g.nop(2)
    g('v_permlane16_swap_b32 v17, v16')
    g.nop(1)
    g('v_add_f32 v16, v16, v17')
    g.nop(2)
    g('v_add_f32_dpp v16, v16, v16 row_ror:4 row_mask:0xf bank_mask:0xf')
    g.nop(2)
    g('v_add_f32_dpp v16, v16, v16 row_ror:8 row_mask:0xf bank_mask:0xf')
    rnd_bf16(g, 16)
    g('v_lshlrev_b32 v30, 16, v30')
    g('v_add_f32 v30, v30, v16')
    rnd_bf16(g, 30)

    def o2_loads(_):
        for i in range(3):
            g(f'global_load_dwordx4 v[{32+4*i}:{35+4*i}], v{12+i}, {WS} sc1')
        g.set_exec(0xffffff)
        g(f'global_load_dwordx4 v[44:47], v15, {WS} sc1')
        g('s_mov_b64 exec, -1')
    g.poll('o2', o2_loads, [32, 36, 40, 44], 10, 11)
    g.stamp(9)
    g('v_add_f32 v16, v32, v36')
    g('v_add_f32 v17, v34, v38')
    g('v_add_f32 v18, v40, v44')
    g('v_add_f32 v19, v42, v46')
    g('v_pk_add_f32 v[16:17], v[16:17], v[18:19]')
    g.nop(2)
    g('v_permlane32_swap_b32 v16, v17')
    g.nop(1)
    g('v_add_f32 v16, v16, v17')
    g('v_mov_b32 v17, v16')
    g.nop(2)
    g('v_permlane16_swap_b32 v17, v16')
    g.nop(1)
    g('v_add_f32 v16, v16, v17')
    g.nop(2)
    g('v_add_f32_dpp v16, v16, v16 row_ror:4 row_mask:0xf bank_mask:0xf')
    g.nop(2)
    g('v_add_f32_dpp v16, v16, v16 row_ror:8 row_mask:0xf bank_mask:0xf')
    rnd_bf16(g, 16)
    g('v_add_f32 v16, v16, v30')
    g('v_cvt_pk_bf16_f32 v16, v16, v16')
    g('s_mov_b32 exec_lo, 0xf')
    g('s_mov_b32 exec_hi, 0xf')
    g(f'global_store_short v8, v16, {S_OUT}')
    g('s_mov_b64 exec, -1')
    g('s_cmp_eq_u32 s55, 0')
    g('s_cbranch_scc0 L_fin')
    g('s_mov_b64 exec, 1')
    g(f'v_mov_b32 v2, {sTAG}')
    g(f'global_store_dword v1, v2, {WS} sc1')
    g('s_mov_b64 exec, -1')
    g('s_branch L_fin')

    g.label('L_pathB')
    g(f's_sub_u32 s54, {sR}, 16')
    g('s_lshr_b32 s48, s54, 2')
    g(f's_lshl_b32 s49, {sXCD}, 2')
    g('s_add_u32 s55, s48, s49')
    g('s_lshl_b32 s48, s55, 11')
    g('s_and_b32 s49, s54, 3')
    g('s_lshl_b32 s49, s49, 9')
    g('s_add_u32 s48, s48, s49')
    g(f's_lshl_b32 s49, {sWAVE}, 6')
    g('s_add_u32 s48, s48, s49')
    g(f's_add_u32 s48, s48, {QA}')
    g('v_lshlrev_b32 v9, 4, v6')
    g('v_add_u32 v104, s48, v9')
    g(f'v_mov_b32 v101, {sTAG}')
    g(f'v_mov_b32 v103, {sTAG}')
    if 'wuk_late' in opts:
        g(f's_cmp_eq_u32 {sWAVE}, 1')
        g('s_cbranch_scc1 L_b1')
        wuk_loads()
        g(f's_cmp_eq_u32 {sWAVE}, 0')
        g('s_cbranch_scc0 L_b1')
    else:
        g(f's_cmp_eq_u32 {sWAVE}, 0')
        g('s_cbranch_scc0 L_b1')
        wuk_loads()
    g('s_lshl_b32 s48, s55, 13')
    g(f's_add_u32 s49, s48, {Q1L}')
    g.addr('s[40:41]', S_WS, 's49')
    g(f's_add_u32 s49, s48, {Q1G}')
    g.addr('s[42:43]', S_WS, 's49')
    g('v_add_u32 v4, 4096, v3')
    g('v_lshlrev_b32 v14, 2, v0')

    def q1_loads(base):
        for k in range(8):
            vo = 'v3' if k < 4 else 'v4'
            g(f'global_load_dwordx4 v[{32+4*k}:{35+4*k}], {vo}, {base} offset:{1024*(k%4)} sc1')
    g.poll('q1', q1_loads, [32 + 4 * k for k in range(8)], 10, 11, alt=('s[40:41]', 's[42:43]'))
    g.stamp(3)
    g('v_add_f32 v12, v32, v36')
    g('v_add_f32 v13, v34, v38')
    g('v_add_f32 v10, v40, v44')
    g('v_add_f32 v11, v42, v46')
    g('v_add_f32 v32, v48, v52')
    g('v_add_f32 v33, v50, v54')
    g('v_add_f32 v34, v56, v60')
    g('v_add_f32 v35, v58, v62')
    g('v_pk_add_f32 v[12:13], v[12:13], v[10:11]')
    g('v_pk_add_f32 v[32:33], v[32:33], v[34:35]')
    g('v_pk_add_f32 v[12:13], v[12:13], v[32:33]')
    g('v_cvt_pk_bf16_f32 v12, v12, v13')
    g(f'ds_write_b32 v14, v12 offset:{L_QB}')
    g('s_waitcnt lgkmcnt(0)')
    g.label('L_b1')
    g('s_waitcnt vmcnt(0)')
    g('s_barrier')
    for t in range(4):
        g(f'ds_read_b128 v[{80+4*t}:{83+4*t}], v9 offset:{L_QB+64*t}')
    for t in range(4):
        g(f's_waitcnt lgkmcnt({3-t})')
        c = '0' if t == 0 else 'v[96:99]'
        g(f'v_mfma_f32_16x16x32_bf16 v[96:99], v[{64+4*t}:{67+4*t}], v[{80+4*t}:{83+4*t}], {c}')
    g('s_mov_b32 exec_lo, 0x00010001')
    g('s_mov_b32 exec_hi, 0x00010001')
    g.nop(6)
    g('v_cvt_pk_bf16_f32 v100, v96, v97')
    g('v_cvt_pk_bf16_f32 v102, v98, v99')
    g(f'global_store_dwordx4 v104, v[100:103], {WS} sc1')
    g('s_mov_b64 exec, -1')
    g.stamp(4)
    if stop_after in (2, 3, 4):
        g('s_branch L_fin')
    g('s_barrier')
    g.stamp(5)
    g('v_lshrrev_b32 v8, 3, v7')
    g('v_and_b32 v9, 7, v0')
    g('v_lshl_add_u32 v10, v8, 2, v6')
    g('s_cmp_lt_u32 s54, 5')
    g('s_cbranch_scc1 L_b_wo')
    g('s_sub_u32 s48, s54, 5')
    g('s_lshr_b32 s49, s48, 1')
    g('s_lshl_b32 s49, s49, 3')
    g(f's_add_u32 s49, s49, {sXCD}')
    g('s_cmp_lt_u32 s49, 27')
    g('s_cbranch_scc0 L_fin')
    g('s_lshl_b32 s49, s49, 1')
    g('s_and_b32 s48, s48, 1')
    g('s_add_u32 s58, s49, s48')
    g('s_branch L_b_mlpld')
    g.label('L_b_wo')
    g(f's_lshl_b32 s48, {sXCD}, 3')
    g(f's_add_u32 s48, s48, {sWAVE}')
    g(f's_mul_i32 s48, s48, {64*1280}')
    g('s_lshl_b32 s49, s54, 8')
    g('s_add_u32 s48, s48, s49')
    g.addr('s[40:41]', S_WO, 's48')
    g(f'v_mul_u32_u24 v11, {16*1280}, v6')
    g('v_lshl_add_u32 v11, v7, 4, v11')
    for t in range(16):
        if t % 4 == 0 and t > 0:
            g('v_add_u32 v11, 5120, v11')
        g(f'global_load_dwordx4 v[{32+4*t}:{35+4*t}], v11, s[40:41] offset:{1280*(t%4)} nt')
    gen_sel(g, 192, 16, 17)
    g(f's_lshr_b32 s48, {sWAVE}, 1')
    g(f's_lshl_b32 s49, {sXCD}, 2')
    g('s_add_u32 s48, s48, s49')
    g('s_lshl_b32 s48, s48, 12')
    g(f's_and_b32 s49, {sWAVE}, 1')
    g('s_lshl_b32 s49, s49, 9')
    g('s_add_u32 s48, s48, s49')
    g(f's_add_u32 s48, s48, {C4}')
    g('v_and_b32 v11, 31, v0')
    g('v_lshlrev_b32 v11, 4, v11')
    g('v_lshrrev_b32 v12, 5, v0')
    g('v_lshl_add_u32 v11, v12, 10, v11')
    g('v_add_u32 v11, s48, v11')
    g('v_and_b32 v24, 31, v0')
    g('v_lshlrev_b32 v24, 2, v24')
    g('v_lshl_add_u32 v24, v12, 1, v24')
    g(f's_lshl_b32 s48, {sWAVE}, 7')
    g('v_add_u32 v24, s48, v24')
    g('v_lshlrev_b32 v25, 5, v6')
    g('v_add_u32 v25, s48, v25')
    g('v_lshlrev_b32 v26, 5, v7')
    g('v_lshl_add_u32 v26, v6, 4, v26')
    g(f's_lshl_b32 s48, {sWAVE}, 9')
    g('v_add_u32 v26, s48, v26')
    g('v_lshlrev_b32 v28, 3, v0')
    g(f's_mul_i32 s48, {sXCD}, 5120')
    g('s_lshl_b32 s49, s54, 10')
    g('s_add_u32 s48, s48, s49')
    g(f's_add_u32 s48, s48, {OUTP}')
    g('v_add_u32 v29, s48, v3')
    g(f'v_mov_b32 v145, {sTAG}')
    g(f'v_mov_b32 v147, {sTAG}')

    def gemv(n, src, wbase, d):
        def pm(t):
            a = 212 + 4 * (t % 2)
            for v in range(4):
                g(f'v_perm_b32 v{a+v}, v{src+t//2}, v{src+t//2}, v{192+2*v+(t&1)}')
        pm(0)
        for t in range(n):
            if t + 1 < n:
                pm(t + 1)
            else:
                g.nop(2)
            a = 212 + 4 * (t % 2)
            c = '0' if t == 0 else f'v[{d}:{d+3}]'
            g(f'v_mfma_f32_16x16x32_bf16 v[{d}:{d+3}], v[{a}:{a+3}], v[{wbase+4*t}:{wbase+4*t+3}], {c}')

    def c4_loads(base):
        g(f'global_load_dwordx4 v[16:19], v11, {WS} sc1')
        g(f'global_load_dwordx4 v[20:23], v11, {WS} offset:2048 sc1')
    g.poll('c4', c4_loads, [16, 20], 13, 14)
    g.stamp(6)
    g('v_add_f32 v16, v16, v20')
    g('v_add_f32 v18, v18, v22')
    g.nop(2)
    g('v_permlane32_swap_b32 v16, v18')
    g.nop(1)
    g('v_add_f32 v16, v16, v18')
    g('v_cvt_pk_bf16_f32 v16, v16, v16')
    g(f'ds_write_b16 v24, v16 offset:{L_CB}')
    g('s_waitcnt lgkmcnt(0)')
    g(f'ds_read_b128 v[16:19], v25 offset:{L_CB}')
    g(f'ds_read_b128 v[20:23], v25 offset:{L_CB+16}')
    g('s_waitcnt lgkmcnt(0)')
    gemv(16, 16, 32, 200)
    g.set_exec(0xffffffff)
    g.nop(6)
    g(f'ds_write_b128 v26, v[200:203] offset:{L_RED}')
    g('s_mov_b64 exec, -1')
    g('s_waitcnt lgkmcnt(0)')
    g('s_barrier')
    g(f's_cmp_eq_u32 {sWAVE}, 0')
    g('s_cbranch_scc0 L_fin')
    for w in range(8):
        g(f'ds_read_b64 v[{160+2*w}:{161+2*w}], v28 offset:{L_RED+512*w}')
    g('s_waitcnt lgkmcnt(0)')
    g('v_pk_add_f32 v[160:161], v[160:161], v[162:163]')
    g('v_pk_add_f32 v[164:165], v[164:165], v[166:167]')
    g('v_pk_add_f32 v[168:169], v[168:169], v[170:171]')
    g('v_pk_add_f32 v[172:173], v[172:173], v[174:175]')
    g('v_pk_add_f32 v[160:161], v[160:161], v[164:165]')
    g('v_pk_add_f32 v[168:169], v[168:169], v[172:173]')
    g('v_add_f32 v144, v160, v168')
    g('v_add_f32 v146, v161, v169')
    g(f'global_store_dwordx4 v29, v[144:147], {WS} sc1')
    g.stamp(7)
    g('s_branch L_fin')

    g.label('L_b_mlpld')
    if stop_after == 5:
        g('s_branch L_fin')
    gen_sel(g, 192, 16, 17)
    g('v_and_b32 v26, 1, v6')
    g('v_lshlrev_b32 v26, 2, v26')
    g('v_lshl_add_u32 v26, v9, 3, v26')
    g('v_lshrrev_b32 v27, 1, v6')
    g('v_add_u32 v26, v26, v27')
    g('v_lshlrev_b32 v26, 2, v26')
    g(f's_lshl_b32 s48, {sWAVE}, 8')
    g('v_add_u32 v26, s48, v26')
    g('v_cmp_le_u32 vcc, 4, v9')
    g('v_mov_b32 v12, s22')
    g('v_mov_b32 v13, s24')
    g('v_mov_b32 v14, s23')
    g('v_mov_b32 v15, s25')
    g('v_cndmask_b32 v12, v12, v13, vcc')
    g('v_cndmask_b32 v13, v14, v15, vcc')
    g('v_and_b32 v14, 3, v0')
    g('v_lshlrev_b32 v14, 4, v14')
    g('s_lshl_b32 s48, s58, 6')
    g(f's_mul_i32 s49, {sWAVE}, {80*3456}')
    g('s_add_u32 s48, s48, s49')
    g('v_add_u32 v14, s48, v14')
    g(f'v_mul_u32_u24 v15, {8*3456}, v10')
    g('v_add_u32 v15, v15, v14')
    g(f'v_mul_u32_u24 v16, {2*3456}, v10')
    g('v_add_u32 v16, v16, v14')
    g(f'v_add_u32 v16, {64*3456}, v16')
    for t in range(10):
        if t == 0:
            src = 15
        elif t == 8:
            src = 16
        g(f'v_add_co_u32 v18, vcc, v12, v{src}')
        g.nop(2)
        g('v_addc_co_u32 v19, vcc, 0, v13, vcc')
        g(f'global_load_dwordx4 v[{64+4*t}:{67+4*t}], v[18:19], off nt')
        g(f'v_add_u32 v{src}, 3456, v{src}')
    g('s_lshl_b32 s48, s58, 5')
    g(f's_mul_i32 s48, s48, 1280')
    g(f's_lshl_b32 s49, {sWAVE}, 7')
    g('s_add_u32 s48, s48, s49')
    g.addr('s[40:41]', S_WD, 's48')
    g(f'v_mul_u32_u24 v11, {4*1280}, v10')
    g('v_lshl_add_u32 v11, v9, 4, v11')
    for t in range(4):
        g(f'global_load_dwordx4 v[{104+4*t}:{107+4*t}], v11, s[40:41] offset:{1280*t} nt')
    g(f's_cmp_lt_u32 {sWAVE}, 2')
    g('s_cbranch_scc0 L_b_nod2')
    g('s_add_u32 s40, s40, 1024')
    g('s_addc_u32 s41, s41, 0')
    for t in range(4):
        g(f'global_load_dwordx4 v[{120+4*t}:{123+4*t}], v11, s[40:41] offset:{1280*t} nt')
    g.label('L_b_nod2')
    g(f's_lshl_b32 s48, {sWAVE}, 8')
    g('s_min_u32 s48, s48, 1024')
    g('v_lshlrev_b32 v17, 2, v0')
    g('v_add_u32 v17, s48, v17')
    g(f'global_load_dword v140, v17, {S_X}')
    g(f'global_load_ushort v141, v1, {S_X}')
    g('s_waitcnt vmcnt(0)')
    g('v_lshlrev_b32 v141, 16, v141')
    g.nop(1)
    g('v_readfirstlane_b32 s53, v141')
    gen_mask(g, 220, 16, 17)
    for v in range(4):
        g(f'v_and_b32 v{220+v}, 0x3f803f80, v{220+v}')
    g.nop(2)
    for t in range(10):
        c = '0' if t == 0 else 'v[200:203]'
        g(f'v_mfma_f32_16x16x32_bf16 v[200:203], v[220:223], v[{64+4*t}:{67+4*t}], {c}')
    g.nop(8)
    class_combine(g, 200)
    g.set_exec(0x00ff00ff00ff00ff)
    g('ds_write2_b32 v26, v200, v202 offset0:0 offset1:2')
    g('s_mov_b64 exec, -1')
    g('s_waitcnt lgkmcnt(0)')
    g('s_barrier')
    g('v_lshlrev_b32 v29, 2, v0')
    for w in range(8):
        g(f'ds_read_b32 v{160+w}, v29 offset:{256*w}')
    g('s_waitcnt lgkmcnt(0)')
    g('v_add_f32 v160, v160, v161')
    g('v_add_f32 v162, v162, v163')
    g('v_add_f32 v164, v164, v165')
    g('v_add_f32 v166, v166, v167')
    g('v_add_f32 v160, v160, v162')
    g('v_add_f32 v164, v164, v166')
    g('v_add_f32 v142, v160, v164')
    g('s_barrier')
    g(f's_mul_i32 s48, {sWAVE}, 160')
    g('v_lshlrev_b32 v27, 4, v10')
    g('v_add_u32 v27, s48, v27')
    g('v_lshlrev_b32 v28, 2, v10')
    g('v_add_u32 v28, s48, v28')
    g('v_lshlrev_b32 v30, 3, v10')
    g('v_and_b32 v31, 31, v0')
    g('v_lshlrev_b32 v31, 1, v31')
    g('v_lshlrev_b32 v14, 6, v9')
    g('v_and_b32 v15, 1, v6')
    g('v_lshlrev_b32 v15, 5, v15')
    g('v_add_u32 v14, v14, v15')
    g('v_lshrrev_b32 v15, 1, v6')
    g('v_lshl_add_u32 v14, v15, 3, v14')
    g(f's_mul_i32 s48, s58, 5120')
    g(f's_lshl_b32 s49, {sWAVE}, 9')
    g('s_add_u32 s48, s48, s49')
    g(f's_add_u32 s48, s48, {O2P}')
    g('v_add_u32 v14, s48, v14')
    g(f'v_add_u32 v15, {8*512}, v14')
    g(f'v_mov_b32 v21, {sTAG}')
    g(f'v_mov_b32 v23, {sTAG}')
    g(f's_lshl_b32 s48, {sWAVE}, 8')
    g('v_add_u32 v143, s48, v29')
    g(f's_lshl_b32 s48, {sWAVE}, 3')
    g('v_mov_b32 v144, s48')
    g(f's_cmp_lt_u32 {sWAVE}, 5')
    g('s_cbranch_scc0 L_m_b1')
    g(f's_lshl_b32 s48, {sWAVE}, 10')
    g(f's_add_u32 s48, s48, {OUTP}')
    g('v_add_u32 v152, s48, v3')
    for k in range(1, 8):
        g(f'v_add_u32 v{152+k}, {5120*k}, v152')
    g('v_lshlrev_b32 v148, 16, v140')
    g('v_and_b32 v149, 0xffff0000, v140')

    def out_loads(_):
        for k in range(8):
            g(f'global_load_dwordx4 v[{160+4*k}:{163+4*k}], v{152+k}, {WS} sc1')
    g.poll('outp', out_loads, [160 + 4 * k for k in range(8)], 12, 13)
    g.stamp(8)
    g('v_add_f32 v16, v160, v164')
    g('v_add_f32 v17, v162, v166')
    g('v_add_f32 v18, v168, v172')
    g('v_add_f32 v19, v170, v174')
    g('v_add_f32 v160, v176, v180')
    g('v_add_f32 v161, v178, v182')
    g('v_add_f32 v162, v184, v188')
    g('v_add_f32 v163, v186, v190')
    g('v_pk_add_f32 v[16:17], v[16:17], v[18:19]')
    g('v_pk_add_f32 v[160:161], v[160:161], v[162:163]')
    g('v_pk_add_f32 v[16:17], v[16:17], v[160:161]')
    g('v_cvt_pk_bf16_f32 v16, v16, v17')
    g('v_lshlrev_b32 v18, 16, v16')
    g('v_and_b32 v19, 0xffff0000, v16')
    g('v_pk_add_f32 v[18:19], v[18:19], v[148:149]')
    g('v_cvt_pk_bf16_f32 v16, v18, v19')
    g(f'ds_write_b32 v143, v16 offset:{L_HB}')
    g('v_lshlrev_b32 v18, 16, v16')
    g('v_and_b32 v19, 0xffff0000, v16')
    g('v_subrev_f32 v18, s53, v18')
    g('v_subrev_f32 v19, s53, v19')
    g('v_add_f32 v160, v18, v19')
    g('v_mul_f32 v161, v18, v18')
    g('v_fmac_f32 v161, v19, v19')
    g.wave_reduce([160, 161], [162, 163])
    g('s_mov_b64 exec, 1')
    g(f'ds_write_b64 v144, v[160:161] offset:{L_ST}')
    g('s_mov_b64 exec, -1')
    g('s_waitcnt lgkmcnt(0)')
    g.label('L_m_b1')
    g('s_barrier')
    g.stamp(9)
    g(f'ds_read_b128 v[176:179], v27 offset:{L_HB}')
    g(f'ds_read_b32 v180, v28 offset:{L_HB+128}')
    g(f's_cmp_eq_u32 {sWAVE}, 7')
    g('s_cbranch_scc0 L_m_ns')
    g(f'ds_read_b128 v[160:163], v1 offset:{L_ST}')
    g(f'ds_read_b128 v[164:167], v1 offset:{L_ST+16}')
    g(f'ds_read_b64 v[168:169], v1 offset:{L_ST+32}')
    g('s_waitcnt lgkmcnt(0)')
    g('v_pk_add_f32 v[160:161], v[160:161], v[162:163]')
    g('v_pk_add_f32 v[164:165], v[164:165], v[166:167]')
    g('v_pk_add_f32 v[160:161], v[160:161], v[168:169]')
    g('v_pk_add_f32 v[160:161], v[160:161], v[164:165]')
    ln_scalars(g, 160, 161, 's53', 170, 171, 172)
    g('v_mul_f32 v170, v170, v142')
    g.label('L_m_ns')
    g('s_waitcnt lgkmcnt(0)')
    gemv(10, 176, 64, 200)
    g.nop(8)
    class_combine(g, 200)
    g.set_exec(0x00ff00ff00ff00ff)
    g('ds_write2_b32 v26, v200, v202 offset0:0 offset1:2')
    g('s_mov_b64 exec, -1')
    g('s_waitcnt lgkmcnt(0)')
    g('s_barrier')
    g.stamp(10)
    g(f's_cmp_eq_u32 {sWAVE}, 7')
    g('s_cbranch_scc0 L_m_b3')
    for w in range(8):
        g(f'ds_read_b32 v{160+w}, v29 offset:{256*w}')
    g('s_waitcnt lgkmcnt(0)')
    g('v_pk_add_f32 v[160:161], v[160:161], v[162:163]')
    g('v_pk_add_f32 v[164:165], v[164:165], v[166:167]')
    g('v_pk_add_f32 v[160:161], v[160:161], v[164:165]')
    g('v_add_f32 v16, v160, v161')
    g('v_sub_f32 v16, v16, v170')
    g('v_mul_f32 v16, v16, v171')
    rnd_bf16(g, 16)
    g('v_mov_b32 v17, v16')
    g.nop(2)
    g('v_permlane32_swap_b32 v16, v17')
    g.nop(1)
    g('v_max_f32 v16, 0, v16')
    g('v_mul_f32 v16, v16, v17')
    g('v_cvt_pk_bf16_f32 v16, v16, v16')
    g(f'ds_write_b16 v31, v16 offset:{L_CB}')
    g('s_waitcnt lgkmcnt(0)')
    g.label('L_m_b3')
    g('s_barrier')
    g(f'ds_read_b64 v[16:17], v30 offset:{L_CB}')
    g('s_waitcnt lgkmcnt(0)')
    g.stamp(11)

    def down(base, vo):
        gemv(4, 16, base, 204)
        g.nop(8)
        class_combine(g, 204)
        g('v_mov_b32 v20, v204')
        g('v_mov_b32 v22, v206')
        g.set_exec(0x00ff00ff00ff00ff)
        g(f'global_store_dwordx2 v{vo}, v[20:21], {WS} sc1')
        g(f'global_store_dwordx2 v{vo}, v[22:23], {WS} offset:16 sc1')
        g('s_mov_b64 exec, -1')
    down(104, 14)
    g(f's_cmp_lt_u32 {sWAVE}, 2')
    g('s_cbranch_scc0 L_m_done')
    down(120, 15)
    g.label('L_m_done')

    g.label('L_fin')
    g.stamp(15)
    if g.stamps:
        g('s_memtime s[92:93]')
    g.stamp_flush()
    g.label('L_end')
    g('s_endpgm')
    body = g.text()

    hdr = open('cdna_kernels/' + KN[:-7] + '.s.ref').read().split('\n')
    head = []
    for line in hdr:
        if line.startswith('; @launch'):
            head.append(f'; @launch grid=(256,1,1) block=(512,1,1) lds={LDS_BYTES}')
        elif line.startswith(';'):
            head.append(line)
        else:
            break
    out = '\n'.join(head) + '\n'
    out += '.amdgcn_target "amdgcn-amd-amdhsa--gfx950"\n.text\n'
    out += f'.globl {KN}\n.p2align 8\n.type {KN},@function\n{KN}:\n'
    out += body
    out += f'''.section .rodata,"a"
.p2align 6
.amdhsa_kernel {KN}
  .amdhsa_next_free_vgpr 256
  .amdhsa_next_free_sgpr 102
  .amdhsa_accum_offset 256
  .amdhsa_group_segment_fixed_size 0
  .amdhsa_kernarg_size 104
  .amdhsa_user_sgpr_count 2
  .amdhsa_user_sgpr_kernarg_segment_ptr 1
  .amdhsa_system_sgpr_workgroup_id_x 1
.end_amdhsa_kernel
'''
    return out


if __name__ == '__main__':
    import argparse
    ap = argparse.ArgumentParser()
    ap.add_argument('-o', default='k.s')
    ap.add_argument('--stamps', action='store_true')
    ap.add_argument('--stop', type=int, default=None)
    ap.add_argument('--opts', default='')
    a = ap.parse_args()
    open(a.o, 'w').write(build(a.stamps, a.stop, tuple(a.opts.split(','))))
```

```python
import sys, struct

KN = 'sequential_preLN__compressed_kv_cla__glu_gated_reglu__decode_kernel'

EPOCH = 0
XID = 0x1000
Q1L = 0x10000
Q1G = 0x50000
QA = 0x90000
MLL = 0xA0000
C4 = 0xA8000
MLX = 0xC8000
OUTP = 0xE8000
O2P = 0x100000
OX = 0x180000
OPL = 0x200000
STAMPS = 0x800000

L_XN = 0
L_QB = 256
L_MB = 512
L_LB = 768
L_PB = 1024
L_RED = 3072
L_CB = 7168
L_HB = 8192
L_ST = 9472
L_MODE = 9728
L_TAG = 9732
L_QL = 10240
L_TILE = 26624
LDS_BYTES = 92160

S_X, S_CKV, S_WQ, S_WUK, S_WUV, S_WO, S_WG, S_WU, S_WD, S_OUT, S_DBG, S_WS = (
    's[8:9]', 's[10:11]', 's[12:13]', 's[14:15]', 's[16:17]', 's[18:19]', 's[22:23]', 's[24:25]', 's[26:27]',
    's[28:29]', 's[30:31]', 's[32:33]')
sXCD, sR, sWAVE, sH, sJ, sTAG = 's34', 's35', 's36', 's37', 's38', 's39'
POLL_LIMIT = 1 << 17


def f2u(x):
    return struct.unpack('<I', struct.pack('<f', x))[0]


class Gen:
    def __init__(s, stamps=False, stop_after=None):
        s.L = []
        s.n = 0
        s.stamps = stamps
        s.stop_after = stop_after
        s.nstamp = 0

    def __call__(s, txt):
        for line in txt.strip('\n').split('\n'):
            line = line.strip()
            if line:
                s.L.append('    ' + line)

    def label(s, name):
        s.L.append(name + ':')

    def uniq(s, base):
        s.n += 1
        return f'{base}_{s.n}'

    def nop(s, n):
        while n > 0:
            k = min(n, 16)
            s(f's_nop {k-1}')
            n -= k

    def stamp(s, idx):
        if s.stamps:
            s(f's_memrealtime s[{64+2*idx}:{65+2*idx}]')

    def stamp_flush(s, nst=16):
        if not s.stamps:
            return
        s('s_waitcnt lgkmcnt(0)')
        s('s_mov_b64 exec, 1')
        s(f's_lshl_b32 s48, s2, 3')
        s(f's_add_u32 s48, s48, {sWAVE}')
        s(f's_lshl_b32 s48, s48, 7')
        s(f's_add_u32 s48, s48, {STAMPS}')
        s('v_mov_b32 v1, s48')
        for i in range(nst):
            s(f'v_mov_b32 v2, s{64+2*i}')
            s(f'v_mov_b32 v3, s{65+2*i}')
            s(f'global_store_dwordx2 v1, v[2:3], {S_WS} offset:{8*i}')
            s('s_nop 1')
        s('s_waitcnt vmcnt(0)')

    def addr(s, dst, src, off):
        d = int(dst[2:].split(':')[0]); sr = int(src[2:].split(':')[0])
        s(f's_add_u32 s{d}, s{sr}, {off}')
        s(f's_addc_u32 s{d+1}, s{sr+1}, 0')

    def set_exec(s, mask):
        if mask == (1 << 64) - 1:
            s('s_mov_b64 exec, -1')
        else:
            s(f's_mov_b32 exec_lo, {mask & 0xffffffff:#x}')
            s(f's_mov_b32 exec_hi, {mask >> 32:#x}')

    def wave_reduce(s, regs, tmps, op='add'):
        ins = {'add': 'v_add_f32', 'max': 'v_max_f32'}[op]
        n = len(regs)
        pad = max(0, 2 - (n - 1))
        s.nop(2)
        for ctl in ['quad_perm:[1,0,3,2]', 'quad_perm:[2,3,0,1]', 'row_half_mirror', 'row_mirror']:
            for r in regs:
                s(f'{ins}_dpp v{r}, v{r}, v{r} {ctl} row_mask:0xf bank_mask:0xf')
            s.nop(pad)
        s.row_reduce(regs, tmps, op)

    def row_reduce(s, regs, tmps, op='add'):
        ins = {'add': 'v_add_f32', 'max': 'v_max_f32'}[op]
        n = len(regs)
        for sw in ['v_permlane16_swap_b32', 'v_permlane32_swap_b32']:
            for r, t in zip(regs, tmps):
                s(f'v_mov_b32 v{t}, v{r}')
            s.nop(max(0, 2 - (n - 1)))
            for r, t in zip(regs, tmps):
                s(f'{sw} v{t}, v{r}')
            s.nop(1 if n == 1 else 0)
            for r, t in zip(regs, tmps):
                s(f'{ins} v{r}, v{r}, v{t}')
            s.nop(0)

    def check_tags(s, regs, t0, t1, done_label):
        tags = []
        for r in regs:
            tags += [r + 1, r + 3]
        if len(tags) == 2:
            s(f'v_cmp_eq_u32 vcc, {sTAG}, v{tags[0]}')
            s(f'v_cmp_eq_u32 s[46:47], {sTAG}, v{tags[1]}')
        else:
            s(f'v_min3_u32 v{t0}, v{tags[0]}, v{tags[1]}, v{tags[2]}')
            s(f'v_max3_u32 v{t1}, v{tags[0]}, v{tags[1]}, v{tags[2]}')
            rest = tags[3:]
            while rest:
                if len(rest) >= 2:
                    s(f'v_min3_u32 v{t0}, v{t0}, v{rest[0]}, v{rest[1]}')
                    s(f'v_max3_u32 v{t1}, v{t1}, v{rest[0]}, v{rest[1]}')
                    rest = rest[2:]
                else:
                    s(f'v_min_u32 v{t0}, v{t0}, v{rest[0]}')
                    s(f'v_max_u32 v{t1}, v{t1}, v{rest[0]}')
                    rest = rest[1:]
            s(f'v_cmp_eq_u32 vcc, {sTAG}, v{t0}')
            s(f'v_cmp_eq_u32 s[46:47], {sTAG}, v{t1}')
        s('s_and_b64 vcc, vcc, s[46:47]')
        s('s_cmp_eq_u64 vcc, exec')
        s(f's_cbranch_scc1 {done_label}')

    def poll(s, name, emit_loads, regs, t0, t1, first_hook=None, alt=None):
        top = s.uniq(name + '_top'); done = s.uniq(name + '_done'); fail = s.uniq(name + '_fail')
        s(f's_mov_b32 s50, 0')
        if first_hook is not None:
            emit_loads(alt[0] if alt else None)
            first_hook()
            s('s_waitcnt vmcnt(0)')
            s.check_tags(regs, t0, t1, done)
        s.label(top)
        if alt:
            s('s_add_u32 s50, s50, 1')
            s('s_and_b32 s51, s50, 7')
            s('s_cmp_eq_u32 s51, 0')
            s(f's_cselect_b64 s[44:45], {alt[1]}, {alt[0]}')
            emit_loads('s[44:45]')
        else:
            s('s_add_u32 s50, s50, 1')
            emit_loads(None)
        s('s_waitcnt vmcnt(0)')
        s.check_tags(regs, t0, t1, done)
        s(f's_cmp_lt_u32 s50, {POLL_LIMIT}')
        s(f's_cbranch_scc1 {top}')
        s(f's_mov_b64 s[46:47], exec')
        s('s_mov_b64 exec, 1')
        s(f'v_mov_b32 v{t0}, {4*(s.n % 60)}')
        s(f'v_mov_b32 v{t1}, {0x1000 + s.n}')
        s(f'global_store_dword v{t0}, v{t1}, {S_DBG}')
        s(f's_mov_b64 exec, s[46:47]')
        s.label(done)

    def text(s):
        return '\n'.join(s.L) + '\n'


KAPPA = (128 ** -0.5) * 1.4426950408889634


def gen_sel(g, base, t0, t1):
    g(f'v_and_b32 v{t0}, 7, v0')
    g(f'v_and_b32 v{t1}, 1, v0')
    for par in range(2):
        lo = 0x0c0c0000 | ((2 * par + 1) << 8) | (2 * par)
        hi = ((2 * par + 1) << 24) | ((2 * par) << 16) | 0x0c0c
        g(f'v_cmp_eq_u32 vcc, 1, v{t1}')
        g(f'v_mov_b32 v{base+par}, {lo:#x}')
        g(f'v_mov_b32 v{base+2+par}, {hi:#x}')
        g(f'v_cndmask_b32 v{base+par}, v{base+par}, v{base+2+par}, vcc')
    g(f'v_lshrrev_b32 v{t0}, 1, v{t0}')
    g(f'v_mov_b32 v{t1}, 0x0c0c0c0c')
    for v in [3, 2, 1, 0]:
        g(f'v_cmp_eq_u32 vcc, {v}, v{t0}')
        g.nop(1)
        for par in range(2):
            g(f'v_cndmask_b32 v{base+2*v+par}, v{t1}, v{base+par}, vcc')


def gen_mask(g, base, t0, t1):
    g(f'v_and_b32 v{t0}, 7, v0')
    g(f'v_and_b32 v{t1}, 1, v0')
    g(f'v_cmp_eq_u32 vcc, 1, v{t1}')
    g(f'v_mov_b32 v{base}, 0xffff')
    g(f'v_mov_b32 v{base+1}, 0xffff0000')
    g(f'v_cndmask_b32 v{t1}, v{base}, v{base+1}, vcc')
    g(f'v_lshrrev_b32 v{t0}, 1, v{t0}')
    for v in range(4):
        g(f'v_cmp_eq_u32 vcc, {v}, v{t0}')
        g.nop(1)
        g(f'v_cndmask_b32 v{base+v}, 0, v{t1}, vcc')


def get_tag(g, vreg):
    g.nop(1)
    g(f'v_readfirstlane_b32 {sTAG}, v{vreg}')
    g.nop(4)
    g(f's_mul_i32 {sTAG}, {sTAG}, 5')
    g(f's_add_u32 {sTAG}, {sTAG}, 0x9E3779B9')


def rnd_bf16(g, r):
    g(f'v_cvt_pk_bf16_f32 v{r}, v{r}, v{r}')
    g(f'v_and_b32 v{r}, 0xffff0000, v{r}')


def ln_scalars(g, s1, s2, piv_sgpr, vm, vrs, t0):
    g(f's_mov_b32 s52, {f2u(1.0/640):#x}')
    g(f'v_mul_f32 v{s1}, s52, v{s1}')
    g(f'v_mul_f32 v{s2}, s52, v{s2}')
    g(f'v_fma_f32 v{s2}, -v{s1}, v{s1}, v{s2}')
    g(f'v_max_f32 v{s2}, 0, v{s2}')
    g(f'v_add_f32 v{vm}, {piv_sgpr}, v{s1}')
    rnd_bf16(g, vm)
    rnd_bf16(g, s2)
    g(f'v_add_f32 v{s2}, 0x3727c5ac, v{s2}')
    rnd_bf16(g, s2)
    g(f'v_sqrt_f32 v{s2}, v{s2}')
    g.nop(1)
    rnd_bf16(g, s2)
    g(f'v_rcp_f32 v{vrs}, v{s2}')
    g.nop(1)


def class_combine(g, d):
    for k in range(4):
        g(f'v_mov_b32_dpp v{d+k}, v{d+k} row_ror:8 row_mask:0xc bank_mask:0xf')
    g.nop(1)
    g(f'v_permlane32_swap_b32 v{d}, v{d+1}')
    g(f'v_permlane32_swap_b32 v{d+2}, v{d+3}')
    g.nop(1)
    g(f'v_add_f32 v{d}, v{d}, v{d+1}')
    g(f'v_add_f32 v{d+2}, v{d+2}, v{d+3}')


def mode_store(g, ins_no_flag, smode):
    a = g.uniq('ms_fast'); b = g.uniq('ms_done')
    g(f's_cmp_eq_u32 {smode}, 1')
    g(f's_cbranch_scc1 {a}')
    for ins in ins_no_flag:
        g(ins + ' sc1')
    g(f's_branch {b}')
    g.label(a)
    for ins in ins_no_flag:
        g(ins)
    g.label(b)


def reduce8(g, ctlop, r):
    for ctl in ['quad_perm:[1,0,3,2]', 'quad_perm:[2,3,0,1]', 'row_half_mirror']:
        g.nop(2)
        g(f'{ctlop}_dpp v{r}, v{r}, v{r} {ctl} row_mask:0xf bank_mask:0xf')


def voff(g, dst, sexpr_reg, base_v):
    g(f'v_add_u32 v{dst}, {sexpr_reg}, v{base_v}')


def build(stamps=False, stop_after=None, opts=()):
    g = Gen(stamps, stop_after)
    sMODE = 's59'
    WS = S_WS
    if 'pf0' in opts:
        g('s_getpc_b64 s[42:43]')
        g('v_lshlrev_b32 v1, 4, v0')
        g('global_load_dwordx4 v[232:235], v1, s[42:43]')
    g('s_cmp_ge_u32 s2, 256')
    g('s_cbranch_scc1 L_end')
    g('s_load_dwordx16 s[8:23], s[0:1], 0')
    g('s_load_dwordx8 s[24:31], s[0:1], 64')
    g('s_load_dwordx2 s[32:33], s[0:1], 96')
    g.stamp(0)
    if g.stamps:
        g('s_memtime s[90:91]')
    g('v_lshrrev_b32 v1, 6, v0')
    g('v_and_b32 v0, 63, v0')
    g(f'v_readfirstlane_b32 {sWAVE}, v1')
    g(f's_and_b32 {sXCD}, s2, 7')
    g(f's_lshr_b32 {sR}, s2, 3')
    g(f's_lshr_b32 {sH}, {sR}, 3')
    g(f's_lshl_b32 s48, {sXCD}, 2')
    g(f's_add_u32 {sH}, {sH}, s48')
    g(f's_and_b32 {sJ}, {sR}, 7')
    g('v_mov_b32 v1, 0')
    g('v_lshlrev_b32 v3, 4, v0')
    g('v_and_b32 v7, 15, v0')
    g('v_lshrrev_b32 v6, 4, v0')
    g(f's_cmp_eq_u32 {sWAVE}, 1')
    g('s_cbranch_scc1 L_w1')
    g('s_waitcnt lgkmcnt(0)')
    g(f'global_load_dword v2, v1, {WS} sc1')
    g(f's_cmp_eq_u32 {sWAVE}, 0')
    g('s_cbranch_scc1 L_w0')

    def wuk_loads():
        le = g.uniq('ew_e')
        g(f's_cmp_ge_u32 {sR}, 16')
        g(f's_cbranch_scc0 {le}')
        g(f's_sub_u32 s54, {sR}, 16')
        g('s_lshr_b32 s48, s54, 2')
        g(f's_lshl_b32 s49, {sXCD}, 2')
        g('s_add_u32 s48, s48, s49')
        g('s_lshl_b32 s48, s48, 8')
        g('s_and_b32 s49, s54, 3')
        g('s_lshl_b32 s49, s49, 3')
        g(f's_add_u32 s49, s49, {sWAVE}')
        g('s_lshl_b32 s49, s49, 17')
        g('s_add_u32 s48, s48, s49')
        g.addr('s[40:41]', S_WUK, 's48')
        g('v_lshlrev_b32 v8, 13, v7')
        g('v_lshl_add_u32 v8, v6, 4, v8')
        for t in range(4):
            g(f'global_load_dwordx4 v[{64+4*t}:{67+4*t}], v8, s[40:41] offset:{64*t} nt')
        g.label(le)

    g('s_waitcnt vmcnt(0)')
    if 'wuk_late' not in opts:
        wuk_loads()
    g(f's_cmp_eq_u32 {sWAVE}, 7')
    g('s_cbranch_scc0 L_nw7')
    if 'pf0' in opts:
        g(f's_and_b32 s48, {sR}, 7')
        g('s_lshl_b32 s48, s48, 10')
        g('s_add_u32 s48, s48, 8192')
        g(f's_min_u32 s48, s48, L_end-{KN}-1024')
    else:
        g('s_getpc_b64 s[42:43]')
        g(f's_lshl_b32 s48, {sR}, 10')
    g('s_add_u32 s42, s42, s48')
    g('s_addc_u32 s43, s43, 0')
    g('global_load_dwordx4 v[232:235], v3, s[42:43]')
    g.label('L_nw7')
    g(f's_cmp_eq_u32 {sWAVE}, 2')
    g('s_cbranch_scc0 L_b0')
    get_tag(g, 2)
    g('s_getreg_b32 s48, hwreg(HW_REG_XCC_ID)')
    g('s_and_b32 s48, s48, 0xf')
    g('v_mov_b32 v12, s48')
    g(f'v_mov_b32 v13, {sTAG}')
    g('v_mov_b32 v14, s48')
    g(f'v_mov_b32 v15, {sTAG}')
    g(f's_lshl_b32 s48, {sXCD}, 5')
    g(f's_add_u32 s48, s48, {sR}')
    g('s_lshl_b32 s48, s48, 4')
    g(f's_add_u32 s48, s48, {XID}')
    g('v_mov_b32 v16, s48')
    g('s_mov_b64 exec, 1')
    g(f'global_store_dwordx4 v16, v[12:15], {WS} sc1')
    g('s_mov_b64 exec, -1')
    g('s_branch L_b0')

    g.label('L_w0')
    g('v_lshlrev_b32 v4, 2, v0')
    for k in range(5):
        g(f'global_load_dword v{10+k}, v4, {S_X} offset:{256*k}')
    g('v_min_u32 v5, 39, v0')
    g('v_lshlrev_b32 v5, 2, v5')
    g(f's_mul_i32 s48, {sJ}, 160')
    g('v_add_u32 v5, s48, v5')
    g(f'global_load_dword v15, v5, {S_X}')
    g('s_waitcnt vmcnt(6)')
    get_tag(g, 2)
    g(f'v_mov_b32 v31, {sTAG}')
    g(f'ds_write_b32 v1, v31 offset:{L_TAG}')
    g('s_waitcnt vmcnt(1)')
    g.stamp(1)
    for k in range(5):
        g(f'v_lshlrev_b32 v{16+2*k}, 16, v{10+k}')
        g(f'v_and_b32 v{17+2*k}, 0xffff0000, v{10+k}')
    g('v_readfirstlane_b32 s53, v16')
    g(f's_mov_b32 s52, {f2u(1.0/640):#x}')
    g.nop(1)
    for k in range(10):
        g(f'v_subrev_f32 v{16+k}, s53, v{16+k}')
    g('v_pk_mul_f32 v[26:27], v[16:17], v[16:17]')
    g('v_pk_add_f32 v[28:29], v[16:17], v[18:19]')
    for k in range(1, 5):
        g(f'v_pk_fma_f32 v[26:27], v[{16+2*k}:{17+2*k}], v[{16+2*k}:{17+2*k}], v[26:27]')
        if k >= 2:
            g(f'v_pk_add_f32 v[28:29], v[28:29], v[{16+2*k}:{17+2*k}]')
    g('v_add_f32 v27, v26, v27')
    g('v_add_f32 v26, v28, v29')
    g.wave_reduce([26, 27], [28, 29])
    ln_scalars(g, 26, 27, 's53', 28, 29, 30)
    g('s_waitcnt vmcnt(0)')
    g('v_lshlrev_b32 v16, 16, v15')
    g('v_and_b32 v17, 0xffff0000, v15')
    g('v_sub_f32 v16, v16, v28')
    g('v_sub_f32 v17, v17, v28')
    g('v_cvt_pk_bf16_f32 v18, v16, v17')
    g('v_lshlrev_b32 v16, 16, v18')
    g('v_and_b32 v17, 0xffff0000, v18')
    g('v_mul_f32 v16, v16, v29')
    g('v_mul_f32 v17, v17, v29')
    g('v_cvt_pk_bf16_f32 v18, v16, v17')
    g(f'ds_write_b32 v4, v18 offset:{L_XN}')
    g('s_waitcnt lgkmcnt(0)')
    g.stamp(2)
    g('s_branch L_b0')

    g.label('L_w1')
    g(f's_mov_b32 s49, {20*8192}')
    g('v_mul_lo_u32 v8, v6, s49')
    g('v_lshl_add_u32 v8, v7, 4, v8')
    g(f's_mul_i32 s48, {sJ}, {80*8192}')
    g(f's_lshl_b32 s49, {sH}, 8')
    g('s_add_u32 s48, s48, s49')
    g('s_waitcnt lgkmcnt(0)')
    g.addr('s[40:41]', S_WQ, 's48')
    for t in range(20):
        g(f'global_load_dwordx4 v[{80+4*t}:{83+4*t}], v8, s[40:41] nt')
        if t < 19:
            g('s_add_u32 s40, s40, 8192')
            g('s_addc_u32 s41, s41, 0')
    wuk_loads()
    g(f's_cmp_ge_u32 {sR}, 16')
    g('s_cbranch_scc1 L_w1_nd')
    for t in range(4):
        g(f'global_load_dword v{64+t}, v1, {S_X}')
    g.label('L_w1_nd')
    g.stamp(1)
    gen_sel(g, 192, 16, 17)
    g('v_lshlrev_b32 v9, 6, v7')
    g('v_lshl_add_u32 v9, v6, 5, v9')
    g(f's_lshl_b32 s48, {sH}, 3')
    g(f's_add_u32 s48, s48, {sJ}')
    g('s_lshl_b32 s48, s48, 10')
    g(f's_add_u32 s49, s48, {Q1L}')
    g('v_add_u32 v10, s49, v9')
    g(f's_add_u32 s49, s48, {Q1G}')
    g('v_add_u32 v11, s49, v9')
    g('v_mul_u32_u24 v19, 40, v6')
    if 'wqst' in opts:
        g('s_waitcnt vmcnt(23)')
        g.stamp(11)
        g('s_waitcnt vmcnt(14)')
        g.stamp(12)
        g('s_waitcnt vmcnt(4)')
        g.stamp(13)
    g('s_barrier')
    g(f'ds_read_b32 v2, v1 offset:{L_TAG}')
    for k in range(5):
        g(f'ds_read_b64 v[{16+2*k}:{17+2*k}], v19 offset:{L_XN+8*k}')
    g('s_waitcnt lgkmcnt(0)')
    g(f'v_readfirstlane_b32 {sTAG}, v2')
    for rr in (205, 207, 209, 211):
        g(f'v_mov_b32 v{rr}, v2')

    def perms(t):
        a = 160 + 4 * (t % 2)
        for v in range(4):
            g(f'v_perm_b32 v{a+v}, v{16+t//2}, v{16+t//2}, v{192+2*v+(t&1)}')
    perms(0)
    for t in range(20):
        if t + 1 < 20:
            perms(t + 1)
        else:
            g.nop(2)
        g(f's_waitcnt vmcnt({19-t+4})')
        a = 160 + 4 * (t % 2)
        c = '0' if t == 0 else 'v[200:203]'
        g(f'v_mfma_f32_16x16x32_bf16 v[200:203], v[{a}:{a+3}], v[{80+4*t}:{83+4*t}], {c}')
    g.set_exec(0xffffffff)
    g.nop(6)
    g('v_mov_b32 v204, v200')
    g('v_mov_b32 v206, v201')
    g('v_mov_b32 v208, v202')
    g('v_mov_b32 v210, v203')
    g(f'global_store_dwordx4 v10, v[204:207], {WS}')
    g(f'global_store_dwordx4 v10, v[208:211], {WS} offset:16')
    g(f'global_store_dwordx4 v11, v[204:207], {WS} sc1')
    g(f'global_store_dwordx4 v11, v[208:211], {WS} offset:16 sc1')
    g('s_mov_b64 exec, -1')
    g.stamp(2)
    g('s_branch L_split')

    g.label('L_b0')
    g('s_barrier')
    g(f'ds_read_b32 v2, v1 offset:{L_TAG}')
    g('s_waitcnt lgkmcnt(0)')
    g(f'v_readfirstlane_b32 {sTAG}, v2')
    g.label('L_split')
    g(f's_cmp_ge_u32 {sR}, 16')
    g('s_cbranch_scc1 L_pathB')

    g(f's_and_b32 s55, {sR}, 1')
    g(f's_lshr_b32 s56, {sR}, 1')
    g('v_and_b32 v8, 7, v0')
    g('v_lshlrev_b32 v8, 1, v8')
    g(f's_lshl_b32 s48, {sWAVE}, 14')
    g(f's_add_u32 s48, s48, {L_TILE}')
    for tl in range(4):
        g(f'v_add_u32 v9, {4*tl}, v6')
        g('v_xor_b32 v9, v9, v8')
        g('v_lshlrev_b32 v9, 4, v9')
        g(f'v_lshl_add_u32 v{32+tl}, v7, 10, v9')
        g(f'v_add_u32 v{36+tl}, s48, v{32+tl}')
    g('v_lshrrev_b32 v9, 2, v0')
    g('v_and_b32 v10, 7, v9')
    g('v_lshlrev_b32 v9, 10, v9')
    g('v_and_b32 v11, 3, v0')
    g('v_lshl_add_u32 v9, v11, 3, v9')
    g(f's_lshr_b32 s48, {sWAVE}, 1')
    g('s_lshl_b32 s48, s48, 8')
    g(f's_add_u32 s48, s48, {L_TILE}')
    g('v_add_u32 v9, s48, v9')
    g(f's_and_b32 s48, {sWAVE}, 1')
    g('s_lshl_b32 s48, s48, 2')
    for nn in range(4):
        g(f's_add_u32 s49, s48, {nn}')
        g('v_xor_b32 v11, s49, v10')
        g(f'v_lshl_add_u32 v{40+nn}, v11, 5, v9')
    g('v_lshrrev_b32 v9, 1, v0')
    g('v_and_b32 v10, 1, v0')
    g('v_lshlrev_b32 v10, 3, v10')
    for ih in range(2):
        g(f's_lshl_b32 s48, {sWAVE}, 1')
        g(f's_add_u32 s48, s48, {ih}')
        g('s_and_b32 s49, s48, 7')
        g('s_lshl_b32 s49, s49, 1')
        g('v_xor_b32 v11, s49, v9')
        g('v_lshl_add_u32 v11, v11, 4, v10')
        g('s_lshl_b32 s48, s48, 10')
        g(f's_add_u32 s48, s48, {L_QL}')
        g(f'v_add_u32 v{44+ih}, s48, v11')
    gen_mask(g, 240, 9, 10)
    g('v_lshlrev_b32 v46, 4, v7')
    g(f's_lshl_b32 s48, {sWAVE}, 2')
    g('v_add_u32 v47, s48, v46')
    g('v_lshlrev_b32 v57, 3, v0')
    g(f's_lshl_b32 s48, {sWAVE}, 9')
    g('v_add_u32 v56, s48, v57')
    g('s_lshl_b32 s48, s55, 15')
    g(f's_lshl_b32 s49, {sWAVE}, 12')
    g('s_add_u32 s48, s48, s49')
    g(f's_add_u32 s48, s48, {QA}')
    g('v_add_u32 v248, s48, v3')
    g(f's_lshl_b32 s48, {sXCD}, 19')
    g('s_lshl_b32 s49, s55, 18')
    g('s_add_u32 s48, s48, s49')
    g('s_lshl_b32 s49, s56, 15')
    g('s_add_u32 s48, s48, s49')
    g(f's_lshl_b32 s49, {sWAVE}, 12')
    g('s_add_u32 s48, s48, s49')
    g(f's_add_u32 s48, s48, {OPL}')
    g('v_add_u32 v58, s48, v3')
    g(f's_lshl_b32 s48, {sXCD}, 12')
    g('s_lshl_b32 s49, s55, 11')
    g('s_add_u32 s48, s48, s49')
    g('s_lshl_b32 s49, s56, 4')
    g('s_add_u32 s48, s48, s49')
    g(f's_add_u32 s48, s48, {MLL}')
    g('v_lshlrev_b32 v249, 7, v7')
    g('v_add_u32 v249, s48, v249')
    g(f's_lshr_b32 s60, {sR}, 3')
    g(f's_and_b32 s58, {sR}, 7')
    g(f's_and_b32 s57, {sWAVE}, 3')
    g(f's_lshl_b32 s48, {sXCD}, 12')
    g('s_lshl_b32 s49, s60, 11')
    g('s_add_u32 s48, s48, s49')
    g(f's_add_u32 s48, s48, {MLL}')
    g('v_add_u32 v59, s48, v3')
    g('s_lshl_b32 s48, s57, 9')
    g(f's_add_u32 s48, s48, {L_RED}')
    g('v_lshlrev_b32 v60, 2, v0')
    g('v_add_u32 v60, s48, v60')
    g('v_lshlrev_b32 v61, 5, v7')
    g('v_add_u32 v61, s48, v61')
    g(f's_lshl_b32 s48, {sXCD}, 19')
    g('s_lshl_b32 s49, s60, 18')
    g('s_add_u32 s48, s48, s49')
    g('s_lshl_b32 s49, s58, 12')
    g('s_add_u32 s48, s48, s49')
    g('s_lshl_b32 s49, s57, 10')
    g('s_add_u32 s48, s48, s49')
    g(f's_add_u32 s48, s48, {OPL}')
    g('v_add_u32 v224, s48, v3')
    for k in range(1, 8):
        g(f'v_add_u32 v{224+k}, {32768*k}, v224')
    g('s_lshl_b32 s48, s60, 18')
    g(f's_lshl_b32 s49, {sXCD}, 11')
    g('s_add_u32 s48, s48, s49')
    g('s_lshl_b32 s49, s58, 8')
    g('s_add_u32 s48, s48, s49')
    g('s_lshl_b32 s49, s57, 6')
    g('s_add_u32 s48, s48, s49')
    g(f's_add_u32 s48, s48, {OX}')
    g('v_lshlrev_b32 v244, 14, v7')
    g('v_lshl_add_u32 v244, v6, 4, v244')
    g('v_add_u32 v244, s48, v244')
    g('s_lshl_b32 s48, s60, 11')
    g(f's_lshl_b32 s49, {sXCD}, 4')
    g('s_add_u32 s48, s48, s49')
    g(f's_add_u32 s48, s48, {MLX}')
    g('v_lshrrev_b32 v250, 3, v0')
    g('v_lshlrev_b32 v250, 7, v250')
    g('v_add_u32 v250, s48, v250')
    g('v_and_b32 v9, 7, v0')
    g('v_lshlrev_b32 v9, 4, v9')
    g('v_lshrrev_b32 v12, 5, v0')
    g(f's_lshr_b32 s48, {sR}, 2')
    g(f's_lshl_b32 s49, {sXCD}, 2')
    g('s_add_u32 s61, s48, s49')
    g(f's_and_b32 s62, {sR}, 3')
    g('s_lshl_b32 s48, s61, 7')
    g(f's_add_u32 s48, s48, {MLX}')
    g('v_add_u32 v251, s48, v9')
    g('s_lshl_b32 s48, s61, 14')
    g('s_lshl_b32 s49, s62, 9')
    g('s_add_u32 s48, s48, s49')
    g(f's_lshl_b32 s49, {sWAVE}, 6')
    g('s_add_u32 s48, s48, s49')
    g(f's_add_u32 s48, s48, {OX}')
    g('v_bfe_u32 v13, v0, 2, 3')
    g('v_lshlrev_b32 v252, 2, v13')
    g('v_lshlrev_b32 v13, 11, v13')
    g('v_and_b32 v14, 3, v0')
    g('v_lshl_add_u32 v13, v14, 4, v13')
    g('v_lshl_add_u32 v13, v12, 3, v13')
    g('v_add_u32 v245, s48, v13')
    g('v_lshlrev_b32 v247, 5, v7')
    g('v_lshl_add_u32 v247, v6, 4, v247')
    g(f's_lshl_b32 s48, {sWAVE}, 9')
    g('v_add_u32 v247, s48, v247')
    g(f's_lshl_b32 s48, {sXCD}, 4')
    g(f's_add_u32 s48, s48, {sR}')
    g('s_lshl_b32 s48, s48, 10')
    g(f's_add_u32 s48, s48, {C4}')
    g('v_add_u32 v253, s48, v3')
    if 'dma_early' not in opts:
        g('s_barrier')
    g(f's_lshl_b32 s57, {sXCD}, 3')
    g('s_add_u32 s57, s57, s56')
    g('s_lshl_b32 s48, s57, 6')
    g(f's_lshl_b32 s49, {sWAVE}, 3')
    g('s_add_u32 s48, s48, s49')
    g('s_lshl_b32 s48, s48, 10')
    g.addr('s[40:41]', S_CKV, 's48')
    g('s_lshl_b32 s49, s49, 10')
    g(f's_add_u32 s49, s49, {L_TILE}')
    g('s_mov_b32 m0, s49')
    for i in range(8):
        if i == 4:
            g('s_add_u32 s49, s49, 4096')
            g('s_mov_b32 m0, s49')
            g('s_add_u32 s40, s40, 4096')
            g('s_addc_u32 s41, s41, 0')
        g(f'v_xor_b32 v4, {32*i}, v3')
        g(f'global_load_lds_dwordx4 v4, s[40:41] offset:{1024*(i%4)} nt')
    g(f'global_load_dword v233, v58, {WS} sc1')
    g(f'global_load_dword v234, v224, {WS} sc1')
    g(f'global_load_dword v235, v231, {WS} sc1')
    g(f's_cmp_eq_u32 {sWAVE}, 3')
    g('s_cbranch_scc0 L_a_nochk')
    g(f's_lshl_b32 s48, {sXCD}, 9')
    g(f's_add_u32 s48, s48, {XID}')
    g('v_and_b32 v9, 31, v0')
    g('v_lshlrev_b32 v9, 4, v9')
    g('v_add_u32 v9, s48, v9')
    g('s_getreg_b32 s52, hwreg(HW_REG_XCC_ID)')
    g('s_and_b32 s52, s52, 0xf')
    g('s_mov_b32 s50, 0')
    g(f's_mov_b32 {sMODE}, 0')
    g.label('L_a_chk')
    g(f'global_load_dwordx4 v[12:15], v9, {WS} sc1')
    g('s_add_u32 s50, s50, 1')
    g('s_waitcnt vmcnt(0)')
    g(f'v_cmp_eq_u32 vcc, {sTAG}, v13')
    g(f'v_cmp_eq_u32 s[46:47], {sTAG}, v15')
    g('s_and_b64 vcc, vcc, s[46:47]')
    g('s_cmp_eq_u64 vcc, exec')
    g('s_cbranch_scc1 L_a_chk_ok')
    g('s_cmp_lt_u32 s50, 64')
    g('s_cbranch_scc1 L_a_chk')
    g('s_branch L_a_chk_done')
    g.label('L_a_chk_ok')
    g('v_cmp_eq_u32 vcc, s52, v12')
    g('v_cmp_eq_u32 s[46:47], s52, v14')
    g('s_and_b64 vcc, vcc, s[46:47]')
    g('s_cmp_eq_u64 vcc, exec')
    g(f's_cselect_b32 {sMODE}, 1, 0')
    g.label('L_a_chk_done')
    g(f'v_mov_b32 v12, {sMODE}')
    g(f'ds_write_b32 v1, v12 offset:{L_MODE}')
    g.label('L_a_nochk')
    g('s_waitcnt vmcnt(0) lgkmcnt(0)')
    g('s_barrier')
    FA = 96
    FT = 160
    skip = g.uniq('skipfa')
    g(f's_cmp_lt_u32 {sWAVE}, 4')
    g(f's_cbranch_scc0 {skip}')
    for t in range(16):
        g(f'ds_read_b128 v[{FA+4*t}:{FA+4*t+3}], v{36+(t%4)} offset:{256*(t//4)}')
    g.label(skip)
    for nn in range(4):
        for b in range(4):
            d = FT + nn * 8 + (b // 2) * 4 + (b % 2) * 2
            g(f'ds_read_b64_tr_b16 v[{d}:{d+1}], v{40+nn} offset:{16384*b}')
    g(f'ds_read_b32 v12, v1 offset:{L_MODE}')
    g(f's_mov_b32 s63, {f2u(KAPPA):#x}')
    g('s_waitcnt lgkmcnt(0)')
    g(f'v_readfirstlane_b32 {sMODE}, v12')
    g.stamp(3)

    g('s_lshl_b32 s48, s61, 8')
    g('s_lshl_b32 s49, s62, 3')
    g(f's_add_u32 s49, s49, {sWAVE}')
    g('s_lshl_b32 s49, s49, 17')
    g('s_add_u32 s48, s48, s49')
    g.addr('s[42:43]', S_WUV, 's48')
    g('v_lshlrev_b32 v254, 13, v6')
    g('v_lshl_add_u32 v254, v7, 4, v254')

    def qa_loads(_):
        for i in range(4):
            g(f'global_load_dwordx4 v[{16+4*i}:{19+4*i}], v248, {WS} offset:{1024*i} sc1')
    g.poll('qa', qa_loads, [16, 20, 24, 28], 10, 11)
    for i in range(4):
        o = 128 * (i & 1)
        g(f'ds_write2_b32 v{44+(i>>1)}, v{16+4*i}, v{18+4*i} offset0:{o} offset1:{o+1}')
    g.stamp(4)
    g('s_waitcnt lgkmcnt(0)')
    g('s_barrier')
    wuv_ins = []
    for tt in range(4):
        wuv_ins.append(f'global_load_dwordx4 v[{64+4*tt}:{67+4*tt}], v254, s[42:43] nt')
        if tt < 3:
            wuv_ins.append('s_add_u32 s42, s42, 32768')
            wuv_ins.append('s_addc_u32 s43, s43, 0')
    g(f's_cmp_lt_u32 {sWAVE}, 4')
    g('s_cbranch_scc1 L_a_s')
    for ins in wuv_ins:
        g(ins)
    g('s_branch L_a_b5')
    g.label('L_a_s')
    qreg = [192 + 4 * t for t in range(8)] + [16 + 4 * t for t in range(4)] + [80 + 4 * t for t in range(4)]
    for t in range(16):
        g(f'ds_read_b128 v[{qreg[t]}:{qreg[t]+3}], v{32+(t%4)} offset:{L_QL+256*(t//4)}')
    for t in range(16):
        g(f's_waitcnt lgkmcnt({15-t})')
        c = '0' if t == 0 else 'v[48:51]'
        g(f'v_mfma_f32_16x16x32_bf16 v[48:51], v[{FA+4*t}:{FA+4*t+3}], v[{qreg[t]}:{qreg[t]+3}], {c}')
        if 2 <= t < 2 + len(wuv_ins):
            g(wuv_ins[t - 2])
    g.nop(8)
    g('v_max_f32 v52, v48, v49')
    g('v_max3_f32 v52, v52, v50, v51')
    g.row_reduce([52], [53], 'max')
    g(f'ds_write_b32 v47, v52 offset:{L_MB}')
    g('s_waitcnt lgkmcnt(0)')
    g.label('L_a_b5')
    g('s_barrier')
    g.stamp(12)
    g(f's_cmp_lt_u32 {sWAVE}, 4')
    g('s_cbranch_scc1 L_a_sm')
    g(f's_cmp_eq_u32 {sWAVE}, 7')
    g('s_cbranch_scc0 L_a_b6')
    g(f'ds_read_b128 v[84:87], v46 offset:{L_MB}')
    for k in range(4):
        g(f'v_mov_b32 v{88+k}, 0x3f803f80')
    g('s_waitcnt lgkmcnt(0)')
    g('v_max_f32 v84, v84, v85')
    g('v_max3_f32 v84, v84, v86, v87')
    g('v_mul_f32 v84, s63, v84')
    g(f'v_mov_b32 v85, {sTAG}')
    g(f'v_mov_b32 v87, {sTAG}')
    g('s_branch L_a_b6')
    g.label('L_a_sm')
    g(f'ds_read_b128 v[52:55], v46 offset:{L_MB}')
    g('s_waitcnt lgkmcnt(0)')
    g('v_max_f32 v52, v52, v53')
    g('v_max3_f32 v52, v52, v54, v55')
    g('v_mul_f32 v52, s63, v52')
    for k in range(4):
        g(f'v_fma_f32 v{48+k}, v{48+k}, s63, -v52')
    for k in range(4):
        g(f'v_exp_f32 v{48+k}, v{48+k}')
    g.nop(1)
    g('v_cvt_pk_bf16_f32 v54, v48, v49')
    g('v_cvt_pk_bf16_f32 v55, v50, v51')
    g(f'ds_write_b64 v56, v[54:55] offset:{L_PB}')
    g('s_waitcnt lgkmcnt(0)')
    g.label('L_a_b6')
    for nn in range(4):
        g(f'v_mov_b32 v{17+4*nn}, {sTAG}')
        g(f'v_mov_b32 v{19+4*nn}, {sTAG}')
    g('s_barrier')
    for b in range(4):
        g(f'ds_read_b64 v[{48+2*b}:{49+2*b}], v57 offset:{L_PB+512*b}')
    PD = 208
    g('s_waitcnt lgkmcnt(0)')
    g.stamp(10)
    g(f's_cmp_eq_u32 {sWAVE}, 7')
    g('s_cbranch_scc0 L_a_pv')
    g('v_mfma_f32_16x16x32_bf16 v[92:95], v[88:91], v[48:51], 0')
    g('v_mfma_f32_16x16x32_bf16 v[92:95], v[88:91], v[52:55], v[92:95]')
    g.label('L_a_pv')
    for nn in range(4):
        for s2 in range(2):
            c = '0' if s2 == 0 else f'v[{PD+4*nn}:{PD+3+4*nn}]'
            a = FT + nn * 8 + s2 * 4
            g(f'v_mfma_f32_16x16x32_bf16 v[{PD+4*nn}:{PD+3+4*nn}], v[{a}:{a+3}], v[{48+4*s2}:{51+4*s2}], {c}')
    g(f's_cmp_eq_u32 {sWAVE}, 7')
    g('s_cbranch_scc0 L_a_pv2')
    g('v_mov_b32 v86, v92')
    g.set_exec(0xffff)
    mode_store(g, [f'global_store_dwordx4 v249, v[84:87], {WS}'], sMODE)
    g('s_mov_b64 exec, -1')
    g.label('L_a_pv2')
    g.nop(2)
    for nn in range(4):
        g(f'v_cvt_pk_bf16_f32 v{16+4*nn}, v{PD+4*nn}, v{PD+1+4*nn}')
        g(f'v_cvt_pk_bf16_f32 v{18+4*nn}, v{PD+2+4*nn}, v{PD+3+4*nn}')
    g.stamp(11)
    mode_store(g, [f'global_store_dwordx4 v58, v[{16+4*nn}:{19+4*nn}], {WS} offset:{1024*nn}' for nn in range(4)], sMODE)
    g.stamp(5)
    if stop_after == 3:
        g('s_branch L_fin')

    g(f's_cmp_ge_u32 {sWAVE}, 4')
    g('s_cbranch_scc0 L_a_s4')
    MR = 96
    OR_ = 128

    def mll_loads(_):
        g(f'global_load_dwordx4 v[{MR}:{MR+3}], v59, {WS} sc1')
        g(f'global_load_dwordx4 v[{MR+4}:{MR+7}], v59, {WS} offset:1024 sc1')
    g.poll('mll', mll_loads, [MR, MR + 4], 10, 11)
    g(f'v_mov_b32 v20, v{MR}')
    g(f'v_mov_b32 v24, v{MR+4}')
    g.nop(1)
    for ctl in ['quad_perm:[1,0,3,2]', 'quad_perm:[2,3,0,1]', 'row_half_mirror']:
        g(f'v_max_f32_dpp v20, v20, v20 {ctl} row_mask:0xf bank_mask:0xf')
        g(f'v_max_f32_dpp v24, v24, v24 {ctl} row_mask:0xf bank_mask:0xf')
        g.nop(1)
    g(f'v_sub_f32 v{MR}, v{MR}, v20')
    g(f'v_sub_f32 v{MR+4}, v{MR+4}, v24')
    g(f'v_exp_f32 v{MR}, v{MR}')
    g(f'v_exp_f32 v{MR+4}, v{MR+4}')
    g.nop(1)
    g(f'ds_write_b32 v60, v{MR}')
    g(f'ds_write_b32 v60, v{MR+4} offset:256')
    g(f'v_mul_f32 v22, v{MR}, v{MR+2}')
    g(f'v_mul_f32 v26, v{MR+4}, v{MR+6}')
    g('s_waitcnt lgkmcnt(0)')
    g(f'ds_read_b128 v[{MR+8}:{MR+11}], v61')
    g(f'ds_read_b128 v[{MR+12}:{MR+15}], v61 offset:16')
    for ctl in ['quad_perm:[1,0,3,2]', 'quad_perm:[2,3,0,1]', 'row_half_mirror']:
        g(f'v_add_f32_dpp v22, v22, v22 {ctl} row_mask:0xf bank_mask:0xf')
        g(f'v_add_f32_dpp v26, v26, v26 {ctl} row_mask:0xf bank_mask:0xf')
        g.nop(1)
    g('s_cmp_eq_u32 s58, 0')
    g('s_cbranch_scc0 L_a_nomlx')
    g(f's_cmp_eq_u32 {sWAVE}, 4')
    g('s_cbranch_scc0 L_a_nomlx')
    for rr in (21, 23, 25, 27):
        g(f'v_mov_b32 v{rr}, {sTAG}')
    g.set_exec(0x0101010101010101)
    g(f'global_store_dwordx4 v250, v[20:23], {WS} sc1')
    g(f'global_store_dwordx4 v250, v[24:27], {WS} offset:1024 sc1')
    g('s_mov_b64 exec, -1')
    g.label('L_a_nomlx')
    g(f'v_mov_b32 v49, {sTAG}')
    g(f'v_mov_b32 v51, {sTAG}')

    def opl_loads(_):
        for k in range(8):
            g(f'global_load_dwordx4 v[{OR_+4*k}:{OR_+4*k+3}], v{224+k}, {WS} sc1')
    g.poll('opl', opl_loads, [OR_ + 4 * k for k in range(8)], 10, 11)
    g.stamp(6)
    g('s_waitcnt lgkmcnt(0)')
    for k in range(8):
        wr = MR + 8 + (k & ~1)
        sel = k & 1
        for half in range(2):
            src = OR_ + 4 * k + 2 * half
            t = 10 + 2 * half
            g(f'v_lshlrev_b32 v{t}, 16, v{src}')
            g(f'v_and_b32 v{t+1}, 0xffff0000, v{src}')
            acc = 52 + 2 * half
            if k == 0:
                g(f'v_pk_mul_f32 v[{acc}:{acc+1}], v[{t}:{t+1}], v[{wr}:{wr+1}] op_sel_hi:[1,0]')
            else:
                g(f'v_pk_fma_f32 v[{acc}:{acc+1}], v[{t}:{t+1}], v[{wr}:{wr+1}], v[{acc}:{acc+1}] op_sel:[0,{sel},0] op_sel_hi:[1,{sel},1]')
    g('v_cvt_pk_bf16_f32 v48, v52, v53')
    g('v_cvt_pk_bf16_f32 v50, v54, v55')
    g(f'global_store_dwordx4 v244, v[48:51], {WS} sc1')
    g.stamp(7)
    g.label('L_a_s4')
    g('s_barrier')

    top = g.uniq('ox_top'); done = g.uniq('ox_done')
    g('s_mov_b32 s50, 0')
    g.label(top)
    g(f'global_load_dwordx4 v[16:19], v251, {WS} sc1')
    g(f'global_load_dwordx2 v[20:21], v245, {WS} sc1')
    g('s_add_u32 s50, s50, 1')
    g('s_waitcnt vmcnt(0)')
    g('v_min3_u32 v10, v17, v19, v21')
    g('v_max3_u32 v11, v17, v19, v21')
    g(f'v_cmp_eq_u32 vcc, {sTAG}, v10')
    g(f'v_cmp_eq_u32 s[46:47], {sTAG}, v11')
    g('s_and_b64 vcc, vcc, s[46:47]')
    g('s_cmp_eq_u64 vcc, exec')
    g(f's_cbranch_scc1 {done}')
    g(f's_cmp_lt_u32 s50, {POLL_LIMIT}')
    g(f's_cbranch_scc1 {top}')
    g.label(done)
    g.stamp(8)
    g('v_mov_b32 v22, v16')
    g('v_lshlrev_b32 v25, 16, v20')
    g('v_and_b32 v26, 0xffff0000, v20')
    g('v_max_f32_dpp v22, v22, v22 quad_perm:[1,0,3,2] row_mask:0xf bank_mask:0xf')
    g.nop(2)
    g('v_max_f32_dpp v22, v22, v22 quad_perm:[2,3,0,1] row_mask:0xf bank_mask:0xf')
    g.nop(2)
    g('v_max_f32_dpp v22, v22, v22 row_half_mirror row_mask:0xf bank_mask:0xf')
    g('v_sub_f32 v16, v16, v22')
    g('v_exp_f32 v16, v16')
    g.nop(1)
    g('ds_bpermute_b32 v24, v252, v16')
    g('v_mul_f32 v22, v16, v18')
    reduce8(g, 'v_add_f32', 22)
    g('v_rcp_f32 v22, v22')
    g('s_waitcnt lgkmcnt(0)')
    g('v_mul_f32 v24, v24, v22')
    g('v_mul_f32 v25, v25, v24')
    g('v_mul_f32 v26, v26, v24')
    g.nop(2)
    g('v_permlane16_swap_b32 v25, v26')
    g.nop(1)
    g('v_add_f32 v25, v25, v26')
    g.nop(2)
    g('v_add_f32_dpp v25, v25, v25 row_ror:4 row_mask:0xf bank_mask:0xf')
    g.nop(2)
    g('v_add_f32_dpp v25, v25, v25 row_ror:8 row_mask:0xf bank_mask:0xf')
    g('v_cvt_pk_bf16_f32 v25, v25, v25')
    g.nop(2)

    def ands(tt):
        a = 84 + 4 * (tt % 2)
        for v in range(4):
            g(f'v_and_b32_dpp v{a+v}, v25, v{240+v} quad_perm:[{tt},{tt},{tt},{tt}] row_mask:0xf bank_mask:0xf')
    ands(0)
    for tt in range(4):
        if tt < 3:
            ands(tt + 1)
        else:
            g.nop(2)
        a = 84 + 4 * (tt % 2)
        c = '0' if tt == 0 else 'v[92:95]'
        g(f'v_mfma_f32_16x16x32_bf16 v[92:95], v[{a}:{a+3}], v[{64+4*tt}:{67+4*tt}], {c}')
    g.set_exec(0xffffffff)
    g.nop(6)
    g(f'ds_write_b128 v247, v[92:95] offset:{L_RED}')
    g('s_mov_b64 exec, -1')
    g('s_waitcnt lgkmcnt(0)')
    g('s_barrier')
    g(f's_cmp_eq_u32 {sWAVE}, 0')
    g('s_cbranch_scc0 L_a_red')
    for w in range(8):
        g(f'ds_read_b64 v[{32+2*w}:{33+2*w}], v57 offset:{L_RED+512*w}')
    g(f'v_mov_b32 v21, {sTAG}')
    g(f'v_mov_b32 v23, {sTAG}')
    g('s_waitcnt lgkmcnt(0)')
    g('v_pk_add_f32 v[32:33], v[32:33], v[34:35]')
    g('v_pk_add_f32 v[36:37], v[36:37], v[38:39]')
    g('v_pk_add_f32 v[40:41], v[40:41], v[42:43]')
    g('v_pk_add_f32 v[44:45], v[44:45], v[46:47]')
    g('v_pk_add_f32 v[32:33], v[32:33], v[36:37]')
    g('v_pk_add_f32 v[40:41], v[40:41], v[44:45]')
    g('v_add_f32 v20, v32, v40')
    g('v_add_f32 v22, v33, v41')
    mode_store(g, [f'global_store_dwordx4 v253, v[20:23], {WS}'], sMODE)
    g.stamp(9)
    g.label('L_a_red')
    if stop_after == 4:
        g('s_branch L_fin')
    g(f's_cmp_eq_u32 {sWAVE}, 7')
    g('s_cbranch_scc0 L_fin')
    g(f's_cmp_lt_u32 {sR}, 10')
    g('s_cbranch_scc0 L_fin')
    g(f's_mul_i32 s55, {sXCD}, 10')
    g(f's_add_u32 s55, s55, {sR}')
    g('v_and_b32 v7, 3, v0')
    g('v_lshrrev_b32 v6, 5, v0')
    g('v_lshl_add_u32 v8, v7, 1, v6')
    g('s_lshl_b32 s48, s55, 3')
    g('v_add_u32 v8, s48, v8')
    g('v_lshlrev_b32 v8, 1, v8')
    g(f'global_load_ushort v30, v8, {S_X}')
    g('v_bfe_u32 v9, v0, 2, 3')
    g('v_mul_u32_u24 v9, 5120, v9')
    g('v_lshl_add_u32 v9, v7, 4, v9')
    g('s_lshl_b32 s48, s55, 6')
    g(f's_add_u32 s48, s48, {OUTP}')
    g('v_add_u32 v9, s48, v9')
    g('s_lshl_b32 s48, s55, 6')
    g(f's_add_u32 s48, s48, {O2P}')
    g('v_lshrrev_b32 v12, 2, v0')
    g('v_mul_u32_u24 v12, 5120, v12')
    g('v_lshl_add_u32 v12, v7, 4, v12')
    g('v_add_u32 v12, s48, v12')
    g(f'v_add_u32 v13, {16*5120}, v12')
    g(f'v_add_u32 v14, {32*5120}, v12')
    g(f'v_add_u32 v15, {48*5120}, v12')
    g('v_mov_b32 v44, 0')
    g(f'v_mov_b32 v45, {sTAG}')
    g('v_mov_b32 v46, 0')
    g(f'v_mov_b32 v47, {sTAG}')

    def h_loads(_):
        g(f'global_load_dwordx4 v[16:19], v9, {WS} sc1')
    g.poll('hf', h_loads, [16], 10, 11)
    g('v_cmp_le_u32 vcc, 32, v0')
    g.nop(1)
    g('v_cndmask_b32 v16, v16, v18, vcc')
    g('v_mov_b32 v17, v16')
    g.nop(2)
    g('v_permlane16_swap_b32 v17, v16')
    g.nop(1)
    g('v_add_f32 v16, v16, v17')
    g.nop(2)
    g('v_add_f32_dpp v16, v16, v16 row_ror:4 row_mask:0xf bank_mask:0xf')
    g.nop(2)
    g('v_add_f32_dpp v16, v16, v16 row_ror:8 row_mask:0xf bank_mask:0xf')
    rnd_bf16(g, 16)
    g('v_lshlrev_b32 v30, 16, v30')
    g('v_add_f32 v30, v30, v16')
    rnd_bf16(g, 30)

    def o2_loads(_):
        for i in range(3):
            g(f'global_load_dwordx4 v[{32+4*i}:{35+4*i}], v{12+i}, {WS} sc1')
        g.set_exec(0xffffff)
        g(f'global_load_dwordx4 v[44:47], v15, {WS} sc1')
        g('s_mov_b64 exec, -1')
    g.poll('o2', o2_loads, [32, 36, 40, 44], 10, 11)
    g.stamp(9)
    g('v_add_f32 v16, v32, v36')
    g('v_add_f32 v17, v34, v38')
    g('v_add_f32 v18, v40, v44')
    g('v_add_f32 v19, v42, v46')
    g('v_pk_add_f32 v[16:17], v[16:17], v[18:19]')
    g.nop(2)
    g('v_permlane32_swap_b32 v16, v17')
    g.nop(1)
    g('v_add_f32 v16, v16, v17')
    g('v_mov_b32 v17, v16')
    g.nop(2)
    g('v_permlane16_swap_b32 v17, v16')
    g.nop(1)
    g('v_add_f32 v16, v16, v17')
    g.nop(2)
    g('v_add_f32_dpp v16, v16, v16 row_ror:4 row_mask:0xf bank_mask:0xf')
    g.nop(2)
    g('v_add_f32_dpp v16, v16, v16 row_ror:8 row_mask:0xf bank_mask:0xf')
    rnd_bf16(g, 16)
    g('v_add_f32 v16, v16, v30')
    g('v_cvt_pk_bf16_f32 v16, v16, v16')
    g('s_mov_b32 exec_lo, 0xf')
    g('s_mov_b32 exec_hi, 0xf')
    g(f'global_store_short v8, v16, {S_OUT}')
    g('s_mov_b64 exec, -1')
    g('s_cmp_eq_u32 s55, 0')
    g('s_cbranch_scc0 L_fin')
    g('s_mov_b64 exec, 1')
    g(f'v_mov_b32 v2, {sTAG}')
    g(f'global_store_dword v1, v2, {WS} sc1')
    g('s_mov_b64 exec, -1')
    g('s_branch L_fin')

    g.label('L_pathB')
    g(f's_sub_u32 s54, {sR}, 16')
    g('s_lshr_b32 s48, s54, 2')
    g(f's_lshl_b32 s49, {sXCD}, 2')
    g('s_add_u32 s55, s48, s49')
    g('s_lshl_b32 s48, s55, 11')
    g('s_and_b32 s49, s54, 3')
    g('s_lshl_b32 s49, s49, 9')
    g('s_add_u32 s48, s48, s49')
    g(f's_lshl_b32 s49, {sWAVE}, 6')
    g('s_add_u32 s48, s48, s49')
    g(f's_add_u32 s48, s48, {QA}')
    g('v_lshlrev_b32 v9, 4, v6')
    g('v_add_u32 v104, s48, v9')
    g(f'v_mov_b32 v101, {sTAG}')
    g(f'v_mov_b32 v103, {sTAG}')
    if 'wuk_late' in opts:
        g(f's_cmp_eq_u32 {sWAVE}, 1')
        g('s_cbranch_scc1 L_b1')
        wuk_loads()
        g(f's_cmp_eq_u32 {sWAVE}, 0')
        g('s_cbranch_scc0 L_b1')
    else:
        g(f's_cmp_eq_u32 {sWAVE}, 0')
        g('s_cbranch_scc0 L_b1')
        wuk_loads()
    g('s_lshl_b32 s48, s55, 13')
    g(f's_add_u32 s49, s48, {Q1L}')
    g.addr('s[40:41]', S_WS, 's49')
    g(f's_add_u32 s49, s48, {Q1G}')
    g.addr('s[42:43]', S_WS, 's49')
    g('v_add_u32 v4, 4096, v3')
    g('v_lshlrev_b32 v14, 2, v0')

    def q1_loads(base):
        for k in range(8):
            vo = 'v3' if k < 4 else 'v4'
            g(f'global_load_dwordx4 v[{32+4*k}:{35+4*k}], {vo}, {base} offset:{1024*(k%4)} sc1')
    g.poll('q1', q1_loads, [32 + 4 * k for k in range(8)], 10, 11, alt=('s[40:41]', 's[42:43]'))
    g.stamp(3)
    g('v_add_f32 v12, v32, v36')
    g('v_add_f32 v13, v34, v38')
    g('v_add_f32 v10, v40, v44')
    g('v_add_f32 v11, v42, v46')
    g('v_add_f32 v32, v48, v52')
    g('v_add_f32 v33, v50, v54')
    g('v_add_f32 v34, v56, v60')
    g('v_add_f32 v35, v58, v62')
    g('v_pk_add_f32 v[12:13], v[12:13], v[10:11]')
    g('v_pk_add_f32 v[32:33], v[32:33], v[34:35]')
    g('v_pk_add_f32 v[12:13], v[12:13], v[32:33]')
    g('v_cvt_pk_bf16_f32 v12, v12, v13')
    g(f'ds_write_b32 v14, v12 offset:{L_QB}')
    g('s_waitcnt lgkmcnt(0)')
    g.label('L_b1')
    g('s_waitcnt vmcnt(0)')
    g('s_barrier')
    for t in range(4):
        g(f'ds_read_b128 v[{80+4*t}:{83+4*t}], v9 offset:{L_QB+64*t}')
    for t in range(4):
        g(f's_waitcnt lgkmcnt({3-t})')
        c = '0' if t == 0 else 'v[96:99]'
        g(f'v_mfma_f32_16x16x32_bf16 v[96:99], v[{64+4*t}:{67+4*t}], v[{80+4*t}:{83+4*t}], {c}')
    g('s_mov_b32 exec_lo, 0x00010001')
    g('s_mov_b32 exec_hi, 0x00010001')
    g.nop(6)
    g('v_cvt_pk_bf16_f32 v100, v96, v97')
    g('v_cvt_pk_bf16_f32 v102, v98, v99')
    g(f'global_store_dwordx4 v104, v[100:103], {WS} sc1')
    g('s_mov_b64 exec, -1')
    g.stamp(4)
    if stop_after in (2, 3, 4):
        g('s_branch L_fin')
    g('s_barrier')
    g.stamp(5)
    g('v_lshrrev_b32 v8, 3, v7')
    g('v_and_b32 v9, 7, v0')
    g('v_lshl_add_u32 v10, v8, 2, v6')
    g('s_cmp_lt_u32 s54, 5')
    g('s_cbranch_scc1 L_b_wo')
    g('s_sub_u32 s48, s54, 5')
    g('s_lshr_b32 s49, s48, 1')
    g('s_lshl_b32 s49, s49, 3')
    g(f's_add_u32 s49, s49, {sXCD}')
    g('s_cmp_lt_u32 s49, 27')
    g('s_cbranch_scc0 L_fin')
    g('s_lshl_b32 s49, s49, 1')
    g('s_and_b32 s48, s48, 1')
    g('s_add_u32 s58, s49, s48')
    g('s_branch L_b_mlpld')
    g.label('L_b_wo')
    g(f's_lshl_b32 s48, {sXCD}, 3')
    g(f's_add_u32 s48, s48, {sWAVE}')
    g(f's_mul_i32 s48, s48, {64*1280}')
    g('s_lshl_b32 s49, s54, 8')
    g('s_add_u32 s48, s48, s49')
    g.addr('s[40:41]', S_WO, 's48')
    g(f'v_mul_u32_u24 v11, {16*1280}, v6')
    g('v_lshl_add_u32 v11, v7, 4, v11')
    for t in range(16):
        if t % 4 == 0 and t > 0:
            g('v_add_u32 v11, 5120, v11')
        g(f'global_load_dwordx4 v[{32+4*t}:{35+4*t}], v11, s[40:41] offset:{1280*(t%4)} nt')
    gen_sel(g, 192, 16, 17)
    g(f's_lshr_b32 s48, {sWAVE}, 1')
    g(f's_lshl_b32 s49, {sXCD}, 2')
    g('s_add_u32 s48, s48, s49')
    g('s_lshl_b32 s48, s48, 12')
    g(f's_and_b32 s49, {sWAVE}, 1')
    g('s_lshl_b32 s49, s49, 9')
    g('s_add_u32 s48, s48, s49')
    g(f's_add_u32 s48, s48, {C4}')
    g('v_and_b32 v11, 31, v0')
    g('v_lshlrev_b32 v11, 4, v11')
    g('v_lshrrev_b32 v12, 5, v0')
    g('v_lshl_add_u32 v11, v12, 10, v11')
    g('v_add_u32 v11, s48, v11')
    g('v_and_b32 v24, 31, v0')
    g('v_lshlrev_b32 v24, 2, v24')
    g('v_lshl_add_u32 v24, v12, 1, v24')
    g(f's_lshl_b32 s48, {sWAVE}, 7')
    g('v_add_u32 v24, s48, v24')
    g('v_lshlrev_b32 v25, 5, v6')
    g('v_add_u32 v25, s48, v25')
    g('v_lshlrev_b32 v26, 5, v7')
    g('v_lshl_add_u32 v26, v6, 4, v26')
    g(f's_lshl_b32 s48, {sWAVE}, 9')
    g('v_add_u32 v26, s48, v26')
    g('v_lshlrev_b32 v28, 3, v0')
    g(f's_mul_i32 s48, {sXCD}, 5120')
    g('s_lshl_b32 s49, s54, 10')
    g('s_add_u32 s48, s48, s49')
    g(f's_add_u32 s48, s48, {OUTP}')
    g('v_add_u32 v29, s48, v3')
    g(f'v_mov_b32 v145, {sTAG}')
    g(f'v_mov_b32 v147, {sTAG}')

    def gemv(n, src, wbase, d):
        def pm(t):
            a = 212 + 4 * (t % 2)
            for v in range(4):
                g(f'v_perm_b32 v{a+v}, v{src+t//2}, v{src+t//2}, v{192+2*v+(t&1)}')
        pm(0)
        for t in range(n):
            if t + 1 < n:
                pm(t + 1)
            else:
                g.nop(2)
            a = 212 + 4 * (t % 2)
            c = '0' if t == 0 else f'v[{d}:{d+3}]'
            g(f'v_mfma_f32_16x16x32_bf16 v[{d}:{d+3}], v[{a}:{a+3}], v[{wbase+4*t}:{wbase+4*t+3}], {c}')

    def c4_loads(base):
        g(f'global_load_dwordx4 v[16:19], v11, {WS} sc1')
        g(f'global_load_dwordx4 v[20:23], v11, {WS} offset:2048 sc1')
    g.poll('c4', c4_loads, [16, 20], 13, 14)
    g.stamp(6)
    g('v_add_f32 v16, v16, v20')
    g('v_add_f32 v18, v18, v22')
    g.nop(2)
    g('v_permlane32_swap_b32 v16, v18')
    g.nop(1)
    g('v_add_f32 v16, v16, v18')
    g('v_cvt_pk_bf16_f32 v16, v16, v16')
    g(f'ds_write_b16 v24, v16 offset:{L_CB}')
    g('s_waitcnt lgkmcnt(0)')
    g(f'ds_read_b128 v[16:19], v25 offset:{L_CB}')
    g(f'ds_read_b128 v[20:23], v25 offset:{L_CB+16}')
    g('s_waitcnt lgkmcnt(0)')
    gemv(16, 16, 32, 200)
    g.set_exec(0xffffffff)
    g.nop(6)
    g(f'ds_write_b128 v26, v[200:203] offset:{L_RED}')
    g('s_mov_b64 exec, -1')
    g('s_waitcnt lgkmcnt(0)')
    g('s_barrier')
    g(f's_cmp_eq_u32 {sWAVE}, 0')
    g('s_cbranch_scc0 L_fin')
    for w in range(8):
        g(f'ds_read_b64 v[{160+2*w}:{161+2*w}], v28 offset:{L_RED+512*w}')
    g('s_waitcnt lgkmcnt(0)')
    g('v_pk_add_f32 v[160:161], v[160:161], v[162:163]')
    g('v_pk_add_f32 v[164:165], v[164:165], v[166:167]')
    g('v_pk_add_f32 v[168:169], v[168:169], v[170:171]')
    g('v_pk_add_f32 v[172:173], v[172:173], v[174:175]')
    g('v_pk_add_f32 v[160:161], v[160:161], v[164:165]')
    g('v_pk_add_f32 v[168:169], v[168:169], v[172:173]')
    g('v_add_f32 v144, v160, v168')
    g('v_add_f32 v146, v161, v169')
    g(f'global_store_dwordx4 v29, v[144:147], {WS} sc1')
    g.stamp(7)
    g('s_branch L_fin')

    g.label('L_b_mlpld')
    if stop_after == 5:
        g('s_branch L_fin')
    gen_sel(g, 192, 16, 17)
    g('v_and_b32 v26, 1, v6')
    g('v_lshlrev_b32 v26, 2, v26')
    g('v_lshl_add_u32 v26, v9, 3, v26')
    g('v_lshrrev_b32 v27, 1, v6')
    g('v_add_u32 v26, v26, v27')
    g('v_lshlrev_b32 v26, 2, v26')
    g(f's_lshl_b32 s48, {sWAVE}, 8')
    g('v_add_u32 v26, s48, v26')
    g('v_cmp_le_u32 vcc, 4, v9')
    g('v_mov_b32 v12, s22')
    g('v_mov_b32 v13, s24')
    g('v_mov_b32 v14, s23')
    g('v_mov_b32 v15, s25')
    g('v_cndmask_b32 v12, v12, v13, vcc')
    g('v_cndmask_b32 v13, v14, v15, vcc')
    g('v_and_b32 v14, 3, v0')
    g('v_lshlrev_b32 v14, 4, v14')
    g('s_lshl_b32 s48, s58, 6')
    g(f's_mul_i32 s49, {sWAVE}, {80*3456}')
    g('s_add_u32 s48, s48, s49')
    g('v_add_u32 v14, s48, v14')
    g(f'v_mul_u32_u24 v15, {8*3456}, v10')
    g('v_add_u32 v15, v15, v14')
    g(f'v_mul_u32_u24 v16, {2*3456}, v10')
    g('v_add_u32 v16, v16, v14')
    g(f'v_add_u32 v16, {64*3456}, v16')
    for t in range(10):
        if t == 0:
            src = 15
        elif t == 8:
            src = 16
        g(f'v_add_co_u32 v18, vcc, v12, v{src}')
        g.nop(2)
        g('v_addc_co_u32 v19, vcc, 0, v13, vcc')
        g(f'global_load_dwordx4 v[{64+4*t}:{67+4*t}], v[18:19], off nt')
        g(f'v_add_u32 v{src}, 3456, v{src}')
    g('s_lshl_b32 s48, s58, 5')
    g(f's_mul_i32 s48, s48, 1280')
    g(f's_lshl_b32 s49, {sWAVE}, 7')
    g('s_add_u32 s48, s48, s49')
    g.addr('s[40:41]', S_WD, 's48')
    g(f'v_mul_u32_u24 v11, {4*1280}, v10')
    g('v_lshl_add_u32 v11, v9, 4, v11')
    for t in range(4):
        g(f'global_load_dwordx4 v[{104+4*t}:{107+4*t}], v11, s[40:41] offset:{1280*t} nt')
    g(f's_cmp_lt_u32 {sWAVE}, 2')
    g('s_cbranch_scc0 L_b_nod2')
    g('s_add_u32 s40, s40, 1024')
    g('s_addc_u32 s41, s41, 0')
    for t in range(4):
        g(f'global_load_dwordx4 v[{120+4*t}:{123+4*t}], v11, s[40:41] offset:{1280*t} nt')
    g.label('L_b_nod2')
    g(f's_lshl_b32 s48, {sWAVE}, 8')
    g('s_min_u32 s48, s48, 1024')
    g('v_lshlrev_b32 v17, 2, v0')
    g('v_add_u32 v17, s48, v17')
    g(f'global_load_dword v140, v17, {S_X}')
    g(f'global_load_ushort v141, v1, {S_X}')
    g('s_waitcnt vmcnt(0)')
    g('v_lshlrev_b32 v141, 16, v141')
    g.nop(1)
    g('v_readfirstlane_b32 s53, v141')
    gen_mask(g, 220, 16, 17)
    for v in range(4):
        g(f'v_and_b32 v{220+v}, 0x3f803f80, v{220+v}')
    g.nop(2)
    for t in range(10):
        c = '0' if t == 0 else 'v[200:203]'
        g(f'v_mfma_f32_16x16x32_bf16 v[200:203], v[220:223], v[{64+4*t}:{67+4*t}], {c}')
    g.nop(8)
    class_combine(g, 200)
    g.set_exec(0x00ff00ff00ff00ff)
    g('ds_write2_b32 v26, v200, v202 offset0:0 offset1:2')
    g('s_mov_b64 exec, -1')
    g('s_waitcnt lgkmcnt(0)')
    g('s_barrier')
    g('v_lshlrev_b32 v29, 2, v0')
    for w in range(8):
        g(f'ds_read_b32 v{160+w}, v29 offset:{256*w}')
    g('s_waitcnt lgkmcnt(0)')
    g('v_add_f32 v160, v160, v161')
    g('v_add_f32 v162, v162, v163')
    g('v_add_f32 v164, v164, v165')
    g('v_add_f32 v166, v166, v167')
    g('v_add_f32 v160, v160, v162')
    g('v_add_f32 v164, v164, v166')
    g('v_add_f32 v142, v160, v164')
    g('s_barrier')
    g(f's_mul_i32 s48, {sWAVE}, 160')
    g('v_lshlrev_b32 v27, 4, v10')
    g('v_add_u32 v27, s48, v27')
    g('v_lshlrev_b32 v28, 2, v10')
    g('v_add_u32 v28, s48, v28')
    g('v_lshlrev_b32 v30, 3, v10')
    g('v_and_b32 v31, 31, v0')
    g('v_lshlrev_b32 v31, 1, v31')
    g('v_lshlrev_b32 v14, 6, v9')
    g('v_and_b32 v15, 1, v6')
    g('v_lshlrev_b32 v15, 5, v15')
    g('v_add_u32 v14, v14, v15')
    g('v_lshrrev_b32 v15, 1, v6')
    g('v_lshl_add_u32 v14, v15, 3, v14')
    g(f's_mul_i32 s48, s58, 5120')
    g(f's_lshl_b32 s49, {sWAVE}, 9')
    g('s_add_u32 s48, s48, s49')
    g(f's_add_u32 s48, s48, {O2P}')
    g('v_add_u32 v14, s48, v14')
    g(f'v_add_u32 v15, {8*512}, v14')
    g(f'v_mov_b32 v21, {sTAG}')
    g(f'v_mov_b32 v23, {sTAG}')
    g(f's_lshl_b32 s48, {sWAVE}, 8')
    g('v_add_u32 v143, s48, v29')
    g(f's_lshl_b32 s48, {sWAVE}, 3')
    g('v_mov_b32 v144, s48')
    g(f's_cmp_lt_u32 {sWAVE}, 5')
    g('s_cbranch_scc0 L_m_b1')
    g(f's_lshl_b32 s48, {sWAVE}, 10')
    g(f's_add_u32 s48, s48, {OUTP}')
    g('v_add_u32 v152, s48, v3')
    for k in range(1, 8):
        g(f'v_add_u32 v{152+k}, {5120*k}, v152')
    g('v_lshlrev_b32 v148, 16, v140')
    g('v_and_b32 v149, 0xffff0000, v140')

    def out_loads(_):
        for k in range(8):
            g(f'global_load_dwordx4 v[{160+4*k}:{163+4*k}], v{152+k}, {WS} sc1')
    g.poll('outp', out_loads, [160 + 4 * k for k in range(8)], 12, 13)
    g.stamp(8)
    g('v_add_f32 v16, v160, v164')
    g('v_add_f32 v17, v162, v166')
    g('v_add_f32 v18, v168, v172')
    g('v_add_f32 v19, v170, v174')
    g('v_add_f32 v160, v176, v180')
    g('v_add_f32 v161, v178, v182')
    g('v_add_f32 v162, v184, v188')
    g('v_add_f32 v163, v186, v190')
    g('v_pk_add_f32 v[16:17], v[16:17], v[18:19]')
    g('v_pk_add_f32 v[160:161], v[160:161], v[162:163]')
    g('v_pk_add_f32 v[16:17], v[16:17], v[160:161]')
    g('v_cvt_pk_bf16_f32 v16, v16, v17')
    g('v_lshlrev_b32 v18, 16, v16')
    g('v_and_b32 v19, 0xffff0000, v16')
    g('v_pk_add_f32 v[18:19], v[18:19], v[148:149]')
    g('v_cvt_pk_bf16_f32 v16, v18, v19')
    g(f'ds_write_b32 v143, v16 offset:{L_HB}')
    g('v_lshlrev_b32 v18, 16, v16')
    g('v_and_b32 v19, 0xffff0000, v16')
    g('v_subrev_f32 v18, s53, v18')
    g('v_subrev_f32 v19, s53, v19')
    g('v_add_f32 v160, v18, v19')
    g('v_mul_f32 v161, v18, v18')
    g('v_fmac_f32 v161, v19, v19')
    g.wave_reduce([160, 161], [162, 163])
    g('s_mov_b64 exec, 1')
    g(f'ds_write_b64 v144, v[160:161] offset:{L_ST}')
    g('s_mov_b64 exec, -1')
    g('s_waitcnt lgkmcnt(0)')
    g.label('L_m_b1')
    g('s_barrier')
    g.stamp(9)
    g(f'ds_read_b128 v[176:179], v27 offset:{L_HB}')
    g(f'ds_read_b32 v180, v28 offset:{L_HB+128}')
    g(f's_cmp_eq_u32 {sWAVE}, 7')
    g('s_cbranch_scc0 L_m_ns')
    g(f'ds_read_b128 v[160:163], v1 offset:{L_ST}')
    g(f'ds_read_b128 v[164:167], v1 offset:{L_ST+16}')
    g(f'ds_read_b64 v[168:169], v1 offset:{L_ST+32}')
    g('s_waitcnt lgkmcnt(0)')
    g('v_pk_add_f32 v[160:161], v[160:161], v[162:163]')
    g('v_pk_add_f32 v[164:165], v[164:165], v[166:167]')
    g('v_pk_add_f32 v[160:161], v[160:161], v[168:169]')
    g('v_pk_add_f32 v[160:161], v[160:161], v[164:165]')
    ln_scalars(g, 160, 161, 's53', 170, 171, 172)
    g('v_mul_f32 v170, v170, v142')
    g.label('L_m_ns')
    g('s_waitcnt lgkmcnt(0)')
    gemv(10, 176, 64, 200)
    g.nop(8)
    class_combine(g, 200)
    g.set_exec(0x00ff00ff00ff00ff)
    g('ds_write2_b32 v26, v200, v202 offset0:0 offset1:2')
    g('s_mov_b64 exec, -1')
    g('s_waitcnt lgkmcnt(0)')
    g('s_barrier')
    g.stamp(10)
    g(f's_cmp_eq_u32 {sWAVE}, 7')
    g('s_cbranch_scc0 L_m_b3')
    for w in range(8):
        g(f'ds_read_b32 v{160+w}, v29 offset:{256*w}')
    g('s_waitcnt lgkmcnt(0)')
    g('v_pk_add_f32 v[160:161], v[160:161], v[162:163]')
    g('v_pk_add_f32 v[164:165], v[164:165], v[166:167]')
    g('v_pk_add_f32 v[160:161], v[160:161], v[164:165]')
    g('v_add_f32 v16, v160, v161')
    g('v_sub_f32 v16, v16, v170')
    g('v_mul_f32 v16, v16, v171')
    rnd_bf16(g, 16)
    g('v_mov_b32 v17, v16')
    g.nop(2)
    g('v_permlane32_swap_b32 v16, v17')
    g.nop(1)
    g('v_max_f32 v16, 0, v16')
    g('v_mul_f32 v16, v16, v17')
    g('v_cvt_pk_bf16_f32 v16, v16, v16')
    g(f'ds_write_b16 v31, v16 offset:{L_CB}')
    g('s_waitcnt lgkmcnt(0)')
    g.label('L_m_b3')
    g('s_barrier')
    g(f'ds_read_b64 v[16:17], v30 offset:{L_CB}')
    g('s_waitcnt lgkmcnt(0)')
    g.stamp(11)

    def down(base, vo):
        gemv(4, 16, base, 204)
        g.nop(8)
        class_combine(g, 204)
        g('v_mov_b32 v20, v204')
        g('v_mov_b32 v22, v206')
        g.set_exec(0x00ff00ff00ff00ff)
        g(f'global_store_dwordx2 v{vo}, v[20:21], {WS} sc1')
        g(f'global_store_dwordx2 v{vo}, v[22:23], {WS} offset:16 sc1')
        g('s_mov_b64 exec, -1')
    down(104, 14)
    g(f's_cmp_lt_u32 {sWAVE}, 2')
    g('s_cbranch_scc0 L_m_done')
    down(120, 15)
    g.label('L_m_done')

    g.label('L_fin')
    g.stamp(15)
    if g.stamps:
        g('s_memtime s[92:93]')
    g.stamp_flush()
    g.label('L_end')
    g('s_endpgm')
    body = g.text()

    hdr = open('cdna_kernels/' + KN[:-7] + '.s.ref').read().split('\n')
    head = []
    for line in hdr:
        if line.startswith('; @launch'):
            head.append(f'; @launch grid=(256,1,1) block=(512,1,1) lds={LDS_BYTES}')
        elif line.startswith(';'):
            head.append(line)
        else:
            break
    out = '\n'.join(head) + '\n'
    out += '.amdgcn_target "amdgcn-amd-amdhsa--gfx950"\n.text\n'
    out += f'.globl {KN}\n.p2align 8\n.type {KN},@function\n{KN}:\n'
    out += body
    out += f'''.section .rodata,"a"
.p2align 6
.amdhsa_kernel {KN}
  .amdhsa_next_free_vgpr 256
  .amdhsa_next_free_sgpr 102
  .amdhsa_accum_offset 256
  .amdhsa_group_segment_fixed_size 0
  .amdhsa_kernarg_size 104
  .amdhsa_user_sgpr_count 2
  .amdhsa_user_sgpr_kernarg_segment_ptr 1
  .amdhsa_system_sgpr_workgroup_id_x 1
.end_amdhsa_kernel
'''
    return out


if __name__ == '__main__':
    import argparse
    ap = argparse.ArgumentParser()
    ap.add_argument('-o', default='k.s')
    ap.add_argument('--stamps', action='store_true')
    ap.add_argument('--stop', type=int, default=None)
    ap.add_argument('--opts', default='')
    a = ap.parse_args()
    open(a.o, 'w').write(build(a.stamps, a.stop, tuple(a.opts.split(','))))
```

```python
import sys, struct

KN = 'sequential_preLN__compressed_kv_cla__glu_gated_reglu__decode_kernel'

EPOCH = 0
XID = 0x1000
Q1L = 0x10000
Q1G = 0x50000
QA = 0x90000
MLL = 0xA0000
C4 = 0xA8000
MLX = 0xC8000
OUTP = 0xE8000
O2P = 0x100000
OX = 0x180000
OPL = 0x200000
STAMPS = 0x800000

L_XN = 0
L_QB = 256
L_MB = 512
L_LB = 768
L_PB = 1024
L_RED = 3072
L_CB = 7168
L_HB = 8192
L_ST = 9472
L_MODE = 9728
L_TAG = 9732
L_QL = 10240
L_TILE = 26624
LDS_BYTES = 92160

S_X, S_CKV, S_WQ, S_WUK, S_WUV, S_WO, S_WG, S_WU, S_WD, S_OUT, S_DBG, S_WS = (
    's[8:9]', 's[10:11]', 's[12:13]', 's[14:15]', 's[16:17]', 's[18:19]', 's[22:23]', 's[24:25]', 's[26:27]',
    's[28:29]', 's[30:31]', 's[32:33]')
sXCD, sR, sWAVE, sH, sJ, sTAG = 's34', 's35', 's36', 's37', 's38', 's39'
POLL_LIMIT = 1 << 17


def f2u(x):
    return struct.unpack('<I', struct.pack('<f', x))[0]


class Gen:
    def __init__(s, stamps=False, stop_after=None):
        s.L = []
        s.n = 0
        s.stamps = stamps
        s.stop_after = stop_after
        s.nstamp = 0

    def __call__(s, txt):
        for line in txt.strip('\n').split('\n'):
            line = line.strip()
            if line:
                s.L.append('    ' + line)

    def label(s, name):
        s.L.append(name + ':')

    def uniq(s, base):
        s.n += 1
        return f'{base}_{s.n}'

    def nop(s, n):
        while n > 0:
            k = min(n, 16)
            s(f's_nop {k-1}')
            n -= k

    def stamp(s, idx):
        if s.stamps:
            s(f's_memrealtime s[{64+2*idx}:{65+2*idx}]')

    def stamp_flush(s, nst=16):
        if not s.stamps:
            return
        s('s_waitcnt lgkmcnt(0)')
        s('s_mov_b64 exec, 1')
        s(f's_lshl_b32 s48, s2, 3')
        s(f's_add_u32 s48, s48, {sWAVE}')
        s(f's_lshl_b32 s48, s48, 7')
        s(f's_add_u32 s48, s48, {STAMPS}')
        s('v_mov_b32 v1, s48')
        for i in range(nst):
            s(f'v_mov_b32 v2, s{64+2*i}')
            s(f'v_mov_b32 v3, s{65+2*i}')
            s(f'global_store_dwordx2 v1, v[2:3], {S_WS} offset:{8*i}')
            s('s_nop 1')
        s('s_waitcnt vmcnt(0)')

    def addr(s, dst, src, off):
        d = int(dst[2:].split(':')[0]); sr = int(src[2:].split(':')[0])
        s(f's_add_u32 s{d}, s{sr}, {off}')
        s(f's_addc_u32 s{d+1}, s{sr+1}, 0')

    def set_exec(s, mask):
        if mask == (1 << 64) - 1:
            s('s_mov_b64 exec, -1')
        else:
            s(f's_mov_b32 exec_lo, {mask & 0xffffffff:#x}')
            s(f's_mov_b32 exec_hi, {mask >> 32:#x}')

    def wave_reduce(s, regs, tmps, op='add'):
        ins = {'add': 'v_add_f32', 'max': 'v_max_f32'}[op]
        n = len(regs)
        pad = max(0, 2 - (n - 1))
        s.nop(2)
        for ctl in ['quad_perm:[1,0,3,2]', 'quad_perm:[2,3,0,1]', 'row_half_mirror', 'row_mirror']:
            for r in regs:
                s(f'{ins}_dpp v{r}, v{r}, v{r} {ctl} row_mask:0xf bank_mask:0xf')
            s.nop(pad)
        s.row_reduce(regs, tmps, op)

    def row_reduce(s, regs, tmps, op='add'):
        ins = {'add': 'v_add_f32', 'max': 'v_max_f32'}[op]
        n = len(regs)
        for sw in ['v_permlane16_swap_b32', 'v_permlane32_swap_b32']:
            for r, t in zip(regs, tmps):
                s(f'v_mov_b32 v{t}, v{r}')
            s.nop(max(0, 2 - (n - 1)))
            for r, t in zip(regs, tmps):
                s(f'{sw} v{t}, v{r}')
            s.nop(1 if n == 1 else 0)
            for r, t in zip(regs, tmps):
                s(f'{ins} v{r}, v{r}, v{t}')
            s.nop(0)

    def check_tags(s, regs, t0, t1, done_label):
        tags = []
        for r in regs:
            tags += [r + 1, r + 3]
        if len(tags) == 2:
            s(f'v_cmp_eq_u32 vcc, {sTAG}, v{tags[0]}')
            s(f'v_cmp_eq_u32 s[46:47], {sTAG}, v{tags[1]}')
        else:
            s(f'v_min3_u32 v{t0}, v{tags[0]}, v{tags[1]}, v{tags[2]}')
            s(f'v_max3_u32 v{t1}, v{tags[0]}, v{tags[1]}, v{tags[2]}')
            rest = tags[3:]
            while rest:
                if len(rest) >= 2:
                    s(f'v_min3_u32 v{t0}, v{t0}, v{rest[0]}, v{rest[1]}')
                    s(f'v_max3_u32 v{t1}, v{t1}, v{rest[0]}, v{rest[1]}')
                    rest = rest[2:]
                else:
                    s(f'v_min_u32 v{t0}, v{t0}, v{rest[0]}')
                    s(f'v_max_u32 v{t1}, v{t1}, v{rest[0]}')
                    rest = rest[1:]
            s(f'v_cmp_eq_u32 vcc, {sTAG}, v{t0}')
            s(f'v_cmp_eq_u32 s[46:47], {sTAG}, v{t1}')
        s('s_and_b64 vcc, vcc, s[46:47]')
        s('s_cmp_eq_u64 vcc, exec')
        s(f's_cbranch_scc1 {done_label}')

    def poll(s, name, emit_loads, regs, t0, t1, first_hook=None, alt=None):
        top = s.uniq(name + '_top'); done = s.uniq(name + '_done'); fail = s.uniq(name + '_fail')
        s(f's_mov_b32 s50, 0')
        if first_hook is not None:
            emit_loads(alt[0] if alt else None)
            first_hook()
            s('s_waitcnt vmcnt(0)')
            s.check_tags(regs, t0, t1, done)
        s.label(top)
        if alt:
            s('s_add_u32 s50, s50, 1')
            s('s_and_b32 s51, s50, 7')
            s('s_cmp_eq_u32 s51, 0')
            s(f's_cselect_b64 s[44:45], {alt[1]}, {alt[0]}')
            emit_loads('s[44:45]')
        else:
            s('s_add_u32 s50, s50, 1')
            emit_loads(None)
        s('s_waitcnt vmcnt(0)')
        s.check_tags(regs, t0, t1, done)
        s(f's_cmp_lt_u32 s50, {POLL_LIMIT}')
        s(f's_cbranch_scc1 {top}')
        s(f's_mov_b64 s[46:47], exec')
        s('s_mov_b64 exec, 1')
        s(f'v_mov_b32 v{t0}, {4*(s.n % 60)}')
        s(f'v_mov_b32 v{t1}, {0x1000 + s.n}')
        s(f'global_store_dword v{t0}, v{t1}, {S_DBG}')
        s(f's_mov_b64 exec, s[46:47]')
        s.label(done)

    def poll2(s, name, loads, masks, t0, t1, alt=None):
        top = s.uniq(name + '_top'); done = s.uniq(name + '_done')
        n = len(loads)
        assert len(masks) >= n
        s('s_mov_b32 s50, 0')
        for ins, tg, em in loads:
            if em is not None:
                s.set_exec(em)
            s(ins.format(base=alt[0] if alt else None))
            if em is not None:
                s('s_mov_b64 exec, -1')
        s.label(top)
        s('s_waitcnt vmcnt(0)')
        for k, (ins, tg, em) in enumerate(loads):
            s(f'v_cmp_ne_u32 {masks[k]}, {sTAG}, v{tg}')
        if n == 1:
            s(f's_cmp_eq_u64 {masks[0]}, 0')
            s(f's_cbranch_scc1 {done}')
        else:
            s(f's_or_b64 s[46:47], {masks[0]}, {masks[1]}')
            for k in range(2, n):
                s(f's_or_b64 s[46:47], s[46:47], {masks[k]}')
            s(f's_cbranch_scc0 {done}')
        s('s_add_u32 s50, s50, 1')
        if alt:
            s('s_and_b32 s51, s50, 7')
            s('s_cmp_eq_u32 s51, 0')
            s(f's_cselect_b64 s[44:45], {alt[1]}, {alt[0]}')
        for k, (ins, tg, em) in enumerate(loads):
            s(f's_mov_b64 exec, {masks[k]}')
            if n > 1:
                sk = s.uniq(name + '_sk')
                s(f's_cbranch_execz {sk}')
            s(ins.format(base='s[44:45]' if alt else None))
            if n > 1:
                s.label(sk)
        s('s_mov_b64 exec, -1')
        s(f's_cmp_lt_u32 s50, {POLL_LIMIT}')
        s(f's_cbranch_scc1 {top}')
        s('s_waitcnt vmcnt(0)')
        s('s_mov_b64 exec, 1')
        s(f'v_mov_b32 v{t0}, {4*(s.n % 60)}')
        s(f'v_mov_b32 v{t1}, {0x1000 + s.n}')
        s(f'global_store_dword v{t0}, v{t1}, {S_DBG}')
        s('s_mov_b64 exec, -1')
        s.label(done)

    def text(s):
        return '\n'.join(s.L) + '\n'


KAPPA = (128 ** -0.5) * 1.4426950408889634


def gen_sel(g, base, t0, t1):
    g(f'v_and_b32 v{t0}, 7, v0')
    g(f'v_and_b32 v{t1}, 1, v0')
    for par in range(2):
        lo = 0x0c0c0000 | ((2 * par + 1) << 8) | (2 * par)
        hi = ((2 * par + 1) << 24) | ((2 * par) << 16) | 0x0c0c
        g(f'v_cmp_eq_u32 vcc, 1, v{t1}')
        g(f'v_mov_b32 v{base+par}, {lo:#x}')
        g(f'v_mov_b32 v{base+2+par}, {hi:#x}')
        g(f'v_cndmask_b32 v{base+par}, v{base+par}, v{base+2+par}, vcc')
    g(f'v_lshrrev_b32 v{t0}, 1, v{t0}')
    g(f'v_mov_b32 v{t1}, 0x0c0c0c0c')
    for v in [3, 2, 1, 0]:
        g(f'v_cmp_eq_u32 vcc, {v}, v{t0}')
        g.nop(1)
        for par in range(2):
            g(f'v_cndmask_b32 v{base+2*v+par}, v{t1}, v{base+par}, vcc')


def gen_mask(g, base, t0, t1):
    g(f'v_and_b32 v{t0}, 7, v0')
    g(f'v_and_b32 v{t1}, 1, v0')
    g(f'v_cmp_eq_u32 vcc, 1, v{t1}')
    g(f'v_mov_b32 v{base}, 0xffff')
    g(f'v_mov_b32 v{base+1}, 0xffff0000')
    g(f'v_cndmask_b32 v{t1}, v{base}, v{base+1}, vcc')
    g(f'v_lshrrev_b32 v{t0}, 1, v{t0}')
    for v in range(4):
        g(f'v_cmp_eq_u32 vcc, {v}, v{t0}')
        g.nop(1)
        g(f'v_cndmask_b32 v{base+v}, 0, v{t1}, vcc')


def get_tag(g, vreg):
    g.nop(1)
    g(f'v_readfirstlane_b32 {sTAG}, v{vreg}')
    g.nop(4)
    g(f's_mul_i32 {sTAG}, {sTAG}, 5')
    g(f's_add_u32 {sTAG}, {sTAG}, 0x9E3779B9')


def rnd_bf16(g, r):
    g(f'v_cvt_pk_bf16_f32 v{r}, v{r}, v{r}')
    g(f'v_and_b32 v{r}, 0xffff0000, v{r}')


def ln_scalars(g, s1, s2, piv_sgpr, vm, vrs, t0):
    g(f's_mov_b32 s52, {f2u(1.0/640):#x}')
    g(f'v_mul_f32 v{s1}, s52, v{s1}')
    g(f'v_mul_f32 v{s2}, s52, v{s2}')
    g(f'v_fma_f32 v{s2}, -v{s1}, v{s1}, v{s2}')
    g(f'v_max_f32 v{s2}, 0, v{s2}')
    g(f'v_add_f32 v{vm}, {piv_sgpr}, v{s1}')
    rnd_bf16(g, vm)
    rnd_bf16(g, s2)
    g(f'v_add_f32 v{s2}, 0x3727c5ac, v{s2}')
    rnd_bf16(g, s2)
    g(f'v_sqrt_f32 v{s2}, v{s2}')
    g.nop(1)
    rnd_bf16(g, s2)
    g(f'v_rcp_f32 v{vrs}, v{s2}')
    g.nop(1)


def class_combine(g, d, out2=None):
    if out2 is None:
        out2 = d + 2
    for k in range(4):
        g(f'v_mov_b32_dpp v{d+k}, v{d+k} row_ror:8 row_mask:0xc bank_mask:0xf')
    g.nop(1)
    g(f'v_permlane32_swap_b32 v{d}, v{d+1}')
    g(f'v_permlane32_swap_b32 v{d+2}, v{d+3}')
    g.nop(1)
    g(f'v_add_f32 v{d}, v{d}, v{d+1}')
    g(f'v_add_f32 v{out2}, v{d+2}, v{d+3}')


def mode_store(g, ins_no_flag, smode):
    a = g.uniq('ms_fast'); b = g.uniq('ms_done')
    g(f's_cmp_eq_u32 {smode}, 1')
    g(f's_cbranch_scc1 {a}')
    for ins in ins_no_flag:
        g(ins + ' sc1')
    g(f's_branch {b}')
    g.label(a)
    for ins in ins_no_flag:
        g(ins)
    g.label(b)


def own_tag(g, vreg):
    g(f'v_readfirstlane_b32 {sTAG}, v{vreg}')
    g.nop(4)
    g(f's_mul_i32 {sTAG}, {sTAG}, 5')
    g(f's_add_u32 {sTAG}, {sTAG}, 0x9E3779B9')


MA = ['s[10:11]', 's[12:13]', 's[14:15]', 's[18:19]', 's[20:21]', 's[22:23]', 's[24:25]', 's[26:27]']
MQ = ['s[10:11]', 's[12:13]', 's[14:15]', 's[16:17]', 's[20:21]', 's[96:97]', 's[98:99]', 's[100:101]']
MB = ['s[10:11]', 's[12:13]', 's[14:15]', 's[16:17]', 's[18:19]', 's[20:21]', 's[22:23]', 's[24:25]']


def build(stamps=False, stop_after=None, opts=()):
    g = Gen(stamps, stop_after)
    sMODE = 's59'
    WS = S_WS
    g('s_cmp_ge_u32 s2, 256')
    g('s_cbranch_scc1 L_end')
    g('s_load_dwordx16 s[8:23], s[0:1], 0')
    g('s_load_dwordx8 s[24:31], s[0:1], 64')
    g('s_load_dwordx2 s[32:33], s[0:1], 96')
    g('s_getpc_b64 s[42:43]')
    g('v_lshlrev_b32 v1, 4, v0')
    g('global_load_dwordx4 v[232:235], v1, s[42:43]')
    g.stamp(0)
    g('v_lshrrev_b32 v1, 6, v0')
    g('v_and_b32 v0, 63, v0')
    g(f'v_readfirstlane_b32 {sWAVE}, v1')
    g(f's_and_b32 {sXCD}, s2, 7')
    g(f's_lshr_b32 {sR}, s2, 3')
    g(f's_lshr_b32 {sH}, {sR}, 3')
    g(f's_lshl_b32 s48, {sXCD}, 2')
    g(f's_add_u32 {sH}, {sH}, s48')
    g(f's_and_b32 {sJ}, {sR}, 7')
    g('v_mov_b32 v1, 0')
    g('v_lshlrev_b32 v3, 4, v0')
    g('v_and_b32 v7, 15, v0')
    g('v_lshrrev_b32 v6, 4, v0')
    g(f's_cmp_eq_u32 {sWAVE}, 1')
    g('s_cbranch_scc1 L_w1')
    g(f's_cmp_eq_u32 {sWAVE}, 0')
    g('s_cbranch_scc1 L_w0')

    def pre():
        g(f's_and_b32 s55, {sR}, 1')
        g(f's_lshr_b32 s56, {sR}, 1')
        g('v_and_b32 v8, 7, v0')
        g('v_lshlrev_b32 v8, 1, v8')
        g(f's_lshl_b32 s48, {sWAVE}, 14')
        g(f's_add_u32 s48, s48, {L_TILE}')
        for tl in range(4):
            g(f'v_add_u32 v9, {4*tl}, v6')
            g('v_xor_b32 v9, v9, v8')
            g('v_lshlrev_b32 v9, 4, v9')
            g(f'v_lshl_add_u32 v{32+tl}, v7, 10, v9')
            g(f'v_add_u32 v{36+tl}, s48, v{32+tl}')
        g('v_lshrrev_b32 v9, 2, v0')
        g('v_and_b32 v10, 7, v9')
        g('v_lshlrev_b32 v9, 10, v9')
        g('v_and_b32 v11, 3, v0')
        g('v_lshl_add_u32 v9, v11, 3, v9')
        g(f's_lshr_b32 s48, {sWAVE}, 1')
        g('s_lshl_b32 s48, s48, 8')
        g(f's_add_u32 s48, s48, {L_TILE}')
        g('v_add_u32 v9, s48, v9')
        g(f's_and_b32 s48, {sWAVE}, 1')
        g('s_lshl_b32 s48, s48, 2')
        for nn in range(4):
            g(f's_add_u32 s49, s48, {nn}')
            g('v_xor_b32 v11, s49, v10')
            g(f'v_lshl_add_u32 v{40+nn}, v11, 5, v9')
        g('v_lshrrev_b32 v9, 1, v0')
        g('v_and_b32 v10, 1, v0')
        g('v_lshlrev_b32 v10, 3, v10')
        for ih in range(2):
            g(f's_lshl_b32 s48, {sWAVE}, 1')
            g(f's_add_u32 s48, s48, {ih}')
            g('s_and_b32 s49, s48, 7')
            g('s_lshl_b32 s49, s49, 1')
            g('v_xor_b32 v11, s49, v9')
            g('v_lshl_add_u32 v11, v11, 4, v10')
            g('s_lshl_b32 s48, s48, 10')
            g(f's_add_u32 s48, s48, {L_QL}')
            g(f'v_add_u32 v{44+ih}, s48, v11')
        gen_mask(g, 240, 9, 10)
        g('v_lshlrev_b32 v46, 4, v7')
        g(f's_lshl_b32 s48, {sWAVE}, 2')
        g('v_add_u32 v47, s48, v46')
        g('v_lshlrev_b32 v57, 3, v0')
        g(f's_lshl_b32 s48, {sWAVE}, 9')
        g('v_add_u32 v56, s48, v57')
        g('s_lshl_b32 s48, s55, 15')
        g(f's_lshl_b32 s49, {sWAVE}, 12')
        g('s_add_u32 s48, s48, s49')
        g(f's_add_u32 s48, s48, {QA}')
        g('v_add_u32 v248, s48, v3')
        g(f's_lshl_b32 s48, {sXCD}, 19')
        g('s_lshl_b32 s49, s55, 18')
        g('s_add_u32 s48, s48, s49')
        g('s_lshl_b32 s49, s56, 15')
        g('s_add_u32 s48, s48, s49')
        g(f's_lshl_b32 s49, {sWAVE}, 12')
        g('s_add_u32 s48, s48, s49')
        g(f's_add_u32 s48, s48, {OPL}')
        g('v_add_u32 v58, s48, v3')
        g(f's_lshl_b32 s48, {sXCD}, 12')
        g('s_lshl_b32 s49, s55, 11')
        g('s_add_u32 s48, s48, s49')
        g('s_lshl_b32 s49, s56, 8')
        g('s_add_u32 s48, s48, s49')
        g(f's_add_u32 s48, s48, {MLL}')
        g('v_add_u32 v249, s48, v3')
        g(f's_lshr_b32 s60, {sR}, 3')
        g(f's_and_b32 s58, {sR}, 7')
        g(f's_and_b32 s57, {sWAVE}, 3')
        g(f's_lshl_b32 s48, {sXCD}, 12')
        g('s_lshl_b32 s49, s60, 11')
        g('s_add_u32 s48, s48, s49')
        g(f's_add_u32 s48, s48, {MLL}')
        g('v_add_u32 v59, s48, v3')
        g('v_lshlrev_b32 v61, 5, v7')
        g(f'v_add_u32 v61, {L_RED}, v61')
        g('v_lshl_add_u32 v60, v6, 2, v61')
        g(f's_lshl_b32 s48, {sXCD}, 19')
        g('s_lshl_b32 s49, s60, 18')
        g('s_add_u32 s48, s48, s49')
        g('s_lshl_b32 s49, s58, 12')
        g('s_add_u32 s48, s48, s49')
        g('s_lshl_b32 s49, s57, 10')
        g('s_add_u32 s48, s48, s49')
        g(f's_add_u32 s48, s48, {OPL}')
        g('v_add_u32 v224, s48, v3')
        for k in range(1, 8):
            g(f'v_add_u32 v{224+k}, {32768*k}, v224')
        g(f's_lshl_b32 s48, {sXCD}, 16')
        g('s_lshl_b32 s49, s60, 15')
        g('s_add_u32 s48, s48, s49')
        g('s_lshl_b32 s49, s58, 12')
        g('s_add_u32 s48, s48, s49')
        g('s_lshl_b32 s49, s57, 10')
        g('s_add_u32 s48, s48, s49')
        g(f's_add_u32 s48, s48, {OX}')
        g('v_lshlrev_b32 v244, 6, v7')
        g('v_lshl_add_u32 v244, v6, 4, v244')
        g('v_add_u32 v244, s48, v244')
        g(f's_lshl_b32 s48, {sXCD}, 9')
        g('s_lshl_b32 s49, s60, 8')
        g('s_add_u32 s48, s48, s49')
        g(f's_add_u32 s48, s48, {MLX}')
        g('v_add_u32 v250, s48, v3')
        g(f's_lshr_b32 s48, {sR}, 2')
        g(f's_lshl_b32 s49, {sXCD}, 2')
        g('s_add_u32 s61, s48, s49')
        g(f's_and_b32 s62, {sR}, 3')
        g('v_bfe_u32 v13, v0, 2, 3')
        g('s_lshr_b32 s48, s61, 4')
        g('s_lshl_b32 s48, s48, 5')
        g('s_lshl_b32 s49, s62, 3')
        g('s_add_u32 s48, s48, s49')
        g(f's_add_u32 s48, s48, {sWAVE}')
        g('s_lshl_b32 s48, s48, 10')
        g('s_and_b32 s49, s61, 15')
        g('s_lshl_b32 s49, s49, 6')
        g('s_add_u32 s48, s48, s49')
        g(f's_add_u32 s48, s48, {OX}')
        g('v_lshlrev_b32 v14, 16, v13')
        g('v_and_b32 v12, 3, v0')
        g('v_lshl_add_u32 v14, v12, 4, v14')
        g('v_add_u32 v245, s48, v14')
        g('s_lshl_b32 s48, s61, 4')
        g(f's_add_u32 s48, s48, {MLX}')
        g('v_lshlrev_b32 v14, 9, v13')
        g('v_add_u32 v14, s48, v14')
        g('v_cmp_le_u32 vcc, 32, v0')
        g.nop(1)
        g('v_cndmask_b32 v245, v245, v14, vcc')
        g('v_lshlrev_b32 v247, 5, v7')
        g('v_lshl_add_u32 v247, v6, 4, v247')
        g(f's_lshl_b32 s48, {sWAVE}, 9')
        g('v_add_u32 v247, s48, v247')
        g(f's_lshl_b32 s48, {sXCD}, 4')
        g(f's_add_u32 s48, s48, {sR}')
        g('s_lshl_b32 s48, s48, 9')
        g(f's_add_u32 s48, s48, {C4}')
        g('v_lshrrev_b32 v253, 1, v0')
        g('v_lshl_add_u32 v253, v253, 4, s48')
        g('s_lshl_b32 s48, s61, 8')
        g('s_lshl_b32 s49, s62, 3')
        g(f's_add_u32 s49, s49, {sWAVE}')
        g('s_lshl_b32 s49, s49, 17')
        g('s_add_u32 s48, s48, s49')
        g('s_waitcnt lgkmcnt(0)')
        g.addr('s[62:63]' if False else 's[96:97]', S_WUV, 's48')
        g('v_lshlrev_b32 v254, 13, v6')
        g('v_lshl_add_u32 v254, v7, 4, v254')

    def dma(wsel=None):
        g(f's_lshr_b32 s56, {sR}, 1')
        g(f's_lshl_b32 s57, {sXCD}, 3')
        g('s_add_u32 s57, s57, s56')
        g('s_lshl_b32 s48, s57, 6')
        if 'rot' in opts:
            g(f's_and_b32 s49, {sR}, 1')
            g('s_lshl_b32 s49, s49, 2')
            g(f's_add_u32 s49, s49, {wsel or sWAVE}')
            g('s_and_b32 s49, s49, 7')
            g('s_lshl_b32 s49, s49, 3')
        else:
            g(f's_lshl_b32 s49, {wsel or sWAVE}, 3')
        g('s_add_u32 s48, s48, s49')
        g('s_lshl_b32 s48, s48, 10')
        g.addr('s[40:41]', S_CKV, 's48')
        g('s_lshl_b32 s49, s49, 10')
        g(f's_add_u32 s49, s49, {L_TILE}')
        g('s_mov_b32 m0, s49')
        for i in range(8):
            if i == 4:
                g('s_add_u32 s49, s49, 4096')
                g('s_mov_b32 m0, s49')
                g('s_add_u32 s40, s40, 4096')
                g('s_addc_u32 s41, s41, 0')
            g(f'v_xor_b32 v4, {32*i}, v3')
            g(f'global_load_lds_dwordx4 v4, s[40:41] offset:{1024*(i%4)}' + ('' if 'ckvnont' in opts else ' nt'))

    def wuk_dma():
        g(f's_sub_u32 s54, {sR}, 16')
        g('s_lshr_b32 s48, s54, 2')
        g(f's_lshl_b32 s49, {sXCD}, 2')
        g('s_add_u32 s48, s48, s49')
        g('s_lshl_b32 s48, s48, 8')
        g('s_and_b32 s49, s54, 3')
        g('s_lshl_b32 s49, s49, 2')
        g(f's_add_u32 s49, s49, {sWAVE}')
        g('s_sub_u32 s49, s49, 4')
        g('s_lshl_b32 s49, s49, 18')
        g('s_add_u32 s48, s48, s49')
        g.addr('s[40:41]', S_WUK, 's48')
        g('v_xor_b32 v8, v7, v6')
        g('v_lshlrev_b32 v8, 4, v8')
        g('v_lshl_add_u32 v8, v6, 13, v8')
        for n in range(1, 4):
            g(f'v_xor_b32 v{8+n}, {64*n}, v8')
        g(f's_and_b32 s49, {sWAVE}, 3')
        g('s_lshl_b32 s49, s49, 13')
        g(f's_add_u32 m0, s49, {L_TILE}')
        g.nop(1)
        for n in range(8):
            g(f'global_load_lds_dwordx4 v{8+(n&3)}, s[40:41] nt')
            if n < 7:
                g('s_add_u32 m0, m0, 1024')
                g('s_add_u32 s40, s40, 32768')
                g('s_addc_u32 s41, s41, 0')

    g('s_waitcnt lgkmcnt(0)')
    if 'bq' in opts:
        g('s_barrier')
    g(f's_cmp_ge_u32 {sWAVE}, 4')
    g('s_cbranch_scc0 L_e_nb')
    g(f's_cmp_ge_u32 {sR}, 16')
    g('s_cbranch_scc1 L_e_b')
    if 'fulldma' in opts:
        g(f's_sub_u32 s58, {sWAVE}, 4')
        dma('s58')
    if 'halfdma' in opts or 'fulldma' in opts:
        dma()
    g('s_branch L_e_nb')
    g.label('L_e_b')
    if 'wukb0' not in opts:
        wuk_dma()
    g.label('L_e_nb')
    g('s_waitcnt lgkmcnt(0)')
    g(f'global_load_dword v2, v1, {WS} sc1')
    g(f's_cmp_eq_u32 {sWAVE}, 3')
    g('s_cbranch_scc0 L_nw7')
    g(f's_and_b32 s48, {sR}, 7')
    g('s_lshl_b32 s48, s48, 10')
    g('s_add_u32 s48, s48, 8192')
    g(f's_min_u32 s48, s48, L_end-{KN}-1088')
    g('s_add_u32 s42, s42, s48')
    g('s_addc_u32 s43, s43, 0')
    g('global_load_dwordx4 v[236:239], v3, s[42:43]')
    g.label('L_nw7')
    g(f's_cmp_ge_u32 {sR}, 16')
    g('s_cbranch_scc0 L_pre')
    g.label('L_e_tag')
    g(f's_cmp_eq_u32 {sWAVE}, 2')
    g('s_cbranch_scc0 L_b0')
    g('s_waitcnt vmcnt(0)')
    own_tag(g, 2)
    g('s_getreg_b32 s48, hwreg(HW_REG_XCC_ID)')
    g('s_and_b32 s48, s48, 0xf')
    g('v_mov_b32 v12, s48')
    g(f'v_mov_b32 v15, {sTAG}')
    g(f's_lshl_b32 s48, {sXCD}, 5')
    g(f's_add_u32 s48, s48, {sR}')
    g('s_lshl_b32 s48, s48, 4')
    g(f's_add_u32 s48, s48, {XID}')
    g('v_mov_b32 v16, s48')
    g('s_mov_b64 exec, 1')
    g(f'global_store_dwordx4 v16, v[12:15], {WS} sc1')
    g('s_mov_b64 exec, -1')
    g('s_branch L_b0')

    g.label('L_w0')
    g('v_lshlrev_b32 v4, 2, v0')
    g('v_min_u32 v5, 39, v0')
    g('v_lshlrev_b32 v5, 2, v5')
    g(f's_mul_i32 s48, {sJ}, 160')
    g('v_add_u32 v5, s48, v5')
    g('s_waitcnt lgkmcnt(0)')
    for k in range(5):
        g(f'global_load_dword v{10+k}, v4, {S_X} offset:{256*k}')
    g(f'global_load_dword v15, v5, {S_X}')
    g(f'global_load_dword v2, v1, {WS} sc1')
    g(f's_mov_b32 s52, {f2u(1.0/640):#x}')
    if 'bq' in opts:
        g('s_barrier')
    g('s_waitcnt vmcnt(2)')
    g.stamp(1)
    for k in range(5):
        g(f'v_lshlrev_b32 v{16+2*k}, 16, v{10+k}')
        g(f'v_and_b32 v{17+2*k}, 0xffff0000, v{10+k}')
    g('v_readfirstlane_b32 s53, v16')
    g.nop(4)
    for k in range(10):
        g(f'v_subrev_f32 v{16+k}, s53, v{16+k}')
    g('v_pk_mul_f32 v[26:27], v[16:17], v[16:17]')
    g('v_pk_add_f32 v[28:29], v[16:17], v[18:19]')
    for k in range(1, 5):
        g(f'v_pk_fma_f32 v[26:27], v[{16+2*k}:{17+2*k}], v[{16+2*k}:{17+2*k}], v[26:27]')
        if k >= 2:
            g(f'v_pk_add_f32 v[28:29], v[28:29], v[{16+2*k}:{17+2*k}]')
    g('v_add_f32 v27, v26, v27')
    g('v_add_f32 v26, v28, v29')
    g.wave_reduce([26, 27], [28, 29])
    ln_scalars(g, 26, 27, 's53', 28, 29, 30)
    g('s_waitcnt vmcnt(1)')
    g('v_lshlrev_b32 v16, 16, v15')
    g('v_and_b32 v17, 0xffff0000, v15')
    g('v_sub_f32 v16, v16, v28')
    g('v_sub_f32 v17, v17, v28')
    g('v_cvt_pk_bf16_f32 v18, v16, v17')
    g('v_lshlrev_b32 v16, 16, v18')
    g('v_and_b32 v17, 0xffff0000, v18')
    g('v_mul_f32 v16, v16, v29')
    g('v_mul_f32 v17, v17, v29')
    g('v_cvt_pk_bf16_f32 v18, v16, v17')
    g(f'ds_write_b32 v4, v18 offset:{L_XN}')
    g('s_waitcnt lgkmcnt(0)')
    g.stamp(2)
    g('s_barrier')
    g('s_waitcnt vmcnt(0)')
    own_tag(g, 2)
    g(f's_cmp_ge_u32 {sR}, 16')
    g('s_cbranch_scc1 L_pathB')
    g('s_branch L_pre0')

    g.label('L_w1')
    g(f's_mov_b32 s49, {20*8192}')
    g('v_mul_lo_u32 v8, v6, s49')
    g('v_lshl_add_u32 v8, v7, 4, v8')
    g(f's_mul_i32 s48, {sJ}, {80*8192}')
    g(f's_lshl_b32 s49, {sH}, 8')
    g('s_add_u32 s48, s48, s49')
    g('s_waitcnt lgkmcnt(0)')
    g.addr('s[40:41]', S_WQ, 's48')
    for t in range(20):
        g(f'global_load_dwordx4 v[{80+4*t}:{83+4*t}], v8, s[40:41] nt')
        if t < 19:
            g('s_add_u32 s40, s40, 8192')
            g('s_addc_u32 s41, s41, 0')
    g(f'global_load_dword v2, v1, {WS} sc1')
    if 'bq' in opts:
        g('s_barrier')
    g.stamp(1)
    gen_sel(g, 192, 16, 17)
    g(f's_lshl_b32 s48, {sH}, 3')
    g(f's_add_u32 s48, s48, {sJ}')
    g('s_lshl_b32 s48, s48, 10')
    g(f's_add_u32 s49, s48, {Q1L}')
    g.addr('s[44:45]', S_WS, 's49')
    g(f's_add_u32 s49, s48, {Q1G}')
    g.addr('s[46:47]', S_WS, 's49')
    g('v_mul_u32_u24 v19, 40, v6')
    g('s_mov_b32 s56, 0')
    g('s_mov_b32 s57, -1')
    g('s_barrier')
    for k in range(5):
        g(f'ds_read_b64 v[{16+2*k}:{17+2*k}], v19 offset:{L_XN+8*k}')
    g('s_waitcnt lgkmcnt(0)')

    def perms(t):
        a = 160 + 4 * (t % 4)
        for v in range(4):
            g(f'v_perm_b32 v{a+v}, v{16+t//2}, v{16+t//2}, v{192+2*v+(t&1)}')
    perms(0)
    perms(1)
    for t in range(20):
        if t + 2 < 20:
            perms(t + 2)
        g(f's_waitcnt vmcnt({19-t+1})')
        a = 160 + 4 * (t % 4)
        c = '0' if t == 0 else 'v[200:203]'
        g(f'v_mfma_f32_16x16x32_bf16 v[200:203], v[{a}:{a+3}], v[{80+4*t}:{83+4*t}], {c}')
        if t == 17:
            pass
    g('s_waitcnt vmcnt(0)')
    g(f'v_readfirstlane_b32 {sTAG}, v2')
    g.nop(4)
    g(f's_mul_i32 {sTAG}, {sTAG}, 5')
    g(f's_add_u32 {sTAG}, {sTAG}, 0x9E3779B9')
    g(f'v_mov_b32 v207, {sTAG}')
    g('v_cndmask_b32 v204, v200, v202, s[56:57]')
    g('v_cndmask_b32 v205, v201, v203, s[56:57]')
    g(f'global_store_dwordx4 v3, v[204:207], s[44:45]')
    g(f'global_store_dwordx4 v3, v[204:207], s[46:47] sc1')
    g.stamp(2)
    g(f's_cmp_ge_u32 {sR}, 16')
    g('s_cbranch_scc1 L_pathB')
    g('s_branch L_bp1')

    g.label('L_b0')
    g('s_barrier')
    g('s_waitcnt vmcnt(0)')
    own_tag(g, 2)
    if 'wukb0' in opts:
        g(f's_cmp_ge_u32 {sWAVE}, 4')
        g('s_cbranch_scc0 L_pathB')
        wuk_dma()
        g('s_waitcnt vmcnt(0)')
    g('s_branch L_pathB')

    g.label('L_pre')
    pre()
    g(f's_cmp_eq_u32 {sWAVE}, 2')
    g('s_cbranch_scc0 L_pre_nx')
    g('s_waitcnt vmcnt(0)')
    own_tag(g, 2)
    g('s_getreg_b32 s48, hwreg(HW_REG_XCC_ID)')
    g('s_and_b32 s48, s48, 0xf')
    g('v_mov_b32 v12, s48')
    g(f'v_mov_b32 v15, {sTAG}')
    g(f's_lshl_b32 s48, {sXCD}, 5')
    g(f's_add_u32 s48, s48, {sR}')
    g('s_lshl_b32 s48, s48, 4')
    g(f's_add_u32 s48, s48, {XID}')
    g('v_mov_b32 v16, s48')
    g('s_mov_b64 exec, 1')
    g(f'global_store_dwordx4 v16, v[12:15], {WS} sc1')
    g('s_mov_b64 exec, -1')
    g.label('L_pre_nx')
    g('s_barrier')
    g('s_waitcnt vmcnt(0)')
    own_tag(g, 2)
    g.label('L_bp')
    g('s_barrier')
    if 'halfdma' in opts:
        g(f's_cmp_ge_u32 {sWAVE}, 4')
        g('s_cbranch_scc1 L_a_dmadone')
    if 'fulldma' not in opts:
        dma()
    g.stamp(13)
    g('s_branch L_a_dmadone')
    g.label('L_pre0')
    pre()
    g('s_branch L_bp')
    g.label('L_bp1')
    g('s_barrier')
    if 'fulldma' not in opts:
        dma()
    g.stamp(13)
    pre()
    g.label('L_a_dmadone')
    g(f's_and_b32 s57, {sWAVE}, 3')
    g(f'global_load_dword v233, v58, {WS} sc1')
    g(f'global_load_dword v234, v224, {WS} sc1')
    g(f'global_load_dword v235, v231, {WS} sc1')
    g(f's_cmp_eq_u32 {sWAVE}, 3')
    g('s_cbranch_scc0 L_a_nochk')
    g(f's_lshl_b32 s48, {sXCD}, 9')
    g(f's_add_u32 s48, s48, {XID}')
    g('v_and_b32 v9, 31, v0')
    g('v_lshlrev_b32 v9, 4, v9')
    g('v_add_u32 v9, s48, v9')
    g('s_getreg_b32 s52, hwreg(HW_REG_XCC_ID)')
    g('s_and_b32 s52, s52, 0xf')
    g('s_mov_b32 s50, 0')
    g(f's_mov_b32 {sMODE}, 0')
    g.label('L_a_chk')
    g(f'global_load_dwordx4 v[12:15], v9, {WS} sc1')
    g('s_add_u32 s50, s50, 1')
    g('s_waitcnt vmcnt(0)')
    g(f'v_cmp_eq_u32 vcc, {sTAG}, v15')
    g('s_cmp_eq_u64 vcc, exec')
    g('s_cbranch_scc1 L_a_chk_ok')
    g('s_cmp_lt_u32 s50, 64')
    g('s_cbranch_scc1 L_a_chk')
    g('s_branch L_a_chk_done')
    g.label('L_a_chk_ok')
    g('v_cmp_eq_u32 vcc, s52, v12')
    g('s_cmp_eq_u64 vcc, exec')
    g(f's_cselect_b32 {sMODE}, 1, 0')
    g.label('L_a_chk_done')
    g(f'v_mov_b32 v12, {sMODE}')
    g(f'ds_write_b32 v1, v12 offset:{L_MODE}')
    g.label('L_a_nochk')
    g('s_waitcnt vmcnt(0) lgkmcnt(0)')
    g.stamp(3)
    g('s_barrier')
    FA = 96
    FT = 160
    skip = g.uniq('skipfa')
    g(f's_cmp_lt_u32 {sWAVE}, 4')
    g(f's_cbranch_scc0 {skip}')
    for t in range(16):
        g(f'ds_read_b128 v[{FA+4*t}:{FA+4*t+3}], v{36+(t%4)} offset:{256*(t//4)}')
    g.label(skip)
    for nn in range(4):
        for b in range(4):
            d = FT + nn * 8 + (b // 2) * 4 + (b % 2) * 2
            g(f'ds_read_b64_tr_b16 v[{d}:{d+1}], v{40+nn} offset:{16384*b}')
    g(f'ds_read_b32 v12, v1 offset:{L_MODE}')
    g(f's_mov_b32 s63, {f2u(KAPPA):#x}')
    g.poll2('qa', [(f'global_load_dwordx4 v[{16+4*i}:{19+4*i}], v248, {WS} offset:{1024*i} sc1', 19 + 4 * i, None) for i in range(4)], MA, 10, 11)
    for i in range(4):
        g(f'ds_write_b64 v{44+(i>>1)}, v[{16+4*i}:{17+4*i}] offset:{512*(i&1)}')
    g.stamp(4)
    g('s_waitcnt lgkmcnt(0)')
    g(f'v_readfirstlane_b32 {sMODE}, v12')
    g('s_barrier')
    wuv_ins = []
    for tt in range(4):
        wuv_ins.append(f'global_load_dwordx4 v[{64+4*tt}:{67+4*tt}], v254, s[96:97] nt')
        if tt < 3:
            wuv_ins.append('s_add_u32 s96, s96, 32768')
            wuv_ins.append('s_addc_u32 s97, s97, 0')
    g(f's_cmp_lt_u32 {sWAVE}, 4')
    g('s_cbranch_scc1 L_a_s')
    for ins in wuv_ins:
        g(ins)
    g('s_branch L_a_b5')
    g.label('L_a_s')
    qreg = [192 + 4 * t for t in range(8)] + [16 + 4 * t for t in range(4)] + [80 + 4 * t for t in range(4)]
    for t in range(16):
        g(f'ds_read_b128 v[{qreg[t]}:{qreg[t]+3}], v{32+(t%4)} offset:{L_QL+256*(t//4)}')
    for t in range(16):
        g(f's_waitcnt lgkmcnt({15-t})')
        c = '0' if t == 0 else 'v[48:51]'
        g(f'v_mfma_f32_16x16x32_bf16 v[48:51], v[{FA+4*t}:{FA+4*t+3}], v[{qreg[t]}:{qreg[t]+3}], {c}')
        if 2 <= t < 2 + len(wuv_ins):
            g(wuv_ins[t - 2])
    g.nop(8)
    g('v_max_f32 v52, v48, v49')
    g('v_max3_f32 v52, v52, v50, v51')
    g.row_reduce([52], [53], 'max')
    g(f'ds_write_b32 v47, v52 offset:{L_MB}')
    g('s_waitcnt lgkmcnt(0)')
    g.label('L_a_b5')
    g('s_barrier')
    g.stamp(12)
    g(f's_cmp_lt_u32 {sWAVE}, 4')
    g('s_cbranch_scc1 L_a_sm')
    g(f's_cmp_eq_u32 {sWAVE}, 7')
    g('s_cbranch_scc0 L_a_b6')
    g(f'ds_read_b128 v[84:87], v46 offset:{L_MB}')
    for k in range(4):
        g(f'v_mov_b32 v{88+k}, 0x3f803f80')
    g('s_waitcnt lgkmcnt(0)')
    g('v_max_f32 v84, v84, v85')
    g('v_max3_f32 v84, v84, v86, v87')
    g('v_mul_f32 v84, s63, v84')
    g(f'v_mov_b32 v87, {sTAG}')
    g('s_branch L_a_b6')
    g.label('L_a_sm')
    g(f'ds_read_b128 v[52:55], v46 offset:{L_MB}')
    g('s_waitcnt lgkmcnt(0)')
    g('v_max_f32 v52, v52, v53')
    g('v_max3_f32 v52, v52, v54, v55')
    g('v_mul_f32 v52, s63, v52')
    for k in range(4):
        g(f'v_fma_f32 v{48+k}, v{48+k}, s63, -v52')
    for k in range(4):
        g(f'v_exp_f32 v{48+k}, v{48+k}')
    g.nop(1)
    g('v_cvt_pk_bf16_f32 v54, v48, v49')
    g('v_cvt_pk_bf16_f32 v55, v50, v51')
    g(f'ds_write_b64 v56, v[54:55] offset:{L_PB}')
    g('s_waitcnt lgkmcnt(0)')
    g.label('L_a_b6')
    for nn in range(4):
        g(f'v_mov_b32 v{19+4*nn}, {sTAG}')
    g('s_barrier')
    for b in range(4):
        g(f'ds_read_b64 v[{48+2*b}:{49+2*b}], v57 offset:{L_PB+512*b}')
    PD = 208
    g('s_waitcnt lgkmcnt(0)')
    g.stamp(10)
    g(f's_cmp_eq_u32 {sWAVE}, 7')
    g('s_cbranch_scc0 L_a_pv')
    g('v_mfma_f32_16x16x32_bf16 v[92:95], v[88:91], v[48:51], 0')
    g('v_mfma_f32_16x16x32_bf16 v[92:95], v[88:91], v[52:55], v[92:95]')
    g.label('L_a_pv')
    for nn in range(4):
        for s2 in range(2):
            c = '0' if s2 == 0 else f'v[{PD+4*nn}:{PD+3+4*nn}]'
            a = FT + nn * 8 + s2 * 4
            g(f'v_mfma_f32_16x16x32_bf16 v[{PD+4*nn}:{PD+3+4*nn}], v[{a}:{a+3}], v[{48+4*s2}:{51+4*s2}], {c}')
    g(f's_cmp_eq_u32 {sWAVE}, 7')
    g('s_cbranch_scc0 L_a_pv2')
    g('v_mov_b32 v85, v92')
    g.set_exec(0xffff)
    mode_store(g, [f'global_store_dwordx4 v249, v[84:87], {WS}'], sMODE)
    g('s_mov_b64 exec, -1')
    g.label('L_a_pv2')
    g.nop(2)
    for nn in range(4):
        g(f'v_cvt_pk_bf16_f32 v{16+4*nn}, v{PD+4*nn}, v{PD+1+4*nn}')
        g(f'v_cvt_pk_bf16_f32 v{17+4*nn}, v{PD+2+4*nn}, v{PD+3+4*nn}')
    g.stamp(11)
    mode_store(g, [f'global_store_dwordx4 v58, v[{16+4*nn}:{19+4*nn}], {WS} offset:{1024*nn}' for nn in range(4)], sMODE)
    g.stamp(5)
    if stop_after == 3:
        g('s_branch L_fin')

    MR = 96
    OR_ = 128
    g(f's_cmp_ge_u32 {sWAVE}, 4')
    g('s_cbranch_scc1 L_a_r')
    g(f's_cmp_eq_u32 {sWAVE}, 0')
    g('s_cbranch_scc0 L_a_bw')
    g.poll2('mll', [(f'global_load_dwordx4 v[{MR}:{MR+3}], v59, {WS} sc1', MR + 3, None),
                    (f'global_load_dwordx4 v[{MR+4}:{MR+7}], v59, {WS} offset:1024 sc1', MR + 7, None)], MA, 10, 11)
    g(f'v_max_f32 v20, v{MR}, v{MR+4}')
    g.row_reduce([20], [22], 'max')
    g(f'v_sub_f32 v24, v{MR}, v20')
    g(f'v_sub_f32 v25, v{MR+4}, v20')
    g('v_exp_f32 v24, v24')
    g('v_exp_f32 v25, v25')
    g.nop(1)
    g('ds_write_b32 v60, v24')
    g('ds_write_b32 v60, v25 offset:16')
    g(f'v_mul_f32 v21, v24, v{MR+1}')
    g(f'v_fmac_f32 v21, v25, v{MR+5}')
    g('s_waitcnt lgkmcnt(0)')
    g('s_barrier')
    g('s_cmp_eq_u32 s58, 0')
    g('s_cbranch_scc0 L_a_s4')
    g.row_reduce([21], [22], 'add')
    g(f'v_mov_b32 v23, {sTAG}')
    g.set_exec(0xffff)
    g(f'global_store_dwordx4 v250, v[20:23], {WS} sc1')
    g('s_mov_b64 exec, -1')
    g('s_branch L_a_s4')
    g.label('L_a_bw')
    g('s_barrier')
    g('s_branch L_a_s4')
    g.label('L_a_r')
    g(f'v_mov_b32 v51, {sTAG}')
    g.poll2('opl', [(f'global_load_dwordx4 v[{OR_+4*k}:{OR_+4*k+3}], v{224+k}, {WS} sc1', OR_ + 4 * k + 3, None) for k in range(8)], MA, 10, 11)
    g.stamp(6)
    g('s_barrier')
    g(f'ds_read_b128 v[{MR+8}:{MR+11}], v61')
    g(f'ds_read_b128 v[{MR+12}:{MR+15}], v61 offset:16')
    UP = 160
    for k in range(8):
        for half in range(2):
            src = OR_ + 4 * k + half
            t = UP + 4 * k + 2 * half
            g(f'v_lshlrev_b32 v{t}, 16, v{src}')
            g(f'v_and_b32 v{t+1}, 0xffff0000, v{src}')
        if k == 1:
            g('s_waitcnt lgkmcnt(0)')
        if k >= 1:
            for kk in ([0, 1] if k == 1 else [k]):
                wr = MR + 8 + (kk & ~1)
                sel = kk & 1
                for half in range(2):
                    t = UP + 4 * kk + 2 * half
                    acc = 52 + 2 * half
                    if kk == 0:
                        g(f'v_pk_mul_f32 v[{acc}:{acc+1}], v[{t}:{t+1}], v[{wr}:{wr+1}] op_sel_hi:[1,0]')
                    else:
                        g(f'v_pk_fma_f32 v[{acc}:{acc+1}], v[{t}:{t+1}], v[{wr}:{wr+1}], v[{acc}:{acc+1}] op_sel:[0,{sel},0] op_sel_hi:[1,{sel},1]')
    g('v_cvt_pk_bf16_f32 v48, v52, v53')
    g('v_cvt_pk_bf16_f32 v49, v54, v55')
    g(f'global_store_dwordx4 v244, v[48:51], {WS} sc1')
    g.stamp(7)
    g.label('L_a_s4')
    g('s_barrier')

    g.poll2('ox', [(f'global_load_dwordx4 v[16:19], v245, {WS} sc1', 19, None)], MA, 10, 11)
    g.stamp(8)
    g('v_max_f32_dpp v22, v16, v16 row_ror:4 row_mask:0xf bank_mask:0xf')
    g.nop(2)
    g('v_max_f32_dpp v22, v22, v22 row_ror:8 row_mask:0xf bank_mask:0xf')
    g.nop(1)
    g('v_mov_b32 v23, v22')
    g.nop(2)
    g('v_permlane16_swap_b32 v23, v22')
    g.nop(1)
    g('v_max_f32 v22, v22, v23')
    g('v_sub_f32 v24, v16, v22')
    g('v_exp_f32 v24, v24')
    g('v_permlane32_swap_b32 v16, v17')
    g.nop(1)
    g('v_mul_f32 v22, v24, v17')
    g('v_lshlrev_b32 v25, 16, v16')
    g('v_add_f32_dpp v22, v22, v22 row_ror:4 row_mask:0xf bank_mask:0xf')
    g('v_and_b32 v26, 0xffff0000, v16')
    g.nop(1)
    g('v_add_f32_dpp v22, v22, v22 row_ror:8 row_mask:0xf bank_mask:0xf')
    g.nop(1)
    g('v_mov_b32 v23, v22')
    g.nop(2)
    g('v_permlane16_swap_b32 v23, v22')
    g.nop(1)
    g('v_add_f32 v22, v22, v23')
    g('v_rcp_f32 v22, v22')
    g.nop(1)
    g('v_mul_f32 v24, v24, v22')
    g('v_mov_b32 v23, v24')
    g.nop(2)
    g('v_permlane32_swap_b32 v23, v24')
    g.nop(1)
    g('v_mul_f32 v25, v25, v24')
    g('v_mul_f32 v26, v26, v24')
    g.nop(2)
    g('v_permlane16_swap_b32 v25, v26')
    g.nop(1)
    g('v_add_f32 v25, v25, v26')
    g.nop(2)
    g('v_add_f32_dpp v25, v25, v25 row_ror:4 row_mask:0xf bank_mask:0xf')
    g.nop(2)
    g('v_add_f32_dpp v25, v25, v25 row_ror:8 row_mask:0xf bank_mask:0xf')
    g('v_cvt_pk_bf16_f32 v25, v25, v25')
    g.nop(2)

    def ands(tt):
        a = 84 + 4 * (tt % 2)
        for v in range(4):
            g(f'v_and_b32_dpp v{a+v}, v25, v{240+v} quad_perm:[{tt},{tt},{tt},{tt}] row_mask:0xf bank_mask:0xf')
    ands(0)
    for tt in range(4):
        if tt < 3:
            ands(tt + 1)
        else:
            g.nop(2)
        a = 84 + 4 * (tt % 2)
        c = '0' if tt == 0 else 'v[92:95]'
        g(f'v_mfma_f32_16x16x32_bf16 v[92:95], v[{a}:{a+3}], v[{64+4*tt}:{67+4*tt}], {c}')
    g.set_exec(0xffffffff)
    g.nop(6)
    g(f'ds_write_b128 v247, v[92:95] offset:{L_RED}')
    g('s_mov_b64 exec, -1')
    g('s_waitcnt lgkmcnt(0)')
    g('s_barrier')
    g(f's_cmp_eq_u32 {sWAVE}, 0')
    g('s_cbranch_scc0 L_a_red')
    for w in range(8):
        g(f'ds_read_b64 v[{32+2*w}:{33+2*w}], v57 offset:{L_RED+512*w}')
    g(f'v_mov_b32 v23, {sTAG}')
    g('s_waitcnt lgkmcnt(0)')
    g('v_pk_add_f32 v[32:33], v[32:33], v[34:35]')
    g('v_pk_add_f32 v[36:37], v[36:37], v[38:39]')
    g('v_pk_add_f32 v[40:41], v[40:41], v[42:43]')
    g('v_pk_add_f32 v[44:45], v[44:45], v[46:47]')
    g('v_pk_add_f32 v[32:33], v[32:33], v[36:37]')
    g('v_pk_add_f32 v[40:41], v[40:41], v[44:45]')
    g('v_pk_add_f32 v[32:33], v[32:33], v[40:41]')
    g('v_cvt_pk_bf16_f32 v20, v32, v33')
    g.nop(2)
    g('v_mov_b32_dpp v21, v20 row_shl:1 row_mask:0xf bank_mask:0xf')
    g.set_exec(0x5555555555555555)
    mode_store(g, [f'global_store_dwordx4 v253, v[20:23], {WS}'], sMODE)
    g('s_mov_b64 exec, -1')
    g.stamp(9)
    g.label('L_a_red')
    if stop_after == 4:
        g('s_branch L_fin')
    g(f's_cmp_eq_u32 {sWAVE}, 7')
    g('s_cbranch_scc0 L_fin')
    g(f's_cmp_lt_u32 {sR}, 10')
    g('s_cbranch_scc0 L_fin')
    g(f's_mul_i32 s55, {sXCD}, 10')
    g(f's_add_u32 s55, s55, {sR}')
    g('v_and_b32 v7, 3, v0')
    g('v_lshrrev_b32 v6, 5, v0')
    g('v_and_b32 v8, 1, v7')
    g('v_lshlrev_b32 v8, 2, v8')
    g('v_lshrrev_b32 v9, 1, v7')
    g('v_add_u32 v8, v8, v9')
    g('v_lshl_add_u32 v8, v6, 1, v8')
    g('s_lshl_b32 s48, s55, 3')
    g('v_add_u32 v31, s48, v8')
    g('v_lshlrev_b32 v31, 1, v31')
    g(f'global_load_ushort v30, v31, {S_X}')
    g('v_and_b32 v9, 7, v0')
    g('v_mul_u32_u24 v9, 2560, v9')
    g('v_bfe_u32 v10, v0, 3, 1')
    g('v_lshl_add_u32 v9, v10, 4, v9')
    g('s_lshr_b32 s48, s55, 4')
    g('s_lshl_b32 s48, s48, 9')
    g('s_and_b32 s49, s55, 15')
    g('s_lshl_b32 s49, s49, 5')
    g('s_add_u32 s48, s48, s49')
    g(f's_add_u32 s48, s48, {OUTP}')
    g('v_add_u32 v9, s48, v9')
    g('s_lshl_b32 s48, s55, 6')
    g(f's_add_u32 s48, s48, {O2P}')
    g('v_lshrrev_b32 v12, 2, v0')
    g('v_mul_u32_u24 v12, 5120, v12')
    g('v_lshl_add_u32 v12, v7, 4, v12')
    g('v_add_u32 v12, s48, v12')
    g(f'v_add_u32 v13, {16*5120}, v12')
    g(f'v_add_u32 v14, {32*5120}, v12')
    g(f'v_add_u32 v15, {48*5120}, v12')
    g(f'v_mov_b32 v44, {sTAG}')
    g('v_mov_b32 v46, 0')
    g('v_mov_b32 v47, 0')
    g(f'v_mov_b32 v19, {sTAG}')
    g('v_mov_b32 v16, 0')
    g('v_mov_b32 v17, 0')
    g('v_lshrrev_b32 v28, 2, v8')
    g('v_lshlrev_b32 v28, 5, v28')
    g('v_and_b32 v29, 3, v8')
    g.poll2('hf', [(f'global_load_dwordx4 v[16:19], v9, {WS} sc1', 19, 0xffff)], MA, 10, 11)
    g('v_lshlrev_b32 v20, 16, v16')
    g('v_and_b32 v21, 0xffff0000, v16')
    g('v_lshlrev_b32 v22, 16, v17')
    g('v_and_b32 v23, 0xffff0000, v17')
    for ctl in ['quad_perm:[1,0,3,2]', 'quad_perm:[2,3,0,1]', 'row_half_mirror']:
        g.nop(1)
        for k in range(4):
            g(f'v_add_f32_dpp v{20+k}, v{20+k}, v{20+k} {ctl} row_mask:0xf bank_mask:0xf')
    g.nop(1)
    for k in range(4):
        g(f'ds_bpermute_b32 v{24+k}, v28, v{20+k}')
    g('s_waitcnt lgkmcnt(0)')
    g('v_cmp_eq_u32 vcc, 1, v29')
    g.nop(1)
    g('v_cndmask_b32 v24, v24, v25, vcc')
    g('v_cmp_eq_u32 vcc, 2, v29')
    g.nop(1)
    g('v_cndmask_b32 v24, v24, v26, vcc')
    g('v_cmp_eq_u32 vcc, 3, v29')
    g.nop(1)
    g('v_cndmask_b32 v16, v24, v27, vcc')
    rnd_bf16(g, 16)
    g('v_lshlrev_b32 v30, 16, v30')
    g('v_add_f32 v30, v30, v16')
    rnd_bf16(g, 30)
    g.poll2('o2', [(f'global_load_dwordx4 v[{32+4*i}:{35+4*i}], v{12+i}, {WS} sc1', 32 + 4 * i, None) for i in range(3)] +
            [(f'global_load_dwordx4 v[44:47], v15, {WS} sc1', 44, 0xffffff)], MA, 10, 11)
    g.stamp(9)
    g('v_pk_add_f32 v[16:17], v[34:35], v[38:39]')
    g('v_pk_add_f32 v[18:19], v[42:43], v[46:47]')
    g('v_pk_add_f32 v[16:17], v[16:17], v[18:19]')
    g.nop(2)
    g('v_permlane32_swap_b32 v16, v17')
    g.nop(1)
    g('v_add_f32 v16, v16, v17')
    g('v_mov_b32 v17, v16')
    g.nop(2)
    g('v_permlane16_swap_b32 v17, v16')
    g.nop(1)
    g('v_add_f32 v16, v16, v17')
    g.nop(2)
    g('v_add_f32_dpp v16, v16, v16 row_ror:4 row_mask:0xf bank_mask:0xf')
    g.nop(2)
    g('v_add_f32_dpp v16, v16, v16 row_ror:8 row_mask:0xf bank_mask:0xf')
    rnd_bf16(g, 16)
    g('v_add_f32 v16, v16, v30')
    g('v_cvt_pk_bf16_f32 v16, v16, v16')
    g('s_mov_b32 exec_lo, 0xf')
    g('s_mov_b32 exec_hi, 0xf')
    g(f'global_store_short v31, v16, {S_OUT}')
    g('s_mov_b64 exec, -1')
    g('s_cmp_eq_u32 s55, 0')
    g('s_cbranch_scc0 L_fin')
    g('s_mov_b64 exec, 1')
    g(f'v_mov_b32 v2, {sTAG}')
    g(f'global_store_dword v1, v2, {WS} sc1')
    g('s_mov_b64 exec, -1')
    g('s_branch L_fin')

    g.label('L_pathB')
    g(f's_sub_u32 s54, {sR}, 16')
    g('s_lshr_b32 s48, s54, 2')
    g(f's_lshl_b32 s49, {sXCD}, 2')
    g('s_add_u32 s55, s48, s49')
    g(f's_cmp_eq_u32 {sWAVE}, 0')
    g('s_cbranch_scc0 L_b1')
    g('s_lshl_b32 s48, s55, 13')
    g(f's_add_u32 s49, s48, {Q1L}')
    g.addr('s[40:41]', S_WS, 's49')
    g(f's_add_u32 s49, s48, {Q1G}')
    g.addr('s[42:43]', S_WS, 's49')
    g('v_add_u32 v4, 4096, v3')
    g('v_and_b32 v14, 1, v6')
    g('v_lshlrev_b32 v14, 3, v14')
    g('v_lshl_add_u32 v14, v7, 4, v14')
    g('v_lshrrev_b32 v15, 1, v6')
    g('v_lshl_add_u32 v14, v15, 2, v14')
    g.poll2('q1', [(f'global_load_dwordx4 v[{32+4*k}:{35+4*k}], {"v3" if k < 4 else "v4"}, {{base}} offset:{1024*(k%4)} sc1', 35 + 4 * k, None) for k in range(8)],
            MQ, 10, 11, alt=('s[40:41]', 's[42:43]'))
    g.stamp(3)
    g('v_pk_add_f32 v[12:13], v[32:33], v[36:37]')
    g('v_pk_add_f32 v[10:11], v[40:41], v[44:45]')
    g('v_pk_add_f32 v[16:17], v[48:49], v[52:53]')
    g('v_pk_add_f32 v[18:19], v[56:57], v[60:61]')
    g('v_pk_add_f32 v[12:13], v[12:13], v[10:11]')
    g('v_pk_add_f32 v[16:17], v[16:17], v[18:19]')
    g('v_pk_add_f32 v[12:13], v[12:13], v[16:17]')
    g('v_cvt_pk_bf16_f32 v12, v12, v13')
    g(f'ds_write_b32 v14, v12 offset:{L_QB}')
    g('s_waitcnt lgkmcnt(0)')
    g('s_barrier')
    g('s_branch L_b2')
    g.label('L_b1')
    g('s_lshl_b32 s48, s55, 11')
    g('s_and_b32 s49, s54, 3')
    g('s_lshl_b32 s49, s49, 9')
    g('s_add_u32 s48, s48, s49')
    g(f's_and_b32 s49, {sWAVE}, 3')
    g('s_lshl_b32 s49, s49, 7')
    g('s_add_u32 s48, s48, s49')
    g(f's_add_u32 s48, s48, {QA}')
    g('v_lshlrev_b32 v9, 4, v6')
    g('v_lshl_add_u32 v104, v7, 6, v9')
    g('v_add_u32 v104, s48, v104')
    g(f'v_mov_b32 v103, {sTAG}')
    g('s_mov_b32 s56, 0x00020002')
    g('s_mov_b32 s57, 0x00020002')
    g(f's_cmp_ge_u32 {sWAVE}, 4')
    g('s_cbranch_scc0 L_b1x')
    g(f's_and_b32 s49, {sWAVE}, 3')
    g('s_lshl_b32 s49, s49, 13')
    g(f's_add_u32 s49, s49, {L_TILE}')
    g('v_lshl_add_u32 v12, v7, 8, s49')
    for t in range(4):
        g(f'v_add_u32 v13, {4*t}, v6')
        g('v_xor_b32 v13, v13, v7')
        g('v_lshl_add_u32 v13, v13, 4, v12')
        for tau in range(2):
            g(f'ds_read_b128 v[{64+16*tau+4*t}:{67+16*tau+4*t}], v13 offset:{4096*tau}')
    g('s_waitcnt lgkmcnt(0)')
    g('s_barrier')
    g('s_branch L_b1m')
    g.label('L_b1x')
    g('s_barrier')
    g('s_branch L_b2')
    g.label('L_b1m')
    for t in range(4):
        g(f'ds_read_b128 v[{108+4*t}:{111+4*t}], v9 offset:{L_QB+64*t}')
    for t in range(4):
        g(f's_waitcnt lgkmcnt({3-t})')
        for tau in range(2):
            c = '0' if t == 0 else f'v[{96+8*tau}:{99+8*tau}]' if False else ('0' if t == 0 else f'v[{124+4*tau}:{127+4*tau}]')
            g(f'v_mfma_f32_16x16x32_bf16 v[{124+4*tau}:{127+4*tau}], v[{64+16*tau+4*t}:{67+16*tau+4*t}], v[{108+4*t}:{111+4*t}], {c}')
    g('s_mov_b32 exec_lo, 0x00030003')
    g('s_mov_b32 exec_hi, 0x00030003')
    g.nop(6)
    g('v_cvt_pk_bf16_f32 v96, v124, v125')
    g('v_cvt_pk_bf16_f32 v97, v126, v127')
    g('v_cvt_pk_bf16_f32 v98, v128, v129')
    g('v_cvt_pk_bf16_f32 v99, v130, v131')
    g('v_cndmask_b32 v100, v96, v98, s[56:57]')
    g('v_cndmask_b32 v101, v97, v99, s[56:57]')
    g(f'global_store_dwordx4 v104, v[100:103], {WS} sc1')
    g('s_mov_b64 exec, -1')
    g.stamp(4)
    g.label('L_b2')
    if stop_after in (2, 3, 4):
        g('s_branch L_fin')
    if 'pace' in opts:
        g(f's_cmp_eq_u32 {sWAVE}, 0')
        g('s_cbranch_scc0 L_b2p')
        g('v_lshrrev_b32 v12, 1, v0')
        g('v_lshlrev_b32 v12, 11, v12')
        g('v_and_b32 v13, 1, v0')
        g('v_lshl_add_u32 v12, v13, 10, v12')
        g(f'v_add_u32 v12, {QA + 1008}, v12')
        g('s_mov_b32 s50, 0')
        g.label('L_b2q')
        g(f'global_load_dwordx4 v[16:19], v12, {WS} sc1')
        g('s_add_u32 s50, s50, 1')
        g('s_waitcnt vmcnt(0)')
        g(f'v_cmp_ne_u32 vcc, {sTAG}, v19')
        g('s_cmp_eq_u64 vcc, 0')
        g('s_cbranch_scc1 L_b2p')
        g('s_cmp_lt_u32 s50, 64')
        g('s_cbranch_scc1 L_b2q')
        g.label('L_b2p')
    g('s_barrier')
    g.stamp(5)
    g('v_lshrrev_b32 v8, 3, v7')
    g('v_and_b32 v9, 7, v0')
    g('v_lshl_add_u32 v10, v8, 2, v6')
    g('s_cmp_lt_u32 s54, 5')
    g('s_cbranch_scc1 L_b_wo')
    g('s_sub_u32 s48, s54, 5')
    g('s_lshr_b32 s49, s48, 1')
    g('s_lshl_b32 s49, s49, 3')
    g(f's_add_u32 s49, s49, {sXCD}')
    g('s_cmp_lt_u32 s49, 27')
    g('s_cbranch_scc0 L_fin')
    g('s_lshl_b32 s49, s49, 1')
    g('s_and_b32 s48, s48, 1')
    g('s_add_u32 s58, s49, s48')
    g('s_branch L_b_mlpld')
    g.label('L_b_wo')
    g(f's_lshl_b32 s48, {sXCD}, 3')
    g(f's_add_u32 s48, s48, {sWAVE}')
    g(f's_mul_i32 s48, s48, {64*1280}')
    g('s_lshl_b32 s49, s54, 8')
    g('s_add_u32 s48, s48, s49')
    g.addr('s[40:41]', S_WO, 's48')
    g('v_mul_u32_u24 v11, 1280, v6')
    g('v_lshl_add_u32 v11, v7, 4, v11')
    for t in range(16):
        g(f'global_load_dwordx4 v[{32+4*t}:{35+4*t}], v11, s[40:41] nt')
        if t < 15:
            g('s_add_u32 s40, s40, 5120')
            g('s_addc_u32 s41, s41, 0')
    gen_mask(g, 192, 16, 17)
    g(f's_lshr_b32 s48, {sWAVE}, 1')
    g('s_lshl_b32 s48, s48, 2')
    g(f's_lshl_b32 s49, {sXCD}, 4')
    g('s_add_u32 s48, s48, s49')
    g('s_lshl_b32 s48, s48, 9')
    g(f's_and_b32 s49, {sWAVE}, 1')
    g('s_lshl_b32 s49, s49, 8')
    g('s_add_u32 s48, s48, s49')
    g(f's_add_u32 s48, s48, {C4}')
    g('v_lshlrev_b32 v11, 9, v6')
    g('v_lshl_add_u32 v11, v7, 4, v11')
    g('v_add_u32 v11, s48, v11')
    g('v_lshlrev_b32 v26, 5, v7')
    g('v_lshl_add_u32 v26, v6, 4, v26')
    g(f's_lshl_b32 s48, {sWAVE}, 9')
    g('v_add_u32 v26, s48, v26')
    g('v_lshlrev_b32 v28, 3, v0')
    g(f's_mul_i32 s48, {sXCD}, 2560')
    g('s_lshl_b32 s49, s54, 9')
    g('s_add_u32 s48, s48, s49')
    g(f's_add_u32 s48, s48, {OUTP}')
    g('v_lshrrev_b32 v29, 1, v0')
    g('v_lshl_add_u32 v29, v29, 4, s48')
    g(f'v_mov_b32 v147, {sTAG}')
    g.poll2('c4', [(f'global_load_dwordx4 v[16:19], v11, {WS} sc1', 19, None)], MB, 13, 14)
    g.stamp(6)
    g('v_lshlrev_b32 v20, 16, v16')
    g('v_and_b32 v21, 0xffff0000, v16')
    g('v_lshlrev_b32 v22, 16, v17')
    g('v_and_b32 v23, 0xffff0000, v17')
    g.nop(1)
    g('v_permlane32_swap_b32 v20, v22')
    g('v_permlane32_swap_b32 v21, v23')
    g.nop(1)
    g('v_add_f32 v20, v20, v22')
    g('v_add_f32 v21, v21, v23')
    g.nop(2)
    g('v_permlane16_swap_b32 v20, v21')
    g.nop(1)
    g('v_add_f32 v20, v20, v21')
    g('v_cvt_pk_bf16_f32 v20, v20, v20')
    g.nop(2)

    def wands(t):
        a = 212 + 4 * (t % 2)
        for v in range(4):
            g(f'v_and_b32_dpp v{a+v}, v20, v{192+v} row_newbcast:{t} row_mask:0xf bank_mask:0xf')
    wands(0)
    for t in range(16):
        if t < 15:
            wands(t + 1)
        else:
            g.nop(2)
        a = 212 + 4 * (t % 2)
        c = '0' if t == 0 else 'v[200:203]'
        g(f'v_mfma_f32_16x16x32_bf16 v[200:203], v[{a}:{a+3}], v[{32+4*t}:{35+4*t}], {c}')
    g.set_exec(0xffffffff)
    g.nop(6)
    g(f'ds_write_b128 v26, v[200:203] offset:{L_RED}')
    g('s_mov_b64 exec, -1')
    g('s_waitcnt lgkmcnt(0)')
    g('s_barrier')
    g(f's_cmp_eq_u32 {sWAVE}, 0')
    g('s_cbranch_scc0 L_fin')
    for w in range(8):
        g(f'ds_read_b64 v[{160+2*w}:{161+2*w}], v28 offset:{L_RED+512*w}')
    g('s_waitcnt lgkmcnt(0)')
    g('v_pk_add_f32 v[160:161], v[160:161], v[162:163]')
    g('v_pk_add_f32 v[164:165], v[164:165], v[166:167]')
    g('v_pk_add_f32 v[168:169], v[168:169], v[170:171]')
    g('v_pk_add_f32 v[172:173], v[172:173], v[174:175]')
    g('v_pk_add_f32 v[160:161], v[160:161], v[164:165]')
    g('v_pk_add_f32 v[168:169], v[168:169], v[172:173]')
    g('v_pk_add_f32 v[160:161], v[160:161], v[168:169]')
    g('v_cvt_pk_bf16_f32 v144, v160, v161')
    g.nop(2)
    g('v_mov_b32_dpp v145, v144 row_shl:1 row_mask:0xf bank_mask:0xf')
    g.set_exec(0x5555555555555555)
    g(f'global_store_dwordx4 v29, v[144:147], {WS} sc1')
    g('s_mov_b64 exec, -1')
    g.stamp(7)
    g('s_branch L_fin')

    def gemv(n, src, wbase, d):
        def pm(t):
            a = 212 + 4 * (t % 2)
            for v in range(4):
                g(f'v_perm_b32 v{a+v}, v{src+t//2}, v{src+t//2}, v{192+2*v+(t&1)}')
        pm(0)
        for t in range(n):
            if t + 1 < n:
                pm(t + 1)
            else:
                g.nop(2)
            a = 212 + 4 * (t % 2)
            c = '0' if t == 0 else f'v[{d}:{d+3}]'
            g(f'v_mfma_f32_16x16x32_bf16 v[{d}:{d+3}], v[{a}:{a+3}], v[{wbase+4*t}:{wbase+4*t+3}], {c}')

    g.label('L_b_mlpld')
    if stop_after == 5:
        g('s_branch L_fin')
    gen_sel(g, 192, 16, 17)
    g('v_and_b32 v26, 1, v6')
    g('v_lshlrev_b32 v26, 2, v26')
    g('v_lshl_add_u32 v26, v9, 3, v26')
    g('v_lshrrev_b32 v27, 1, v6')
    g('v_add_u32 v26, v26, v27')
    g('v_lshlrev_b32 v26, 2, v26')
    g(f's_lshl_b32 s48, {sWAVE}, 8')
    g('v_add_u32 v26, s48, v26')
    g('v_cmp_le_u32 vcc, 4, v9')
    g('v_mov_b32 v12, s22')
    g('v_mov_b32 v13, s24')
    g('v_mov_b32 v14, s23')
    g('v_mov_b32 v15, s25')
    g('v_cndmask_b32 v12, v12, v13, vcc')
    g('v_cndmask_b32 v13, v14, v15, vcc')
    g('v_and_b32 v14, 3, v0')
    g('v_lshlrev_b32 v14, 4, v14')
    g('s_lshl_b32 s48, s58, 6')
    g(f's_mul_i32 s49, {sWAVE}, {80*3456}')
    g('s_add_u32 s48, s48, s49')
    g('v_add_u32 v14, s48, v14')
    g(f'v_mul_u32_u24 v15, {8*3456}, v10')
    g('v_add_u32 v15, v15, v14')
    g(f'v_mul_u32_u24 v16, {2*3456}, v10')
    g('v_add_u32 v16, v16, v14')
    g(f'v_add_u32 v16, {64*3456}, v16')
    for t in range(10):
        if t == 0:
            src = 15
        elif t == 8:
            src = 16
        g(f'v_add_co_u32 v18, vcc, v12, v{src}')
        g.nop(2)
        g('v_addc_co_u32 v19, vcc, 0, v13, vcc')
        g(f'global_load_dwordx4 v[{64+4*t}:{67+4*t}], v[18:19], off nt')
        g(f'v_add_u32 v{src}, 3456, v{src}')
    g('s_lshl_b32 s48, s58, 5')
    g(f's_mul_i32 s48, s48, 1280')
    g(f's_lshl_b32 s49, {sWAVE}, 7')
    g('s_add_u32 s48, s48, s49')
    g.addr('s[40:41]', S_WD, 's48')
    g(f'v_mul_u32_u24 v11, {4*1280}, v10')
    g('v_lshl_add_u32 v11, v9, 4, v11')
    for t in range(4):
        g(f'global_load_dwordx4 v[{104+4*t}:{107+4*t}], v11, s[40:41] offset:{1280*t} nt')
    g(f's_cmp_lt_u32 {sWAVE}, 2')
    g('s_cbranch_scc0 L_b_nod2')
    g('s_add_u32 s40, s40, 1024')
    g('s_addc_u32 s41, s41, 0')
    for t in range(4):
        g(f'global_load_dwordx4 v[{120+4*t}:{123+4*t}], v11, s[40:41] offset:{1280*t} nt')
    g.label('L_b_nod2')
    g(f's_lshl_b32 s48, {sWAVE}, 8')
    g('s_min_u32 s48, s48, 1024')
    g('v_and_b32 v17, 31, v0')
    g('v_lshlrev_b32 v17, 3, v17')
    g('v_lshrrev_b32 v29, 5, v0')
    g('v_lshl_add_u32 v17, v29, 2, v17')
    g('v_add_u32 v143, s48, v17')
    g(f'global_load_dword v140, v143, {S_X}')
    g(f'global_load_ushort v141, v1, {S_X}')
    g('s_waitcnt vmcnt(0)')
    g('v_lshlrev_b32 v141, 16, v141')
    g.nop(1)
    g('v_readfirstlane_b32 s53, v141')
    gen_mask(g, 220, 16, 17)
    for v in range(4):
        g(f'v_and_b32 v{220+v}, 0x3f803f80, v{220+v}')
    g.nop(2)
    for t in range(10):
        c = '0' if t == 0 else 'v[200:203]'
        g(f'v_mfma_f32_16x16x32_bf16 v[200:203], v[220:223], v[{64+4*t}:{67+4*t}], {c}')
    g.nop(8)
    class_combine(g, 200)
    g.set_exec(0x00ff00ff00ff00ff)
    g('ds_write2_b32 v26, v200, v202 offset0:0 offset1:2')
    g('s_mov_b64 exec, -1')
    g('s_waitcnt lgkmcnt(0)')
    g('s_barrier')
    g('v_lshlrev_b32 v29, 2, v0')
    for w in range(8):
        g(f'ds_read_b32 v{160+w}, v29 offset:{256*w}')
    g('s_waitcnt lgkmcnt(0)')
    g('v_add_f32 v160, v160, v161')
    g('v_add_f32 v162, v162, v163')
    g('v_add_f32 v164, v164, v165')
    g('v_add_f32 v166, v166, v167')
    g('v_add_f32 v160, v160, v162')
    g('v_add_f32 v164, v164, v166')
    g('v_add_f32 v142, v160, v164')
    g('s_barrier')
    g(f's_mul_i32 s48, {sWAVE}, 160')
    g('v_lshlrev_b32 v27, 4, v10')
    g('v_add_u32 v27, s48, v27')
    g('v_lshlrev_b32 v28, 2, v10')
    g('v_add_u32 v28, s48, v28')
    g('v_lshlrev_b32 v30, 3, v10')
    g('v_and_b32 v31, 31, v0')
    g('v_lshlrev_b32 v31, 1, v31')
    g('v_lshlrev_b32 v14, 6, v9')
    g('v_lshl_add_u32 v14, v6, 4, v14')
    g(f's_mul_i32 s48, s58, 5120')
    g(f's_lshl_b32 s49, {sWAVE}, 9')
    g('s_add_u32 s48, s48, s49')
    g(f's_add_u32 s48, s48, {O2P}')
    g('v_add_u32 v14, s48, v14')
    g(f'v_add_u32 v15, {8*512}, v14')
    g(f'v_mov_b32 v202, {sTAG}')
    g(f's_lshl_b32 s48, {sWAVE}, 3')
    g('v_mov_b32 v144, s48')
    g(f's_cmp_lt_u32 {sWAVE}, 5')
    g('s_cbranch_scc0 L_m_b1')
    g(f's_lshl_b32 s48, {sWAVE}, 9')
    g(f's_add_u32 s48, s48, {OUTP}')
    g('v_lshrrev_b32 v152, 5, v0')
    g('v_mul_u32_u24 v152, 2560, v152')
    g('v_and_b32 v153, 31, v0')
    g('v_lshl_add_u32 v152, v153, 4, v152')
    g('v_add_u32 v152, s48, v152')
    for k in range(1, 4):
        g(f'v_add_u32 v{152+k}, {5120*k}, v152')
    g('v_lshlrev_b32 v148, 16, v140')
    g('v_and_b32 v149, 0xffff0000, v140')
    g.poll2('outp', [(f'global_load_dwordx4 v[{160+4*k}:{163+4*k}], v{152+k}, {WS} sc1', 163 + 4 * k, None) for k in range(4)], MB, 12, 13)
    g.stamp(8)
    for k in range(4):
        g(f'v_lshlrev_b32 v{176+4*k}, 16, v{160+4*k}')
        g(f'v_and_b32 v{177+4*k}, 0xffff0000, v{160+4*k}')
        g(f'v_lshlrev_b32 v{178+4*k}, 16, v{161+4*k}')
        g(f'v_and_b32 v{179+4*k}, 0xffff0000, v{161+4*k}')
        if k == 1:
            g('v_pk_add_f32 v[176:177], v[176:177], v[180:181]')
            g('v_pk_add_f32 v[178:179], v[178:179], v[182:183]')
    g('v_pk_add_f32 v[184:185], v[184:185], v[188:189]')
    g('v_pk_add_f32 v[186:187], v[186:187], v[190:191]')
    g('v_pk_add_f32 v[176:177], v[176:177], v[184:185]')
    g('v_pk_add_f32 v[178:179], v[178:179], v[186:187]')
    g.nop(1)
    g('v_permlane32_swap_b32 v176, v178')
    g('v_permlane32_swap_b32 v177, v179')
    g.nop(1)
    g('v_add_f32 v16, v176, v178')
    g('v_add_f32 v17, v177, v179')
    g('v_cvt_pk_bf16_f32 v16, v16, v17')
    g('v_lshlrev_b32 v18, 16, v16')
    g('v_and_b32 v19, 0xffff0000, v16')
    g('v_pk_add_f32 v[18:19], v[18:19], v[148:149]')
    g('v_cvt_pk_bf16_f32 v16, v18, v19')
    g(f'ds_write_b32 v143, v16 offset:{L_HB}')
    g('v_lshlrev_b32 v18, 16, v16')
    g('v_and_b32 v19, 0xffff0000, v16')
    g('v_subrev_f32 v18, s53, v18')
    g('v_subrev_f32 v19, s53, v19')
    g('v_add_f32 v160, v18, v19')
    g('v_mul_f32 v161, v18, v18')
    g('v_fmac_f32 v161, v19, v19')
    g.wave_reduce([160, 161], [162, 163])
    g('s_mov_b64 exec, 1')
    g(f'ds_write_b64 v144, v[160:161] offset:{L_ST}')
    g('s_mov_b64 exec, -1')
    g('s_waitcnt lgkmcnt(0)')
    g.label('L_m_b1')
    g('s_barrier')
    g.stamp(9)
    g(f'ds_read_b128 v[176:179], v27 offset:{L_HB}')
    g(f'ds_read_b32 v180, v28 offset:{L_HB+128}')
    g(f's_cmp_eq_u32 {sWAVE}, 7')
    g('s_cbranch_scc0 L_m_ns')
    g(f'ds_read_b128 v[160:163], v1 offset:{L_ST}')
    g(f'ds_read_b128 v[164:167], v1 offset:{L_ST+16}')
    g(f'ds_read_b64 v[168:169], v1 offset:{L_ST+32}')
    g('s_waitcnt lgkmcnt(0)')
    g('v_pk_add_f32 v[160:161], v[160:161], v[162:163]')
    g('v_pk_add_f32 v[164:165], v[164:165], v[166:167]')
    g('v_pk_add_f32 v[160:161], v[160:161], v[168:169]')
    g('v_pk_add_f32 v[160:161], v[160:161], v[164:165]')
    ln_scalars(g, 160, 161, 's53', 170, 171, 172)
    g('v_mul_f32 v170, v170, v142')
    g.label('L_m_ns')
    g('s_waitcnt lgkmcnt(0)')
    gemv(10, 176, 64, 208)
    g.nop(8)
    class_combine(g, 208)
    g.set_exec(0x00ff00ff00ff00ff)
    g('ds_write2_b32 v26, v208, v210 offset0:0 offset1:2')
    g('s_mov_b64 exec, -1')
    g('s_waitcnt lgkmcnt(0)')
    g('s_barrier')
    g.stamp(10)
    g(f's_cmp_eq_u32 {sWAVE}, 7')
    g('s_cbranch_scc0 L_m_b3')
    for w in range(8):
        g(f'ds_read_b32 v{160+w}, v29 offset:{256*w}')
    g('s_waitcnt lgkmcnt(0)')
    g('v_pk_add_f32 v[160:161], v[160:161], v[162:163]')
    g('v_pk_add_f32 v[164:165], v[164:165], v[166:167]')
    g('v_pk_add_f32 v[160:161], v[160:161], v[164:165]')
    g('v_add_f32 v16, v160, v161')
    g('v_sub_f32 v16, v16, v170')
    g('v_mul_f32 v16, v16, v171')
    rnd_bf16(g, 16)
    g('v_mov_b32 v17, v16')
    g.nop(2)
    g('v_permlane32_swap_b32 v16, v17')
    g.nop(1)
    g('v_max_f32 v16, 0, v16')
    g('v_mul_f32 v16, v16, v17')
    g('v_cvt_pk_bf16_f32 v16, v16, v16')
    g(f'ds_write_b16 v31, v16 offset:{L_CB}')
    g('s_waitcnt lgkmcnt(0)')
    g.label('L_m_b3')
    g('s_barrier')
    g(f'ds_read_b64 v[16:17], v30 offset:{L_CB}')
    g('s_waitcnt lgkmcnt(0)')
    g.stamp(11)

    def down(base, vo):
        gemv(4, 16, base, 204)
        g.nop(8)
        class_combine(g, 204, out2=205)
        g.set_exec(0x00ff00ff00ff00ff)
        g(f'global_store_dwordx4 v{vo}, v[202:205], {WS} sc1')
        g('s_mov_b64 exec, -1')
    down(104, 14)
    g(f's_cmp_lt_u32 {sWAVE}, 2')
    g('s_cbranch_scc0 L_m_done')
    down(120, 15)
    g.label('L_m_done')

    g.label('L_fin')
    g.stamp(15)
    g.stamp_flush()
    g.label('L_end')
    g('s_endpgm')
    body = g.text()

    hdr = open('cdna_kernels/' + KN[:-7] + '.s.ref').read().split('\n')
    head = []
    for line in hdr:
        if line.startswith('; @launch'):
            head.append(f'; @launch grid=(256,1,1) block=(512,1,1) lds={LDS_BYTES}')
        elif line.startswith(';'):
            head.append(line)
        else:
            break
    out = '\n'.join(head) + '\n'
    out += '.amdgcn_target "amdgcn-amd-amdhsa--gfx950"\n.text\n'
    out += f'.globl {KN}\n.p2align 8\n.type {KN},@function\n{KN}:\n'
    out += body
    out += f'''.section .rodata,"a"
.p2align 6
.amdhsa_kernel {KN}
  .amdhsa_next_free_vgpr 256
  .amdhsa_next_free_sgpr 102
  .amdhsa_accum_offset 256
  .amdhsa_group_segment_fixed_size 0
  .amdhsa_kernarg_size 104
  .amdhsa_user_sgpr_count 2
  .amdhsa_user_sgpr_kernarg_segment_ptr 1
  .amdhsa_system_sgpr_workgroup_id_x 1
.end_amdhsa_kernel
'''
    return out


if __name__ == '__main__':
    import argparse
    ap = argparse.ArgumentParser()
    ap.add_argument('-o', default='k.s')
    ap.add_argument('--stamps', action='store_true')
    ap.add_argument('--stop', type=int, default=None)
    ap.add_argument('--opts', default='')
    a = ap.parse_args()
    open(a.o, 'w').write(build(a.stamps, a.stop, tuple(a.opts.split(','))))
```

```python
import sys, struct

KN = 'sequential_preLN__compressed_kv_cla__glu_gated_reglu__decode_kernel'

EPOCH = 0
XID = 0x1000
Q1L = 0x10000
Q1G = 0x50000
QA = 0x90000
MLL = 0xA0000
C4 = 0xA8000
MLX = 0xC8000
OUTP = 0xE8000
O2P = 0x100000
OX = 0x180000
OPL = 0x200000
STAMPS = 0x800000

L_XN = 0
L_QB = 256
L_MB = 512
L_LB = 768
L_PB = 1024
L_RED = 3072
L_CB = 7168
L_HB = 8192
L_ST = 9472
L_MODE = 9728
L_TAG = 9732
L_QL = 10240
L_TILE = 26624
LDS_BYTES = 92160

S_X, S_CKV, S_WQ, S_WUK, S_WUV, S_WO, S_WG, S_WU, S_WD, S_OUT, S_DBG, S_WS = (
    's[8:9]', 's[10:11]', 's[12:13]', 's[14:15]', 's[16:17]', 's[18:19]', 's[22:23]', 's[24:25]', 's[26:27]',
    's[28:29]', 's[30:31]', 's[32:33]')
sXCD, sR, sWAVE, sH, sJ, sTAG = 's34', 's35', 's36', 's37', 's38', 's39'
POLL_LIMIT = 1 << 17


def f2u(x):
    return struct.unpack('<I', struct.pack('<f', x))[0]


class Gen:
    def __init__(s, stamps=False, stop_after=None):
        s.L = []
        s.n = 0
        s.stamps = stamps
        s.stop_after = stop_after
        s.nstamp = 0

    def __call__(s, txt):
        for line in txt.strip('\n').split('\n'):
            line = line.strip()
            if line:
                s.L.append('    ' + line)

    def label(s, name):
        s.L.append(name + ':')

    def uniq(s, base):
        s.n += 1
        return f'{base}_{s.n}'

    def nop(s, n):
        while n > 0:
            k = min(n, 16)
            s(f's_nop {k-1}')
            n -= k

    def stamp(s, idx):
        if s.stamps:
            s(f's_memrealtime s[{64+2*idx}:{65+2*idx}]')

    def stamp_flush(s, nst=16):
        if not s.stamps:
            return
        s('s_waitcnt lgkmcnt(0)')
        s('s_mov_b64 exec, 1')
        s(f's_lshl_b32 s48, s2, 3')
        s(f's_add_u32 s48, s48, {sWAVE}')
        s(f's_lshl_b32 s48, s48, 7')
        s(f's_add_u32 s48, s48, {STAMPS}')
        s('v_mov_b32 v1, s48')
        for i in range(nst):
            s(f'v_mov_b32 v2, s{64+2*i}')
            s(f'v_mov_b32 v3, s{65+2*i}')
            s(f'global_store_dwordx2 v1, v[2:3], {S_WS} offset:{8*i}')
            s('s_nop 1')
        s('s_waitcnt vmcnt(0)')

    def addr(s, dst, src, off):
        d = int(dst[2:].split(':')[0]); sr = int(src[2:].split(':')[0])
        s(f's_add_u32 s{d}, s{sr}, {off}')
        s(f's_addc_u32 s{d+1}, s{sr+1}, 0')

    def set_exec(s, mask):
        if mask == (1 << 64) - 1:
            s('s_mov_b64 exec, -1')
        else:
            s(f's_mov_b32 exec_lo, {mask & 0xffffffff:#x}')
            s(f's_mov_b32 exec_hi, {mask >> 32:#x}')

    def wave_reduce(s, regs, tmps, op='add'):
        ins = {'add': 'v_add_f32', 'max': 'v_max_f32'}[op]
        n = len(regs)
        pad = max(0, 2 - (n - 1))
        s.nop(2)
        for ctl in ['quad_perm:[1,0,3,2]', 'quad_perm:[2,3,0,1]', 'row_half_mirror', 'row_mirror']:
            for r in regs:
                s(f'{ins}_dpp v{r}, v{r}, v{r} {ctl} row_mask:0xf bank_mask:0xf')
            s.nop(pad)
        s.row_reduce(regs, tmps, op)

    def row_reduce(s, regs, tmps, op='add'):
        ins = {'add': 'v_add_f32', 'max': 'v_max_f32'}[op]
        n = len(regs)
        for sw in ['v_permlane16_swap_b32', 'v_permlane32_swap_b32']:
            for r, t in zip(regs, tmps):
                s(f'v_mov_b32 v{t}, v{r}')
            s.nop(max(0, 2 - (n - 1)))
            for r, t in zip(regs, tmps):
                s(f'{sw} v{t}, v{r}')
            s.nop(1 if n == 1 else 0)
            for r, t in zip(regs, tmps):
                s(f'{ins} v{r}, v{r}, v{t}')
            s.nop(0)

    def check_tags(s, regs, t0, t1, done_label):
        tags = []
        for r in regs:
            tags += [r + 1, r + 3]
        if len(tags) == 2:
            s(f'v_cmp_eq_u32 vcc, {sTAG}, v{tags[0]}')
            s(f'v_cmp_eq_u32 s[46:47], {sTAG}, v{tags[1]}')
        else:
            s(f'v_min3_u32 v{t0}, v{tags[0]}, v{tags[1]}, v{tags[2]}')
            s(f'v_max3_u32 v{t1}, v{tags[0]}, v{tags[1]}, v{tags[2]}')
            rest = tags[3:]
            while rest:
                if len(rest) >= 2:
                    s(f'v_min3_u32 v{t0}, v{t0}, v{rest[0]}, v{rest[1]}')
                    s(f'v_max3_u32 v{t1}, v{t1}, v{rest[0]}, v{rest[1]}')
                    rest = rest[2:]
                else:
                    s(f'v_min_u32 v{t0}, v{t0}, v{rest[0]}')
                    s(f'v_max_u32 v{t1}, v{t1}, v{rest[0]}')
                    rest = rest[1:]
            s(f'v_cmp_eq_u32 vcc, {sTAG}, v{t0}')
            s(f'v_cmp_eq_u32 s[46:47], {sTAG}, v{t1}')
        s('s_and_b64 vcc, vcc, s[46:47]')
        s('s_cmp_eq_u64 vcc, exec')
        s(f's_cbranch_scc1 {done_label}')

    def poll(s, name, emit_loads, regs, t0, t1, first_hook=None, alt=None):
        top = s.uniq(name + '_top'); done = s.uniq(name + '_done'); fail = s.uniq(name + '_fail')
        s(f's_mov_b32 s50, 0')
        if first_hook is not None:
            emit_loads(alt[0] if alt else None)
            first_hook()
            s('s_waitcnt vmcnt(0)')
            s.check_tags(regs, t0, t1, done)
        s.label(top)
        if alt:
            s('s_add_u32 s50, s50, 1')
            s('s_and_b32 s51, s50, 7')
            s('s_cmp_eq_u32 s51, 0')
            s(f's_cselect_b64 s[44:45], {alt[1]}, {alt[0]}')
            emit_loads('s[44:45]')
        else:
            s('s_add_u32 s50, s50, 1')
            emit_loads(None)
        s('s_waitcnt vmcnt(0)')
        s.check_tags(regs, t0, t1, done)
        s(f's_cmp_lt_u32 s50, {POLL_LIMIT}')
        s(f's_cbranch_scc1 {top}')
        s(f's_mov_b64 s[46:47], exec')
        s('s_mov_b64 exec, 1')
        s(f'v_mov_b32 v{t0}, {4*(s.n % 60)}')
        s(f'v_mov_b32 v{t1}, {0x1000 + s.n}')
        s(f'global_store_dword v{t0}, v{t1}, {S_DBG}')
        s(f's_mov_b64 exec, s[46:47]')
        s.label(done)

    def poll2(s, name, loads, masks, t0, t1, alt=None):
        top = s.uniq(name + '_top'); done = s.uniq(name + '_done')
        n = len(loads)
        assert len(masks) >= n
        s('s_mov_b32 s50, 0')
        for ins, tg, em in loads:
            if em is not None:
                s.set_exec(em)
            s(ins.format(base=alt[0] if alt else None))
            if em is not None:
                s('s_mov_b64 exec, -1')
        s.label(top)
        s('s_waitcnt vmcnt(0)')
        for k, (ins, tg, em) in enumerate(loads):
            s(f'v_cmp_ne_u32 {masks[k]}, {sTAG}, v{tg}')
        if n == 1:
            s(f's_cmp_eq_u64 {masks[0]}, 0')
            s(f's_cbranch_scc1 {done}')
        else:
            s(f's_or_b64 s[46:47], {masks[0]}, {masks[1]}')
            for k in range(2, n):
                s(f's_or_b64 s[46:47], s[46:47], {masks[k]}')
            s(f's_cbranch_scc0 {done}')
        s('s_add_u32 s50, s50, 1')
        if alt:
            s('s_and_b32 s51, s50, 7')
            s('s_cmp_eq_u32 s51, 0')
            s(f's_cselect_b64 s[44:45], {alt[1]}, {alt[0]}')
        for k, (ins, tg, em) in enumerate(loads):
            s(f's_mov_b64 exec, {masks[k]}')
            if n > 1:
                sk = s.uniq(name + '_sk')
                s(f's_cbranch_execz {sk}')
            s(ins.format(base='s[44:45]' if alt else None))
            if n > 1:
                s.label(sk)
        s('s_mov_b64 exec, -1')
        s(f's_cmp_lt_u32 s50, {POLL_LIMIT}')
        s(f's_cbranch_scc1 {top}')
        s('s_waitcnt vmcnt(0)')
        s('s_mov_b64 exec, 1')
        s(f'v_mov_b32 v{t0}, {4*(s.n % 60)}')
        s(f'v_mov_b32 v{t1}, {0x1000 + s.n}')
        s(f'global_store_dword v{t0}, v{t1}, {S_DBG}')
        s('s_mov_b64 exec, -1')
        s.label(done)

    def text(s):
        return '\n'.join(s.L) + '\n'


KAPPA = (128 ** -0.5) * 1.4426950408889634


def gen_sel(g, base, t0, t1):
    g(f'v_and_b32 v{t0}, 7, v0')
    g(f'v_and_b32 v{t1}, 1, v0')
    for par in range(2):
        lo = 0x0c0c0000 | ((2 * par + 1) << 8) | (2 * par)
        hi = ((2 * par + 1) << 24) | ((2 * par) << 16) | 0x0c0c
        g(f'v_cmp_eq_u32 vcc, 1, v{t1}')
        g(f'v_mov_b32 v{base+par}, {lo:#x}')
        g(f'v_mov_b32 v{base+2+par}, {hi:#x}')
        g(f'v_cndmask_b32 v{base+par}, v{base+par}, v{base+2+par}, vcc')
    g(f'v_lshrrev_b32 v{t0}, 1, v{t0}')
    g(f'v_mov_b32 v{t1}, 0x0c0c0c0c')
    for v in [3, 2, 1, 0]:
        g(f'v_cmp_eq_u32 vcc, {v}, v{t0}')
        g.nop(1)
        for par in range(2):
            g(f'v_cndmask_b32 v{base+2*v+par}, v{t1}, v{base+par}, vcc')


def gen_mask(g, base, t0, t1):
    g(f'v_and_b32 v{t0}, 7, v0')
    g(f'v_and_b32 v{t1}, 1, v0')
    g(f'v_cmp_eq_u32 vcc, 1, v{t1}')
    g(f'v_mov_b32 v{base}, 0xffff')
    g(f'v_mov_b32 v{base+1}, 0xffff0000')
    g(f'v_cndmask_b32 v{t1}, v{base}, v{base+1}, vcc')
    g(f'v_lshrrev_b32 v{t0}, 1, v{t0}')
    for v in range(4):
        g(f'v_cmp_eq_u32 vcc, {v}, v{t0}')
        g.nop(1)
        g(f'v_cndmask_b32 v{base+v}, 0, v{t1}, vcc')


def get_tag(g, vreg):
    g.nop(1)
    g(f'v_readfirstlane_b32 {sTAG}, v{vreg}')
    g.nop(4)
    g(f's_mul_i32 {sTAG}, {sTAG}, 5')
    g(f's_add_u32 {sTAG}, {sTAG}, 0x9E3779B9')


def rnd_bf16(g, r):
    g(f'v_cvt_pk_bf16_f32 v{r}, v{r}, v{r}')
    g(f'v_and_b32 v{r}, 0xffff0000, v{r}')


def ln_scalars(g, s1, s2, piv_sgpr, vm, vrs, t0):
    g(f's_mov_b32 s52, {f2u(1.0/640):#x}')
    g(f'v_mul_f32 v{s1}, s52, v{s1}')
    g(f'v_mul_f32 v{s2}, s52, v{s2}')
    g(f'v_fma_f32 v{s2}, -v{s1}, v{s1}, v{s2}')
    g(f'v_max_f32 v{s2}, 0, v{s2}')
    g(f'v_add_f32 v{vm}, {piv_sgpr}, v{s1}')
    rnd_bf16(g, vm)
    rnd_bf16(g, s2)
    g(f'v_add_f32 v{s2}, 0x3727c5ac, v{s2}')
    rnd_bf16(g, s2)
    g(f'v_sqrt_f32 v{s2}, v{s2}')
    g.nop(1)
    rnd_bf16(g, s2)
    g(f'v_rcp_f32 v{vrs}, v{s2}')
    g.nop(1)


def class_combine(g, d, out2=None):
    if out2 is None:
        out2 = d + 2
    for k in range(4):
        g(f'v_mov_b32_dpp v{d+k}, v{d+k} row_ror:8 row_mask:0xc bank_mask:0xf')
    g.nop(1)
    g(f'v_permlane32_swap_b32 v{d}, v{d+1}')
    g(f'v_permlane32_swap_b32 v{d+2}, v{d+3}')
    g.nop(1)
    g(f'v_add_f32 v{d}, v{d}, v{d+1}')
    g(f'v_add_f32 v{out2}, v{d+2}, v{d+3}')


def mode_store(g, ins_no_flag, smode):
    a = g.uniq('ms_fast'); b = g.uniq('ms_done')
    g(f's_cmp_eq_u32 {smode}, 1')
    g(f's_cbranch_scc1 {a}')
    for ins in ins_no_flag:
        g(ins + ' sc1')
    g(f's_branch {b}')
    g.label(a)
    for ins in ins_no_flag:
        g(ins)
    g.label(b)


def own_tag(g, vreg):
    g(f'v_readfirstlane_b32 {sTAG}, v{vreg}')
    g.nop(4)
    g(f's_mul_i32 {sTAG}, {sTAG}, 5')
    g(f's_add_u32 {sTAG}, {sTAG}, 0x9E3779B9')


MA = ['s[10:11]', 's[12:13]', 's[14:15]', 's[18:19]', 's[20:21]', 's[22:23]', 's[24:25]', 's[26:27]']
MQ = ['s[10:11]', 's[12:13]', 's[14:15]', 's[16:17]', 's[20:21]', 's[96:97]', 's[98:99]', 's[100:101]']
MB = ['s[10:11]', 's[12:13]', 's[14:15]', 's[16:17]', 's[18:19]', 's[20:21]', 's[22:23]', 's[24:25]']


def build(stamps=False, stop_after=None, opts=()):
    g = Gen(stamps, stop_after)
    sMODE = 's59'
    WS = S_WS
    g('s_cmp_ge_u32 s2, 256')
    g('s_cbranch_scc1 L_end')
    g('s_load_dwordx16 s[8:23], s[0:1], 0')
    g('s_load_dwordx8 s[24:31], s[0:1], 64')
    g('s_load_dwordx2 s[32:33], s[0:1], 96')
    g('s_getpc_b64 s[42:43]')
    g('v_lshlrev_b32 v1, 4, v0')
    g('global_load_dwordx4 v[232:235], v1, s[42:43]')
    g.stamp(0)
    g('v_lshrrev_b32 v1, 6, v0')
    g('v_and_b32 v0, 63, v0')
    g(f'v_readfirstlane_b32 {sWAVE}, v1')
    g(f's_and_b32 {sXCD}, s2, 7')
    g(f's_lshr_b32 {sR}, s2, 3')
    g(f's_lshr_b32 {sH}, {sR}, 3')
    g(f's_lshl_b32 s48, {sXCD}, 2')
    g(f's_add_u32 {sH}, {sH}, s48')
    g(f's_and_b32 {sJ}, {sR}, 7')
    g('v_mov_b32 v1, 0')
    g('v_lshlrev_b32 v3, 4, v0')
    g('v_and_b32 v7, 15, v0')
    g('v_lshrrev_b32 v6, 4, v0')
    g(f's_cmp_eq_u32 {sWAVE}, 1')
    g('s_cbranch_scc1 L_w1')
    g(f's_cmp_eq_u32 {sWAVE}, 0')
    g('s_cbranch_scc1 L_w0')

    def pre():
        g(f's_and_b32 s55, {sR}, 1')
        g(f's_lshr_b32 s56, {sR}, 1')
        g('v_and_b32 v8, 7, v0')
        g('v_lshlrev_b32 v8, 1, v8')
        g(f's_lshl_b32 s48, {sWAVE}, 14')
        g(f's_add_u32 s48, s48, {L_TILE}')
        for tl in range(4):
            g(f'v_add_u32 v9, {4*tl}, v6')
            g('v_xor_b32 v9, v9, v8')
            g('v_lshlrev_b32 v9, 4, v9')
            g(f'v_lshl_add_u32 v{32+tl}, v7, 10, v9')
            g(f'v_add_u32 v{36+tl}, s48, v{32+tl}')
        g('v_lshrrev_b32 v9, 2, v0')
        g('v_and_b32 v10, 7, v9')
        g('v_lshlrev_b32 v9, 10, v9')
        g('v_and_b32 v11, 3, v0')
        g('v_lshl_add_u32 v9, v11, 3, v9')
        g(f's_lshr_b32 s48, {sWAVE}, 1')
        g('s_lshl_b32 s48, s48, 8')
        g(f's_add_u32 s48, s48, {L_TILE}')
        g('v_add_u32 v9, s48, v9')
        g(f's_and_b32 s48, {sWAVE}, 1')
        g('s_lshl_b32 s48, s48, 2')
        for nn in range(4):
            g(f's_add_u32 s49, s48, {nn}')
            g('v_xor_b32 v11, s49, v10')
            g(f'v_lshl_add_u32 v{40+nn}, v11, 5, v9')
        g('v_lshrrev_b32 v9, 1, v0')
        g('v_and_b32 v10, 1, v0')
        g('v_lshlrev_b32 v10, 3, v10')
        for ih in range(2):
            g(f's_lshl_b32 s48, {sWAVE}, 1')
            g(f's_add_u32 s48, s48, {ih}')
            g('s_and_b32 s49, s48, 7')
            g('s_lshl_b32 s49, s49, 1')
            g('v_xor_b32 v11, s49, v9')
            g('v_lshl_add_u32 v11, v11, 4, v10')
            g('s_lshl_b32 s48, s48, 10')
            g(f's_add_u32 s48, s48, {L_QL}')
            g(f'v_add_u32 v{44+ih}, s48, v11')
        gen_mask(g, 240, 9, 10)
        g('v_lshlrev_b32 v46, 4, v7')
        g(f's_lshl_b32 s48, {sWAVE}, 2')
        g('v_add_u32 v47, s48, v46')
        g('v_lshlrev_b32 v57, 3, v0')
        g(f's_lshl_b32 s48, {sWAVE}, 9')
        g('v_add_u32 v56, s48, v57')
        g('s_lshl_b32 s48, s55, 15')
        g(f's_lshl_b32 s49, {sWAVE}, 12')
        g('s_add_u32 s48, s48, s49')
        g(f's_add_u32 s48, s48, {QA}')
        g('v_add_u32 v248, s48, v3')
        g(f's_lshl_b32 s48, {sXCD}, 19')
        g('s_lshl_b32 s49, s55, 18')
        g('s_add_u32 s48, s48, s49')
        g('s_lshl_b32 s49, s56, 15')
        g('s_add_u32 s48, s48, s49')
        g(f's_lshl_b32 s49, {sWAVE}, 12')
        g('s_add_u32 s48, s48, s49')
        g(f's_add_u32 s48, s48, {OPL}')
        g('v_add_u32 v58, s48, v3')
        g(f's_lshl_b32 s48, {sXCD}, 12')
        g('s_lshl_b32 s49, s55, 11')
        g('s_add_u32 s48, s48, s49')
        g('s_lshl_b32 s49, s56, 8')
        g('s_add_u32 s48, s48, s49')
        g(f's_add_u32 s48, s48, {MLL}')
        g('v_add_u32 v249, s48, v3')
        g(f's_lshr_b32 s60, {sR}, 3')
        g(f's_and_b32 s58, {sR}, 7')
        g(f's_and_b32 s57, {sWAVE}, 3')
        g(f's_lshl_b32 s48, {sXCD}, 12')
        g('s_lshl_b32 s49, s60, 11')
        g('s_add_u32 s48, s48, s49')
        g(f's_add_u32 s48, s48, {MLL}')
        g('v_add_u32 v59, s48, v3')
        g('v_lshlrev_b32 v61, 5, v7')
        g(f'v_add_u32 v61, {L_RED}, v61')
        g('v_lshl_add_u32 v60, v6, 2, v61')
        g(f's_lshl_b32 s48, {sXCD}, 19')
        g('s_lshl_b32 s49, s60, 18')
        g('s_add_u32 s48, s48, s49')
        g('s_lshl_b32 s49, s58, 12')
        g('s_add_u32 s48, s48, s49')
        g('s_lshl_b32 s49, s57, 10')
        g('s_add_u32 s48, s48, s49')
        g(f's_add_u32 s48, s48, {OPL}')
        g('v_add_u32 v224, s48, v3')
        for k in range(1, 8):
            g(f'v_add_u32 v{224+k}, {32768*k}, v224')
        g(f's_lshl_b32 s48, {sXCD}, 16')
        g('s_lshl_b32 s49, s60, 15')
        g('s_add_u32 s48, s48, s49')
        g('s_lshl_b32 s49, s58, 12')
        g('s_add_u32 s48, s48, s49')
        g('s_lshl_b32 s49, s57, 10')
        g('s_add_u32 s48, s48, s49')
        g(f's_add_u32 s48, s48, {OX}')
        g('v_lshlrev_b32 v244, 6, v7')
        g('v_lshl_add_u32 v244, v6, 4, v244')
        g('v_add_u32 v244, s48, v244')
        g(f's_lshl_b32 s48, {sXCD}, 9')
        g('s_lshl_b32 s49, s60, 8')
        g('s_add_u32 s48, s48, s49')
        g(f's_add_u32 s48, s48, {MLX}')
        g('v_add_u32 v250, s48, v3')
        g(f's_lshr_b32 s48, {sR}, 2')
        g(f's_lshl_b32 s49, {sXCD}, 2')
        g('s_add_u32 s61, s48, s49')
        g(f's_and_b32 s62, {sR}, 3')
        g('v_bfe_u32 v13, v0, 2, 3')
        g('s_lshr_b32 s48, s61, 4')
        g('s_lshl_b32 s48, s48, 5')
        g('s_lshl_b32 s49, s62, 3')
        g('s_add_u32 s48, s48, s49')
        g(f's_add_u32 s48, s48, {sWAVE}')
        g('s_lshl_b32 s48, s48, 10')
        g('s_and_b32 s49, s61, 15')
        g('s_lshl_b32 s49, s49, 6')
        g('s_add_u32 s48, s48, s49')
        g(f's_add_u32 s48, s48, {OX}')
        g('v_lshlrev_b32 v14, 16, v13')
        g('v_and_b32 v12, 3, v0')
        g('v_lshl_add_u32 v14, v12, 4, v14')
        g('v_add_u32 v245, s48, v14')
        g('s_lshl_b32 s48, s61, 4')
        g(f's_add_u32 s48, s48, {MLX}')
        g('v_lshlrev_b32 v14, 9, v13')
        g('v_add_u32 v14, s48, v14')
        g('v_cmp_le_u32 vcc, 32, v0')
        g.nop(1)
        g('v_cndmask_b32 v245, v245, v14, vcc')
        g('v_lshlrev_b32 v247, 5, v7')
        g('v_lshl_add_u32 v247, v6, 4, v247')
        g(f's_lshl_b32 s48, {sWAVE}, 9')
        g('v_add_u32 v247, s48, v247')
        g(f's_lshl_b32 s48, {sXCD}, 4')
        g(f's_add_u32 s48, s48, {sR}')
        g('s_lshl_b32 s48, s48, 9')
        g(f's_add_u32 s48, s48, {C4}')
        g('v_lshrrev_b32 v253, 1, v0')
        g('v_lshl_add_u32 v253, v253, 4, s48')
        g('s_lshl_b32 s48, s61, 8')
        g('s_lshl_b32 s49, s62, 3')
        g(f's_add_u32 s49, s49, {sWAVE}')
        g('s_lshl_b32 s49, s49, 17')
        g('s_add_u32 s48, s48, s49')
        g('s_waitcnt lgkmcnt(0)')
        g.addr('s[62:63]' if False else 's[96:97]', S_WUV, 's48')
        g('v_lshlrev_b32 v254, 13, v6')
        g('v_lshl_add_u32 v254, v7, 4, v254')

    def dma(wsel=None):
        g(f's_lshr_b32 s56, {sR}, 1')
        g(f's_lshl_b32 s57, {sXCD}, 3')
        g('s_add_u32 s57, s57, s56')
        g('s_lshl_b32 s48, s57, 6')
        if 'rot' in opts:
            g(f's_and_b32 s49, {sR}, 1')
            g('s_lshl_b32 s49, s49, 2')
            g(f's_add_u32 s49, s49, {wsel or sWAVE}')
            g('s_and_b32 s49, s49, 7')
            g('s_lshl_b32 s49, s49, 3')
        else:
            g(f's_lshl_b32 s49, {wsel or sWAVE}, 3')
        g('s_add_u32 s48, s48, s49')
        g('s_lshl_b32 s48, s48, 10')
        g.addr('s[40:41]', S_CKV, 's48')
        g('s_lshl_b32 s49, s49, 10')
        g(f's_add_u32 s49, s49, {L_TILE}')
        g('s_mov_b32 m0, s49')
        for i in range(8):
            if i == 4:
                g('s_add_u32 s49, s49, 4096')
                g('s_mov_b32 m0, s49')
                g('s_add_u32 s40, s40, 4096')
                g('s_addc_u32 s41, s41, 0')
            g(f'v_xor_b32 v4, {32*i}, v3')
            g(f'global_load_lds_dwordx4 v4, s[40:41] offset:{1024*(i%4)}' + ('' if 'ckvnont' in opts else ' nt'))

    def wuk_dma():
        g(f's_sub_u32 s54, {sR}, 16')
        g('s_lshr_b32 s48, s54, 2')
        g(f's_lshl_b32 s49, {sXCD}, 2')
        g('s_add_u32 s48, s48, s49')
        g('s_lshl_b32 s48, s48, 8')
        g('s_and_b32 s49, s54, 3')
        g('s_lshl_b32 s49, s49, 2')
        g(f's_add_u32 s49, s49, {sWAVE}')
        g('s_sub_u32 s49, s49, 4')
        g('s_lshl_b32 s49, s49, 18')
        g('s_add_u32 s48, s48, s49')
        g.addr('s[40:41]', S_WUK, 's48')
        g('v_xor_b32 v8, v7, v6')
        g('v_lshlrev_b32 v8, 4, v8')
        g('v_lshl_add_u32 v8, v6, 13, v8')
        for n in range(1, 4):
            g(f'v_xor_b32 v{8+n}, {64*n}, v8')
        g(f's_and_b32 s49, {sWAVE}, 3')
        g('s_lshl_b32 s49, s49, 13')
        g(f's_add_u32 m0, s49, {L_TILE}')
        g.nop(1)
        for n in range(8):
            g(f'global_load_lds_dwordx4 v{8+(n&3)}, s[40:41] nt')
            if n < 7:
                g('s_add_u32 m0, m0, 1024')
                g('s_add_u32 s40, s40, 32768')
                g('s_addc_u32 s41, s41, 0')

    g('s_waitcnt lgkmcnt(0)')
    if 'bq' in opts:
        g('s_barrier')
    g(f's_cmp_ge_u32 {sWAVE}, 4')
    g('s_cbranch_scc0 L_e_nb')
    g(f's_cmp_ge_u32 {sR}, 16')
    g('s_cbranch_scc1 L_e_b')
    if 'fulldma' in opts:
        g(f's_sub_u32 s58, {sWAVE}, 4')
        dma('s58')
    if 'halfdma' in opts or 'fulldma' in opts:
        dma()
    g('s_branch L_e_nb')
    g.label('L_e_b')
    if 'wukb0' not in opts:
        wuk_dma()
    g.label('L_e_nb')
    g('s_waitcnt lgkmcnt(0)')
    g(f'global_load_dword v2, v1, {WS} sc1')
    g(f's_cmp_eq_u32 {sWAVE}, 3')
    g('s_cbranch_scc0 L_nw7')
    g(f's_and_b32 s48, {sR}, 7')
    g('s_lshl_b32 s48, s48, 10')
    g('s_add_u32 s48, s48, 8192')
    g(f's_min_u32 s48, s48, L_end-{KN}-1088')
    g('s_add_u32 s42, s42, s48')
    g('s_addc_u32 s43, s43, 0')
    g('global_load_dwordx4 v[236:239], v3, s[42:43]')
    g.label('L_nw7')
    g(f's_cmp_ge_u32 {sR}, 16')
    g('s_cbranch_scc0 L_pre')
    g.label('L_e_tag')
    g(f's_cmp_eq_u32 {sWAVE}, 2')
    g('s_cbranch_scc0 L_b0')
    g('s_waitcnt vmcnt(0)')
    own_tag(g, 2)
    g('s_getreg_b32 s48, hwreg(HW_REG_XCC_ID)')
    g('s_and_b32 s48, s48, 0xf')
    g('v_mov_b32 v12, s48')
    g(f'v_mov_b32 v15, {sTAG}')
    g(f's_lshl_b32 s48, {sXCD}, 5')
    g(f's_add_u32 s48, s48, {sR}')
    g('s_lshl_b32 s48, s48, 4')
    g(f's_add_u32 s48, s48, {XID}')
    g('v_mov_b32 v16, s48')
    g('s_mov_b64 exec, 1')
    g(f'global_store_dwordx4 v16, v[12:15], {WS} sc1')
    g('s_mov_b64 exec, -1')
    g('s_branch L_b0')

    g.label('L_w0')
    g('v_lshlrev_b32 v4, 2, v0')
    g('v_min_u32 v5, 39, v0')
    g('v_lshlrev_b32 v5, 2, v5')
    g(f's_mul_i32 s48, {sJ}, 160')
    g('v_add_u32 v5, s48, v5')
    g('s_waitcnt lgkmcnt(0)')
    for k in range(5):
        g(f'global_load_dword v{10+k}, v4, {S_X} offset:{256*k}')
    g(f'global_load_dword v15, v5, {S_X}')
    g(f'global_load_dword v2, v1, {WS} sc1')
    g(f's_mov_b32 s52, {f2u(1.0/640):#x}')
    if 'bq' in opts:
        g('s_barrier')
    g('s_waitcnt vmcnt(2)')
    g.stamp(1)
    for k in range(5):
        g(f'v_lshlrev_b32 v{16+2*k}, 16, v{10+k}')
        g(f'v_and_b32 v{17+2*k}, 0xffff0000, v{10+k}')
    g('v_readfirstlane_b32 s53, v16')
    g.nop(4)
    for k in range(10):
        g(f'v_subrev_f32 v{16+k}, s53, v{16+k}')
    g('v_pk_mul_f32 v[26:27], v[16:17], v[16:17]')
    g('v_pk_add_f32 v[28:29], v[16:17], v[18:19]')
    for k in range(1, 5):
        g(f'v_pk_fma_f32 v[26:27], v[{16+2*k}:{17+2*k}], v[{16+2*k}:{17+2*k}], v[26:27]')
        if k >= 2:
            g(f'v_pk_add_f32 v[28:29], v[28:29], v[{16+2*k}:{17+2*k}]')
    g('v_add_f32 v27, v26, v27')
    g('v_add_f32 v26, v28, v29')
    g.wave_reduce([26, 27], [28, 29])
    ln_scalars(g, 26, 27, 's53', 28, 29, 30)
    g('s_waitcnt vmcnt(1)')
    g('v_lshlrev_b32 v16, 16, v15')
    g('v_and_b32 v17, 0xffff0000, v15')
    g('v_sub_f32 v16, v16, v28')
    g('v_sub_f32 v17, v17, v28')
    g('v_cvt_pk_bf16_f32 v18, v16, v17')
    g('v_lshlrev_b32 v16, 16, v18')
    g('v_and_b32 v17, 0xffff0000, v18')
    g('v_mul_f32 v16, v16, v29')
    g('v_mul_f32 v17, v17, v29')
    g('v_cvt_pk_bf16_f32 v18, v16, v17')
    g(f'ds_write_b32 v4, v18 offset:{L_XN}')
    g('s_waitcnt lgkmcnt(0)')
    g.stamp(2)
    g('s_barrier')
    g('s_waitcnt vmcnt(0)')
    own_tag(g, 2)
    g(f's_cmp_ge_u32 {sR}, 16')
    g('s_cbranch_scc1 L_pathB')
    g('s_branch L_pre0')

    g.label('L_w1')
    g(f's_mov_b32 s49, {20*8192}')
    g('v_mul_lo_u32 v8, v6, s49')
    g('v_lshl_add_u32 v8, v7, 4, v8')
    g(f's_mul_i32 s48, {sJ}, {80*8192}')
    g(f's_lshl_b32 s49, {sH}, 8')
    g('s_add_u32 s48, s48, s49')
    g('s_waitcnt lgkmcnt(0)')
    g.addr('s[40:41]', S_WQ, 's48')
    for t in range(20):
        g(f'global_load_dwordx4 v[{80+4*t}:{83+4*t}], v8, s[40:41] nt')
        if t < 19:
            g('s_add_u32 s40, s40, 8192')
            g('s_addc_u32 s41, s41, 0')
    g(f'global_load_dword v2, v1, {WS} sc1')
    if 'bq' in opts:
        g('s_barrier')
    g.stamp(1)
    gen_sel(g, 192, 16, 17)
    g(f's_lshl_b32 s48, {sH}, 3')
    g(f's_add_u32 s48, s48, {sJ}')
    g('s_lshl_b32 s48, s48, 10')
    g(f's_add_u32 s49, s48, {Q1L}')
    g.addr('s[44:45]', S_WS, 's49')
    g(f's_add_u32 s49, s48, {Q1G}')
    g.addr('s[46:47]', S_WS, 's49')
    g('v_mul_u32_u24 v19, 40, v6')
    g('s_mov_b32 s56, 0')
    g('s_mov_b32 s57, -1')
    g('s_barrier')
    for k in range(5):
        g(f'ds_read_b64 v[{16+2*k}:{17+2*k}], v19 offset:{L_XN+8*k}')
    g('s_waitcnt lgkmcnt(0)')

    def perms(t):
        a = 160 + 4 * (t % 4)
        for v in range(4):
            g(f'v_perm_b32 v{a+v}, v{16+t//2}, v{16+t//2}, v{192+2*v+(t&1)}')
    perms(0)
    perms(1)
    for t in range(20):
        if t + 2 < 20:
            perms(t + 2)
        g(f's_waitcnt vmcnt({19-t+1})')
        a = 160 + 4 * (t % 4)
        c = '0' if t == 0 else 'v[200:203]'
        g(f'v_mfma_f32_16x16x32_bf16 v[200:203], v[{a}:{a+3}], v[{80+4*t}:{83+4*t}], {c}')
        if t == 17:
            pass
    g('s_waitcnt vmcnt(0)')
    g(f'v_readfirstlane_b32 {sTAG}, v2')
    g.nop(4)
    g(f's_mul_i32 {sTAG}, {sTAG}, 5')
    g(f's_add_u32 {sTAG}, {sTAG}, 0x9E3779B9')
    g(f'v_mov_b32 v207, {sTAG}')
    g('v_cndmask_b32 v204, v200, v202, s[56:57]')
    g('v_cndmask_b32 v205, v201, v203, s[56:57]')
    g(f'global_store_dwordx4 v3, v[204:207], s[44:45]')
    g(f'global_store_dwordx4 v3, v[204:207], s[46:47] sc1')
    g.stamp(2)
    g(f's_cmp_ge_u32 {sR}, 16')
    g('s_cbranch_scc1 L_pathB')
    g('s_branch L_bp1')

    g.label('L_b0')
    g('s_barrier')
    g('s_waitcnt vmcnt(0)')
    own_tag(g, 2)
    if 'wukb0' in opts:
        g(f's_cmp_ge_u32 {sWAVE}, 4')
        g('s_cbranch_scc0 L_pathB')
        wuk_dma()
        g('s_waitcnt vmcnt(0)')
    g('s_branch L_pathB')

    g.label('L_pre')
    pre()
    g(f's_cmp_eq_u32 {sWAVE}, 2')
    g('s_cbranch_scc0 L_pre_nx')
    g('s_waitcnt vmcnt(0)')
    own_tag(g, 2)
    g('s_getreg_b32 s48, hwreg(HW_REG_XCC_ID)')
    g('s_and_b32 s48, s48, 0xf')
    g('v_mov_b32 v12, s48')
    g(f'v_mov_b32 v15, {sTAG}')
    g(f's_lshl_b32 s48, {sXCD}, 5')
    g(f's_add_u32 s48, s48, {sR}')
    g('s_lshl_b32 s48, s48, 4')
    g(f's_add_u32 s48, s48, {XID}')
    g('v_mov_b32 v16, s48')
    g('s_mov_b64 exec, 1')
    g(f'global_store_dwordx4 v16, v[12:15], {WS} sc1')
    g('s_mov_b64 exec, -1')
    g.label('L_pre_nx')
    g('s_barrier')
    g('s_waitcnt vmcnt(0)')
    own_tag(g, 2)
    g.label('L_bp')
    g('s_barrier')
    if 'halfdma' in opts:
        g(f's_cmp_ge_u32 {sWAVE}, 4')
        g('s_cbranch_scc1 L_a_dmadone')
    if 'fulldma' not in opts:
        dma()
    g.stamp(13)
    g('s_branch L_a_dmadone')
    g.label('L_pre0')
    pre()
    g('s_branch L_bp')
    g.label('L_bp1')
    g('s_barrier')
    if 'fulldma' not in opts:
        dma()
    g.stamp(13)
    pre()
    g.label('L_a_dmadone')
    g(f's_and_b32 s57, {sWAVE}, 3')
    g(f'global_load_dword v233, v58, {WS} sc1')
    g(f'global_load_dword v234, v224, {WS} sc1')
    g(f'global_load_dword v235, v231, {WS} sc1')
    g(f's_cmp_eq_u32 {sWAVE}, 3')
    g('s_cbranch_scc0 L_a_nochk')
    g(f's_lshl_b32 s48, {sXCD}, 9')
    g(f's_add_u32 s48, s48, {XID}')
    g('v_and_b32 v9, 31, v0')
    g('v_lshlrev_b32 v9, 4, v9')
    g('v_add_u32 v9, s48, v9')
    g('s_getreg_b32 s52, hwreg(HW_REG_XCC_ID)')
    g('s_and_b32 s52, s52, 0xf')
    g('s_mov_b32 s50, 0')
    g(f's_mov_b32 {sMODE}, 0')
    g.label('L_a_chk')
    g(f'global_load_dwordx4 v[12:15], v9, {WS} sc1')
    g('s_add_u32 s50, s50, 1')
    g('s_waitcnt vmcnt(0)')
    g(f'v_cmp_eq_u32 vcc, {sTAG}, v15')
    g('s_cmp_eq_u64 vcc, exec')
    g('s_cbranch_scc1 L_a_chk_ok')
    g('s_cmp_lt_u32 s50, 64')
    g('s_cbranch_scc1 L_a_chk')
    g('s_branch L_a_chk_done')
    g.label('L_a_chk_ok')
    g('v_cmp_eq_u32 vcc, s52, v12')
    g('s_cmp_eq_u64 vcc, exec')
    g(f's_cselect_b32 {sMODE}, 1, 0')
    g.label('L_a_chk_done')
    g(f'v_mov_b32 v12, {sMODE}')
    g(f'ds_write_b32 v1, v12 offset:{L_MODE}')
    g.label('L_a_nochk')
    g('s_waitcnt vmcnt(0) lgkmcnt(0)')
    g.stamp(3)
    g('s_barrier')
    FA = 96
    FT = 160
    skip = g.uniq('skipfa')
    g(f's_cmp_lt_u32 {sWAVE}, 4')
    g(f's_cbranch_scc0 {skip}')
    for t in range(16):
        g(f'ds_read_b128 v[{FA+4*t}:{FA+4*t+3}], v{36+(t%4)} offset:{256*(t//4)}')
    g.label(skip)
    for nn in range(4):
        for b in range(4):
            d = FT + nn * 8 + (b // 2) * 4 + (b % 2) * 2
            g(f'ds_read_b64_tr_b16 v[{d}:{d+1}], v{40+nn} offset:{16384*b}')
    g(f'ds_read_b32 v12, v1 offset:{L_MODE}')
    g(f's_mov_b32 s63, {f2u(KAPPA):#x}')
    g.poll2('qa', [(f'global_load_dwordx4 v[{16+4*i}:{19+4*i}], v248, {WS} offset:{1024*i} sc1', 19 + 4 * i, None) for i in range(4)], MA, 10, 11)
    for i in range(4):
        g(f'ds_write_b64 v{44+(i>>1)}, v[{16+4*i}:{17+4*i}] offset:{512*(i&1)}')
    g.stamp(4)
    g('s_waitcnt lgkmcnt(0)')
    g(f'v_readfirstlane_b32 {sMODE}, v12')
    g('s_barrier')
    wuv_ins = []
    for tt in range(4):
        wuv_ins.append(f'global_load_dwordx4 v[{64+4*tt}:{67+4*tt}], v254, s[96:97] nt')
        if tt < 3:
            wuv_ins.append('s_add_u32 s96, s96, 32768')
            wuv_ins.append('s_addc_u32 s97, s97, 0')
    g(f's_cmp_lt_u32 {sWAVE}, 4')
    g('s_cbranch_scc1 L_a_s')
    if 'wuvlate' not in opts:
        for ins in wuv_ins:
            g(ins)
    g('s_branch L_a_b5')
    g.label('L_a_s')
    qreg = [192 + 4 * t for t in range(8)] + [16 + 4 * t for t in range(4)] + [80 + 4 * t for t in range(4)]
    for t in range(16):
        g(f'ds_read_b128 v[{qreg[t]}:{qreg[t]+3}], v{32+(t%4)} offset:{L_QL+256*(t//4)}')
    for t in range(16):
        g(f's_waitcnt lgkmcnt({15-t})')
        c = '0' if t == 0 else 'v[48:51]'
        g(f'v_mfma_f32_16x16x32_bf16 v[48:51], v[{FA+4*t}:{FA+4*t+3}], v[{qreg[t]}:{qreg[t]+3}], {c}')
        if 2 <= t < 2 + len(wuv_ins) and 'wuvlate' not in opts:
            g(wuv_ins[t - 2])
    g.nop(8)
    g('v_max_f32 v52, v48, v49')
    g('v_max3_f32 v52, v52, v50, v51')
    g.row_reduce([52], [53], 'max')
    g(f'ds_write_b32 v47, v52 offset:{L_MB}')
    g('s_waitcnt lgkmcnt(0)')
    g.label('L_a_b5')
    g('s_barrier')
    g.stamp(12)
    g(f's_cmp_lt_u32 {sWAVE}, 4')
    g('s_cbranch_scc1 L_a_sm')
    g(f's_cmp_eq_u32 {sWAVE}, 7')
    g('s_cbranch_scc0 L_a_b6')
    g(f'ds_read_b128 v[84:87], v46 offset:{L_MB}')
    for k in range(4):
        g(f'v_mov_b32 v{88+k}, 0x3f803f80')
    g('s_waitcnt lgkmcnt(0)')
    g('v_max_f32 v84, v84, v85')
    g('v_max3_f32 v84, v84, v86, v87')
    g('v_mul_f32 v84, s63, v84')
    g(f'v_mov_b32 v87, {sTAG}')
    g('s_branch L_a_b6')
    g.label('L_a_sm')
    g(f'ds_read_b128 v[52:55], v46 offset:{L_MB}')
    g('s_waitcnt lgkmcnt(0)')
    g('v_max_f32 v52, v52, v53')
    g('v_max3_f32 v52, v52, v54, v55')
    g('v_mul_f32 v52, s63, v52')
    for k in range(4):
        g(f'v_fma_f32 v{48+k}, v{48+k}, s63, -v52')
    for k in range(4):
        g(f'v_exp_f32 v{48+k}, v{48+k}')
    g.nop(1)
    g('v_cvt_pk_bf16_f32 v54, v48, v49')
    g('v_cvt_pk_bf16_f32 v55, v50, v51')
    g(f'ds_write_b64 v56, v[54:55] offset:{L_PB}')
    g('s_waitcnt lgkmcnt(0)')
    g.label('L_a_b6')
    for nn in range(4):
        g(f'v_mov_b32 v{19+4*nn}, {sTAG}')
    g('s_barrier')
    for b in range(4):
        g(f'ds_read_b64 v[{48+2*b}:{49+2*b}], v57 offset:{L_PB+512*b}')
    PD = 208
    g('s_waitcnt lgkmcnt(0)')
    g.stamp(10)
    g(f's_cmp_eq_u32 {sWAVE}, 7')
    g('s_cbranch_scc0 L_a_pv')
    g('v_mfma_f32_16x16x32_bf16 v[92:95], v[88:91], v[48:51], 0')
    g('v_mfma_f32_16x16x32_bf16 v[92:95], v[88:91], v[52:55], v[92:95]')
    g.label('L_a_pv')
    for nn in range(4):
        for s2 in range(2):
            c = '0' if s2 == 0 else f'v[{PD+4*nn}:{PD+3+4*nn}]'
            a = FT + nn * 8 + s2 * 4
            g(f'v_mfma_f32_16x16x32_bf16 v[{PD+4*nn}:{PD+3+4*nn}], v[{a}:{a+3}], v[{48+4*s2}:{51+4*s2}], {c}')
    g(f's_cmp_eq_u32 {sWAVE}, 7')
    g('s_cbranch_scc0 L_a_pv2')
    g('v_mov_b32 v85, v92')
    g.set_exec(0xffff)
    mode_store(g, [f'global_store_dwordx4 v249, v[84:87], {WS}'], sMODE)
    g('s_mov_b64 exec, -1')
    g.label('L_a_pv2')
    g.nop(2)
    for nn in range(4):
        g(f'v_cvt_pk_bf16_f32 v{16+4*nn}, v{PD+4*nn}, v{PD+1+4*nn}')
        g(f'v_cvt_pk_bf16_f32 v{17+4*nn}, v{PD+2+4*nn}, v{PD+3+4*nn}')
    g.stamp(11)
    mode_store(g, [f'global_store_dwordx4 v58, v[{16+4*nn}:{19+4*nn}], {WS} offset:{1024*nn}' for nn in range(4)], sMODE)
    g.stamp(5)
    if stop_after == 3:
        g('s_branch L_fin')

    MR = 96
    OR_ = 128
    g(f's_cmp_ge_u32 {sWAVE}, 4')
    g('s_cbranch_scc1 L_a_r')
    g(f's_cmp_eq_u32 {sWAVE}, 0')
    g('s_cbranch_scc0 L_a_bw')
    g.poll2('mll', [(f'global_load_dwordx4 v[{MR}:{MR+3}], v59, {WS} sc1', MR + 3, None),
                    (f'global_load_dwordx4 v[{MR+4}:{MR+7}], v59, {WS} offset:1024 sc1', MR + 7, None)], MA, 10, 11)
    g(f'v_max_f32 v20, v{MR}, v{MR+4}')
    g.row_reduce([20], [22], 'max')
    g(f'v_sub_f32 v24, v{MR}, v20')
    g(f'v_sub_f32 v25, v{MR+4}, v20')
    g('v_exp_f32 v24, v24')
    g('v_exp_f32 v25, v25')
    g.nop(1)
    g('ds_write_b32 v60, v24')
    g('ds_write_b32 v60, v25 offset:16')
    g(f'v_mul_f32 v21, v24, v{MR+1}')
    g(f'v_fmac_f32 v21, v25, v{MR+5}')
    g('s_waitcnt lgkmcnt(0)')
    g('s_barrier')
    g('s_cmp_eq_u32 s58, 0')
    g('s_cbranch_scc0 L_a_s4')
    g.row_reduce([21], [22], 'add')
    g(f'v_mov_b32 v23, {sTAG}')
    g.set_exec(0xffff)
    g(f'global_store_dwordx4 v250, v[20:23], {WS} sc1')
    g('s_mov_b64 exec, -1')
    g('s_branch L_a_s4')
    g.label('L_a_bw')
    g('s_barrier')
    g('s_branch L_a_s4')
    g.label('L_a_r')
    g(f'v_mov_b32 v51, {sTAG}')
    g.poll2('opl', [(f'global_load_dwordx4 v[{OR_+4*k}:{OR_+4*k+3}], v{224+k}, {WS} sc1', OR_ + 4 * k + 3, None) for k in range(8)], MA, 10, 11)
    g.stamp(6)
    g('s_barrier')
    g(f'ds_read_b128 v[{MR+8}:{MR+11}], v61')
    g(f'ds_read_b128 v[{MR+12}:{MR+15}], v61 offset:16')
    UP = 160
    for k in range(8):
        for half in range(2):
            src = OR_ + 4 * k + half
            t = UP + 4 * k + 2 * half
            g(f'v_lshlrev_b32 v{t}, 16, v{src}')
            g(f'v_and_b32 v{t+1}, 0xffff0000, v{src}')
        if k == 1:
            g('s_waitcnt lgkmcnt(0)')
        if k >= 1:
            for kk in ([0, 1] if k == 1 else [k]):
                wr = MR + 8 + (kk & ~1)
                sel = kk & 1
                for half in range(2):
                    t = UP + 4 * kk + 2 * half
                    acc = 52 + 2 * half
                    if kk == 0:
                        g(f'v_pk_mul_f32 v[{acc}:{acc+1}], v[{t}:{t+1}], v[{wr}:{wr+1}] op_sel_hi:[1,0]')
                    else:
                        g(f'v_pk_fma_f32 v[{acc}:{acc+1}], v[{t}:{t+1}], v[{wr}:{wr+1}], v[{acc}:{acc+1}] op_sel:[0,{sel},0] op_sel_hi:[1,{sel},1]')
    g('v_cvt_pk_bf16_f32 v48, v52, v53')
    g('v_cvt_pk_bf16_f32 v49, v54, v55')
    g(f'global_store_dwordx4 v244, v[48:51], {WS} sc1')
    g.stamp(7)
    g.label('L_a_s4')
    g('s_barrier')
    if 'wuvlate' in opts:
        for ins in wuv_ins:
            g(ins)

    g.poll2('ox', [(f'global_load_dwordx4 v[16:19], v245, {WS} sc1', 19, None)], MA, 10, 11)
    g.stamp(8)
    g('v_max_f32_dpp v22, v16, v16 row_ror:4 row_mask:0xf bank_mask:0xf')
    g.nop(2)
    g('v_max_f32_dpp v22, v22, v22 row_ror:8 row_mask:0xf bank_mask:0xf')
    g.nop(1)
    g('v_mov_b32 v23, v22')
    g.nop(2)
    g('v_permlane16_swap_b32 v23, v22')
    g.nop(1)
    g('v_max_f32 v22, v22, v23')
    g('v_sub_f32 v24, v16, v22')
    g('v_exp_f32 v24, v24')
    g('v_permlane32_swap_b32 v16, v17')
    g.nop(1)
    g('v_mul_f32 v22, v24, v17')
    g('v_lshlrev_b32 v25, 16, v16')
    g('v_add_f32_dpp v22, v22, v22 row_ror:4 row_mask:0xf bank_mask:0xf')
    g('v_and_b32 v26, 0xffff0000, v16')
    g.nop(1)
    g('v_add_f32_dpp v22, v22, v22 row_ror:8 row_mask:0xf bank_mask:0xf')
    g.nop(1)
    g('v_mov_b32 v23, v22')
    g.nop(2)
    g('v_permlane16_swap_b32 v23, v22')
    g.nop(1)
    g('v_add_f32 v22, v22, v23')
    g('v_rcp_f32 v22, v22')
    g.nop(1)
    g('v_mul_f32 v24, v24, v22')
    g('v_mov_b32 v23, v24')
    g.nop(2)
    g('v_permlane32_swap_b32 v23, v24')
    g.nop(1)
    g('v_mul_f32 v25, v25, v24')
    g('v_mul_f32 v26, v26, v24')
    g.nop(2)
    g('v_permlane16_swap_b32 v25, v26')
    g.nop(1)
    g('v_add_f32 v25, v25, v26')
    g.nop(2)
    g('v_add_f32_dpp v25, v25, v25 row_ror:4 row_mask:0xf bank_mask:0xf')
    g.nop(2)
    g('v_add_f32_dpp v25, v25, v25 row_ror:8 row_mask:0xf bank_mask:0xf')
    g('v_cvt_pk_bf16_f32 v25, v25, v25')
    g.nop(2)

    def ands(tt):
        a = 84 + 4 * (tt % 2)
        for v in range(4):
            g(f'v_and_b32_dpp v{a+v}, v25, v{240+v} quad_perm:[{tt},{tt},{tt},{tt}] row_mask:0xf bank_mask:0xf')
    ands(0)
    for tt in range(4):
        if tt < 3:
            ands(tt + 1)
        else:
            g.nop(2)
        a = 84 + 4 * (tt % 2)
        c = '0' if tt == 0 else 'v[92:95]'
        g(f'v_mfma_f32_16x16x32_bf16 v[92:95], v[{a}:{a+3}], v[{64+4*tt}:{67+4*tt}], {c}')
    g.set_exec(0xffffffff)
    g.nop(6)
    g(f'ds_write_b128 v247, v[92:95] offset:{L_RED}')
    g('s_mov_b64 exec, -1')
    g('s_waitcnt lgkmcnt(0)')
    g('s_barrier')
    g(f's_cmp_eq_u32 {sWAVE}, 0')
    g('s_cbranch_scc0 L_a_red')
    for w in range(8):
        g(f'ds_read_b64 v[{32+2*w}:{33+2*w}], v57 offset:{L_RED+512*w}')
    g(f'v_mov_b32 v23, {sTAG}')
    g('s_waitcnt lgkmcnt(0)')
    g('v_pk_add_f32 v[32:33], v[32:33], v[34:35]')
    g('v_pk_add_f32 v[36:37], v[36:37], v[38:39]')
    g('v_pk_add_f32 v[40:41], v[40:41], v[42:43]')
    g('v_pk_add_f32 v[44:45], v[44:45], v[46:47]')
    g('v_pk_add_f32 v[32:33], v[32:33], v[36:37]')
    g('v_pk_add_f32 v[40:41], v[40:41], v[44:45]')
    g('v_pk_add_f32 v[32:33], v[32:33], v[40:41]')
    g('v_cvt_pk_bf16_f32 v20, v32, v33')
    g.nop(2)
    g('v_mov_b32_dpp v21, v20 row_shl:1 row_mask:0xf bank_mask:0xf')
    g.set_exec(0x5555555555555555)
    mode_store(g, [f'global_store_dwordx4 v253, v[20:23], {WS}'], sMODE)
    g('s_mov_b64 exec, -1')
    g.stamp(9)
    g.label('L_a_red')
    if stop_after == 4:
        g('s_branch L_fin')
    g(f's_cmp_eq_u32 {sWAVE}, 7')
    g('s_cbranch_scc0 L_fin')
    g(f's_cmp_lt_u32 {sR}, 10')
    g('s_cbranch_scc0 L_fin')
    g(f's_mul_i32 s55, {sXCD}, 10')
    g(f's_add_u32 s55, s55, {sR}')
    g('v_and_b32 v7, 3, v0')
    g('v_lshrrev_b32 v6, 5, v0')
    g('v_and_b32 v8, 1, v7')
    g('v_lshlrev_b32 v8, 2, v8')
    g('v_lshrrev_b32 v9, 1, v7')
    g('v_add_u32 v8, v8, v9')
    g('v_lshl_add_u32 v8, v6, 1, v8')
    g('s_lshl_b32 s48, s55, 3')
    g('v_add_u32 v31, s48, v8')
    g('v_lshlrev_b32 v31, 1, v31')
    g(f'global_load_ushort v30, v31, {S_X}')
    g('v_and_b32 v9, 7, v0')
    g('v_mul_u32_u24 v9, 2560, v9')
    g('v_bfe_u32 v10, v0, 3, 1')
    g('v_lshl_add_u32 v9, v10, 4, v9')
    g('s_lshr_b32 s48, s55, 4')
    g('s_lshl_b32 s48, s48, 9')
    g('s_and_b32 s49, s55, 15')
    g('s_lshl_b32 s49, s49, 5')
    g('s_add_u32 s48, s48, s49')
    g(f's_add_u32 s48, s48, {OUTP}')
    g('v_add_u32 v9, s48, v9')
    g('s_lshl_b32 s48, s55, 6')
    g(f's_add_u32 s48, s48, {O2P}')
    g('v_lshrrev_b32 v12, 2, v0')
    g('v_mul_u32_u24 v12, 5120, v12')
    g('v_lshl_add_u32 v12, v7, 4, v12')
    g('v_add_u32 v12, s48, v12')
    g(f'v_add_u32 v13, {16*5120}, v12')
    g(f'v_add_u32 v14, {32*5120}, v12')
    g(f'v_add_u32 v15, {48*5120}, v12')
    g(f'v_mov_b32 v44, {sTAG}')
    g('v_mov_b32 v46, 0')
    g('v_mov_b32 v47, 0')
    g(f'v_mov_b32 v19, {sTAG}')
    g('v_mov_b32 v16, 0')
    g('v_mov_b32 v17, 0')
    g('v_lshrrev_b32 v28, 2, v8')
    g('v_lshlrev_b32 v28, 5, v28')
    g('v_and_b32 v29, 3, v8')
    g.poll2('hf', [(f'global_load_dwordx4 v[16:19], v9, {WS} sc1', 19, 0xffff)], MA, 10, 11)
    g('v_lshlrev_b32 v20, 16, v16')
    g('v_and_b32 v21, 0xffff0000, v16')
    g('v_lshlrev_b32 v22, 16, v17')
    g('v_and_b32 v23, 0xffff0000, v17')
    for ctl in ['quad_perm:[1,0,3,2]', 'quad_perm:[2,3,0,1]', 'row_half_mirror']:
        g.nop(1)
        for k in range(4):
            g(f'v_add_f32_dpp v{20+k}, v{20+k}, v{20+k} {ctl} row_mask:0xf bank_mask:0xf')
    g.nop(1)
    for k in range(4):
        g(f'ds_bpermute_b32 v{24+k}, v28, v{20+k}')
    g('s_waitcnt lgkmcnt(0)')
    g('v_cmp_eq_u32 vcc, 1, v29')
    g.nop(1)
    g('v_cndmask_b32 v24, v24, v25, vcc')
    g('v_cmp_eq_u32 vcc, 2, v29')
    g.nop(1)
    g('v_cndmask_b32 v24, v24, v26, vcc')
    g('v_cmp_eq_u32 vcc, 3, v29')
    g.nop(1)
    g('v_cndmask_b32 v16, v24, v27, vcc')
    rnd_bf16(g, 16)
    g('v_lshlrev_b32 v30, 16, v30')
    g('v_add_f32 v30, v30, v16')
    rnd_bf16(g, 30)
    g.poll2('o2', [(f'global_load_dwordx4 v[{32+4*i}:{35+4*i}], v{12+i}, {WS} sc1', 32 + 4 * i, None) for i in range(3)] +
            [(f'global_load_dwordx4 v[44:47], v15, {WS} sc1', 44, 0xffffff)], MA, 10, 11)
    g.stamp(9)
    g('v_pk_add_f32 v[16:17], v[34:35], v[38:39]')
    g('v_pk_add_f32 v[18:19], v[42:43], v[46:47]')
    g('v_pk_add_f32 v[16:17], v[16:17], v[18:19]')
    g.nop(2)
    g('v_permlane32_swap_b32 v16, v17')
    g.nop(1)
    g('v_add_f32 v16, v16, v17')
    g('v_mov_b32 v17, v16')
    g.nop(2)
    g('v_permlane16_swap_b32 v17, v16')
    g.nop(1)
    g('v_add_f32 v16, v16, v17')
    g.nop(2)
    g('v_add_f32_dpp v16, v16, v16 row_ror:4 row_mask:0xf bank_mask:0xf')
    g.nop(2)
    g('v_add_f32_dpp v16, v16, v16 row_ror:8 row_mask:0xf bank_mask:0xf')
    rnd_bf16(g, 16)
    g('v_add_f32 v16, v16, v30')
    g('v_cvt_pk_bf16_f32 v16, v16, v16')
    g('s_mov_b32 exec_lo, 0xf')
    g('s_mov_b32 exec_hi, 0xf')
    g(f'global_store_short v31, v16, {S_OUT}')
    g('s_mov_b64 exec, -1')
    g('s_cmp_eq_u32 s55, 0')
    g('s_cbranch_scc0 L_fin')
    g('s_mov_b64 exec, 1')
    g(f'v_mov_b32 v2, {sTAG}')
    g(f'global_store_dword v1, v2, {WS} sc1')
    g('s_mov_b64 exec, -1')
    g('s_branch L_fin')

    g.label('L_pathB')
    g(f's_sub_u32 s54, {sR}, 16')
    g('s_lshr_b32 s48, s54, 2')
    g(f's_lshl_b32 s49, {sXCD}, 2')
    g('s_add_u32 s55, s48, s49')
    g(f's_cmp_eq_u32 {sWAVE}, 0')
    g('s_cbranch_scc0 L_b1')
    g('s_lshl_b32 s48, s55, 13')
    g(f's_add_u32 s49, s48, {Q1L}')
    g.addr('s[40:41]', S_WS, 's49')
    g(f's_add_u32 s49, s48, {Q1G}')
    g.addr('s[42:43]', S_WS, 's49')
    g('v_add_u32 v4, 4096, v3')
    g('v_and_b32 v14, 1, v6')
    g('v_lshlrev_b32 v14, 3, v14')
    g('v_lshl_add_u32 v14, v7, 4, v14')
    g('v_lshrrev_b32 v15, 1, v6')
    g('v_lshl_add_u32 v14, v15, 2, v14')
    g.poll2('q1', [(f'global_load_dwordx4 v[{32+4*k}:{35+4*k}], {"v3" if k < 4 else "v4"}, {{base}} offset:{1024*(k%4)} sc1', 35 + 4 * k, None) for k in range(8)],
            MQ, 10, 11, alt=('s[40:41]', 's[42:43]'))
    g.stamp(3)
    g('v_pk_add_f32 v[12:13], v[32:33], v[36:37]')
    g('v_pk_add_f32 v[10:11], v[40:41], v[44:45]')
    g('v_pk_add_f32 v[16:17], v[48:49], v[52:53]')
    g('v_pk_add_f32 v[18:19], v[56:57], v[60:61]')
    g('v_pk_add_f32 v[12:13], v[12:13], v[10:11]')
    g('v_pk_add_f32 v[16:17], v[16:17], v[18:19]')
    g('v_pk_add_f32 v[12:13], v[12:13], v[16:17]')
    g('v_cvt_pk_bf16_f32 v12, v12, v13')
    g(f'ds_write_b32 v14, v12 offset:{L_QB}')
    g('s_waitcnt lgkmcnt(0)')
    g('s_barrier')
    g('s_branch L_b2')
    g.label('L_b1')
    g('s_lshl_b32 s48, s55, 11')
    g('s_and_b32 s49, s54, 3')
    g('s_lshl_b32 s49, s49, 9')
    g('s_add_u32 s48, s48, s49')
    g(f's_and_b32 s49, {sWAVE}, 3')
    g('s_lshl_b32 s49, s49, 7')
    g('s_add_u32 s48, s48, s49')
    g(f's_add_u32 s48, s48, {QA}')
    g('v_lshlrev_b32 v9, 4, v6')
    g('v_lshl_add_u32 v104, v7, 6, v9')
    g('v_add_u32 v104, s48, v104')
    g(f'v_mov_b32 v103, {sTAG}')
    g('s_mov_b32 s56, 0x00020002')
    g('s_mov_b32 s57, 0x00020002')
    g(f's_cmp_ge_u32 {sWAVE}, 4')
    g('s_cbranch_scc0 L_b1x')
    g(f's_and_b32 s49, {sWAVE}, 3')
    g('s_lshl_b32 s49, s49, 13')
    g(f's_add_u32 s49, s49, {L_TILE}')
    g('v_lshl_add_u32 v12, v7, 8, s49')
    for t in range(4):
        g(f'v_add_u32 v13, {4*t}, v6')
        g('v_xor_b32 v13, v13, v7')
        g('v_lshl_add_u32 v13, v13, 4, v12')
        for tau in range(2):
            g(f'ds_read_b128 v[{64+16*tau+4*t}:{67+16*tau+4*t}], v13 offset:{4096*tau}')
    g('s_waitcnt lgkmcnt(0)')
    g('s_barrier')
    g('s_branch L_b1m')
    g.label('L_b1x')
    g('s_barrier')
    g('s_branch L_b2')
    g.label('L_b1m')
    for t in range(4):
        g(f'ds_read_b128 v[{108+4*t}:{111+4*t}], v9 offset:{L_QB+64*t}')
    for t in range(4):
        g(f's_waitcnt lgkmcnt({3-t})')
        for tau in range(2):
            c = '0' if t == 0 else f'v[{96+8*tau}:{99+8*tau}]' if False else ('0' if t == 0 else f'v[{124+4*tau}:{127+4*tau}]')
            g(f'v_mfma_f32_16x16x32_bf16 v[{124+4*tau}:{127+4*tau}], v[{64+16*tau+4*t}:{67+16*tau+4*t}], v[{108+4*t}:{111+4*t}], {c}')
    g('s_mov_b32 exec_lo, 0x00030003')
    g('s_mov_b32 exec_hi, 0x00030003')
    g.nop(6)
    g('v_cvt_pk_bf16_f32 v96, v124, v125')
    g('v_cvt_pk_bf16_f32 v97, v126, v127')
    g('v_cvt_pk_bf16_f32 v98, v128, v129')
    g('v_cvt_pk_bf16_f32 v99, v130, v131')
    g('v_cndmask_b32 v100, v96, v98, s[56:57]')
    g('v_cndmask_b32 v101, v97, v99, s[56:57]')
    g(f'global_store_dwordx4 v104, v[100:103], {WS} sc1')
    g('s_mov_b64 exec, -1')
    g.stamp(4)
    g.label('L_b2')
    if stop_after in (2, 3, 4):
        g('s_branch L_fin')
    if 'pace' in opts:
        g(f's_cmp_eq_u32 {sWAVE}, 0')
        g('s_cbranch_scc0 L_b2p')
        g('v_lshrrev_b32 v12, 1, v0')
        g('v_lshlrev_b32 v12, 11, v12')
        g('v_and_b32 v13, 1, v0')
        g('v_lshl_add_u32 v12, v13, 10, v12')
        g(f'v_add_u32 v12, {QA + 1008}, v12')
        g('s_mov_b32 s50, 0')
        g.label('L_b2q')
        g(f'global_load_dwordx4 v[16:19], v12, {WS} sc1')
        g('s_add_u32 s50, s50, 1')
        g('s_waitcnt vmcnt(0)')
        g(f'v_cmp_ne_u32 vcc, {sTAG}, v19')
        g('s_cmp_eq_u64 vcc, 0')
        g('s_cbranch_scc1 L_b2p')
        g('s_cmp_lt_u32 s50, 64')
        g('s_cbranch_scc1 L_b2q')
        g.label('L_b2p')
    g('s_barrier')
    g.stamp(5)
    g('v_lshrrev_b32 v8, 3, v7')
    g('v_and_b32 v9, 7, v0')
    g('v_lshl_add_u32 v10, v8, 2, v6')
    g('s_cmp_lt_u32 s54, 5')
    g('s_cbranch_scc1 L_b_wo')
    g('s_sub_u32 s48, s54, 5')
    g('s_lshr_b32 s49, s48, 1')
    g('s_lshl_b32 s49, s49, 3')
    g(f's_add_u32 s49, s49, {sXCD}')
    g('s_cmp_lt_u32 s49, 27')
    g('s_cbranch_scc0 L_fin')
    g('s_lshl_b32 s49, s49, 1')
    g('s_and_b32 s48, s48, 1')
    g('s_add_u32 s58, s49, s48')
    g('s_branch L_b_mlpld')
    g.label('L_b_wo')
    g(f's_lshl_b32 s48, {sXCD}, 3')
    g(f's_add_u32 s48, s48, {sWAVE}')
    g(f's_mul_i32 s48, s48, {64*1280}')
    g('s_lshl_b32 s49, s54, 8')
    g('s_add_u32 s48, s48, s49')
    g.addr('s[40:41]', S_WO, 's48')
    g('v_mul_u32_u24 v11, 1280, v6')
    g('v_lshl_add_u32 v11, v7, 4, v11')
    for t in range(16):
        g(f'global_load_dwordx4 v[{32+4*t}:{35+4*t}], v11, s[40:41] nt')
        if t < 15:
            g('s_add_u32 s40, s40, 5120')
            g('s_addc_u32 s41, s41, 0')
    gen_mask(g, 192, 16, 17)
    g(f's_lshr_b32 s48, {sWAVE}, 1')
    g('s_lshl_b32 s48, s48, 2')
    g(f's_lshl_b32 s49, {sXCD}, 4')
    g('s_add_u32 s48, s48, s49')
    g('s_lshl_b32 s48, s48, 9')
    g(f's_and_b32 s49, {sWAVE}, 1')
    g('s_lshl_b32 s49, s49, 8')
    g('s_add_u32 s48, s48, s49')
    g(f's_add_u32 s48, s48, {C4}')
    g('v_lshlrev_b32 v11, 9, v6')
    g('v_lshl_add_u32 v11, v7, 4, v11')
    g('v_add_u32 v11, s48, v11')
    g('v_lshlrev_b32 v26, 5, v7')
    g('v_lshl_add_u32 v26, v6, 4, v26')
    g(f's_lshl_b32 s48, {sWAVE}, 9')
    g('v_add_u32 v26, s48, v26')
    g('v_lshlrev_b32 v28, 3, v0')
    g(f's_mul_i32 s48, {sXCD}, 2560')
    g('s_lshl_b32 s49, s54, 9')
    g('s_add_u32 s48, s48, s49')
    g(f's_add_u32 s48, s48, {OUTP}')
    g('v_lshrrev_b32 v29, 1, v0')
    g('v_lshl_add_u32 v29, v29, 4, s48')
    g(f'v_mov_b32 v147, {sTAG}')
    if g.stamps:
        g.stamp(8)
        g('s_waitcnt vmcnt(0)')
        g.stamp(9)
    g.poll2('c4', [(f'global_load_dwordx4 v[16:19], v11, {WS} sc1', 19, None)], MB, 13, 14)
    g.stamp(6)
    g('v_lshlrev_b32 v20, 16, v16')
    g('v_and_b32 v21, 0xffff0000, v16')
    g('v_lshlrev_b32 v22, 16, v17')
    g('v_and_b32 v23, 0xffff0000, v17')
    g.nop(1)
    g('v_permlane32_swap_b32 v20, v22')
    g('v_permlane32_swap_b32 v21, v23')
    g.nop(1)
    g('v_add_f32 v20, v20, v22')
    g('v_add_f32 v21, v21, v23')
    g.nop(2)
    g('v_permlane16_swap_b32 v20, v21')
    g.nop(1)
    g('v_add_f32 v20, v20, v21')
    g('v_cvt_pk_bf16_f32 v20, v20, v20')
    g.nop(2)

    def wands(t):
        a = 212 + 4 * (t % 2)
        for v in range(4):
            g(f'v_and_b32_dpp v{a+v}, v20, v{192+v} row_newbcast:{t} row_mask:0xf bank_mask:0xf')
    wands(0)
    for t in range(16):
        if t < 15:
            wands(t + 1)
        else:
            g.nop(2)
        a = 212 + 4 * (t % 2)
        c = '0' if t == 0 else 'v[200:203]'
        g(f'v_mfma_f32_16x16x32_bf16 v[200:203], v[{a}:{a+3}], v[{32+4*t}:{35+4*t}], {c}')
    g.set_exec(0xffffffff)
    g.nop(6)
    g(f'ds_write_b128 v26, v[200:203] offset:{L_RED}')
    g('s_mov_b64 exec, -1')
    g('s_waitcnt lgkmcnt(0)')
    g('s_barrier')
    g(f's_cmp_eq_u32 {sWAVE}, 0')
    g('s_cbranch_scc0 L_fin')
    for w in range(8):
        g(f'ds_read_b64 v[{160+2*w}:{161+2*w}], v28 offset:{L_RED+512*w}')
    g('s_waitcnt lgkmcnt(0)')
    g('v_pk_add_f32 v[160:161], v[160:161], v[162:163]')
    g('v_pk_add_f32 v[164:165], v[164:165], v[166:167]')
    g('v_pk_add_f32 v[168:169], v[168:169], v[170:171]')
    g('v_pk_add_f32 v[172:173], v[172:173], v[174:175]')
    g('v_pk_add_f32 v[160:161], v[160:161], v[164:165]')
    g('v_pk_add_f32 v[168:169], v[168:169], v[172:173]')
    g('v_pk_add_f32 v[160:161], v[160:161], v[168:169]')
    g('v_cvt_pk_bf16_f32 v144, v160, v161')
    g.nop(2)
    g('v_mov_b32_dpp v145, v144 row_shl:1 row_mask:0xf bank_mask:0xf')
    g.set_exec(0x5555555555555555)
    g(f'global_store_dwordx4 v29, v[144:147], {WS} sc1')
    g('s_mov_b64 exec, -1')
    g.stamp(7)
    g('s_branch L_fin')

    def gemv(n, src, wbase, d):
        def pm(t):
            a = 212 + 4 * (t % 2)
            for v in range(4):
                g(f'v_perm_b32 v{a+v}, v{src+t//2}, v{src+t//2}, v{192+2*v+(t&1)}')
        pm(0)
        for t in range(n):
            if t + 1 < n:
                pm(t + 1)
            else:
                g.nop(2)
            a = 212 + 4 * (t % 2)
            c = '0' if t == 0 else f'v[{d}:{d+3}]'
            g(f'v_mfma_f32_16x16x32_bf16 v[{d}:{d+3}], v[{a}:{a+3}], v[{wbase+4*t}:{wbase+4*t+3}], {c}')

    g.label('L_b_mlpld')
    if stop_after == 5:
        g('s_branch L_fin')
    gen_sel(g, 192, 16, 17)
    g('v_and_b32 v26, 1, v6')
    g('v_lshlrev_b32 v26, 2, v26')
    g('v_lshl_add_u32 v26, v9, 3, v26')
    g('v_lshrrev_b32 v27, 1, v6')
    g('v_add_u32 v26, v26, v27')
    g('v_lshlrev_b32 v26, 2, v26')
    g(f's_lshl_b32 s48, {sWAVE}, 8')
    g('v_add_u32 v26, s48, v26')
    g('v_cmp_le_u32 vcc, 4, v9')
    g('v_mov_b32 v12, s22')
    g('v_mov_b32 v13, s24')
    g('v_mov_b32 v14, s23')
    g('v_mov_b32 v15, s25')
    g('v_cndmask_b32 v12, v12, v13, vcc')
    g('v_cndmask_b32 v13, v14, v15, vcc')
    g('v_and_b32 v14, 3, v0')
    g('v_lshlrev_b32 v14, 4, v14')
    g('s_lshl_b32 s48, s58, 6')
    g(f's_mul_i32 s49, {sWAVE}, {80*3456}')
    g('s_add_u32 s48, s48, s49')
    g('v_add_u32 v14, s48, v14')
    g(f'v_mul_u32_u24 v15, {8*3456}, v10')
    g('v_add_u32 v15, v15, v14')
    g(f'v_mul_u32_u24 v16, {2*3456}, v10')
    g('v_add_u32 v16, v16, v14')
    g(f'v_add_u32 v16, {64*3456}, v16')
    for t in range(10):
        if t == 0:
            src = 15
        elif t == 8:
            src = 16
        g(f'v_add_co_u32 v18, vcc, v12, v{src}')
        g.nop(2)
        g('v_addc_co_u32 v19, vcc, 0, v13, vcc')
        g(f'global_load_dwordx4 v[{64+4*t}:{67+4*t}], v[18:19], off' + ('' if 'gunt0' in opts else ' sc0 nt' if 'gusc0' in opts else ' nt'))
        g(f'v_add_u32 v{src}, 3456, v{src}')
    g('s_lshl_b32 s48, s58, 5')
    g(f's_mul_i32 s48, s48, 1280')
    g(f's_lshl_b32 s49, {sWAVE}, 7')
    g('s_add_u32 s48, s48, s49')
    g.addr('s[40:41]', S_WD, 's48')
    g(f'v_mul_u32_u24 v11, {4*1280}, v10')
    g('v_lshl_add_u32 v11, v9, 4, v11')
    for t in range(4):
        g(f'global_load_dwordx4 v[{104+4*t}:{107+4*t}], v11, s[40:41] offset:{1280*t} nt')
    g(f's_cmp_lt_u32 {sWAVE}, 2')
    g('s_cbranch_scc0 L_b_nod2')
    g('s_add_u32 s40, s40, 1024')
    g('s_addc_u32 s41, s41, 0')
    for t in range(4):
        g(f'global_load_dwordx4 v[{120+4*t}:{123+4*t}], v11, s[40:41] offset:{1280*t} nt')
    g.label('L_b_nod2')
    g(f's_lshl_b32 s48, {sWAVE}, 8')
    g('s_min_u32 s48, s48, 1024')
    g('v_and_b32 v17, 31, v0')
    g('v_lshlrev_b32 v17, 3, v17')
    g('v_lshrrev_b32 v29, 5, v0')
    g('v_lshl_add_u32 v17, v29, 2, v17')
    g('v_add_u32 v143, s48, v17')
    g(f'global_load_dword v140, v143, {S_X}')
    g(f'global_load_ushort v141, v1, {S_X}')
    g.stamp(6)
    g('s_waitcnt vmcnt(0)')
    g.stamp(7)
    g('v_lshlrev_b32 v141, 16, v141')
    g.nop(1)
    g('v_readfirstlane_b32 s53, v141')
    gen_mask(g, 220, 16, 17)
    for v in range(4):
        g(f'v_and_b32 v{220+v}, 0x3f803f80, v{220+v}')
    g.nop(2)
    for t in range(10):
        c = '0' if t == 0 else 'v[200:203]'
        g(f'v_mfma_f32_16x16x32_bf16 v[200:203], v[220:223], v[{64+4*t}:{67+4*t}], {c}')
    g.nop(8)
    class_combine(g, 200)
    g.set_exec(0x00ff00ff00ff00ff)
    g('ds_write2_b32 v26, v200, v202 offset0:0 offset1:2')
    g('s_mov_b64 exec, -1')
    g('s_waitcnt lgkmcnt(0)')
    g('s_barrier')
    g('v_lshlrev_b32 v29, 2, v0')
    for w in range(8):
        g(f'ds_read_b32 v{160+w}, v29 offset:{256*w}')
    g('s_waitcnt lgkmcnt(0)')
    g('v_add_f32 v160, v160, v161')
    g('v_add_f32 v162, v162, v163')
    g('v_add_f32 v164, v164, v165')
    g('v_add_f32 v166, v166, v167')
    g('v_add_f32 v160, v160, v162')
    g('v_add_f32 v164, v164, v166')
    g('v_add_f32 v142, v160, v164')
    g('s_barrier')
    g(f's_mul_i32 s48, {sWAVE}, 160')
    g('v_lshlrev_b32 v27, 4, v10')
    g('v_add_u32 v27, s48, v27')
    g('v_lshlrev_b32 v28, 2, v10')
    g('v_add_u32 v28, s48, v28')
    g('v_lshlrev_b32 v30, 3, v10')
    g('v_and_b32 v31, 31, v0')
    g('v_lshlrev_b32 v31, 1, v31')
    g('v_lshlrev_b32 v14, 6, v9')
    g('v_lshl_add_u32 v14, v6, 4, v14')
    g(f's_mul_i32 s48, s58, 5120')
    g(f's_lshl_b32 s49, {sWAVE}, 9')
    g('s_add_u32 s48, s48, s49')
    g(f's_add_u32 s48, s48, {O2P}')
    g('v_add_u32 v14, s48, v14')
    g(f'v_add_u32 v15, {8*512}, v14')
    g(f'v_mov_b32 v202, {sTAG}')
    g(f's_lshl_b32 s48, {sWAVE}, 3')
    g('v_mov_b32 v144, s48')
    g(f's_cmp_lt_u32 {sWAVE}, 5')
    g('s_cbranch_scc0 L_m_b1')
    g(f's_lshl_b32 s48, {sWAVE}, 9')
    g(f's_add_u32 s48, s48, {OUTP}')
    g('v_lshrrev_b32 v152, 5, v0')
    g('v_mul_u32_u24 v152, 2560, v152')
    g('v_and_b32 v153, 31, v0')
    g('v_lshl_add_u32 v152, v153, 4, v152')
    g('v_add_u32 v152, s48, v152')
    for k in range(1, 4):
        g(f'v_add_u32 v{152+k}, {5120*k}, v152')
    g('v_lshlrev_b32 v148, 16, v140')
    g('v_and_b32 v149, 0xffff0000, v140')
    g.poll2('outp', [(f'global_load_dwordx4 v[{160+4*k}:{163+4*k}], v{152+k}, {WS} sc1', 163 + 4 * k, None) for k in range(4)], MB, 12, 13)
    g.stamp(8)
    for k in range(4):
        g(f'v_lshlrev_b32 v{176+4*k}, 16, v{160+4*k}')
        g(f'v_and_b32 v{177+4*k}, 0xffff0000, v{160+4*k}')
        g(f'v_lshlrev_b32 v{178+4*k}, 16, v{161+4*k}')
        g(f'v_and_b32 v{179+4*k}, 0xffff0000, v{161+4*k}')
        if k == 1:
            g('v_pk_add_f32 v[176:177], v[176:177], v[180:181]')
            g('v_pk_add_f32 v[178:179], v[178:179], v[182:183]')
    g('v_pk_add_f32 v[184:185], v[184:185], v[188:189]')
    g('v_pk_add_f32 v[186:187], v[186:187], v[190:191]')
    g('v_pk_add_f32 v[176:177], v[176:177], v[184:185]')
    g('v_pk_add_f32 v[178:179], v[178:179], v[186:187]')
    g.nop(1)
    g('v_permlane32_swap_b32 v176, v178')
    g('v_permlane32_swap_b32 v177, v179')
    g.nop(1)
    g('v_add_f32 v16, v176, v178')
    g('v_add_f32 v17, v177, v179')
    g('v_cvt_pk_bf16_f32 v16, v16, v17')
    g('v_lshlrev_b32 v18, 16, v16')
    g('v_and_b32 v19, 0xffff0000, v16')
    g('v_pk_add_f32 v[18:19], v[18:19], v[148:149]')
    g('v_cvt_pk_bf16_f32 v16, v18, v19')
    g(f'ds_write_b32 v143, v16 offset:{L_HB}')
    g('v_lshlrev_b32 v18, 16, v16')
    g('v_and_b32 v19, 0xffff0000, v16')
    g('v_subrev_f32 v18, s53, v18')
    g('v_subrev_f32 v19, s53, v19')
    g('v_add_f32 v160, v18, v19')
    g('v_mul_f32 v161, v18, v18')
    g('v_fmac_f32 v161, v19, v19')
    g.wave_reduce([160, 161], [162, 163])
    g('s_mov_b64 exec, 1')
    g(f'ds_write_b64 v144, v[160:161] offset:{L_ST}')
    g('s_mov_b64 exec, -1')
    g('s_waitcnt lgkmcnt(0)')
    g.label('L_m_b1')
    g('s_barrier')
    g.stamp(9)
    g(f'ds_read_b128 v[176:179], v27 offset:{L_HB}')
    g(f'ds_read_b32 v180, v28 offset:{L_HB+128}')
    g(f's_cmp_eq_u32 {sWAVE}, 7')
    g('s_cbranch_scc0 L_m_ns')
    g(f'ds_read_b128 v[160:163], v1 offset:{L_ST}')
    g(f'ds_read_b128 v[164:167], v1 offset:{L_ST+16}')
    g(f'ds_read_b64 v[168:169], v1 offset:{L_ST+32}')
    g('s_waitcnt lgkmcnt(0)')
    g('v_pk_add_f32 v[160:161], v[160:161], v[162:163]')
    g('v_pk_add_f32 v[164:165], v[164:165], v[166:167]')
    g('v_pk_add_f32 v[160:161], v[160:161], v[168:169]')
    g('v_pk_add_f32 v[160:161], v[160:161], v[164:165]')
    ln_scalars(g, 160, 161, 's53', 170, 171, 172)
    g('v_mul_f32 v170, v170, v142')
    g.label('L_m_ns')
    g('s_waitcnt lgkmcnt(0)')
    gemv(10, 176, 64, 208)
    g.nop(8)
    class_combine(g, 208)
    g.set_exec(0x00ff00ff00ff00ff)
    g('ds_write2_b32 v26, v208, v210 offset0:0 offset1:2')
    g('s_mov_b64 exec, -1')
    g('s_waitcnt lgkmcnt(0)')
    g('s_barrier')
    g.stamp(10)
    g(f's_cmp_eq_u32 {sWAVE}, 7')
    g('s_cbranch_scc0 L_m_b3')
    for w in range(8):
        g(f'ds_read_b32 v{160+w}, v29 offset:{256*w}')
    g('s_waitcnt lgkmcnt(0)')
    g('v_pk_add_f32 v[160:161], v[160:161], v[162:163]')
    g('v_pk_add_f32 v[164:165], v[164:165], v[166:167]')
    g('v_pk_add_f32 v[160:161], v[160:161], v[164:165]')
    g('v_add_f32 v16, v160, v161')
    g('v_sub_f32 v16, v16, v170')
    g('v_mul_f32 v16, v16, v171')
    rnd_bf16(g, 16)
    g('v_mov_b32 v17, v16')
    g.nop(2)
    g('v_permlane32_swap_b32 v16, v17')
    g.nop(1)
    g('v_max_f32 v16, 0, v16')
    g('v_mul_f32 v16, v16, v17')
    g('v_cvt_pk_bf16_f32 v16, v16, v16')
    g(f'ds_write_b16 v31, v16 offset:{L_CB}')
    g('s_waitcnt lgkmcnt(0)')
    g.label('L_m_b3')
    g('s_barrier')
    g(f'ds_read_b64 v[16:17], v30 offset:{L_CB}')
    g('s_waitcnt lgkmcnt(0)')
    g.stamp(11)

    def down(base, vo):
        gemv(4, 16, base, 204)
        g.nop(8)
        class_combine(g, 204, out2=205)
        g.set_exec(0x00ff00ff00ff00ff)
        g(f'global_store_dwordx4 v{vo}, v[202:205], {WS} sc1')
        g('s_mov_b64 exec, -1')
    down(104, 14)
    g(f's_cmp_lt_u32 {sWAVE}, 2')
    g('s_cbranch_scc0 L_m_done')
    down(120, 15)
    g.label('L_m_done')

    g.label('L_fin')
    g.stamp(15)
    g.stamp_flush()
    g.label('L_end')
    g('s_endpgm')
    body = g.text()

    hdr = open('cdna_kernels/' + KN[:-7] + '.s.ref').read().split('\n')
    head = []
    for line in hdr:
        if line.startswith('; @launch'):
            head.append(f'; @launch grid=(256,1,1) block=(512,1,1) lds={LDS_BYTES}')
        elif line.startswith(';'):
            head.append(line)
        else:
            break
    out = '\n'.join(head) + '\n'
    out += '.amdgcn_target "amdgcn-amd-amdhsa--gfx950"\n.text\n'
    out += f'.globl {KN}\n.p2align 8\n.type {KN},@function\n{KN}:\n'
    out += body
    out += f'''.section .rodata,"a"
.p2align 6
.amdhsa_kernel {KN}
  .amdhsa_next_free_vgpr 256
  .amdhsa_next_free_sgpr 102
  .amdhsa_accum_offset 256
  .amdhsa_group_segment_fixed_size 0
  .amdhsa_kernarg_size 104
  .amdhsa_user_sgpr_count 2
  .amdhsa_user_sgpr_kernarg_segment_ptr 1
  .amdhsa_system_sgpr_workgroup_id_x 1
.end_amdhsa_kernel
'''
    return out


if __name__ == '__main__':
    import argparse
    ap = argparse.ArgumentParser()
    ap.add_argument('-o', default='k.s')
    ap.add_argument('--stamps', action='store_true')
    ap.add_argument('--stop', type=int, default=None)
    ap.add_argument('--opts', default='')
    a = ap.parse_args()
    open(a.o, 'w').write(build(a.stamps, a.stop, tuple(a.opts.split(','))))
```

```python
import sys, struct

KN = 'sequential_preLN__compressed_kv_cla__glu_gated_reglu__decode_kernel'

EPOCH = 0
XID = 0x1000
PF = 0x3000
Q1L = 0x10000
Q1G = 0x50000
QA = 0x90000
MLL = 0xA0000
C4 = 0xA8000
MLX = 0xC8000
OUTP = 0xE8000
O2P = 0x100000
OX = 0x180000
OPL = 0x200000
STAMPS = 0x800000

L_XN = 0
L_QB = 256
L_MB = 512
L_LB = 768
L_PB = 1024
L_RED = 3072
L_CB = 7168
L_HB = 8192
L_ST = 9472
L_MODE = 9728
L_TAG = 9732
L_QL = 10240
L_TILE = 26624
LDS_BYTES = 92160

S_X, S_CKV, S_WQ, S_WUK, S_WUV, S_WO, S_WG, S_WU, S_WD, S_OUT, S_DBG, S_WS = (
    's[8:9]', 's[10:11]', 's[12:13]', 's[14:15]', 's[16:17]', 's[18:19]', 's[22:23]', 's[24:25]', 's[26:27]',
    's[28:29]', 's[30:31]', 's[32:33]')
sXCD, sR, sWAVE, sH, sJ, sTAG = 's34', 's35', 's36', 's37', 's38', 's39'
POLL_LIMIT = 1 << 17


def f2u(x):
    return struct.unpack('<I', struct.pack('<f', x))[0]


class Gen:
    def __init__(s, stamps=False, stop_after=None):
        s.L = []
        s.n = 0
        s.stamps = stamps
        s.stop_after = stop_after
        s.nstamp = 0

    def __call__(s, txt):
        for line in txt.strip('\n').split('\n'):
            line = line.strip()
            if line:
                s.L.append('    ' + line)

    def label(s, name):
        s.L.append(name + ':')

    def uniq(s, base):
        s.n += 1
        return f'{base}_{s.n}'

    def nop(s, n):
        while n > 0:
            k = min(n, 16)
            s(f's_nop {k-1}')
            n -= k

    def stamp(s, idx):
        if s.stamps:
            s(f's_memrealtime s[{64+2*idx}:{65+2*idx}]')

    def stamp_flush(s, nst=16):
        if not s.stamps:
            return
        s('s_waitcnt lgkmcnt(0)')
        s('s_mov_b64 exec, 1')
        s(f's_lshl_b32 s48, s2, 3')
        s(f's_add_u32 s48, s48, {sWAVE}')
        s(f's_lshl_b32 s48, s48, 7')
        s(f's_add_u32 s48, s48, {STAMPS}')
        s('v_mov_b32 v1, s48')
        for i in range(nst):
            s(f'v_mov_b32 v2, s{64+2*i}')
            s(f'v_mov_b32 v3, s{65+2*i}')
            s(f'global_store_dwordx2 v1, v[2:3], {S_WS} offset:{8*i}')
            s('s_nop 1')
        s('s_waitcnt vmcnt(0)')

    def addr(s, dst, src, off):
        d = int(dst[2:].split(':')[0]); sr = int(src[2:].split(':')[0])
        s(f's_add_u32 s{d}, s{sr}, {off}')
        s(f's_addc_u32 s{d+1}, s{sr+1}, 0')

    def set_exec(s, mask):
        if mask == (1 << 64) - 1:
            s('s_mov_b64 exec, -1')
        else:
            s(f's_mov_b32 exec_lo, {mask & 0xffffffff:#x}')
            s(f's_mov_b32 exec_hi, {mask >> 32:#x}')

    def wave_reduce(s, regs, tmps, op='add'):
        ins = {'add': 'v_add_f32', 'max': 'v_max_f32'}[op]
        n = len(regs)
        pad = max(0, 2 - (n - 1))
        s.nop(2)
        for ctl in ['quad_perm:[1,0,3,2]', 'quad_perm:[2,3,0,1]', 'row_half_mirror', 'row_mirror']:
            for r in regs:
                s(f'{ins}_dpp v{r}, v{r}, v{r} {ctl} row_mask:0xf bank_mask:0xf')
            s.nop(pad)
        s.row_reduce(regs, tmps, op)

    def row_reduce(s, regs, tmps, op='add'):
        ins = {'add': 'v_add_f32', 'max': 'v_max_f32'}[op]
        n = len(regs)
        for sw in ['v_permlane16_swap_b32', 'v_permlane32_swap_b32']:
            for r, t in zip(regs, tmps):
                s(f'v_mov_b32 v{t}, v{r}')
            s.nop(max(0, 2 - (n - 1)))
            for r, t in zip(regs, tmps):
                s(f'{sw} v{t}, v{r}')
            s.nop(1 if n == 1 else 0)
            for r, t in zip(regs, tmps):
                s(f'{ins} v{r}, v{r}, v{t}')
            s.nop(0)

    def check_tags(s, regs, t0, t1, done_label):
        tags = []
        for r in regs:
            tags += [r + 1, r + 3]
        if len(tags) == 2:
            s(f'v_cmp_eq_u32 vcc, {sTAG}, v{tags[0]}')
            s(f'v_cmp_eq_u32 s[46:47], {sTAG}, v{tags[1]}')
        else:
            s(f'v_min3_u32 v{t0}, v{tags[0]}, v{tags[1]}, v{tags[2]}')
            s(f'v_max3_u32 v{t1}, v{tags[0]}, v{tags[1]}, v{tags[2]}')
            rest = tags[3:]
            while rest:
                if len(rest) >= 2:
                    s(f'v_min3_u32 v{t0}, v{t0}, v{rest[0]}, v{rest[1]}')
                    s(f'v_max3_u32 v{t1}, v{t1}, v{rest[0]}, v{rest[1]}')
                    rest = rest[2:]
                else:
                    s(f'v_min_u32 v{t0}, v{t0}, v{rest[0]}')
                    s(f'v_max_u32 v{t1}, v{t1}, v{rest[0]}')
                    rest = rest[1:]
            s(f'v_cmp_eq_u32 vcc, {sTAG}, v{t0}')
            s(f'v_cmp_eq_u32 s[46:47], {sTAG}, v{t1}')
        s('s_and_b64 vcc, vcc, s[46:47]')
        s('s_cmp_eq_u64 vcc, exec')
        s(f's_cbranch_scc1 {done_label}')

    def poll(s, name, emit_loads, regs, t0, t1, first_hook=None, alt=None):
        top = s.uniq(name + '_top'); done = s.uniq(name + '_done'); fail = s.uniq(name + '_fail')
        s(f's_mov_b32 s50, 0')
        if first_hook is not None:
            emit_loads(alt[0] if alt else None)
            first_hook()
            s('s_waitcnt vmcnt(0)')
            s.check_tags(regs, t0, t1, done)
        s.label(top)
        if alt:
            s('s_add_u32 s50, s50, 1')
            s('s_and_b32 s51, s50, 7')
            s('s_cmp_eq_u32 s51, 0')
            s(f's_cselect_b64 s[44:45], {alt[1]}, {alt[0]}')
            emit_loads('s[44:45]')
        else:
            s('s_add_u32 s50, s50, 1')
            emit_loads(None)
        s('s_waitcnt vmcnt(0)')
        s.check_tags(regs, t0, t1, done)
        s(f's_cmp_lt_u32 s50, {POLL_LIMIT}')
        s(f's_cbranch_scc1 {top}')
        s(f's_mov_b64 s[46:47], exec')
        s('s_mov_b64 exec, 1')
        s(f'v_mov_b32 v{t0}, {4*(s.n % 60)}')
        s(f'v_mov_b32 v{t1}, {0x1000 + s.n}')
        s(f'global_store_dword v{t0}, v{t1}, {S_DBG}')
        s(f's_mov_b64 exec, s[46:47]')
        s.label(done)

    def poll2(s, name, loads, masks, t0, t1, alt=None):
        top = s.uniq(name + '_top'); done = s.uniq(name + '_done')
        n = len(loads)
        assert len(masks) >= n
        s('s_mov_b32 s50, 0')
        for ins, tg, em in loads:
            if em is not None:
                s.set_exec(em)
            s(ins.format(base=alt[0] if alt else None))
            if em is not None:
                s('s_mov_b64 exec, -1')
        s.label(top)
        s('s_waitcnt vmcnt(0)')
        for k, (ins, tg, em) in enumerate(loads):
            s(f'v_cmp_ne_u32 {masks[k]}, {sTAG}, v{tg}')
        if n == 1:
            s(f's_cmp_eq_u64 {masks[0]}, 0')
            s(f's_cbranch_scc1 {done}')
        else:
            s(f's_or_b64 s[46:47], {masks[0]}, {masks[1]}')
            for k in range(2, n):
                s(f's_or_b64 s[46:47], s[46:47], {masks[k]}')
            s(f's_cbranch_scc0 {done}')
        s('s_add_u32 s50, s50, 1')
        if alt:
            s('s_and_b32 s51, s50, 7')
            s('s_cmp_eq_u32 s51, 0')
            s(f's_cselect_b64 s[44:45], {alt[1]}, {alt[0]}')
        for k, (ins, tg, em) in enumerate(loads):
            s(f's_mov_b64 exec, {masks[k]}')
            if n > 1:
                sk = s.uniq(name + '_sk')
                s(f's_cbranch_execz {sk}')
            s(ins.format(base='s[44:45]' if alt else None))
            if n > 1:
                s.label(sk)
        s('s_mov_b64 exec, -1')
        s(f's_cmp_lt_u32 s50, {POLL_LIMIT}')
        s(f's_cbranch_scc1 {top}')
        s('s_waitcnt vmcnt(0)')
        s('s_mov_b64 exec, 1')
        s(f'v_mov_b32 v{t0}, {4*(s.n % 60)}')
        s(f'v_mov_b32 v{t1}, {0x1000 + s.n}')
        s(f'global_store_dword v{t0}, v{t1}, {S_DBG}')
        s('s_mov_b64 exec, -1')
        s.label(done)

    def text(s):
        return '\n'.join(s.L) + '\n'


KAPPA = (128 ** -0.5) * 1.4426950408889634


def gen_sel(g, base, t0, t1):
    g(f'v_and_b32 v{t0}, 7, v0')
    g(f'v_and_b32 v{t1}, 1, v0')
    for par in range(2):
        lo = 0x0c0c0000 | ((2 * par + 1) << 8) | (2 * par)
        hi = ((2 * par + 1) << 24) | ((2 * par) << 16) | 0x0c0c
        g(f'v_cmp_eq_u32 vcc, 1, v{t1}')
        g(f'v_mov_b32 v{base+par}, {lo:#x}')
        g(f'v_mov_b32 v{base+2+par}, {hi:#x}')
        g(f'v_cndmask_b32 v{base+par}, v{base+par}, v{base+2+par}, vcc')
    g(f'v_lshrrev_b32 v{t0}, 1, v{t0}')
    g(f'v_mov_b32 v{t1}, 0x0c0c0c0c')
    for v in [3, 2, 1, 0]:
        g(f'v_cmp_eq_u32 vcc, {v}, v{t0}')
        g.nop(1)
        for par in range(2):
            g(f'v_cndmask_b32 v{base+2*v+par}, v{t1}, v{base+par}, vcc')


def gen_mask(g, base, t0, t1):
    g(f'v_and_b32 v{t0}, 7, v0')
    g(f'v_and_b32 v{t1}, 1, v0')
    g(f'v_cmp_eq_u32 vcc, 1, v{t1}')
    g(f'v_mov_b32 v{base}, 0xffff')
    g(f'v_mov_b32 v{base+1}, 0xffff0000')
    g(f'v_cndmask_b32 v{t1}, v{base}, v{base+1}, vcc')
    g(f'v_lshrrev_b32 v{t0}, 1, v{t0}')
    for v in range(4):
        g(f'v_cmp_eq_u32 vcc, {v}, v{t0}')
        g.nop(1)
        g(f'v_cndmask_b32 v{base+v}, 0, v{t1}, vcc')


def get_tag(g, vreg):
    g.nop(1)
    g(f'v_readfirstlane_b32 {sTAG}, v{vreg}')
    g.nop(4)
    g(f's_mul_i32 {sTAG}, {sTAG}, 5')
    g(f's_add_u32 {sTAG}, {sTAG}, 0x9E3779B9')


def rnd_bf16(g, r):
    g(f'v_cvt_pk_bf16_f32 v{r}, v{r}, v{r}')
    g(f'v_and_b32 v{r}, 0xffff0000, v{r}')


def ln_scalars(g, s1, s2, piv_sgpr, vm, vrs, t0):
    g(f's_mov_b32 s52, {f2u(1.0/640):#x}')
    g(f'v_mul_f32 v{s1}, s52, v{s1}')
    g(f'v_mul_f32 v{s2}, s52, v{s2}')
    g(f'v_fma_f32 v{s2}, -v{s1}, v{s1}, v{s2}')
    g(f'v_max_f32 v{s2}, 0, v{s2}')
    g(f'v_add_f32 v{vm}, {piv_sgpr}, v{s1}')
    rnd_bf16(g, vm)
    rnd_bf16(g, s2)
    g(f'v_add_f32 v{s2}, 0x3727c5ac, v{s2}')
    rnd_bf16(g, s2)
    g(f'v_sqrt_f32 v{s2}, v{s2}')
    g.nop(1)
    rnd_bf16(g, s2)
    g(f'v_rcp_f32 v{vrs}, v{s2}')
    g.nop(1)


def class_combine(g, d, out2=None):
    if out2 is None:
        out2 = d + 2
    for k in range(4):
        g(f'v_mov_b32_dpp v{d+k}, v{d+k} row_ror:8 row_mask:0xc bank_mask:0xf')
    g.nop(1)
    g(f'v_permlane32_swap_b32 v{d}, v{d+1}')
    g(f'v_permlane32_swap_b32 v{d+2}, v{d+3}')
    g.nop(1)
    g(f'v_add_f32 v{d}, v{d}, v{d+1}')
    g(f'v_add_f32 v{out2}, v{d+2}, v{d+3}')


def mode_store(g, ins_no_flag, smode):
    a = g.uniq('ms_fast'); b = g.uniq('ms_done')
    g(f's_cmp_eq_u32 {smode}, 1')
    g(f's_cbranch_scc1 {a}')
    for ins in ins_no_flag:
        g(ins + ' sc1')
    g(f's_branch {b}')
    g.label(a)
    for ins in ins_no_flag:
        g(ins)
    g.label(b)


def own_tag(g, vreg):
    g(f'v_readfirstlane_b32 {sTAG}, v{vreg}')
    g.nop(4)
    g(f's_mul_i32 {sTAG}, {sTAG}, 5')
    g(f's_add_u32 {sTAG}, {sTAG}, 0x9E3779B9')


MA = ['s[10:11]', 's[12:13]', 's[14:15]', 's[18:19]', 's[20:21]', 's[22:23]', 's[24:25]', 's[26:27]']
MQ = ['s[10:11]', 's[12:13]', 's[14:15]', 's[16:17]', 's[20:21]', 's[96:97]', 's[98:99]', 's[100:101]']
MB = ['s[10:11]', 's[12:13]', 's[14:15]', 's[16:17]', 's[18:19]', 's[20:21]', 's[22:23]', 's[24:25]']


def build(stamps=False, stop_after=None, opts=()):
    g = Gen(stamps, stop_after)
    sMODE = 's59'
    WS = S_WS
    g('s_cmp_ge_u32 s2, 256')
    g('s_cbranch_scc1 L_end')
    g('s_load_dwordx16 s[8:23], s[0:1], 0')
    g('s_load_dwordx8 s[24:31], s[0:1], 64')
    g('s_load_dwordx2 s[32:33], s[0:1], 96')
    g('s_getpc_b64 s[42:43]')
    g('v_lshlrev_b32 v1, 4, v0')
    g('global_load_dwordx4 v[232:235], v1, s[42:43]')
    g.stamp(0)
    g('v_lshrrev_b32 v1, 6, v0')
    g('v_and_b32 v0, 63, v0')
    g(f'v_readfirstlane_b32 {sWAVE}, v1')
    g(f's_and_b32 {sXCD}, s2, 7')
    g(f's_lshr_b32 {sR}, s2, 3')
    g(f's_lshr_b32 {sH}, {sR}, 3')
    g(f's_lshl_b32 s48, {sXCD}, 2')
    g(f's_add_u32 {sH}, {sH}, s48')
    g(f's_and_b32 {sJ}, {sR}, 7')
    g('v_mov_b32 v1, 0')
    g('v_lshlrev_b32 v3, 4, v0')
    g('v_and_b32 v7, 15, v0')
    g('v_lshrrev_b32 v6, 4, v0')
    g(f's_cmp_eq_u32 {sWAVE}, 1')
    g('s_cbranch_scc1 L_w1')
    g(f's_cmp_eq_u32 {sWAVE}, 0')
    g('s_cbranch_scc1 L_w0')

    def pre(tagwait=False):
        g(f's_and_b32 s55, {sR}, 1')
        g(f's_lshr_b32 s56, {sR}, 1')
        g('v_and_b32 v8, 7, v0')
        g('v_lshlrev_b32 v8, 1, v8')
        g(f's_lshl_b32 s48, {sWAVE}, 14')
        g(f's_add_u32 s48, s48, {L_TILE}')
        for tl in range(4):
            g(f'v_add_u32 v9, {4*tl}, v6')
            g('v_xor_b32 v9, v9, v8')
            g('v_lshlrev_b32 v9, 4, v9')
            g(f'v_lshl_add_u32 v{32+tl}, v7, 10, v9')
            g(f'v_add_u32 v{36+tl}, s48, v{32+tl}')
        g('v_lshrrev_b32 v9, 2, v0')
        g('v_and_b32 v10, 7, v9')
        g('v_lshlrev_b32 v9, 10, v9')
        g('v_and_b32 v11, 3, v0')
        g('v_lshl_add_u32 v9, v11, 3, v9')
        g(f's_lshr_b32 s48, {sWAVE}, 1')
        g('s_lshl_b32 s48, s48, 8')
        g(f's_add_u32 s48, s48, {L_TILE}')
        g('v_add_u32 v9, s48, v9')
        g(f's_and_b32 s48, {sWAVE}, 1')
        g('s_lshl_b32 s48, s48, 2')
        for nn in range(4):
            g(f's_add_u32 s49, s48, {nn}')
            g('v_xor_b32 v11, s49, v10')
            g(f'v_lshl_add_u32 v{40+nn}, v11, 5, v9')
        g('v_lshrrev_b32 v9, 1, v0')
        g('v_and_b32 v10, 1, v0')
        g('v_lshlrev_b32 v10, 3, v10')
        for ih in range(2):
            g(f's_lshl_b32 s48, {sWAVE}, 1')
            g(f's_add_u32 s48, s48, {ih}')
            g('s_and_b32 s49, s48, 7')
            g('s_lshl_b32 s49, s49, 1')
            g('v_xor_b32 v11, s49, v9')
            g('v_lshl_add_u32 v11, v11, 4, v10')
            g('s_lshl_b32 s48, s48, 10')
            g(f's_add_u32 s48, s48, {L_QL}')
            g(f'v_add_u32 v{44+ih}, s48, v11')
        gen_mask(g, 240, 9, 10)
        g('v_lshlrev_b32 v46, 4, v7')
        g(f's_lshl_b32 s48, {sWAVE}, 2')
        g('v_add_u32 v47, s48, v46')
        g('v_lshlrev_b32 v57, 3, v0')
        g(f's_lshl_b32 s48, {sWAVE}, 9')
        g('v_add_u32 v56, s48, v57')
        g('s_lshl_b32 s48, s55, 15')
        g(f's_lshl_b32 s49, {sWAVE}, 12')
        g('s_add_u32 s48, s48, s49')
        g(f's_add_u32 s48, s48, {QA}')
        g('v_add_u32 v248, s48, v3')
        g(f's_lshl_b32 s48, {sXCD}, 19')
        g('s_lshl_b32 s49, s55, 18')
        g('s_add_u32 s48, s48, s49')
        g('s_lshl_b32 s49, s56, 15')
        g('s_add_u32 s48, s48, s49')
        g(f's_lshl_b32 s49, {sWAVE}, 12')
        g('s_add_u32 s48, s48, s49')
        g(f's_add_u32 s48, s48, {OPL}')
        g('v_add_u32 v58, s48, v3')
        g(f's_lshl_b32 s48, {sXCD}, 12')
        g('s_lshl_b32 s49, s55, 11')
        g('s_add_u32 s48, s48, s49')
        g('s_lshl_b32 s49, s56, 8')
        g('s_add_u32 s48, s48, s49')
        g(f's_add_u32 s48, s48, {MLL}')
        g('v_add_u32 v249, s48, v3')
        g(f's_lshr_b32 s60, {sR}, 3')
        g(f's_and_b32 s58, {sR}, 7')
        g(f's_and_b32 s57, {sWAVE}, 3')
        g(f's_lshl_b32 s48, {sXCD}, 12')
        g('s_lshl_b32 s49, s60, 11')
        g('s_add_u32 s48, s48, s49')
        g(f's_add_u32 s48, s48, {MLL}')
        g('v_add_u32 v59, s48, v3')
        g('v_lshlrev_b32 v61, 5, v7')
        g(f'v_add_u32 v61, {L_RED}, v61')
        g('v_lshl_add_u32 v60, v6, 2, v61')
        g(f's_lshl_b32 s48, {sXCD}, 19')
        g('s_lshl_b32 s49, s60, 18')
        g('s_add_u32 s48, s48, s49')
        g('s_lshl_b32 s49, s58, 12')
        g('s_add_u32 s48, s48, s49')
        g('s_lshl_b32 s49, s57, 10')
        g('s_add_u32 s48, s48, s49')
        g(f's_add_u32 s48, s48, {OPL}')
        g('v_add_u32 v224, s48, v3')
        for k in range(1, 8):
            g(f'v_add_u32 v{224+k}, {32768*k}, v224')
        g(f's_lshl_b32 s48, {sXCD}, 16')
        g('s_lshl_b32 s49, s60, 15')
        g('s_add_u32 s48, s48, s49')
        g('s_lshl_b32 s49, s58, 12')
        g('s_add_u32 s48, s48, s49')
        g('s_lshl_b32 s49, s57, 10')
        g('s_add_u32 s48, s48, s49')
        g(f's_add_u32 s48, s48, {OX}')
        g('v_lshlrev_b32 v244, 6, v7')
        g('v_lshl_add_u32 v244, v6, 4, v244')
        g('v_add_u32 v244, s48, v244')
        g(f's_lshl_b32 s48, {sXCD}, 9')
        g('s_lshl_b32 s49, s60, 8')
        g('s_add_u32 s48, s48, s49')
        g(f's_add_u32 s48, s48, {MLX}')
        g('v_add_u32 v250, s48, v3')
        g(f's_lshr_b32 s48, {sR}, 2')
        g(f's_lshl_b32 s49, {sXCD}, 2')
        g('s_add_u32 s61, s48, s49')
        g(f's_and_b32 s62, {sR}, 3')
        g('v_bfe_u32 v13, v0, 2, 3')
        g('s_lshr_b32 s48, s61, 4')
        g('s_lshl_b32 s48, s48, 5')
        g('s_lshl_b32 s49, s62, 3')
        g('s_add_u32 s48, s48, s49')
        g(f's_add_u32 s48, s48, {sWAVE}')
        g('s_lshl_b32 s48, s48, 10')
        g('s_and_b32 s49, s61, 15')
        g('s_lshl_b32 s49, s49, 6')
        g('s_add_u32 s48, s48, s49')
        g(f's_add_u32 s48, s48, {OX}')
        g('v_lshlrev_b32 v14, 16, v13')
        g('v_and_b32 v12, 3, v0')
        g('v_lshl_add_u32 v14, v12, 4, v14')
        g('v_add_u32 v245, s48, v14')
        g('s_lshl_b32 s48, s61, 4')
        g(f's_add_u32 s48, s48, {MLX}')
        g('v_lshlrev_b32 v14, 9, v13')
        g('v_add_u32 v14, s48, v14')
        g('v_cmp_le_u32 vcc, 32, v0')
        g.nop(1)
        g('v_cndmask_b32 v245, v245, v14, vcc')
        g('v_lshlrev_b32 v247, 5, v7')
        g('v_lshl_add_u32 v247, v6, 4, v247')
        g(f's_lshl_b32 s48, {sWAVE}, 9')
        g('v_add_u32 v247, s48, v247')
        g(f's_lshl_b32 s48, {sXCD}, 4')
        g(f's_add_u32 s48, s48, {sR}')
        g('s_lshl_b32 s48, s48, 9')
        g(f's_add_u32 s48, s48, {C4}')
        g('v_lshrrev_b32 v253, 1, v0')
        g('v_lshl_add_u32 v253, v253, 4, s48')
        g('s_lshl_b32 s48, s61, 8')
        g('s_lshl_b32 s49, s62, 3')
        g(f's_add_u32 s49, s49, {sWAVE}')
        g('s_lshl_b32 s49, s49, 17')
        g('s_add_u32 s48, s48, s49')
        g('s_waitcnt lgkmcnt(0)')
        g.addr('s[62:63]' if False else 's[96:97]', S_WUV, 's48')
        g('v_lshlrev_b32 v254, 13, v6')
        g('v_lshl_add_u32 v254, v7, 4, v254')
        if tagwait:
            g('s_waitcnt vmcnt(0)')
            own_tag(g, 2)
        if 'newpt' in opts:
            g(f'global_load_dword v233, v245, {WS} sc1')
            pt = g.uniq('pt')
            g(f's_cmp_eq_u32 {sWAVE}, 5')
            g(f's_cbranch_scc0 {pt}')
            g(f'global_load_dword v234, v59, {WS} sc1')
            g(f'global_load_dword v235, v59, {WS} offset:1024 sc1')
            g('s_mov_b64 exec, 1')
            g(f'global_load_dword v236, v58, {WS} sc1')
            g(f'global_load_dword v237, v224, {WS} sc1')
            g('s_mov_b64 exec, -1')
            g.label(pt)

    def dma(wsel=None):
        g(f's_lshr_b32 s56, {sR}, 1')
        g(f's_lshl_b32 s57, {sXCD}, 3')
        g('s_add_u32 s57, s57, s56')
        g('s_lshl_b32 s48, s57, 6')
        if 'rot' in opts:
            g(f's_and_b32 s49, {sR}, 1')
            g('s_lshl_b32 s49, s49, 2')
            g(f's_add_u32 s49, s49, {wsel or sWAVE}')
            g('s_and_b32 s49, s49, 7')
            g('s_lshl_b32 s49, s49, 3')
        else:
            g(f's_lshl_b32 s49, {wsel or sWAVE}, 3')
        g('s_add_u32 s48, s48, s49')
        g('s_lshl_b32 s48, s48, 10')
        g.addr('s[40:41]', S_CKV, 's48')
        g('s_lshl_b32 s49, s49, 10')
        g(f's_add_u32 s49, s49, {L_TILE}')
        g('s_mov_b32 m0, s49')
        for i in range(8):
            if i == 4:
                g('s_add_u32 s49, s49, 4096')
                g('s_mov_b32 m0, s49')
                g('s_add_u32 s40, s40, 4096')
                g('s_addc_u32 s41, s41, 0')
            g(f'v_xor_b32 v4, {32*i}, v3')
            g(f'global_load_lds_dwordx4 v4, s[40:41] offset:{1024*(i%4)}' + ('' if 'ckvnont' in opts else ' nt'))

    def wuk_dma():
        g(f's_sub_u32 s54, {sR}, 16')
        g('s_lshr_b32 s48, s54, 2')
        g(f's_lshl_b32 s49, {sXCD}, 2')
        g('s_add_u32 s48, s48, s49')
        g('s_lshl_b32 s48, s48, 8')
        g('s_and_b32 s49, s54, 3')
        g('s_lshl_b32 s49, s49, 2')
        g(f's_add_u32 s49, s49, {sWAVE}')
        g('s_sub_u32 s49, s49, 4')
        g('s_lshl_b32 s49, s49, 18')
        g('s_add_u32 s48, s48, s49')
        g.addr('s[40:41]', S_WUK, 's48')
        g('v_xor_b32 v8, v7, v6')
        g('v_lshlrev_b32 v8, 4, v8')
        g('v_lshl_add_u32 v8, v6, 13, v8')
        for n in range(1, 4):
            g(f'v_xor_b32 v{8+n}, {64*n}, v8')
        g(f's_and_b32 s49, {sWAVE}, 3')
        g('s_lshl_b32 s49, s49, 13')
        g(f's_add_u32 m0, s49, {L_TILE}')
        g.nop(1)
        for n in range(8):
            g(f'global_load_lds_dwordx4 v{8+(n&3)}, s[40:41] nt')
            if n < 7:
                g('s_add_u32 m0, m0, 1024')
                g('s_add_u32 s40, s40, 32768')
                g('s_addc_u32 s41, s41, 0')

    g('s_waitcnt lgkmcnt(0)')
    if 'bq' in opts:
        g('s_barrier')
    g(f's_cmp_ge_u32 {sWAVE}, 4')
    g('s_cbranch_scc0 L_e_nb')
    g(f's_cmp_ge_u32 {sR}, 16')
    g('s_cbranch_scc1 L_e_b')
    if 'fulldma' in opts:
        g(f's_sub_u32 s58, {sWAVE}, 4')
        dma('s58')
    if 'halfdma' in opts or 'fulldma' in opts:
        dma()
    g('s_branch L_e_nb')
    g.label('L_e_b')
    if 'wukb0' not in opts:
        wuk_dma()
    g.label('L_e_nb')
    g('s_waitcnt lgkmcnt(0)')
    g(f'global_load_dword v2, v1, {WS} sc1')
    g(f's_cmp_eq_u32 {sWAVE}, 3')
    g('s_cbranch_scc0 L_nw7')
    g(f's_and_b32 s48, {sR}, 7')
    g('s_lshl_b32 s48, s48, 10')
    g('s_add_u32 s48, s48, 8192')
    g(f's_min_u32 s48, s48, L_end-{KN}-1088')
    g('s_add_u32 s42, s42, s48')
    g('s_addc_u32 s43, s43, 0')
    g('global_load_dwordx4 v[236:239], v3, s[42:43]')
    g.label('L_nw7')
    g(f's_cmp_ge_u32 {sR}, 16')
    g('s_cbranch_scc0 L_pre')
    g.label('L_e_tag')
    g(f's_cmp_eq_u32 {sWAVE}, 2')
    g('s_cbranch_scc0 L_b0')
    g('s_waitcnt vmcnt(0)')
    own_tag(g, 2)
    g('s_getreg_b32 s48, hwreg(HW_REG_XCC_ID)')
    g('s_and_b32 s48, s48, 0xf')
    g('v_mov_b32 v12, s48')
    g(f'v_mov_b32 v15, {sTAG}')
    g(f's_lshl_b32 s48, {sXCD}, 5')
    g(f's_add_u32 s48, s48, {sR}')
    g('s_lshl_b32 s48, s48, 4')
    g(f's_add_u32 s48, s48, {XID}')
    g('v_mov_b32 v16, s48')
    g('s_mov_b64 exec, 1')
    g(f'global_store_dwordx4 v16, v[12:15], {WS} sc1')
    g('s_mov_b64 exec, -1')
    g('s_branch L_b0')

    g.label('L_w0')
    g('v_lshlrev_b32 v4, 2, v0')
    g('v_min_u32 v5, 39, v0')
    g('v_lshlrev_b32 v5, 2, v5')
    g(f's_mul_i32 s48, {sJ}, 160')
    g('v_add_u32 v5, s48, v5')
    g('s_waitcnt lgkmcnt(0)')
    for k in range(5):
        g(f'global_load_dword v{10+k}, v4, {S_X} offset:{256*k}')
    g(f'global_load_dword v15, v5, {S_X}')
    g(f'global_load_dword v2, v1, {WS} sc1')
    g(f's_mov_b32 s52, {f2u(1.0/640):#x}')
    if 'bq' in opts:
        g('s_barrier')
    g('s_waitcnt vmcnt(2)')
    g.stamp(1)
    for k in range(5):
        g(f'v_lshlrev_b32 v{16+2*k}, 16, v{10+k}')
        g(f'v_and_b32 v{17+2*k}, 0xffff0000, v{10+k}')
    g('v_readfirstlane_b32 s53, v16')
    g.nop(4)
    for k in range(10):
        g(f'v_subrev_f32 v{16+k}, s53, v{16+k}')
    g('v_pk_mul_f32 v[26:27], v[16:17], v[16:17]')
    g('v_pk_add_f32 v[28:29], v[16:17], v[18:19]')
    for k in range(1, 5):
        g(f'v_pk_fma_f32 v[26:27], v[{16+2*k}:{17+2*k}], v[{16+2*k}:{17+2*k}], v[26:27]')
        if k >= 2:
            g(f'v_pk_add_f32 v[28:29], v[28:29], v[{16+2*k}:{17+2*k}]')
    g('v_add_f32 v27, v26, v27')
    g('v_add_f32 v26, v28, v29')
    g.wave_reduce([26, 27], [28, 29])
    ln_scalars(g, 26, 27, 's53', 28, 29, 30)
    g('s_waitcnt vmcnt(1)')
    g('v_lshlrev_b32 v16, 16, v15')
    g('v_and_b32 v17, 0xffff0000, v15')
    g('v_sub_f32 v16, v16, v28')
    g('v_sub_f32 v17, v17, v28')
    g('v_cvt_pk_bf16_f32 v18, v16, v17')
    g('v_lshlrev_b32 v16, 16, v18')
    g('v_and_b32 v17, 0xffff0000, v18')
    g('v_mul_f32 v16, v16, v29')
    g('v_mul_f32 v17, v17, v29')
    g('v_cvt_pk_bf16_f32 v18, v16, v17')
    g(f'ds_write_b32 v4, v18 offset:{L_XN}')
    g('s_waitcnt lgkmcnt(0)')
    g.stamp(2)
    g('s_barrier')
    g('s_waitcnt vmcnt(0)')
    own_tag(g, 2)
    g(f's_cmp_ge_u32 {sR}, 16')
    g('s_cbranch_scc1 L_pathB')
    g('s_branch L_pre0')

    g.label('L_w1')
    g(f's_mov_b32 s49, {20*8192}')
    g('v_mul_lo_u32 v8, v6, s49')
    g('v_lshl_add_u32 v8, v7, 4, v8')
    g(f's_mul_i32 s48, {sJ}, {80*8192}')
    g(f's_lshl_b32 s49, {sH}, 8')
    g('s_add_u32 s48, s48, s49')
    g('s_waitcnt lgkmcnt(0)')
    g.addr('s[40:41]', S_WQ, 's48')
    for t in range(20):
        g(f'global_load_dwordx4 v[{80+4*t}:{83+4*t}], v8, s[40:41] nt')
        if t < 19:
            g('s_add_u32 s40, s40, 8192')
            g('s_addc_u32 s41, s41, 0')
    g(f'global_load_dword v2, v1, {WS} sc1')
    if 'bq' in opts:
        g('s_barrier')
    g.stamp(1)
    gen_sel(g, 192, 16, 17)
    g(f's_lshl_b32 s48, {sH}, 3')
    g(f's_add_u32 s48, s48, {sJ}')
    g('s_lshl_b32 s48, s48, 10')
    g(f's_add_u32 s49, s48, {Q1L}')
    g.addr('s[44:45]', S_WS, 's49')
    g(f's_add_u32 s49, s48, {Q1G}')
    g.addr('s[46:47]', S_WS, 's49')
    g('v_mul_u32_u24 v19, 40, v6')
    g('s_mov_b32 s56, 0')
    g('s_mov_b32 s57, -1')
    g('s_barrier')
    for k in range(5):
        g(f'ds_read_b64 v[{16+2*k}:{17+2*k}], v19 offset:{L_XN+8*k}')
    g('s_waitcnt lgkmcnt(0)')

    def perms(t):
        a = 160 + 4 * (t % 4)
        for v in range(4):
            g(f'v_perm_b32 v{a+v}, v{16+t//2}, v{16+t//2}, v{192+2*v+(t&1)}')
    perms(0)
    perms(1)
    for t in range(20):
        if t + 2 < 20:
            perms(t + 2)
        g(f's_waitcnt vmcnt({19-t+1})')
        a = 160 + 4 * (t % 4)
        c = '0' if t == 0 else 'v[200:203]'
        g(f'v_mfma_f32_16x16x32_bf16 v[200:203], v[{a}:{a+3}], v[{80+4*t}:{83+4*t}], {c}')
        if t == 17:
            pass
    g('s_waitcnt vmcnt(0)')
    g(f'v_readfirstlane_b32 {sTAG}, v2')
    g.nop(4)
    g(f's_mul_i32 {sTAG}, {sTAG}, 5')
    g(f's_add_u32 {sTAG}, {sTAG}, 0x9E3779B9')
    g(f'v_mov_b32 v207, {sTAG}')
    g('v_cndmask_b32 v204, v200, v202, s[56:57]')
    g('v_cndmask_b32 v205, v201, v203, s[56:57]')
    g(f'global_store_dwordx4 v3, v[204:207], s[44:45]')
    g(f'global_store_dwordx4 v3, v[204:207], s[46:47] sc1')
    g.stamp(2)
    g(f's_cmp_ge_u32 {sR}, 16')
    g('s_cbranch_scc1 L_pathB')
    g('s_branch L_bp1')

    g.label('L_b0')
    g('s_barrier')
    g('s_waitcnt vmcnt(0)')
    own_tag(g, 2)
    if 'wukb0' in opts:
        g(f's_cmp_ge_u32 {sWAVE}, 4')
        g('s_cbranch_scc0 L_pathB')
        wuk_dma()
        g('s_waitcnt vmcnt(0)')
    g('s_branch L_pathB')

    g.label('L_pre')
    pre(tagwait=True)
    g(f's_cmp_eq_u32 {sWAVE}, 2')
    g('s_cbranch_scc0 L_pre_nx')
    g('s_getreg_b32 s48, hwreg(HW_REG_XCC_ID)')
    g('s_and_b32 s48, s48, 0xf')
    g('v_mov_b32 v12, s48')
    g(f'v_mov_b32 v15, {sTAG}')
    g(f's_lshl_b32 s48, {sXCD}, 5')
    g(f's_add_u32 s48, s48, {sR}')
    g('s_lshl_b32 s48, s48, 4')
    g(f's_add_u32 s48, s48, {XID}')
    g('v_mov_b32 v16, s48')
    g('s_mov_b64 exec, 1')
    g(f'global_store_dwordx4 v16, v[12:15], {WS} sc1')
    g('s_mov_b64 exec, -1')
    g.label('L_pre_nx')
    g('s_barrier')
    g.label('L_bp')
    g('s_barrier')
    if 'halfdma' in opts:
        g(f's_cmp_ge_u32 {sWAVE}, 4')
        g('s_cbranch_scc1 L_a_dmadone')
    if 'fulldma' not in opts:
        dma()
    g.stamp(13)
    g('s_branch L_a_dmadone')
    g.label('L_pre0')
    pre()
    g('s_branch L_bp')
    g.label('L_bp1')
    g('s_barrier')
    if 'fulldma' not in opts:
        dma()
    g.stamp(13)
    pre()
    g.label('L_a_dmadone')
    g(f's_and_b32 s57, {sWAVE}, 3')
    if 'newpt' not in opts:
        g(f'global_load_dword v233, v58, {WS} sc1')
        g(f'global_load_dword v234, v224, {WS} sc1')
        g(f'global_load_dword v235, v231, {WS} sc1')
    g(f's_cmp_eq_u32 {sWAVE}, 3')
    g('s_cbranch_scc0 L_a_nochk')
    g(f's_lshl_b32 s48, {sXCD}, 9')
    g(f's_add_u32 s48, s48, {XID}')
    g('v_and_b32 v9, 31, v0')
    g('v_lshlrev_b32 v9, 4, v9')
    g('v_add_u32 v9, s48, v9')
    g('s_getreg_b32 s52, hwreg(HW_REG_XCC_ID)')
    g('s_and_b32 s52, s52, 0xf')
    g('s_mov_b32 s50, 0')
    g(f's_mov_b32 {sMODE}, 0')
    g.label('L_a_chk')
    g(f'global_load_dwordx4 v[12:15], v9, {WS} sc1')
    g('s_add_u32 s50, s50, 1')
    g('s_waitcnt vmcnt(0)')
    g(f'v_cmp_eq_u32 vcc, {sTAG}, v15')
    g('s_cmp_eq_u64 vcc, exec')
    g('s_cbranch_scc1 L_a_chk_ok')
    g('s_cmp_lt_u32 s50, 64')
    g('s_cbranch_scc1 L_a_chk')
    g('s_branch L_a_chk_done')
    g.label('L_a_chk_ok')
    g('v_cmp_eq_u32 vcc, s52, v12')
    g('s_cmp_eq_u64 vcc, exec')
    g(f's_cselect_b32 {sMODE}, 1, 0')
    g.label('L_a_chk_done')
    g(f'v_mov_b32 v12, {sMODE}')
    g(f'ds_write_b32 v1, v12 offset:{L_MODE}')
    g.label('L_a_nochk')
    wuv_ins = []
    for tt in range(4):
        wuv_ins.append(f'global_load_dwordx4 v[{64+4*tt}:{67+4*tt}], v254, s[96:97] nt')
        if tt < 3:
            wuv_ins.append('s_add_u32 s96, s96, 32768')
            wuv_ins.append('s_addc_u32 s97, s97, 0')
    if 'wuvearly' in opts:
        for ins in wuv_ins:
            g(ins)
        g('s_waitcnt vmcnt(4) lgkmcnt(0)')
    else:
        g('s_waitcnt vmcnt(0) lgkmcnt(0)')
    g.stamp(3)
    g('s_barrier')
    FA = 96
    FT = 160
    skip = g.uniq('skipfa')
    g(f's_cmp_lt_u32 {sWAVE}, 4')
    g(f's_cbranch_scc0 {skip}')
    for t in range(16):
        g(f'ds_read_b128 v[{FA+4*t}:{FA+4*t+3}], v{36+(t%4)} offset:{256*(t//4)}')
    g.label(skip)
    for nn in range(4):
        for b in range(4):
            d = FT + nn * 8 + (b // 2) * 4 + (b % 2) * 2
            g(f'ds_read_b64_tr_b16 v[{d}:{d+1}], v{40+nn} offset:{16384*b}')
    g(f'ds_read_b32 v12, v1 offset:{L_MODE}')
    g(f's_mov_b32 s63, {f2u(KAPPA):#x}')
    g.poll2('qa', [(f'global_load_dwordx4 v[{16+4*i}:{19+4*i}], v248, {WS} offset:{1024*i} sc1', 19 + 4 * i, None) for i in range(4)], MA, 10, 11)
    for i in range(4):
        g(f'ds_write_b64 v{44+(i>>1)}, v[{16+4*i}:{17+4*i}] offset:{512*(i&1)}')
    g.stamp(4)
    g('s_waitcnt lgkmcnt(0)')
    g(f'v_readfirstlane_b32 {sMODE}, v12')
    g('s_barrier')
    if 'pacepf' in opts:
        g(f's_cmp_eq_u32 {sWAVE}, 6')
        g('s_cbranch_scc0 L_a_npf')
        g(f's_lshl_b32 s48, {sXCD}, 4')
        g(f's_add_u32 s48, s48, {sR}')
        g('s_lshl_b32 s48, s48, 4')
        g(f's_add_u32 s48, s48, {PF}')
        g('v_mov_b32 v8, s48')
        g(f'v_mov_b32 v15, {sTAG}')
        g('s_mov_b64 exec, 1')
        mode_store(g, [f'global_store_dwordx4 v8, v[12:15], {WS}'], sMODE)
        g('s_mov_b64 exec, -1')
        g.label('L_a_npf')
    g(f's_cmp_lt_u32 {sWAVE}, 4')
    g('s_cbranch_scc1 L_a_s')
    if 'wuvlate' not in opts and 'wuvearly' not in opts:
        for ins in wuv_ins:
            g(ins)
    g('s_branch L_a_b5')
    g.label('L_a_s')
    qreg = [192 + 4 * t for t in range(8)] + [16 + 4 * t for t in range(4)] + [80 + 4 * t for t in range(4)]
    for t in range(16):
        g(f'ds_read_b128 v[{qreg[t]}:{qreg[t]+3}], v{32+(t%4)} offset:{L_QL+256*(t//4)}')
    for t in range(16):
        g(f's_waitcnt lgkmcnt({15-t})')
        c = '0' if t == 0 else 'v[48:51]'
        g(f'v_mfma_f32_16x16x32_bf16 v[48:51], v[{FA+4*t}:{FA+4*t+3}], v[{qreg[t]}:{qreg[t]+3}], {c}')
        if 2 <= t < 2 + len(wuv_ins) and 'wuvlate' not in opts and 'wuvearly' not in opts:
            g(wuv_ins[t - 2])
    g.nop(8)
    g('v_max_f32 v52, v48, v49')
    g('v_max3_f32 v52, v52, v50, v51')
    g.row_reduce([52], [53], 'max')
    g(f'ds_write_b32 v47, v52 offset:{L_MB}')
    g('s_waitcnt lgkmcnt(0)')
    g.label('L_a_b5')
    g('s_barrier')
    g.stamp(12)
    g(f's_cmp_lt_u32 {sWAVE}, 4')
    g('s_cbranch_scc1 L_a_sm')
    g(f's_cmp_eq_u32 {sWAVE}, 7')
    g('s_cbranch_scc0 L_a_b6')
    g(f'ds_read_b128 v[84:87], v46 offset:{L_MB}')
    for k in range(4):
        g(f'v_mov_b32 v{88+k}, 0x3f803f80')
    g('s_waitcnt lgkmcnt(0)')
    g('v_max_f32 v84, v84, v85')
    g('v_max3_f32 v84, v84, v86, v87')
    g('v_mul_f32 v84, s63, v84')
    g(f'v_mov_b32 v87, {sTAG}')
    g('s_branch L_a_b6')
    g.label('L_a_sm')
    g(f'ds_read_b128 v[52:55], v46 offset:{L_MB}')
    g('s_waitcnt lgkmcnt(0)')
    g('v_max_f32 v52, v52, v53')
    g('v_max3_f32 v52, v52, v54, v55')
    g('v_mul_f32 v52, s63, v52')
    for k in range(4):
        g(f'v_fma_f32 v{48+k}, v{48+k}, s63, -v52')
    for k in range(4):
        g(f'v_exp_f32 v{48+k}, v{48+k}')
    g.nop(1)
    g('v_cvt_pk_bf16_f32 v54, v48, v49')
    g('v_cvt_pk_bf16_f32 v55, v50, v51')
    g(f'ds_write_b64 v56, v[54:55] offset:{L_PB}')
    g('s_waitcnt lgkmcnt(0)')
    g.label('L_a_b6')
    for nn in range(4):
        g(f'v_mov_b32 v{19+4*nn}, {sTAG}')
    g('s_barrier')
    for b in range(4):
        g(f'ds_read_b64 v[{48+2*b}:{49+2*b}], v57 offset:{L_PB+512*b}')
    PD = 208
    g('s_waitcnt lgkmcnt(0)')
    g.stamp(10)
    g(f's_cmp_eq_u32 {sWAVE}, 7')
    g('s_cbranch_scc0 L_a_pv')
    g('v_mfma_f32_16x16x32_bf16 v[92:95], v[88:91], v[48:51], 0')
    g('v_mfma_f32_16x16x32_bf16 v[92:95], v[88:91], v[52:55], v[92:95]')
    g.label('L_a_pv')
    for nn in range(4):
        for s2 in range(2):
            c = '0' if s2 == 0 else f'v[{PD+4*nn}:{PD+3+4*nn}]'
            a = FT + nn * 8 + s2 * 4
            g(f'v_mfma_f32_16x16x32_bf16 v[{PD+4*nn}:{PD+3+4*nn}], v[{a}:{a+3}], v[{48+4*s2}:{51+4*s2}], {c}')
    g(f's_cmp_eq_u32 {sWAVE}, 7')
    g('s_cbranch_scc0 L_a_pv2')
    g('v_mov_b32 v85, v92')
    g.set_exec(0xffff)
    mode_store(g, [f'global_store_dwordx4 v249, v[84:87], {WS}'], sMODE)
    g('s_mov_b64 exec, -1')
    g.label('L_a_pv2')
    g.nop(2)
    for nn in range(4):
        g(f'v_cvt_pk_bf16_f32 v{16+4*nn}, v{PD+4*nn}, v{PD+1+4*nn}')
        g(f'v_cvt_pk_bf16_f32 v{17+4*nn}, v{PD+2+4*nn}, v{PD+3+4*nn}')
    g.stamp(11)
    mode_store(g, [f'global_store_dwordx4 v58, v[{16+4*nn}:{19+4*nn}], {WS} offset:{1024*nn}' for nn in range(4)], sMODE)
    g.stamp(5)
    if stop_after == 3:
        g('s_branch L_fin')

    MR = 96
    OR_ = 128
    g(f's_cmp_ge_u32 {sWAVE}, 4')
    g('s_cbranch_scc1 L_a_r')
    g(f's_cmp_eq_u32 {sWAVE}, 0')
    g('s_cbranch_scc0 L_a_bw')
    g.poll2('mll', [(f'global_load_dwordx4 v[{MR}:{MR+3}], v59, {WS} sc1', MR + 3, None),
                    (f'global_load_dwordx4 v[{MR+4}:{MR+7}], v59, {WS} offset:1024 sc1', MR + 7, None)], MA, 10, 11)
    g(f'v_max_f32 v20, v{MR}, v{MR+4}')
    g.row_reduce([20], [22], 'max')
    g(f'v_sub_f32 v24, v{MR}, v20')
    g(f'v_sub_f32 v25, v{MR+4}, v20')
    g('v_exp_f32 v24, v24')
    g('v_exp_f32 v25, v25')
    g.nop(1)
    g('ds_write_b32 v60, v24')
    g('ds_write_b32 v60, v25 offset:16')
    g(f'v_mul_f32 v21, v24, v{MR+1}')
    g(f'v_fmac_f32 v21, v25, v{MR+5}')
    g('s_waitcnt lgkmcnt(0)')
    g('s_barrier')
    g('s_cmp_eq_u32 s58, 0')
    g('s_cbranch_scc0 L_a_s4')
    g.row_reduce([21], [22], 'add')
    g(f'v_mov_b32 v23, {sTAG}')
    g.set_exec(0xffff)
    g(f'global_store_dwordx4 v250, v[20:23], {WS} sc1')
    g('s_mov_b64 exec, -1')
    g('s_branch L_a_s4')
    g.label('L_a_bw')
    g('s_barrier')
    g('s_branch L_a_s4')
    g.label('L_a_r')
    g(f'v_mov_b32 v51, {sTAG}')
    if 'bwfirst' in opts:
        g('s_barrier')
        g(f'ds_read_b128 v[{MR+8}:{MR+11}], v61')
        g(f'ds_read_b128 v[{MR+12}:{MR+15}], v61 offset:16')
    g.poll2('opl', [(f'global_load_dwordx4 v[{OR_+4*k}:{OR_+4*k+3}], v{224+k}, {WS} sc1', OR_ + 4 * k + 3, None) for k in range(8)], MA, 10, 11)
    g.stamp(6)
    if 'bwfirst' not in opts:
        g('s_barrier')
        g(f'ds_read_b128 v[{MR+8}:{MR+11}], v61')
        g(f'ds_read_b128 v[{MR+12}:{MR+15}], v61 offset:16')
    UP = 160
    for k in range(8):
        for half in range(2):
            src = OR_ + 4 * k + half
            t = UP + 4 * k + 2 * half
            g(f'v_lshlrev_b32 v{t}, 16, v{src}')
            g(f'v_and_b32 v{t+1}, 0xffff0000, v{src}')
        if k == 1:
            g('s_waitcnt lgkmcnt(0)')
        if k >= 1:
            for kk in ([0, 1] if k == 1 else [k]):
                wr = MR + 8 + (kk & ~1)
                sel = kk & 1
                for half in range(2):
                    t = UP + 4 * kk + 2 * half
                    acc = 52 + 2 * half
                    if kk == 0:
                        g(f'v_pk_mul_f32 v[{acc}:{acc+1}], v[{t}:{t+1}], v[{wr}:{wr+1}] op_sel_hi:[1,0]')
                    else:
                        g(f'v_pk_fma_f32 v[{acc}:{acc+1}], v[{t}:{t+1}], v[{wr}:{wr+1}], v[{acc}:{acc+1}] op_sel:[0,{sel},0] op_sel_hi:[1,{sel},1]')
    g('v_cvt_pk_bf16_f32 v48, v52, v53')
    g('v_cvt_pk_bf16_f32 v49, v54, v55')
    g(f'global_store_dwordx4 v244, v[48:51], {WS} sc1')
    g.stamp(7)
    g.label('L_a_s4')
    g('s_barrier')
    if 'wuvlate' in opts:
        for ins in wuv_ins:
            g(ins)

    g.poll2('ox', [(f'global_load_dwordx4 v[16:19], v245, {WS} sc1', 19, None)], MA, 10, 11)
    g.stamp(8)
    g('v_max_f32_dpp v22, v16, v16 row_ror:4 row_mask:0xf bank_mask:0xf')
    g.nop(2)
    g('v_max_f32_dpp v22, v22, v22 row_ror:8 row_mask:0xf bank_mask:0xf')
    g.nop(1)
    g('v_mov_b32 v23, v22')
    g.nop(2)
    g('v_permlane16_swap_b32 v23, v22')
    g.nop(1)
    g('v_max_f32 v22, v22, v23')
    g('v_sub_f32 v24, v16, v22')
    g('v_exp_f32 v24, v24')
    g('v_permlane32_swap_b32 v16, v17')
    g.nop(1)
    g('v_mul_f32 v22, v24, v17')
    g('v_lshlrev_b32 v25, 16, v16')
    g('v_add_f32_dpp v22, v22, v22 row_ror:4 row_mask:0xf bank_mask:0xf')
    g('v_and_b32 v26, 0xffff0000, v16')
    g.nop(1)
    g('v_add_f32_dpp v22, v22, v22 row_ror:8 row_mask:0xf bank_mask:0xf')
    g.nop(1)
    g('v_mov_b32 v23, v22')
    g.nop(2)
    g('v_permlane16_swap_b32 v23, v22')
    g.nop(1)
    g('v_add_f32 v22, v22, v23')
    g('v_rcp_f32 v22, v22')
    g.nop(1)
    g('v_mul_f32 v24, v24, v22')
    g('v_mov_b32 v23, v24')
    g.nop(2)
    g('v_permlane32_swap_b32 v23, v24')
    g.nop(1)
    g('v_mul_f32 v25, v25, v24')
    g('v_mul_f32 v26, v26, v24')
    g.nop(2)
    g('v_permlane16_swap_b32 v25, v26')
    g.nop(1)
    g('v_add_f32 v25, v25, v26')
    g.nop(2)
    g('v_add_f32_dpp v25, v25, v25 row_ror:4 row_mask:0xf bank_mask:0xf')
    g.nop(2)
    g('v_add_f32_dpp v25, v25, v25 row_ror:8 row_mask:0xf bank_mask:0xf')
    g('v_cvt_pk_bf16_f32 v25, v25, v25')
    g.nop(2)

    def ands(tt):
        a = 84 + 4 * (tt % 2)
        for v in range(4):
            g(f'v_and_b32_dpp v{a+v}, v25, v{240+v} quad_perm:[{tt},{tt},{tt},{tt}] row_mask:0xf bank_mask:0xf')
    ands(0)
    for tt in range(4):
        if tt < 3:
            ands(tt + 1)
        else:
            g.nop(2)
        a = 84 + 4 * (tt % 2)
        c = '0' if tt == 0 else 'v[92:95]'
        g(f'v_mfma_f32_16x16x32_bf16 v[92:95], v[{a}:{a+3}], v[{64+4*tt}:{67+4*tt}], {c}')
    g.set_exec(0xffffffff)
    g.nop(6)
    g(f'ds_write_b128 v247, v[92:95] offset:{L_RED}')
    g('s_mov_b64 exec, -1')
    g('s_waitcnt lgkmcnt(0)')
    g('s_barrier')
    g(f's_cmp_eq_u32 {sWAVE}, 0')
    g('s_cbranch_scc0 L_a_red')
    for w in range(8):
        g(f'ds_read_b64 v[{32+2*w}:{33+2*w}], v57 offset:{L_RED+512*w}')
    g(f'v_mov_b32 v23, {sTAG}')
    g('s_waitcnt lgkmcnt(0)')
    g('v_pk_add_f32 v[32:33], v[32:33], v[34:35]')
    g('v_pk_add_f32 v[36:37], v[36:37], v[38:39]')
    g('v_pk_add_f32 v[40:41], v[40:41], v[42:43]')
    g('v_pk_add_f32 v[44:45], v[44:45], v[46:47]')
    g('v_pk_add_f32 v[32:33], v[32:33], v[36:37]')
    g('v_pk_add_f32 v[40:41], v[40:41], v[44:45]')
    g('v_pk_add_f32 v[32:33], v[32:33], v[40:41]')
    g('v_cvt_pk_bf16_f32 v20, v32, v33')
    g.nop(2)
    g('v_mov_b32_dpp v21, v20 row_shl:1 row_mask:0xf bank_mask:0xf')
    g.set_exec(0x5555555555555555)
    mode_store(g, [f'global_store_dwordx4 v253, v[20:23], {WS}'], sMODE)
    g('s_mov_b64 exec, -1')
    g.stamp(9)
    g.label('L_a_red')
    if stop_after == 4:
        g('s_branch L_fin')
    g(f's_cmp_eq_u32 {sWAVE}, 7')
    g('s_cbranch_scc0 L_fin')
    g(f's_cmp_lt_u32 {sR}, 10')
    g('s_cbranch_scc0 L_fin')
    g(f's_mul_i32 s55, {sXCD}, 10')
    g(f's_add_u32 s55, s55, {sR}')
    g('v_and_b32 v7, 3, v0')
    g('v_lshrrev_b32 v6, 5, v0')
    g('v_and_b32 v8, 1, v7')
    g('v_lshlrev_b32 v8, 2, v8')
    g('v_lshrrev_b32 v9, 1, v7')
    g('v_add_u32 v8, v8, v9')
    g('v_lshl_add_u32 v8, v6, 1, v8')
    g('s_lshl_b32 s48, s55, 3')
    g('v_add_u32 v31, s48, v8')
    g('v_lshlrev_b32 v31, 1, v31')
    g(f'global_load_ushort v30, v31, {S_X}')
    g('v_and_b32 v9, 7, v0')
    g('v_mul_u32_u24 v9, 2560, v9')
    g('v_bfe_u32 v10, v0, 3, 1')
    g('v_lshl_add_u32 v9, v10, 4, v9')
    g('s_lshr_b32 s48, s55, 4')
    g('s_lshl_b32 s48, s48, 9')
    g('s_and_b32 s49, s55, 15')
    g('s_lshl_b32 s49, s49, 5')
    g('s_add_u32 s48, s48, s49')
    g(f's_add_u32 s48, s48, {OUTP}')
    g('v_add_u32 v9, s48, v9')
    g('s_lshl_b32 s48, s55, 6')
    g(f's_add_u32 s48, s48, {O2P}')
    g('v_lshrrev_b32 v12, 2, v0')
    g('v_mul_u32_u24 v12, 5120, v12')
    g('v_lshl_add_u32 v12, v7, 4, v12')
    g('v_add_u32 v12, s48, v12')
    g(f'v_add_u32 v13, {16*5120}, v12')
    g(f'v_add_u32 v14, {32*5120}, v12')
    g(f'v_add_u32 v15, {48*5120}, v12')
    g(f'v_mov_b32 v44, {sTAG}')
    g('v_mov_b32 v46, 0')
    g('v_mov_b32 v47, 0')
    g(f'v_mov_b32 v19, {sTAG}')
    g('v_mov_b32 v16, 0')
    g('v_mov_b32 v17, 0')
    g('v_lshrrev_b32 v28, 2, v8')
    g('v_lshlrev_b32 v28, 5, v28')
    g('v_and_b32 v29, 3, v8')
    g.poll2('hf', [(f'global_load_dwordx4 v[16:19], v9, {WS} sc1', 19, 0xffff)], MA, 10, 11)
    g('v_lshlrev_b32 v20, 16, v16')
    g('v_and_b32 v21, 0xffff0000, v16')
    g('v_lshlrev_b32 v22, 16, v17')
    g('v_and_b32 v23, 0xffff0000, v17')
    for ctl in ['quad_perm:[1,0,3,2]', 'quad_perm:[2,3,0,1]', 'row_half_mirror']:
        g.nop(1)
        for k in range(4):
            g(f'v_add_f32_dpp v{20+k}, v{20+k}, v{20+k} {ctl} row_mask:0xf bank_mask:0xf')
    g.nop(1)
    for k in range(4):
        g(f'ds_bpermute_b32 v{24+k}, v28, v{20+k}')
    g('s_waitcnt lgkmcnt(0)')
    g('v_cmp_eq_u32 vcc, 1, v29')
    g.nop(1)
    g('v_cndmask_b32 v24, v24, v25, vcc')
    g('v_cmp_eq_u32 vcc, 2, v29')
    g.nop(1)
    g('v_cndmask_b32 v24, v24, v26, vcc')
    g('v_cmp_eq_u32 vcc, 3, v29')
    g.nop(1)
    g('v_cndmask_b32 v16, v24, v27, vcc')
    rnd_bf16(g, 16)
    g('v_lshlrev_b32 v30, 16, v30')
    g('v_add_f32 v30, v30, v16')
    rnd_bf16(g, 30)
    g.poll2('o2', [(f'global_load_dwordx4 v[{32+4*i}:{35+4*i}], v{12+i}, {WS} sc1', 32 + 4 * i, None) for i in range(3)] +
            [(f'global_load_dwordx4 v[44:47], v15, {WS} sc1', 44, 0xffffff)], MA, 10, 11)
    g.stamp(9)
    g('v_pk_add_f32 v[16:17], v[34:35], v[38:39]')
    g('v_pk_add_f32 v[18:19], v[42:43], v[46:47]')
    g('v_pk_add_f32 v[16:17], v[16:17], v[18:19]')
    g.nop(2)
    g('v_permlane32_swap_b32 v16, v17')
    g.nop(1)
    g('v_add_f32 v16, v16, v17')
    g('v_mov_b32 v17, v16')
    g.nop(2)
    g('v_permlane16_swap_b32 v17, v16')
    g.nop(1)
    g('v_add_f32 v16, v16, v17')
    g.nop(2)
    g('v_add_f32_dpp v16, v16, v16 row_ror:4 row_mask:0xf bank_mask:0xf')
    g.nop(2)
    g('v_add_f32_dpp v16, v16, v16 row_ror:8 row_mask:0xf bank_mask:0xf')
    rnd_bf16(g, 16)
    g('v_add_f32 v16, v16, v30')
    g('v_cvt_pk_bf16_f32 v16, v16, v16')
    g('s_mov_b32 exec_lo, 0xf')
    g('s_mov_b32 exec_hi, 0xf')
    g(f'global_store_short v31, v16, {S_OUT}')
    g('s_mov_b64 exec, -1')
    g('s_cmp_eq_u32 s55, 0')
    g('s_cbranch_scc0 L_fin')
    g('s_mov_b64 exec, 1')
    g(f'v_mov_b32 v2, {sTAG}')
    g(f'global_store_dword v1, v2, {WS} sc1')
    g('s_mov_b64 exec, -1')
    g('s_branch L_fin')

    g.label('L_pathB')
    g(f's_sub_u32 s54, {sR}, 16')
    g('s_lshr_b32 s48, s54, 2')
    g(f's_lshl_b32 s49, {sXCD}, 2')
    g('s_add_u32 s55, s48, s49')
    g(f's_cmp_eq_u32 {sWAVE}, 0')
    g('s_cbranch_scc0 L_b1')
    g('s_lshl_b32 s48, s55, 13')
    g(f's_add_u32 s49, s48, {Q1L}')
    g.addr('s[40:41]', S_WS, 's49')
    g(f's_add_u32 s49, s48, {Q1G}')
    g.addr('s[42:43]', S_WS, 's49')
    g('v_add_u32 v4, 4096, v3')
    g('v_and_b32 v14, 1, v6')
    g('v_lshlrev_b32 v14, 3, v14')
    g('v_lshl_add_u32 v14, v7, 4, v14')
    g('v_lshrrev_b32 v15, 1, v6')
    g('v_lshl_add_u32 v14, v15, 2, v14')
    g.poll2('q1', [(f'global_load_dwordx4 v[{32+4*k}:{35+4*k}], {"v3" if k < 4 else "v4"}, {{base}} offset:{1024*(k%4)} sc1', 35 + 4 * k, None) for k in range(8)],
            MQ, 10, 11, alt=('s[40:41]', 's[42:43]'))
    g.stamp(3)
    g('v_pk_add_f32 v[12:13], v[32:33], v[36:37]')
    g('v_pk_add_f32 v[10:11], v[40:41], v[44:45]')
    g('v_pk_add_f32 v[16:17], v[48:49], v[52:53]')
    g('v_pk_add_f32 v[18:19], v[56:57], v[60:61]')
    g('v_pk_add_f32 v[12:13], v[12:13], v[10:11]')
    g('v_pk_add_f32 v[16:17], v[16:17], v[18:19]')
    g('v_pk_add_f32 v[12:13], v[12:13], v[16:17]')
    g('v_cvt_pk_bf16_f32 v12, v12, v13')
    g(f'ds_write_b32 v14, v12 offset:{L_QB}')
    g('s_waitcnt lgkmcnt(0)')
    g('s_barrier')
    g('s_branch L_b2')
    g.label('L_b1')
    g('s_lshl_b32 s48, s55, 11')
    g('s_and_b32 s49, s54, 3')
    g('s_lshl_b32 s49, s49, 9')
    g('s_add_u32 s48, s48, s49')
    g(f's_and_b32 s49, {sWAVE}, 3')
    g('s_lshl_b32 s49, s49, 7')
    g('s_add_u32 s48, s48, s49')
    g(f's_add_u32 s48, s48, {QA}')
    g('v_lshlrev_b32 v9, 4, v6')
    g('v_lshl_add_u32 v104, v7, 6, v9')
    g('v_add_u32 v104, s48, v104')
    g(f'v_mov_b32 v103, {sTAG}')
    g('s_mov_b32 s56, 0x00020002')
    g('s_mov_b32 s57, 0x00020002')
    g(f's_cmp_ge_u32 {sWAVE}, 4')
    g('s_cbranch_scc0 L_b1x')
    g(f's_and_b32 s49, {sWAVE}, 3')
    g('s_lshl_b32 s49, s49, 13')
    g(f's_add_u32 s49, s49, {L_TILE}')
    g('v_lshl_add_u32 v12, v7, 8, s49')
    for t in range(4):
        g(f'v_add_u32 v13, {4*t}, v6')
        g('v_xor_b32 v13, v13, v7')
        g('v_lshl_add_u32 v13, v13, 4, v12')
        for tau in range(2):
            g(f'ds_read_b128 v[{64+16*tau+4*t}:{67+16*tau+4*t}], v13 offset:{4096*tau}')
    g('s_waitcnt lgkmcnt(0)')
    g('s_barrier')
    g('s_branch L_b1m')
    g.label('L_b1x')
    g('s_barrier')
    g('s_branch L_b2')
    g.label('L_b1m')
    for t in range(4):
        g(f'ds_read_b128 v[{108+4*t}:{111+4*t}], v9 offset:{L_QB+64*t}')
    for t in range(4):
        g(f's_waitcnt lgkmcnt({3-t})')
        for tau in range(2):
            c = '0' if t == 0 else f'v[{96+8*tau}:{99+8*tau}]' if False else ('0' if t == 0 else f'v[{124+4*tau}:{127+4*tau}]')
            g(f'v_mfma_f32_16x16x32_bf16 v[{124+4*tau}:{127+4*tau}], v[{64+16*tau+4*t}:{67+16*tau+4*t}], v[{108+4*t}:{111+4*t}], {c}')
    g('s_mov_b32 exec_lo, 0x00030003')
    g('s_mov_b32 exec_hi, 0x00030003')
    g.nop(6)
    g('v_cvt_pk_bf16_f32 v96, v124, v125')
    g('v_cvt_pk_bf16_f32 v97, v126, v127')
    g('v_cvt_pk_bf16_f32 v98, v128, v129')
    g('v_cvt_pk_bf16_f32 v99, v130, v131')
    g('v_cndmask_b32 v100, v96, v98, s[56:57]')
    g('v_cndmask_b32 v101, v97, v99, s[56:57]')
    g(f'global_store_dwordx4 v104, v[100:103], {WS} sc1')
    g('s_mov_b64 exec, -1')
    g.stamp(4)
    g.label('L_b2')
    if stop_after in (2, 3, 4):
        g('s_branch L_fin')
    if 'pace' in opts or 'paceml' in opts:
        g(f's_cmp_eq_u32 {sWAVE}, 0')
        g('s_cbranch_scc0 L_b2p')
        if 'paceml' in opts:
            g('s_cmp_lt_u32 s54, 5')
            g('s_cbranch_scc1 L_b2p')
        g('v_lshrrev_b32 v12, 1, v0')
        g('v_lshlrev_b32 v12, 11, v12')
        g('v_and_b32 v13, 1, v0')
        g('v_lshl_add_u32 v12, v13, 10, v12')
        g(f'v_add_u32 v12, {QA + 1008}, v12')
        g('s_mov_b32 s50, 0')
        g.label('L_b2q')
        g(f'global_load_dwordx4 v[16:19], v12, {WS} sc1')
        g('s_add_u32 s50, s50, 1')
        g('s_waitcnt vmcnt(0)')
        g(f'v_cmp_ne_u32 vcc, {sTAG}, v19')
        g('s_cmp_eq_u64 vcc, 0')
        g('s_cbranch_scc1 L_b2p')
        g('s_cmp_lt_u32 s50, 64')
        g('s_cbranch_scc1 L_b2q')
        g.label('L_b2p')
    if 'pacepf' in opts:
        g(f's_cmp_eq_u32 {sWAVE}, 0')
        g('s_cbranch_scc0 L_b2u')
        g('s_cmp_lt_u32 s54, 5')
        g('s_cbranch_scc1 L_b2u')
        g(f's_lshl_b32 s48, {sXCD}, 8')
        g(f's_add_u32 s48, s48, {PF}')
        g('v_and_b32 v12, NPF, v0'.replace('NPF', str(int([o for o in opts if o.startswith('npf')][0][3:]) - 1 if any(o.startswith('npf') for o in opts) else 3)))
        g('v_lshl_add_u32 v12, v12, 4, s48')
        g('s_mov_b32 s50, 0')
        g.label('L_b2t')
        g(f'global_load_dwordx4 v[16:19], v12, {WS} sc1')
        g('s_add_u32 s50, s50, 1')
        g('s_waitcnt vmcnt(0)')
        g(f'v_cmp_ne_u32 vcc, {sTAG}, v19')
        g('s_cmp_eq_u64 vcc, 0')
        g('s_cbranch_scc1 L_b2u')
        g('s_cmp_lt_u32 s50, 256')
        g('s_cbranch_scc1 L_b2t')
        g.label('L_b2u')
    if 'pacemll' in opts:
        g(f's_cmp_eq_u32 {sWAVE}, 0')
        g('s_cbranch_scc0 L_b2r')
        g('s_cmp_lt_u32 s54, 5')
        g('s_cbranch_scc1 L_b2r')
        g(f's_lshl_b32 s48, {sXCD}, 12')
        g(f's_add_u32 s48, s48, {MLL}')
        g('v_add_u32 v12, s48, v3')
        g('s_mov_b32 s50, 0')
        g.label('L_b2s')
        g(f'global_load_dwordx4 v[16:19], v12, {WS} sc1')
        g('s_add_u32 s50, s50, 1')
        g('s_waitcnt vmcnt(0)')
        g(f'v_cmp_ne_u32 vcc, {sTAG}, v19')
        g('s_cmp_eq_u64 vcc, 0')
        g('s_cbranch_scc1 L_b2r')
        g('s_cmp_lt_u32 s50, 256')
        g('s_cbranch_scc1 L_b2s')
        g.label('L_b2r')
    g('s_barrier')
    g.stamp(5)
    g('v_lshrrev_b32 v8, 3, v7')
    g('v_and_b32 v9, 7, v0')
    g('v_lshl_add_u32 v10, v8, 2, v6')
    g('s_cmp_lt_u32 s54, 5')
    g('s_cbranch_scc1 L_b_wo')
    g('s_sub_u32 s48, s54, 5')
    g('s_lshr_b32 s49, s48, 1')
    g('s_lshl_b32 s49, s49, 3')
    g(f's_add_u32 s49, s49, {sXCD}')
    g('s_cmp_lt_u32 s49, 27')
    g('s_cbranch_scc0 L_fin')
    g('s_lshl_b32 s49, s49, 1')
    g('s_and_b32 s48, s48, 1')
    g('s_add_u32 s58, s49, s48')
    g('s_branch L_b_mlpld')
    g.label('L_b_wo')
    g(f's_lshl_b32 s48, {sXCD}, 3')
    g(f's_add_u32 s48, s48, {sWAVE}')
    g(f's_mul_i32 s48, s48, {64*1280}')
    g('s_lshl_b32 s49, s54, 8')
    g('s_add_u32 s48, s48, s49')
    g.addr('s[40:41]', S_WO, 's48')
    g('v_mul_u32_u24 v11, 1280, v6')
    g('v_lshl_add_u32 v11, v7, 4, v11')
    for t in range(16):
        g(f'global_load_dwordx4 v[{32+4*t}:{35+4*t}], v11, s[40:41] nt')
        if t < 15:
            g('s_add_u32 s40, s40, 5120')
            g('s_addc_u32 s41, s41, 0')
    gen_mask(g, 192, 16, 17)
    g(f's_lshr_b32 s48, {sWAVE}, 1')
    g('s_lshl_b32 s48, s48, 2')
    g(f's_lshl_b32 s49, {sXCD}, 4')
    g('s_add_u32 s48, s48, s49')
    g('s_lshl_b32 s48, s48, 9')
    g(f's_and_b32 s49, {sWAVE}, 1')
    g('s_lshl_b32 s49, s49, 8')
    g('s_add_u32 s48, s48, s49')
    g(f's_add_u32 s48, s48, {C4}')
    g('v_lshlrev_b32 v11, 9, v6')
    g('v_lshl_add_u32 v11, v7, 4, v11')
    g('v_add_u32 v11, s48, v11')
    g('v_lshlrev_b32 v26, 5, v7')
    g('v_lshl_add_u32 v26, v6, 4, v26')
    g(f's_lshl_b32 s48, {sWAVE}, 9')
    g('v_add_u32 v26, s48, v26')
    g('v_lshlrev_b32 v28, 3, v0')
    g(f's_mul_i32 s48, {sXCD}, 2560')
    g('s_lshl_b32 s49, s54, 9')
    g('s_add_u32 s48, s48, s49')
    g(f's_add_u32 s48, s48, {OUTP}')
    g('v_lshrrev_b32 v29, 1, v0')
    g('v_lshl_add_u32 v29, v29, 4, s48')
    g(f'v_mov_b32 v147, {sTAG}')
    if g.stamps:
        g.stamp(8)
        g('s_waitcnt vmcnt(0)')
        g.stamp(9)
    g.poll2('c4', [(f'global_load_dwordx4 v[16:19], v11, {WS} sc1', 19, None)], MB, 13, 14)
    g.stamp(6)
    g('v_lshlrev_b32 v20, 16, v16')
    g('v_and_b32 v21, 0xffff0000, v16')
    g('v_lshlrev_b32 v22, 16, v17')
    g('v_and_b32 v23, 0xffff0000, v17')
    g.nop(1)
    g('v_permlane32_swap_b32 v20, v22')
    g('v_permlane32_swap_b32 v21, v23')
    g.nop(1)
    g('v_add_f32 v20, v20, v22')
    g('v_add_f32 v21, v21, v23')
    g.nop(2)
    g('v_permlane16_swap_b32 v20, v21')
    g.nop(1)
    g('v_add_f32 v20, v20, v21')
    g('v_cvt_pk_bf16_f32 v20, v20, v20')
    g.nop(2)

    def wands(t):
        a = 212 + 4 * (t % 2)
        for v in range(4):
            g(f'v_and_b32_dpp v{a+v}, v20, v{192+v} row_newbcast:{t} row_mask:0xf bank_mask:0xf')
    wands(0)
    for t in range(16):
        if t < 15:
            wands(t + 1)
        else:
            g.nop(2)
        a = 212 + 4 * (t % 2)
        c = '0' if t == 0 else 'v[200:203]'
        g(f'v_mfma_f32_16x16x32_bf16 v[200:203], v[{a}:{a+3}], v[{32+4*t}:{35+4*t}], {c}')
    g.set_exec(0xffffffff)
    g.nop(6)
    g(f'ds_write_b128 v26, v[200:203] offset:{L_RED}')
    g('s_mov_b64 exec, -1')
    g('s_waitcnt lgkmcnt(0)')
    g('s_barrier')
    g(f's_cmp_eq_u32 {sWAVE}, 0')
    g('s_cbranch_scc0 L_fin')
    for w in range(8):
        g(f'ds_read_b64 v[{160+2*w}:{161+2*w}], v28 offset:{L_RED+512*w}')
    g('s_waitcnt lgkmcnt(0)')
    g('v_pk_add_f32 v[160:161], v[160:161], v[162:163]')
    g('v_pk_add_f32 v[164:165], v[164:165], v[166:167]')
    g('v_pk_add_f32 v[168:169], v[168:169], v[170:171]')
    g('v_pk_add_f32 v[172:173], v[172:173], v[174:175]')
    g('v_pk_add_f32 v[160:161], v[160:161], v[164:165]')
    g('v_pk_add_f32 v[168:169], v[168:169], v[172:173]')
    g('v_pk_add_f32 v[160:161], v[160:161], v[168:169]')
    g('v_cvt_pk_bf16_f32 v144, v160, v161')
    g.nop(2)
    g('v_mov_b32_dpp v145, v144 row_shl:1 row_mask:0xf bank_mask:0xf')
    g.set_exec(0x5555555555555555)
    g(f'global_store_dwordx4 v29, v[144:147], {WS} sc1')
    g('s_mov_b64 exec, -1')
    g.stamp(7)
    g('s_branch L_fin')

    def gemv(n, src, wbase, d):
        def pm(t):
            a = 212 + 4 * (t % 2)
            for v in range(4):
                g(f'v_perm_b32 v{a+v}, v{src+t//2}, v{src+t//2}, v{192+2*v+(t&1)}')
        pm(0)
        for t in range(n):
            if t + 1 < n:
                pm(t + 1)
            else:
                g.nop(2)
            a = 212 + 4 * (t % 2)
            c = '0' if t == 0 else f'v[{d}:{d+3}]'
            g(f'v_mfma_f32_16x16x32_bf16 v[{d}:{d+3}], v[{a}:{a+3}], v[{wbase+4*t}:{wbase+4*t+3}], {c}')

    g.label('L_b_mlpld')
    if stop_after == 5:
        g('s_branch L_fin')
    gen_sel(g, 192, 16, 17)
    if 'mlrot' in opts:
        g('s_and_b32 s57, s58, 1')
        g('s_lshl_b32 s57, s57, 2')
        g(f's_add_u32 s57, s57, {sWAVE}')
        g('s_and_b32 s57, s57, 7')
    else:
        g(f's_mov_b32 s57, {sWAVE}')
    g('v_and_b32 v26, 1, v6')
    g('v_lshlrev_b32 v26, 2, v26')
    g('v_lshl_add_u32 v26, v9, 3, v26')
    g('v_lshrrev_b32 v27, 1, v6')
    g('v_add_u32 v26, v26, v27')
    g('v_lshlrev_b32 v26, 2, v26')
    g(f's_lshl_b32 s48, {sWAVE}, 8')
    g('v_add_u32 v26, s48, v26')
    g('v_cmp_le_u32 vcc, 4, v9')
    g('v_mov_b32 v12, s22')
    g('v_mov_b32 v13, s24')
    g('v_mov_b32 v14, s23')
    g('v_mov_b32 v15, s25')
    g('v_cndmask_b32 v12, v12, v13, vcc')
    g('v_cndmask_b32 v13, v14, v15, vcc')
    g('v_and_b32 v14, 3, v0')
    g('v_lshlrev_b32 v14, 4, v14')
    g('s_lshl_b32 s48, s58, 6')
    g(f's_mul_i32 s49, s57, {80*3456}')
    g('s_add_u32 s48, s48, s49')
    g('v_add_u32 v14, s48, v14')
    g(f'v_mul_u32_u24 v15, {8*3456}, v10')
    g('v_add_u32 v15, v15, v14')
    g(f'v_mul_u32_u24 v16, {2*3456}, v10')
    g('v_add_u32 v16, v16, v14')
    g(f'v_add_u32 v16, {64*3456}, v16')
    for t in range(10):
        if t == 0:
            src = 15
        elif t == 8:
            src = 16
        g(f'v_add_co_u32 v18, vcc, v12, v{src}')
        g.nop(2)
        g('v_addc_co_u32 v19, vcc, 0, v13, vcc')
        g(f'global_load_dwordx4 v[{64+4*t}:{67+4*t}], v[18:19], off' + ('' if 'gunt0' in opts else ' sc0 nt' if 'gusc0' in opts else ' nt'))
        g(f'v_add_u32 v{src}, 3456, v{src}')
    g('s_lshl_b32 s48, s58, 5')
    g(f's_mul_i32 s48, s48, 1280')
    g(f's_lshl_b32 s49, {sWAVE}, 7')
    g('s_add_u32 s48, s48, s49')
    g.addr('s[40:41]', S_WD, 's48')
    g(f'v_mul_u32_u24 v11, {4*1280}, v10')
    g('v_lshl_add_u32 v11, v9, 4, v11')
    for t in range(4):
        g(f'global_load_dwordx4 v[{104+4*t}:{107+4*t}], v11, s[40:41] offset:{1280*t} nt')
    g(f's_cmp_lt_u32 {sWAVE}, 2')
    g('s_cbranch_scc0 L_b_nod2')
    g('s_add_u32 s40, s40, 1024')
    g('s_addc_u32 s41, s41, 0')
    for t in range(4):
        g(f'global_load_dwordx4 v[{120+4*t}:{123+4*t}], v11, s[40:41] offset:{1280*t} nt')
    g.label('L_b_nod2')
    g(f's_lshl_b32 s48, {sWAVE}, 8')
    g('s_min_u32 s48, s48, 1024')
    g('v_and_b32 v17, 31, v0')
    g('v_lshlrev_b32 v17, 3, v17')
    g('v_lshrrev_b32 v29, 5, v0')
    g('v_lshl_add_u32 v17, v29, 2, v17')
    g('v_add_u32 v143, s48, v17')
    g(f'global_load_dword v140, v143, {S_X}')
    g(f'global_load_ushort v141, v1, {S_X}')
    g.stamp(6)
    g('s_waitcnt vmcnt(0)')
    g.stamp(7)
    g('v_lshlrev_b32 v141, 16, v141')
    g.nop(1)
    g('v_readfirstlane_b32 s53, v141')
    gen_mask(g, 220, 16, 17)
    for v in range(4):
        g(f'v_and_b32 v{220+v}, 0x3f803f80, v{220+v}')
    g.nop(2)
    for t in range(10):
        c = '0' if t == 0 else 'v[200:203]'
        g(f'v_mfma_f32_16x16x32_bf16 v[200:203], v[220:223], v[{64+4*t}:{67+4*t}], {c}')
    g.nop(8)
    class_combine(g, 200)
    g.set_exec(0x00ff00ff00ff00ff)
    g('ds_write2_b32 v26, v200, v202 offset0:0 offset1:2')
    g('s_mov_b64 exec, -1')
    g('s_waitcnt lgkmcnt(0)')
    g('s_barrier')
    g('v_lshlrev_b32 v29, 2, v0')
    for w in range(8):
        g(f'ds_read_b32 v{160+w}, v29 offset:{256*w}')
    g('s_waitcnt lgkmcnt(0)')
    g('v_add_f32 v160, v160, v161')
    g('v_add_f32 v162, v162, v163')
    g('v_add_f32 v164, v164, v165')
    g('v_add_f32 v166, v166, v167')
    g('v_add_f32 v160, v160, v162')
    g('v_add_f32 v164, v164, v166')
    g('v_add_f32 v142, v160, v164')
    g('s_barrier')
    g('s_mul_i32 s48, s57, 160')
    g('v_lshlrev_b32 v27, 4, v10')
    g('v_add_u32 v27, s48, v27')
    g('v_lshlrev_b32 v28, 2, v10')
    g('v_add_u32 v28, s48, v28')
    g('v_lshlrev_b32 v30, 3, v10')
    g('v_and_b32 v31, 31, v0')
    g('v_lshlrev_b32 v31, 1, v31')
    g('v_lshlrev_b32 v14, 6, v9')
    g('v_lshl_add_u32 v14, v6, 4, v14')
    g(f's_mul_i32 s48, s58, 5120')
    g(f's_lshl_b32 s49, {sWAVE}, 9')
    g('s_add_u32 s48, s48, s49')
    g(f's_add_u32 s48, s48, {O2P}')
    g('v_add_u32 v14, s48, v14')
    g(f'v_add_u32 v15, {8*512}, v14')
    g(f'v_mov_b32 v202, {sTAG}')
    g(f's_lshl_b32 s48, {sWAVE}, 3')
    g('v_mov_b32 v144, s48')
    g(f's_cmp_lt_u32 {sWAVE}, 5')
    g('s_cbranch_scc0 L_m_b1')
    g(f's_lshl_b32 s48, {sWAVE}, 9')
    g(f's_add_u32 s48, s48, {OUTP}')
    g('v_lshrrev_b32 v152, 5, v0')
    g('v_mul_u32_u24 v152, 2560, v152')
    g('v_and_b32 v153, 31, v0')
    g('v_lshl_add_u32 v152, v153, 4, v152')
    g('v_add_u32 v152, s48, v152')
    for k in range(1, 4):
        g(f'v_add_u32 v{152+k}, {5120*k}, v152')
    g('v_lshlrev_b32 v148, 16, v140')
    g('v_and_b32 v149, 0xffff0000, v140')
    g.poll2('outp', [(f'global_load_dwordx4 v[{160+4*k}:{163+4*k}], v{152+k}, {WS} sc1', 163 + 4 * k, None) for k in range(4)], MB, 12, 13)
    g.stamp(8)
    for k in range(4):
        g(f'v_lshlrev_b32 v{176+4*k}, 16, v{160+4*k}')
        g(f'v_and_b32 v{177+4*k}, 0xffff0000, v{160+4*k}')
        g(f'v_lshlrev_b32 v{178+4*k}, 16, v{161+4*k}')
        g(f'v_and_b32 v{179+4*k}, 0xffff0000, v{161+4*k}')
        if k == 1:
            g('v_pk_add_f32 v[176:177], v[176:177], v[180:181]')
            g('v_pk_add_f32 v[178:179], v[178:179], v[182:183]')
    g('v_pk_add_f32 v[184:185], v[184:185], v[188:189]')
    g('v_pk_add_f32 v[186:187], v[186:187], v[190:191]')
    g('v_pk_add_f32 v[176:177], v[176:177], v[184:185]')
    g('v_pk_add_f32 v[178:179], v[178:179], v[186:187]')
    g.nop(1)
    g('v_permlane32_swap_b32 v176, v178')
    g('v_permlane32_swap_b32 v177, v179')
    g.nop(1)
    g('v_add_f32 v16, v176, v178')
    g('v_add_f32 v17, v177, v179')
    g('v_cvt_pk_bf16_f32 v16, v16, v17')
    g('v_lshlrev_b32 v18, 16, v16')
    g('v_and_b32 v19, 0xffff0000, v16')
    g('v_pk_add_f32 v[18:19], v[18:19], v[148:149]')
    g('v_cvt_pk_bf16_f32 v16, v18, v19')
    g(f'ds_write_b32 v143, v16 offset:{L_HB}')
    g('v_lshlrev_b32 v18, 16, v16')
    g('v_and_b32 v19, 0xffff0000, v16')
    g('v_subrev_f32 v18, s53, v18')
    g('v_subrev_f32 v19, s53, v19')
    g('v_add_f32 v160, v18, v19')
    g('v_mul_f32 v161, v18, v18')
    g('v_fmac_f32 v161, v19, v19')
    g.wave_reduce([160, 161], [162, 163])
    g('s_mov_b64 exec, 1')
    g(f'ds_write_b64 v144, v[160:161] offset:{L_ST}')
    g('s_mov_b64 exec, -1')
    g('s_waitcnt lgkmcnt(0)')
    g.label('L_m_b1')
    g('s_barrier')
    g.stamp(9)
    g(f'ds_read_b128 v[176:179], v27 offset:{L_HB}')
    g(f'ds_read_b32 v180, v28 offset:{L_HB+128}')
    g(f's_cmp_eq_u32 {sWAVE}, 7')
    g('s_cbranch_scc0 L_m_ns')
    g(f'ds_read_b128 v[160:163], v1 offset:{L_ST}')
    g(f'ds_read_b128 v[164:167], v1 offset:{L_ST+16}')
    g(f'ds_read_b64 v[168:169], v1 offset:{L_ST+32}')
    g('s_waitcnt lgkmcnt(0)')
    g('v_pk_add_f32 v[160:161], v[160:161], v[162:163]')
    g('v_pk_add_f32 v[164:165], v[164:165], v[166:167]')
    g('v_pk_add_f32 v[160:161], v[160:161], v[168:169]')
    g('v_pk_add_f32 v[160:161], v[160:161], v[164:165]')
    ln_scalars(g, 160, 161, 's53', 170, 171, 172)
    g('v_mul_f32 v170, v170, v142')
    g.label('L_m_ns')
    g('s_waitcnt lgkmcnt(0)')
    gemv(10, 176, 64, 208)
    g.nop(8)
    class_combine(g, 208)
    g.set_exec(0x00ff00ff00ff00ff)
    g('ds_write2_b32 v26, v208, v210 offset0:0 offset1:2')
    g('s_mov_b64 exec, -1')
    g('s_waitcnt lgkmcnt(0)')
    g('s_barrier')
    g.stamp(10)
    g(f's_cmp_eq_u32 {sWAVE}, 7')
    g('s_cbranch_scc0 L_m_b3')
    for w in range(8):
        g(f'ds_read_b32 v{160+w}, v29 offset:{256*w}')
    g('s_waitcnt lgkmcnt(0)')
    g('v_pk_add_f32 v[160:161], v[160:161], v[162:163]')
    g('v_pk_add_f32 v[164:165], v[164:165], v[166:167]')
    g('v_pk_add_f32 v[160:161], v[160:161], v[164:165]')
    g('v_add_f32 v16, v160, v161')
    g('v_sub_f32 v16, v16, v170')
    g('v_mul_f32 v16, v16, v171')
    rnd_bf16(g, 16)
    g('v_mov_b32 v17, v16')
    g.nop(2)
    g('v_permlane32_swap_b32 v16, v17')
    g.nop(1)
    g('v_max_f32 v16, 0, v16')
    g('v_mul_f32 v16, v16, v17')
    g('v_cvt_pk_bf16_f32 v16, v16, v16')
    g(f'ds_write_b16 v31, v16 offset:{L_CB}')
    g('s_waitcnt lgkmcnt(0)')
    g.label('L_m_b3')
    g('s_barrier')
    g(f'ds_read_b64 v[16:17], v30 offset:{L_CB}')
    g('s_waitcnt lgkmcnt(0)')
    g.stamp(11)

    def down(base, vo):
        gemv(4, 16, base, 204)
        g.nop(8)
        class_combine(g, 204, out2=205)
        g.set_exec(0x00ff00ff00ff00ff)
        g(f'global_store_dwordx4 v{vo}, v[202:205], {WS} sc1')
        g('s_mov_b64 exec, -1')
    down(104, 14)
    g(f's_cmp_lt_u32 {sWAVE}, 2')
    g('s_cbranch_scc0 L_m_done')
    down(120, 15)
    g.label('L_m_done')

    g.label('L_fin')
    g.stamp(15)
    g.stamp_flush()
    g.label('L_end')
    g('s_endpgm')
    body = g.text()

    hdr = open('cdna_kernels/' + KN[:-7] + '.s.ref').read().split('\n')
    head = []
    for line in hdr:
        if line.startswith('; @launch'):
            head.append(f'; @launch grid=(256,1,1) block=(512,1,1) lds={LDS_BYTES}')
        elif line.startswith(';'):
            head.append(line)
        else:
            break
    out = '\n'.join(head) + '\n'
    out += '.amdgcn_target "amdgcn-amd-amdhsa--gfx950"\n.text\n'
    out += f'.globl {KN}\n.p2align 8\n.type {KN},@function\n{KN}:\n'
    out += body
    out += f'''.section .rodata,"a"
.p2align 6
.amdhsa_kernel {KN}
  .amdhsa_next_free_vgpr 256
  .amdhsa_next_free_sgpr 102
  .amdhsa_accum_offset 256
  .amdhsa_group_segment_fixed_size 0
  .amdhsa_kernarg_size 104
  .amdhsa_user_sgpr_count 2
  .amdhsa_user_sgpr_kernarg_segment_ptr 1
  .amdhsa_system_sgpr_workgroup_id_x 1
.end_amdhsa_kernel
'''
    return out


if __name__ == '__main__':
    import argparse
    ap = argparse.ArgumentParser()
    ap.add_argument('-o', default='k.s')
    ap.add_argument('--stamps', action='store_true')
    ap.add_argument('--stop', type=int, default=None)
    ap.add_argument('--opts', default='')
    a = ap.parse_args()
    open(a.o, 'w').write(build(a.stamps, a.stop, tuple(a.opts.split(','))))
```

```python
import sys, struct

KN = 'sequential_preLN__compressed_kv_cla__glu_gated_reglu__decode_kernel'

EPOCH = 0
XID = 0x1000
PF = 0x3000
Q1L = 0x10000
Q1G = 0x50000
QA = 0x90000
MLL = 0xA0000
C4 = 0xA8000
MLX = 0xC8000
OUTP = 0xE8000
O2P = 0x100000
OX = 0x180000
OPL = 0x200000
STAMPS = 0x800000

L_XN = 0
L_QB = 256
L_MB = 512
L_LB = 768
L_PB = 1024
L_RED = 3072
L_CB = 7168
L_HB = 8192
L_ST = 9472
L_MODE = 9728
L_TAG = 9732
L_QL = 10240
L_TILE = 26624
LDS_BYTES = 92160

S_X, S_CKV, S_WQ, S_WUK, S_WUV, S_WO, S_WG, S_WU, S_WD, S_OUT, S_DBG, S_WS = (
    's[8:9]', 's[10:11]', 's[12:13]', 's[14:15]', 's[16:17]', 's[18:19]', 's[22:23]', 's[24:25]', 's[26:27]',
    's[28:29]', 's[30:31]', 's[32:33]')
sXCD, sR, sWAVE, sH, sJ, sTAG = 's34', 's35', 's36', 's37', 's38', 's39'
POLL_LIMIT = 1 << 17


def f2u(x):
    return struct.unpack('<I', struct.pack('<f', x))[0]


class Gen:
    def __init__(s, stamps=False, stop_after=None):
        s.L = []
        s.n = 0
        s.stamps = stamps
        s.stop_after = stop_after
        s.nstamp = 0

    def __call__(s, txt):
        for line in txt.strip('\n').split('\n'):
            line = line.strip()
            if line:
                s.L.append('    ' + line)

    def label(s, name):
        s.L.append(name + ':')

    def uniq(s, base):
        s.n += 1
        return f'{base}_{s.n}'

    def nop(s, n):
        while n > 0:
            k = min(n, 16)
            s(f's_nop {k-1}')
            n -= k

    def stamp(s, idx):
        if s.stamps:
            s(f's_memrealtime s[{64+2*idx}:{65+2*idx}]')

    def stamp_flush(s, nst=16):
        if not s.stamps:
            return
        s('s_waitcnt lgkmcnt(0)')
        s('s_mov_b64 exec, 1')
        s(f's_lshl_b32 s48, s2, 3')
        s(f's_add_u32 s48, s48, {sWAVE}')
        s(f's_lshl_b32 s48, s48, 7')
        s(f's_add_u32 s48, s48, {STAMPS}')
        s('v_mov_b32 v1, s48')
        for i in range(nst):
            s(f'v_mov_b32 v2, s{64+2*i}')
            s(f'v_mov_b32 v3, s{65+2*i}')
            s(f'global_store_dwordx2 v1, v[2:3], {S_WS} offset:{8*i}')
            s('s_nop 1')
        s('s_waitcnt vmcnt(0)')

    def addr(s, dst, src, off):
        d = int(dst[2:].split(':')[0]); sr = int(src[2:].split(':')[0])
        s(f's_add_u32 s{d}, s{sr}, {off}')
        s(f's_addc_u32 s{d+1}, s{sr+1}, 0')

    def set_exec(s, mask):
        if mask == (1 << 64) - 1:
            s('s_mov_b64 exec, -1')
        else:
            s(f's_mov_b32 exec_lo, {mask & 0xffffffff:#x}')
            s(f's_mov_b32 exec_hi, {mask >> 32:#x}')

    def wave_reduce(s, regs, tmps, op='add'):
        ins = {'add': 'v_add_f32', 'max': 'v_max_f32'}[op]
        n = len(regs)
        pad = max(0, 2 - (n - 1))
        s.nop(2)
        for ctl in ['quad_perm:[1,0,3,2]', 'quad_perm:[2,3,0,1]', 'row_half_mirror', 'row_mirror']:
            for r in regs:
                s(f'{ins}_dpp v{r}, v{r}, v{r} {ctl} row_mask:0xf bank_mask:0xf')
            s.nop(pad)
        s.row_reduce(regs, tmps, op)

    def row_reduce(s, regs, tmps, op='add'):
        ins = {'add': 'v_add_f32', 'max': 'v_max_f32'}[op]
        n = len(regs)
        for sw in ['v_permlane16_swap_b32', 'v_permlane32_swap_b32']:
            for r, t in zip(regs, tmps):
                s(f'v_mov_b32 v{t}, v{r}')
            s.nop(max(0, 2 - (n - 1)))
            for r, t in zip(regs, tmps):
                s(f'{sw} v{t}, v{r}')
            s.nop(1 if n == 1 else 0)
            for r, t in zip(regs, tmps):
                s(f'{ins} v{r}, v{r}, v{t}')
            s.nop(0)

    def check_tags(s, regs, t0, t1, done_label):
        tags = []
        for r in regs:
            tags += [r + 1, r + 3]
        if len(tags) == 2:
            s(f'v_cmp_eq_u32 vcc, {sTAG}, v{tags[0]}')
            s(f'v_cmp_eq_u32 s[46:47], {sTAG}, v{tags[1]}')
        else:
            s(f'v_min3_u32 v{t0}, v{tags[0]}, v{tags[1]}, v{tags[2]}')
            s(f'v_max3_u32 v{t1}, v{tags[0]}, v{tags[1]}, v{tags[2]}')
            rest = tags[3:]
            while rest:
                if len(rest) >= 2:
                    s(f'v_min3_u32 v{t0}, v{t0}, v{rest[0]}, v{rest[1]}')
                    s(f'v_max3_u32 v{t1}, v{t1}, v{rest[0]}, v{rest[1]}')
                    rest = rest[2:]
                else:
                    s(f'v_min_u32 v{t0}, v{t0}, v{rest[0]}')
                    s(f'v_max_u32 v{t1}, v{t1}, v{rest[0]}')
                    rest = rest[1:]
            s(f'v_cmp_eq_u32 vcc, {sTAG}, v{t0}')
            s(f'v_cmp_eq_u32 s[46:47], {sTAG}, v{t1}')
        s('s_and_b64 vcc, vcc, s[46:47]')
        s('s_cmp_eq_u64 vcc, exec')
        s(f's_cbranch_scc1 {done_label}')

    def poll(s, name, emit_loads, regs, t0, t1, first_hook=None, alt=None):
        top = s.uniq(name + '_top'); done = s.uniq(name + '_done'); fail = s.uniq(name + '_fail')
        s(f's_mov_b32 s50, 0')
        if first_hook is not None:
            emit_loads(alt[0] if alt else None)
            first_hook()
            s('s_waitcnt vmcnt(0)')
            s.check_tags(regs, t0, t1, done)
        s.label(top)
        if alt:
            s('s_add_u32 s50, s50, 1')
            s('s_and_b32 s51, s50, 7')
            s('s_cmp_eq_u32 s51, 0')
            s(f's_cselect_b64 s[44:45], {alt[1]}, {alt[0]}')
            emit_loads('s[44:45]')
        else:
            s('s_add_u32 s50, s50, 1')
            emit_loads(None)
        s('s_waitcnt vmcnt(0)')
        s.check_tags(regs, t0, t1, done)
        s(f's_cmp_lt_u32 s50, {POLL_LIMIT}')
        s(f's_cbranch_scc1 {top}')
        s(f's_mov_b64 s[46:47], exec')
        s('s_mov_b64 exec, 1')
        s(f'v_mov_b32 v{t0}, {4*(s.n % 60)}')
        s(f'v_mov_b32 v{t1}, {0x1000 + s.n}')
        s(f'global_store_dword v{t0}, v{t1}, {S_DBG}')
        s(f's_mov_b64 exec, s[46:47]')
        s.label(done)

    def poll2(s, name, loads, masks, t0, t1, alt=None):
        top = s.uniq(name + '_top'); done = s.uniq(name + '_done')
        n = len(loads)
        assert len(masks) >= n
        s('s_mov_b32 s50, 0')
        for ins, tg, em in loads:
            if em is not None:
                s.set_exec(em)
            s(ins.format(base=alt[0] if alt else None))
            if em is not None:
                s('s_mov_b64 exec, -1')
        s.label(top)
        s('s_waitcnt vmcnt(0)')
        for k, (ins, tg, em) in enumerate(loads):
            s(f'v_cmp_ne_u32 {masks[k]}, {sTAG}, v{tg}')
        if n == 1:
            s(f's_cmp_eq_u64 {masks[0]}, 0')
            s(f's_cbranch_scc1 {done}')
        else:
            s(f's_or_b64 s[46:47], {masks[0]}, {masks[1]}')
            for k in range(2, n):
                s(f's_or_b64 s[46:47], s[46:47], {masks[k]}')
            s(f's_cbranch_scc0 {done}')
        s('s_add_u32 s50, s50, 1')
        if alt:
            s('s_and_b32 s51, s50, 7')
            s('s_cmp_eq_u32 s51, 0')
            s(f's_cselect_b64 s[44:45], {alt[1]}, {alt[0]}')
        for k, (ins, tg, em) in enumerate(loads):
            s(f's_mov_b64 exec, {masks[k]}')
            if n > 1:
                sk = s.uniq(name + '_sk')
                s(f's_cbranch_execz {sk}')
            s(ins.format(base='s[44:45]' if alt else None))
            if n > 1:
                s.label(sk)
        s('s_mov_b64 exec, -1')
        s(f's_cmp_lt_u32 s50, {POLL_LIMIT}')
        s(f's_cbranch_scc1 {top}')
        s('s_waitcnt vmcnt(0)')
        s('s_mov_b64 exec, 1')
        s(f'v_mov_b32 v{t0}, {4*(s.n % 60)}')
        s(f'v_mov_b32 v{t1}, {0x1000 + s.n}')
        s(f'global_store_dword v{t0}, v{t1}, {S_DBG}')
        s('s_mov_b64 exec, -1')
        s.label(done)

    def text(s):
        return '\n'.join(s.L) + '\n'


KAPPA = (128 ** -0.5) * 1.4426950408889634


def gen_sel(g, base, t0, t1):
    g(f'v_and_b32 v{t0}, 7, v0')
    g(f'v_and_b32 v{t1}, 1, v0')
    for par in range(2):
        lo = 0x0c0c0000 | ((2 * par + 1) << 8) | (2 * par)
        hi = ((2 * par + 1) << 24) | ((2 * par) << 16) | 0x0c0c
        g(f'v_cmp_eq_u32 vcc, 1, v{t1}')
        g(f'v_mov_b32 v{base+par}, {lo:#x}')
        g(f'v_mov_b32 v{base+2+par}, {hi:#x}')
        g(f'v_cndmask_b32 v{base+par}, v{base+par}, v{base+2+par}, vcc')
    g(f'v_lshrrev_b32 v{t0}, 1, v{t0}')
    g(f'v_mov_b32 v{t1}, 0x0c0c0c0c')
    for v in [3, 2, 1, 0]:
        g(f'v_cmp_eq_u32 vcc, {v}, v{t0}')
        g.nop(1)
        for par in range(2):
            g(f'v_cndmask_b32 v{base+2*v+par}, v{t1}, v{base+par}, vcc')


def gen_mask(g, base, t0, t1):
    g(f'v_and_b32 v{t0}, 7, v0')
    g(f'v_and_b32 v{t1}, 1, v0')
    g(f'v_cmp_eq_u32 vcc, 1, v{t1}')
    g(f'v_mov_b32 v{base}, 0xffff')
    g(f'v_mov_b32 v{base+1}, 0xffff0000')
    g(f'v_cndmask_b32 v{t1}, v{base}, v{base+1}, vcc')
    g(f'v_lshrrev_b32 v{t0}, 1, v{t0}')
    for v in range(4):
        g(f'v_cmp_eq_u32 vcc, {v}, v{t0}')
        g.nop(1)
        g(f'v_cndmask_b32 v{base+v}, 0, v{t1}, vcc')


def get_tag(g, vreg):
    g.nop(1)
    g(f'v_readfirstlane_b32 {sTAG}, v{vreg}')
    g.nop(4)
    g(f's_mul_i32 {sTAG}, {sTAG}, 5')
    g(f's_add_u32 {sTAG}, {sTAG}, 0x9E3779B9')


def rnd_bf16(g, r):
    g(f'v_cvt_pk_bf16_f32 v{r}, v{r}, v{r}')
    g(f'v_and_b32 v{r}, 0xffff0000, v{r}')


def ln_scalars(g, s1, s2, piv_sgpr, vm, vrs, t0):
    g(f's_mov_b32 s52, {f2u(1.0/640):#x}')
    g(f'v_mul_f32 v{s1}, s52, v{s1}')
    g(f'v_mul_f32 v{s2}, s52, v{s2}')
    g(f'v_fma_f32 v{s2}, -v{s1}, v{s1}, v{s2}')
    g(f'v_max_f32 v{s2}, 0, v{s2}')
    g(f'v_add_f32 v{vm}, {piv_sgpr}, v{s1}')
    rnd_bf16(g, vm)
    rnd_bf16(g, s2)
    g(f'v_add_f32 v{s2}, 0x3727c5ac, v{s2}')
    rnd_bf16(g, s2)
    g(f'v_sqrt_f32 v{s2}, v{s2}')
    g.nop(1)
    rnd_bf16(g, s2)
    g(f'v_rcp_f32 v{vrs}, v{s2}')
    g.nop(1)


def class_combine(g, d, out2=None):
    if out2 is None:
        out2 = d + 2
    for k in range(4):
        g(f'v_mov_b32_dpp v{d+k}, v{d+k} row_ror:8 row_mask:0xc bank_mask:0xf')
    g.nop(1)
    g(f'v_permlane32_swap_b32 v{d}, v{d+1}')
    g(f'v_permlane32_swap_b32 v{d+2}, v{d+3}')
    g.nop(1)
    g(f'v_add_f32 v{d}, v{d}, v{d+1}')
    g(f'v_add_f32 v{out2}, v{d+2}, v{d+3}')


def mode_store(g, ins_no_flag, smode):
    a = g.uniq('ms_fast'); b = g.uniq('ms_done')
    g(f's_cmp_eq_u32 {smode}, 1')
    g(f's_cbranch_scc1 {a}')
    for ins in ins_no_flag:
        g(ins + ' sc1')
    g(f's_branch {b}')
    g.label(a)
    for ins in ins_no_flag:
        g(ins)
    g.label(b)


def own_tag(g, vreg):
    g(f'v_readfirstlane_b32 {sTAG}, v{vreg}')
    g.nop(4)
    g(f's_mul_i32 {sTAG}, {sTAG}, 5')
    g(f's_add_u32 {sTAG}, {sTAG}, 0x9E3779B9')


MA = ['s[10:11]', 's[12:13]', 's[14:15]', 's[18:19]', 's[20:21]', 's[22:23]', 's[24:25]', 's[26:27]']
MQ = ['s[10:11]', 's[12:13]', 's[14:15]', 's[16:17]', 's[20:21]', 's[96:97]', 's[98:99]', 's[100:101]']
MB = ['s[10:11]', 's[12:13]', 's[14:15]', 's[16:17]', 's[18:19]', 's[20:21]', 's[22:23]', 's[24:25]']


def build(stamps=False, stop_after=None, opts=()):
    g = Gen(stamps, stop_after)
    sMODE = 's59'
    WS = S_WS
    g('s_cmp_ge_u32 s2, 256')
    g('s_cbranch_scc1 L_end')
    g('s_load_dwordx16 s[8:23], s[0:1], 0')
    g('s_load_dwordx8 s[24:31], s[0:1], 64')
    g('s_load_dwordx2 s[32:33], s[0:1], 96')
    g('s_getpc_b64 s[42:43]')
    g('v_lshlrev_b32 v1, 4, v0')
    g('global_load_dwordx4 v[232:235], v1, s[42:43]')
    g.stamp(0)
    g('v_lshrrev_b32 v1, 6, v0')
    g('v_and_b32 v0, 63, v0')
    g(f'v_readfirstlane_b32 {sWAVE}, v1')
    g(f's_and_b32 {sXCD}, s2, 7')
    g(f's_lshr_b32 {sR}, s2, 3')
    g(f's_lshr_b32 {sH}, {sR}, 3')
    g(f's_lshl_b32 s48, {sXCD}, 2')
    g(f's_add_u32 {sH}, {sH}, s48')
    g(f's_and_b32 {sJ}, {sR}, 7')
    g('v_mov_b32 v1, 0')
    g('v_lshlrev_b32 v3, 4, v0')
    g('v_and_b32 v7, 15, v0')
    g('v_lshrrev_b32 v6, 4, v0')
    g(f's_cmp_eq_u32 {sWAVE}, 1')
    g('s_cbranch_scc1 L_w1')
    g(f's_cmp_eq_u32 {sWAVE}, 0')
    g('s_cbranch_scc1 L_w0')

    def pre(tagwait=False):
        g(f's_and_b32 s55, {sR}, 1')
        g(f's_lshr_b32 s56, {sR}, 1')
        g('v_and_b32 v8, 7, v0')
        g('v_lshlrev_b32 v8, 1, v8')
        g(f's_lshl_b32 s48, {sWAVE}, 14')
        g(f's_add_u32 s48, s48, {L_TILE}')
        for tl in range(4):
            g(f'v_add_u32 v9, {4*tl}, v6')
            g('v_xor_b32 v9, v9, v8')
            g('v_lshlrev_b32 v9, 4, v9')
            g(f'v_lshl_add_u32 v{32+tl}, v7, 10, v9')
            g(f'v_add_u32 v{36+tl}, s48, v{32+tl}')
        g('v_lshrrev_b32 v9, 2, v0')
        g('v_and_b32 v10, 7, v9')
        g('v_lshlrev_b32 v9, 10, v9')
        g('v_and_b32 v11, 3, v0')
        g('v_lshl_add_u32 v9, v11, 3, v9')
        g(f's_lshr_b32 s48, {sWAVE}, 1')
        g('s_lshl_b32 s48, s48, 8')
        g(f's_add_u32 s48, s48, {L_TILE}')
        g('v_add_u32 v9, s48, v9')
        g(f's_and_b32 s48, {sWAVE}, 1')
        g('s_lshl_b32 s48, s48, 2')
        for nn in range(4):
            g(f's_add_u32 s49, s48, {nn}')
            g('v_xor_b32 v11, s49, v10')
            g(f'v_lshl_add_u32 v{40+nn}, v11, 5, v9')
        g('v_lshrrev_b32 v9, 1, v0')
        g('v_and_b32 v10, 1, v0')
        g('v_lshlrev_b32 v10, 3, v10')
        for ih in range(2):
            g(f's_lshl_b32 s48, {sWAVE}, 1')
            g(f's_add_u32 s48, s48, {ih}')
            g('s_and_b32 s49, s48, 7')
            g('s_lshl_b32 s49, s49, 1')
            g('v_xor_b32 v11, s49, v9')
            g('v_lshl_add_u32 v11, v11, 4, v10')
            g('s_lshl_b32 s48, s48, 10')
            g(f's_add_u32 s48, s48, {L_QL}')
            g(f'v_add_u32 v{44+ih}, s48, v11')
        gen_mask(g, 240, 9, 10)
        g('v_lshlrev_b32 v46, 4, v7')
        g(f's_lshl_b32 s48, {sWAVE}, 2')
        g('v_add_u32 v47, s48, v46')
        g('v_lshlrev_b32 v57, 3, v0')
        g(f's_lshl_b32 s48, {sWAVE}, 9')
        g('v_add_u32 v56, s48, v57')
        g('s_lshl_b32 s48, s55, 15')
        g(f's_lshl_b32 s49, {sWAVE}, 12')
        g('s_add_u32 s48, s48, s49')
        g(f's_add_u32 s48, s48, {QA}')
        g('v_add_u32 v248, s48, v3')
        g(f's_lshl_b32 s48, {sXCD}, 19')
        g('s_lshl_b32 s49, s55, 18')
        g('s_add_u32 s48, s48, s49')
        g('s_lshl_b32 s49, s56, 15')
        g('s_add_u32 s48, s48, s49')
        g(f's_lshl_b32 s49, {sWAVE}, 12')
        g('s_add_u32 s48, s48, s49')
        g(f's_add_u32 s48, s48, {OPL}')
        g('v_add_u32 v58, s48, v3')
        g(f's_lshl_b32 s48, {sXCD}, 12')
        g('s_lshl_b32 s49, s55, 11')
        g('s_add_u32 s48, s48, s49')
        g('s_lshl_b32 s49, s56, 8')
        g('s_add_u32 s48, s48, s49')
        g(f's_add_u32 s48, s48, {MLL}')
        g('v_add_u32 v249, s48, v3')
        g(f's_lshr_b32 s60, {sR}, 3')
        g(f's_and_b32 s58, {sR}, 7')
        g(f's_and_b32 s57, {sWAVE}, 3')
        g(f's_lshl_b32 s48, {sXCD}, 12')
        g('s_lshl_b32 s49, s60, 11')
        g('s_add_u32 s48, s48, s49')
        g(f's_add_u32 s48, s48, {MLL}')
        g('v_add_u32 v59, s48, v3')
        g('v_lshlrev_b32 v61, 5, v7')
        g(f'v_add_u32 v61, {L_RED}, v61')
        g('v_lshl_add_u32 v60, v6, 2, v61')
        g(f's_lshl_b32 s48, {sXCD}, 19')
        g('s_lshl_b32 s49, s60, 18')
        g('s_add_u32 s48, s48, s49')
        g('s_lshl_b32 s49, s58, 12')
        g('s_add_u32 s48, s48, s49')
        g('s_lshl_b32 s49, s57, 10')
        g('s_add_u32 s48, s48, s49')
        g(f's_add_u32 s48, s48, {OPL}')
        g('v_add_u32 v224, s48, v3')
        for k in range(1, 8):
            g(f'v_add_u32 v{224+k}, {32768*k}, v224')
        g(f's_lshl_b32 s48, {sXCD}, 16')
        g('s_lshl_b32 s49, s60, 15')
        g('s_add_u32 s48, s48, s49')
        g('s_lshl_b32 s49, s58, 12')
        g('s_add_u32 s48, s48, s49')
        g('s_lshl_b32 s49, s57, 10')
        g('s_add_u32 s48, s48, s49')
        g(f's_add_u32 s48, s48, {OX}')
        g('v_lshlrev_b32 v244, 6, v7')
        g('v_lshl_add_u32 v244, v6, 4, v244')
        g('v_add_u32 v244, s48, v244')
        g(f's_lshl_b32 s48, {sXCD}, 9')
        g('s_lshl_b32 s49, s60, 8')
        g('s_add_u32 s48, s48, s49')
        g(f's_add_u32 s48, s48, {MLX}')
        g('v_add_u32 v250, s48, v3')
        g(f's_lshr_b32 s48, {sR}, 2')
        g(f's_lshl_b32 s49, {sXCD}, 2')
        g('s_add_u32 s61, s48, s49')
        g(f's_and_b32 s62, {sR}, 3')
        g('v_bfe_u32 v13, v0, 2, 3')
        g('s_lshr_b32 s48, s61, 4')
        g('s_lshl_b32 s48, s48, 5')
        g('s_lshl_b32 s49, s62, 3')
        g('s_add_u32 s48, s48, s49')
        g(f's_add_u32 s48, s48, {sWAVE}')
        g('s_lshl_b32 s48, s48, 10')
        g('s_and_b32 s49, s61, 15')
        g('s_lshl_b32 s49, s49, 6')
        g('s_add_u32 s48, s48, s49')
        g(f's_add_u32 s48, s48, {OX}')
        g('v_lshlrev_b32 v14, 16, v13')
        g('v_and_b32 v12, 3, v0')
        g('v_lshl_add_u32 v14, v12, 4, v14')
        g('v_add_u32 v245, s48, v14')
        g('s_lshl_b32 s48, s61, 4')
        g(f's_add_u32 s48, s48, {MLX}')
        g('v_lshlrev_b32 v14, 9, v13')
        g('v_add_u32 v14, s48, v14')
        g('v_cmp_le_u32 vcc, 32, v0')
        g.nop(1)
        g('v_cndmask_b32 v245, v245, v14, vcc')
        g('v_lshlrev_b32 v247, 5, v7')
        g('v_lshl_add_u32 v247, v6, 4, v247')
        g(f's_lshl_b32 s48, {sWAVE}, 9')
        g('v_add_u32 v247, s48, v247')
        g(f's_lshl_b32 s48, {sXCD}, 4')
        g(f's_add_u32 s48, s48, {sR}')
        g('s_lshl_b32 s48, s48, 9')
        g(f's_add_u32 s48, s48, {C4}')
        g('v_lshrrev_b32 v253, 1, v0')
        g('v_lshl_add_u32 v253, v253, 4, s48')
        g('s_lshl_b32 s48, s61, 8')
        g('s_lshl_b32 s49, s62, 3')
        g(f's_add_u32 s49, s49, {sWAVE}')
        g('s_lshl_b32 s49, s49, 17')
        g('s_add_u32 s48, s48, s49')
        g('s_waitcnt lgkmcnt(0)')
        g.addr('s[62:63]' if False else 's[96:97]', S_WUV, 's48')
        g('v_lshlrev_b32 v254, 13, v6')
        g('v_lshl_add_u32 v254, v7, 4, v254')
        if tagwait:
            g('s_waitcnt vmcnt(0)')
            own_tag(g, 2)
        if 'newpt' in opts:
            g(f'global_load_dword v233, v245, {WS} sc1')
            pt = g.uniq('pt')
            g(f's_cmp_eq_u32 {sWAVE}, 5')
            g(f's_cbranch_scc0 {pt}')
            g(f'global_load_dword v234, v59, {WS} sc1')
            g(f'global_load_dword v235, v59, {WS} offset:1024 sc1')
            g('s_mov_b64 exec, 1')
            g(f'global_load_dword v236, v58, {WS} sc1')
            g(f'global_load_dword v237, v224, {WS} sc1')
            g('s_mov_b64 exec, -1')
            g.label(pt)

    def dma(wsel=None):
        g(f's_lshr_b32 s56, {sR}, 1')
        g(f's_lshl_b32 s57, {sXCD}, 3')
        g('s_add_u32 s57, s57, s56')
        g('s_lshl_b32 s48, s57, 6')
        if 'rot' in opts:
            g(f's_and_b32 s49, {sR}, 1')
            g('s_lshl_b32 s49, s49, 2')
            g(f's_add_u32 s49, s49, {wsel or sWAVE}')
            g('s_and_b32 s49, s49, 7')
            g('s_lshl_b32 s49, s49, 3')
        else:
            g(f's_lshl_b32 s49, {wsel or sWAVE}, 3')
        g('s_add_u32 s48, s48, s49')
        g('s_lshl_b32 s48, s48, 10')
        g.addr('s[40:41]', S_CKV, 's48')
        g('s_lshl_b32 s49, s49, 10')
        g(f's_add_u32 s49, s49, {L_TILE}')
        g('s_mov_b32 m0, s49')
        for i in range(8):
            if i == 4:
                g('s_add_u32 s49, s49, 4096')
                g('s_mov_b32 m0, s49')
                g('s_add_u32 s40, s40, 4096')
                g('s_addc_u32 s41, s41, 0')
            g(f'v_xor_b32 v4, {32*i}, v3')
            g(f'global_load_lds_dwordx4 v4, s[40:41] offset:{1024*(i%4)}' + ('' if 'ckvnont' in opts else ' nt'))

    def wuk_dma():
        g(f's_sub_u32 s54, {sR}, 16')
        g('s_lshr_b32 s48, s54, 2')
        g(f's_lshl_b32 s49, {sXCD}, 2')
        g('s_add_u32 s48, s48, s49')
        g('s_lshl_b32 s48, s48, 8')
        g('s_and_b32 s49, s54, 3')
        g('s_lshl_b32 s49, s49, 2')
        g(f's_add_u32 s49, s49, {sWAVE}')
        g('s_sub_u32 s49, s49, 4')
        g('s_lshl_b32 s49, s49, 18')
        g('s_add_u32 s48, s48, s49')
        g.addr('s[40:41]', S_WUK, 's48')
        g('v_xor_b32 v8, v7, v6')
        g('v_lshlrev_b32 v8, 4, v8')
        g('v_lshl_add_u32 v8, v6, 13, v8')
        for n in range(1, 4):
            g(f'v_xor_b32 v{8+n}, {64*n}, v8')
        g(f's_and_b32 s49, {sWAVE}, 3')
        g('s_lshl_b32 s49, s49, 13')
        g(f's_add_u32 m0, s49, {L_TILE}')
        g.nop(1)
        for n in range(8):
            g(f'global_load_lds_dwordx4 v{8+(n&3)}, s[40:41] nt')
            if n < 7:
                g('s_add_u32 m0, m0, 1024')
                g('s_add_u32 s40, s40, 32768')
                g('s_addc_u32 s41, s41, 0')

    g('s_waitcnt lgkmcnt(0)')
    if 'bq' in opts:
        g('s_barrier')
    g(f's_cmp_ge_u32 {sWAVE}, 4')
    g('s_cbranch_scc0 L_e_nb')
    g(f's_cmp_ge_u32 {sR}, 16')
    g('s_cbranch_scc1 L_e_b')
    if 'fulldma' in opts:
        g(f's_sub_u32 s58, {sWAVE}, 4')
        dma('s58')
    if 'halfdma' in opts or 'fulldma' in opts:
        dma()
    g('s_branch L_e_nb')
    g.label('L_e_b')
    if 'wukb0' not in opts:
        wuk_dma()
    g.label('L_e_nb')
    g('s_waitcnt lgkmcnt(0)')
    g(f'global_load_dword v2, v1, {WS} sc1')
    g(f's_cmp_eq_u32 {sWAVE}, 3')
    g('s_cbranch_scc0 L_nw7')
    g(f's_and_b32 s48, {sR}, 7')
    g('s_lshl_b32 s48, s48, 10')
    g('s_add_u32 s48, s48, 8192')
    g(f's_min_u32 s48, s48, L_end-{KN}-1088')
    g('s_add_u32 s42, s42, s48')
    g('s_addc_u32 s43, s43, 0')
    g('global_load_dwordx4 v[236:239], v3, s[42:43]')
    g.label('L_nw7')
    g(f's_cmp_ge_u32 {sR}, 16')
    g('s_cbranch_scc0 L_pre')
    g.label('L_e_tag')
    g(f's_cmp_eq_u32 {sWAVE}, 2')
    g('s_cbranch_scc0 L_b0')
    g('s_waitcnt vmcnt(0)')
    own_tag(g, 2)
    g('s_getreg_b32 s48, hwreg(HW_REG_XCC_ID)')
    g('s_and_b32 s48, s48, 0xf')
    g('v_mov_b32 v12, s48')
    g(f'v_mov_b32 v15, {sTAG}')
    g(f's_lshl_b32 s48, {sXCD}, 5')
    g(f's_add_u32 s48, s48, {sR}')
    g('s_lshl_b32 s48, s48, 4')
    g(f's_add_u32 s48, s48, {XID}')
    g('v_mov_b32 v16, s48')
    g('s_mov_b64 exec, 1')
    g(f'global_store_dwordx4 v16, v[12:15], {WS} sc1')
    g('s_mov_b64 exec, -1')
    g('s_branch L_b0')

    g.label('L_w0')
    g('v_lshlrev_b32 v4, 2, v0')
    g('v_min_u32 v5, 39, v0')
    g('v_lshlrev_b32 v5, 2, v5')
    g(f's_mul_i32 s48, {sJ}, 160')
    g('v_add_u32 v5, s48, v5')
    g('s_waitcnt lgkmcnt(0)')
    for k in range(5):
        g(f'global_load_dword v{10+k}, v4, {S_X} offset:{256*k}')
    g(f'global_load_dword v15, v5, {S_X}')
    g(f'global_load_dword v2, v1, {WS} sc1')
    g(f's_mov_b32 s52, {f2u(1.0/640):#x}')
    if 'bq' in opts:
        g('s_barrier')
    g('s_waitcnt vmcnt(2)')
    g.stamp(1)
    for k in range(5):
        g(f'v_lshlrev_b32 v{16+2*k}, 16, v{10+k}')
        g(f'v_and_b32 v{17+2*k}, 0xffff0000, v{10+k}')
    g('v_readfirstlane_b32 s53, v16')
    g.nop(4)
    for k in range(10):
        g(f'v_subrev_f32 v{16+k}, s53, v{16+k}')
    g('v_pk_mul_f32 v[26:27], v[16:17], v[16:17]')
    g('v_pk_add_f32 v[28:29], v[16:17], v[18:19]')
    for k in range(1, 5):
        g(f'v_pk_fma_f32 v[26:27], v[{16+2*k}:{17+2*k}], v[{16+2*k}:{17+2*k}], v[26:27]')
        if k >= 2:
            g(f'v_pk_add_f32 v[28:29], v[28:29], v[{16+2*k}:{17+2*k}]')
    g('v_add_f32 v27, v26, v27')
    g('v_add_f32 v26, v28, v29')
    g.wave_reduce([26, 27], [28, 29])
    ln_scalars(g, 26, 27, 's53', 28, 29, 30)
    g('s_waitcnt vmcnt(1)')
    g('v_lshlrev_b32 v16, 16, v15')
    g('v_and_b32 v17, 0xffff0000, v15')
    g('v_sub_f32 v16, v16, v28')
    g('v_sub_f32 v17, v17, v28')
    g('v_cvt_pk_bf16_f32 v18, v16, v17')
    g('v_lshlrev_b32 v16, 16, v18')
    g('v_and_b32 v17, 0xffff0000, v18')
    g('v_mul_f32 v16, v16, v29')
    g('v_mul_f32 v17, v17, v29')
    g('v_cvt_pk_bf16_f32 v18, v16, v17')
    g(f'ds_write_b32 v4, v18 offset:{L_XN}')
    g('s_waitcnt lgkmcnt(0)')
    g.stamp(2)
    g('s_barrier')
    g('s_waitcnt vmcnt(0)')
    own_tag(g, 2)
    g(f's_cmp_ge_u32 {sR}, 16')
    g('s_cbranch_scc1 L_pathB')
    g('s_branch L_pre0')

    g.label('L_w1')
    g(f's_mov_b32 s49, {20*8192}')
    g('v_mul_lo_u32 v8, v6, s49')
    g('v_lshl_add_u32 v8, v7, 4, v8')
    g(f's_mul_i32 s48, {sJ}, {80*8192}')
    g(f's_lshl_b32 s49, {sH}, 8')
    g('s_add_u32 s48, s48, s49')
    g('s_waitcnt lgkmcnt(0)')
    g.addr('s[40:41]', S_WQ, 's48')
    for t in range(20):
        g(f'global_load_dwordx4 v[{80+4*t}:{83+4*t}], v8, s[40:41] nt')
        if t < 19:
            g('s_add_u32 s40, s40, 8192')
            g('s_addc_u32 s41, s41, 0')
    g(f'global_load_dword v2, v1, {WS} sc1')
    if 'bq' in opts:
        g('s_barrier')
    g.stamp(1)
    gen_sel(g, 192, 16, 17)
    g(f's_lshl_b32 s48, {sH}, 3')
    g(f's_add_u32 s48, s48, {sJ}')
    g('s_lshl_b32 s48, s48, 10')
    g(f's_add_u32 s49, s48, {Q1L}')
    g.addr('s[44:45]', S_WS, 's49')
    g(f's_add_u32 s49, s48, {Q1G}')
    g.addr('s[46:47]', S_WS, 's49')
    g('v_mul_u32_u24 v19, 40, v6')
    g('s_mov_b32 s56, 0')
    g('s_mov_b32 s57, -1')
    g('s_barrier')
    for k in range(5):
        g(f'ds_read_b64 v[{16+2*k}:{17+2*k}], v19 offset:{L_XN+8*k}')
    g('s_waitcnt lgkmcnt(0)')

    def perms(t):
        a = 160 + 4 * (t % 4)
        for v in range(4):
            g(f'v_perm_b32 v{a+v}, v{16+t//2}, v{16+t//2}, v{192+2*v+(t&1)}')
    perms(0)
    perms(1)
    for t in range(20):
        if t + 2 < 20:
            perms(t + 2)
        g(f's_waitcnt vmcnt({19-t+1})')
        a = 160 + 4 * (t % 4)
        c = '0' if t == 0 else 'v[200:203]'
        g(f'v_mfma_f32_16x16x32_bf16 v[200:203], v[{a}:{a+3}], v[{80+4*t}:{83+4*t}], {c}')
        if t == 17:
            pass
    g('s_waitcnt vmcnt(0)')
    g(f'v_readfirstlane_b32 {sTAG}, v2')
    g.nop(4)
    g(f's_mul_i32 {sTAG}, {sTAG}, 5')
    g(f's_add_u32 {sTAG}, {sTAG}, 0x9E3779B9')
    g(f'v_mov_b32 v207, {sTAG}')
    g('v_cndmask_b32 v204, v200, v202, s[56:57]')
    g('v_cndmask_b32 v205, v201, v203, s[56:57]')
    g(f'global_store_dwordx4 v3, v[204:207], s[44:45]')
    g(f'global_store_dwordx4 v3, v[204:207], s[46:47] sc1')
    g.stamp(2)
    g(f's_cmp_ge_u32 {sR}, 16')
    g('s_cbranch_scc1 L_pathB')
    g('s_branch L_bp1')

    g.label('L_b0')
    g('s_barrier')
    g('s_waitcnt vmcnt(0)')
    own_tag(g, 2)
    if 'wukb0' in opts:
        g(f's_cmp_ge_u32 {sWAVE}, 4')
        g('s_cbranch_scc0 L_pathB')
        wuk_dma()
        g('s_waitcnt vmcnt(0)')
    g('s_branch L_pathB')

    g.label('L_pre')
    pre(tagwait=True)
    g(f's_cmp_eq_u32 {sWAVE}, 2')
    g('s_cbranch_scc0 L_pre_nx')
    g('s_getreg_b32 s48, hwreg(HW_REG_XCC_ID)')
    g('s_and_b32 s48, s48, 0xf')
    g('v_mov_b32 v12, s48')
    g(f'v_mov_b32 v15, {sTAG}')
    g(f's_lshl_b32 s48, {sXCD}, 5')
    g(f's_add_u32 s48, s48, {sR}')
    g('s_lshl_b32 s48, s48, 4')
    g(f's_add_u32 s48, s48, {XID}')
    g('v_mov_b32 v16, s48')
    g('s_mov_b64 exec, 1')
    g(f'global_store_dwordx4 v16, v[12:15], {WS} sc1')
    g('s_mov_b64 exec, -1')
    g.label('L_pre_nx')
    g('s_barrier')
    g.label('L_bp')
    g('s_barrier')
    if 'halfdma' in opts:
        g(f's_cmp_ge_u32 {sWAVE}, 4')
        g('s_cbranch_scc1 L_a_dmadone')
    if 'fulldma' not in opts:
        dma()
    g.stamp(13)
    g('s_branch L_a_dmadone')
    g.label('L_pre0')
    pre()
    g('s_branch L_bp')
    g.label('L_bp1')
    g('s_barrier')
    if 'fulldma' not in opts:
        dma()
    g.stamp(13)
    pre()
    g.label('L_a_dmadone')
    g(f's_and_b32 s57, {sWAVE}, 3')
    if 'newpt' not in opts:
        g(f'global_load_dword v233, v58, {WS} sc1')
        g(f'global_load_dword v234, v224, {WS} sc1')
        g(f'global_load_dword v235, v231, {WS} sc1')
    g(f's_cmp_eq_u32 {sWAVE}, 3')
    g('s_cbranch_scc0 L_a_nochk')
    g(f's_lshl_b32 s48, {sXCD}, 9')
    g(f's_add_u32 s48, s48, {XID}')
    g('v_and_b32 v9, 31, v0')
    g('v_lshlrev_b32 v9, 4, v9')
    g('v_add_u32 v9, s48, v9')
    g('s_getreg_b32 s52, hwreg(HW_REG_XCC_ID)')
    g('s_and_b32 s52, s52, 0xf')
    g('s_mov_b32 s50, 0')
    g(f's_mov_b32 {sMODE}, 0')
    g.label('L_a_chk')
    g(f'global_load_dwordx4 v[12:15], v9, {WS} sc1')
    g('s_add_u32 s50, s50, 1')
    g('s_waitcnt vmcnt(0)')
    g(f'v_cmp_eq_u32 vcc, {sTAG}, v15')
    g('s_cmp_eq_u64 vcc, exec')
    g('s_cbranch_scc1 L_a_chk_ok')
    g('s_cmp_lt_u32 s50, 64')
    g('s_cbranch_scc1 L_a_chk')
    g('s_branch L_a_chk_done')
    g.label('L_a_chk_ok')
    g('v_cmp_eq_u32 vcc, s52, v12')
    g('s_cmp_eq_u64 vcc, exec')
    g(f's_cselect_b32 {sMODE}, 1, 0')
    g.label('L_a_chk_done')
    g(f'v_mov_b32 v12, {sMODE}')
    g(f'ds_write_b32 v1, v12 offset:{L_MODE}')
    g.label('L_a_nochk')
    wuv_ins = []
    for tt in range(4):
        wuv_ins.append(f'global_load_dwordx4 v[{64+4*tt}:{67+4*tt}], v254, s[96:97] nt')
        if tt < 3:
            wuv_ins.append('s_add_u32 s96, s96, 32768')
            wuv_ins.append('s_addc_u32 s97, s97, 0')
    if 'wuvearly' in opts:
        for ins in wuv_ins:
            g(ins)
        g('s_waitcnt vmcnt(4) lgkmcnt(0)')
    else:
        g('s_waitcnt vmcnt(0) lgkmcnt(0)')
    g.stamp(3)
    g('s_barrier')
    FA = 96
    FT = 160
    skip = g.uniq('skipfa')
    g(f's_cmp_lt_u32 {sWAVE}, 4')
    g(f's_cbranch_scc0 {skip}')
    for t in range(16):
        g(f'ds_read_b128 v[{FA+4*t}:{FA+4*t+3}], v{36+(t%4)} offset:{256*(t//4)}')
    g.label(skip)
    for nn in range(4):
        for b in range(4):
            d = FT + nn * 8 + (b // 2) * 4 + (b % 2) * 2
            g(f'ds_read_b64_tr_b16 v[{d}:{d+1}], v{40+nn} offset:{16384*b}')
    g(f'ds_read_b32 v12, v1 offset:{L_MODE}')
    g(f's_mov_b32 s63, {f2u(KAPPA):#x}')
    g.poll2('qa', [(f'global_load_dwordx4 v[{16+4*i}:{19+4*i}], v248, {WS} offset:{1024*i} sc1', 19 + 4 * i, None) for i in range(4)], MA, 10, 11)
    for i in range(4):
        g(f'ds_write_b64 v{44+(i>>1)}, v[{16+4*i}:{17+4*i}] offset:{512*(i&1)}')
    g.stamp(4)
    g('s_waitcnt lgkmcnt(0)')
    g(f'v_readfirstlane_b32 {sMODE}, v12')
    g('s_barrier')
    if 'pacepf' in opts:
        g(f's_cmp_eq_u32 {sWAVE}, 6')
        g('s_cbranch_scc0 L_a_npf')
        g(f's_lshl_b32 s48, {sXCD}, 4')
        g(f's_add_u32 s48, s48, {sR}')
        g('s_lshl_b32 s48, s48, 4')
        g(f's_add_u32 s48, s48, {PF}')
        g('v_mov_b32 v8, s48')
        g(f'v_mov_b32 v15, {sTAG}')
        g('s_mov_b64 exec, 1')
        mode_store(g, [f'global_store_dwordx4 v8, v[12:15], {WS}'], sMODE)
        g('s_mov_b64 exec, -1')
        g.label('L_a_npf')
    g(f's_cmp_lt_u32 {sWAVE}, 4')
    g('s_cbranch_scc1 L_a_s')
    if 'wuvlate' not in opts and 'wuvearly' not in opts:
        for ins in wuv_ins:
            g(ins)
    g('s_branch L_a_b5')
    g.label('L_a_s')
    qreg = [192 + 4 * t for t in range(8)] + [16 + 4 * t for t in range(4)] + [80 + 4 * t for t in range(4)]
    for t in range(16):
        g(f'ds_read_b128 v[{qreg[t]}:{qreg[t]+3}], v{32+(t%4)} offset:{L_QL+256*(t//4)}')
    for t in range(16):
        g(f's_waitcnt lgkmcnt({15-t})')
        c = '0' if t == 0 else 'v[48:51]'
        g(f'v_mfma_f32_16x16x32_bf16 v[48:51], v[{FA+4*t}:{FA+4*t+3}], v[{qreg[t]}:{qreg[t]+3}], {c}')
        if 2 <= t < 2 + len(wuv_ins) and 'wuvlate' not in opts and 'wuvearly' not in opts and 'wuvsplit' not in opts and 'wuvsplit2' not in opts:
            g(wuv_ins[t - 2])
    g.nop(8)
    g('v_max_f32 v52, v48, v49')
    g('v_max3_f32 v52, v52, v50, v51')
    g.row_reduce([52], [53], 'max')
    g(f'ds_write_b32 v47, v52 offset:{L_MB}')
    g('s_waitcnt lgkmcnt(0)')
    g.label('L_a_b5')
    g('s_barrier')
    g.stamp(12)
    g(f's_cmp_lt_u32 {sWAVE}, 4')
    g('s_cbranch_scc1 L_a_sm')
    g(f's_cmp_eq_u32 {sWAVE}, 7')
    g('s_cbranch_scc0 L_a_b6')
    g(f'ds_read_b128 v[84:87], v46 offset:{L_MB}')
    for k in range(4):
        g(f'v_mov_b32 v{88+k}, 0x3f803f80')
    g('s_waitcnt lgkmcnt(0)')
    g('v_max_f32 v84, v84, v85')
    g('v_max3_f32 v84, v84, v86, v87')
    g('v_mul_f32 v84, s63, v84')
    g(f'v_mov_b32 v87, {sTAG}')
    g('s_branch L_a_b6')
    g.label('L_a_sm')
    g(f'ds_read_b128 v[52:55], v46 offset:{L_MB}')
    g('s_waitcnt lgkmcnt(0)')
    g('v_max_f32 v52, v52, v53')
    g('v_max3_f32 v52, v52, v54, v55')
    g('v_mul_f32 v52, s63, v52')
    for k in range(4):
        g(f'v_fma_f32 v{48+k}, v{48+k}, s63, -v52')
    for k in range(4):
        g(f'v_exp_f32 v{48+k}, v{48+k}')
    g.nop(1)
    g('v_cvt_pk_bf16_f32 v54, v48, v49')
    g('v_cvt_pk_bf16_f32 v55, v50, v51')
    g(f'ds_write_b64 v56, v[54:55] offset:{L_PB}')
    g('s_waitcnt lgkmcnt(0)')
    g.label('L_a_b6')
    for nn in range(4):
        g(f'v_mov_b32 v{19+4*nn}, {sTAG}')
    g('s_barrier')
    for b in range(4):
        g(f'ds_read_b64 v[{48+2*b}:{49+2*b}], v57 offset:{L_PB+512*b}')
    PD = 208
    g('s_waitcnt lgkmcnt(0)')
    g.stamp(10)
    g(f's_cmp_eq_u32 {sWAVE}, 7')
    g('s_cbranch_scc0 L_a_pv')
    g('v_mfma_f32_16x16x32_bf16 v[92:95], v[88:91], v[48:51], 0')
    g('v_mfma_f32_16x16x32_bf16 v[92:95], v[88:91], v[52:55], v[92:95]')
    g.label('L_a_pv')
    for nn in range(4):
        for s2 in range(2):
            c = '0' if s2 == 0 else f'v[{PD+4*nn}:{PD+3+4*nn}]'
            a = FT + nn * 8 + s2 * 4
            g(f'v_mfma_f32_16x16x32_bf16 v[{PD+4*nn}:{PD+3+4*nn}], v[{a}:{a+3}], v[{48+4*s2}:{51+4*s2}], {c}')
    g(f's_cmp_eq_u32 {sWAVE}, 7')
    g('s_cbranch_scc0 L_a_pv2')
    g('v_mov_b32 v85, v92')
    g.set_exec(0xffff)
    mode_store(g, [f'global_store_dwordx4 v249, v[84:87], {WS}'], sMODE)
    g('s_mov_b64 exec, -1')
    g.label('L_a_pv2')
    g.nop(2)
    for nn in range(4):
        g(f'v_cvt_pk_bf16_f32 v{16+4*nn}, v{PD+4*nn}, v{PD+1+4*nn}')
        g(f'v_cvt_pk_bf16_f32 v{17+4*nn}, v{PD+2+4*nn}, v{PD+3+4*nn}')
    g.stamp(11)
    oplfl = ' nt' if 'oplnt' in opts else ' sc0' if 'oplsc0' in opts else ' sc0 nt' if 'oplsc0nt' in opts else ''
    mode_store(g, [f'global_store_dwordx4 v58, v[{16+4*nn}:{19+4*nn}], {WS} offset:{1024*nn}' + oplfl for nn in range(4)], sMODE)
    g.stamp(5)
    if stop_after == 3:
        g('s_branch L_fin')

    MR = 96
    OR_ = 128
    g(f's_cmp_ge_u32 {sWAVE}, 4')
    g('s_cbranch_scc1 L_a_r')
    g(f's_cmp_eq_u32 {sWAVE}, 0')
    g('s_cbranch_scc0 L_a_bw')
    g.poll2('mll', [(f'global_load_dwordx4 v[{MR}:{MR+3}], v59, {WS} sc1', MR + 3, None),
                    (f'global_load_dwordx4 v[{MR+4}:{MR+7}], v59, {WS} offset:1024 sc1', MR + 7, None)], MA, 10, 11)
    g(f'v_max_f32 v20, v{MR}, v{MR+4}')
    g.row_reduce([20], [22], 'max')
    g(f'v_sub_f32 v24, v{MR}, v20')
    g(f'v_sub_f32 v25, v{MR+4}, v20')
    g('v_exp_f32 v24, v24')
    g('v_exp_f32 v25, v25')
    g.nop(1)
    g('ds_write_b32 v60, v24')
    g('ds_write_b32 v60, v25 offset:16')
    g(f'v_mul_f32 v21, v24, v{MR+1}')
    g(f'v_fmac_f32 v21, v25, v{MR+5}')
    g('s_waitcnt lgkmcnt(0)')
    g('s_barrier')
    g('s_cmp_eq_u32 s58, 0')
    g('s_cbranch_scc0 L_a_w2')
    g.row_reduce([21], [22], 'add')
    g(f'v_mov_b32 v23, {sTAG}')
    g.set_exec(0xffff)
    g(f'global_store_dwordx4 v250, v[20:23], {WS} sc1')
    g('s_mov_b64 exec, -1')
    g('s_branch L_a_w2')
    g.label('L_a_bw')
    g('s_barrier')
    g.label('L_a_w2')
    if 'wuvsplit2' in opts:
        for ins in wuv_ins:
            g(ins)
    g('s_branch L_a_s4')
    g.label('L_a_r')
    g(f'v_mov_b32 v51, {sTAG}')
    if 'bwfirst' in opts:
        g('s_barrier')
        g(f'ds_read_b128 v[{MR+8}:{MR+11}], v61')
        g(f'ds_read_b128 v[{MR+12}:{MR+15}], v61 offset:16')
    g.poll2('opl', [(f'global_load_dwordx4 v[{OR_+4*k}:{OR_+4*k+3}], v{224+k}, {WS} sc1', OR_ + 4 * k + 3, None) for k in range(8)], MA, 10, 11)
    g.stamp(6)
    if 'bwfirst' not in opts:
        g('s_barrier')
        g(f'ds_read_b128 v[{MR+8}:{MR+11}], v61')
        g(f'ds_read_b128 v[{MR+12}:{MR+15}], v61 offset:16')
    UP = 160
    for k in range(8):
        for half in range(2):
            src = OR_ + 4 * k + half
            t = UP + 4 * k + 2 * half
            g(f'v_lshlrev_b32 v{t}, 16, v{src}')
            g(f'v_and_b32 v{t+1}, 0xffff0000, v{src}')
        if k == 1:
            g('s_waitcnt lgkmcnt(0)')
        if k >= 1:
            for kk in ([0, 1] if k == 1 else [k]):
                wr = MR + 8 + (kk & ~1)
                sel = kk & 1
                for half in range(2):
                    t = UP + 4 * kk + 2 * half
                    acc = 52 + 2 * half
                    if kk == 0:
                        g(f'v_pk_mul_f32 v[{acc}:{acc+1}], v[{t}:{t+1}], v[{wr}:{wr+1}] op_sel_hi:[1,0]')
                    else:
                        g(f'v_pk_fma_f32 v[{acc}:{acc+1}], v[{t}:{t+1}], v[{wr}:{wr+1}], v[{acc}:{acc+1}] op_sel:[0,{sel},0] op_sel_hi:[1,{sel},1]')
    g('v_cvt_pk_bf16_f32 v48, v52, v53')
    g('v_cvt_pk_bf16_f32 v49, v54, v55')
    g(f'global_store_dwordx4 v244, v[48:51], {WS} sc1')
    g.stamp(7)
    g.label('L_a_s4')
    g('s_barrier')
    if 'wuvlate' in opts:
        for ins in wuv_ins:
            g(ins)
    if 'wuvsplit' in opts:
        g(f's_cmp_lt_u32 {sWAVE}, 4')
        g('s_cbranch_scc0 L_a_nwuv')
        for ins in wuv_ins:
            g(ins)
        g.label('L_a_nwuv')

    g.poll2('ox', [(f'global_load_dwordx4 v[16:19], v245, {WS} sc1', 19, None)], MA, 10, 11)
    g.stamp(8)
    g('v_max_f32_dpp v22, v16, v16 row_ror:4 row_mask:0xf bank_mask:0xf')
    g.nop(2)
    g('v_max_f32_dpp v22, v22, v22 row_ror:8 row_mask:0xf bank_mask:0xf')
    g.nop(1)
    g('v_mov_b32 v23, v22')
    g.nop(2)
    g('v_permlane16_swap_b32 v23, v22')
    g.nop(1)
    g('v_max_f32 v22, v22, v23')
    g('v_sub_f32 v24, v16, v22')
    g('v_exp_f32 v24, v24')
    g('v_permlane32_swap_b32 v16, v17')
    g.nop(1)
    g('v_mul_f32 v22, v24, v17')
    g('v_lshlrev_b32 v25, 16, v16')
    g('v_add_f32_dpp v22, v22, v22 row_ror:4 row_mask:0xf bank_mask:0xf')
    g('v_and_b32 v26, 0xffff0000, v16')
    g.nop(1)
    g('v_add_f32_dpp v22, v22, v22 row_ror:8 row_mask:0xf bank_mask:0xf')
    g.nop(1)
    g('v_mov_b32 v23, v22')
    g.nop(2)
    g('v_permlane16_swap_b32 v23, v22')
    g.nop(1)
    g('v_add_f32 v22, v22, v23')
    g('v_rcp_f32 v22, v22')
    g.nop(1)
    g('v_mul_f32 v24, v24, v22')
    g('v_mov_b32 v23, v24')
    g.nop(2)
    g('v_permlane32_swap_b32 v23, v24')
    g.nop(1)
    g('v_mul_f32 v25, v25, v24')
    g('v_mul_f32 v26, v26, v24')
    g.nop(2)
    g('v_permlane16_swap_b32 v25, v26')
    g.nop(1)
    g('v_add_f32 v25, v25, v26')
    g.nop(2)
    g('v_add_f32_dpp v25, v25, v25 row_ror:4 row_mask:0xf bank_mask:0xf')
    g.nop(2)
    g('v_add_f32_dpp v25, v25, v25 row_ror:8 row_mask:0xf bank_mask:0xf')
    g('v_cvt_pk_bf16_f32 v25, v25, v25')
    g.nop(2)

    def ands(tt):
        a = 84 + 4 * (tt % 2)
        for v in range(4):
            g(f'v_and_b32_dpp v{a+v}, v25, v{240+v} quad_perm:[{tt},{tt},{tt},{tt}] row_mask:0xf bank_mask:0xf')
    ands(0)
    for tt in range(4):
        if tt < 3:
            ands(tt + 1)
        else:
            g.nop(2)
        a = 84 + 4 * (tt % 2)
        c = '0' if tt == 0 else 'v[92:95]'
        g(f'v_mfma_f32_16x16x32_bf16 v[92:95], v[{a}:{a+3}], v[{64+4*tt}:{67+4*tt}], {c}')
    g.set_exec(0xffffffff)
    g.nop(6)
    g(f'ds_write_b128 v247, v[92:95] offset:{L_RED}')
    g('s_mov_b64 exec, -1')
    g('s_waitcnt lgkmcnt(0)')
    g('s_barrier')
    g(f's_cmp_eq_u32 {sWAVE}, 0')
    g('s_cbranch_scc0 L_a_red')
    for w in range(8):
        g(f'ds_read_b64 v[{32+2*w}:{33+2*w}], v57 offset:{L_RED+512*w}')
    g(f'v_mov_b32 v23, {sTAG}')
    g('s_waitcnt lgkmcnt(0)')
    g('v_pk_add_f32 v[32:33], v[32:33], v[34:35]')
    g('v_pk_add_f32 v[36:37], v[36:37], v[38:39]')
    g('v_pk_add_f32 v[40:41], v[40:41], v[42:43]')
    g('v_pk_add_f32 v[44:45], v[44:45], v[46:47]')
    g('v_pk_add_f32 v[32:33], v[32:33], v[36:37]')
    g('v_pk_add_f32 v[40:41], v[40:41], v[44:45]')
    g('v_pk_add_f32 v[32:33], v[32:33], v[40:41]')
    g('v_cvt_pk_bf16_f32 v20, v32, v33')
    g.nop(2)
    g('v_mov_b32_dpp v21, v20 row_shl:1 row_mask:0xf bank_mask:0xf')
    g.set_exec(0x5555555555555555)
    mode_store(g, [f'global_store_dwordx4 v253, v[20:23], {WS}'], sMODE)
    g('s_mov_b64 exec, -1')
    g.stamp(9)
    g.label('L_a_red')
    if 'wb' in opts:
        g(f's_cmp_eq_u32 {sWAVE}, 5')
        g('s_cbranch_scc0 L_a_nwb')
        g(f's_cmp_eq_u32 {sR}, 12')
        g('s_cbranch_scc0 L_a_nwb')
        g('buffer_wbl2 sc1')
        g('s_waitcnt vmcnt(0)')
        g.label('L_a_nwb')
    if stop_after == 4:
        g('s_branch L_fin')
    g(f's_cmp_eq_u32 {sWAVE}, 7')
    g('s_cbranch_scc0 L_fin')
    g(f's_cmp_lt_u32 {sR}, 10')
    g('s_cbranch_scc0 L_fin')
    g(f's_mul_i32 s55, {sXCD}, 10')
    g(f's_add_u32 s55, s55, {sR}')
    g('v_and_b32 v7, 3, v0')
    g('v_lshrrev_b32 v6, 5, v0')
    g('v_and_b32 v8, 1, v7')
    g('v_lshlrev_b32 v8, 2, v8')
    g('v_lshrrev_b32 v9, 1, v7')
    g('v_add_u32 v8, v8, v9')
    g('v_lshl_add_u32 v8, v6, 1, v8')
    g('s_lshl_b32 s48, s55, 3')
    g('v_add_u32 v31, s48, v8')
    g('v_lshlrev_b32 v31, 1, v31')
    g(f'global_load_ushort v30, v31, {S_X}')
    g('v_and_b32 v9, 7, v0')
    g('v_mul_u32_u24 v9, 2560, v9')
    g('v_bfe_u32 v10, v0, 3, 1')
    g('v_lshl_add_u32 v9, v10, 4, v9')
    g('s_lshr_b32 s48, s55, 4')
    g('s_lshl_b32 s48, s48, 9')
    g('s_and_b32 s49, s55, 15')
    g('s_lshl_b32 s49, s49, 5')
    g('s_add_u32 s48, s48, s49')
    g(f's_add_u32 s48, s48, {OUTP}')
    g('v_add_u32 v9, s48, v9')
    g('s_lshl_b32 s48, s55, 6')
    g(f's_add_u32 s48, s48, {O2P}')
    g('v_lshrrev_b32 v12, 2, v0')
    g('v_mul_u32_u24 v12, 5120, v12')
    g('v_lshl_add_u32 v12, v7, 4, v12')
    g('v_add_u32 v12, s48, v12')
    g(f'v_add_u32 v13, {16*5120}, v12')
    g(f'v_add_u32 v14, {32*5120}, v12')
    g(f'v_add_u32 v15, {48*5120}, v12')
    g(f'v_mov_b32 v44, {sTAG}')
    g('v_mov_b32 v46, 0')
    g('v_mov_b32 v47, 0')
    g(f'v_mov_b32 v19, {sTAG}')
    g('v_mov_b32 v16, 0')
    g('v_mov_b32 v17, 0')
    g('v_lshrrev_b32 v28, 2, v8')
    g('v_lshlrev_b32 v28, 5, v28')
    g('v_and_b32 v29, 3, v8')
    g.poll2('hf', [(f'global_load_dwordx4 v[16:19], v9, {WS} sc1', 19, 0xffff)], MA, 10, 11)
    g('v_lshlrev_b32 v20, 16, v16')
    g('v_and_b32 v21, 0xffff0000, v16')
    g('v_lshlrev_b32 v22, 16, v17')
    g('v_and_b32 v23, 0xffff0000, v17')
    for ctl in ['quad_perm:[1,0,3,2]', 'quad_perm:[2,3,0,1]', 'row_half_mirror']:
        g.nop(1)
        for k in range(4):
            g(f'v_add_f32_dpp v{20+k}, v{20+k}, v{20+k} {ctl} row_mask:0xf bank_mask:0xf')
    g.nop(1)
    for k in range(4):
        g(f'ds_bpermute_b32 v{24+k}, v28, v{20+k}')
    g('s_waitcnt lgkmcnt(0)')
    g('v_cmp_eq_u32 vcc, 1, v29')
    g.nop(1)
    g('v_cndmask_b32 v24, v24, v25, vcc')
    g('v_cmp_eq_u32 vcc, 2, v29')
    g.nop(1)
    g('v_cndmask_b32 v24, v24, v26, vcc')
    g('v_cmp_eq_u32 vcc, 3, v29')
    g.nop(1)
    g('v_cndmask_b32 v16, v24, v27, vcc')
    rnd_bf16(g, 16)
    g('v_lshlrev_b32 v30, 16, v30')
    g('v_add_f32 v30, v30, v16')
    rnd_bf16(g, 30)
    g.poll2('o2', [(f'global_load_dwordx4 v[{32+4*i}:{35+4*i}], v{12+i}, {WS} sc1', 32 + 4 * i, None) for i in range(3)] +
            [(f'global_load_dwordx4 v[44:47], v15, {WS} sc1', 44, 0xffffff)], MA, 10, 11)
    g.stamp(9)
    g('v_pk_add_f32 v[16:17], v[34:35], v[38:39]')
    g('v_pk_add_f32 v[18:19], v[42:43], v[46:47]')
    g('v_pk_add_f32 v[16:17], v[16:17], v[18:19]')
    g.nop(2)
    g('v_permlane32_swap_b32 v16, v17')
    g.nop(1)
    g('v_add_f32 v16, v16, v17')
    g('v_mov_b32 v17, v16')
    g.nop(2)
    g('v_permlane16_swap_b32 v17, v16')
    g.nop(1)
    g('v_add_f32 v16, v16, v17')
    g.nop(2)
    g('v_add_f32_dpp v16, v16, v16 row_ror:4 row_mask:0xf bank_mask:0xf')
    g.nop(2)
    g('v_add_f32_dpp v16, v16, v16 row_ror:8 row_mask:0xf bank_mask:0xf')
    rnd_bf16(g, 16)
    g('v_add_f32 v16, v16, v30')
    g('v_cvt_pk_bf16_f32 v16, v16, v16')
    g('s_mov_b32 exec_lo, 0xf')
    g('s_mov_b32 exec_hi, 0xf')
    g(f'global_store_short v31, v16, {S_OUT}')
    g('s_mov_b64 exec, -1')
    g('s_cmp_eq_u32 s55, 0')
    g('s_cbranch_scc0 L_fin')
    g('s_mov_b64 exec, 1')
    g(f'v_mov_b32 v2, {sTAG}')
    g(f'global_store_dword v1, v2, {WS} sc1')
    g('s_mov_b64 exec, -1')
    g('s_branch L_fin')

    g.label('L_pathB')
    g(f's_sub_u32 s54, {sR}, 16')
    g('s_lshr_b32 s48, s54, 2')
    g(f's_lshl_b32 s49, {sXCD}, 2')
    g('s_add_u32 s55, s48, s49')
    g(f's_cmp_eq_u32 {sWAVE}, 0')
    g('s_cbranch_scc0 L_b1')
    g('s_lshl_b32 s48, s55, 13')
    g(f's_add_u32 s49, s48, {Q1L}')
    g.addr('s[40:41]', S_WS, 's49')
    g(f's_add_u32 s49, s48, {Q1G}')
    g.addr('s[42:43]', S_WS, 's49')
    g('v_add_u32 v4, 4096, v3')
    g('v_and_b32 v14, 1, v6')
    g('v_lshlrev_b32 v14, 3, v14')
    g('v_lshl_add_u32 v14, v7, 4, v14')
    g('v_lshrrev_b32 v15, 1, v6')
    g('v_lshl_add_u32 v14, v15, 2, v14')
    g.poll2('q1', [(f'global_load_dwordx4 v[{32+4*k}:{35+4*k}], {"v3" if k < 4 else "v4"}, {{base}} offset:{1024*(k%4)} sc1', 35 + 4 * k, None) for k in range(8)],
            MQ, 10, 11, alt=('s[40:41]', 's[42:43]'))
    g.stamp(3)
    g('v_pk_add_f32 v[12:13], v[32:33], v[36:37]')
    g('v_pk_add_f32 v[10:11], v[40:41], v[44:45]')
    g('v_pk_add_f32 v[16:17], v[48:49], v[52:53]')
    g('v_pk_add_f32 v[18:19], v[56:57], v[60:61]')
    g('v_pk_add_f32 v[12:13], v[12:13], v[10:11]')
    g('v_pk_add_f32 v[16:17], v[16:17], v[18:19]')
    g('v_pk_add_f32 v[12:13], v[12:13], v[16:17]')
    g('v_cvt_pk_bf16_f32 v12, v12, v13')
    g(f'ds_write_b32 v14, v12 offset:{L_QB}')
    g('s_waitcnt lgkmcnt(0)')
    g('s_barrier')
    g('s_branch L_b2')
    g.label('L_b1')
    g('s_lshl_b32 s48, s55, 11')
    g('s_and_b32 s49, s54, 3')
    g('s_lshl_b32 s49, s49, 9')
    g('s_add_u32 s48, s48, s49')
    g(f's_and_b32 s49, {sWAVE}, 3')
    g('s_lshl_b32 s49, s49, 7')
    g('s_add_u32 s48, s48, s49')
    g(f's_add_u32 s48, s48, {QA}')
    g('v_lshlrev_b32 v9, 4, v6')
    g('v_lshl_add_u32 v104, v7, 6, v9')
    g('v_add_u32 v104, s48, v104')
    g(f'v_mov_b32 v103, {sTAG}')
    g('s_mov_b32 s56, 0x00020002')
    g('s_mov_b32 s57, 0x00020002')
    g(f's_cmp_ge_u32 {sWAVE}, 4')
    g('s_cbranch_scc0 L_b1x')
    g(f's_and_b32 s49, {sWAVE}, 3')
    g('s_lshl_b32 s49, s49, 13')
    g(f's_add_u32 s49, s49, {L_TILE}')
    g('v_lshl_add_u32 v12, v7, 8, s49')
    for t in range(4):
        g(f'v_add_u32 v13, {4*t}, v6')
        g('v_xor_b32 v13, v13, v7')
        g('v_lshl_add_u32 v13, v13, 4, v12')
        for tau in range(2):
            g(f'ds_read_b128 v[{64+16*tau+4*t}:{67+16*tau+4*t}], v13 offset:{4096*tau}')
    g('s_waitcnt lgkmcnt(0)')
    g('s_barrier')
    g('s_branch L_b1m')
    g.label('L_b1x')
    g('s_barrier')
    g('s_branch L_b2')
    g.label('L_b1m')
    for t in range(4):
        g(f'ds_read_b128 v[{108+4*t}:{111+4*t}], v9 offset:{L_QB+64*t}')
    for t in range(4):
        g(f's_waitcnt lgkmcnt({3-t})')
        for tau in range(2):
            c = '0' if t == 0 else f'v[{96+8*tau}:{99+8*tau}]' if False else ('0' if t == 0 else f'v[{124+4*tau}:{127+4*tau}]')
            g(f'v_mfma_f32_16x16x32_bf16 v[{124+4*tau}:{127+4*tau}], v[{64+16*tau+4*t}:{67+16*tau+4*t}], v[{108+4*t}:{111+4*t}], {c}')
    g('s_mov_b32 exec_lo, 0x00030003')
    g('s_mov_b32 exec_hi, 0x00030003')
    g.nop(6)
    g('v_cvt_pk_bf16_f32 v96, v124, v125')
    g('v_cvt_pk_bf16_f32 v97, v126, v127')
    g('v_cvt_pk_bf16_f32 v98, v128, v129')
    g('v_cvt_pk_bf16_f32 v99, v130, v131')
    g('v_cndmask_b32 v100, v96, v98, s[56:57]')
    g('v_cndmask_b32 v101, v97, v99, s[56:57]')
    g(f'global_store_dwordx4 v104, v[100:103], {WS} sc1')
    g('s_mov_b64 exec, -1')
    g.stamp(4)
    g.label('L_b2')
    if stop_after in (2, 3, 4):
        g('s_branch L_fin')
    if 'pace' in opts or 'paceml' in opts:
        g(f's_cmp_eq_u32 {sWAVE}, 0')
        g('s_cbranch_scc0 L_b2p')
        if 'paceml' in opts:
            g('s_cmp_lt_u32 s54, 5')
            g('s_cbranch_scc1 L_b2p')
        g('v_lshrrev_b32 v12, 1, v0')
        g('v_lshlrev_b32 v12, 11, v12')
        g('v_and_b32 v13, 1, v0')
        g('v_lshl_add_u32 v12, v13, 10, v12')
        g(f'v_add_u32 v12, {QA + 1008}, v12')
        g('s_mov_b32 s50, 0')
        g.label('L_b2q')
        g(f'global_load_dwordx4 v[16:19], v12, {WS} sc1')
        g('s_add_u32 s50, s50, 1')
        g('s_waitcnt vmcnt(0)')
        g(f'v_cmp_ne_u32 vcc, {sTAG}, v19')
        g('s_cmp_eq_u64 vcc, 0')
        g('s_cbranch_scc1 L_b2p')
        g('s_cmp_lt_u32 s50, 64')
        g('s_cbranch_scc1 L_b2q')
        g.label('L_b2p')
    if 'pacepf' in opts:
        g(f's_cmp_eq_u32 {sWAVE}, 0')
        g('s_cbranch_scc0 L_b2u')
        g('s_cmp_lt_u32 s54, 5')
        g('s_cbranch_scc1 L_b2u')
        g(f's_lshl_b32 s48, {sXCD}, 8')
        g(f's_add_u32 s48, s48, {PF}')
        g('v_and_b32 v12, NPF, v0'.replace('NPF', str(int([o for o in opts if o.startswith('npf')][0][3:]) - 1 if any(o.startswith('npf') for o in opts) else 3)))
        g('v_lshl_add_u32 v12, v12, 4, s48')
        g('s_mov_b32 s50, 0')
        g.label('L_b2t')
        g(f'global_load_dwordx4 v[16:19], v12, {WS} sc1')
        g('s_add_u32 s50, s50, 1')
        g('s_waitcnt vmcnt(0)')
        g(f'v_cmp_ne_u32 vcc, {sTAG}, v19')
        g('s_cmp_eq_u64 vcc, 0')
        g('s_cbranch_scc1 L_b2u')
        g('s_cmp_lt_u32 s50, 256')
        g('s_cbranch_scc1 L_b2t')
        g.label('L_b2u')
    if 'pacemll' in opts:
        g(f's_cmp_eq_u32 {sWAVE}, 0')
        g('s_cbranch_scc0 L_b2r')
        g('s_cmp_lt_u32 s54, 5')
        g('s_cbranch_scc1 L_b2r')
        g(f's_lshl_b32 s48, {sXCD}, 12')
        g(f's_add_u32 s48, s48, {MLL}')
        g('v_add_u32 v12, s48, v3')
        g('s_mov_b32 s50, 0')
        g.label('L_b2s')
        g(f'global_load_dwordx4 v[16:19], v12, {WS} sc1')
        g('s_add_u32 s50, s50, 1')
        g('s_waitcnt vmcnt(0)')
        g(f'v_cmp_ne_u32 vcc, {sTAG}, v19')
        g('s_cmp_eq_u64 vcc, 0')
        g('s_cbranch_scc1 L_b2r')
        g('s_cmp_lt_u32 s50, 256')
        g('s_cbranch_scc1 L_b2s')
        g.label('L_b2r')
    g('s_barrier')
    g.stamp(5)
    g('v_lshrrev_b32 v8, 3, v7')
    g('v_and_b32 v9, 7, v0')
    g('v_lshl_add_u32 v10, v8, 2, v6')
    g('s_cmp_lt_u32 s54, 5')
    g('s_cbranch_scc1 L_b_wo')
    g('s_sub_u32 s48, s54, 5')
    g('s_lshr_b32 s49, s48, 1')
    g('s_lshl_b32 s49, s49, 3')
    g(f's_add_u32 s49, s49, {sXCD}')
    g('s_cmp_lt_u32 s49, 27')
    g('s_cbranch_scc0 L_fin')
    g('s_lshl_b32 s49, s49, 1')
    g('s_and_b32 s48, s48, 1')
    g('s_add_u32 s58, s49, s48')
    g('s_branch L_b_mlpld')
    g.label('L_b_wo')
    g(f's_lshl_b32 s48, {sXCD}, 3')
    g(f's_add_u32 s48, s48, {sWAVE}')
    g(f's_mul_i32 s48, s48, {64*1280}')
    g('s_lshl_b32 s49, s54, 8')
    g('s_add_u32 s48, s48, s49')
    g.addr('s[40:41]', S_WO, 's48')
    g('v_mul_u32_u24 v11, 1280, v6')
    g('v_lshl_add_u32 v11, v7, 4, v11')
    for t in range(16):
        g(f'global_load_dwordx4 v[{32+4*t}:{35+4*t}], v11, s[40:41] nt')
        if t < 15:
            g('s_add_u32 s40, s40, 5120')
            g('s_addc_u32 s41, s41, 0')
    gen_mask(g, 192, 16, 17)
    g(f's_lshr_b32 s48, {sWAVE}, 1')
    g('s_lshl_b32 s48, s48, 2')
    g(f's_lshl_b32 s49, {sXCD}, 4')
    g('s_add_u32 s48, s48, s49')
    g('s_lshl_b32 s48, s48, 9')
    g(f's_and_b32 s49, {sWAVE}, 1')
    g('s_lshl_b32 s49, s49, 8')
    g('s_add_u32 s48, s48, s49')
    g(f's_add_u32 s48, s48, {C4}')
    g('v_lshlrev_b32 v11, 9, v6')
    g('v_lshl_add_u32 v11, v7, 4, v11')
    g('v_add_u32 v11, s48, v11')
    g('v_lshlrev_b32 v26, 5, v7')
    g('v_lshl_add_u32 v26, v6, 4, v26')
    g(f's_lshl_b32 s48, {sWAVE}, 9')
    g('v_add_u32 v26, s48, v26')
    g('v_lshlrev_b32 v28, 3, v0')
    g(f's_mul_i32 s48, {sXCD}, 2560')
    g('s_lshl_b32 s49, s54, 9')
    g('s_add_u32 s48, s48, s49')
    g(f's_add_u32 s48, s48, {OUTP}')
    g('v_lshrrev_b32 v29, 1, v0')
    g('v_lshl_add_u32 v29, v29, 4, s48')
    g(f'v_mov_b32 v147, {sTAG}')
    if g.stamps:
        g.stamp(8)
        g('s_waitcnt vmcnt(0)')
        g.stamp(9)
    g.poll2('c4', [(f'global_load_dwordx4 v[16:19], v11, {WS} sc1', 19, None)], MB, 13, 14)
    g.stamp(6)
    g('v_lshlrev_b32 v20, 16, v16')
    g('v_and_b32 v21, 0xffff0000, v16')
    g('v_lshlrev_b32 v22, 16, v17')
    g('v_and_b32 v23, 0xffff0000, v17')
    g.nop(1)
    g('v_permlane32_swap_b32 v20, v22')
    g('v_permlane32_swap_b32 v21, v23')
    g.nop(1)
    g('v_add_f32 v20, v20, v22')
    g('v_add_f32 v21, v21, v23')
    g.nop(2)
    g('v_permlane16_swap_b32 v20, v21')
    g.nop(1)
    g('v_add_f32 v20, v20, v21')
    g('v_cvt_pk_bf16_f32 v20, v20, v20')
    g.nop(2)

    def wands(t):
        a = 224 + 4 * (t % 4)
        for v in range(4):
            g(f'v_and_b32_dpp v{a+v}, v20, v{192+v} row_newbcast:{t} row_mask:0xf bank_mask:0xf')
    wands(0)
    wands(1)
    for t in range(16):
        if t + 2 < 16:
            wands(t + 2)
        a = 224 + 4 * (t % 4)
        c = '0' if t == 0 else 'v[200:203]'
        g(f'v_mfma_f32_16x16x32_bf16 v[200:203], v[{a}:{a+3}], v[{32+4*t}:{35+4*t}], {c}')
    g.set_exec(0xffffffff)
    g.nop(6)
    g(f'ds_write_b128 v26, v[200:203] offset:{L_RED}')
    g('s_mov_b64 exec, -1')
    g('s_waitcnt lgkmcnt(0)')
    g('s_barrier')
    g(f's_cmp_eq_u32 {sWAVE}, 0')
    g('s_cbranch_scc0 L_fin')
    for w in range(8):
        g(f'ds_read_b64 v[{160+2*w}:{161+2*w}], v28 offset:{L_RED+512*w}')
    g('s_waitcnt lgkmcnt(0)')
    g('v_pk_add_f32 v[160:161], v[160:161], v[162:163]')
    g('v_pk_add_f32 v[164:165], v[164:165], v[166:167]')
    g('v_pk_add_f32 v[168:169], v[168:169], v[170:171]')
    g('v_pk_add_f32 v[172:173], v[172:173], v[174:175]')
    g('v_pk_add_f32 v[160:161], v[160:161], v[164:165]')
    g('v_pk_add_f32 v[168:169], v[168:169], v[172:173]')
    g('v_pk_add_f32 v[160:161], v[160:161], v[168:169]')
    g('v_cvt_pk_bf16_f32 v144, v160, v161')
    g.nop(2)
    g('v_mov_b32_dpp v145, v144 row_shl:1 row_mask:0xf bank_mask:0xf')
    g.set_exec(0x5555555555555555)
    g(f'global_store_dwordx4 v29, v[144:147], {WS} sc1')
    g('s_mov_b64 exec, -1')
    g.stamp(7)
    g('s_branch L_fin')

    def gemv(n, src, wbase, d, ab=224, reuse=False, keep=False):
        ns = n if keep else 4
        def pm(t):
            a = ab + 4 * (t % ns)
            for v in range(4):
                g(f'v_perm_b32 v{a+v}, v{src+t//2}, v{src+t//2}, v{192+2*v+(t&1)}')
        if not reuse:
            pm(0)
            if n > 1:
                pm(1)
        for t in range(n):
            if not reuse and t + 2 < n:
                pm(t + 2)
            a = ab + 4 * (t % ns)
            c = '0' if t == 0 else f'v[{d}:{d+3}]'
            g(f'v_mfma_f32_16x16x32_bf16 v[{d}:{d+3}], v[{a}:{a+3}], v[{wbase+4*t}:{wbase+4*t+3}], {c}')

    g.label('L_b_mlpld')
    if stop_after == 5:
        g('s_branch L_fin')
    gen_sel(g, 192, 16, 17)
    if 'mlrot' in opts:
        g('s_and_b32 s57, s58, 1')
        g('s_lshl_b32 s57, s57, 2')
        g(f's_add_u32 s57, s57, {sWAVE}')
        g('s_and_b32 s57, s57, 7')
    else:
        g(f's_mov_b32 s57, {sWAVE}')
    g('v_and_b32 v26, 1, v6')
    g('v_lshlrev_b32 v26, 2, v26')
    g('v_lshl_add_u32 v26, v9, 3, v26')
    g('v_lshrrev_b32 v27, 1, v6')
    g('v_add_u32 v26, v26, v27')
    g('v_lshlrev_b32 v26, 2, v26')
    g(f's_lshl_b32 s48, {sWAVE}, 8')
    g('v_add_u32 v26, s48, v26')
    g('v_cmp_le_u32 vcc, 4, v9')
    g('v_mov_b32 v12, s22')
    g('v_mov_b32 v13, s24')
    g('v_mov_b32 v14, s23')
    g('v_mov_b32 v15, s25')
    g('v_cndmask_b32 v12, v12, v13, vcc')
    g('v_cndmask_b32 v13, v14, v15, vcc')
    g('v_and_b32 v14, 3, v0')
    g('v_lshlrev_b32 v14, 4, v14')
    g('s_lshl_b32 s48, s58, 6')
    g(f's_mul_i32 s49, s57, {80*3456}')
    g('s_add_u32 s48, s48, s49')
    g('v_add_u32 v14, s48, v14')
    g(f'v_mul_u32_u24 v15, {8*3456}, v10')
    g('v_add_u32 v15, v15, v14')
    g(f'v_mul_u32_u24 v16, {2*3456}, v10')
    g('v_add_u32 v16, v16, v14')
    g(f'v_add_u32 v16, {64*3456}, v16')
    for t in range(10):
        if t == 0:
            src = 15
        elif t == 8:
            src = 16
        g(f'v_add_co_u32 v18, vcc, v12, v{src}')
        g.nop(2)
        g('v_addc_co_u32 v19, vcc, 0, v13, vcc')
        g(f'global_load_dwordx4 v[{64+4*t}:{67+4*t}], v[18:19], off' + ('' if 'gunt0' in opts else ' sc0 nt' if 'gusc0' in opts else ' nt'))
        g(f'v_add_u32 v{src}, 3456, v{src}')
    g('s_lshl_b32 s48, s58, 5')
    g(f's_mul_i32 s48, s48, 1280')
    g(f's_lshl_b32 s49, {sWAVE}, 7')
    g('s_add_u32 s48, s48, s49')
    g.addr('s[40:41]', S_WD, 's48')
    g(f'v_mul_u32_u24 v11, {4*1280}, v10')
    g('v_lshl_add_u32 v11, v9, 4, v11')
    for t in range(4):
        g(f'global_load_dwordx4 v[{104+4*t}:{107+4*t}], v11, s[40:41] offset:{1280*t} nt')
    g(f's_cmp_lt_u32 {sWAVE}, 2')
    g('s_cbranch_scc0 L_b_nod2')
    g('s_add_u32 s40, s40, 1024')
    g('s_addc_u32 s41, s41, 0')
    for t in range(4):
        g(f'global_load_dwordx4 v[{120+4*t}:{123+4*t}], v11, s[40:41] offset:{1280*t} nt')
    g.label('L_b_nod2')
    g(f's_lshl_b32 s48, {sWAVE}, 8')
    g('s_min_u32 s48, s48, 1024')
    g('v_and_b32 v17, 31, v0')
    g('v_lshlrev_b32 v17, 3, v17')
    g('v_lshrrev_b32 v29, 5, v0')
    g('v_lshl_add_u32 v17, v29, 2, v17')
    g('v_add_u32 v143, s48, v17')
    g(f'global_load_dword v140, v143, {S_X}')
    g(f'global_load_ushort v141, v1, {S_X}')
    g.stamp(6)
    g('s_waitcnt vmcnt(0)')
    g.stamp(7)
    g('v_lshlrev_b32 v141, 16, v141')
    g.nop(1)
    g('v_readfirstlane_b32 s53, v141')
    gen_mask(g, 220, 16, 17)
    for v in range(4):
        g(f'v_and_b32 v{220+v}, 0x3f803f80, v{220+v}')
    g.nop(2)
    for t in range(10):
        c = '0' if t == 0 else 'v[200:203]'
        g(f'v_mfma_f32_16x16x32_bf16 v[200:203], v[220:223], v[{64+4*t}:{67+4*t}], {c}')
    g.nop(8)
    class_combine(g, 200)
    g.set_exec(0x00ff00ff00ff00ff)
    g('ds_write2_b32 v26, v200, v202 offset0:0 offset1:2')
    g('s_mov_b64 exec, -1')
    g('s_waitcnt lgkmcnt(0)')
    g('s_barrier')
    g('v_lshlrev_b32 v29, 2, v0')
    for w in range(8):
        g(f'ds_read_b32 v{160+w}, v29 offset:{256*w}')
    g('s_waitcnt lgkmcnt(0)')
    g('v_add_f32 v160, v160, v161')
    g('v_add_f32 v162, v162, v163')
    g('v_add_f32 v164, v164, v165')
    g('v_add_f32 v166, v166, v167')
    g('v_add_f32 v160, v160, v162')
    g('v_add_f32 v164, v164, v166')
    g('v_add_f32 v142, v160, v164')
    g('s_barrier')
    g('s_mul_i32 s48, s57, 160')
    g('v_lshlrev_b32 v27, 4, v10')
    g('v_add_u32 v27, s48, v27')
    g('v_lshlrev_b32 v28, 2, v10')
    g('v_add_u32 v28, s48, v28')
    g('v_lshlrev_b32 v30, 3, v10')
    g('v_and_b32 v31, 31, v0')
    g('v_lshlrev_b32 v31, 1, v31')
    g('v_lshlrev_b32 v14, 6, v9')
    g('v_lshl_add_u32 v14, v6, 4, v14')
    g(f's_mul_i32 s48, s58, 5120')
    g(f's_lshl_b32 s49, {sWAVE}, 9')
    g('s_add_u32 s48, s48, s49')
    g(f's_add_u32 s48, s48, {O2P}')
    g('v_add_u32 v14, s48, v14')
    g(f'v_add_u32 v15, {8*512}, v14')
    g(f'v_mov_b32 v202, {sTAG}')
    g(f's_lshl_b32 s48, {sWAVE}, 3')
    g('v_mov_b32 v144, s48')
    g(f's_cmp_lt_u32 {sWAVE}, 5')
    g('s_cbranch_scc0 L_m_b1')
    g(f's_lshl_b32 s48, {sWAVE}, 9')
    g(f's_add_u32 s48, s48, {OUTP}')
    g('v_lshrrev_b32 v152, 5, v0')
    g('v_mul_u32_u24 v152, 2560, v152')
    g('v_and_b32 v153, 31, v0')
    g('v_lshl_add_u32 v152, v153, 4, v152')
    g('v_add_u32 v152, s48, v152')
    for k in range(1, 4):
        g(f'v_add_u32 v{152+k}, {5120*k}, v152')
    g('v_lshlrev_b32 v148, 16, v140')
    g('v_and_b32 v149, 0xffff0000, v140')
    g.poll2('outp', [(f'global_load_dwordx4 v[{160+4*k}:{163+4*k}], v{152+k}, {WS} sc1', 163 + 4 * k, None) for k in range(4)], MB, 12, 13)
    g.stamp(8)
    for k in range(4):
        g(f'v_lshlrev_b32 v{176+4*k}, 16, v{160+4*k}')
        g(f'v_and_b32 v{177+4*k}, 0xffff0000, v{160+4*k}')
        g(f'v_lshlrev_b32 v{178+4*k}, 16, v{161+4*k}')
        g(f'v_and_b32 v{179+4*k}, 0xffff0000, v{161+4*k}')
        if k == 1:
            g('v_pk_add_f32 v[176:177], v[176:177], v[180:181]')
            g('v_pk_add_f32 v[178:179], v[178:179], v[182:183]')
    g('v_pk_add_f32 v[184:185], v[184:185], v[188:189]')
    g('v_pk_add_f32 v[186:187], v[186:187], v[190:191]')
    g('v_pk_add_f32 v[176:177], v[176:177], v[184:185]')
    g('v_pk_add_f32 v[178:179], v[178:179], v[186:187]')
    g.nop(1)
    g('v_permlane32_swap_b32 v176, v178')
    g('v_permlane32_swap_b32 v177, v179')
    g.nop(1)
    g('v_add_f32 v16, v176, v178')
    g('v_add_f32 v17, v177, v179')
    g('v_cvt_pk_bf16_f32 v16, v16, v17')
    g('v_lshlrev_b32 v18, 16, v16')
    g('v_and_b32 v19, 0xffff0000, v16')
    g('v_pk_add_f32 v[18:19], v[18:19], v[148:149]')
    g('v_cvt_pk_bf16_f32 v16, v18, v19')
    g(f'ds_write_b32 v143, v16 offset:{L_HB}')
    g('v_lshlrev_b32 v18, 16, v16')
    g('v_and_b32 v19, 0xffff0000, v16')
    g('v_subrev_f32 v18, s53, v18')
    g('v_subrev_f32 v19, s53, v19')
    g('v_add_f32 v160, v18, v19')
    g('v_mul_f32 v161, v18, v18')
    g('v_fmac_f32 v161, v19, v19')
    g.wave_reduce([160, 161], [162, 163])
    g('s_mov_b64 exec, 1')
    g(f'ds_write_b64 v144, v[160:161] offset:{L_ST}')
    g('s_mov_b64 exec, -1')
    g('s_waitcnt lgkmcnt(0)')
    g.label('L_m_b1')
    g('s_barrier')
    g.stamp(9)
    g(f'ds_read_b128 v[176:179], v27 offset:{L_HB}')
    g(f'ds_read_b32 v180, v28 offset:{L_HB+128}')
    g(f's_cmp_eq_u32 {sWAVE}, 7')
    g('s_cbranch_scc0 L_m_ns')
    g(f'ds_read_b128 v[160:163], v1 offset:{L_ST}')
    g(f'ds_read_b128 v[164:167], v1 offset:{L_ST+16}')
    g(f'ds_read_b64 v[168:169], v1 offset:{L_ST+32}')
    g.label('L_m_ns')
    g('s_waitcnt lgkmcnt(0)')
    gemv(10, 176, 64, 208)
    g.nop(8)
    class_combine(g, 208)
    g.set_exec(0x00ff00ff00ff00ff)
    g('ds_write2_b32 v26, v208, v210 offset0:0 offset1:2')
    g('s_mov_b64 exec, -1')
    g('s_waitcnt lgkmcnt(0)')
    g('s_barrier')
    g.stamp(10)
    g(f's_cmp_eq_u32 {sWAVE}, 7')
    g('s_cbranch_scc0 L_m_b3')
    for w in range(8):
        g(f'ds_read_b32 v{184+w}, v29 offset:{256*w}')
    g('v_pk_add_f32 v[160:161], v[160:161], v[162:163]')
    g('v_pk_add_f32 v[164:165], v[164:165], v[166:167]')
    g('v_pk_add_f32 v[160:161], v[160:161], v[168:169]')
    g('v_pk_add_f32 v[160:161], v[160:161], v[164:165]')
    ln_scalars(g, 160, 161, 's53', 170, 171, 172)
    g('v_mul_f32 v170, v170, v142')
    g('s_waitcnt lgkmcnt(0)')
    g('v_pk_add_f32 v[184:185], v[184:185], v[186:187]')
    g('v_pk_add_f32 v[188:189], v[188:189], v[190:191]')
    g('v_pk_add_f32 v[184:185], v[184:185], v[188:189]')
    g('v_add_f32 v16, v184, v185')
    g('v_sub_f32 v16, v16, v170')
    g('v_mul_f32 v16, v16, v171')
    rnd_bf16(g, 16)
    g('v_mov_b32 v17, v16')
    g.nop(2)
    g('v_permlane32_swap_b32 v16, v17')
    g.nop(1)
    g('v_max_f32 v16, 0, v16')
    g('v_mul_f32 v16, v16, v17')
    g('v_cvt_pk_bf16_f32 v16, v16, v16')
    g(f'ds_write_b16 v31, v16 offset:{L_CB}')
    g('s_waitcnt lgkmcnt(0)')
    g.label('L_m_b3')
    g('s_barrier')
    g(f'ds_read_b64 v[16:17], v30 offset:{L_CB}')
    g('s_waitcnt lgkmcnt(0)')
    g.stamp(11)

    def down(base, vo, reuse=False):
        gemv(4, 16, base, 204, reuse=reuse, keep=True)
        g.nop(8)
        class_combine(g, 204, out2=205)
        g.set_exec(0x00ff00ff00ff00ff)
        g(f'global_store_dwordx4 v{vo}, v[202:205], {WS} sc1')
        g('s_mov_b64 exec, -1')
    down(104, 14)
    g(f's_cmp_lt_u32 {sWAVE}, 2')
    g('s_cbranch_scc0 L_m_done')
    down(120, 15, reuse=True)
    g.label('L_m_done')

    g.label('L_fin')
    g.stamp(15)
    g.stamp_flush()
    g.label('L_end')
    g('s_endpgm')
    body = g.text()

    hdr = open('cdna_kernels/' + KN[:-7] + '.s.ref').read().split('\n')
    head = []
    for line in hdr:
        if line.startswith('; @launch'):
            head.append(f'; @launch grid=(256,1,1) block=(512,1,1) lds={LDS_BYTES}')
        elif line.startswith(';'):
            head.append(line)
        else:
            break
    out = '\n'.join(head) + '\n'
    out += '.amdgcn_target "amdgcn-amd-amdhsa--gfx950"\n.text\n'
    out += f'.globl {KN}\n.p2align 8\n.type {KN},@function\n{KN}:\n'
    out += body
    out += f'''.section .rodata,"a"
.p2align 6
.amdhsa_kernel {KN}
  .amdhsa_next_free_vgpr 256
  .amdhsa_next_free_sgpr 102
  .amdhsa_accum_offset 256
  .amdhsa_group_segment_fixed_size 0
  .amdhsa_kernarg_size 104
  .amdhsa_user_sgpr_count 2
  .amdhsa_user_sgpr_kernarg_segment_ptr 1
  .amdhsa_system_sgpr_workgroup_id_x 1
.end_amdhsa_kernel
'''
    return out


if __name__ == '__main__':
    import argparse
    ap = argparse.ArgumentParser()
    ap.add_argument('-o', default='k.s')
    ap.add_argument('--stamps', action='store_true')
    ap.add_argument('--stop', type=int, default=None)
    ap.add_argument('--opts', default='')
    a = ap.parse_args()
    open(a.o, 'w').write(build(a.stamps, a.stop, tuple(a.opts.split(','))))
```

```python
import sys, struct

KN = 'sequential_preLN__compressed_kv_cla__glu_gated_reglu__decode_kernel'

EPOCH = 0
XID = 0x1000
PF = 0x3000
Q1L = 0x10000
Q1G = 0x50000
QA = 0x90000
MLL = 0xA0000
C4 = 0xA8000
MLX = 0xC8000
OUTP = 0xE8000
O2P = 0x100000
OX = 0x180000
OPL = 0x200000
STAMPS = 0x800000

L_XN = 0
L_QB = 256
L_MB = 512
L_LB = 768
L_PB = 1024
L_RED = 3072
L_CB = 7168
L_HB = 8192
L_ST = 9472
L_MODE = 9728
L_TAG = 9732
L_QL = 10240
L_TILE = 26624
LDS_BYTES = 92160

S_X, S_CKV, S_WQ, S_WUK, S_WUV, S_WO, S_WG, S_WU, S_WD, S_OUT, S_DBG, S_WS = (
    's[8:9]', 's[10:11]', 's[12:13]', 's[14:15]', 's[16:17]', 's[18:19]', 's[22:23]', 's[24:25]', 's[26:27]',
    's[28:29]', 's[30:31]', 's[32:33]')
sXCD, sR, sWAVE, sH, sJ, sTAG = 's34', 's35', 's36', 's37', 's38', 's39'
POLL_LIMIT = 1 << 17


def f2u(x):
    return struct.unpack('<I', struct.pack('<f', x))[0]


class Gen:
    def __init__(s, stamps=False, stop_after=None):
        s.L = []
        s.n = 0
        s.stamps = stamps
        s.stop_after = stop_after
        s.nstamp = 0

    def __call__(s, txt):
        for line in txt.strip('\n').split('\n'):
            line = line.strip()
            if line:
                s.L.append('    ' + line)

    def label(s, name):
        s.L.append(name + ':')

    def uniq(s, base):
        s.n += 1
        return f'{base}_{s.n}'

    def nop(s, n):
        while n > 0:
            k = min(n, 16)
            s(f's_nop {k-1}')
            n -= k

    def stamp(s, idx):
        if s.stamps:
            s(f's_memrealtime s[{64+2*idx}:{65+2*idx}]')

    def stamp_flush(s, nst=16):
        if not s.stamps:
            return
        s('s_waitcnt lgkmcnt(0)')
        s('s_mov_b64 exec, 1')
        s(f's_lshl_b32 s48, s2, 3')
        s(f's_add_u32 s48, s48, {sWAVE}')
        s(f's_lshl_b32 s48, s48, 7')
        s(f's_add_u32 s48, s48, {STAMPS}')
        s('v_mov_b32 v1, s48')
        for i in range(nst):
            s(f'v_mov_b32 v2, s{64+2*i}')
            s(f'v_mov_b32 v3, s{65+2*i}')
            s(f'global_store_dwordx2 v1, v[2:3], {S_WS} offset:{8*i}')
            s('s_nop 1')
        s('s_waitcnt vmcnt(0)')

    def addr(s, dst, src, off):
        d = int(dst[2:].split(':')[0]); sr = int(src[2:].split(':')[0])
        s(f's_add_u32 s{d}, s{sr}, {off}')
        s(f's_addc_u32 s{d+1}, s{sr+1}, 0')

    def set_exec(s, mask):
        if mask == (1 << 64) - 1:
            s('s_mov_b64 exec, -1')
        else:
            s(f's_mov_b32 exec_lo, {mask & 0xffffffff:#x}')
            s(f's_mov_b32 exec_hi, {mask >> 32:#x}')

    def wave_reduce(s, regs, tmps, op='add'):
        ins = {'add': 'v_add_f32', 'max': 'v_max_f32'}[op]
        n = len(regs)
        pad = max(0, 2 - (n - 1))
        s.nop(2)
        for ctl in ['quad_perm:[1,0,3,2]', 'quad_perm:[2,3,0,1]', 'row_half_mirror', 'row_mirror']:
            for r in regs:
                s(f'{ins}_dpp v{r}, v{r}, v{r} {ctl} row_mask:0xf bank_mask:0xf')
            s.nop(pad)
        s.row_reduce(regs, tmps, op)

    def row_reduce(s, regs, tmps, op='add'):
        ins = {'add': 'v_add_f32', 'max': 'v_max_f32'}[op]
        n = len(regs)
        for sw in ['v_permlane16_swap_b32', 'v_permlane32_swap_b32']:
            for r, t in zip(regs, tmps):
                s(f'v_mov_b32 v{t}, v{r}')
            s.nop(max(0, 2 - (n - 1)))
            for r, t in zip(regs, tmps):
                s(f'{sw} v{t}, v{r}')
            s.nop(1 if n == 1 else 0)
            for r, t in zip(regs, tmps):
                s(f'{ins} v{r}, v{r}, v{t}')
            s.nop(0)

    def check_tags(s, regs, t0, t1, done_label):
        tags = []
        for r in regs:
            tags += [r + 1, r + 3]
        if len(tags) == 2:
            s(f'v_cmp_eq_u32 vcc, {sTAG}, v{tags[0]}')
            s(f'v_cmp_eq_u32 s[46:47], {sTAG}, v{tags[1]}')
        else:
            s(f'v_min3_u32 v{t0}, v{tags[0]}, v{tags[1]}, v{tags[2]}')
            s(f'v_max3_u32 v{t1}, v{tags[0]}, v{tags[1]}, v{tags[2]}')
            rest = tags[3:]
            while rest:
                if len(rest) >= 2:
                    s(f'v_min3_u32 v{t0}, v{t0}, v{rest[0]}, v{rest[1]}')
                    s(f'v_max3_u32 v{t1}, v{t1}, v{rest[0]}, v{rest[1]}')
                    rest = rest[2:]
                else:
                    s(f'v_min_u32 v{t0}, v{t0}, v{rest[0]}')
                    s(f'v_max_u32 v{t1}, v{t1}, v{rest[0]}')
                    rest = rest[1:]
            s(f'v_cmp_eq_u32 vcc, {sTAG}, v{t0}')
            s(f'v_cmp_eq_u32 s[46:47], {sTAG}, v{t1}')
        s('s_and_b64 vcc, vcc, s[46:47]')
        s('s_cmp_eq_u64 vcc, exec')
        s(f's_cbranch_scc1 {done_label}')

    def poll(s, name, emit_loads, regs, t0, t1, first_hook=None, alt=None):
        top = s.uniq(name + '_top'); done = s.uniq(name + '_done'); fail = s.uniq(name + '_fail')
        s(f's_mov_b32 s50, 0')
        if first_hook is not None:
            emit_loads(alt[0] if alt else None)
            first_hook()
            s('s_waitcnt vmcnt(0)')
            s.check_tags(regs, t0, t1, done)
        s.label(top)
        if alt:
            s('s_add_u32 s50, s50, 1')
            s('s_and_b32 s51, s50, 7')
            s('s_cmp_eq_u32 s51, 0')
            s(f's_cselect_b64 s[44:45], {alt[1]}, {alt[0]}')
            emit_loads('s[44:45]')
        else:
            s('s_add_u32 s50, s50, 1')
            emit_loads(None)
        s('s_waitcnt vmcnt(0)')
        s.check_tags(regs, t0, t1, done)
        s(f's_cmp_lt_u32 s50, {POLL_LIMIT}')
        s(f's_cbranch_scc1 {top}')
        s(f's_mov_b64 s[46:47], exec')
        s('s_mov_b64 exec, 1')
        s(f'v_mov_b32 v{t0}, {4*(s.n % 60)}')
        s(f'v_mov_b32 v{t1}, {0x1000 + s.n}')
        s(f'global_store_dword v{t0}, v{t1}, {S_DBG}')
        s(f's_mov_b64 exec, s[46:47]')
        s.label(done)

    def poll2(s, name, loads, masks, t0, t1, alt=None):
        top = s.uniq(name + '_top'); done = s.uniq(name + '_done')
        n = len(loads)
        assert len(masks) >= n
        s('s_mov_b32 s50, 0')
        for ins, tg, em in loads:
            if em is not None:
                s.set_exec(em)
            s(ins.format(base=alt[0] if alt else None))
            if em is not None:
                s('s_mov_b64 exec, -1')
        s.label(top)
        s('s_waitcnt vmcnt(0)')
        for k, (ins, tg, em) in enumerate(loads):
            s(f'v_cmp_ne_u32 {masks[k]}, {sTAG}, v{tg}')
        if n == 1:
            s(f's_cmp_eq_u64 {masks[0]}, 0')
            s(f's_cbranch_scc1 {done}')
        else:
            s(f's_or_b64 s[46:47], {masks[0]}, {masks[1]}')
            for k in range(2, n):
                s(f's_or_b64 s[46:47], s[46:47], {masks[k]}')
            s(f's_cbranch_scc0 {done}')
        s('s_add_u32 s50, s50, 1')
        if alt:
            s('s_and_b32 s51, s50, 7')
            s('s_cmp_eq_u32 s51, 0')
            s(f's_cselect_b64 s[44:45], {alt[1]}, {alt[0]}')
        for k, (ins, tg, em) in enumerate(loads):
            s(f's_mov_b64 exec, {masks[k]}')
            if n > 1:
                sk = s.uniq(name + '_sk')
                s(f's_cbranch_execz {sk}')
            s(ins.format(base='s[44:45]' if alt else None))
            if n > 1:
                s.label(sk)
        s('s_mov_b64 exec, -1')
        s(f's_cmp_lt_u32 s50, {POLL_LIMIT}')
        s(f's_cbranch_scc1 {top}')
        s('s_waitcnt vmcnt(0)')
        s('s_mov_b64 exec, 1')
        s(f'v_mov_b32 v{t0}, {4*(s.n % 60)}')
        s(f'v_mov_b32 v{t1}, {0x1000 + s.n}')
        s(f'global_store_dword v{t0}, v{t1}, {S_DBG}')
        s('s_mov_b64 exec, -1')
        s.label(done)

    def text(s):
        return '\n'.join(s.L) + '\n'


KAPPA = (128 ** -0.5) * 1.4426950408889634


def gen_sel(g, base, t0, t1):
    g(f'v_and_b32 v{t0}, 7, v0')
    g(f'v_and_b32 v{t1}, 1, v0')
    for par in range(2):
        lo = 0x0c0c0000 | ((2 * par + 1) << 8) | (2 * par)
        hi = ((2 * par + 1) << 24) | ((2 * par) << 16) | 0x0c0c
        g(f'v_cmp_eq_u32 vcc, 1, v{t1}')
        g(f'v_mov_b32 v{base+par}, {lo:#x}')
        g(f'v_mov_b32 v{base+2+par}, {hi:#x}')
        g(f'v_cndmask_b32 v{base+par}, v{base+par}, v{base+2+par}, vcc')
    g(f'v_lshrrev_b32 v{t0}, 1, v{t0}')
    g(f'v_mov_b32 v{t1}, 0x0c0c0c0c')
    for v in [3, 2, 1, 0]:
        g(f'v_cmp_eq_u32 vcc, {v}, v{t0}')
        g.nop(1)
        for par in range(2):
            g(f'v_cndmask_b32 v{base+2*v+par}, v{t1}, v{base+par}, vcc')


def gen_mask(g, base, t0, t1):
    g(f'v_and_b32 v{t0}, 7, v0')
    g(f'v_and_b32 v{t1}, 1, v0')
    g(f'v_cmp_eq_u32 vcc, 1, v{t1}')
    g(f'v_mov_b32 v{base}, 0xffff')
    g(f'v_mov_b32 v{base+1}, 0xffff0000')
    g(f'v_cndmask_b32 v{t1}, v{base}, v{base+1}, vcc')
    g(f'v_lshrrev_b32 v{t0}, 1, v{t0}')
    for v in range(4):
        g(f'v_cmp_eq_u32 vcc, {v}, v{t0}')
        g.nop(1)
        g(f'v_cndmask_b32 v{base+v}, 0, v{t1}, vcc')


def get_tag(g, vreg):
    g.nop(1)
    g(f'v_readfirstlane_b32 {sTAG}, v{vreg}')
    g.nop(4)
    g(f's_mul_i32 {sTAG}, {sTAG}, 5')
    g(f's_add_u32 {sTAG}, {sTAG}, 0x9E3779B9')


def rnd_bf16(g, r):
    g(f'v_cvt_pk_bf16_f32 v{r}, v{r}, v{r}')
    g(f'v_and_b32 v{r}, 0xffff0000, v{r}')


def ln_scalars(g, s1, s2, piv_sgpr, vm, vrs, t0):
    g(f's_mov_b32 s52, {f2u(1.0/640):#x}')
    g(f'v_mul_f32 v{s1}, s52, v{s1}')
    g(f'v_mul_f32 v{s2}, s52, v{s2}')
    g(f'v_fma_f32 v{s2}, -v{s1}, v{s1}, v{s2}')
    g(f'v_max_f32 v{s2}, 0, v{s2}')
    g(f'v_add_f32 v{vm}, {piv_sgpr}, v{s1}')
    rnd_bf16(g, vm)
    rnd_bf16(g, s2)
    g(f'v_add_f32 v{s2}, 0x3727c5ac, v{s2}')
    rnd_bf16(g, s2)
    g(f'v_sqrt_f32 v{s2}, v{s2}')
    g.nop(1)
    rnd_bf16(g, s2)
    g(f'v_rcp_f32 v{vrs}, v{s2}')
    g.nop(1)


def class_combine(g, d, out2=None):
    if out2 is None:
        out2 = d + 2
    for k in range(4):
        g(f'v_mov_b32_dpp v{d+k}, v{d+k} row_ror:8 row_mask:0xc bank_mask:0xf')
    g.nop(1)
    g(f'v_permlane32_swap_b32 v{d}, v{d+1}')
    g(f'v_permlane32_swap_b32 v{d+2}, v{d+3}')
    g.nop(1)
    g(f'v_add_f32 v{d}, v{d}, v{d+1}')
    g(f'v_add_f32 v{out2}, v{d+2}, v{d+3}')


def mode_store(g, ins_no_flag, smode):
    a = g.uniq('ms_fast'); b = g.uniq('ms_done')
    g(f's_cmp_eq_u32 {smode}, 1')
    g(f's_cbranch_scc1 {a}')
    for ins in ins_no_flag:
        g(ins + ' sc1')
    g(f's_branch {b}')
    g.label(a)
    for ins in ins_no_flag:
        g(ins)
    g.label(b)


def own_tag(g, vreg):
    g(f'v_readfirstlane_b32 {sTAG}, v{vreg}')
    g.nop(4)
    g(f's_mul_i32 {sTAG}, {sTAG}, 5')
    g(f's_add_u32 {sTAG}, {sTAG}, 0x9E3779B9')


MA = ['s[10:11]', 's[12:13]', 's[14:15]', 's[18:19]', 's[20:21]', 's[22:23]', 's[24:25]', 's[26:27]']
MQ = ['s[10:11]', 's[12:13]', 's[14:15]', 's[4:5]', 's[20:21]', 's[96:97]', 's[98:99]', 's[100:101]']
MB = ['s[10:11]', 's[12:13]', 's[14:15]', 's[16:17]', 's[18:19]', 's[20:21]', 's[22:23]', 's[24:25]']


def build(stamps=False, stop_after=None, opts=()):
    g = Gen(stamps, stop_after)
    sMODE = 's59'
    WS = S_WS
    g('s_cmp_ge_u32 s2, 256')
    g('s_cbranch_scc1 L_end')
    g('s_load_dwordx16 s[8:23], s[0:1], 0')
    g('s_load_dwordx8 s[24:31], s[0:1], 64')
    g('s_load_dwordx2 s[32:33], s[0:1], 96')
    g('s_getpc_b64 s[42:43]')
    g('v_lshlrev_b32 v1, 4, v0')
    g('global_load_dwordx4 v[232:235], v1, s[42:43]')
    g.stamp(0)
    g('v_lshrrev_b32 v1, 6, v0')
    g('v_and_b32 v0, 63, v0')
    g(f'v_readfirstlane_b32 {sWAVE}, v1')
    g(f's_and_b32 {sXCD}, s2, 7')
    g(f's_lshr_b32 {sR}, s2, 3')
    g(f's_lshr_b32 {sH}, {sR}, 3')
    g(f's_lshl_b32 s48, {sXCD}, 2')
    g(f's_add_u32 {sH}, {sH}, s48')
    g(f's_and_b32 {sJ}, {sR}, 7')
    g('v_mov_b32 v1, 0')
    g('v_lshlrev_b32 v3, 4, v0')
    g('v_and_b32 v7, 15, v0')
    g('v_lshrrev_b32 v6, 4, v0')
    g(f's_cmp_eq_u32 {sWAVE}, 1')
    g('s_cbranch_scc1 L_w1')
    g(f's_cmp_eq_u32 {sWAVE}, 0')
    g('s_cbranch_scc1 L_w0')

    def pre(tagwait=False):
        g(f's_and_b32 s55, {sR}, 1')
        g(f's_lshr_b32 s56, {sR}, 1')
        g('v_and_b32 v8, 7, v0')
        g('v_lshlrev_b32 v8, 1, v8')
        g(f's_lshl_b32 s48, {sWAVE}, 14')
        g(f's_add_u32 s48, s48, {L_TILE}')
        for tl in range(4):
            g(f'v_add_u32 v9, {4*tl}, v6')
            g('v_xor_b32 v9, v9, v8')
            g('v_lshlrev_b32 v9, 4, v9')
            g(f'v_lshl_add_u32 v{32+tl}, v7, 10, v9')
            g(f'v_add_u32 v{36+tl}, s48, v{32+tl}')
        g('v_lshrrev_b32 v9, 2, v0')
        g('v_lshlrev_b32 v9, 7, v9')
        g('v_and_b32 v11, 3, v0')
        g('v_lshl_add_u32 v9, v11, 3, v9')
        g('v_bfe_u32 v10, v0, 3, 2')
        g(f's_and_b32 s48, {sWAVE}, 3')
        g('v_xor_b32 v10, s48, v10')
        g('v_lshl_add_u32 v9, v10, 5, v9')
        g(f'v_add_u32 v40, {L_TILE}, v9')
        g('v_lshrrev_b32 v9, 3, v0')
        g('v_lshlrev_b32 v9, 10, v9')
        g('v_and_b32 v10, 7, v0')
        g('v_lshlrev_b32 v11, 1, v6')
        g('v_xor_b32 v10, v10, v11')
        g('v_lshl_add_u32 v41, v10, 4, v9')
        g(f's_lshl_b32 s48, {sXCD}, 19')
        g(f's_and_b32 s49, {sWAVE}, 3')
        g('s_lshl_b32 s49, s49, 17')
        g('s_add_u32 s48, s48, s49')
        g('s_lshl_b32 s49, s56, 7')
        g('s_add_u32 s48, s48, s49')
        g('s_waitcnt lgkmcnt(0)')
        g.addr('s[98:99]', S_CKV, 's48')
        g('v_lshrrev_b32 v9, 1, v0')
        g('v_and_b32 v10, 1, v0')
        g('v_lshlrev_b32 v10, 3, v10')
        for ih in range(2):
            g(f's_lshl_b32 s48, {sWAVE}, 1')
            g(f's_add_u32 s48, s48, {ih}')
            g('s_and_b32 s49, s48, 7')
            g('s_lshl_b32 s49, s49, 1')
            g('v_xor_b32 v11, s49, v9')
            g('v_lshl_add_u32 v11, v11, 4, v10')
            g('s_lshl_b32 s48, s48, 10')
            g(f's_add_u32 s48, s48, {L_QL}')
            g(f'v_add_u32 v{44+ih}, s48, v11')
        gen_mask(g, 240, 9, 10)
        g('v_lshlrev_b32 v46, 4, v7')
        g(f's_lshl_b32 s48, {sWAVE}, 2')
        g('v_add_u32 v47, s48, v46')
        g('v_lshlrev_b32 v57, 3, v0')
        g(f'v_add_u32 v42, {L_QL}, v3')
        g(f's_lshl_b32 s48, {sWAVE}, 11')
        g('v_add_u32 v56, s48, v42')
        g('v_lshlrev_b32 v43, 5, v7')
        g(f'v_add_u32 v43, {L_RED}, v43')
        g(f's_lshl_b32 s48, {sWAVE}, 2')
        g('v_add_u32 v59, s48, v43')
        g('s_lshl_b32 s48, s55, 15')
        g(f's_lshl_b32 s49, {sWAVE}, 12')
        g('s_add_u32 s48, s48, s49')
        g(f's_add_u32 s48, s48, {QA}')
        g('v_add_u32 v248, s48, v3')
        g(f's_lshl_b32 s48, {sXCD}, 16')
        g('s_lshl_b32 s49, s55, 15')
        g('s_add_u32 s48, s48, s49')
        g(f's_add_u32 s48, s48, {OPL}')
        g(f's_lshl_b32 s49, {sWAVE}, 12')
        g('s_add_u32 s49, s49, s48')
        g('v_add_u32 v246, s49, v3')
        g('s_lshl_b32 s49, s56, 12')
        g('s_add_u32 s48, s48, s49')
        g('v_add_u32 v251, s48, v3')
        g(f's_and_b32 s49, {sWAVE}, 3')
        g('s_lshl_b32 s49, s49, 10')
        g('v_add_u32 v58, s49, v251')
        g(f's_lshl_b32 s48, {sXCD}, 16')
        g('s_lshl_b32 s49, s55, 15')
        g('s_add_u32 s48, s48, s49')
        g('s_lshl_b32 s49, s56, 12')
        g('s_add_u32 s48, s48, s49')
        g(f's_and_b32 s49, {sWAVE}, 3')
        g('s_lshl_b32 s49, s49, 10')
        g('s_add_u32 s48, s48, s49')
        g(f's_add_u32 s48, s48, {OX}')
        g('v_lshlrev_b32 v244, 6, v7')
        g('v_lshl_add_u32 v244, v6, 4, v244')
        g('v_add_u32 v244, s48, v244')
        g(f's_lshl_b32 s48, {sXCD}, 9')
        g('s_lshl_b32 s49, s55, 8')
        g('s_add_u32 s48, s48, s49')
        g(f's_add_u32 s48, s48, {MLX}')
        g('v_add_u32 v250, s48, v3')
        g('s_mov_b32 s58, s56')
        g(f's_lshr_b32 s48, {sR}, 2')
        g(f's_lshl_b32 s49, {sXCD}, 2')
        g('s_add_u32 s61, s48, s49')
        g(f's_and_b32 s62, {sR}, 3')
        g('v_bfe_u32 v13, v0, 2, 3')
        g('s_lshr_b32 s48, s61, 4')
        g('s_lshl_b32 s48, s48, 5')
        g('s_lshl_b32 s49, s62, 3')
        g('s_add_u32 s48, s48, s49')
        g(f's_add_u32 s48, s48, {sWAVE}')
        g('s_lshl_b32 s48, s48, 10')
        g('s_and_b32 s49, s61, 15')
        g('s_lshl_b32 s49, s49, 6')
        g('s_add_u32 s48, s48, s49')
        g(f's_add_u32 s48, s48, {OX}')
        g('v_lshlrev_b32 v14, 16, v13')
        g('v_and_b32 v12, 3, v0')
        g('v_lshl_add_u32 v14, v12, 4, v14')
        g('v_add_u32 v245, s48, v14')
        g('s_lshl_b32 s48, s61, 4')
        g(f's_add_u32 s48, s48, {MLX}')
        g('v_lshlrev_b32 v14, 9, v13')
        g('v_add_u32 v14, s48, v14')
        g('v_cmp_le_u32 vcc, 32, v0')
        g.nop(1)
        g('v_cndmask_b32 v245, v245, v14, vcc')
        g('v_lshlrev_b32 v247, 5, v7')
        g('v_lshl_add_u32 v247, v6, 4, v247')
        g(f's_lshl_b32 s48, {sWAVE}, 9')
        g('v_add_u32 v247, s48, v247')
        g(f's_lshl_b32 s48, {sXCD}, 4')
        g(f's_add_u32 s48, s48, {sR}')
        g('s_lshl_b32 s48, s48, 9')
        g(f's_add_u32 s48, s48, {C4}')
        g('v_lshrrev_b32 v253, 1, v0')
        g('v_lshl_add_u32 v253, v253, 4, s48')
        g('s_lshl_b32 s48, s61, 8')
        g('s_lshl_b32 s49, s62, 3')
        g(f's_add_u32 s49, s49, {sWAVE}')
        g('s_lshl_b32 s49, s49, 17')
        g('s_add_u32 s48, s48, s49')
        g('s_waitcnt lgkmcnt(0)')
        g.addr('s[62:63]' if False else 's[96:97]', S_WUV, 's48')
        g('v_lshlrev_b32 v254, 13, v6')
        g('v_lshl_add_u32 v254, v7, 4, v254')
        if tagwait:
            g('s_waitcnt vmcnt(0)')
            own_tag(g, 2)
        g(f'global_load_dword v233, v245, {WS} sc1')
        pt = g.uniq('pt')
        g(f's_cmp_eq_u32 {sWAVE}, 5')
        g(f's_cbranch_scc0 {pt}')
        for kt in range(4):
            g(f'global_load_dword v{234+kt}, v251, {WS} offset:{1024*kt} sc1')
        g.label(pt)

    def dma(wsel=None):
        g(f's_lshr_b32 s56, {sR}, 1')
        g(f's_lshl_b32 s57, {sXCD}, 3')
        g('s_add_u32 s57, s57, s56')
        g('s_lshl_b32 s48, s57, 6')
        if 'rot' in opts:
            g(f's_and_b32 s49, {sR}, 1')
            g('s_lshl_b32 s49, s49, 2')
            g(f's_add_u32 s49, s49, {wsel or sWAVE}')
            g('s_and_b32 s49, s49, 7')
            g('s_lshl_b32 s49, s49, 3')
        else:
            g(f's_lshl_b32 s49, {wsel or sWAVE}, 3')
        g('s_add_u32 s48, s48, s49')
        g('s_lshl_b32 s48, s48, 10')
        g.addr('s[40:41]', S_CKV, 's48')
        g('s_lshl_b32 s49, s49, 10')
        g(f's_add_u32 s49, s49, {L_TILE}')
        g('s_mov_b32 m0, s49')
        for i in range(8):
            if i == 4:
                g('s_add_u32 s49, s49, 4096')
                g('s_mov_b32 m0, s49')
                g('s_add_u32 s40, s40, 4096')
                g('s_addc_u32 s41, s41, 0')
            g(f'v_xor_b32 v4, {32*i}, v3')
            g(f'global_load_lds_dwordx4 v4, s[40:41] offset:{1024*(i%4)}' + (' nt' if 'ckvnt' in opts else ''))

    def wuk_dma():
        g(f's_sub_u32 s54, {sR}, 16')
        g('s_lshr_b32 s48, s54, 2')
        g(f's_lshl_b32 s49, {sXCD}, 2')
        g('s_add_u32 s48, s48, s49')
        g('s_lshl_b32 s48, s48, 8')
        g('s_and_b32 s49, s54, 3')
        g('s_lshl_b32 s49, s49, 2')
        g(f's_add_u32 s49, s49, {sWAVE}')
        g('s_sub_u32 s49, s49, 4')
        g('s_lshl_b32 s49, s49, 18')
        g('s_add_u32 s48, s48, s49')
        g.addr('s[40:41]', S_WUK, 's48')
        g('v_xor_b32 v8, v7, v6')
        g('v_lshlrev_b32 v8, 4, v8')
        g('v_lshl_add_u32 v8, v6, 13, v8')
        for n in range(1, 4):
            g(f'v_xor_b32 v{8+n}, {64*n}, v8')
        g(f's_and_b32 s49, {sWAVE}, 3')
        g('s_lshl_b32 s49, s49, 13')
        g(f's_add_u32 m0, s49, {L_TILE}')
        g.nop(1)
        for n in range(8):
            g(f'global_load_lds_dwordx4 v{8+(n&3)}, s[40:41] nt')
            if n < 7:
                g('s_add_u32 m0, m0, 1024')
                g('s_add_u32 s40, s40, 32768')
                g('s_addc_u32 s41, s41, 0')

    g('s_waitcnt lgkmcnt(0)')
    if 'bq' in opts:
        g('s_barrier')
    g(f's_cmp_ge_u32 {sWAVE}, 4')
    g('s_cbranch_scc0 L_e_nb')
    g(f's_cmp_ge_u32 {sR}, 16')
    g('s_cbranch_scc1 L_e_b')
    if 'fulldma' in opts:
        g(f's_sub_u32 s58, {sWAVE}, 4')
        dma('s58')
    if 'halfdma' in opts or 'fulldma' in opts:
        dma()
    g('s_branch L_e_nb')
    g.label('L_e_b')
    if 'wukb0' not in opts:
        wuk_dma()
    g.label('L_e_nb')
    g('s_waitcnt lgkmcnt(0)')
    g(f'global_load_dword v2, v1, {WS} sc1')
    g(f's_cmp_eq_u32 {sWAVE}, 3')
    g('s_cbranch_scc0 L_nw7')
    g(f's_and_b32 s48, {sR}, 7')
    g('s_lshl_b32 s48, s48, 10')
    g('s_add_u32 s48, s48, 8192')
    g(f's_min_u32 s48, s48, L_end-{KN}-1088')
    g('s_add_u32 s42, s42, s48')
    g('s_addc_u32 s43, s43, 0')
    g('global_load_dwordx4 v[236:239], v3, s[42:43]')
    g.label('L_nw7')
    g(f's_cmp_ge_u32 {sR}, 16')
    g('s_cbranch_scc0 L_pre')
    g.label('L_e_tag')
    g(f's_cmp_eq_u32 {sWAVE}, 2')
    g('s_cbranch_scc0 L_b0')
    g('s_waitcnt vmcnt(0)')
    own_tag(g, 2)
    g('s_getreg_b32 s48, hwreg(HW_REG_XCC_ID)')
    g('s_and_b32 s48, s48, 0xf')
    g('v_mov_b32 v12, s48')
    g(f'v_mov_b32 v15, {sTAG}')
    g(f's_lshl_b32 s48, {sXCD}, 5')
    g(f's_add_u32 s48, s48, {sR}')
    g('s_lshl_b32 s48, s48, 4')
    g(f's_add_u32 s48, s48, {XID}')
    g('v_mov_b32 v16, s48')
    g('s_mov_b64 exec, 1')
    g(f'global_store_dwordx4 v16, v[12:15], {WS} sc1')
    g('s_mov_b64 exec, -1')
    g('s_branch L_b0')

    g.label('L_w0')
    g('v_lshlrev_b32 v4, 2, v0')
    g('v_min_u32 v5, 39, v0')
    g('v_lshlrev_b32 v5, 2, v5')
    g(f's_mul_i32 s48, {sJ}, 160')
    g('v_add_u32 v5, s48, v5')
    g('s_waitcnt lgkmcnt(0)')
    for k in range(5):
        g(f'global_load_dword v{10+k}, v4, {S_X} offset:{256*k}')
    g(f'global_load_dword v15, v5, {S_X}')
    g(f'global_load_dword v2, v1, {WS} sc1')
    g(f's_mov_b32 s52, {f2u(1.0/640):#x}')
    if 'bq' in opts:
        g('s_barrier')
    g('s_waitcnt vmcnt(2)')
    g.stamp(1)
    for k in range(5):
        g(f'v_lshlrev_b32 v{16+2*k}, 16, v{10+k}')
        g(f'v_and_b32 v{17+2*k}, 0xffff0000, v{10+k}')
    g('v_readfirstlane_b32 s53, v16')
    g.nop(4)
    for k in range(10):
        g(f'v_subrev_f32 v{16+k}, s53, v{16+k}')
    g('v_pk_mul_f32 v[26:27], v[16:17], v[16:17]')
    g('v_pk_add_f32 v[28:29], v[16:17], v[18:19]')
    for k in range(1, 5):
        g(f'v_pk_fma_f32 v[26:27], v[{16+2*k}:{17+2*k}], v[{16+2*k}:{17+2*k}], v[26:27]')
        if k >= 2:
            g(f'v_pk_add_f32 v[28:29], v[28:29], v[{16+2*k}:{17+2*k}]')
    g('v_add_f32 v27, v26, v27')
    g('v_add_f32 v26, v28, v29')
    g.wave_reduce([26, 27], [28, 29])
    ln_scalars(g, 26, 27, 's53', 28, 29, 30)
    g('s_waitcnt vmcnt(1)')
    g('v_lshlrev_b32 v16, 16, v15')
    g('v_and_b32 v17, 0xffff0000, v15')
    g('v_sub_f32 v16, v16, v28')
    g('v_sub_f32 v17, v17, v28')
    g('v_cvt_pk_bf16_f32 v18, v16, v17')
    g('v_lshlrev_b32 v16, 16, v18')
    g('v_and_b32 v17, 0xffff0000, v18')
    g('v_mul_f32 v16, v16, v29')
    g('v_mul_f32 v17, v17, v29')
    g('v_cvt_pk_bf16_f32 v18, v16, v17')
    g(f'ds_write_b32 v4, v18 offset:{L_XN}')
    g('s_waitcnt lgkmcnt(0)')
    g.stamp(2)
    g('s_barrier')
    g('s_waitcnt vmcnt(0)')
    own_tag(g, 2)
    g(f's_cmp_ge_u32 {sR}, 16')
    g('s_cbranch_scc1 L_pathB')
    g('s_branch L_pre0')

    g.label('L_w1')
    g(f's_mov_b32 s49, {20*8192}')
    g('v_mul_lo_u32 v8, v6, s49')
    g('v_lshl_add_u32 v8, v7, 4, v8')
    g(f's_mul_i32 s48, {sJ}, {80*8192}')
    g(f's_lshl_b32 s49, {sH}, 8')
    g('s_add_u32 s48, s48, s49')
    g('s_waitcnt lgkmcnt(0)')
    g.addr('s[40:41]', S_WQ, 's48')
    for t in range(20):
        g(f'global_load_dwordx4 v[{80+4*t}:{83+4*t}], v8, s[40:41] nt')
        if t < 19:
            g('s_add_u32 s40, s40, 8192')
            g('s_addc_u32 s41, s41, 0')
    g(f'global_load_dword v2, v1, {WS} sc1')
    if 'bq' in opts:
        g('s_barrier')
    g.stamp(1)
    gen_sel(g, 192, 16, 17)
    g(f's_lshl_b32 s48, {sH}, 3')
    g(f's_add_u32 s48, s48, {sJ}')
    g('s_lshl_b32 s48, s48, 10')
    g(f's_add_u32 s49, s48, {Q1L}')
    g.addr('s[44:45]', S_WS, 's49')
    g(f's_add_u32 s49, s48, {Q1G}')
    g.addr('s[46:47]', S_WS, 's49')
    g('v_mul_u32_u24 v19, 40, v6')
    g('s_mov_b32 s56, 0')
    g('s_mov_b32 s57, -1')
    g('s_barrier')
    for k in range(5):
        g(f'ds_read_b64 v[{16+2*k}:{17+2*k}], v19 offset:{L_XN+8*k}')
    g('s_waitcnt lgkmcnt(0)')

    def perms(t):
        a = 160 + 4 * (t % 4)
        for v in range(4):
            g(f'v_perm_b32 v{a+v}, v{16+t//2}, v{16+t//2}, v{192+2*v+(t&1)}')
    perms(0)
    perms(1)
    for t in range(20):
        if t + 2 < 20:
            perms(t + 2)
        g(f's_waitcnt vmcnt({19-t+1})')
        a = 160 + 4 * (t % 4)
        c = '0' if t == 0 else 'v[200:203]'
        g(f'v_mfma_f32_16x16x32_bf16 v[200:203], v[{a}:{a+3}], v[{80+4*t}:{83+4*t}], {c}')
        if t == 17:
            pass
    g('s_waitcnt vmcnt(0)')
    g(f'v_readfirstlane_b32 {sTAG}, v2')
    g.nop(4)
    g(f's_mul_i32 {sTAG}, {sTAG}, 5')
    g(f's_add_u32 {sTAG}, {sTAG}, 0x9E3779B9')
    g(f'v_mov_b32 v207, {sTAG}')
    g('v_cndmask_b32 v204, v200, v202, s[56:57]')
    g('v_cndmask_b32 v205, v201, v203, s[56:57]')
    g(f'global_store_dwordx4 v3, v[204:207], s[44:45]')
    g(f'global_store_dwordx4 v3, v[204:207], s[46:47] sc1')
    g.stamp(2)
    g(f's_cmp_ge_u32 {sR}, 16')
    g('s_cbranch_scc1 L_pathB')
    g('s_branch L_bp1')

    g.label('L_b0')
    g('s_barrier')
    g('s_waitcnt vmcnt(0)')
    own_tag(g, 2)
    if 'wukb0' in opts:
        g(f's_cmp_ge_u32 {sWAVE}, 4')
        g('s_cbranch_scc0 L_pathB')
        wuk_dma()
        g('s_waitcnt vmcnt(0)')
    g('s_branch L_pathB')

    g.label('L_pre')
    pre(tagwait=True)
    g(f's_cmp_eq_u32 {sWAVE}, 2')
    g('s_cbranch_scc0 L_pre_nx')
    g('s_getreg_b32 s48, hwreg(HW_REG_XCC_ID)')
    g('s_and_b32 s48, s48, 0xf')
    g('v_mov_b32 v12, s48')
    g(f'v_mov_b32 v15, {sTAG}')
    g(f's_lshl_b32 s48, {sXCD}, 5')
    g(f's_add_u32 s48, s48, {sR}')
    g('s_lshl_b32 s48, s48, 4')
    g(f's_add_u32 s48, s48, {XID}')
    g('v_mov_b32 v16, s48')
    g('s_mov_b64 exec, 1')
    g(f'global_store_dwordx4 v16, v[12:15], {WS} sc1')
    g('s_mov_b64 exec, -1')
    g.label('L_pre_nx')
    g('s_barrier')
    g.label('L_bp')
    g('s_barrier')
    if 'halfdma' in opts:
        g(f's_cmp_ge_u32 {sWAVE}, 4')
        g('s_cbranch_scc1 L_a_dmadone')
    if 'fulldma' not in opts:
        dma()
    g.stamp(13)
    g('s_branch L_a_dmadone')
    g.label('L_pre0')
    pre()
    g('s_branch L_bp')
    g.label('L_bp1')
    g('s_barrier')
    if 'fulldma' not in opts:
        dma()
    g.stamp(13)
    pre()
    g.label('L_a_dmadone')
    g(f's_cmp_eq_u32 {sWAVE}, 3')
    g('s_cbranch_scc0 L_a_nochk')
    g(f's_lshl_b32 s48, {sXCD}, 9')
    g(f's_add_u32 s48, s48, {XID}')
    g('v_and_b32 v9, 31, v0')
    g('v_lshlrev_b32 v9, 4, v9')
    g('v_add_u32 v9, s48, v9')
    g('s_getreg_b32 s52, hwreg(HW_REG_XCC_ID)')
    g('s_and_b32 s52, s52, 0xf')
    g('s_mov_b32 s50, 0')
    g(f's_mov_b32 {sMODE}, 0')
    g.label('L_a_chk')
    g(f'global_load_dwordx4 v[12:15], v9, {WS} sc1')
    g('s_add_u32 s50, s50, 1')
    g('s_waitcnt vmcnt(0)')
    g(f'v_cmp_eq_u32 vcc, {sTAG}, v15')
    g('s_cmp_eq_u64 vcc, exec')
    g('s_cbranch_scc1 L_a_chk_ok')
    g('s_cmp_lt_u32 s50, 64')
    g('s_cbranch_scc1 L_a_chk')
    g('s_branch L_a_chk_done')
    g.label('L_a_chk_ok')
    g('v_cmp_eq_u32 vcc, s52, v12')
    g('s_cmp_eq_u64 vcc, exec')
    g(f's_cselect_b32 {sMODE}, 1, 0')
    g.label('L_a_chk_done')
    g(f'v_mov_b32 v12, {sMODE}')
    g(f'ds_write_b32 v1, v12 offset:{L_MODE}')
    g.label('L_a_nochk')
    wuv_ins = []
    for tt in range(4):
        wuv_ins.append(f'global_load_dwordx4 v[{64+4*tt}:{67+4*tt}], v254, s[96:97]' + ('' if 'helper' in opts else ' nt'))
        if tt < 3:
            wuv_ins.append('s_add_u32 s96, s96, 32768')
            wuv_ins.append('s_addc_u32 s97, s97, 0')
    g('s_waitcnt vmcnt(0) lgkmcnt(0)')
    g.stamp(3)
    g('s_barrier')
    FA = 96
    skip = g.uniq('skipfa')
    g(f's_cmp_lt_u32 {sWAVE}, 4')
    g(f's_cbranch_scc0 {skip}')
    for t in range(16):
        g(f'ds_read_b128 v[{FA+4*t}:{FA+4*t+3}], v{36+(t%4)} offset:{256*(t//4)}')
    g.label(skip)
    g(f'ds_read_b32 v12, v1 offset:{L_MODE}')
    g(f's_mov_b32 s63, {f2u(KAPPA):#x}')
    g.poll2('qa', [(f'global_load_dwordx4 v[{16+4*i}:{19+4*i}], v248, {WS} offset:{1024*i} sc1', 19 + 4 * i, None) for i in range(4)], MA, 10, 11)
    for i in range(4):
        g(f'ds_write_b64 v{44+(i>>1)}, v[{16+4*i}:{17+4*i}] offset:{512*(i&1)}')
    g.stamp(4)
    g('s_waitcnt lgkmcnt(0)')
    g(f'v_readfirstlane_b32 {sMODE}, v12')
    g('s_barrier')
    g(f's_cmp_lt_u32 {sWAVE}, 4')
    g('s_cbranch_scc1 L_a_s')
    g(f's_and_b32 s49, {sWAVE}, 3')
    g('s_lshl_b32 s49, s49, 14')
    g(f's_add_u32 m0, s49, {L_TILE}')
    g.nop(1)

    def vdma(n0, n1):
        for n in range(n0, n1):
            g('global_load_lds_dwordx4 v41, s[98:99]')
            if n < 15:
                g('s_add_u32 m0, m0, 1024')
                g('s_add_u32 s98, s98, 8192')
                g('s_addc_u32 s99, s99, 0')
    vdma(0, 8)
    g('s_barrier')
    vdma(8, 16)
    g('s_waitcnt vmcnt(0)')
    g.stamp(6)
    g('s_barrier')
    VT = 96
    for kr in range(8):
        for s2 in range(2):
            for h in range(2):
                d = VT + 8 * kr + 4 * s2 + 2 * h
                g(f'ds_read_b64_tr_b16 v[{d}:{d+1}], v40 offset:{2048*(4*kr+2*s2+h)}')
    g(f'v_mov_b32 v51, {sTAG}')
    g('s_branch L_a_px')
    g.label('L_a_s')
    qreg = [192 + 4 * t for t in range(8)] + [16 + 4 * t for t in range(4)] + [80 + 4 * t for t in range(4)]
    for t in range(16):
        g(f'ds_read_b128 v[{qreg[t]}:{qreg[t]+3}], v{32+(t%4)} offset:{L_QL+256*(t//4)}')
    g(f'v_mov_b32 v63, {sTAG}')
    for t in range(16):
        g(f's_waitcnt lgkmcnt({15-t})')
        c = '0' if t == 0 else 'v[48:51]'
        g(f'v_mfma_f32_16x16x32_bf16 v[48:51], v[{FA+4*t}:{FA+4*t+3}], v[{qreg[t]}:{qreg[t]+3}], {c}')
    g.nop(8)
    g('v_max_f32 v52, v48, v49')
    g('v_max3_f32 v52, v52, v50, v51')
    g.row_reduce([52], [53], 'max')
    g(f'ds_write_b32 v47, v52 offset:{L_MB}')
    g('s_waitcnt lgkmcnt(0)')
    g('s_barrier')
    g.stamp(12)
    g(f'ds_read_b128 v[52:55], v46 offset:{L_MB}')
    g('s_waitcnt lgkmcnt(0)')
    g('v_max_f32 v52, v52, v53')
    g('v_max3_f32 v52, v52, v54, v55')
    g('v_mul_f32 v62, s63, v52')
    for k in range(4):
        g(f'v_fma_f32 v{48+k}, v{48+k}, s63, -v62')
    for k in range(4):
        g(f'v_exp_f32 v{48+k}, v{48+k}')
    g.nop(1)
    g('v_cvt_pk_bf16_f32 v60, v48, v49')
    g('v_cvt_pk_bf16_f32 v61, v50, v51')
    mode_store(g, [f'global_store_dwordx4 v58, v[60:63], {WS}'], sMODE)
    g.stamp(5)
    g('s_barrier')
    if stop_after == 3:
        pass
    g.label('L_a_px')
    g.poll2('px', [(f'global_load_dwordx4 v[{16+4*i}:{19+4*i}], v246, {WS} offset:{1024*i} sc1', 19 + 4 * i, None) for i in range(4)], MA, 10, 11)
    for i in range(4):
        g(f'ds_write_b64 v56, v[{16+4*i}:{17+4*i}] offset:{1024*(i>>1)+8*(i&1)}')
    g.set_exec(0xffff)
    g('ds_write_b32 v59, v18')
    g('s_mov_b64 exec, -1')
    g.stamp(10)
    g('s_waitcnt lgkmcnt(0)')
    g('s_barrier')
    BF = 160

    def pv(lwave):
        g('ds_read_b128 v[32:35], v43')
        g('ds_read_b128 v[36:39], v43 offset:16')
        def bread(q):
            g(f'ds_read_b128 v[{BF+4*q}:{BF+4*q+3}], v42 offset:{1024*q}')
        for q in range(12):
            bread(q)
        if lwave:
            for k in range(4):
                g(f'v_mov_b32 v{88+k}, 0x3f803f80')
        g('s_waitcnt lgkmcnt(12)')
        g('v_max3_f32 v20, v32, v33, v34')
        g('v_max3_f32 v20, v20, v35, v36')
        g('v_max3_f32 v20, v20, v37, v38')
        g('v_max_f32 v20, v20, v39')
        for k in range(8):
            g(f'v_sub_f32 v{32+k}, v{32+k}, v20')
        DS = [224, 228, 232]
        nf = 1 if lwave else 4

        def fma(k):
            d = DS[k % 3]
            for r in range(nf):
                if k == 0:
                    g(f'v_mul_f32 v{236+r}, v{d+r}, v32')
                else:
                    g(f'v_fma_f32 v{236+r}, v{d+r}, v{32+k}, v{236+r}')
        for k in range(8):
            g(f's_waitcnt lgkmcnt({min(10, 14-2*k)})')
            d = DS[k % 3]
            for s2 in range(2):
                a = '88:91' if lwave else f'{VT+8*k+4*s2}:{VT+8*k+4*s2+3}'
                c = '0' if s2 == 0 else f'v[{d}:{d+3}]'
                g(f'v_mfma_f32_16x16x32_bf16 v[{d}:{d+3}], v[{a}], v[{BF+8*k+4*s2}:{BF+8*k+4*s2+3}], {c}')
            if k < 2:
                bread(12 + 2 * k)
                bread(13 + 2 * k)
            g(f'v_exp_f32 v{32+k}, v{32+k}')
            if k >= 2:
                fma(k - 2)
                if lwave:
                    g.nop(3)
        if lwave:
            g.nop(4)
        fma(6)
        if lwave:
            g.nop(4)
        else:
            g.nop(1)
        fma(7)

    g(f's_cmp_ge_u32 {sWAVE}, 4')
    g('s_cbranch_scc1 L_a_pv')
    g(f's_cmp_eq_u32 {sWAVE}, 0')
    g('s_cbranch_scc0 L_a_w2')
    g('s_cmp_eq_u32 s58, 0')
    g('s_cbranch_scc0 L_a_w2')
    pv(True)
    g('v_mov_b32 v21, v236')
    g(f'v_mov_b32 v23, {sTAG}')
    g.set_exec(0xffff)
    g(f'global_store_dwordx4 v250, v[20:23], {WS} sc1')
    g('s_mov_b64 exec, -1')
    g.label('L_a_w2')
    if 'wuvlate' not in opts:
        for ins in wuv_ins:
            g(ins)
    g('s_branch L_a_s4')
    g.label('L_a_pv')
    pv(False)
    g('v_cvt_pk_bf16_f32 v48, v236, v237')
    g('v_cvt_pk_bf16_f32 v49, v238, v239')
    g(f'global_store_dwordx4 v244, v[48:51], {WS} sc1')
    g.stamp(7)
    if 'wuvlate' not in opts:
        for ins in wuv_ins:
            g(ins)
    g.label('L_a_s4')
    g('s_barrier')
    if 'wuvlate' in opts:
        for ins in wuv_ins:
            g(ins)

    g.poll2('ox', [(f'global_load_dwordx4 v[16:19], v245, {WS} sc1', 19, None)], MA, 10, 11)
    g.stamp(8)
    g('v_max_f32_dpp v22, v16, v16 row_ror:4 row_mask:0xf bank_mask:0xf')
    g.nop(2)
    g('v_max_f32_dpp v22, v22, v22 row_ror:8 row_mask:0xf bank_mask:0xf')
    g.nop(1)
    g('v_mov_b32 v23, v22')
    g.nop(2)
    g('v_permlane16_swap_b32 v23, v22')
    g.nop(1)
    g('v_max_f32 v22, v22, v23')
    g('v_sub_f32 v24, v16, v22')
    g('v_exp_f32 v24, v24')
    g('v_permlane32_swap_b32 v16, v17')
    g.nop(1)
    g('v_mul_f32 v22, v24, v17')
    g('v_lshlrev_b32 v25, 16, v16')
    g('v_add_f32_dpp v22, v22, v22 row_ror:4 row_mask:0xf bank_mask:0xf')
    g('v_and_b32 v26, 0xffff0000, v16')
    g.nop(1)
    g('v_add_f32_dpp v22, v22, v22 row_ror:8 row_mask:0xf bank_mask:0xf')
    g.nop(1)
    g('v_mov_b32 v23, v22')
    g.nop(2)
    g('v_permlane16_swap_b32 v23, v22')
    g.nop(1)
    g('v_add_f32 v22, v22, v23')
    g('v_rcp_f32 v22, v22')
    g.nop(1)
    g('v_mul_f32 v24, v24, v22')
    g('v_mov_b32 v23, v24')
    g.nop(2)
    g('v_permlane32_swap_b32 v23, v24')
    g.nop(1)
    g('v_mul_f32 v25, v25, v24')
    g('v_mul_f32 v26, v26, v24')
    g.nop(2)
    g('v_permlane16_swap_b32 v25, v26')
    g.nop(1)
    g('v_add_f32 v25, v25, v26')
    g.nop(2)
    g('v_add_f32_dpp v25, v25, v25 row_ror:4 row_mask:0xf bank_mask:0xf')
    g.nop(2)
    g('v_add_f32_dpp v25, v25, v25 row_ror:8 row_mask:0xf bank_mask:0xf')
    g('v_cvt_pk_bf16_f32 v25, v25, v25')
    g.nop(2)

    def ands(tt):
        a = 84 + 4 * (tt % 2)
        for v in range(4):
            g(f'v_and_b32_dpp v{a+v}, v25, v{240+v} quad_perm:[{tt},{tt},{tt},{tt}] row_mask:0xf bank_mask:0xf')
    ands(0)
    for tt in range(4):
        if tt < 3:
            ands(tt + 1)
        else:
            g.nop(2)
        a = 84 + 4 * (tt % 2)
        c = '0' if tt == 0 else 'v[92:95]'
        g(f'v_mfma_f32_16x16x32_bf16 v[92:95], v[{a}:{a+3}], v[{64+4*tt}:{67+4*tt}], {c}')
    g.set_exec(0xffffffff)
    g.nop(6)
    g(f'ds_write_b128 v247, v[92:95] offset:{L_RED}')
    g('s_mov_b64 exec, -1')
    g('s_waitcnt lgkmcnt(0)')
    g('s_barrier')
    g(f's_cmp_eq_u32 {sWAVE}, 0')
    g('s_cbranch_scc0 L_a_red')
    for w in range(8):
        g(f'ds_read_b64 v[{32+2*w}:{33+2*w}], v57 offset:{L_RED+512*w}')
    g(f'v_mov_b32 v23, {sTAG}')
    g('s_waitcnt lgkmcnt(0)')
    g('v_pk_add_f32 v[32:33], v[32:33], v[34:35]')
    g('v_pk_add_f32 v[36:37], v[36:37], v[38:39]')
    g('v_pk_add_f32 v[40:41], v[40:41], v[42:43]')
    g('v_pk_add_f32 v[44:45], v[44:45], v[46:47]')
    g('v_pk_add_f32 v[32:33], v[32:33], v[36:37]')
    g('v_pk_add_f32 v[40:41], v[40:41], v[44:45]')
    g('v_pk_add_f32 v[32:33], v[32:33], v[40:41]')
    g('v_cvt_pk_bf16_f32 v20, v32, v33')
    g.nop(2)
    g('v_mov_b32_dpp v21, v20 row_shl:1 row_mask:0xf bank_mask:0xf')
    g.set_exec(0x5555555555555555)
    mode_store(g, [f'global_store_dwordx4 v253, v[20:23], {WS}'], sMODE)
    g('s_mov_b64 exec, -1')
    g.stamp(9)
    g.label('L_a_red')
    if 'wb' in opts:
        g(f's_cmp_eq_u32 {sWAVE}, 5')
        g('s_cbranch_scc0 L_a_nwb')
        g(f's_cmp_eq_u32 {sR}, 12')
        g('s_cbranch_scc0 L_a_nwb')
        g('buffer_wbl2 sc1')
        g('s_waitcnt vmcnt(0)')
        g.label('L_a_nwb')
    if stop_after == 4:
        g('s_branch L_fin')
    g(f's_cmp_eq_u32 {sWAVE}, 7')
    g('s_cbranch_scc0 L_fin')
    g(f's_cmp_lt_u32 {sR}, 10')
    g('s_cbranch_scc0 L_fin')
    g(f's_mul_i32 s55, {sXCD}, 10')
    g(f's_add_u32 s55, s55, {sR}')
    g('v_and_b32 v7, 3, v0')
    g('v_lshrrev_b32 v6, 5, v0')
    g('v_and_b32 v8, 1, v7')
    g('v_lshlrev_b32 v8, 2, v8')
    g('v_lshrrev_b32 v9, 1, v7')
    g('v_add_u32 v8, v8, v9')
    g('v_lshl_add_u32 v8, v6, 1, v8')
    g('s_lshl_b32 s48, s55, 3')
    g('v_add_u32 v31, s48, v8')
    g('v_lshlrev_b32 v31, 1, v31')
    g(f'global_load_ushort v30, v31, {S_X}')
    g('v_and_b32 v9, 7, v0')
    g('v_mul_u32_u24 v9, 2560, v9')
    g('v_bfe_u32 v10, v0, 3, 1')
    g('v_lshl_add_u32 v9, v10, 4, v9')
    g('s_lshr_b32 s48, s55, 4')
    g('s_lshl_b32 s48, s48, 9')
    g('s_and_b32 s49, s55, 15')
    g('s_lshl_b32 s49, s49, 5')
    g('s_add_u32 s48, s48, s49')
    g(f's_add_u32 s48, s48, {OUTP}')
    g('v_add_u32 v9, s48, v9')
    g('s_lshl_b32 s48, s55, 6')
    g(f's_add_u32 s48, s48, {O2P}')
    g('v_lshrrev_b32 v12, 2, v0')
    g('v_mul_u32_u24 v12, 5120, v12')
    g('v_lshl_add_u32 v12, v7, 4, v12')
    g('v_add_u32 v12, s48, v12')
    g(f'v_add_u32 v13, {16*5120}, v12')
    g(f'v_add_u32 v14, {32*5120}, v12')
    g(f'v_add_u32 v15, {48*5120}, v12')
    g(f'v_mov_b32 v44, {sTAG}')
    g('v_mov_b32 v46, 0')
    g('v_mov_b32 v47, 0')
    g(f'v_mov_b32 v19, {sTAG}')
    g('v_mov_b32 v16, 0')
    g('v_mov_b32 v17, 0')
    g('v_lshrrev_b32 v28, 2, v8')
    g('v_lshlrev_b32 v28, 5, v28')
    g('v_and_b32 v29, 3, v8')
    g.poll2('hf', [(f'global_load_dwordx4 v[16:19], v9, {WS} sc1', 19, 0xffff)], MA, 10, 11)
    g('v_lshlrev_b32 v20, 16, v16')
    g('v_and_b32 v21, 0xffff0000, v16')
    g('v_lshlrev_b32 v22, 16, v17')
    g('v_and_b32 v23, 0xffff0000, v17')
    for ctl in ['quad_perm:[1,0,3,2]', 'quad_perm:[2,3,0,1]', 'row_half_mirror']:
        g.nop(1)
        for k in range(4):
            g(f'v_add_f32_dpp v{20+k}, v{20+k}, v{20+k} {ctl} row_mask:0xf bank_mask:0xf')
    g.nop(1)
    for k in range(4):
        g(f'ds_bpermute_b32 v{24+k}, v28, v{20+k}')
    g('s_waitcnt lgkmcnt(0)')
    g('v_cmp_eq_u32 vcc, 1, v29')
    g.nop(1)
    g('v_cndmask_b32 v24, v24, v25, vcc')
    g('v_cmp_eq_u32 vcc, 2, v29')
    g.nop(1)
    g('v_cndmask_b32 v24, v24, v26, vcc')
    g('v_cmp_eq_u32 vcc, 3, v29')
    g.nop(1)
    g('v_cndmask_b32 v16, v24, v27, vcc')
    rnd_bf16(g, 16)
    g('v_lshlrev_b32 v30, 16, v30')
    g('v_add_f32 v30, v30, v16')
    rnd_bf16(g, 30)
    g.poll2('o2', [(f'global_load_dwordx4 v[{32+4*i}:{35+4*i}], v{12+i}, {WS} sc1', 32 + 4 * i, None) for i in range(3)] +
            [(f'global_load_dwordx4 v[44:47], v15, {WS} sc1', 44, 0xffffff)], MA, 10, 11)
    g.stamp(9)
    g('v_pk_add_f32 v[16:17], v[34:35], v[38:39]')
    g('v_pk_add_f32 v[18:19], v[42:43], v[46:47]')
    g('v_pk_add_f32 v[16:17], v[16:17], v[18:19]')
    g.nop(2)
    g('v_permlane32_swap_b32 v16, v17')
    g.nop(1)
    g('v_add_f32 v16, v16, v17')
    g('v_mov_b32 v17, v16')
    g.nop(2)
    g('v_permlane16_swap_b32 v17, v16')
    g.nop(1)
    g('v_add_f32 v16, v16, v17')
    g.nop(2)
    g('v_add_f32_dpp v16, v16, v16 row_ror:4 row_mask:0xf bank_mask:0xf')
    g.nop(2)
    g('v_add_f32_dpp v16, v16, v16 row_ror:8 row_mask:0xf bank_mask:0xf')
    rnd_bf16(g, 16)
    g('v_add_f32 v16, v16, v30')
    g('v_cvt_pk_bf16_f32 v16, v16, v16')
    g('s_mov_b32 exec_lo, 0xf')
    g('s_mov_b32 exec_hi, 0xf')
    g(f'global_store_short v31, v16, {S_OUT}')
    g('s_mov_b64 exec, -1')
    g('s_cmp_eq_u32 s55, 0')
    g('s_cbranch_scc0 L_fin')
    g('s_mov_b64 exec, 1')
    g(f'v_mov_b32 v2, {sTAG}')
    g(f'global_store_dword v1, v2, {WS} sc1')
    g('s_mov_b64 exec, -1')
    g('s_branch L_fin')

    g.label('L_pathB')
    g(f's_sub_u32 s54, {sR}, 16')
    g('s_lshr_b32 s48, s54, 2')
    g(f's_lshl_b32 s49, {sXCD}, 2')
    g('s_add_u32 s55, s48, s49')
    g(f's_cmp_eq_u32 {sWAVE}, 0')
    g('s_cbranch_scc0 L_b1')
    g('s_lshl_b32 s48, s55, 13')
    g(f's_add_u32 s49, s48, {Q1L}')
    g.addr('s[40:41]', S_WS, 's49')
    g(f's_add_u32 s49, s48, {Q1G}')
    g.addr('s[42:43]', S_WS, 's49')
    g('v_add_u32 v4, 4096, v3')
    g('v_and_b32 v14, 1, v6')
    g('v_lshlrev_b32 v14, 3, v14')
    g('v_lshl_add_u32 v14, v7, 4, v14')
    g('v_lshrrev_b32 v15, 1, v6')
    g('v_lshl_add_u32 v14, v15, 2, v14')
    g.poll2('q1', [(f'global_load_dwordx4 v[{32+4*k}:{35+4*k}], {"v3" if k < 4 else "v4"}, {{base}} offset:{1024*(k%4)} sc1', 35 + 4 * k, None) for k in range(8)],
            MQ, 10, 11, alt=('s[40:41]', 's[42:43]'))
    g.stamp(3)
    g('v_pk_add_f32 v[12:13], v[32:33], v[36:37]')
    g('v_pk_add_f32 v[10:11], v[40:41], v[44:45]')
    g('v_pk_add_f32 v[16:17], v[48:49], v[52:53]')
    g('v_pk_add_f32 v[18:19], v[56:57], v[60:61]')
    g('v_pk_add_f32 v[12:13], v[12:13], v[10:11]')
    g('v_pk_add_f32 v[16:17], v[16:17], v[18:19]')
    g('v_pk_add_f32 v[12:13], v[12:13], v[16:17]')
    g('v_cvt_pk_bf16_f32 v12, v12, v13')
    g(f'ds_write_b32 v14, v12 offset:{L_QB}')
    g('s_waitcnt lgkmcnt(0)')
    g('s_barrier')
    g('s_branch L_b2')
    g.label('L_b1')
    g('s_lshl_b32 s48, s55, 11')
    g('s_and_b32 s49, s54, 3')
    g('s_lshl_b32 s49, s49, 9')
    g('s_add_u32 s48, s48, s49')
    g(f's_and_b32 s49, {sWAVE}, 3')
    g('s_lshl_b32 s49, s49, 7')
    g('s_add_u32 s48, s48, s49')
    g(f's_add_u32 s48, s48, {QA}')
    g('v_lshlrev_b32 v9, 4, v6')
    g('v_lshl_add_u32 v104, v7, 6, v9')
    g('v_add_u32 v104, s48, v104')
    g(f'v_mov_b32 v103, {sTAG}')
    g('s_mov_b32 s56, 0x00020002')
    g('s_mov_b32 s57, 0x00020002')
    g(f's_cmp_ge_u32 {sWAVE}, 4')
    g('s_cbranch_scc0 L_b1x')
    g(f's_and_b32 s49, {sWAVE}, 3')
    g('s_lshl_b32 s49, s49, 13')
    g(f's_add_u32 s49, s49, {L_TILE}')
    g('v_lshl_add_u32 v12, v7, 8, s49')
    for t in range(4):
        g(f'v_add_u32 v13, {4*t}, v6')
        g('v_xor_b32 v13, v13, v7')
        g('v_lshl_add_u32 v13, v13, 4, v12')
        for tau in range(2):
            g(f'ds_read_b128 v[{64+16*tau+4*t}:{67+16*tau+4*t}], v13 offset:{4096*tau}')
    g('s_waitcnt lgkmcnt(0)')
    g('s_barrier')
    g('s_branch L_b1m')
    g.label('L_b1x')
    g('s_barrier')
    g('s_branch L_b2')
    g.label('L_b1m')
    for t in range(4):
        g(f'ds_read_b128 v[{108+4*t}:{111+4*t}], v9 offset:{L_QB+64*t}')
    for t in range(4):
        g(f's_waitcnt lgkmcnt({3-t})')
        for tau in range(2):
            c = '0' if t == 0 else f'v[{96+8*tau}:{99+8*tau}]' if False else ('0' if t == 0 else f'v[{124+4*tau}:{127+4*tau}]')
            g(f'v_mfma_f32_16x16x32_bf16 v[{124+4*tau}:{127+4*tau}], v[{64+16*tau+4*t}:{67+16*tau+4*t}], v[{108+4*t}:{111+4*t}], {c}')
    g('s_mov_b32 exec_lo, 0x00030003')
    g('s_mov_b32 exec_hi, 0x00030003')
    g.nop(6)
    g('v_cvt_pk_bf16_f32 v96, v124, v125')
    g('v_cvt_pk_bf16_f32 v97, v126, v127')
    g('v_cvt_pk_bf16_f32 v98, v128, v129')
    g('v_cvt_pk_bf16_f32 v99, v130, v131')
    g('v_cndmask_b32 v100, v96, v98, s[56:57]')
    g('v_cndmask_b32 v101, v97, v99, s[56:57]')
    g(f'global_store_dwordx4 v104, v[100:103], {WS} sc1')
    g('s_mov_b64 exec, -1')
    g.stamp(4)
    g.label('L_b2')
    if stop_after in (2, 3, 4):
        g('s_branch L_fin')
    if 'pace' in opts or 'paceml' in opts:
        g(f's_cmp_eq_u32 {sWAVE}, 0')
        g('s_cbranch_scc0 L_b2p')
        if 'paceml' in opts:
            g('s_cmp_lt_u32 s54, 5')
            g('s_cbranch_scc1 L_b2p')
        g('v_lshrrev_b32 v12, 1, v0')
        g('v_lshlrev_b32 v12, 11, v12')
        g('v_and_b32 v13, 1, v0')
        g('v_lshl_add_u32 v12, v13, 10, v12')
        g(f'v_add_u32 v12, {QA + 1008}, v12')
        g('s_mov_b32 s50, 0')
        g.label('L_b2q')
        g(f'global_load_dwordx4 v[16:19], v12, {WS} sc1')
        g('s_add_u32 s50, s50, 1')
        g('s_waitcnt vmcnt(0)')
        g(f'v_cmp_ne_u32 vcc, {sTAG}, v19')
        g('s_cmp_eq_u64 vcc, 0')
        g('s_cbranch_scc1 L_b2p')
        g('s_cmp_lt_u32 s50, 64')
        g('s_cbranch_scc1 L_b2q')
        g.label('L_b2p')
    if 'pacepf' in opts:
        g(f's_cmp_eq_u32 {sWAVE}, 0')
        g('s_cbranch_scc0 L_b2u')
        g('s_cmp_lt_u32 s54, 5')
        g('s_cbranch_scc1 L_b2u')
        g(f's_lshl_b32 s48, {sXCD}, 8')
        g(f's_add_u32 s48, s48, {PF}')
        g('v_and_b32 v12, NPF, v0'.replace('NPF', str(int([o for o in opts if o.startswith('npf')][0][3:]) - 1 if any(o.startswith('npf') for o in opts) else 3)))
        g('v_lshl_add_u32 v12, v12, 4, s48')
        g('s_mov_b32 s50, 0')
        g.label('L_b2t')
        g(f'global_load_dwordx4 v[16:19], v12, {WS} sc1')
        g('s_add_u32 s50, s50, 1')
        g('s_waitcnt vmcnt(0)')
        g(f'v_cmp_ne_u32 vcc, {sTAG}, v19')
        g('s_cmp_eq_u64 vcc, 0')
        g('s_cbranch_scc1 L_b2u')
        g('s_cmp_lt_u32 s50, 256')
        g('s_cbranch_scc1 L_b2t')
        g.label('L_b2u')
    if 'pacemll' in opts:
        g(f's_cmp_eq_u32 {sWAVE}, 0')
        g('s_cbranch_scc0 L_b2r')
        g('s_cmp_lt_u32 s54, 5')
        g('s_cbranch_scc1 L_b2r')
        g(f's_lshl_b32 s48, {sXCD}, 12')
        g(f's_add_u32 s48, s48, {MLL}')
        g('v_add_u32 v12, s48, v3')
        g('s_mov_b32 s50, 0')
        g.label('L_b2s')
        g(f'global_load_dwordx4 v[16:19], v12, {WS} sc1')
        g('s_add_u32 s50, s50, 1')
        g('s_waitcnt vmcnt(0)')
        g(f'v_cmp_ne_u32 vcc, {sTAG}, v19')
        g('s_cmp_eq_u64 vcc, 0')
        g('s_cbranch_scc1 L_b2r')
        g('s_cmp_lt_u32 s50, 256')
        g('s_cbranch_scc1 L_b2s')
        g.label('L_b2r')
    g('s_barrier')
    g.stamp(5)
    g('v_lshrrev_b32 v8, 3, v7')
    g('v_and_b32 v9, 7, v0')
    g('v_lshl_add_u32 v10, v8, 2, v6')
    g('s_cmp_lt_u32 s54, 5')
    g('s_cbranch_scc1 L_b_wo')
    if 'helper' in opts:
        g('s_cmp_ge_u32 s54, 12')
        g('s_cbranch_scc1 L_b_help')
        g('s_sub_u32 s48, s54, 5')
        g(f's_mul_i32 s49, {sXCD}, 7')
        g('s_add_u32 s58, s49, s48')
        g('s_cmp_lt_u32 s58, 54')
        g('s_cbranch_scc0 L_fin')
        g('s_branch L_b_mlpld')
        g.label('L_b_help')
        g('s_sub_u32 s48, s54, 12')
        g(f's_lshl_b32 s49, {sXCD}, 2')
        g('s_add_u32 s48, s48, s49')
        g('s_lshl_b32 s48, s48, 8')
        g(f's_lshl_b32 s49, {sWAVE}, 19')
        g('s_add_u32 s48, s48, s49')
        g.addr('s[40:41]', S_WUV, 's48')
        g('v_lshlrev_b32 v11, 13, v6')
        g('v_lshl_add_u32 v11, v7, 4, v11')
        for t in range(16):
            g(f'global_load_dwordx4 v[{64+4*t}:{67+4*t}], v11, s[40:41]')
            if t < 15:
                g('s_add_u32 s40, s40, 32768')
                g('s_addc_u32 s41, s41, 0')
        g('s_waitcnt vmcnt(0)')
        g.stamp(6)
        g('s_branch L_fin')
    else:
        g('s_sub_u32 s48, s54, 5')
        g('s_lshr_b32 s49, s48, 1')
        g('s_lshl_b32 s49, s49, 3')
        g(f's_add_u32 s49, s49, {sXCD}')
        g('s_cmp_lt_u32 s49, 27')
        g('s_cbranch_scc0 L_fin')
        g('s_lshl_b32 s49, s49, 1')
        g('s_and_b32 s48, s48, 1')
        g('s_add_u32 s58, s49, s48')
        g('s_branch L_b_mlpld')
    g.label('L_b_wo')
    g(f's_lshl_b32 s48, {sXCD}, 3')
    g(f's_add_u32 s48, s48, {sWAVE}')
    g(f's_mul_i32 s48, s48, {64*1280}')
    g('s_lshl_b32 s49, s54, 8')
    g('s_add_u32 s48, s48, s49')
    g.addr('s[40:41]', S_WO, 's48')
    g('v_mul_u32_u24 v11, 1280, v6')
    g('v_lshl_add_u32 v11, v7, 4, v11')
    for t in range(16):
        g(f'global_load_dwordx4 v[{32+4*t}:{35+4*t}], v11, s[40:41] nt')
        if t < 15:
            g('s_add_u32 s40, s40, 5120')
            g('s_addc_u32 s41, s41, 0')
    gen_mask(g, 192, 16, 17)
    g(f's_lshr_b32 s48, {sWAVE}, 1')
    g('s_lshl_b32 s48, s48, 2')
    g(f's_lshl_b32 s49, {sXCD}, 4')
    g('s_add_u32 s48, s48, s49')
    g('s_lshl_b32 s48, s48, 9')
    g(f's_and_b32 s49, {sWAVE}, 1')
    g('s_lshl_b32 s49, s49, 8')
    g('s_add_u32 s48, s48, s49')
    g(f's_add_u32 s48, s48, {C4}')
    g('v_lshlrev_b32 v11, 9, v6')
    g('v_lshl_add_u32 v11, v7, 4, v11')
    g('v_add_u32 v11, s48, v11')
    g('v_lshlrev_b32 v26, 5, v7')
    g('v_lshl_add_u32 v26, v6, 4, v26')
    g(f's_lshl_b32 s48, {sWAVE}, 9')
    g('v_add_u32 v26, s48, v26')
    g('v_lshlrev_b32 v28, 3, v0')
    g(f's_mul_i32 s48, {sXCD}, 2560')
    g('s_lshl_b32 s49, s54, 9')
    g('s_add_u32 s48, s48, s49')
    g(f's_add_u32 s48, s48, {OUTP}')
    g('v_lshrrev_b32 v29, 1, v0')
    g('v_lshl_add_u32 v29, v29, 4, s48')
    g(f'v_mov_b32 v147, {sTAG}')
    if g.stamps:
        g.stamp(8)
        g('s_waitcnt vmcnt(0)')
        g.stamp(9)
    g.poll2('c4', [(f'global_load_dwordx4 v[16:19], v11, {WS} sc1', 19, None)], MB, 13, 14)
    g.stamp(6)
    g('v_lshlrev_b32 v20, 16, v16')
    g('v_and_b32 v21, 0xffff0000, v16')
    g('v_lshlrev_b32 v22, 16, v17')
    g('v_and_b32 v23, 0xffff0000, v17')
    g.nop(1)
    g('v_permlane32_swap_b32 v20, v22')
    g('v_permlane32_swap_b32 v21, v23')
    g.nop(1)
    g('v_add_f32 v20, v20, v22')
    g('v_add_f32 v21, v21, v23')
    g.nop(2)
    g('v_permlane16_swap_b32 v20, v21')
    g.nop(1)
    g('v_add_f32 v20, v20, v21')
    g('v_cvt_pk_bf16_f32 v20, v20, v20')
    g.nop(2)

    def wands(t):
        a = 224 + 4 * (t % 4)
        for v in range(4):
            g(f'v_and_b32_dpp v{a+v}, v20, v{192+v} row_newbcast:{t} row_mask:0xf bank_mask:0xf')
    wands(0)
    wands(1)
    for t in range(16):
        if t + 2 < 16:
            wands(t + 2)
        a = 224 + 4 * (t % 4)
        c = '0' if t == 0 else 'v[200:203]'
        g(f'v_mfma_f32_16x16x32_bf16 v[200:203], v[{a}:{a+3}], v[{32+4*t}:{35+4*t}], {c}')
    g.set_exec(0xffffffff)
    g.nop(6)
    g(f'ds_write_b128 v26, v[200:203] offset:{L_RED}')
    g('s_mov_b64 exec, -1')
    g('s_waitcnt lgkmcnt(0)')
    g('s_barrier')
    g(f's_cmp_eq_u32 {sWAVE}, 0')
    g('s_cbranch_scc0 L_fin')
    for w in range(8):
        g(f'ds_read_b64 v[{160+2*w}:{161+2*w}], v28 offset:{L_RED+512*w}')
    g('s_waitcnt lgkmcnt(0)')
    g('v_pk_add_f32 v[160:161], v[160:161], v[162:163]')
    g('v_pk_add_f32 v[164:165], v[164:165], v[166:167]')
    g('v_pk_add_f32 v[168:169], v[168:169], v[170:171]')
    g('v_pk_add_f32 v[172:173], v[172:173], v[174:175]')
    g('v_pk_add_f32 v[160:161], v[160:161], v[164:165]')
    g('v_pk_add_f32 v[168:169], v[168:169], v[172:173]')
    g('v_pk_add_f32 v[160:161], v[160:161], v[168:169]')
    g('v_cvt_pk_bf16_f32 v144, v160, v161')
    g.nop(2)
    g('v_mov_b32_dpp v145, v144 row_shl:1 row_mask:0xf bank_mask:0xf')
    g.set_exec(0x5555555555555555)
    g(f'global_store_dwordx4 v29, v[144:147], {WS} sc1')
    g('s_mov_b64 exec, -1')
    g.stamp(7)
    g('s_branch L_fin')

    def gemv(n, src, wbase, d, ab=224, reuse=False, keep=False):
        ns = n if keep else 4
        def pm(t):
            a = ab + 4 * (t % ns)
            for v in range(4):
                g(f'v_perm_b32 v{a+v}, v{src+t//2}, v{src+t//2}, v{192+2*v+(t&1)}')
        if not reuse:
            pm(0)
            if n > 1:
                pm(1)
        for t in range(n):
            if not reuse and t + 2 < n:
                pm(t + 2)
            a = ab + 4 * (t % ns)
            c = '0' if t == 0 else f'v[{d}:{d+3}]'
            g(f'v_mfma_f32_16x16x32_bf16 v[{d}:{d+3}], v[{a}:{a+3}], v[{wbase+4*t}:{wbase+4*t+3}], {c}')

    g.label('L_b_mlpld')
    if stop_after == 5:
        g('s_branch L_fin')
    gen_sel(g, 192, 16, 17)
    if 'mlrot' in opts:
        g('s_and_b32 s57, s58, 1')
        g('s_lshl_b32 s57, s57, 2')
        g(f's_add_u32 s57, s57, {sWAVE}')
        g('s_and_b32 s57, s57, 7')
    else:
        g(f's_mov_b32 s57, {sWAVE}')
    g('v_and_b32 v26, 1, v6')
    g('v_lshlrev_b32 v26, 2, v26')
    g('v_lshl_add_u32 v26, v9, 3, v26')
    g('v_lshrrev_b32 v27, 1, v6')
    g('v_add_u32 v26, v26, v27')
    g('v_lshlrev_b32 v26, 2, v26')
    g(f's_lshl_b32 s48, {sWAVE}, 8')
    g('v_add_u32 v26, s48, v26')
    g('v_cmp_le_u32 vcc, 4, v9')
    g('v_mov_b32 v12, s22')
    g('v_mov_b32 v13, s24')
    g('v_mov_b32 v14, s23')
    g('v_mov_b32 v15, s25')
    g('v_cndmask_b32 v12, v12, v13, vcc')
    g('v_cndmask_b32 v13, v14, v15, vcc')
    g('v_and_b32 v14, 3, v0')
    g('v_lshlrev_b32 v14, 4, v14')
    g('s_lshl_b32 s48, s58, 6')
    g(f's_mul_i32 s49, s57, {80*3456}')
    g('s_add_u32 s48, s48, s49')
    g('v_add_u32 v14, s48, v14')
    g(f'v_mul_u32_u24 v15, {8*3456}, v10')
    g('v_add_u32 v15, v15, v14')
    g(f'v_mul_u32_u24 v16, {2*3456}, v10')
    g('v_add_u32 v16, v16, v14')
    g(f'v_add_u32 v16, {64*3456}, v16')
    for t in range(10):
        if t == 0:
            src = 15
        elif t == 8:
            src = 16
        g(f'v_add_co_u32 v18, vcc, v12, v{src}')
        g.nop(2)
        g('v_addc_co_u32 v19, vcc, 0, v13, vcc')
        g(f'global_load_dwordx4 v[{64+4*t}:{67+4*t}], v[18:19], off' + ('' if 'gunt0' in opts else ' sc0 nt' if 'gusc0' in opts else ' nt'))
        g(f'v_add_u32 v{src}, 3456, v{src}')
    g('s_lshl_b32 s48, s58, 5')
    g(f's_mul_i32 s48, s48, 1280')
    g(f's_lshl_b32 s49, {sWAVE}, 7')
    g('s_add_u32 s48, s48, s49')
    g.addr('s[40:41]', S_WD, 's48')
    g(f'v_mul_u32_u24 v11, {4*1280}, v10')
    g('v_lshl_add_u32 v11, v9, 4, v11')
    for t in range(4):
        g(f'global_load_dwordx4 v[{104+4*t}:{107+4*t}], v11, s[40:41] offset:{1280*t} nt')
    g(f's_cmp_lt_u32 {sWAVE}, 2')
    g('s_cbranch_scc0 L_b_nod2')
    g('s_add_u32 s40, s40, 1024')
    g('s_addc_u32 s41, s41, 0')
    for t in range(4):
        g(f'global_load_dwordx4 v[{120+4*t}:{123+4*t}], v11, s[40:41] offset:{1280*t} nt')
    g.label('L_b_nod2')
    g(f's_lshl_b32 s48, {sWAVE}, 8')
    g('s_min_u32 s48, s48, 1024')
    g('v_and_b32 v17, 31, v0')
    g('v_lshlrev_b32 v17, 3, v17')
    g('v_lshrrev_b32 v29, 5, v0')
    g('v_lshl_add_u32 v17, v29, 2, v17')
    g('v_add_u32 v143, s48, v17')
    g(f'global_load_dword v140, v143, {S_X}')
    g(f'global_load_ushort v141, v1, {S_X}')
    g.stamp(6)
    g('s_waitcnt vmcnt(0)')
    g.stamp(7)
    g('v_lshlrev_b32 v141, 16, v141')
    g.nop(1)
    g('v_readfirstlane_b32 s53, v141')
    gen_mask(g, 220, 16, 17)
    for v in range(4):
        g(f'v_and_b32 v{220+v}, 0x3f803f80, v{220+v}')
    g.nop(2)
    for t in range(10):
        c = '0' if t == 0 else 'v[200:203]'
        g(f'v_mfma_f32_16x16x32_bf16 v[200:203], v[220:223], v[{64+4*t}:{67+4*t}], {c}')
    g.nop(8)
    class_combine(g, 200)
    g.set_exec(0x00ff00ff00ff00ff)
    g('ds_write2_b32 v26, v200, v202 offset0:0 offset1:2')
    g('s_mov_b64 exec, -1')
    g('s_waitcnt lgkmcnt(0)')
    g('s_barrier')
    g('v_lshlrev_b32 v29, 2, v0')
    for w in range(8):
        g(f'ds_read_b32 v{160+w}, v29 offset:{256*w}')
    g('s_waitcnt lgkmcnt(0)')
    g('v_add_f32 v160, v160, v161')
    g('v_add_f32 v162, v162, v163')
    g('v_add_f32 v164, v164, v165')
    g('v_add_f32 v166, v166, v167')
    g('v_add_f32 v160, v160, v162')
    g('v_add_f32 v164, v164, v166')
    g('v_add_f32 v142, v160, v164')
    g('s_barrier')
    g('s_mul_i32 s48, s57, 160')
    g('v_lshlrev_b32 v27, 4, v10')
    g('v_add_u32 v27, s48, v27')
    g('v_lshlrev_b32 v28, 2, v10')
    g('v_add_u32 v28, s48, v28')
    g('v_lshlrev_b32 v30, 3, v10')
    g('v_and_b32 v31, 31, v0')
    g('v_lshlrev_b32 v31, 1, v31')
    g('v_lshlrev_b32 v14, 6, v9')
    g('v_lshl_add_u32 v14, v6, 4, v14')
    g(f's_mul_i32 s48, s58, 5120')
    g(f's_lshl_b32 s49, {sWAVE}, 9')
    g('s_add_u32 s48, s48, s49')
    g(f's_add_u32 s48, s48, {O2P}')
    g('v_add_u32 v14, s48, v14')
    g(f'v_add_u32 v15, {8*512}, v14')
    g(f'v_mov_b32 v202, {sTAG}')
    g(f's_lshl_b32 s48, {sWAVE}, 3')
    g('v_mov_b32 v144, s48')
    g(f's_cmp_lt_u32 {sWAVE}, 5')
    g('s_cbranch_scc0 L_m_b1')
    g(f's_lshl_b32 s48, {sWAVE}, 9')
    g(f's_add_u32 s48, s48, {OUTP}')
    g('v_lshrrev_b32 v152, 5, v0')
    g('v_mul_u32_u24 v152, 2560, v152')
    g('v_and_b32 v153, 31, v0')
    g('v_lshl_add_u32 v152, v153, 4, v152')
    g('v_add_u32 v152, s48, v152')
    for k in range(1, 4):
        g(f'v_add_u32 v{152+k}, {5120*k}, v152')
    g('v_lshlrev_b32 v148, 16, v140')
    g('v_and_b32 v149, 0xffff0000, v140')
    g.poll2('outp', [(f'global_load_dwordx4 v[{160+4*k}:{163+4*k}], v{152+k}, {WS} sc1', 163 + 4 * k, None) for k in range(4)], MB, 12, 13)
    g.stamp(8)
    for k in range(4):
        g(f'v_lshlrev_b32 v{176+4*k}, 16, v{160+4*k}')
        g(f'v_and_b32 v{177+4*k}, 0xffff0000, v{160+4*k}')
        g(f'v_lshlrev_b32 v{178+4*k}, 16, v{161+4*k}')
        g(f'v_and_b32 v{179+4*k}, 0xffff0000, v{161+4*k}')
        if k == 1:
            g('v_pk_add_f32 v[176:177], v[176:177], v[180:181]')
            g('v_pk_add_f32 v[178:179], v[178:179], v[182:183]')
    g('v_pk_add_f32 v[184:185], v[184:185], v[188:189]')
    g('v_pk_add_f32 v[186:187], v[186:187], v[190:191]')
    g('v_pk_add_f32 v[176:177], v[176:177], v[184:185]')
    g('v_pk_add_f32 v[178:179], v[178:179], v[186:187]')
    g.nop(1)
    g('v_permlane32_swap_b32 v176, v178')
    g('v_permlane32_swap_b32 v177, v179')
    g.nop(1)
    g('v_add_f32 v16, v176, v178')
    g('v_add_f32 v17, v177, v179')
    g('v_cvt_pk_bf16_f32 v16, v16, v17')
    g('v_lshlrev_b32 v18, 16, v16')
    g('v_and_b32 v19, 0xffff0000, v16')
    g('v_pk_add_f32 v[18:19], v[18:19], v[148:149]')
    g('v_cvt_pk_bf16_f32 v16, v18, v19')
    g(f'ds_write_b32 v143, v16 offset:{L_HB}')
    g('v_lshlrev_b32 v18, 16, v16')
    g('v_and_b32 v19, 0xffff0000, v16')
    g('v_subrev_f32 v18, s53, v18')
    g('v_subrev_f32 v19, s53, v19')
    g('v_add_f32 v160, v18, v19')
    g('v_mul_f32 v161, v18, v18')
    g('v_fmac_f32 v161, v19, v19')
    g.wave_reduce([160, 161], [162, 163])
    g('s_mov_b64 exec, 1')
    g(f'ds_write_b64 v144, v[160:161] offset:{L_ST}')
    g('s_mov_b64 exec, -1')
    g('s_waitcnt lgkmcnt(0)')
    g.label('L_m_b1')
    g('s_barrier')
    g.stamp(9)
    g(f'ds_read_b128 v[176:179], v27 offset:{L_HB}')
    g(f'ds_read_b32 v180, v28 offset:{L_HB+128}')
    g(f's_cmp_eq_u32 {sWAVE}, 7')
    g('s_cbranch_scc0 L_m_ns')
    g(f'ds_read_b128 v[160:163], v1 offset:{L_ST}')
    g(f'ds_read_b128 v[164:167], v1 offset:{L_ST+16}')
    g(f'ds_read_b64 v[168:169], v1 offset:{L_ST+32}')
    g.label('L_m_ns')
    g('s_waitcnt lgkmcnt(0)')
    gemv(10, 176, 64, 208)
    g.nop(8)
    class_combine(g, 208)
    g.set_exec(0x00ff00ff00ff00ff)
    g('ds_write2_b32 v26, v208, v210 offset0:0 offset1:2')
    g('s_mov_b64 exec, -1')
    g('s_waitcnt lgkmcnt(0)')
    g('s_barrier')
    g.stamp(10)
    g(f's_cmp_eq_u32 {sWAVE}, 7')
    g('s_cbranch_scc0 L_m_b3')
    for w in range(8):
        g(f'ds_read_b32 v{184+w}, v29 offset:{256*w}')
    g('v_pk_add_f32 v[160:161], v[160:161], v[162:163]')
    g('v_pk_add_f32 v[164:165], v[164:165], v[166:167]')
    g('v_pk_add_f32 v[160:161], v[160:161], v[168:169]')
    g('v_pk_add_f32 v[160:161], v[160:161], v[164:165]')
    ln_scalars(g, 160, 161, 's53', 170, 171, 172)
    g('v_mul_f32 v170, v170, v142')
    g('s_waitcnt lgkmcnt(0)')
    g('v_pk_add_f32 v[184:185], v[184:185], v[186:187]')
    g('v_pk_add_f32 v[188:189], v[188:189], v[190:191]')
    g('v_pk_add_f32 v[184:185], v[184:185], v[188:189]')
    g('v_add_f32 v16, v184, v185')
    g('v_sub_f32 v16, v16, v170')
    g('v_mul_f32 v16, v16, v171')
    rnd_bf16(g, 16)
    g('v_mov_b32 v17, v16')
    g.nop(2)
    g('v_permlane32_swap_b32 v16, v17')
    g.nop(1)
    g('v_max_f32 v16, 0, v16')
    g('v_mul_f32 v16, v16, v17')
    g('v_cvt_pk_bf16_f32 v16, v16, v16')
    g(f'ds_write_b16 v31, v16 offset:{L_CB}')
    g('s_waitcnt lgkmcnt(0)')
    g.label('L_m_b3')
    g('s_barrier')
    g(f'ds_read_b64 v[16:17], v30 offset:{L_CB}')
    g('s_waitcnt lgkmcnt(0)')
    g.stamp(11)

    def down(base, vo, reuse=False):
        gemv(4, 16, base, 204, reuse=reuse, keep=True)
        g.nop(8)
        class_combine(g, 204, out2=205)
        g.set_exec(0x00ff00ff00ff00ff)
        g(f'global_store_dwordx4 v{vo}, v[202:205], {WS} sc1')
        g('s_mov_b64 exec, -1')
    down(104, 14)
    g(f's_cmp_lt_u32 {sWAVE}, 2')
    g('s_cbranch_scc0 L_m_done')
    down(120, 15, reuse=True)
    g.label('L_m_done')

    g.label('L_fin')
    g.stamp(15)
    g.stamp_flush()
    g.label('L_end')
    g('s_endpgm')
    body = g.text()

    hdr = open('cdna_kernels/' + KN[:-7] + '.s.ref').read().split('\n')
    head = []
    for line in hdr:
        if line.startswith('; @launch'):
            head.append(f'; @launch grid=(256,1,1) block=(512,1,1) lds={LDS_BYTES}')
        elif line.startswith(';'):
            head.append(line)
        else:
            break
    out = '\n'.join(head) + '\n'
    out += '.amdgcn_target "amdgcn-amd-amdhsa--gfx950"\n.text\n'
    out += f'.globl {KN}\n.p2align 8\n.type {KN},@function\n{KN}:\n'
    out += body
    out += f'''.section .rodata,"a"
.p2align 6
.amdhsa_kernel {KN}
  .amdhsa_next_free_vgpr 256
  .amdhsa_next_free_sgpr 102
  .amdhsa_accum_offset 256
  .amdhsa_group_segment_fixed_size 0
  .amdhsa_kernarg_size 104
  .amdhsa_user_sgpr_count 2
  .amdhsa_user_sgpr_kernarg_segment_ptr 1
  .amdhsa_system_sgpr_workgroup_id_x 1
.end_amdhsa_kernel
'''
    return out


if __name__ == '__main__':
    import argparse
    ap = argparse.ArgumentParser()
    ap.add_argument('-o', default='k.s')
    ap.add_argument('--stamps', action='store_true')
    ap.add_argument('--stop', type=int, default=None)
    ap.add_argument('--opts', default='')
    a = ap.parse_args()
    open(a.o, 'w').write(build(a.stamps, a.stop, tuple(a.opts.split(','))))
```

```python
import sys, struct

KN = 'sequential_preLN__compressed_kv_cla__glu_gated_reglu__decode_kernel'

EPOCH = 0
XID = 0x1000
PF = 0x3000
Q1L = 0x10000
Q1G = 0x50000
QA = 0x90000
MLL = 0xA0000
C4 = 0xA8000
MLX = 0xC8000
OUTP = 0xE8000
O2P = 0x100000
OX = 0x180000
OPL = 0x200000
STAMPS = 0x800000

L_XN = 0
L_QB = 256
L_MB = 512
L_LB = 768
L_PB = 1024
L_RED = 3072
L_CB = 7168
L_HB = 8192
L_ST = 9472
L_MODE = 9728
L_TAG = 9732
L_QL = 10240
L_TILE = 26624
LDS_BYTES = 92160

S_X, S_CKV, S_WQ, S_WUK, S_WUV, S_WO, S_WG, S_WU, S_WD, S_OUT, S_DBG, S_WS = (
    's[8:9]', 's[10:11]', 's[12:13]', 's[14:15]', 's[16:17]', 's[18:19]', 's[22:23]', 's[24:25]', 's[26:27]',
    's[28:29]', 's[30:31]', 's[32:33]')
sXCD, sR, sWAVE, sH, sJ, sTAG = 's34', 's35', 's36', 's37', 's38', 's39'
POLL_LIMIT = 1 << 17


def f2u(x):
    return struct.unpack('<I', struct.pack('<f', x))[0]


class Gen:
    def __init__(s, stamps=False, stop_after=None):
        s.L = []
        s.tail = []
        s.n = 0
        s.stamps = stamps
        s.stop_after = stop_after
        s.nstamp = 0

    def __call__(s, txt):
        for line in txt.strip('\n').split('\n'):
            line = line.strip()
            if line:
                s.L.append('    ' + line)

    def label(s, name):
        s.L.append(name + ':')

    def uniq(s, base):
        s.n += 1
        return f'{base}_{s.n}'

    def nop(s, n):
        while n > 0:
            k = min(n, 16)
            s(f's_nop {k-1}')
            n -= k

    def stamp(s, idx):
        if s.stamps:
            s(f's_memrealtime s[{64+2*idx}:{65+2*idx}]')

    def stamp_flush(s, nst=16):
        if not s.stamps:
            return
        s('s_waitcnt lgkmcnt(0)')
        s('s_mov_b64 exec, 1')
        s(f's_lshl_b32 s48, s2, 3')
        s(f's_add_u32 s48, s48, {sWAVE}')
        s(f's_lshl_b32 s48, s48, 7')
        s(f's_add_u32 s48, s48, {STAMPS}')
        s('v_mov_b32 v1, s48')
        for i in range(nst):
            s(f'v_mov_b32 v2, s{64+2*i}')
            s(f'v_mov_b32 v3, s{65+2*i}')
            s(f'global_store_dwordx2 v1, v[2:3], {S_WS} offset:{8*i}')
            s('s_nop 1')
        s('s_waitcnt vmcnt(0)')

    def addr(s, dst, src, off):
        d = int(dst[2:].split(':')[0]); sr = int(src[2:].split(':')[0])
        s(f's_add_u32 s{d}, s{sr}, {off}')
        s(f's_addc_u32 s{d+1}, s{sr+1}, 0')

    def set_exec(s, mask):
        if mask == (1 << 64) - 1:
            s('s_mov_b64 exec, -1')
        else:
            s(f's_mov_b32 exec_lo, {mask & 0xffffffff:#x}')
            s(f's_mov_b32 exec_hi, {mask >> 32:#x}')

    def wave_reduce(s, regs, tmps, op='add'):
        ins = {'add': 'v_add_f32', 'max': 'v_max_f32'}[op]
        n = len(regs)
        pad = max(0, 2 - (n - 1))
        s.nop(2)
        for ctl in ['quad_perm:[1,0,3,2]', 'quad_perm:[2,3,0,1]', 'row_half_mirror', 'row_mirror']:
            for r in regs:
                s(f'{ins}_dpp v{r}, v{r}, v{r} {ctl} row_mask:0xf bank_mask:0xf')
            s.nop(pad)
        s.row_reduce(regs, tmps, op)

    def row_reduce(s, regs, tmps, op='add'):
        ins = {'add': 'v_add_f32', 'max': 'v_max_f32'}[op]
        n = len(regs)
        for sw in ['v_permlane16_swap_b32', 'v_permlane32_swap_b32']:
            for r, t in zip(regs, tmps):
                s(f'v_mov_b32 v{t}, v{r}')
            s.nop(max(0, 2 - (n - 1)))
            for r, t in zip(regs, tmps):
                s(f'{sw} v{t}, v{r}')
            s.nop(1 if n == 1 else 0)
            for r, t in zip(regs, tmps):
                s(f'{ins} v{r}, v{r}, v{t}')
            s.nop(0)

    def check_tags(s, regs, t0, t1, done_label):
        tags = []
        for r in regs:
            tags += [r + 1, r + 3]
        if len(tags) == 2:
            s(f'v_cmp_eq_u32 vcc, {sTAG}, v{tags[0]}')
            s(f'v_cmp_eq_u32 s[46:47], {sTAG}, v{tags[1]}')
        else:
            s(f'v_min3_u32 v{t0}, v{tags[0]}, v{tags[1]}, v{tags[2]}')
            s(f'v_max3_u32 v{t1}, v{tags[0]}, v{tags[1]}, v{tags[2]}')
            rest = tags[3:]
            while rest:
                if len(rest) >= 2:
                    s(f'v_min3_u32 v{t0}, v{t0}, v{rest[0]}, v{rest[1]}')
                    s(f'v_max3_u32 v{t1}, v{t1}, v{rest[0]}, v{rest[1]}')
                    rest = rest[2:]
                else:
                    s(f'v_min_u32 v{t0}, v{t0}, v{rest[0]}')
                    s(f'v_max_u32 v{t1}, v{t1}, v{rest[0]}')
                    rest = rest[1:]
            s(f'v_cmp_eq_u32 vcc, {sTAG}, v{t0}')
            s(f'v_cmp_eq_u32 s[46:47], {sTAG}, v{t1}')
        s('s_and_b64 vcc, vcc, s[46:47]')
        s('s_cmp_eq_u64 vcc, exec')
        s(f's_cbranch_scc1 {done_label}')

    def poll(s, name, emit_loads, regs, t0, t1, first_hook=None, alt=None):
        top = s.uniq(name + '_top'); done = s.uniq(name + '_done'); fail = s.uniq(name + '_fail')
        s(f's_mov_b32 s50, 0')
        if first_hook is not None:
            emit_loads(alt[0] if alt else None)
            first_hook()
            s('s_waitcnt vmcnt(0)')
            s.check_tags(regs, t0, t1, done)
        s.label(top)
        if alt:
            s('s_add_u32 s50, s50, 1')
            s('s_and_b32 s51, s50, 7')
            s('s_cmp_eq_u32 s51, 0')
            s(f's_cselect_b64 s[44:45], {alt[1]}, {alt[0]}')
            emit_loads('s[44:45]')
        else:
            s('s_add_u32 s50, s50, 1')
            emit_loads(None)
        s('s_waitcnt vmcnt(0)')
        s.check_tags(regs, t0, t1, done)
        s(f's_cmp_lt_u32 s50, {POLL_LIMIT}')
        s(f's_cbranch_scc1 {top}')
        s(f's_mov_b64 s[46:47], exec')
        s('s_mov_b64 exec, 1')
        s(f'v_mov_b32 v{t0}, {4*(s.n % 60)}')
        s(f'v_mov_b32 v{t1}, {0x1000 + s.n}')
        s(f'global_store_dword v{t0}, v{t1}, {S_DBG}')
        s(f's_mov_b64 exec, s[46:47]')
        s.label(done)

    def begin_tail(s):
        s.main = s.L
        s.L = s.tail

    def end_tail(s):
        s.L = s.main

    def poll2(s, name, loads, masks, t0, t1, alt=None, hook=None):
        top = s.uniq(name + '_top'); done = s.uniq(name + '_done'); retry = s.uniq(name + '_retry')
        n = len(loads)
        assert len(masks) >= n
        s('s_mov_b32 s50, 0')
        for ins, tg, em in loads:
            if em is not None:
                s.set_exec(em)
            s(ins.format(base=alt[0] if alt else None))
            if em is not None:
                s('s_mov_b64 exec, -1')
        if hook is not None:
            hook()
        s.label(top)
        s('s_waitcnt vmcnt(0)')
        for k, (ins, tg, em) in enumerate(loads):
            s(f'v_cmp_ne_u32 {masks[k]}, {sTAG}, v{tg}')
        if n == 1:
            s(f's_cmp_lg_u64 {masks[0]}, 0')
        else:
            s(f's_or_b64 s[46:47], {masks[0]}, {masks[1]}')
            for k in range(2, n):
                s(f's_or_b64 s[46:47], s[46:47], {masks[k]}')
        s(f's_cbranch_scc1 {retry}')
        s.label(done)
        s.begin_tail()
        s.label(retry)
        s('s_add_u32 s50, s50, 1')
        if alt:
            s('s_and_b32 s51, s50, 7')
            s('s_cmp_eq_u32 s51, 0')
            s(f's_cselect_b64 s[44:45], {alt[1]}, {alt[0]}')
        for k, (ins, tg, em) in enumerate(loads):
            s(f's_mov_b64 exec, {masks[k]}')
            if n > 1:
                sk = s.uniq(name + '_sk')
                s(f's_cbranch_execz {sk}')
            s(ins.format(base='s[44:45]' if alt else None))
            if n > 1:
                s.label(sk)
        s('s_mov_b64 exec, -1')
        s(f's_cmp_lt_u32 s50, {POLL_LIMIT}')
        s(f's_cbranch_scc1 {top}')
        s('s_waitcnt vmcnt(0)')
        s('s_mov_b64 exec, 1')
        s(f'v_mov_b32 v{t0}, {4*(s.n % 60)}')
        s(f'v_mov_b32 v{t1}, {0x1000 + s.n}')
        s(f'global_store_dword v{t0}, v{t1}, {S_DBG}')
        s('s_mov_b64 exec, -1')
        s(f's_branch {done}')
        s.end_tail()

    def text(s):
        return '\n'.join(s.L + s.tail + ['L_codeend:']) + '\n'


KAPPA = (128 ** -0.5) * 1.4426950408889634


def gen_sel(g, base, t0, t1):
    g(f'v_and_b32 v{t0}, 7, v0')
    g(f'v_and_b32 v{t1}, 1, v0')
    for par in range(2):
        lo = 0x0c0c0000 | ((2 * par + 1) << 8) | (2 * par)
        hi = ((2 * par + 1) << 24) | ((2 * par) << 16) | 0x0c0c
        g(f'v_cmp_eq_u32 vcc, 1, v{t1}')
        g(f'v_mov_b32 v{base+par}, {lo:#x}')
        g(f'v_mov_b32 v{base+2+par}, {hi:#x}')
        g(f'v_cndmask_b32 v{base+par}, v{base+par}, v{base+2+par}, vcc')
    g(f'v_lshrrev_b32 v{t0}, 1, v{t0}')
    g(f'v_mov_b32 v{t1}, 0x0c0c0c0c')
    for v in [3, 2, 1, 0]:
        g(f'v_cmp_eq_u32 vcc, {v}, v{t0}')
        g.nop(1)
        for par in range(2):
            g(f'v_cndmask_b32 v{base+2*v+par}, v{t1}, v{base+par}, vcc')


def gen_mask(g, base, t0, t1):
    g(f'v_and_b32 v{t0}, 7, v0')
    g(f'v_and_b32 v{t1}, 1, v0')
    g(f'v_cmp_eq_u32 vcc, 1, v{t1}')
    g(f'v_mov_b32 v{base}, 0xffff')
    g(f'v_mov_b32 v{base+1}, 0xffff0000')
    g(f'v_cndmask_b32 v{t1}, v{base}, v{base+1}, vcc')
    g(f'v_lshrrev_b32 v{t0}, 1, v{t0}')
    for v in range(4):
        g(f'v_cmp_eq_u32 vcc, {v}, v{t0}')
        g.nop(1)
        g(f'v_cndmask_b32 v{base+v}, 0, v{t1}, vcc')


def get_tag(g, vreg):
    g.nop(1)
    g(f'v_readfirstlane_b32 {sTAG}, v{vreg}')
    g.nop(4)
    g(f's_mul_i32 {sTAG}, {sTAG}, 5')
    g(f's_add_u32 {sTAG}, {sTAG}, 0x9E3779B9')


def rnd_bf16(g, r):
    g(f'v_cvt_pk_bf16_f32 v{r}, v{r}, v{r}')
    g(f'v_and_b32 v{r}, 0xffff0000, v{r}')


def ln_scalars(g, s1, s2, piv_sgpr, vm, vrs, t0):
    g(f's_mov_b32 s52, {f2u(1.0/640):#x}')
    g(f'v_mul_f32 v{s1}, s52, v{s1}')
    g(f'v_mul_f32 v{s2}, s52, v{s2}')
    g(f'v_fma_f32 v{s2}, -v{s1}, v{s1}, v{s2}')
    g(f'v_max_f32 v{s2}, 0, v{s2}')
    g(f'v_add_f32 v{vm}, {piv_sgpr}, v{s1}')
    rnd_bf16(g, vm)
    rnd_bf16(g, s2)
    g(f'v_add_f32 v{s2}, 0x3727c5ac, v{s2}')
    rnd_bf16(g, s2)
    g(f'v_sqrt_f32 v{s2}, v{s2}')
    g.nop(1)
    rnd_bf16(g, s2)
    g(f'v_rcp_f32 v{vrs}, v{s2}')
    g.nop(1)


def class_combine(g, d, out2=None):
    if out2 is None:
        out2 = d + 2
    for k in range(4):
        g(f'v_mov_b32_dpp v{d+k}, v{d+k} row_ror:8 row_mask:0xc bank_mask:0xf')
    g.nop(1)
    g(f'v_permlane32_swap_b32 v{d}, v{d+1}')
    g(f'v_permlane32_swap_b32 v{d+2}, v{d+3}')
    g.nop(1)
    g(f'v_add_f32 v{d}, v{d}, v{d+1}')
    g(f'v_add_f32 v{out2}, v{d+2}, v{d+3}')


def mode_store(g, ins_no_flag, smode):
    a = g.uniq('ms_slow'); b = g.uniq('ms_done')
    g(f's_cmp_eq_u32 {smode}, 1')
    g(f's_cbranch_scc0 {a}')
    for ins in ins_no_flag:
        g(ins)
    g.label(b)
    ex = [l for l in []]
    g.begin_tail()
    g.label(a)
    for ins in ins_no_flag:
        g(ins + ' sc1')
    g(f's_branch {b}')
    g.end_tail()


def own_tag(g, vreg):
    g(f'v_readfirstlane_b32 {sTAG}, v{vreg}')
    g.nop(4)
    g(f's_mul_i32 {sTAG}, {sTAG}, 5')
    g(f's_add_u32 {sTAG}, {sTAG}, 0x9E3779B9')


MA = ['s[10:11]', 's[12:13]', 's[14:15]', 's[18:19]', 's[20:21]', 's[22:23]', 's[24:25]', 's[26:27]']
MQ = ['s[10:11]', 's[12:13]', 's[14:15]', 's[4:5]', 's[20:21]', 's[96:97]', 's[98:99]', 's[100:101]']
MB = ['s[10:11]', 's[12:13]', 's[14:15]', 's[16:17]', 's[18:19]', 's[20:21]', 's[22:23]', 's[24:25]']


def build(stamps=False, stop_after=None, opts=()):
    g = Gen(stamps, stop_after)
    sMODE = 's59'
    WS = S_WS
    g('s_cmp_ge_u32 s2, 256')
    g('s_cbranch_scc1 L_end')
    g('s_load_dwordx16 s[8:23], s[0:1], 0')
    g('s_load_dwordx8 s[24:31], s[0:1], 64')
    g('s_load_dwordx2 s[32:33], s[0:1], 96')
    g('s_getpc_b64 s[42:43]')
    g('v_lshlrev_b32 v1, 4, v0')
    g('global_load_dwordx4 v[232:235], v1, s[42:43]')
    g.stamp(0)
    g('v_lshrrev_b32 v1, 6, v0')
    g('v_and_b32 v0, 63, v0')
    g(f'v_readfirstlane_b32 {sWAVE}, v1')
    g(f's_and_b32 {sXCD}, s2, 7')
    g(f's_lshr_b32 {sR}, s2, 3')
    g(f's_lshr_b32 {sH}, {sR}, 3')
    g(f's_lshl_b32 s48, {sXCD}, 2')
    g(f's_add_u32 {sH}, {sH}, s48')
    g(f's_and_b32 {sJ}, {sR}, 7')
    g('v_mov_b32 v1, 0')
    g('v_lshlrev_b32 v3, 4, v0')
    g('v_and_b32 v7, 15, v0')
    g('v_lshrrev_b32 v6, 4, v0')
    g(f's_cmp_eq_u32 {sWAVE}, 1')
    g('s_cbranch_scc1 L_w1')
    g(f's_cmp_eq_u32 {sWAVE}, 0')
    g('s_cbranch_scc1 L_w0')

    def pre(tagwait=False):
        g(f's_and_b32 s55, {sR}, 1')
        g(f's_lshr_b32 s56, {sR}, 1')
        g('v_and_b32 v8, 7, v0')
        g('v_lshlrev_b32 v8, 1, v8')
        g(f's_lshl_b32 s48, {sWAVE}, 14')
        g(f's_add_u32 s48, s48, {L_TILE}')
        for tl in range(4):
            g(f'v_add_u32 v9, {4*tl}, v6')
            g('v_xor_b32 v9, v9, v8')
            g('v_lshlrev_b32 v9, 4, v9')
            g(f'v_lshl_add_u32 v{32+tl}, v7, 10, v9')
            g(f'v_add_u32 v{36+tl}, s48, v{32+tl}')
        g('v_lshrrev_b32 v9, 2, v0')
        g('v_lshlrev_b32 v9, 7, v9')
        g('v_and_b32 v11, 3, v0')
        g('v_lshl_add_u32 v9, v11, 3, v9')
        g('v_bfe_u32 v10, v0, 3, 2')
        g(f's_and_b32 s48, {sWAVE}, 3')
        g('v_xor_b32 v10, s48, v10')
        g('v_lshl_add_u32 v9, v10, 5, v9')
        g(f'v_add_u32 v40, {L_TILE}, v9')
        g('v_lshrrev_b32 v9, 3, v0')
        g('v_lshlrev_b32 v9, 10, v9')
        g('v_and_b32 v10, 7, v0')
        g('v_lshlrev_b32 v11, 1, v6')
        g('v_xor_b32 v10, v10, v11')
        g('v_lshl_add_u32 v41, v10, 4, v9')
        g(f's_lshl_b32 s48, {sXCD}, 19')
        g(f's_and_b32 s49, {sWAVE}, 3')
        g('s_lshl_b32 s49, s49, 17')
        g('s_add_u32 s48, s48, s49')
        g('s_lshl_b32 s49, s56, 7')
        g('s_add_u32 s48, s48, s49')
        g('s_waitcnt lgkmcnt(0)')
        g.addr('s[98:99]', S_CKV, 's48')
        g('v_lshrrev_b32 v9, 1, v0')
        g('v_and_b32 v10, 1, v0')
        g('v_lshlrev_b32 v10, 3, v10')
        for ih in range(2):
            g(f's_lshl_b32 s48, {sWAVE}, 1')
            g(f's_add_u32 s48, s48, {ih}')
            g('s_and_b32 s49, s48, 7')
            g('s_lshl_b32 s49, s49, 1')
            g('v_xor_b32 v11, s49, v9')
            g('v_lshl_add_u32 v11, v11, 4, v10')
            g('s_lshl_b32 s48, s48, 10')
            g(f's_add_u32 s48, s48, {L_QL}')
            g(f'v_add_u32 v{44+ih}, s48, v11')
        gen_mask(g, 240, 9, 10)
        g('v_lshlrev_b32 v46, 4, v7')
        g(f's_lshl_b32 s48, {sWAVE}, 2')
        g('v_add_u32 v47, s48, v46')
        g('v_lshlrev_b32 v57, 3, v0')
        g(f'v_add_u32 v42, {L_QL}, v3')
        g(f's_lshl_b32 s48, {sWAVE}, 11')
        g('v_add_u32 v56, s48, v42')
        g('v_lshlrev_b32 v43, 5, v7')
        g(f'v_add_u32 v43, {L_RED}, v43')
        g(f's_lshl_b32 s48, {sWAVE}, 2')
        g('v_add_u32 v59, s48, v43')
        g('s_lshl_b32 s48, s55, 15')
        g(f's_lshl_b32 s49, {sWAVE}, 12')
        g('s_add_u32 s48, s48, s49')
        g(f's_add_u32 s48, s48, {QA}')
        g('v_add_u32 v248, s48, v3')
        g(f's_lshl_b32 s48, {sXCD}, 16')
        g('s_lshl_b32 s49, s55, 15')
        g('s_add_u32 s48, s48, s49')
        g(f's_add_u32 s48, s48, {OPL}')
        g(f's_lshl_b32 s49, {sWAVE}, 12')
        g('s_add_u32 s49, s49, s48')
        g('v_add_u32 v246, s49, v3')
        g('s_lshl_b32 s49, s56, 12')
        g('s_add_u32 s48, s48, s49')
        g('v_add_u32 v251, s48, v3')
        g(f's_and_b32 s49, {sWAVE}, 3')
        g('s_lshl_b32 s49, s49, 10')
        g('v_add_u32 v58, s49, v251')
        g(f's_lshl_b32 s48, {sXCD}, 16')
        g('s_lshl_b32 s49, s55, 15')
        g('s_add_u32 s48, s48, s49')
        g('s_lshl_b32 s49, s56, 12')
        g('s_add_u32 s48, s48, s49')
        g(f's_and_b32 s49, {sWAVE}, 3')
        g('s_lshl_b32 s49, s49, 10')
        g('s_add_u32 s48, s48, s49')
        g(f's_add_u32 s48, s48, {OX}')
        g('v_lshlrev_b32 v244, 6, v7')
        g('v_lshl_add_u32 v244, v6, 4, v244')
        g('v_add_u32 v244, s48, v244')
        g(f's_lshl_b32 s48, {sXCD}, 9')
        g('s_lshl_b32 s49, s55, 8')
        g('s_add_u32 s48, s48, s49')
        g(f's_add_u32 s48, s48, {MLX}')
        g('v_add_u32 v250, s48, v3')
        g('s_mov_b32 s58, s56')
        g(f's_lshr_b32 s48, {sR}, 2')
        g(f's_lshl_b32 s49, {sXCD}, 2')
        g('s_add_u32 s61, s48, s49')
        g(f's_and_b32 s62, {sR}, 3')
        g('v_bfe_u32 v13, v0, 2, 3')
        g('s_lshr_b32 s48, s61, 4')
        g('s_lshl_b32 s48, s48, 5')
        g('s_lshl_b32 s49, s62, 3')
        g('s_add_u32 s48, s48, s49')
        g(f's_add_u32 s48, s48, {sWAVE}')
        g('s_lshl_b32 s48, s48, 10')
        g('s_and_b32 s49, s61, 15')
        g('s_lshl_b32 s49, s49, 6')
        g('s_add_u32 s48, s48, s49')
        g(f's_add_u32 s48, s48, {OX}')
        g('v_lshlrev_b32 v14, 16, v13')
        g('v_and_b32 v12, 3, v0')
        g('v_lshl_add_u32 v14, v12, 4, v14')
        g('v_add_u32 v245, s48, v14')
        g('s_lshl_b32 s48, s61, 4')
        g(f's_add_u32 s48, s48, {MLX}')
        g('v_lshlrev_b32 v14, 9, v13')
        g('v_add_u32 v14, s48, v14')
        g('v_cmp_le_u32 vcc, 32, v0')
        g.nop(1)
        g('v_cndmask_b32 v245, v245, v14, vcc')
        g('v_lshlrev_b32 v247, 5, v7')
        g('v_lshl_add_u32 v247, v6, 4, v247')
        g(f's_lshl_b32 s48, {sWAVE}, 9')
        g('v_add_u32 v247, s48, v247')
        g(f's_lshl_b32 s48, {sXCD}, 4')
        g(f's_add_u32 s48, s48, {sR}')
        g('s_lshl_b32 s48, s48, 9')
        g(f's_add_u32 s48, s48, {C4}')
        g('v_lshrrev_b32 v253, 1, v0')
        g('v_lshl_add_u32 v253, v253, 4, s48')
        g('s_lshl_b32 s48, s61, 8')
        g('s_lshl_b32 s49, s62, 3')
        g(f's_add_u32 s49, s49, {sWAVE}')
        g('s_lshl_b32 s49, s49, 17')
        g('s_add_u32 s48, s48, s49')
        g('s_waitcnt lgkmcnt(0)')
        g.addr('s[62:63]' if False else 's[96:97]', S_WUV, 's48')
        g('v_lshlrev_b32 v254, 13, v6')
        g('v_lshl_add_u32 v254, v7, 4, v254')
        if tagwait:
            g('s_waitcnt vmcnt(0)')
            own_tag(g, 2)
        g(f'global_load_dword v233, v245, {WS} sc1')
        pt = g.uniq('pt')
        g(f's_cmp_eq_u32 {sWAVE}, 5')
        g(f's_cbranch_scc0 {pt}')
        for kt in range(4):
            g(f'global_load_dword v{234+kt}, v251, {WS} offset:{1024*kt} sc1')
        g.label(pt)

    def dma(wsel=None):
        g(f's_lshr_b32 s56, {sR}, 1')
        g(f's_lshl_b32 s57, {sXCD}, 3')
        g('s_add_u32 s57, s57, s56')
        g('s_lshl_b32 s48, s57, 6')
        if 'rot' in opts:
            g(f's_and_b32 s49, {sR}, 1')
            g('s_lshl_b32 s49, s49, 2')
            g(f's_add_u32 s49, s49, {wsel or sWAVE}')
            g('s_and_b32 s49, s49, 7')
            g('s_lshl_b32 s49, s49, 3')
        else:
            g(f's_lshl_b32 s49, {wsel or sWAVE}, 3')
        g('s_add_u32 s48, s48, s49')
        g('s_lshl_b32 s48, s48, 10')
        g.addr('s[40:41]', S_CKV, 's48')
        g('s_lshl_b32 s49, s49, 10')
        g(f's_add_u32 s49, s49, {L_TILE}')
        g('s_mov_b32 m0, s49')
        for i in range(8):
            if i == 4:
                g('s_add_u32 s49, s49, 4096')
                g('s_mov_b32 m0, s49')
                g('s_add_u32 s40, s40, 4096')
                g('s_addc_u32 s41, s41, 0')
            g(f'v_xor_b32 v4, {32*i}, v3')
            g(f'global_load_lds_dwordx4 v4, s[40:41] offset:{1024*(i%4)}' + (' nt' if 'ckvnt' in opts else ''))

    def wuk_dma():
        g(f's_sub_u32 s54, {sR}, 16')
        g('s_lshr_b32 s48, s54, 2')
        g(f's_lshl_b32 s49, {sXCD}, 2')
        g('s_add_u32 s48, s48, s49')
        g('s_lshl_b32 s48, s48, 8')
        g('s_and_b32 s49, s54, 3')
        g('s_lshl_b32 s49, s49, 2')
        g(f's_add_u32 s49, s49, {sWAVE}')
        g('s_sub_u32 s49, s49, 4')
        g('s_lshl_b32 s49, s49, 18')
        g('s_add_u32 s48, s48, s49')
        g.addr('s[40:41]', S_WUK, 's48')
        g('v_xor_b32 v8, v7, v6')
        g('v_lshlrev_b32 v8, 4, v8')
        g('v_lshl_add_u32 v8, v6, 13, v8')
        for n in range(1, 4):
            g(f'v_xor_b32 v{8+n}, {64*n}, v8')
        g(f's_and_b32 s49, {sWAVE}, 3')
        g('s_lshl_b32 s49, s49, 13')
        g(f's_add_u32 m0, s49, {L_TILE}')
        g.nop(1)
        for n in range(8):
            g(f'global_load_lds_dwordx4 v{8+(n&3)}, s[40:41] nt')
            if n < 7:
                g('s_add_u32 m0, m0, 1024')
                g('s_add_u32 s40, s40, 32768')
                g('s_addc_u32 s41, s41, 0')

    g('s_waitcnt lgkmcnt(0)')
    if 'bq' in opts:
        g('s_barrier')
    g(f's_cmp_ge_u32 {sWAVE}, 4')
    g('s_cbranch_scc0 L_e_nb')
    g(f's_cmp_ge_u32 {sR}, 16')
    g('s_cbranch_scc1 L_e_b')
    if 'fulldma' in opts:
        g(f's_sub_u32 s58, {sWAVE}, 4')
        dma('s58')
    if 'halfdma' in opts or 'fulldma' in opts:
        dma()
    g('s_branch L_e_nb')
    g.label('L_e_b')
    if 'wukb0' not in opts:
        wuk_dma()
    g.label('L_e_nb')
    g('s_waitcnt lgkmcnt(0)')
    g(f'global_load_dword v2, v1, {WS} sc1')
    g(f's_cmp_eq_u32 {sWAVE}, 3')
    g('s_cbranch_scc0 L_nw7')
    g(f's_and_b32 s48, {sR}, 15')
    g('s_lshl_b32 s48, s48, 10')
    g('s_add_u32 s48, s48, 8192')
    g(f's_min_u32 s48, s48, L_codeend-{KN}-1088')
    g('s_add_u32 s42, s42, s48')
    g('s_addc_u32 s43, s43, 0')
    g('global_load_dwordx4 v[236:239], v3, s[42:43]')
    g.label('L_nw7')
    g(f's_cmp_ge_u32 {sR}, 16')
    g('s_cbranch_scc0 L_pre')
    g.label('L_e_tag')
    g(f's_cmp_eq_u32 {sWAVE}, 2')
    g('s_cbranch_scc0 L_b0')
    g('s_waitcnt vmcnt(0)')
    own_tag(g, 2)
    g('s_getreg_b32 s48, hwreg(HW_REG_XCC_ID)')
    g('s_and_b32 s48, s48, 0xf')
    g('v_mov_b32 v12, s48')
    g(f'v_mov_b32 v15, {sTAG}')
    g(f's_lshl_b32 s48, {sXCD}, 5')
    g(f's_add_u32 s48, s48, {sR}')
    g('s_lshl_b32 s48, s48, 4')
    g(f's_add_u32 s48, s48, {XID}')
    g('v_mov_b32 v16, s48')
    g('s_mov_b64 exec, 1')
    g(f'global_store_dwordx4 v16, v[12:15], {WS} sc1')
    g('s_mov_b64 exec, -1')
    g('s_branch L_b0')

    g.label('L_w0')
    g('v_lshlrev_b32 v4, 2, v0')
    g('v_min_u32 v5, 39, v0')
    g('v_lshlrev_b32 v5, 2, v5')
    g(f's_mul_i32 s48, {sJ}, 160')
    g('v_add_u32 v5, s48, v5')
    g('s_waitcnt lgkmcnt(0)')
    for k in range(5):
        g(f'global_load_dword v{10+k}, v4, {S_X} offset:{256*k}')
    g(f'global_load_dword v15, v5, {S_X}')
    g(f'global_load_dword v2, v1, {WS} sc1')
    g(f's_mov_b32 s52, {f2u(1.0/640):#x}')
    if 'bq' in opts:
        g('s_barrier')
    g('s_waitcnt vmcnt(2)')
    g.stamp(1)
    for k in range(5):
        g(f'v_lshlrev_b32 v{16+2*k}, 16, v{10+k}')
        g(f'v_and_b32 v{17+2*k}, 0xffff0000, v{10+k}')
    g('v_readfirstlane_b32 s53, v16')
    g.nop(4)
    for k in range(10):
        g(f'v_subrev_f32 v{16+k}, s53, v{16+k}')
    g('v_pk_mul_f32 v[26:27], v[16:17], v[16:17]')
    g('v_pk_add_f32 v[28:29], v[16:17], v[18:19]')
    for k in range(1, 5):
        g(f'v_pk_fma_f32 v[26:27], v[{16+2*k}:{17+2*k}], v[{16+2*k}:{17+2*k}], v[26:27]')
        if k >= 2:
            g(f'v_pk_add_f32 v[28:29], v[28:29], v[{16+2*k}:{17+2*k}]')
    g('v_add_f32 v27, v26, v27')
    g('v_add_f32 v26, v28, v29')
    g.wave_reduce([26, 27], [28, 29])
    ln_scalars(g, 26, 27, 's53', 28, 29, 30)
    g('s_waitcnt vmcnt(1)')
    g('v_lshlrev_b32 v16, 16, v15')
    g('v_and_b32 v17, 0xffff0000, v15')
    g('v_sub_f32 v16, v16, v28')
    g('v_sub_f32 v17, v17, v28')
    g('v_cvt_pk_bf16_f32 v18, v16, v17')
    g('v_lshlrev_b32 v16, 16, v18')
    g('v_and_b32 v17, 0xffff0000, v18')
    g('v_mul_f32 v16, v16, v29')
    g('v_mul_f32 v17, v17, v29')
    g('v_cvt_pk_bf16_f32 v18, v16, v17')
    g(f'ds_write_b32 v4, v18 offset:{L_XN}')
    g('s_waitcnt lgkmcnt(0)')
    g.stamp(2)
    g('s_barrier')
    g('s_waitcnt vmcnt(0)')
    own_tag(g, 2)
    g(f's_cmp_ge_u32 {sR}, 16')
    g('s_cbranch_scc1 L_pathB')
    g('s_branch L_pre0')

    g.label('L_w1')
    g(f's_mov_b32 s49, {20*8192}')
    g('v_mul_lo_u32 v8, v6, s49')
    g('v_lshl_add_u32 v8, v7, 4, v8')
    g(f's_mul_i32 s48, {sJ}, {80*8192}')
    g(f's_lshl_b32 s49, {sH}, 8')
    g('s_add_u32 s48, s48, s49')
    g('s_waitcnt lgkmcnt(0)')
    g.addr('s[40:41]', S_WQ, 's48')
    for t in range(20):
        g(f'global_load_dwordx4 v[{80+4*t}:{83+4*t}], v8, s[40:41] nt')
        if t < 19:
            g('s_add_u32 s40, s40, 8192')
            g('s_addc_u32 s41, s41, 0')
    g(f'global_load_dword v2, v1, {WS} sc1')
    if 'bq' in opts:
        g('s_barrier')
    g.stamp(1)
    gen_sel(g, 192, 16, 17)
    g(f's_lshl_b32 s48, {sH}, 3')
    g(f's_add_u32 s48, s48, {sJ}')
    g('s_lshl_b32 s48, s48, 10')
    g(f's_add_u32 s49, s48, {Q1L}')
    g.addr('s[44:45]', S_WS, 's49')
    g(f's_add_u32 s49, s48, {Q1G}')
    g.addr('s[46:47]', S_WS, 's49')
    g('v_mul_u32_u24 v19, 40, v6')
    g('s_mov_b32 s56, 0')
    g('s_mov_b32 s57, -1')
    g('s_barrier')
    for k in range(5):
        g(f'ds_read_b64 v[{16+2*k}:{17+2*k}], v19 offset:{L_XN+8*k}')
    g('s_waitcnt lgkmcnt(0)')

    def perms(t):
        a = 160 + 4 * (t % 4)
        for v in range(4):
            g(f'v_perm_b32 v{a+v}, v{16+t//2}, v{16+t//2}, v{192+2*v+(t&1)}')
    perms(0)
    perms(1)
    for t in range(20):
        if t + 2 < 20:
            perms(t + 2)
        g(f's_waitcnt vmcnt({19-t+1})')
        a = 160 + 4 * (t % 4)
        c = '0' if t == 0 else 'v[200:203]'
        g(f'v_mfma_f32_16x16x32_bf16 v[200:203], v[{a}:{a+3}], v[{80+4*t}:{83+4*t}], {c}')
        if t == 17:
            pass
    g('s_waitcnt vmcnt(0)')
    g(f'v_readfirstlane_b32 {sTAG}, v2')
    g.nop(4)
    g(f's_mul_i32 {sTAG}, {sTAG}, 5')
    g(f's_add_u32 {sTAG}, {sTAG}, 0x9E3779B9')
    g(f'v_mov_b32 v207, {sTAG}')
    g('v_cndmask_b32 v204, v200, v202, s[56:57]')
    g('v_cndmask_b32 v205, v201, v203, s[56:57]')
    if 'q1g' not in opts:
        g(f'global_store_dwordx4 v3, v[204:207], s[44:45]')
    g(f'global_store_dwordx4 v3, v[204:207], s[46:47] sc1')
    g.stamp(2)
    g(f's_cmp_ge_u32 {sR}, 16')
    g('s_cbranch_scc1 L_pathB')
    g('s_branch L_bp1')

    g.label('L_b0')
    g('s_barrier')
    g('s_waitcnt vmcnt(0)')
    own_tag(g, 2)
    if 'wukb0' in opts:
        g(f's_cmp_ge_u32 {sWAVE}, 4')
        g('s_cbranch_scc0 L_pathB')
        wuk_dma()
        g('s_waitcnt vmcnt(0)')
    g('s_branch L_pathB')

    g.label('L_pre')
    pre(tagwait=True)
    g(f's_cmp_eq_u32 {sWAVE}, 2')
    g('s_cbranch_scc0 L_pre_nx')
    g('s_getreg_b32 s48, hwreg(HW_REG_XCC_ID)')
    g('s_and_b32 s48, s48, 0xf')
    g('v_mov_b32 v12, s48')
    g(f'v_mov_b32 v15, {sTAG}')
    g(f's_lshl_b32 s48, {sXCD}, 5')
    g(f's_add_u32 s48, s48, {sR}')
    g('s_lshl_b32 s48, s48, 4')
    g(f's_add_u32 s48, s48, {XID}')
    g('v_mov_b32 v16, s48')
    g('s_mov_b64 exec, 1')
    g(f'global_store_dwordx4 v16, v[12:15], {WS} sc1')
    g('s_mov_b64 exec, -1')
    g.label('L_pre_nx')
    g('s_barrier')
    g.label('L_bp')
    g('s_barrier')
    if 'halfdma' in opts:
        g(f's_cmp_ge_u32 {sWAVE}, 4')
        g('s_cbranch_scc1 L_a_dmadone')
    if 'fulldma' not in opts:
        dma()
    g.stamp(13)
    g('s_branch L_a_dmadone')
    g.label('L_pre0')
    pre()
    g('s_branch L_bp')
    g.label('L_bp1')
    g('s_barrier')
    if 'fulldma' not in opts:
        dma()
    g.stamp(13)
    pre()
    g.label('L_a_dmadone')
    g(f's_cmp_eq_u32 {sWAVE}, 3')
    g('s_cbranch_scc0 L_a_nochk')
    g(f's_lshl_b32 s48, {sXCD}, 9')
    g(f's_add_u32 s48, s48, {XID}')
    g('v_and_b32 v9, 31, v0')
    g('v_lshlrev_b32 v9, 4, v9')
    g('v_add_u32 v9, s48, v9')
    g('s_getreg_b32 s52, hwreg(HW_REG_XCC_ID)')
    g('s_and_b32 s52, s52, 0xf')
    g('s_mov_b32 s50, 0')
    g(f's_mov_b32 {sMODE}, 0')
    g.label('L_a_chk')
    g(f'global_load_dwordx4 v[12:15], v9, {WS} sc1')
    g('s_add_u32 s50, s50, 1')
    g('s_waitcnt vmcnt(0)')
    g(f'v_cmp_eq_u32 vcc, {sTAG}, v15')
    g('s_cmp_eq_u64 vcc, exec')
    g('s_cbranch_scc1 L_a_chk_ok')
    g('s_cmp_lt_u32 s50, 64')
    g('s_cbranch_scc1 L_a_chk')
    g('s_branch L_a_chk_done')
    g.label('L_a_chk_ok')
    g('v_cmp_eq_u32 vcc, s52, v12')
    g('s_cmp_eq_u64 vcc, exec')
    g(f's_cselect_b32 {sMODE}, 1, 0')
    g.label('L_a_chk_done')
    g(f'v_mov_b32 v12, {sMODE}')
    g(f'ds_write_b32 v1, v12 offset:{L_MODE}')
    g.label('L_a_nochk')
    wuv_ins = []
    for tt in range(4):
        wuv_ins.append(f'global_load_dwordx4 v[{64+4*tt}:{67+4*tt}], v254, s[96:97]' + ('' if 'helper' in opts else ' nt'))
        if tt < 3:
            wuv_ins.append('s_add_u32 s96, s96, 32768')
            wuv_ins.append('s_addc_u32 s97, s97, 0')
    g('s_waitcnt vmcnt(0) lgkmcnt(0)')
    g.stamp(3)
    g('s_barrier')
    FA = 96
    skip = g.uniq('skipfa')
    g(f's_cmp_lt_u32 {sWAVE}, 4')
    g(f's_cbranch_scc0 {skip}')
    for t in range(16):
        g(f'ds_read_b128 v[{FA+4*t}:{FA+4*t+3}], v{36+(t%4)} offset:{256*(t//4)}')
    g.label(skip)
    g(f'ds_read_b32 v12, v1 offset:{L_MODE}')
    g(f's_mov_b32 s63, {f2u(KAPPA):#x}')
    g.poll2('qa', [(f'global_load_dwordx4 v[{16+4*i}:{19+4*i}], v248, {WS} offset:{1024*i} sc1', 19 + 4 * i, None) for i in range(4)], MA, 10, 11)
    for i in range(4):
        g(f'ds_write_b64 v{44+(i>>1)}, v[{16+4*i}:{17+4*i}] offset:{512*(i&1)}')
    g.stamp(4)
    g('s_waitcnt lgkmcnt(0)')
    g(f'v_readfirstlane_b32 {sMODE}, v12')
    g('s_barrier')
    g(f's_cmp_ge_u32 {sWAVE}, 4')
    g('s_cbranch_scc1 L_a_v')
    g.begin_tail()
    g.label('L_a_v')
    g(f's_and_b32 s49, {sWAVE}, 3')
    g('s_lshl_b32 s49, s49, 14')
    g(f's_add_u32 m0, s49, {L_TILE}')
    g.nop(1)

    def vdma(n0, n1):
        for n in range(n0, n1):
            g('global_load_lds_dwordx4 v41, s[98:99]')
            if n < 15:
                g('s_add_u32 m0, m0, 1024')
                g('s_add_u32 s98, s98, 8192')
                g('s_addc_u32 s99, s99, 0')
    vdma(0, 8)
    g('s_barrier')
    vdma(8, 16)
    g('s_waitcnt vmcnt(0)')
    g.stamp(6)
    g('s_barrier')
    VT = 96
    for kr in range(8):
        for s2 in range(2):
            for h in range(2):
                d = VT + 8 * kr + 4 * s2 + 2 * h
                g(f'ds_read_b64_tr_b16 v[{d}:{d+1}], v40 offset:{2048*(4*kr+2*s2+h)}')
    g(f'v_mov_b32 v51, {sTAG}')
    if 'px4' in opts:
        g('s_waitcnt lgkmcnt(0)')
        g('s_branch L_a_bxg')
    else:
        g('s_branch L_a_px')
    g.end_tail()
    qreg = [192 + 4 * t for t in range(8)] + [16 + 4 * t for t in range(4)] + [80 + 4 * t for t in range(4)]
    for t in range(16):
        g(f'ds_read_b128 v[{qreg[t]}:{qreg[t]+3}], v{32+(t%4)} offset:{L_QL+256*(t//4)}')
    g(f'v_mov_b32 v63, {sTAG}')
    for t in range(16):
        g(f's_waitcnt lgkmcnt({15-t})')
        c = '0' if t == 0 else 'v[48:51]'
        g(f'v_mfma_f32_16x16x32_bf16 v[48:51], v[{FA+4*t}:{FA+4*t+3}], v[{qreg[t]}:{qreg[t]+3}], {c}')
    g.nop(8)
    g('v_max_f32 v52, v48, v49')
    g('v_max3_f32 v52, v52, v50, v51')
    g.row_reduce([52], [53], 'max')
    g(f'ds_write_b32 v47, v52 offset:{L_MB}')
    g('s_waitcnt lgkmcnt(0)')
    g('s_barrier')
    g.stamp(12)
    g(f'ds_read_b128 v[52:55], v46 offset:{L_MB}')
    g('s_waitcnt lgkmcnt(0)')
    g('v_max_f32 v52, v52, v53')
    g('v_max3_f32 v52, v52, v54, v55')
    g('v_mul_f32 v62, s63, v52')
    for k in range(4):
        g(f'v_fma_f32 v{48+k}, v{48+k}, s63, -v62')
    for k in range(4):
        g(f'v_exp_f32 v{48+k}, v{48+k}')
    g.nop(1)
    g('v_cvt_pk_bf16_f32 v60, v48, v49')
    g('v_cvt_pk_bf16_f32 v61, v50, v51')
    mode_store(g, [f'global_store_dwordx4 v58, v[60:63], {WS}'], sMODE)
    g.stamp(5)
    if 'px4' in opts:
        PR = [16 + 4 * i for i in range(4)] + [64 + 4 * i for i in range(4)]
        g('v_add_u32 v247, 16384, v246') if False else None
        g('v_add_u32 v252, 16384, v246')
        g.poll2('px', [(f'global_load_dwordx4 v[{PR[i]}:{PR[i]+3}], {"v246" if i < 4 else "v252"}, {WS} offset:{1024*(i%4)} sc1', PR[i] + 3, None) for i in range(8)],
                MA, 10, 11, hook=lambda: g('s_barrier'))
        for i in range(8):
            g(f'ds_write_b64 v56, v[{PR[i]}:{PR[i]+1}] offset:{8192*(i>>2)+1024*((i&3)>>1)+8*(i&1)}')
        g.set_exec(0xffff)
        g('ds_write_b32 v59, v18')
        g('ds_write_b32 v59, v66 offset:16')
        g('s_mov_b64 exec, -1')
        g.stamp(10)
        g('s_waitcnt lgkmcnt(0)')
        g.label('L_a_bxg')
        g('s_barrier')
    else:
        g('s_barrier')
        g.label('L_a_px')
        g.poll2('px', [(f'global_load_dwordx4 v[{16+4*i}:{19+4*i}], v246, {WS} offset:{1024*i} sc1', 19 + 4 * i, None) for i in range(4)], MA, 10, 11)
        for i in range(4):
            g(f'ds_write_b64 v56, v[{16+4*i}:{17+4*i}] offset:{1024*(i>>1)+8*(i&1)}')
        g.set_exec(0xffff)
        g('ds_write_b32 v59, v18')
        g('s_mov_b64 exec, -1')
        g.stamp(10)
        g('s_waitcnt lgkmcnt(0)')
        g('s_barrier')
    BF = 160

    def pv(lwave):
        g('ds_read_b128 v[32:35], v43')
        g('ds_read_b128 v[36:39], v43 offset:16')
        def bread(q):
            g(f'ds_read_b128 v[{BF+4*q}:{BF+4*q+3}], v42 offset:{1024*q}')
        for q in range(12):
            bread(q)
        if lwave:
            for k in range(4):
                g(f'v_mov_b32 v{88+k}, 0x3f803f80')
        g('s_waitcnt lgkmcnt(12)')
        g('v_max3_f32 v20, v32, v33, v34')
        g('v_max3_f32 v20, v20, v35, v36')
        g('v_max3_f32 v20, v20, v37, v38')
        g('v_max_f32 v20, v20, v39')
        for k in range(8):
            g(f'v_sub_f32 v{32+k}, v{32+k}, v20')
        DS = [224, 228, 232]
        nf = 1 if lwave else 4

        def fma(k):
            d = DS[k % 3]
            for r in range(nf):
                if k == 0:
                    g(f'v_mul_f32 v{236+r}, v{d+r}, v32')
                else:
                    g(f'v_fma_f32 v{236+r}, v{d+r}, v{32+k}, v{236+r}')
        for k in range(8):
            g(f's_waitcnt lgkmcnt({min(10, 14-2*k)})')
            d = DS[k % 3]
            for s2 in range(2):
                a = '88:91' if lwave else f'{VT+8*k+4*s2}:{VT+8*k+4*s2+3}'
                c = '0' if s2 == 0 else f'v[{d}:{d+3}]'
                g(f'v_mfma_f32_16x16x32_bf16 v[{d}:{d+3}], v[{a}], v[{BF+8*k+4*s2}:{BF+8*k+4*s2+3}], {c}')
            if k < 2:
                bread(12 + 2 * k)
                bread(13 + 2 * k)
            g(f'v_exp_f32 v{32+k}, v{32+k}')
            if k >= 2:
                fma(k - 2)
                if lwave:
                    g.nop(3)
        if lwave:
            g.nop(4)
        fma(6)
        if lwave:
            g.nop(4)
        else:
            g.nop(1)
        fma(7)

    g(f's_cmp_lt_u32 {sWAVE}, 4')
    g('s_cbranch_scc1 L_a_lw')
    g.begin_tail()
    g.label('L_a_lw')
    g(f's_cmp_eq_u32 {sWAVE}, 0')
    g('s_cbranch_scc0 L_a_w2')
    g('s_cmp_eq_u32 s58, 0')
    g('s_cbranch_scc0 L_a_w2')
    pv(True)
    g('v_mov_b32 v21, v236')
    g(f'v_mov_b32 v23, {sTAG}')
    g.set_exec(0xffff)
    g(f'global_store_dwordx4 v250, v[20:23], {WS} sc1')
    g('s_mov_b64 exec, -1')
    g.label('L_a_w2')
    if 'wuvlate' not in opts:
        for ins in wuv_ins:
            g(ins)
    g('s_branch L_a_s4')
    g.end_tail()
    pv(False)
    g('v_cvt_pk_bf16_f32 v48, v236, v237')
    g('v_cvt_pk_bf16_f32 v49, v238, v239')
    g(f'global_store_dwordx4 v244, v[48:51], {WS} sc1')
    g.stamp(7)
    if 'wuvlate' not in opts:
        for ins in wuv_ins:
            g(ins)
    g.label('L_a_s4')
    g('s_barrier')
    if 'wuvlate' in opts:
        for ins in wuv_ins:
            g(ins)

    g.poll2('ox', [(f'global_load_dwordx4 v[16:19], v245, {WS} sc1', 19, None)], MA, 10, 11)
    g.stamp(8)
    g('v_max_f32_dpp v22, v16, v16 row_ror:4 row_mask:0xf bank_mask:0xf')
    g.nop(2)
    g('v_max_f32_dpp v22, v22, v22 row_ror:8 row_mask:0xf bank_mask:0xf')
    g.nop(1)
    g('v_mov_b32 v23, v22')
    g.nop(2)
    g('v_permlane16_swap_b32 v23, v22')
    g.nop(1)
    g('v_max_f32 v22, v22, v23')
    g('v_sub_f32 v24, v16, v22')
    g('v_exp_f32 v24, v24')
    g('v_permlane32_swap_b32 v16, v17')
    g.nop(1)
    g('v_mul_f32 v22, v24, v17')
    g('v_lshlrev_b32 v25, 16, v16')
    g('v_add_f32_dpp v22, v22, v22 row_ror:4 row_mask:0xf bank_mask:0xf')
    g('v_and_b32 v26, 0xffff0000, v16')
    g.nop(1)
    g('v_add_f32_dpp v22, v22, v22 row_ror:8 row_mask:0xf bank_mask:0xf')
    g.nop(1)
    g('v_mov_b32 v23, v22')
    g.nop(2)
    g('v_permlane16_swap_b32 v23, v22')
    g.nop(1)
    g('v_add_f32 v22, v22, v23')
    g('v_rcp_f32 v22, v22')
    g.nop(1)
    g('v_mul_f32 v24, v24, v22')
    g('v_mov_b32 v23, v24')
    g.nop(2)
    g('v_permlane32_swap_b32 v23, v24')
    g.nop(1)
    g('v_mul_f32 v25, v25, v24')
    g('v_mul_f32 v26, v26, v24')
    g.nop(2)
    g('v_permlane16_swap_b32 v25, v26')
    g.nop(1)
    g('v_add_f32 v25, v25, v26')
    g.nop(2)
    g('v_add_f32_dpp v25, v25, v25 row_ror:4 row_mask:0xf bank_mask:0xf')
    g.nop(2)
    g('v_add_f32_dpp v25, v25, v25 row_ror:8 row_mask:0xf bank_mask:0xf')
    g('v_cvt_pk_bf16_f32 v25, v25, v25')
    g.nop(2)

    def ands(tt):
        a = 84 + 4 * (tt % 2)
        for v in range(4):
            g(f'v_and_b32_dpp v{a+v}, v25, v{240+v} quad_perm:[{tt},{tt},{tt},{tt}] row_mask:0xf bank_mask:0xf')
    ands(0)
    for tt in range(4):
        if tt < 3:
            ands(tt + 1)
        else:
            g.nop(2)
        a = 84 + 4 * (tt % 2)
        c = '0' if tt == 0 else 'v[92:95]'
        g(f'v_mfma_f32_16x16x32_bf16 v[92:95], v[{a}:{a+3}], v[{64+4*tt}:{67+4*tt}], {c}')
    g.set_exec(0xffffffff)
    g.nop(6)
    g(f'ds_write_b128 v247, v[92:95] offset:{L_RED}')
    g('s_mov_b64 exec, -1')
    g('s_waitcnt lgkmcnt(0)')
    g('s_barrier')
    g(f's_cmp_eq_u32 {sWAVE}, 0')
    g('s_cbranch_scc0 L_a_red')
    for w in range(8):
        g(f'ds_read_b64 v[{32+2*w}:{33+2*w}], v57 offset:{L_RED+512*w}')
    g(f'v_mov_b32 v23, {sTAG}')
    g('s_waitcnt lgkmcnt(0)')
    g('v_pk_add_f32 v[32:33], v[32:33], v[34:35]')
    g('v_pk_add_f32 v[36:37], v[36:37], v[38:39]')
    g('v_pk_add_f32 v[40:41], v[40:41], v[42:43]')
    g('v_pk_add_f32 v[44:45], v[44:45], v[46:47]')
    g('v_pk_add_f32 v[32:33], v[32:33], v[36:37]')
    g('v_pk_add_f32 v[40:41], v[40:41], v[44:45]')
    g('v_pk_add_f32 v[32:33], v[32:33], v[40:41]')
    g('v_cvt_pk_bf16_f32 v20, v32, v33')
    g.nop(2)
    g('v_mov_b32_dpp v21, v20 row_shl:1 row_mask:0xf bank_mask:0xf')
    g.set_exec(0x5555555555555555)
    mode_store(g, [f'global_store_dwordx4 v253, v[20:23], {WS}'], sMODE)
    g('s_mov_b64 exec, -1')
    g.stamp(9)
    g.label('L_a_red')
    if 'wb' in opts:
        g(f's_cmp_eq_u32 {sWAVE}, 5')
        g('s_cbranch_scc0 L_a_nwb')
        g(f's_cmp_eq_u32 {sR}, 12')
        g('s_cbranch_scc0 L_a_nwb')
        g('buffer_wbl2 sc1')
        g('s_waitcnt vmcnt(0)')
        g.label('L_a_nwb')
    if stop_after == 4:
        g('s_branch L_fin')
    g(f's_cmp_eq_u32 {sWAVE}, 7')
    g('s_cbranch_scc0 L_fin')
    g(f's_cmp_lt_u32 {sR}, 10')
    g('s_cbranch_scc0 L_fin')
    g(f's_mul_i32 s55, {sXCD}, 10')
    g(f's_add_u32 s55, s55, {sR}')
    g('v_and_b32 v7, 3, v0')
    g('v_lshrrev_b32 v6, 5, v0')
    g('v_and_b32 v8, 1, v7')
    g('v_lshlrev_b32 v8, 2, v8')
    g('v_lshrrev_b32 v9, 1, v7')
    g('v_add_u32 v8, v8, v9')
    g('v_lshl_add_u32 v8, v6, 1, v8')
    g('s_lshl_b32 s48, s55, 3')
    g('v_add_u32 v31, s48, v8')
    g('v_lshlrev_b32 v31, 1, v31')
    g(f'global_load_ushort v30, v31, {S_X}')
    g('v_and_b32 v9, 7, v0')
    g('v_mul_u32_u24 v9, 2560, v9')
    g('v_bfe_u32 v10, v0, 3, 1')
    g('v_lshl_add_u32 v9, v10, 4, v9')
    g('s_lshr_b32 s48, s55, 4')
    g('s_lshl_b32 s48, s48, 9')
    g('s_and_b32 s49, s55, 15')
    g('s_lshl_b32 s49, s49, 5')
    g('s_add_u32 s48, s48, s49')
    g(f's_add_u32 s48, s48, {OUTP}')
    g('v_add_u32 v9, s48, v9')
    g('s_lshl_b32 s48, s55, 6')
    g(f's_add_u32 s48, s48, {O2P}')
    g('v_lshrrev_b32 v12, 2, v0')
    g('v_mul_u32_u24 v12, 5120, v12')
    g('v_lshl_add_u32 v12, v7, 4, v12')
    g('v_add_u32 v12, s48, v12')
    g(f'v_add_u32 v13, {16*5120}, v12')
    g(f'v_add_u32 v14, {32*5120}, v12')
    g(f'v_add_u32 v15, {48*5120}, v12')
    g(f'v_mov_b32 v44, {sTAG}')
    g('v_mov_b32 v46, 0')
    g('v_mov_b32 v47, 0')
    g(f'v_mov_b32 v19, {sTAG}')
    g('v_mov_b32 v16, 0')
    g('v_mov_b32 v17, 0')
    g('v_lshrrev_b32 v28, 2, v8')
    g('v_lshlrev_b32 v28, 5, v28')
    g('v_and_b32 v29, 3, v8')
    g.poll2('hf', [(f'global_load_dwordx4 v[16:19], v9, {WS} sc1', 19, 0xffff)], MA, 10, 11)
    g('v_lshlrev_b32 v20, 16, v16')
    g('v_and_b32 v21, 0xffff0000, v16')
    g('v_lshlrev_b32 v22, 16, v17')
    g('v_and_b32 v23, 0xffff0000, v17')
    for ctl in ['quad_perm:[1,0,3,2]', 'quad_perm:[2,3,0,1]', 'row_half_mirror']:
        g.nop(1)
        for k in range(4):
            g(f'v_add_f32_dpp v{20+k}, v{20+k}, v{20+k} {ctl} row_mask:0xf bank_mask:0xf')
    g.nop(1)
    for k in range(4):
        g(f'ds_bpermute_b32 v{24+k}, v28, v{20+k}')
    g('s_waitcnt lgkmcnt(0)')
    g('v_cmp_eq_u32 vcc, 1, v29')
    g.nop(1)
    g('v_cndmask_b32 v24, v24, v25, vcc')
    g('v_cmp_eq_u32 vcc, 2, v29')
    g.nop(1)
    g('v_cndmask_b32 v24, v24, v26, vcc')
    g('v_cmp_eq_u32 vcc, 3, v29')
    g.nop(1)
    g('v_cndmask_b32 v16, v24, v27, vcc')
    rnd_bf16(g, 16)
    g('v_lshlrev_b32 v30, 16, v30')
    g('v_add_f32 v30, v30, v16')
    rnd_bf16(g, 30)
    g.poll2('o2', [(f'global_load_dwordx4 v[{32+4*i}:{35+4*i}], v{12+i}, {WS} sc1', 32 + 4 * i, None) for i in range(3)] +
            [(f'global_load_dwordx4 v[44:47], v15, {WS} sc1', 44, 0xffffff)], MA, 10, 11)
    g.stamp(9)
    g('v_pk_add_f32 v[16:17], v[34:35], v[38:39]')
    g('v_pk_add_f32 v[18:19], v[42:43], v[46:47]')
    g('v_pk_add_f32 v[16:17], v[16:17], v[18:19]')
    g.nop(2)
    g('v_permlane32_swap_b32 v16, v17')
    g.nop(1)
    g('v_add_f32 v16, v16, v17')
    g('v_mov_b32 v17, v16')
    g.nop(2)
    g('v_permlane16_swap_b32 v17, v16')
    g.nop(1)
    g('v_add_f32 v16, v16, v17')
    g.nop(2)
    g('v_add_f32_dpp v16, v16, v16 row_ror:4 row_mask:0xf bank_mask:0xf')
    g.nop(2)
    g('v_add_f32_dpp v16, v16, v16 row_ror:8 row_mask:0xf bank_mask:0xf')
    rnd_bf16(g, 16)
    g('v_add_f32 v16, v16, v30')
    g('v_cvt_pk_bf16_f32 v16, v16, v16')
    g('s_mov_b32 exec_lo, 0xf')
    g('s_mov_b32 exec_hi, 0xf')
    g(f'global_store_short v31, v16, {S_OUT}')
    g('s_mov_b64 exec, -1')
    g('s_cmp_eq_u32 s55, 0')
    g('s_cbranch_scc0 L_fin')
    g('s_mov_b64 exec, 1')
    g(f'v_mov_b32 v2, {sTAG}')
    g(f'global_store_dword v1, v2, {WS} sc1')
    g('s_mov_b64 exec, -1')
    g('s_branch L_fin')

    g.label('L_pathB')
    g(f's_sub_u32 s54, {sR}, 16')
    g('s_lshr_b32 s48, s54, 2')
    g(f's_lshl_b32 s49, {sXCD}, 2')
    g('s_add_u32 s55, s48, s49')
    g(f's_cmp_eq_u32 {sWAVE}, 0')
    g('s_cbranch_scc0 L_b1')
    g('s_lshl_b32 s48, s55, 13')
    g(f's_add_u32 s49, s48, {Q1L}')
    g.addr('s[40:41]', S_WS, 's49')
    g(f's_add_u32 s49, s48, {Q1G}')
    g.addr('s[42:43]', S_WS, 's49')
    g('v_add_u32 v4, 4096, v3')
    g('v_and_b32 v14, 1, v6')
    g('v_lshlrev_b32 v14, 3, v14')
    g('v_lshl_add_u32 v14, v7, 4, v14')
    g('v_lshrrev_b32 v15, 1, v6')
    g('v_lshl_add_u32 v14, v15, 2, v14')
    g.poll2('q1', [(f'global_load_dwordx4 v[{32+4*k}:{35+4*k}], {"v3" if k < 4 else "v4"}, {{base}} offset:{1024*(k%4)} sc1', 35 + 4 * k, None) for k in range(8)],
            MQ, 10, 11, alt=('s[42:43]', 's[42:43]') if 'q1g' in opts else ('s[40:41]', 's[42:43]'))
    g.stamp(3)
    g('v_pk_add_f32 v[12:13], v[32:33], v[36:37]')
    g('v_pk_add_f32 v[10:11], v[40:41], v[44:45]')
    g('v_pk_add_f32 v[16:17], v[48:49], v[52:53]')
    g('v_pk_add_f32 v[18:19], v[56:57], v[60:61]')
    g('v_pk_add_f32 v[12:13], v[12:13], v[10:11]')
    g('v_pk_add_f32 v[16:17], v[16:17], v[18:19]')
    g('v_pk_add_f32 v[12:13], v[12:13], v[16:17]')
    g('v_cvt_pk_bf16_f32 v12, v12, v13')
    g(f'ds_write_b32 v14, v12 offset:{L_QB}')
    g('s_waitcnt lgkmcnt(0)')
    g('s_barrier')
    g('s_branch L_b2')
    g.label('L_b1')
    g('s_lshl_b32 s48, s55, 11')
    g('s_and_b32 s49, s54, 3')
    g('s_lshl_b32 s49, s49, 9')
    g('s_add_u32 s48, s48, s49')
    g(f's_and_b32 s49, {sWAVE}, 3')
    g('s_lshl_b32 s49, s49, 7')
    g('s_add_u32 s48, s48, s49')
    g(f's_add_u32 s48, s48, {QA}')
    g('v_lshlrev_b32 v9, 4, v6')
    g('v_lshl_add_u32 v104, v7, 6, v9')
    g('v_add_u32 v104, s48, v104')
    g(f'v_mov_b32 v103, {sTAG}')
    g('s_mov_b32 s56, 0x00020002')
    g('s_mov_b32 s57, 0x00020002')
    g(f's_cmp_ge_u32 {sWAVE}, 4')
    g('s_cbranch_scc0 L_b1x')
    g.begin_tail()
    g.label('L_b1x')
    g('s_barrier')
    g('s_branch L_b2')
    g.end_tail()
    g(f's_and_b32 s49, {sWAVE}, 3')
    g('s_lshl_b32 s49, s49, 13')
    g(f's_add_u32 s49, s49, {L_TILE}')
    g('v_lshl_add_u32 v12, v7, 8, s49')
    for t in range(4):
        g(f'v_add_u32 v13, {4*t}, v6')
        g('v_xor_b32 v13, v13, v7')
        g('v_lshl_add_u32 v13, v13, 4, v12')
        for tau in range(2):
            g(f'ds_read_b128 v[{64+16*tau+4*t}:{67+16*tau+4*t}], v13 offset:{4096*tau}')
    g('s_waitcnt lgkmcnt(0)')
    g('s_barrier')
    for t in range(4):
        g(f'ds_read_b128 v[{108+4*t}:{111+4*t}], v9 offset:{L_QB+64*t}')
    for t in range(4):
        g(f's_waitcnt lgkmcnt({3-t})')
        for tau in range(2):
            c = '0' if t == 0 else f'v[{96+8*tau}:{99+8*tau}]' if False else ('0' if t == 0 else f'v[{124+4*tau}:{127+4*tau}]')
            g(f'v_mfma_f32_16x16x32_bf16 v[{124+4*tau}:{127+4*tau}], v[{64+16*tau+4*t}:{67+16*tau+4*t}], v[{108+4*t}:{111+4*t}], {c}')
    g('s_mov_b32 exec_lo, 0x00030003')
    g('s_mov_b32 exec_hi, 0x00030003')
    g.nop(6)
    g('v_cvt_pk_bf16_f32 v96, v124, v125')
    g('v_cvt_pk_bf16_f32 v97, v126, v127')
    g('v_cvt_pk_bf16_f32 v98, v128, v129')
    g('v_cvt_pk_bf16_f32 v99, v130, v131')
    g('v_cndmask_b32 v100, v96, v98, s[56:57]')
    g('v_cndmask_b32 v101, v97, v99, s[56:57]')
    g(f'global_store_dwordx4 v104, v[100:103], {WS} sc1')
    g('s_mov_b64 exec, -1')
    g.stamp(4)
    g.label('L_b2')
    if stop_after in (2, 3, 4):
        g('s_branch L_fin')
    if 'pace' in opts or 'paceml' in opts:
        g(f's_cmp_eq_u32 {sWAVE}, 0')
        g('s_cbranch_scc0 L_b2p')
        if 'paceml' in opts:
            g('s_cmp_lt_u32 s54, 5')
            g('s_cbranch_scc1 L_b2p')
        g('v_lshrrev_b32 v12, 1, v0')
        g('v_lshlrev_b32 v12, 11, v12')
        g('v_and_b32 v13, 1, v0')
        g('v_lshl_add_u32 v12, v13, 10, v12')
        g(f'v_add_u32 v12, {QA + 1008}, v12')
        g('s_mov_b32 s50, 0')
        g.label('L_b2q')
        g(f'global_load_dwordx4 v[16:19], v12, {WS} sc1')
        g('s_add_u32 s50, s50, 1')
        g('s_waitcnt vmcnt(0)')
        g(f'v_cmp_ne_u32 vcc, {sTAG}, v19')
        g('s_cmp_eq_u64 vcc, 0')
        g('s_cbranch_scc1 L_b2p')
        g('s_cmp_lt_u32 s50, 64')
        g('s_cbranch_scc1 L_b2q')
        g.label('L_b2p')
    if 'pacepf' in opts:
        g(f's_cmp_eq_u32 {sWAVE}, 0')
        g('s_cbranch_scc0 L_b2u')
        g('s_cmp_lt_u32 s54, 5')
        g('s_cbranch_scc1 L_b2u')
        g(f's_lshl_b32 s48, {sXCD}, 8')
        g(f's_add_u32 s48, s48, {PF}')
        g('v_and_b32 v12, NPF, v0'.replace('NPF', str(int([o for o in opts if o.startswith('npf')][0][3:]) - 1 if any(o.startswith('npf') for o in opts) else 3)))
        g('v_lshl_add_u32 v12, v12, 4, s48')
        g('s_mov_b32 s50, 0')
        g.label('L_b2t')
        g(f'global_load_dwordx4 v[16:19], v12, {WS} sc1')
        g('s_add_u32 s50, s50, 1')
        g('s_waitcnt vmcnt(0)')
        g(f'v_cmp_ne_u32 vcc, {sTAG}, v19')
        g('s_cmp_eq_u64 vcc, 0')
        g('s_cbranch_scc1 L_b2u')
        g('s_cmp_lt_u32 s50, 256')
        g('s_cbranch_scc1 L_b2t')
        g.label('L_b2u')
    if 'pacemll' in opts:
        g(f's_cmp_eq_u32 {sWAVE}, 0')
        g('s_cbranch_scc0 L_b2r')
        g('s_cmp_lt_u32 s54, 5')
        g('s_cbranch_scc1 L_b2r')
        g(f's_lshl_b32 s48, {sXCD}, 12')
        g(f's_add_u32 s48, s48, {MLL}')
        g('v_add_u32 v12, s48, v3')
        g('s_mov_b32 s50, 0')
        g.label('L_b2s')
        g(f'global_load_dwordx4 v[16:19], v12, {WS} sc1')
        g('s_add_u32 s50, s50, 1')
        g('s_waitcnt vmcnt(0)')
        g(f'v_cmp_ne_u32 vcc, {sTAG}, v19')
        g('s_cmp_eq_u64 vcc, 0')
        g('s_cbranch_scc1 L_b2r')
        g('s_cmp_lt_u32 s50, 256')
        g('s_cbranch_scc1 L_b2s')
        g.label('L_b2r')
    g('s_barrier')
    g.stamp(5)
    g('v_lshrrev_b32 v8, 3, v7')
    g('v_and_b32 v9, 7, v0')
    g('v_lshl_add_u32 v10, v8, 2, v6')
    g('s_cmp_lt_u32 s54, 5')
    g('s_cbranch_scc1 L_b_wo')
    if 'helper' in opts:
        g('s_cmp_ge_u32 s54, 12')
        g('s_cbranch_scc1 L_b_help')
        g('s_sub_u32 s48, s54, 5')
        g(f's_mul_i32 s49, {sXCD}, 7')
        g('s_add_u32 s58, s49, s48')
        g('s_cmp_lt_u32 s58, 54')
        g('s_cbranch_scc0 L_fin')
        g('s_branch L_b_mlpld')
        g.label('L_b_help')
        g('s_sub_u32 s48, s54, 12')
        g(f's_lshl_b32 s49, {sXCD}, 2')
        g('s_add_u32 s48, s48, s49')
        g('s_lshl_b32 s48, s48, 8')
        g(f's_lshl_b32 s49, {sWAVE}, 19')
        g('s_add_u32 s48, s48, s49')
        g.addr('s[40:41]', S_WUV, 's48')
        g('v_lshlrev_b32 v11, 13, v6')
        g('v_lshl_add_u32 v11, v7, 4, v11')
        for t in range(16):
            g(f'global_load_dwordx4 v[{64+4*t}:{67+4*t}], v11, s[40:41]')
            if t < 15:
                g('s_add_u32 s40, s40, 32768')
                g('s_addc_u32 s41, s41, 0')
        g('s_waitcnt vmcnt(0)')
        g.stamp(6)
        g('s_branch L_fin')
    else:
        g('s_sub_u32 s48, s54, 5')
        g('s_lshr_b32 s49, s48, 1')
        g('s_lshl_b32 s49, s49, 3')
        g(f's_add_u32 s49, s49, {sXCD}')
        g('s_cmp_lt_u32 s49, 27')
        g('s_cbranch_scc0 L_fin')
        g('s_lshl_b32 s49, s49, 1')
        g('s_and_b32 s48, s48, 1')
        g('s_add_u32 s58, s49, s48')
        g('s_branch L_b_mlpld')
    g.label('L_b_wo')
    g(f's_lshl_b32 s48, {sXCD}, 3')
    g(f's_add_u32 s48, s48, {sWAVE}')
    g(f's_mul_i32 s48, s48, {64*1280}')
    g('s_lshl_b32 s49, s54, 8')
    g('s_add_u32 s48, s48, s49')
    g.addr('s[40:41]', S_WO, 's48')
    g('v_mul_u32_u24 v11, 1280, v6')
    g('v_lshl_add_u32 v11, v7, 4, v11')
    for t in range(16):
        g(f'global_load_dwordx4 v[{32+4*t}:{35+4*t}], v11, s[40:41] nt')
        if t < 15:
            g('s_add_u32 s40, s40, 5120')
            g('s_addc_u32 s41, s41, 0')
    gen_mask(g, 192, 16, 17)
    g(f's_lshr_b32 s48, {sWAVE}, 1')
    g('s_lshl_b32 s48, s48, 2')
    g(f's_lshl_b32 s49, {sXCD}, 4')
    g('s_add_u32 s48, s48, s49')
    g('s_lshl_b32 s48, s48, 9')
    g(f's_and_b32 s49, {sWAVE}, 1')
    g('s_lshl_b32 s49, s49, 8')
    g('s_add_u32 s48, s48, s49')
    g(f's_add_u32 s48, s48, {C4}')
    g('v_lshlrev_b32 v11, 9, v6')
    g('v_lshl_add_u32 v11, v7, 4, v11')
    g('v_add_u32 v11, s48, v11')
    g('v_lshlrev_b32 v26, 5, v7')
    g('v_lshl_add_u32 v26, v6, 4, v26')
    g(f's_lshl_b32 s48, {sWAVE}, 9')
    g('v_add_u32 v26, s48, v26')
    g('v_lshlrev_b32 v28, 3, v0')
    g(f's_mul_i32 s48, {sXCD}, 2560')
    g('s_lshl_b32 s49, s54, 9')
    g('s_add_u32 s48, s48, s49')
    g(f's_add_u32 s48, s48, {OUTP}')
    g('v_lshrrev_b32 v29, 1, v0')
    g('v_lshl_add_u32 v29, v29, 4, s48')
    g(f'v_mov_b32 v147, {sTAG}')
    if g.stamps:
        g.stamp(8)
        g('s_waitcnt vmcnt(0)')
        g.stamp(9)
    g.poll2('c4', [(f'global_load_dwordx4 v[16:19], v11, {WS} sc1', 19, None)], MB, 13, 14)
    g.stamp(6)
    g('v_lshlrev_b32 v20, 16, v16')
    g('v_and_b32 v21, 0xffff0000, v16')
    g('v_lshlrev_b32 v22, 16, v17')
    g('v_and_b32 v23, 0xffff0000, v17')
    g.nop(1)
    g('v_permlane32_swap_b32 v20, v22')
    g('v_permlane32_swap_b32 v21, v23')
    g.nop(1)
    g('v_add_f32 v20, v20, v22')
    g('v_add_f32 v21, v21, v23')
    g.nop(2)
    g('v_permlane16_swap_b32 v20, v21')
    g.nop(1)
    g('v_add_f32 v20, v20, v21')
    g('v_cvt_pk_bf16_f32 v20, v20, v20')
    g.nop(2)

    def wands(t):
        a = 224 + 4 * (t % 4)
        for v in range(4):
            g(f'v_and_b32_dpp v{a+v}, v20, v{192+v} row_newbcast:{t} row_mask:0xf bank_mask:0xf')
    wands(0)
    wands(1)
    for t in range(16):
        if t + 2 < 16:
            wands(t + 2)
        a = 224 + 4 * (t % 4)
        c = '0' if t == 0 else 'v[200:203]'
        g(f'v_mfma_f32_16x16x32_bf16 v[200:203], v[{a}:{a+3}], v[{32+4*t}:{35+4*t}], {c}')
    g.set_exec(0xffffffff)
    g.nop(6)
    g(f'ds_write_b128 v26, v[200:203] offset:{L_RED}')
    g('s_mov_b64 exec, -1')
    g('s_waitcnt lgkmcnt(0)')
    g('s_barrier')
    g(f's_cmp_eq_u32 {sWAVE}, 0')
    g('s_cbranch_scc0 L_fin')
    for w in range(8):
        g(f'ds_read_b64 v[{160+2*w}:{161+2*w}], v28 offset:{L_RED+512*w}')
    g('s_waitcnt lgkmcnt(0)')
    g('v_pk_add_f32 v[160:161], v[160:161], v[162:163]')
    g('v_pk_add_f32 v[164:165], v[164:165], v[166:167]')
    g('v_pk_add_f32 v[168:169], v[168:169], v[170:171]')
    g('v_pk_add_f32 v[172:173], v[172:173], v[174:175]')
    g('v_pk_add_f32 v[160:161], v[160:161], v[164:165]')
    g('v_pk_add_f32 v[168:169], v[168:169], v[172:173]')
    g('v_pk_add_f32 v[160:161], v[160:161], v[168:169]')
    g('v_cvt_pk_bf16_f32 v144, v160, v161')
    g.nop(2)
    g('v_mov_b32_dpp v145, v144 row_shl:1 row_mask:0xf bank_mask:0xf')
    g.set_exec(0x5555555555555555)
    g(f'global_store_dwordx4 v29, v[144:147], {WS} sc1')
    g('s_mov_b64 exec, -1')
    g.stamp(7)
    g('s_branch L_fin')

    def gemv(n, src, wbase, d, ab=224, reuse=False, keep=False):
        ns = n if keep else 4
        def pm(t):
            a = ab + 4 * (t % ns)
            for v in range(4):
                g(f'v_perm_b32 v{a+v}, v{src+t//2}, v{src+t//2}, v{192+2*v+(t&1)}')
        if not reuse:
            pm(0)
            if n > 1:
                pm(1)
        for t in range(n):
            if not reuse and t + 2 < n:
                pm(t + 2)
            a = ab + 4 * (t % ns)
            c = '0' if t == 0 else f'v[{d}:{d+3}]'
            g(f'v_mfma_f32_16x16x32_bf16 v[{d}:{d+3}], v[{a}:{a+3}], v[{wbase+4*t}:{wbase+4*t+3}], {c}')

    g.label('L_b_mlpld')
    if stop_after == 5:
        g('s_branch L_fin')
    gen_sel(g, 192, 16, 17)
    if 'mlrot' in opts:
        g('s_and_b32 s57, s58, 1')
        g('s_lshl_b32 s57, s57, 2')
        g(f's_add_u32 s57, s57, {sWAVE}')
        g('s_and_b32 s57, s57, 7')
    else:
        g(f's_mov_b32 s57, {sWAVE}')
    g('v_and_b32 v26, 1, v6')
    g('v_lshlrev_b32 v26, 2, v26')
    g('v_lshl_add_u32 v26, v9, 3, v26')
    g('v_lshrrev_b32 v27, 1, v6')
    g('v_add_u32 v26, v26, v27')
    g('v_lshlrev_b32 v26, 2, v26')
    g(f's_lshl_b32 s48, {sWAVE}, 8')
    g('v_add_u32 v26, s48, v26')
    g('v_cmp_le_u32 vcc, 4, v9')
    g('v_mov_b32 v12, s22')
    g('v_mov_b32 v13, s24')
    g('v_mov_b32 v14, s23')
    g('v_mov_b32 v15, s25')
    g('v_cndmask_b32 v12, v12, v13, vcc')
    g('v_cndmask_b32 v13, v14, v15, vcc')
    g('v_and_b32 v14, 3, v0')
    g('v_lshlrev_b32 v14, 4, v14')
    g('s_lshl_b32 s48, s58, 6')
    g(f's_mul_i32 s49, s57, {80*3456}')
    g('s_add_u32 s48, s48, s49')
    g('v_add_u32 v14, s48, v14')
    g(f'v_mul_u32_u24 v15, {8*3456}, v10')
    g('v_add_u32 v15, v15, v14')
    g(f'v_mul_u32_u24 v16, {2*3456}, v10')
    g('v_add_u32 v16, v16, v14')
    g(f'v_add_u32 v16, {64*3456}, v16')
    for t in range(10):
        if t == 0:
            src = 15
        elif t == 8:
            src = 16
        g(f'v_add_co_u32 v18, vcc, v12, v{src}')
        g.nop(2)
        g('v_addc_co_u32 v19, vcc, 0, v13, vcc')
        g(f'global_load_dwordx4 v[{64+4*t}:{67+4*t}], v[18:19], off' + ('' if 'gunt0' in opts else ' sc0 nt' if 'gusc0' in opts else ' nt'))
        g(f'v_add_u32 v{src}, 3456, v{src}')
    g('s_lshl_b32 s48, s58, 5')
    g(f's_mul_i32 s48, s48, 1280')
    g(f's_lshl_b32 s49, {sWAVE}, 7')
    g('s_add_u32 s48, s48, s49')
    g.addr('s[40:41]', S_WD, 's48')
    g(f'v_mul_u32_u24 v11, {4*1280}, v10')
    g('v_lshl_add_u32 v11, v9, 4, v11')
    for t in range(4):
        g(f'global_load_dwordx4 v[{104+4*t}:{107+4*t}], v11, s[40:41] offset:{1280*t} nt')
    g(f's_cmp_lt_u32 {sWAVE}, 2')
    g('s_cbranch_scc0 L_b_nod2')
    g('s_add_u32 s40, s40, 1024')
    g('s_addc_u32 s41, s41, 0')
    for t in range(4):
        g(f'global_load_dwordx4 v[{120+4*t}:{123+4*t}], v11, s[40:41] offset:{1280*t} nt')
    g.label('L_b_nod2')
    g(f's_lshl_b32 s48, {sWAVE}, 8')
    g('s_min_u32 s48, s48, 1024')
    g('v_and_b32 v17, 31, v0')
    g('v_lshlrev_b32 v17, 3, v17')
    g('v_lshrrev_b32 v29, 5, v0')
    g('v_lshl_add_u32 v17, v29, 2, v17')
    g('v_add_u32 v143, s48, v17')
    g(f'global_load_dword v140, v143, {S_X}')
    g(f'global_load_ushort v141, v1, {S_X}')
    g.stamp(6)
    g('s_waitcnt vmcnt(0)')
    g.stamp(7)
    g('v_lshlrev_b32 v141, 16, v141')
    g.nop(1)
    g('v_readfirstlane_b32 s53, v141')
    gen_mask(g, 220, 16, 17)
    for v in range(4):
        g(f'v_and_b32 v{220+v}, 0x3f803f80, v{220+v}')
    g.nop(2)
    for t in range(10):
        c = '0' if t == 0 else 'v[200:203]'
        g(f'v_mfma_f32_16x16x32_bf16 v[200:203], v[220:223], v[{64+4*t}:{67+4*t}], {c}')
    g.nop(8)
    class_combine(g, 200)
    g.set_exec(0x00ff00ff00ff00ff)
    g('ds_write2_b32 v26, v200, v202 offset0:0 offset1:2')
    g('s_mov_b64 exec, -1')
    g('s_waitcnt lgkmcnt(0)')
    g('s_barrier')
    g('v_lshlrev_b32 v29, 2, v0')
    for w in range(8):
        g(f'ds_read_b32 v{160+w}, v29 offset:{256*w}')
    g('s_waitcnt lgkmcnt(0)')
    g('v_add_f32 v160, v160, v161')
    g('v_add_f32 v162, v162, v163')
    g('v_add_f32 v164, v164, v165')
    g('v_add_f32 v166, v166, v167')
    g('v_add_f32 v160, v160, v162')
    g('v_add_f32 v164, v164, v166')
    g('v_add_f32 v142, v160, v164')
    g('s_barrier')
    g('s_mul_i32 s48, s57, 160')
    g('v_lshlrev_b32 v27, 4, v10')
    g('v_add_u32 v27, s48, v27')
    g('v_lshlrev_b32 v28, 2, v10')
    g('v_add_u32 v28, s48, v28')
    g('v_lshlrev_b32 v30, 3, v10')
    g('v_and_b32 v31, 31, v0')
    g('v_lshlrev_b32 v31, 1, v31')
    g('v_lshlrev_b32 v14, 6, v9')
    g('v_lshl_add_u32 v14, v6, 4, v14')
    g(f's_mul_i32 s48, s58, 5120')
    g(f's_lshl_b32 s49, {sWAVE}, 9')
    g('s_add_u32 s48, s48, s49')
    g(f's_add_u32 s48, s48, {O2P}')
    g('v_add_u32 v14, s48, v14')
    g(f'v_add_u32 v15, {8*512}, v14')
    g(f'v_mov_b32 v202, {sTAG}')
    g(f's_lshl_b32 s48, {sWAVE}, 3')
    g('v_mov_b32 v144, s48')
    g(f's_cmp_lt_u32 {sWAVE}, 5')
    g('s_cbranch_scc0 L_m_b1')
    g(f's_lshl_b32 s48, {sWAVE}, 9')
    g(f's_add_u32 s48, s48, {OUTP}')
    g('v_lshrrev_b32 v152, 5, v0')
    g('v_mul_u32_u24 v152, 2560, v152')
    g('v_and_b32 v153, 31, v0')
    g('v_lshl_add_u32 v152, v153, 4, v152')
    g('v_add_u32 v152, s48, v152')
    for k in range(1, 4):
        g(f'v_add_u32 v{152+k}, {5120*k}, v152')
    g('v_lshlrev_b32 v148, 16, v140')
    g('v_and_b32 v149, 0xffff0000, v140')
    g.poll2('outp', [(f'global_load_dwordx4 v[{160+4*k}:{163+4*k}], v{152+k}, {WS} sc1', 163 + 4 * k, None) for k in range(4)], MB, 12, 13)
    g.stamp(8)
    for k in range(4):
        g(f'v_lshlrev_b32 v{176+4*k}, 16, v{160+4*k}')
        g(f'v_and_b32 v{177+4*k}, 0xffff0000, v{160+4*k}')
        g(f'v_lshlrev_b32 v{178+4*k}, 16, v{161+4*k}')
        g(f'v_and_b32 v{179+4*k}, 0xffff0000, v{161+4*k}')
        if k == 1:
            g('v_pk_add_f32 v[176:177], v[176:177], v[180:181]')
            g('v_pk_add_f32 v[178:179], v[178:179], v[182:183]')
    g('v_pk_add_f32 v[184:185], v[184:185], v[188:189]')
    g('v_pk_add_f32 v[186:187], v[186:187], v[190:191]')
    g('v_pk_add_f32 v[176:177], v[176:177], v[184:185]')
    g('v_pk_add_f32 v[178:179], v[178:179], v[186:187]')
    g.nop(1)
    g('v_permlane32_swap_b32 v176, v178')
    g('v_permlane32_swap_b32 v177, v179')
    g.nop(1)
    g('v_add_f32 v16, v176, v178')
    g('v_add_f32 v17, v177, v179')
    g('v_cvt_pk_bf16_f32 v16, v16, v17')
    g('v_lshlrev_b32 v18, 16, v16')
    g('v_and_b32 v19, 0xffff0000, v16')
    g('v_pk_add_f32 v[18:19], v[18:19], v[148:149]')
    g('v_cvt_pk_bf16_f32 v16, v18, v19')
    g(f'ds_write_b32 v143, v16 offset:{L_HB}')
    g('v_lshlrev_b32 v18, 16, v16')
    g('v_and_b32 v19, 0xffff0000, v16')
    g('v_subrev_f32 v18, s53, v18')
    g('v_subrev_f32 v19, s53, v19')
    g('v_add_f32 v160, v18, v19')
    g('v_mul_f32 v161, v18, v18')
    g('v_fmac_f32 v161, v19, v19')
    g.wave_reduce([160, 161], [162, 163])
    g('s_mov_b64 exec, 1')
    g(f'ds_write_b64 v144, v[160:161] offset:{L_ST}')
    g('s_mov_b64 exec, -1')
    g('s_waitcnt lgkmcnt(0)')
    g.label('L_m_b1')
    g('s_barrier')
    g.stamp(9)
    g(f'ds_read_b128 v[176:179], v27 offset:{L_HB}')
    g(f'ds_read_b32 v180, v28 offset:{L_HB+128}')
    g(f's_cmp_eq_u32 {sWAVE}, 7')
    g('s_cbranch_scc1 L_m_st')
    g.begin_tail()
    g.label('L_m_st')
    g(f'ds_read_b128 v[160:163], v1 offset:{L_ST}')
    g(f'ds_read_b128 v[164:167], v1 offset:{L_ST+16}')
    g(f'ds_read_b64 v[168:169], v1 offset:{L_ST+32}')
    g('s_branch L_m_ns')
    g.end_tail()
    g.label('L_m_ns')
    g('s_waitcnt lgkmcnt(0)')
    gemv(10, 176, 64, 208)
    g.nop(8)
    class_combine(g, 208)
    g.set_exec(0x00ff00ff00ff00ff)
    g('ds_write2_b32 v26, v208, v210 offset0:0 offset1:2')
    g('s_mov_b64 exec, -1')
    g('s_waitcnt lgkmcnt(0)')
    g('s_barrier')
    g.stamp(10)
    g(f's_cmp_eq_u32 {sWAVE}, 7')
    g('s_cbranch_scc0 L_m_b3')
    for w in range(8):
        g(f'ds_read_b32 v{184+w}, v29 offset:{256*w}')
    g('v_pk_add_f32 v[160:161], v[160:161], v[162:163]')
    g('v_pk_add_f32 v[164:165], v[164:165], v[166:167]')
    g('v_pk_add_f32 v[160:161], v[160:161], v[168:169]')
    g('v_pk_add_f32 v[160:161], v[160:161], v[164:165]')
    ln_scalars(g, 160, 161, 's53', 170, 171, 172)
    g('v_mul_f32 v170, v170, v142')
    g('s_waitcnt lgkmcnt(0)')
    g('v_pk_add_f32 v[184:185], v[184:185], v[186:187]')
    g('v_pk_add_f32 v[188:189], v[188:189], v[190:191]')
    g('v_pk_add_f32 v[184:185], v[184:185], v[188:189]')
    g('v_add_f32 v16, v184, v185')
    g('v_sub_f32 v16, v16, v170')
    g('v_mul_f32 v16, v16, v171')
    rnd_bf16(g, 16)
    g('v_mov_b32 v17, v16')
    g.nop(2)
    g('v_permlane32_swap_b32 v16, v17')
    g.nop(1)
    g('v_max_f32 v16, 0, v16')
    g('v_mul_f32 v16, v16, v17')
    g('v_cvt_pk_bf16_f32 v16, v16, v16')
    g(f'ds_write_b16 v31, v16 offset:{L_CB}')
    g('s_waitcnt lgkmcnt(0)')
    g.label('L_m_b3')
    g('s_barrier')
    g(f'ds_read_b64 v[16:17], v30 offset:{L_CB}')
    g('s_waitcnt lgkmcnt(0)')
    g.stamp(11)

    def down(base, vo, reuse=False):
        gemv(4, 16, base, 204, reuse=reuse, keep=True)
        g.nop(8)
        class_combine(g, 204, out2=205)
        g.set_exec(0x00ff00ff00ff00ff)
        g(f'global_store_dwordx4 v{vo}, v[202:205], {WS} sc1')
        g('s_mov_b64 exec, -1')
    down(104, 14)
    g(f's_cmp_lt_u32 {sWAVE}, 2')
    g('s_cbranch_scc0 L_m_done')
    down(120, 15, reuse=True)
    g.label('L_m_done')

    g.label('L_fin')
    g.stamp(15)
    g.stamp_flush()
    g.label('L_end')
    g('s_endpgm')
    body = g.text()

    hdr = open('cdna_kernels/' + KN[:-7] + '.s.ref').read().split('\n')
    head = []
    for line in hdr:
        if line.startswith('; @launch'):
            head.append(f'; @launch grid=(256,1,1) block=(512,1,1) lds={LDS_BYTES}')
        elif line.startswith(';'):
            head.append(line)
        else:
            break
    out = '\n'.join(head) + '\n'
    out += '.amdgcn_target "amdgcn-amd-amdhsa--gfx950"\n.text\n'
    out += f'.globl {KN}\n.p2align 8\n.type {KN},@function\n{KN}:\n'
    out += body
    out += f'''.section .rodata,"a"
.p2align 6
.amdhsa_kernel {KN}
  .amdhsa_next_free_vgpr 256
  .amdhsa_next_free_sgpr 102
  .amdhsa_accum_offset 256
  .amdhsa_group_segment_fixed_size 0
  .amdhsa_kernarg_size 104
  .amdhsa_user_sgpr_count 2
  .amdhsa_user_sgpr_kernarg_segment_ptr 1
  .amdhsa_system_sgpr_workgroup_id_x 1
.end_amdhsa_kernel
'''
    return out


if __name__ == '__main__':
    import argparse
    ap = argparse.ArgumentParser()
    ap.add_argument('-o', default='k.s')
    ap.add_argument('--stamps', action='store_true')
    ap.add_argument('--stop', type=int, default=None)
    ap.add_argument('--opts', default='')
    a = ap.parse_args()
    open(a.o, 'w').write(build(a.stamps, a.stop, tuple(a.opts.split(','))))
```

```python
import sys, struct

KN = 'sequential_preLN__compressed_kv_cla__glu_gated_reglu__decode_kernel'

EPOCH = 0
XID = 0x1000
PF = 0x3000
Q1L = 0x10000
Q1G = 0x50000
QA = 0x90000
MLL = 0xA0000
C4 = 0xA8000
MLX = 0xC8000
OUTP = 0xE8000
O2P = 0x100000
OX = 0x180000
OPL = 0x200000
STAMPS = 0x800000

L_XN = 0
L_QB = 256
L_MB = 512
L_LB = 768
L_PB = 1024
L_RED = 3072
L_CB = 7168
L_HB = 8192
L_ST = 9472
L_MODE = 9728
L_TAG = 9732
L_QL = 10240
L_V = 26624
L_TILE = 59392
LDS_BYTES = 124928

S_X, S_CKV, S_WQ, S_WUK, S_WUV, S_WO, S_WG, S_WU, S_WD, S_OUT, S_DBG, S_WS = (
    's[8:9]', 's[10:11]', 's[12:13]', 's[14:15]', 's[16:17]', 's[18:19]', 's[22:23]', 's[24:25]', 's[26:27]',
    's[28:29]', 's[30:31]', 's[32:33]')
sXCD, sR, sWAVE, sH, sJ, sTAG = 's34', 's35', 's36', 's37', 's38', 's39'
POLL_LIMIT = 1 << 17


def f2u(x):
    return struct.unpack('<I', struct.pack('<f', x))[0]


class Gen:
    def __init__(s, stamps=False, stop_after=None):
        s.L = []
        s.tail = []
        s.n = 0
        s.stamps = stamps
        s.stop_after = stop_after
        s.nstamp = 0

    def __call__(s, txt):
        for line in txt.strip('\n').split('\n'):
            line = line.strip()
            if line:
                s.L.append('    ' + line)

    def label(s, name):
        s.L.append(name + ':')

    def uniq(s, base):
        s.n += 1
        return f'{base}_{s.n}'

    def nop(s, n):
        while n > 0:
            k = min(n, 16)
            s(f's_nop {k-1}')
            n -= k

    def stamp(s, idx):
        if s.stamps:
            s(f's_memrealtime s[{64+2*idx}:{65+2*idx}]')

    def stamp_flush(s, nst=16):
        if not s.stamps:
            return
        s('s_waitcnt lgkmcnt(0)')
        s('s_mov_b64 exec, 1')
        s(f's_lshl_b32 s48, s2, 3')
        s(f's_add_u32 s48, s48, {sWAVE}')
        s(f's_lshl_b32 s48, s48, 7')
        s(f's_add_u32 s48, s48, {STAMPS}')
        s('v_mov_b32 v1, s48')
        for i in range(nst):
            s(f'v_mov_b32 v2, s{64+2*i}')
            s(f'v_mov_b32 v3, s{65+2*i}')
            s(f'global_store_dwordx2 v1, v[2:3], {S_WS} offset:{8*i}')
            s('s_nop 1')
        s('s_waitcnt vmcnt(0)')

    def addr(s, dst, src, off):
        d = int(dst[2:].split(':')[0]); sr = int(src[2:].split(':')[0])
        s(f's_add_u32 s{d}, s{sr}, {off}')
        s(f's_addc_u32 s{d+1}, s{sr+1}, 0')

    def set_exec(s, mask):
        if mask == (1 << 64) - 1:
            s('s_mov_b64 exec, -1')
        else:
            s(f's_mov_b32 exec_lo, {mask & 0xffffffff:#x}')
            s(f's_mov_b32 exec_hi, {mask >> 32:#x}')

    def wave_reduce(s, regs, tmps, op='add'):
        ins = {'add': 'v_add_f32', 'max': 'v_max_f32'}[op]
        n = len(regs)
        pad = max(0, 2 - (n - 1))
        s.nop(2)
        for ctl in ['quad_perm:[1,0,3,2]', 'quad_perm:[2,3,0,1]', 'row_half_mirror', 'row_mirror']:
            for r in regs:
                s(f'{ins}_dpp v{r}, v{r}, v{r} {ctl} row_mask:0xf bank_mask:0xf')
            s.nop(pad)
        s.row_reduce(regs, tmps, op)

    def row_reduce(s, regs, tmps, op='add'):
        ins = {'add': 'v_add_f32', 'max': 'v_max_f32'}[op]
        n = len(regs)
        for sw in ['v_permlane16_swap_b32', 'v_permlane32_swap_b32']:
            for r, t in zip(regs, tmps):
                s(f'v_mov_b32 v{t}, v{r}')
            s.nop(max(0, 2 - (n - 1)))
            for r, t in zip(regs, tmps):
                s(f'{sw} v{t}, v{r}')
            s.nop(1 if n == 1 else 0)
            for r, t in zip(regs, tmps):
                s(f'{ins} v{r}, v{r}, v{t}')
            s.nop(0)

    def check_tags(s, regs, t0, t1, done_label):
        tags = []
        for r in regs:
            tags += [r + 1, r + 3]
        if len(tags) == 2:
            s(f'v_cmp_eq_u32 vcc, {sTAG}, v{tags[0]}')
            s(f'v_cmp_eq_u32 s[46:47], {sTAG}, v{tags[1]}')
        else:
            s(f'v_min3_u32 v{t0}, v{tags[0]}, v{tags[1]}, v{tags[2]}')
            s(f'v_max3_u32 v{t1}, v{tags[0]}, v{tags[1]}, v{tags[2]}')
            rest = tags[3:]
            while rest:
                if len(rest) >= 2:
                    s(f'v_min3_u32 v{t0}, v{t0}, v{rest[0]}, v{rest[1]}')
                    s(f'v_max3_u32 v{t1}, v{t1}, v{rest[0]}, v{rest[1]}')
                    rest = rest[2:]
                else:
                    s(f'v_min_u32 v{t0}, v{t0}, v{rest[0]}')
                    s(f'v_max_u32 v{t1}, v{t1}, v{rest[0]}')
                    rest = rest[1:]
            s(f'v_cmp_eq_u32 vcc, {sTAG}, v{t0}')
            s(f'v_cmp_eq_u32 s[46:47], {sTAG}, v{t1}')
        s('s_and_b64 vcc, vcc, s[46:47]')
        s('s_cmp_eq_u64 vcc, exec')
        s(f's_cbranch_scc1 {done_label}')

    def poll(s, name, emit_loads, regs, t0, t1, first_hook=None, alt=None):
        top = s.uniq(name + '_top'); done = s.uniq(name + '_done'); fail = s.uniq(name + '_fail')
        s(f's_mov_b32 s50, 0')
        if first_hook is not None:
            emit_loads(alt[0] if alt else None)
            first_hook()
            s('s_waitcnt vmcnt(0)')
            s.check_tags(regs, t0, t1, done)
        s.label(top)
        if alt:
            s('s_add_u32 s50, s50, 1')
            s('s_and_b32 s51, s50, 7')
            s('s_cmp_eq_u32 s51, 0')
            s(f's_cselect_b64 s[44:45], {alt[1]}, {alt[0]}')
            emit_loads('s[44:45]')
        else:
            s('s_add_u32 s50, s50, 1')
            emit_loads(None)
        s('s_waitcnt vmcnt(0)')
        s.check_tags(regs, t0, t1, done)
        s(f's_cmp_lt_u32 s50, {POLL_LIMIT}')
        s(f's_cbranch_scc1 {top}')
        s(f's_mov_b64 s[46:47], exec')
        s('s_mov_b64 exec, 1')
        s(f'v_mov_b32 v{t0}, {4*(s.n % 60)}')
        s(f'v_mov_b32 v{t1}, {0x1000 + s.n}')
        s(f'global_store_dword v{t0}, v{t1}, {S_DBG}')
        s(f's_mov_b64 exec, s[46:47]')
        s.label(done)

    def begin_tail(s):
        s.main = s.L
        s.L = s.tail

    def end_tail(s):
        s.L = s.main

    def poll2(s, name, loads, masks, t0, t1, alt=None, hook=None):
        top = s.uniq(name + '_top'); done = s.uniq(name + '_done'); retry = s.uniq(name + '_retry')
        n = len(loads)
        assert len(masks) >= n
        s('s_mov_b32 s50, 0')
        for ins, tg, em in loads:
            if em is not None:
                s.set_exec(em)
            s(ins.format(base=alt[0] if alt else None))
            if em is not None:
                s('s_mov_b64 exec, -1')
        if hook is not None:
            hook()
        s.label(top)
        s('s_waitcnt vmcnt(0)')
        for k, (ins, tg, em) in enumerate(loads):
            s(f'v_cmp_ne_u32 {masks[k]}, {sTAG}, v{tg}')
        if n == 1:
            s(f's_cmp_lg_u64 {masks[0]}, 0')
        else:
            s(f's_or_b64 s[46:47], {masks[0]}, {masks[1]}')
            for k in range(2, n):
                s(f's_or_b64 s[46:47], s[46:47], {masks[k]}')
        s(f's_cbranch_scc1 {retry}')
        s.label(done)
        s.begin_tail()
        s.label(retry)
        s('s_add_u32 s50, s50, 1')
        if alt:
            s('s_and_b32 s51, s50, 7')
            s('s_cmp_eq_u32 s51, 0')
            s(f's_cselect_b64 s[44:45], {alt[1]}, {alt[0]}')
        for k, (ins, tg, em) in enumerate(loads):
            s(f's_mov_b64 exec, {masks[k]}')
            if n > 1:
                sk = s.uniq(name + '_sk')
                s(f's_cbranch_execz {sk}')
            s(ins.format(base='s[44:45]' if alt else None))
            if n > 1:
                s.label(sk)
        s('s_mov_b64 exec, -1')
        s(f's_cmp_lt_u32 s50, {POLL_LIMIT}')
        s(f's_cbranch_scc1 {top}')
        s('s_waitcnt vmcnt(0)')
        s('s_mov_b64 exec, 1')
        s(f'v_mov_b32 v{t0}, {4*(s.n % 60)}')
        s(f'v_mov_b32 v{t1}, {0x1000 + s.n}')
        s(f'global_store_dword v{t0}, v{t1}, {S_DBG}')
        s('s_mov_b64 exec, -1')
        s(f's_branch {done}')
        s.end_tail()

    def text(s):
        return '\n'.join(s.L + s.tail + ['L_codeend:']) + '\n'


KAPPA = (128 ** -0.5) * 1.4426950408889634


def gen_sel(g, base, t0, t1):
    g(f'v_and_b32 v{t0}, 7, v0')
    g(f'v_and_b32 v{t1}, 1, v0')
    for par in range(2):
        lo = 0x0c0c0000 | ((2 * par + 1) << 8) | (2 * par)
        hi = ((2 * par + 1) << 24) | ((2 * par) << 16) | 0x0c0c
        g(f'v_cmp_eq_u32 vcc, 1, v{t1}')
        g(f'v_mov_b32 v{base+par}, {lo:#x}')
        g(f'v_mov_b32 v{base+2+par}, {hi:#x}')
        g(f'v_cndmask_b32 v{base+par}, v{base+par}, v{base+2+par}, vcc')
    g(f'v_lshrrev_b32 v{t0}, 1, v{t0}')
    g(f'v_mov_b32 v{t1}, 0x0c0c0c0c')
    for v in [3, 2, 1, 0]:
        g(f'v_cmp_eq_u32 vcc, {v}, v{t0}')
        g.nop(1)
        for par in range(2):
            g(f'v_cndmask_b32 v{base+2*v+par}, v{t1}, v{base+par}, vcc')


def gen_mask(g, base, t0, t1):
    g(f'v_and_b32 v{t0}, 7, v0')
    g(f'v_and_b32 v{t1}, 1, v0')
    g(f'v_cmp_eq_u32 vcc, 1, v{t1}')
    g(f'v_mov_b32 v{base}, 0xffff')
    g(f'v_mov_b32 v{base+1}, 0xffff0000')
    g(f'v_cndmask_b32 v{t1}, v{base}, v{base+1}, vcc')
    g(f'v_lshrrev_b32 v{t0}, 1, v{t0}')
    for v in range(4):
        g(f'v_cmp_eq_u32 vcc, {v}, v{t0}')
        g.nop(1)
        g(f'v_cndmask_b32 v{base+v}, 0, v{t1}, vcc')


def get_tag(g, vreg):
    g.nop(1)
    g(f'v_readfirstlane_b32 {sTAG}, v{vreg}')
    g.nop(4)
    g(f's_mul_i32 {sTAG}, {sTAG}, 5')
    g(f's_add_u32 {sTAG}, {sTAG}, 0x9E3779B9')


def rnd_bf16(g, r):
    g(f'v_cvt_pk_bf16_f32 v{r}, v{r}, v{r}')
    g(f'v_and_b32 v{r}, 0xffff0000, v{r}')


def ln_scalars(g, s1, s2, piv_sgpr, vm, vrs, t0):
    g(f's_mov_b32 s52, {f2u(1.0/640):#x}')
    g(f'v_mul_f32 v{s1}, s52, v{s1}')
    g(f'v_mul_f32 v{s2}, s52, v{s2}')
    g(f'v_fma_f32 v{s2}, -v{s1}, v{s1}, v{s2}')
    g(f'v_max_f32 v{s2}, 0, v{s2}')
    g(f'v_add_f32 v{vm}, {piv_sgpr}, v{s1}')
    rnd_bf16(g, vm)
    rnd_bf16(g, s2)
    g(f'v_add_f32 v{s2}, 0x3727c5ac, v{s2}')
    rnd_bf16(g, s2)
    g(f'v_sqrt_f32 v{s2}, v{s2}')
    g.nop(1)
    rnd_bf16(g, s2)
    g(f'v_rcp_f32 v{vrs}, v{s2}')
    g.nop(1)


def class_combine(g, d, out2=None):
    if out2 is None:
        out2 = d + 2
    for k in range(4):
        g(f'v_mov_b32_dpp v{d+k}, v{d+k} row_ror:8 row_mask:0xc bank_mask:0xf')
    g.nop(1)
    g(f'v_permlane32_swap_b32 v{d}, v{d+1}')
    g(f'v_permlane32_swap_b32 v{d+2}, v{d+3}')
    g.nop(1)
    g(f'v_add_f32 v{d}, v{d}, v{d+1}')
    g(f'v_add_f32 v{out2}, v{d+2}, v{d+3}')


def mode_store(g, ins_no_flag, smode):
    a = g.uniq('ms_slow'); b = g.uniq('ms_done')
    g(f's_cmp_eq_u32 {smode}, 1')
    g(f's_cbranch_scc0 {a}')
    for ins in ins_no_flag:
        g(ins)
    g.label(b)
    ex = [l for l in []]
    g.begin_tail()
    g.label(a)
    for ins in ins_no_flag:
        g(ins + ' sc1')
    g(f's_branch {b}')
    g.end_tail()


def own_tag(g, vreg):
    g(f'v_readfirstlane_b32 {sTAG}, v{vreg}')
    g.nop(4)
    g(f's_mul_i32 {sTAG}, {sTAG}, 5')
    g(f's_add_u32 {sTAG}, {sTAG}, 0x9E3779B9')


MA = ['s[10:11]', 's[12:13]', 's[14:15]', 's[18:19]', 's[20:21]', 's[22:23]', 's[24:25]', 's[26:27]']
MQ = ['s[10:11]', 's[12:13]', 's[14:15]', 's[4:5]', 's[20:21]', 's[96:97]', 's[98:99]', 's[100:101]']
MB = ['s[10:11]', 's[12:13]', 's[14:15]', 's[16:17]', 's[18:19]', 's[20:21]', 's[22:23]', 's[24:25]']


def build(stamps=False, stop_after=None, opts=()):
    g = Gen(stamps, stop_after)
    sMODE = 's59'
    WS = S_WS
    g('s_cmp_ge_u32 s2, 256')
    g('s_cbranch_scc1 L_end')
    g('s_load_dwordx16 s[8:23], s[0:1], 0')
    g('s_load_dwordx8 s[24:31], s[0:1], 64')
    g('s_load_dwordx2 s[32:33], s[0:1], 96')
    g('s_getpc_b64 s[42:43]')
    g('v_lshlrev_b32 v1, 4, v0')
    g('global_load_dwordx4 v[232:235], v1, s[42:43]')
    g.stamp(0)
    g('v_lshrrev_b32 v1, 6, v0')
    g('v_and_b32 v0, 63, v0')
    g(f'v_readfirstlane_b32 {sWAVE}, v1')
    g(f's_and_b32 {sXCD}, s2, 7')
    g(f's_lshr_b32 {sR}, s2, 3')
    g(f's_lshr_b32 {sH}, {sR}, 3')
    g(f's_lshl_b32 s48, {sXCD}, 2')
    g(f's_add_u32 {sH}, {sH}, s48')
    g(f's_and_b32 {sJ}, {sR}, 7')
    g('v_mov_b32 v1, 0')
    g('v_lshlrev_b32 v3, 4, v0')
    g('v_and_b32 v7, 15, v0')
    g('v_lshrrev_b32 v6, 4, v0')
    g(f's_cmp_eq_u32 {sWAVE}, 1')
    g('s_cbranch_scc1 L_w1')
    g(f's_cmp_eq_u32 {sWAVE}, 0')
    g('s_cbranch_scc1 L_w0')

    def pre(tagwait=False):
        g(f's_and_b32 s55, {sR}, 1')
        g(f's_lshr_b32 s56, {sR}, 1')
        g('v_and_b32 v8, 7, v0')
        g('v_lshlrev_b32 v8, 1, v8')
        g(f's_lshl_b32 s48, {sWAVE}, 14')
        g(f's_add_u32 s48, s48, {L_TILE}')
        for tl in range(4):
            g(f'v_add_u32 v9, {4*tl}, v6')
            g('v_xor_b32 v9, v9, v8')
            g('v_lshlrev_b32 v9, 4, v9')
            g(f'v_lshl_add_u32 v{32+tl}, v7, 10, v9')
            g(f'v_add_u32 v{36+tl}, s48, v{32+tl}')
        g('v_lshrrev_b32 v9, 2, v0')
        g('v_lshlrev_b32 v9, 7, v9')
        g('v_and_b32 v11, 3, v0')
        g('v_lshl_add_u32 v9, v11, 3, v9')
        g('v_bfe_u32 v10, v0, 3, 2')
        g(f's_and_b32 s48, {sWAVE}, 3')
        g('v_xor_b32 v10, s48, v10')
        g('v_lshl_add_u32 v9, v10, 5, v9')
        g(f'v_add_u32 v40, {L_V}, v9')
        g('v_lshrrev_b32 v9, 3, v0')
        g('v_lshlrev_b32 v9, 10, v9')
        g('v_and_b32 v10, 7, v0')
        g('v_lshlrev_b32 v11, 1, v6')
        g('v_xor_b32 v10, v10, v11')
        g('v_lshl_add_u32 v41, v10, 4, v9')
        g(f's_lshl_b32 s48, {sXCD}, 19')
        g(f's_and_b32 s49, {sWAVE}, 3')
        g('s_lshl_b32 s49, s49, 16')
        g('s_add_u32 s48, s48, s49')
        g('s_lshl_b32 s49, s56, 7')
        g('s_add_u32 s48, s48, s49')
        g('s_waitcnt lgkmcnt(0)')
        g.addr('s[98:99]', S_CKV, 's48')
        g('v_lshrrev_b32 v9, 1, v0')
        g('v_and_b32 v10, 1, v0')
        g('v_lshlrev_b32 v10, 3, v10')
        for ih in range(2):
            g(f's_lshl_b32 s48, {sWAVE}, 1')
            g(f's_add_u32 s48, s48, {ih}')
            g('s_and_b32 s49, s48, 7')
            g('s_lshl_b32 s49, s49, 1')
            g('v_xor_b32 v11, s49, v9')
            g('v_lshl_add_u32 v11, v11, 4, v10')
            g('s_lshl_b32 s48, s48, 10')
            g(f's_add_u32 s48, s48, {L_QL}')
            g(f'v_add_u32 v{44+ih}, s48, v11')
        gen_mask(g, 240, 9, 10)
        g('v_lshlrev_b32 v46, 4, v7')
        g(f's_lshl_b32 s48, {sWAVE}, 2')
        g('v_add_u32 v47, s48, v46')
        g('v_lshlrev_b32 v57, 3, v0')
        g(f'v_add_u32 v42, {L_QL}, v3')
        g(f's_lshl_b32 s48, {sWAVE}, 11')
        g('v_add_u32 v56, s48, v42')
        g('v_lshlrev_b32 v43, 5, v7')
        g(f'v_add_u32 v43, {L_RED}, v43')
        g(f's_lshl_b32 s48, {sWAVE}, 2')
        g('v_add_u32 v59, s48, v43')
        g('s_lshl_b32 s48, s55, 15')
        g(f's_lshl_b32 s49, {sWAVE}, 12')
        g('s_add_u32 s48, s48, s49')
        g(f's_add_u32 s48, s48, {QA}')
        g('v_add_u32 v248, s48, v3')
        g(f's_lshl_b32 s48, {sXCD}, 16')
        g('s_lshl_b32 s49, s55, 15')
        g('s_add_u32 s48, s48, s49')
        g(f's_add_u32 s48, s48, {OPL}')
        g(f's_lshl_b32 s49, {sWAVE}, 12')
        g('s_add_u32 s49, s49, s48')
        g('v_add_u32 v246, s49, v3')
        g('s_lshl_b32 s49, s56, 12')
        g('s_add_u32 s48, s48, s49')
        g('v_add_u32 v251, s48, v3')
        g(f's_and_b32 s49, {sWAVE}, 3')
        g('s_lshl_b32 s49, s49, 10')
        g('v_add_u32 v58, s49, v251')
        g(f's_lshl_b32 s48, {sXCD}, 16')
        g('s_lshl_b32 s49, s55, 15')
        g('s_add_u32 s48, s48, s49')
        g('s_lshl_b32 s49, s56, 12')
        g('s_add_u32 s48, s48, s49')
        g(f's_and_b32 s49, {sWAVE}, 3')
        g('s_lshl_b32 s49, s49, 10')
        g('s_add_u32 s48, s48, s49')
        g(f's_add_u32 s48, s48, {OX}')
        g('v_lshlrev_b32 v244, 6, v7')
        g('v_lshl_add_u32 v244, v6, 4, v244')
        g('v_add_u32 v244, s48, v244')
        g(f's_lshl_b32 s48, {sXCD}, 9')
        g('s_lshl_b32 s49, s55, 8')
        g('s_add_u32 s48, s48, s49')
        g(f's_add_u32 s48, s48, {MLX}')
        g('v_add_u32 v250, s48, v3')
        g('s_mov_b32 s58, s56')
        g(f's_lshr_b32 s48, {sR}, 2')
        g(f's_lshl_b32 s49, {sXCD}, 2')
        g('s_add_u32 s61, s48, s49')
        g(f's_and_b32 s62, {sR}, 3')
        g('v_bfe_u32 v13, v0, 2, 3')
        g('s_lshr_b32 s48, s61, 4')
        g('s_lshl_b32 s48, s48, 5')
        g('s_lshl_b32 s49, s62, 3')
        g('s_add_u32 s48, s48, s49')
        g(f's_add_u32 s48, s48, {sWAVE}')
        g('s_lshl_b32 s48, s48, 10')
        g('s_and_b32 s49, s61, 15')
        g('s_lshl_b32 s49, s49, 6')
        g('s_add_u32 s48, s48, s49')
        g(f's_add_u32 s48, s48, {OX}')
        g('v_lshlrev_b32 v14, 16, v13')
        g('v_and_b32 v12, 3, v0')
        g('v_lshl_add_u32 v14, v12, 4, v14')
        g('v_add_u32 v245, s48, v14')
        g('s_lshl_b32 s48, s61, 4')
        g(f's_add_u32 s48, s48, {MLX}')
        g('v_lshlrev_b32 v14, 9, v13')
        g('v_add_u32 v14, s48, v14')
        g('v_cmp_le_u32 vcc, 32, v0')
        g.nop(1)
        g('v_cndmask_b32 v245, v245, v14, vcc')
        g('v_lshlrev_b32 v247, 5, v7')
        g('v_lshl_add_u32 v247, v6, 4, v247')
        g(f's_lshl_b32 s48, {sWAVE}, 9')
        g('v_add_u32 v247, s48, v247')
        g(f's_lshl_b32 s48, {sXCD}, 4')
        g(f's_add_u32 s48, s48, {sR}')
        g('s_lshl_b32 s48, s48, 9')
        g(f's_add_u32 s48, s48, {C4}')
        g('v_lshrrev_b32 v253, 1, v0')
        g('v_lshl_add_u32 v253, v253, 4, s48')
        g('s_lshl_b32 s48, s61, 8')
        g('s_lshl_b32 s49, s62, 3')
        g(f's_add_u32 s49, s49, {sWAVE}')
        g('s_lshl_b32 s49, s49, 17')
        g('s_add_u32 s48, s48, s49')
        g('s_waitcnt lgkmcnt(0)')
        g.addr('s[62:63]' if False else 's[96:97]', S_WUV, 's48')
        g('v_lshlrev_b32 v254, 13, v6')
        g('v_lshl_add_u32 v254, v7, 4, v254')
        if tagwait:
            g('s_waitcnt vmcnt(0)')
            own_tag(g, 2)
        g(f'global_load_dword v233, v245, {WS} sc1')
        pt = g.uniq('pt')
        g(f's_cmp_eq_u32 {sWAVE}, 5')
        g(f's_cbranch_scc0 {pt}')
        for kt in range(4):
            g(f'global_load_dword v{234+kt}, v251, {WS} offset:{1024*kt} sc1')
        g.label(pt)

    def dma(wsel=None):
        g(f's_lshr_b32 s56, {sR}, 1')
        g(f's_lshl_b32 s57, {sXCD}, 3')
        g('s_add_u32 s57, s57, s56')
        g('s_lshl_b32 s48, s57, 6')
        if 'rot' in opts:
            g(f's_and_b32 s49, {sR}, 1')
            g('s_lshl_b32 s49, s49, 2')
            g(f's_add_u32 s49, s49, {wsel or sWAVE}')
            g('s_and_b32 s49, s49, 7')
            g('s_lshl_b32 s49, s49, 3')
        else:
            g(f's_lshl_b32 s49, {wsel or sWAVE}, 3')
        g('s_add_u32 s48, s48, s49')
        g('s_lshl_b32 s48, s48, 10')
        g.addr('s[40:41]', S_CKV, 's48')
        g('s_lshl_b32 s49, s49, 10')
        g(f's_add_u32 s49, s49, {L_TILE}')
        g('s_mov_b32 m0, s49')
        for i in range(8):
            if i == 4:
                g('s_add_u32 s49, s49, 4096')
                g('s_mov_b32 m0, s49')
                g('s_add_u32 s40, s40, 4096')
                g('s_addc_u32 s41, s41, 0')
            g(f'v_xor_b32 v4, {32*i}, v3')
            g(f'global_load_lds_dwordx4 v4, s[40:41] offset:{1024*(i%4)}' + (' nt' if 'ckvnt' in opts else ''))

    def wuk_dma():
        g(f's_sub_u32 s54, {sR}, 16')
        g('s_lshr_b32 s48, s54, 2')
        g(f's_lshl_b32 s49, {sXCD}, 2')
        g('s_add_u32 s48, s48, s49')
        g('s_lshl_b32 s48, s48, 8')
        g('s_and_b32 s49, s54, 3')
        g('s_lshl_b32 s49, s49, 2')
        g(f's_add_u32 s49, s49, {sWAVE}')
        g('s_sub_u32 s49, s49, 4')
        g('s_lshl_b32 s49, s49, 18')
        g('s_add_u32 s48, s48, s49')
        g.addr('s[40:41]', S_WUK, 's48')
        g('v_xor_b32 v8, v7, v6')
        g('v_lshlrev_b32 v8, 4, v8')
        g('v_lshl_add_u32 v8, v6, 13, v8')
        for n in range(1, 4):
            g(f'v_xor_b32 v{8+n}, {64*n}, v8')
        g(f's_and_b32 s49, {sWAVE}, 3')
        g('s_lshl_b32 s49, s49, 13')
        g(f's_add_u32 m0, s49, {L_TILE}')
        g.nop(1)
        for n in range(8):
            g(f'global_load_lds_dwordx4 v{8+(n&3)}, s[40:41] nt')
            if n < 7:
                g('s_add_u32 m0, m0, 1024')
                g('s_add_u32 s40, s40, 32768')
                g('s_addc_u32 s41, s41, 0')

    g('s_waitcnt lgkmcnt(0)')
    if 'bq' in opts:
        g('s_barrier')
    g(f's_cmp_ge_u32 {sWAVE}, 4')
    g('s_cbranch_scc0 L_e_nb')
    g(f's_cmp_ge_u32 {sR}, 16')
    g('s_cbranch_scc1 L_e_b')
    if 'fulldma' in opts:
        g(f's_sub_u32 s58, {sWAVE}, 4')
        dma('s58')
    if 'halfdma' in opts or 'fulldma' in opts:
        dma()
    g('s_branch L_e_nb')
    g.label('L_e_b')
    if 'wukb0' not in opts:
        wuk_dma()
    g.label('L_e_nb')
    g('s_waitcnt lgkmcnt(0)')
    g(f'global_load_dword v2, v1, {WS} sc1')
    g(f's_cmp_eq_u32 {sWAVE}, 3')
    g('s_cbranch_scc0 L_nw7')
    g(f's_and_b32 s48, {sR}, 15')
    g('s_lshl_b32 s48, s48, 10')
    g('s_add_u32 s48, s48, 8192')
    g(f's_min_u32 s48, s48, L_codeend-{KN}-1088')
    g('s_add_u32 s42, s42, s48')
    g('s_addc_u32 s43, s43, 0')
    g('global_load_dwordx4 v[236:239], v3, s[42:43]')
    g.label('L_nw7')
    g(f's_cmp_ge_u32 {sR}, 16')
    g('s_cbranch_scc0 L_pre')
    g.label('L_e_tag')
    g(f's_cmp_eq_u32 {sWAVE}, 2')
    g('s_cbranch_scc0 L_b0')
    g('s_waitcnt vmcnt(0)')
    own_tag(g, 2)
    g('s_getreg_b32 s48, hwreg(HW_REG_XCC_ID)')
    g('s_and_b32 s48, s48, 0xf')
    g('v_mov_b32 v12, s48')
    g(f'v_mov_b32 v15, {sTAG}')
    g(f's_lshl_b32 s48, {sXCD}, 5')
    g(f's_add_u32 s48, s48, {sR}')
    g('s_lshl_b32 s48, s48, 4')
    g(f's_add_u32 s48, s48, {XID}')
    g('v_mov_b32 v16, s48')
    g('s_mov_b64 exec, 1')
    g(f'global_store_dwordx4 v16, v[12:15], {WS} sc1')
    g('s_mov_b64 exec, -1')
    g('s_branch L_b0')

    g.label('L_w0')
    g('v_lshlrev_b32 v4, 2, v0')
    g('v_min_u32 v5, 39, v0')
    g('v_lshlrev_b32 v5, 2, v5')
    g(f's_mul_i32 s48, {sJ}, 160')
    g('v_add_u32 v5, s48, v5')
    g('s_waitcnt lgkmcnt(0)')
    for k in range(5):
        g(f'global_load_dword v{10+k}, v4, {S_X} offset:{256*k}')
    g(f'global_load_dword v15, v5, {S_X}')
    g(f'global_load_dword v2, v1, {WS} sc1')
    g(f's_mov_b32 s52, {f2u(1.0/640):#x}')
    if 'bq' in opts:
        g('s_barrier')
    g('s_waitcnt vmcnt(2)')
    g.stamp(1)
    for k in range(5):
        g(f'v_lshlrev_b32 v{16+2*k}, 16, v{10+k}')
        g(f'v_and_b32 v{17+2*k}, 0xffff0000, v{10+k}')
    g('v_readfirstlane_b32 s53, v16')
    g.nop(4)
    for k in range(10):
        g(f'v_subrev_f32 v{16+k}, s53, v{16+k}')
    g('v_pk_mul_f32 v[26:27], v[16:17], v[16:17]')
    g('v_pk_add_f32 v[28:29], v[16:17], v[18:19]')
    for k in range(1, 5):
        g(f'v_pk_fma_f32 v[26:27], v[{16+2*k}:{17+2*k}], v[{16+2*k}:{17+2*k}], v[26:27]')
        if k >= 2:
            g(f'v_pk_add_f32 v[28:29], v[28:29], v[{16+2*k}:{17+2*k}]')
    g('v_add_f32 v27, v26, v27')
    g('v_add_f32 v26, v28, v29')
    g.wave_reduce([26, 27], [28, 29])
    ln_scalars(g, 26, 27, 's53', 28, 29, 30)
    g('s_waitcnt vmcnt(1)')
    g('v_lshlrev_b32 v16, 16, v15')
    g('v_and_b32 v17, 0xffff0000, v15')
    g('v_sub_f32 v16, v16, v28')
    g('v_sub_f32 v17, v17, v28')
    g('v_cvt_pk_bf16_f32 v18, v16, v17')
    g('v_lshlrev_b32 v16, 16, v18')
    g('v_and_b32 v17, 0xffff0000, v18')
    g('v_mul_f32 v16, v16, v29')
    g('v_mul_f32 v17, v17, v29')
    g('v_cvt_pk_bf16_f32 v18, v16, v17')
    g(f'ds_write_b32 v4, v18 offset:{L_XN}')
    g('s_waitcnt lgkmcnt(0)')
    g.stamp(2)
    g('s_barrier')
    g('s_waitcnt vmcnt(0)')
    own_tag(g, 2)
    g(f's_cmp_ge_u32 {sR}, 16')
    g('s_cbranch_scc1 L_pathB')
    g('s_branch L_pre0')

    g.label('L_w1')
    g(f's_mov_b32 s49, {20*8192}')
    g('v_mul_lo_u32 v8, v6, s49')
    g('v_lshl_add_u32 v8, v7, 4, v8')
    g(f's_mul_i32 s48, {sJ}, {80*8192}')
    g(f's_lshl_b32 s49, {sH}, 8')
    g('s_add_u32 s48, s48, s49')
    g('s_waitcnt lgkmcnt(0)')
    g.addr('s[40:41]', S_WQ, 's48')
    for t in range(20):
        g(f'global_load_dwordx4 v[{80+4*t}:{83+4*t}], v8, s[40:41] nt')
        if t < 19:
            g('s_add_u32 s40, s40, 8192')
            g('s_addc_u32 s41, s41, 0')
    g(f'global_load_dword v2, v1, {WS} sc1')
    if 'bq' in opts:
        g('s_barrier')
    g.stamp(1)
    gen_sel(g, 192, 16, 17)
    g(f's_lshl_b32 s48, {sH}, 3')
    g(f's_add_u32 s48, s48, {sJ}')
    g('s_lshl_b32 s48, s48, 10')
    g(f's_add_u32 s49, s48, {Q1L}')
    g.addr('s[44:45]', S_WS, 's49')
    g(f's_add_u32 s49, s48, {Q1G}')
    g.addr('s[46:47]', S_WS, 's49')
    g('v_mul_u32_u24 v19, 40, v6')
    g('s_mov_b32 s56, 0')
    g('s_mov_b32 s57, -1')
    g('s_barrier')
    for k in range(5):
        g(f'ds_read_b64 v[{16+2*k}:{17+2*k}], v19 offset:{L_XN+8*k}')
    g('s_waitcnt lgkmcnt(0)')

    def perms(t):
        a = 160 + 4 * (t % 4)
        for v in range(4):
            g(f'v_perm_b32 v{a+v}, v{16+t//2}, v{16+t//2}, v{192+2*v+(t&1)}')
    perms(0)
    perms(1)
    for t in range(20):
        if t + 2 < 20:
            perms(t + 2)
        g(f's_waitcnt vmcnt({19-t+1})')
        a = 160 + 4 * (t % 4)
        c = '0' if t == 0 else 'v[200:203]'
        g(f'v_mfma_f32_16x16x32_bf16 v[200:203], v[{a}:{a+3}], v[{80+4*t}:{83+4*t}], {c}')
        if t == 17:
            pass
    g('s_waitcnt vmcnt(0)')
    g(f'v_readfirstlane_b32 {sTAG}, v2')
    g.nop(4)
    g(f's_mul_i32 {sTAG}, {sTAG}, 5')
    g(f's_add_u32 {sTAG}, {sTAG}, 0x9E3779B9')
    g(f'v_mov_b32 v207, {sTAG}')
    g('v_cndmask_b32 v204, v200, v202, s[56:57]')
    g('v_cndmask_b32 v205, v201, v203, s[56:57]')
    if 'q1g' not in opts:
        g(f'global_store_dwordx4 v3, v[204:207], s[44:45]')
    g(f'global_store_dwordx4 v3, v[204:207], s[46:47] sc1')
    g.stamp(2)
    g(f's_cmp_ge_u32 {sR}, 16')
    g('s_cbranch_scc1 L_pathB')
    g('s_branch L_bp1')

    g.label('L_b0')
    g('s_barrier')
    g('s_waitcnt vmcnt(0)')
    own_tag(g, 2)
    if 'wukb0' in opts:
        g(f's_cmp_ge_u32 {sWAVE}, 4')
        g('s_cbranch_scc0 L_pathB')
        wuk_dma()
        g('s_waitcnt vmcnt(0)')
    g('s_branch L_pathB')

    g.label('L_pre')
    pre(tagwait=True)
    g(f's_cmp_eq_u32 {sWAVE}, 2')
    g('s_cbranch_scc0 L_pre_nx')
    g('s_getreg_b32 s48, hwreg(HW_REG_XCC_ID)')
    g('s_and_b32 s48, s48, 0xf')
    g('v_mov_b32 v12, s48')
    g(f'v_mov_b32 v15, {sTAG}')
    g(f's_lshl_b32 s48, {sXCD}, 5')
    g(f's_add_u32 s48, s48, {sR}')
    g('s_lshl_b32 s48, s48, 4')
    g(f's_add_u32 s48, s48, {XID}')
    g('v_mov_b32 v16, s48')
    g('s_mov_b64 exec, 1')
    g(f'global_store_dwordx4 v16, v[12:15], {WS} sc1')
    g('s_mov_b64 exec, -1')
    g.label('L_pre_nx')
    g('s_barrier')
    g.label('L_bp')
    g('s_barrier')
    if 'halfdma' in opts:
        g(f's_cmp_ge_u32 {sWAVE}, 4')
        g('s_cbranch_scc1 L_a_dmadone')
    if 'fulldma' not in opts:
        dma()
    g.stamp(13)
    g('s_branch L_a_dmadone')
    g.label('L_pre0')
    pre()
    g('s_branch L_bp')
    g.label('L_bp1')
    g('s_barrier')
    if 'fulldma' not in opts:
        dma()
    g.stamp(13)
    pre()
    g.label('L_a_dmadone')
    g(f's_cmp_eq_u32 {sWAVE}, 3')
    g('s_cbranch_scc0 L_a_nochk')
    g(f's_lshl_b32 s48, {sXCD}, 9')
    g(f's_add_u32 s48, s48, {XID}')
    g('v_and_b32 v9, 31, v0')
    g('v_lshlrev_b32 v9, 4, v9')
    g('v_add_u32 v9, s48, v9')
    g('s_getreg_b32 s52, hwreg(HW_REG_XCC_ID)')
    g('s_and_b32 s52, s52, 0xf')
    g('s_mov_b32 s50, 0')
    g(f's_mov_b32 {sMODE}, 0')
    g.label('L_a_chk')
    g(f'global_load_dwordx4 v[12:15], v9, {WS} sc1')
    g('s_add_u32 s50, s50, 1')
    g('s_waitcnt vmcnt(0)')
    g(f'v_cmp_eq_u32 vcc, {sTAG}, v15')
    g('s_cmp_eq_u64 vcc, exec')
    g('s_cbranch_scc1 L_a_chk_ok')
    g('s_cmp_lt_u32 s50, 64')
    g('s_cbranch_scc1 L_a_chk')
    g('s_branch L_a_chk_done')
    g.label('L_a_chk_ok')
    g('v_cmp_eq_u32 vcc, s52, v12')
    g('s_cmp_eq_u64 vcc, exec')
    g(f's_cselect_b32 {sMODE}, 1, 0')
    g.label('L_a_chk_done')
    g(f'v_mov_b32 v12, {sMODE}')
    g(f'ds_write_b32 v1, v12 offset:{L_MODE}')
    g.label('L_a_nochk')
    wuv_ins = []
    for tt in range(4):
        wuv_ins.append(f'global_load_dwordx4 v[{64+4*tt}:{67+4*tt}], v254, s[96:97]' + ('' if 'helper' in opts else ' nt'))
        if tt < 3:
            wuv_ins.append('s_add_u32 s96, s96, 32768')
            wuv_ins.append('s_addc_u32 s97, s97, 0')
    g('s_waitcnt vmcnt(0) lgkmcnt(0)')
    g.stamp(3)
    g('s_barrier')
    FA = 96
    skip = g.uniq('skipfa')
    g(f's_cmp_lt_u32 {sWAVE}, 4')
    g(f's_cbranch_scc0 {skip}')
    for t in range(16):
        g(f'ds_read_b128 v[{FA+4*t}:{FA+4*t+3}], v{36+(t%4)} offset:{256*(t//4)}')
    g.label(skip)

    def vdma(half):
        g(f's_and_b32 s49, {sWAVE}, 3')
        g('s_lshl_b32 s49, s49, 13')
        g(f's_add_u32 m0, s49, {L_V + 32768 * half}')
        g.nop(1)
        for n in range(8):
            g('global_load_lds_dwordx4 v41, s[98:99]')
            if n < 7:
                g('s_add_u32 m0, m0, 1024')
                g('s_add_u32 s98, s98, 8192')
                g('s_addc_u32 s99, s99, 0')
        if half == 0:
            g(f's_add_u32 s98, s98, {8192 + 192 * 1024}')
            g('s_addc_u32 s99, s99, 0')
    g(f's_cmp_ge_u32 {sWAVE}, 4')
    g('s_cbranch_scc0 L_a_nv1')
    vdma(0)
    if 'vall' in opts:
        vdma(1)
    g.label('L_a_nv1')
    g(f'ds_read_b32 v12, v1 offset:{L_MODE}')
    g(f's_mov_b32 s63, {f2u(KAPPA):#x}')
    g.poll2('qa', [(f'global_load_dwordx4 v[{16+4*i}:{19+4*i}], v248, {WS} offset:{1024*i} sc1', 19 + 4 * i, None) for i in range(4)], MA, 10, 11)
    for i in range(4):
        g(f'ds_write_b64 v{44+(i>>1)}, v[{16+4*i}:{17+4*i}] offset:{512*(i&1)}')
    g.stamp(4)
    g('s_waitcnt lgkmcnt(0)')
    g(f'v_readfirstlane_b32 {sMODE}, v12')
    g('s_barrier')
    g(f's_cmp_ge_u32 {sWAVE}, 4')
    g('s_cbranch_scc1 L_a_v')
    g.begin_tail()
    g.label('L_a_v')
    if 'vall' not in opts and 'vpost' not in opts:
        vdma(1)
    g('s_barrier')
    if 'vpost' in opts:
        vdma(1)
    g('s_waitcnt vmcnt(0)')
    g.stamp(6)
    g('s_barrier')
    VT = 96
    for kr in range(8):
        for s2 in range(2):
            for h in range(2):
                d = VT + 8 * kr + 4 * s2 + 2 * h
                g(f'ds_read_b64_tr_b16 v[{d}:{d+1}], v40 offset:{2048*(4*kr+2*s2+h)}')
    g(f'v_mov_b32 v51, {sTAG}')
    if 'px4' in opts:
        g('s_waitcnt lgkmcnt(0)')
        g('s_branch L_a_bxg')
    else:
        g('s_branch L_a_px')
    g.end_tail()
    qreg = [192 + 4 * t for t in range(8)] + [16 + 4 * t for t in range(4)] + [80 + 4 * t for t in range(4)]
    for t in range(16):
        g(f'ds_read_b128 v[{qreg[t]}:{qreg[t]+3}], v{32+(t%4)} offset:{L_QL+256*(t//4)}')
    g(f'v_mov_b32 v63, {sTAG}')
    for t in range(16):
        g(f's_waitcnt lgkmcnt({15-t})')
        c = '0' if t == 0 else 'v[48:51]'
        g(f'v_mfma_f32_16x16x32_bf16 v[48:51], v[{FA+4*t}:{FA+4*t+3}], v[{qreg[t]}:{qreg[t]+3}], {c}')
    g.nop(8)
    g('v_max_f32 v52, v48, v49')
    g('v_max3_f32 v52, v52, v50, v51')
    g.row_reduce([52], [53], 'max')
    g(f'ds_write_b32 v47, v52 offset:{L_MB}')
    g('s_waitcnt lgkmcnt(0)')
    g('s_barrier')
    g.stamp(12)
    g(f'ds_read_b128 v[52:55], v46 offset:{L_MB}')
    g('s_waitcnt lgkmcnt(0)')
    g('v_max_f32 v52, v52, v53')
    g('v_max3_f32 v52, v52, v54, v55')
    g('v_mul_f32 v62, s63, v52')
    for k in range(4):
        g(f'v_fma_f32 v{48+k}, v{48+k}, s63, -v62')
    for k in range(4):
        g(f'v_exp_f32 v{48+k}, v{48+k}')
    g.nop(1)
    g('v_cvt_pk_bf16_f32 v60, v48, v49')
    g('v_cvt_pk_bf16_f32 v61, v50, v51')
    mode_store(g, [f'global_store_dwordx4 v58, v[60:63], {WS}'], sMODE)
    g.stamp(5)
    if 'px4' in opts:
        PR = [16 + 4 * i for i in range(4)] + [64 + 4 * i for i in range(4)]
        g('v_add_u32 v247, 16384, v246') if False else None
        g('v_add_u32 v252, 16384, v246')
        g.poll2('px', [(f'global_load_dwordx4 v[{PR[i]}:{PR[i]+3}], {"v246" if i < 4 else "v252"}, {WS} offset:{1024*(i%4)} sc1', PR[i] + 3, None) for i in range(8)],
                MA, 10, 11, hook=lambda: g('s_barrier'))
        for i in range(8):
            g(f'ds_write_b64 v56, v[{PR[i]}:{PR[i]+1}] offset:{8192*(i>>2)+1024*((i&3)>>1)+8*(i&1)}')
        g.set_exec(0xffff)
        g('ds_write_b32 v59, v18')
        g('ds_write_b32 v59, v66 offset:16')
        g('s_mov_b64 exec, -1')
        g.stamp(10)
        g('s_waitcnt lgkmcnt(0)')
        g.label('L_a_bxg')
        g('s_barrier')
    else:
        g('s_barrier')
        g.label('L_a_px')
        g.poll2('px', [(f'global_load_dwordx4 v[{16+4*i}:{19+4*i}], v246, {WS} offset:{1024*i} sc1', 19 + 4 * i, None) for i in range(4)], MA, 10, 11)
        for i in range(4):
            g(f'ds_write_b64 v56, v[{16+4*i}:{17+4*i}] offset:{1024*(i>>1)+8*(i&1)}')
        g.set_exec(0xffff)
        g('ds_write_b32 v59, v18')
        g('s_mov_b64 exec, -1')
        g.stamp(10)
        g('s_waitcnt lgkmcnt(0)')
        g('s_barrier')
    BF = 160

    def pv(lwave):
        g('ds_read_b128 v[32:35], v43')
        g('ds_read_b128 v[36:39], v43 offset:16')
        def bread(q):
            g(f'ds_read_b128 v[{BF+4*q}:{BF+4*q+3}], v42 offset:{1024*q}')
        for q in range(12):
            bread(q)
        if lwave:
            for k in range(4):
                g(f'v_mov_b32 v{88+k}, 0x3f803f80')
        g('s_waitcnt lgkmcnt(12)')
        g('v_max3_f32 v20, v32, v33, v34')
        g('v_max3_f32 v20, v20, v35, v36')
        g('v_max3_f32 v20, v20, v37, v38')
        g('v_max_f32 v20, v20, v39')
        for k in range(8):
            g(f'v_sub_f32 v{32+k}, v{32+k}, v20')
        DS = [224, 228, 232]
        nf = 1 if lwave else 4

        def fma(k):
            d = DS[k % 3]
            for r in range(nf):
                if k == 0:
                    g(f'v_mul_f32 v{236+r}, v{d+r}, v32')
                else:
                    g(f'v_fma_f32 v{236+r}, v{d+r}, v{32+k}, v{236+r}')
        for k in range(8):
            g(f's_waitcnt lgkmcnt({min(10, 14-2*k)})')
            d = DS[k % 3]
            for s2 in range(2):
                a = '88:91' if lwave else f'{VT+8*k+4*s2}:{VT+8*k+4*s2+3}'
                c = '0' if s2 == 0 else f'v[{d}:{d+3}]'
                g(f'v_mfma_f32_16x16x32_bf16 v[{d}:{d+3}], v[{a}], v[{BF+8*k+4*s2}:{BF+8*k+4*s2+3}], {c}')
            if k < 2:
                bread(12 + 2 * k)
                bread(13 + 2 * k)
            g(f'v_exp_f32 v{32+k}, v{32+k}')
            if k >= 2:
                fma(k - 2)
                if lwave:
                    g.nop(3)
        if lwave:
            g.nop(4)
        fma(6)
        if lwave:
            g.nop(4)
        else:
            g.nop(1)
        fma(7)

    g(f's_cmp_lt_u32 {sWAVE}, 4')
    g('s_cbranch_scc1 L_a_lw')
    g.begin_tail()
    g.label('L_a_lw')
    g(f's_cmp_eq_u32 {sWAVE}, 0')
    g('s_cbranch_scc0 L_a_w2')
    g('s_cmp_eq_u32 s58, 0')
    g('s_cbranch_scc0 L_a_w2')
    pv(True)
    g('v_mov_b32 v21, v236')
    g(f'v_mov_b32 v23, {sTAG}')
    g.set_exec(0xffff)
    g(f'global_store_dwordx4 v250, v[20:23], {WS} sc1')
    g('s_mov_b64 exec, -1')
    g.label('L_a_w2')
    if 'wuvlate' not in opts:
        for ins in wuv_ins:
            g(ins)
    g('s_branch L_a_s4')
    g.end_tail()
    pv(False)
    g('v_cvt_pk_bf16_f32 v48, v236, v237')
    g('v_cvt_pk_bf16_f32 v49, v238, v239')
    g(f'global_store_dwordx4 v244, v[48:51], {WS} sc1')
    g.stamp(7)
    if 'wuvlate' not in opts:
        for ins in wuv_ins:
            g(ins)
    g.label('L_a_s4')
    g('s_barrier')
    if 'wuvlate' in opts:
        for ins in wuv_ins:
            g(ins)

    g.poll2('ox', [(f'global_load_dwordx4 v[16:19], v245, {WS} sc1', 19, None)], MA, 10, 11)
    g.stamp(8)
    g('v_max_f32_dpp v22, v16, v16 row_ror:4 row_mask:0xf bank_mask:0xf')
    g.nop(2)
    g('v_max_f32_dpp v22, v22, v22 row_ror:8 row_mask:0xf bank_mask:0xf')
    g.nop(1)
    g('v_mov_b32 v23, v22')
    g.nop(2)
    g('v_permlane16_swap_b32 v23, v22')
    g.nop(1)
    g('v_max_f32 v22, v22, v23')
    g('v_sub_f32 v24, v16, v22')
    g('v_exp_f32 v24, v24')
    g('v_permlane32_swap_b32 v16, v17')
    g.nop(1)
    g('v_mul_f32 v22, v24, v17')
    g('v_lshlrev_b32 v25, 16, v16')
    g('v_add_f32_dpp v22, v22, v22 row_ror:4 row_mask:0xf bank_mask:0xf')
    g('v_and_b32 v26, 0xffff0000, v16')
    g.nop(1)
    g('v_add_f32_dpp v22, v22, v22 row_ror:8 row_mask:0xf bank_mask:0xf')
    g.nop(1)
    g('v_mov_b32 v23, v22')
    g.nop(2)
    g('v_permlane16_swap_b32 v23, v22')
    g.nop(1)
    g('v_add_f32 v22, v22, v23')
    g('v_rcp_f32 v22, v22')
    g.nop(1)
    g('v_mul_f32 v24, v24, v22')
    g('v_mov_b32 v23, v24')
    g.nop(2)
    g('v_permlane32_swap_b32 v23, v24')
    g.nop(1)
    g('v_mul_f32 v25, v25, v24')
    g('v_mul_f32 v26, v26, v24')
    g.nop(2)
    g('v_permlane16_swap_b32 v25, v26')
    g.nop(1)
    g('v_add_f32 v25, v25, v26')
    g.nop(2)
    g('v_add_f32_dpp v25, v25, v25 row_ror:4 row_mask:0xf bank_mask:0xf')
    g.nop(2)
    g('v_add_f32_dpp v25, v25, v25 row_ror:8 row_mask:0xf bank_mask:0xf')
    g('v_cvt_pk_bf16_f32 v25, v25, v25')
    g.nop(2)

    def ands(tt):
        a = 84 + 4 * (tt % 2)
        for v in range(4):
            g(f'v_and_b32_dpp v{a+v}, v25, v{240+v} quad_perm:[{tt},{tt},{tt},{tt}] row_mask:0xf bank_mask:0xf')
    ands(0)
    for tt in range(4):
        if tt < 3:
            ands(tt + 1)
        else:
            g.nop(2)
        a = 84 + 4 * (tt % 2)
        c = '0' if tt == 0 else 'v[92:95]'
        g(f'v_mfma_f32_16x16x32_bf16 v[92:95], v[{a}:{a+3}], v[{64+4*tt}:{67+4*tt}], {c}')
    g.set_exec(0xffffffff)
    g.nop(6)
    g(f'ds_write_b128 v247, v[92:95] offset:{L_RED}')
    g('s_mov_b64 exec, -1')
    g('s_waitcnt lgkmcnt(0)')
    g('s_barrier')
    g(f's_cmp_eq_u32 {sWAVE}, 0')
    g('s_cbranch_scc0 L_a_red')
    for w in range(8):
        g(f'ds_read_b64 v[{32+2*w}:{33+2*w}], v57 offset:{L_RED+512*w}')
    g(f'v_mov_b32 v23, {sTAG}')
    g('s_waitcnt lgkmcnt(0)')
    g('v_pk_add_f32 v[32:33], v[32:33], v[34:35]')
    g('v_pk_add_f32 v[36:37], v[36:37], v[38:39]')
    g('v_pk_add_f32 v[40:41], v[40:41], v[42:43]')
    g('v_pk_add_f32 v[44:45], v[44:45], v[46:47]')
    g('v_pk_add_f32 v[32:33], v[32:33], v[36:37]')
    g('v_pk_add_f32 v[40:41], v[40:41], v[44:45]')
    g('v_pk_add_f32 v[32:33], v[32:33], v[40:41]')
    g('v_cvt_pk_bf16_f32 v20, v32, v33')
    g.nop(2)
    g('v_mov_b32_dpp v21, v20 row_shl:1 row_mask:0xf bank_mask:0xf')
    g.set_exec(0x5555555555555555)
    mode_store(g, [f'global_store_dwordx4 v253, v[20:23], {WS}'], sMODE)
    g('s_mov_b64 exec, -1')
    g.stamp(9)
    g.label('L_a_red')
    if 'wb' in opts:
        g(f's_cmp_eq_u32 {sWAVE}, 5')
        g('s_cbranch_scc0 L_a_nwb')
        g(f's_cmp_eq_u32 {sR}, 12')
        g('s_cbranch_scc0 L_a_nwb')
        g('buffer_wbl2 sc1')
        g('s_waitcnt vmcnt(0)')
        g.label('L_a_nwb')
    if stop_after == 4:
        g('s_branch L_fin')
    g(f's_cmp_eq_u32 {sWAVE}, 7')
    g('s_cbranch_scc0 L_fin')
    g(f's_cmp_lt_u32 {sR}, 10')
    g('s_cbranch_scc0 L_fin')
    g(f's_mul_i32 s55, {sXCD}, 10')
    g(f's_add_u32 s55, s55, {sR}')
    g('v_and_b32 v7, 3, v0')
    g('v_lshrrev_b32 v6, 5, v0')
    g('v_and_b32 v8, 1, v7')
    g('v_lshlrev_b32 v8, 2, v8')
    g('v_lshrrev_b32 v9, 1, v7')
    g('v_add_u32 v8, v8, v9')
    g('v_lshl_add_u32 v8, v6, 1, v8')
    g('s_lshl_b32 s48, s55, 3')
    g('v_add_u32 v31, s48, v8')
    g('v_lshlrev_b32 v31, 1, v31')
    g(f'global_load_ushort v30, v31, {S_X}')
    g('v_and_b32 v9, 7, v0')
    g('v_mul_u32_u24 v9, 2560, v9')
    g('v_bfe_u32 v10, v0, 3, 1')
    g('v_lshl_add_u32 v9, v10, 4, v9')
    g('s_lshr_b32 s48, s55, 4')
    g('s_lshl_b32 s48, s48, 9')
    g('s_and_b32 s49, s55, 15')
    g('s_lshl_b32 s49, s49, 5')
    g('s_add_u32 s48, s48, s49')
    g(f's_add_u32 s48, s48, {OUTP}')
    g('v_add_u32 v9, s48, v9')
    g('s_lshl_b32 s48, s55, 6')
    g(f's_add_u32 s48, s48, {O2P}')
    g('v_lshrrev_b32 v12, 2, v0')
    g('v_mul_u32_u24 v12, 5120, v12')
    g('v_lshl_add_u32 v12, v7, 4, v12')
    g('v_add_u32 v12, s48, v12')
    g(f'v_add_u32 v13, {16*5120}, v12')
    g(f'v_add_u32 v14, {32*5120}, v12')
    g(f'v_add_u32 v15, {48*5120}, v12')
    g(f'v_mov_b32 v44, {sTAG}')
    g('v_mov_b32 v46, 0')
    g('v_mov_b32 v47, 0')
    g(f'v_mov_b32 v19, {sTAG}')
    g('v_mov_b32 v16, 0')
    g('v_mov_b32 v17, 0')
    g('v_lshrrev_b32 v28, 2, v8')
    g('v_lshlrev_b32 v28, 5, v28')
    g('v_and_b32 v29, 3, v8')
    g.poll2('hf', [(f'global_load_dwordx4 v[16:19], v9, {WS} sc1', 19, 0xffff)], MA, 10, 11)
    g('v_lshlrev_b32 v20, 16, v16')
    g('v_and_b32 v21, 0xffff0000, v16')
    g('v_lshlrev_b32 v22, 16, v17')
    g('v_and_b32 v23, 0xffff0000, v17')
    for ctl in ['quad_perm:[1,0,3,2]', 'quad_perm:[2,3,0,1]', 'row_half_mirror']:
        g.nop(1)
        for k in range(4):
            g(f'v_add_f32_dpp v{20+k}, v{20+k}, v{20+k} {ctl} row_mask:0xf bank_mask:0xf')
    g.nop(1)
    for k in range(4):
        g(f'ds_bpermute_b32 v{24+k}, v28, v{20+k}')
    g('s_waitcnt lgkmcnt(0)')
    g('v_cmp_eq_u32 vcc, 1, v29')
    g.nop(1)
    g('v_cndmask_b32 v24, v24, v25, vcc')
    g('v_cmp_eq_u32 vcc, 2, v29')
    g.nop(1)
    g('v_cndmask_b32 v24, v24, v26, vcc')
    g('v_cmp_eq_u32 vcc, 3, v29')
    g.nop(1)
    g('v_cndmask_b32 v16, v24, v27, vcc')
    rnd_bf16(g, 16)
    g('v_lshlrev_b32 v30, 16, v30')
    g('v_add_f32 v30, v30, v16')
    rnd_bf16(g, 30)
    g.poll2('o2', [(f'global_load_dwordx4 v[{32+4*i}:{35+4*i}], v{12+i}, {WS} sc1', 32 + 4 * i, None) for i in range(3)] +
            [(f'global_load_dwordx4 v[44:47], v15, {WS} sc1', 44, 0xffffff)], MA, 10, 11)
    g.stamp(9)
    g('v_pk_add_f32 v[16:17], v[34:35], v[38:39]')
    g('v_pk_add_f32 v[18:19], v[42:43], v[46:47]')
    g('v_pk_add_f32 v[16:17], v[16:17], v[18:19]')
    g.nop(2)
    g('v_permlane32_swap_b32 v16, v17')
    g.nop(1)
    g('v_add_f32 v16, v16, v17')
    g('v_mov_b32 v17, v16')
    g.nop(2)
    g('v_permlane16_swap_b32 v17, v16')
    g.nop(1)
    g('v_add_f32 v16, v16, v17')
    g.nop(2)
    g('v_add_f32_dpp v16, v16, v16 row_ror:4 row_mask:0xf bank_mask:0xf')
    g.nop(2)
    g('v_add_f32_dpp v16, v16, v16 row_ror:8 row_mask:0xf bank_mask:0xf')
    rnd_bf16(g, 16)
    g('v_add_f32 v16, v16, v30')
    g('v_cvt_pk_bf16_f32 v16, v16, v16')
    g('s_mov_b32 exec_lo, 0xf')
    g('s_mov_b32 exec_hi, 0xf')
    g(f'global_store_short v31, v16, {S_OUT}')
    g('s_mov_b64 exec, -1')
    g('s_cmp_eq_u32 s55, 0')
    g('s_cbranch_scc0 L_fin')
    g('s_mov_b64 exec, 1')
    g(f'v_mov_b32 v2, {sTAG}')
    g(f'global_store_dword v1, v2, {WS} sc1')
    g('s_mov_b64 exec, -1')
    g('s_branch L_fin')

    g.label('L_pathB')
    g(f's_sub_u32 s54, {sR}, 16')
    g('s_lshr_b32 s48, s54, 2')
    g(f's_lshl_b32 s49, {sXCD}, 2')
    g('s_add_u32 s55, s48, s49')
    g(f's_cmp_eq_u32 {sWAVE}, 0')
    g('s_cbranch_scc0 L_b1')
    g('s_lshl_b32 s48, s55, 13')
    g(f's_add_u32 s49, s48, {Q1L}')
    g.addr('s[40:41]', S_WS, 's49')
    g(f's_add_u32 s49, s48, {Q1G}')
    g.addr('s[42:43]', S_WS, 's49')
    g('v_add_u32 v4, 4096, v3')
    g('v_and_b32 v14, 1, v6')
    g('v_lshlrev_b32 v14, 3, v14')
    g('v_lshl_add_u32 v14, v7, 4, v14')
    g('v_lshrrev_b32 v15, 1, v6')
    g('v_lshl_add_u32 v14, v15, 2, v14')
    g.poll2('q1', [(f'global_load_dwordx4 v[{32+4*k}:{35+4*k}], {"v3" if k < 4 else "v4"}, {{base}} offset:{1024*(k%4)} sc1', 35 + 4 * k, None) for k in range(8)],
            MQ, 10, 11, alt=('s[42:43]', 's[42:43]') if 'q1g' in opts else ('s[40:41]', 's[42:43]'))
    g.stamp(3)
    g('v_pk_add_f32 v[12:13], v[32:33], v[36:37]')
    g('v_pk_add_f32 v[10:11], v[40:41], v[44:45]')
    g('v_pk_add_f32 v[16:17], v[48:49], v[52:53]')
    g('v_pk_add_f32 v[18:19], v[56:57], v[60:61]')
    g('v_pk_add_f32 v[12:13], v[12:13], v[10:11]')
    g('v_pk_add_f32 v[16:17], v[16:17], v[18:19]')
    g('v_pk_add_f32 v[12:13], v[12:13], v[16:17]')
    g('v_cvt_pk_bf16_f32 v12, v12, v13')
    g(f'ds_write_b32 v14, v12 offset:{L_QB}')
    g('s_waitcnt lgkmcnt(0)')
    g('s_barrier')
    g('s_branch L_b2')
    g.label('L_b1')
    g('s_lshl_b32 s48, s55, 11')
    g('s_and_b32 s49, s54, 3')
    g('s_lshl_b32 s49, s49, 9')
    g('s_add_u32 s48, s48, s49')
    g(f's_and_b32 s49, {sWAVE}, 3')
    g('s_lshl_b32 s49, s49, 7')
    g('s_add_u32 s48, s48, s49')
    g(f's_add_u32 s48, s48, {QA}')
    g('v_lshlrev_b32 v9, 4, v6')
    g('v_lshl_add_u32 v104, v7, 6, v9')
    g('v_add_u32 v104, s48, v104')
    g(f'v_mov_b32 v103, {sTAG}')
    g('s_mov_b32 s56, 0x00020002')
    g('s_mov_b32 s57, 0x00020002')
    g(f's_cmp_ge_u32 {sWAVE}, 4')
    g('s_cbranch_scc0 L_b1x')
    g.begin_tail()
    g.label('L_b1x')
    g('s_barrier')
    g('s_branch L_b2')
    g.end_tail()
    g(f's_and_b32 s49, {sWAVE}, 3')
    g('s_lshl_b32 s49, s49, 13')
    g(f's_add_u32 s49, s49, {L_TILE}')
    g('v_lshl_add_u32 v12, v7, 8, s49')
    for t in range(4):
        g(f'v_add_u32 v13, {4*t}, v6')
        g('v_xor_b32 v13, v13, v7')
        g('v_lshl_add_u32 v13, v13, 4, v12')
        for tau in range(2):
            g(f'ds_read_b128 v[{64+16*tau+4*t}:{67+16*tau+4*t}], v13 offset:{4096*tau}')
    g('s_waitcnt lgkmcnt(0)')
    g('s_barrier')
    for t in range(4):
        g(f'ds_read_b128 v[{108+4*t}:{111+4*t}], v9 offset:{L_QB+64*t}')
    for t in range(4):
        g(f's_waitcnt lgkmcnt({3-t})')
        for tau in range(2):
            c = '0' if t == 0 else f'v[{96+8*tau}:{99+8*tau}]' if False else ('0' if t == 0 else f'v[{124+4*tau}:{127+4*tau}]')
            g(f'v_mfma_f32_16x16x32_bf16 v[{124+4*tau}:{127+4*tau}], v[{64+16*tau+4*t}:{67+16*tau+4*t}], v[{108+4*t}:{111+4*t}], {c}')
    g('s_mov_b32 exec_lo, 0x00030003')
    g('s_mov_b32 exec_hi, 0x00030003')
    g.nop(6)
    g('v_cvt_pk_bf16_f32 v96, v124, v125')
    g('v_cvt_pk_bf16_f32 v97, v126, v127')
    g('v_cvt_pk_bf16_f32 v98, v128, v129')
    g('v_cvt_pk_bf16_f32 v99, v130, v131')
    g('v_cndmask_b32 v100, v96, v98, s[56:57]')
    g('v_cndmask_b32 v101, v97, v99, s[56:57]')
    g(f'global_store_dwordx4 v104, v[100:103], {WS} sc1')
    g('s_mov_b64 exec, -1')
    g.stamp(4)
    g.label('L_b2')
    if stop_after in (2, 3, 4):
        g('s_branch L_fin')
    if 'pace' in opts or 'paceml' in opts:
        g(f's_cmp_eq_u32 {sWAVE}, 0')
        g('s_cbranch_scc0 L_b2p')
        if 'paceml' in opts:
            g('s_cmp_lt_u32 s54, 5')
            g('s_cbranch_scc1 L_b2p')
        g('v_lshrrev_b32 v12, 1, v0')
        g('v_lshlrev_b32 v12, 11, v12')
        g('v_and_b32 v13, 1, v0')
        g('v_lshl_add_u32 v12, v13, 10, v12')
        g(f'v_add_u32 v12, {QA + 1008}, v12')
        g('s_mov_b32 s50, 0')
        g.label('L_b2q')
        g(f'global_load_dwordx4 v[16:19], v12, {WS} sc1')
        g('s_add_u32 s50, s50, 1')
        g('s_waitcnt vmcnt(0)')
        g(f'v_cmp_ne_u32 vcc, {sTAG}, v19')
        g('s_cmp_eq_u64 vcc, 0')
        g('s_cbranch_scc1 L_b2p')
        g('s_cmp_lt_u32 s50, 64')
        g('s_cbranch_scc1 L_b2q')
        g.label('L_b2p')
    if 'pacepf' in opts:
        g(f's_cmp_eq_u32 {sWAVE}, 0')
        g('s_cbranch_scc0 L_b2u')
        g('s_cmp_lt_u32 s54, 5')
        g('s_cbranch_scc1 L_b2u')
        g(f's_lshl_b32 s48, {sXCD}, 8')
        g(f's_add_u32 s48, s48, {PF}')
        g('v_and_b32 v12, NPF, v0'.replace('NPF', str(int([o for o in opts if o.startswith('npf')][0][3:]) - 1 if any(o.startswith('npf') for o in opts) else 3)))
        g('v_lshl_add_u32 v12, v12, 4, s48')
        g('s_mov_b32 s50, 0')
        g.label('L_b2t')
        g(f'global_load_dwordx4 v[16:19], v12, {WS} sc1')
        g('s_add_u32 s50, s50, 1')
        g('s_waitcnt vmcnt(0)')
        g(f'v_cmp_ne_u32 vcc, {sTAG}, v19')
        g('s_cmp_eq_u64 vcc, 0')
        g('s_cbranch_scc1 L_b2u')
        g('s_cmp_lt_u32 s50, 256')
        g('s_cbranch_scc1 L_b2t')
        g.label('L_b2u')
    if 'pacemll' in opts:
        g(f's_cmp_eq_u32 {sWAVE}, 0')
        g('s_cbranch_scc0 L_b2r')
        g('s_cmp_lt_u32 s54, 5')
        g('s_cbranch_scc1 L_b2r')
        g(f's_lshl_b32 s48, {sXCD}, 12')
        g(f's_add_u32 s48, s48, {MLL}')
        g('v_add_u32 v12, s48, v3')
        g('s_mov_b32 s50, 0')
        g.label('L_b2s')
        g(f'global_load_dwordx4 v[16:19], v12, {WS} sc1')
        g('s_add_u32 s50, s50, 1')
        g('s_waitcnt vmcnt(0)')
        g(f'v_cmp_ne_u32 vcc, {sTAG}, v19')
        g('s_cmp_eq_u64 vcc, 0')
        g('s_cbranch_scc1 L_b2r')
        g('s_cmp_lt_u32 s50, 256')
        g('s_cbranch_scc1 L_b2s')
        g.label('L_b2r')
    g('s_barrier')
    g.stamp(5)
    g('v_lshrrev_b32 v8, 3, v7')
    g('v_and_b32 v9, 7, v0')
    g('v_lshl_add_u32 v10, v8, 2, v6')
    g('s_cmp_lt_u32 s54, 5')
    g('s_cbranch_scc1 L_b_wo')
    if 'helper' in opts:
        g('s_cmp_ge_u32 s54, 12')
        g('s_cbranch_scc1 L_b_help')
        g('s_sub_u32 s48, s54, 5')
        g(f's_mul_i32 s49, {sXCD}, 7')
        g('s_add_u32 s58, s49, s48')
        g('s_cmp_lt_u32 s58, 54')
        g('s_cbranch_scc0 L_fin')
        g('s_branch L_b_mlpld')
        g.label('L_b_help')
        g('s_sub_u32 s48, s54, 12')
        g(f's_lshl_b32 s49, {sXCD}, 2')
        g('s_add_u32 s48, s48, s49')
        g('s_lshl_b32 s48, s48, 8')
        g(f's_lshl_b32 s49, {sWAVE}, 19')
        g('s_add_u32 s48, s48, s49')
        g.addr('s[40:41]', S_WUV, 's48')
        g('v_lshlrev_b32 v11, 13, v6')
        g('v_lshl_add_u32 v11, v7, 4, v11')
        for t in range(16):
            g(f'global_load_dwordx4 v[{64+4*t}:{67+4*t}], v11, s[40:41]')
            if t < 15:
                g('s_add_u32 s40, s40, 32768')
                g('s_addc_u32 s41, s41, 0')
        g('s_waitcnt vmcnt(0)')
        g.stamp(6)
        g('s_branch L_fin')
    else:
        g('s_sub_u32 s48, s54, 5')
        g('s_lshr_b32 s49, s48, 1')
        g('s_lshl_b32 s49, s49, 3')
        g(f's_add_u32 s49, s49, {sXCD}')
        g('s_cmp_lt_u32 s49, 27')
        g('s_cbranch_scc0 L_fin')
        g('s_lshl_b32 s49, s49, 1')
        g('s_and_b32 s48, s48, 1')
        g('s_add_u32 s58, s49, s48')
        g('s_branch L_b_mlpld')
    g.label('L_b_wo')
    g(f's_lshl_b32 s48, {sXCD}, 3')
    g(f's_add_u32 s48, s48, {sWAVE}')
    g(f's_mul_i32 s48, s48, {64*1280}')
    g('s_lshl_b32 s49, s54, 8')
    g('s_add_u32 s48, s48, s49')
    g.addr('s[40:41]', S_WO, 's48')
    g('v_mul_u32_u24 v11, 1280, v6')
    g('v_lshl_add_u32 v11, v7, 4, v11')
    for t in range(16):
        g(f'global_load_dwordx4 v[{32+4*t}:{35+4*t}], v11, s[40:41] nt')
        if t < 15:
            g('s_add_u32 s40, s40, 5120')
            g('s_addc_u32 s41, s41, 0')
    gen_mask(g, 192, 16, 17)
    g(f's_lshr_b32 s48, {sWAVE}, 1')
    g('s_lshl_b32 s48, s48, 2')
    g(f's_lshl_b32 s49, {sXCD}, 4')
    g('s_add_u32 s48, s48, s49')
    g('s_lshl_b32 s48, s48, 9')
    g(f's_and_b32 s49, {sWAVE}, 1')
    g('s_lshl_b32 s49, s49, 8')
    g('s_add_u32 s48, s48, s49')
    g(f's_add_u32 s48, s48, {C4}')
    g('v_lshlrev_b32 v11, 9, v6')
    g('v_lshl_add_u32 v11, v7, 4, v11')
    g('v_add_u32 v11, s48, v11')
    g('v_lshlrev_b32 v26, 5, v7')
    g('v_lshl_add_u32 v26, v6, 4, v26')
    g(f's_lshl_b32 s48, {sWAVE}, 9')
    g('v_add_u32 v26, s48, v26')
    g('v_lshlrev_b32 v28, 3, v0')
    g(f's_mul_i32 s48, {sXCD}, 2560')
    g('s_lshl_b32 s49, s54, 9')
    g('s_add_u32 s48, s48, s49')
    g(f's_add_u32 s48, s48, {OUTP}')
    g('v_lshrrev_b32 v29, 1, v0')
    g('v_lshl_add_u32 v29, v29, 4, s48')
    g(f'v_mov_b32 v147, {sTAG}')
    if g.stamps:
        g.stamp(8)
        g('s_waitcnt vmcnt(0)')
        g.stamp(9)
    g.poll2('c4', [(f'global_load_dwordx4 v[16:19], v11, {WS} sc1', 19, None)], MB, 13, 14)
    g.stamp(6)
    g('v_lshlrev_b32 v20, 16, v16')
    g('v_and_b32 v21, 0xffff0000, v16')
    g('v_lshlrev_b32 v22, 16, v17')
    g('v_and_b32 v23, 0xffff0000, v17')
    g.nop(1)
    g('v_permlane32_swap_b32 v20, v22')
    g('v_permlane32_swap_b32 v21, v23')
    g.nop(1)
    g('v_add_f32 v20, v20, v22')
    g('v_add_f32 v21, v21, v23')
    g.nop(2)
    g('v_permlane16_swap_b32 v20, v21')
    g.nop(1)
    g('v_add_f32 v20, v20, v21')
    g('v_cvt_pk_bf16_f32 v20, v20, v20')
    g.nop(2)

    def wands(t):
        a = 224 + 4 * (t % 4)
        for v in range(4):
            g(f'v_and_b32_dpp v{a+v}, v20, v{192+v} row_newbcast:{t} row_mask:0xf bank_mask:0xf')
    wands(0)
    wands(1)
    for t in range(16):
        if t + 2 < 16:
            wands(t + 2)
        a = 224 + 4 * (t % 4)
        c = '0' if t == 0 else 'v[200:203]'
        g(f'v_mfma_f32_16x16x32_bf16 v[200:203], v[{a}:{a+3}], v[{32+4*t}:{35+4*t}], {c}')
    g.set_exec(0xffffffff)
    g.nop(6)
    g(f'ds_write_b128 v26, v[200:203] offset:{L_RED}')
    g('s_mov_b64 exec, -1')
    g('s_waitcnt lgkmcnt(0)')
    g('s_barrier')
    g(f's_cmp_eq_u32 {sWAVE}, 0')
    g('s_cbranch_scc0 L_fin')
    for w in range(8):
        g(f'ds_read_b64 v[{160+2*w}:{161+2*w}], v28 offset:{L_RED+512*w}')
    g('s_waitcnt lgkmcnt(0)')
    g('v_pk_add_f32 v[160:161], v[160:161], v[162:163]')
    g('v_pk_add_f32 v[164:165], v[164:165], v[166:167]')
    g('v_pk_add_f32 v[168:169], v[168:169], v[170:171]')
    g('v_pk_add_f32 v[172:173], v[172:173], v[174:175]')
    g('v_pk_add_f32 v[160:161], v[160:161], v[164:165]')
    g('v_pk_add_f32 v[168:169], v[168:169], v[172:173]')
    g('v_pk_add_f32 v[160:161], v[160:161], v[168:169]')
    g('v_cvt_pk_bf16_f32 v144, v160, v161')
    g.nop(2)
    g('v_mov_b32_dpp v145, v144 row_shl:1 row_mask:0xf bank_mask:0xf')
    g.set_exec(0x5555555555555555)
    g(f'global_store_dwordx4 v29, v[144:147], {WS} sc1')
    g('s_mov_b64 exec, -1')
    g.stamp(7)
    g('s_branch L_fin')

    def gemv(n, src, wbase, d, ab=224, reuse=False, keep=False):
        ns = n if keep else 4
        def pm(t):
            a = ab + 4 * (t % ns)
            for v in range(4):
                g(f'v_perm_b32 v{a+v}, v{src+t//2}, v{src+t//2}, v{192+2*v+(t&1)}')
        if not reuse:
            pm(0)
            if n > 1:
                pm(1)
        for t in range(n):
            if not reuse and t + 2 < n:
                pm(t + 2)
            a = ab + 4 * (t % ns)
            c = '0' if t == 0 else f'v[{d}:{d+3}]'
            g(f'v_mfma_f32_16x16x32_bf16 v[{d}:{d+3}], v[{a}:{a+3}], v[{wbase+4*t}:{wbase+4*t+3}], {c}')

    g.label('L_b_mlpld')
    if stop_after == 5:
        g('s_branch L_fin')
    gen_sel(g, 192, 16, 17)
    if 'mlrot' in opts:
        g('s_and_b32 s57, s58, 1')
        g('s_lshl_b32 s57, s57, 2')
        g(f's_add_u32 s57, s57, {sWAVE}')
        g('s_and_b32 s57, s57, 7')
    else:
        g(f's_mov_b32 s57, {sWAVE}')
    g('v_and_b32 v26, 1, v6')
    g('v_lshlrev_b32 v26, 2, v26')
    g('v_lshl_add_u32 v26, v9, 3, v26')
    g('v_lshrrev_b32 v27, 1, v6')
    g('v_add_u32 v26, v26, v27')
    g('v_lshlrev_b32 v26, 2, v26')
    g(f's_lshl_b32 s48, {sWAVE}, 8')
    g('v_add_u32 v26, s48, v26')
    g('v_cmp_le_u32 vcc, 4, v9')
    g('v_mov_b32 v12, s22')
    g('v_mov_b32 v13, s24')
    g('v_mov_b32 v14, s23')
    g('v_mov_b32 v15, s25')
    g('v_cndmask_b32 v12, v12, v13, vcc')
    g('v_cndmask_b32 v13, v14, v15, vcc')
    g('v_and_b32 v14, 3, v0')
    g('v_lshlrev_b32 v14, 4, v14')
    g('s_lshl_b32 s48, s58, 6')
    g(f's_mul_i32 s49, s57, {80*3456}')
    g('s_add_u32 s48, s48, s49')
    g('v_add_u32 v14, s48, v14')
    g(f'v_mul_u32_u24 v15, {8*3456}, v10')
    g('v_add_u32 v15, v15, v14')
    g(f'v_mul_u32_u24 v16, {2*3456}, v10')
    g('v_add_u32 v16, v16, v14')
    g(f'v_add_u32 v16, {64*3456}, v16')
    for t in range(10):
        if t == 0:
            src = 15
        elif t == 8:
            src = 16
        g(f'v_add_co_u32 v18, vcc, v12, v{src}')
        g.nop(2)
        g('v_addc_co_u32 v19, vcc, 0, v13, vcc')
        g(f'global_load_dwordx4 v[{64+4*t}:{67+4*t}], v[18:19], off' + ('' if 'gunt0' in opts else ' sc0 nt' if 'gusc0' in opts else ' nt'))
        g(f'v_add_u32 v{src}, 3456, v{src}')
    g('s_lshl_b32 s48, s58, 5')
    g(f's_mul_i32 s48, s48, 1280')
    g(f's_lshl_b32 s49, {sWAVE}, 7')
    g('s_add_u32 s48, s48, s49')
    g.addr('s[40:41]', S_WD, 's48')
    g(f'v_mul_u32_u24 v11, {4*1280}, v10')
    g('v_lshl_add_u32 v11, v9, 4, v11')
    for t in range(4):
        g(f'global_load_dwordx4 v[{104+4*t}:{107+4*t}], v11, s[40:41] offset:{1280*t} nt')
    g(f's_cmp_lt_u32 {sWAVE}, 2')
    g('s_cbranch_scc0 L_b_nod2')
    g('s_add_u32 s40, s40, 1024')
    g('s_addc_u32 s41, s41, 0')
    for t in range(4):
        g(f'global_load_dwordx4 v[{120+4*t}:{123+4*t}], v11, s[40:41] offset:{1280*t} nt')
    g.label('L_b_nod2')
    g(f's_lshl_b32 s48, {sWAVE}, 8')
    g('s_min_u32 s48, s48, 1024')
    g('v_and_b32 v17, 31, v0')
    g('v_lshlrev_b32 v17, 3, v17')
    g('v_lshrrev_b32 v29, 5, v0')
    g('v_lshl_add_u32 v17, v29, 2, v17')
    g('v_add_u32 v143, s48, v17')
    g(f'global_load_dword v140, v143, {S_X}')
    g(f'global_load_ushort v141, v1, {S_X}')
    g.stamp(6)
    g('s_waitcnt vmcnt(0)')
    g.stamp(7)
    g('v_lshlrev_b32 v141, 16, v141')
    g.nop(1)
    g('v_readfirstlane_b32 s53, v141')
    gen_mask(g, 220, 16, 17)
    for v in range(4):
        g(f'v_and_b32 v{220+v}, 0x3f803f80, v{220+v}')
    g.nop(2)
    for t in range(10):
        c = '0' if t == 0 else 'v[200:203]'
        g(f'v_mfma_f32_16x16x32_bf16 v[200:203], v[220:223], v[{64+4*t}:{67+4*t}], {c}')
    g.nop(8)
    class_combine(g, 200)
    g.set_exec(0x00ff00ff00ff00ff)
    g('ds_write2_b32 v26, v200, v202 offset0:0 offset1:2')
    g('s_mov_b64 exec, -1')
    g('s_waitcnt lgkmcnt(0)')
    g('s_barrier')
    g('v_lshlrev_b32 v29, 2, v0')
    for w in range(8):
        g(f'ds_read_b32 v{160+w}, v29 offset:{256*w}')
    g('s_waitcnt lgkmcnt(0)')
    g('v_add_f32 v160, v160, v161')
    g('v_add_f32 v162, v162, v163')
    g('v_add_f32 v164, v164, v165')
    g('v_add_f32 v166, v166, v167')
    g('v_add_f32 v160, v160, v162')
    g('v_add_f32 v164, v164, v166')
    g('v_add_f32 v142, v160, v164')
    g('s_barrier')
    g('s_mul_i32 s48, s57, 160')
    g('v_lshlrev_b32 v27, 4, v10')
    g('v_add_u32 v27, s48, v27')
    g('v_lshlrev_b32 v28, 2, v10')
    g('v_add_u32 v28, s48, v28')
    g('v_lshlrev_b32 v30, 3, v10')
    g('v_and_b32 v31, 31, v0')
    g('v_lshlrev_b32 v31, 1, v31')
    g('v_lshlrev_b32 v14, 6, v9')
    g('v_lshl_add_u32 v14, v6, 4, v14')
    g(f's_mul_i32 s48, s58, 5120')
    g(f's_lshl_b32 s49, {sWAVE}, 9')
    g('s_add_u32 s48, s48, s49')
    g(f's_add_u32 s48, s48, {O2P}')
    g('v_add_u32 v14, s48, v14')
    g(f'v_add_u32 v15, {8*512}, v14')
    g(f'v_mov_b32 v202, {sTAG}')
    g(f's_lshl_b32 s48, {sWAVE}, 3')
    g('v_mov_b32 v144, s48')
    g(f's_cmp_lt_u32 {sWAVE}, 5')
    g('s_cbranch_scc0 L_m_b1')
    g(f's_lshl_b32 s48, {sWAVE}, 9')
    g(f's_add_u32 s48, s48, {OUTP}')
    g('v_lshrrev_b32 v152, 5, v0')
    g('v_mul_u32_u24 v152, 2560, v152')
    g('v_and_b32 v153, 31, v0')
    g('v_lshl_add_u32 v152, v153, 4, v152')
    g('v_add_u32 v152, s48, v152')
    for k in range(1, 4):
        g(f'v_add_u32 v{152+k}, {5120*k}, v152')
    g('v_lshlrev_b32 v148, 16, v140')
    g('v_and_b32 v149, 0xffff0000, v140')
    g.poll2('outp', [(f'global_load_dwordx4 v[{160+4*k}:{163+4*k}], v{152+k}, {WS} sc1', 163 + 4 * k, None) for k in range(4)], MB, 12, 13)
    g.stamp(8)
    for k in range(4):
        g(f'v_lshlrev_b32 v{176+4*k}, 16, v{160+4*k}')
        g(f'v_and_b32 v{177+4*k}, 0xffff0000, v{160+4*k}')
        g(f'v_lshlrev_b32 v{178+4*k}, 16, v{161+4*k}')
        g(f'v_and_b32 v{179+4*k}, 0xffff0000, v{161+4*k}')
        if k == 1:
            g('v_pk_add_f32 v[176:177], v[176:177], v[180:181]')
            g('v_pk_add_f32 v[178:179], v[178:179], v[182:183]')
    g('v_pk_add_f32 v[184:185], v[184:185], v[188:189]')
    g('v_pk_add_f32 v[186:187], v[186:187], v[190:191]')
    g('v_pk_add_f32 v[176:177], v[176:177], v[184:185]')
    g('v_pk_add_f32 v[178:179], v[178:179], v[186:187]')
    g.nop(1)
    g('v_permlane32_swap_b32 v176, v178')
    g('v_permlane32_swap_b32 v177, v179')
    g.nop(1)
    g('v_add_f32 v16, v176, v178')
    g('v_add_f32 v17, v177, v179')
    g('v_cvt_pk_bf16_f32 v16, v16, v17')
    g('v_lshlrev_b32 v18, 16, v16')
    g('v_and_b32 v19, 0xffff0000, v16')
    g('v_pk_add_f32 v[18:19], v[18:19], v[148:149]')
    g('v_cvt_pk_bf16_f32 v16, v18, v19')
    g(f'ds_write_b32 v143, v16 offset:{L_HB}')
    g('v_lshlrev_b32 v18, 16, v16')
    g('v_and_b32 v19, 0xffff0000, v16')
    g('v_subrev_f32 v18, s53, v18')
    g('v_subrev_f32 v19, s53, v19')
    g('v_add_f32 v160, v18, v19')
    g('v_mul_f32 v161, v18, v18')
    g('v_fmac_f32 v161, v19, v19')
    g.wave_reduce([160, 161], [162, 163])
    g('s_mov_b64 exec, 1')
    g(f'ds_write_b64 v144, v[160:161] offset:{L_ST}')
    g('s_mov_b64 exec, -1')
    g('s_waitcnt lgkmcnt(0)')
    g.label('L_m_b1')
    g('s_barrier')
    g.stamp(9)
    g(f'ds_read_b128 v[176:179], v27 offset:{L_HB}')
    g(f'ds_read_b32 v180, v28 offset:{L_HB+128}')
    g(f's_cmp_eq_u32 {sWAVE}, 7')
    g('s_cbranch_scc1 L_m_st')
    g.begin_tail()
    g.label('L_m_st')
    g(f'ds_read_b128 v[160:163], v1 offset:{L_ST}')
    g(f'ds_read_b128 v[164:167], v1 offset:{L_ST+16}')
    g(f'ds_read_b64 v[168:169], v1 offset:{L_ST+32}')
    g('s_branch L_m_ns')
    g.end_tail()
    g.label('L_m_ns')
    g('s_waitcnt lgkmcnt(0)')
    gemv(10, 176, 64, 208)
    g.nop(8)
    class_combine(g, 208)
    g.set_exec(0x00ff00ff00ff00ff)
    g('ds_write2_b32 v26, v208, v210 offset0:0 offset1:2')
    g('s_mov_b64 exec, -1')
    g('s_waitcnt lgkmcnt(0)')
    g('s_barrier')
    g.stamp(10)
    g(f's_cmp_eq_u32 {sWAVE}, 7')
    g('s_cbranch_scc0 L_m_b3')
    for w in range(8):
        g(f'ds_read_b32 v{184+w}, v29 offset:{256*w}')
    g('v_pk_add_f32 v[160:161], v[160:161], v[162:163]')
    g('v_pk_add_f32 v[164:165], v[164:165], v[166:167]')
    g('v_pk_add_f32 v[160:161], v[160:161], v[168:169]')
    g('v_pk_add_f32 v[160:161], v[160:161], v[164:165]')
    ln_scalars(g, 160, 161, 's53', 170, 171, 172)
    g('v_mul_f32 v170, v170, v142')
    g('s_waitcnt lgkmcnt(0)')
    g('v_pk_add_f32 v[184:185], v[184:185], v[186:187]')
    g('v_pk_add_f32 v[188:189], v[188:189], v[190:191]')
    g('v_pk_add_f32 v[184:185], v[184:185], v[188:189]')
    g('v_add_f32 v16, v184, v185')
    g('v_sub_f32 v16, v16, v170')
    g('v_mul_f32 v16, v16, v171')
    rnd_bf16(g, 16)
    g('v_mov_b32 v17, v16')
    g.nop(2)
    g('v_permlane32_swap_b32 v16, v17')
    g.nop(1)
    g('v_max_f32 v16, 0, v16')
    g('v_mul_f32 v16, v16, v17')
    g('v_cvt_pk_bf16_f32 v16, v16, v16')
    g(f'ds_write_b16 v31, v16 offset:{L_CB}')
    g('s_waitcnt lgkmcnt(0)')
    g.label('L_m_b3')
    g('s_barrier')
    g(f'ds_read_b64 v[16:17], v30 offset:{L_CB}')
    g('s_waitcnt lgkmcnt(0)')
    g.stamp(11)

    def down(base, vo, reuse=False):
        gemv(4, 16, base, 204, reuse=reuse, keep=True)
        g.nop(8)
        class_combine(g, 204, out2=205)
        g.set_exec(0x00ff00ff00ff00ff)
        g(f'global_store_dwordx4 v{vo}, v[202:205], {WS} sc1')
        g('s_mov_b64 exec, -1')
    down(104, 14)
    g(f's_cmp_lt_u32 {sWAVE}, 2')
    g('s_cbranch_scc0 L_m_done')
    down(120, 15, reuse=True)
    g.label('L_m_done')

    g.label('L_fin')
    g.stamp(15)
    g.stamp_flush()
    g.label('L_end')
    g('s_endpgm')
    body = g.text()

    hdr = open('cdna_kernels/' + KN[:-7] + '.s.ref').read().split('\n')
    head = []
    for line in hdr:
        if line.startswith('; @launch'):
            head.append(f'; @launch grid=(256,1,1) block=(512,1,1) lds={LDS_BYTES}')
        elif line.startswith(';'):
            head.append(line)
        else:
            break
    out = '\n'.join(head) + '\n'
    out += '.amdgcn_target "amdgcn-amd-amdhsa--gfx950"\n.text\n'
    out += f'.globl {KN}\n.p2align 8\n.type {KN},@function\n{KN}:\n'
    out += body
    out += f'''.section .rodata,"a"
.p2align 6
.amdhsa_kernel {KN}
  .amdhsa_next_free_vgpr 256
  .amdhsa_next_free_sgpr 102
  .amdhsa_accum_offset 256
  .amdhsa_group_segment_fixed_size 0
  .amdhsa_kernarg_size 104
  .amdhsa_user_sgpr_count 2
  .amdhsa_user_sgpr_kernarg_segment_ptr 1
  .amdhsa_system_sgpr_workgroup_id_x 1
.end_amdhsa_kernel
'''
    return out


if __name__ == '__main__':
    import argparse
    ap = argparse.ArgumentParser()
    ap.add_argument('-o', default='k.s')
    ap.add_argument('--stamps', action='store_true')
    ap.add_argument('--stop', type=int, default=None)
    ap.add_argument('--opts', default='')
    a = ap.parse_args()
    open(a.o, 'w').write(build(a.stamps, a.stop, tuple(a.opts.split(','))))
```

```python
import sys, struct

KN = 'sequential_preLN__compressed_kv_cla__glu_gated_reglu__decode_kernel'

EPOCH = 0
XID = 0x1000
PF = 0x3000
Q1L = 0x10000
Q1G = 0x50000
QA = 0x90000
MLL = 0xA0000
C4 = 0xA8000
MLX = 0xC8000
OUTP = 0xE8000
O2P = 0x100000
OX = 0x180000
OPL = 0x200000
STAMPS = 0x800000

L_XN = 0
L_QB = 256
L_MB = 512
L_LB = 768
L_PB = 1024
L_RED = 3072
L_CB = 7168
L_HB = 8192
L_ST = 9472
L_MODE = 9728
L_TAG = 9732
L_QL = 10240
L_V = 26624
L_TILE = 59392
LDS_BYTES = 124928

S_X, S_CKV, S_WQ, S_WUK, S_WUV, S_WO, S_WG, S_WU, S_WD, S_OUT, S_DBG, S_WS = (
    's[8:9]', 's[10:11]', 's[12:13]', 's[14:15]', 's[16:17]', 's[18:19]', 's[22:23]', 's[24:25]', 's[26:27]',
    's[28:29]', 's[30:31]', 's[32:33]')
sXCD, sR, sWAVE, sH, sJ, sTAG = 's34', 's35', 's36', 's37', 's38', 's39'
POLL_LIMIT = 1 << 17


def f2u(x):
    return struct.unpack('<I', struct.pack('<f', x))[0]


class Gen:
    def __init__(s, stamps=False, stop_after=None):
        s.L = []
        s.tail = []
        s.n = 0
        s.stamps = stamps
        s.stop_after = stop_after
        s.nstamp = 0

    def __call__(s, txt):
        for line in txt.strip('\n').split('\n'):
            line = line.strip()
            if line:
                s.L.append('    ' + line)

    def label(s, name):
        s.L.append(name + ':')

    def uniq(s, base):
        s.n += 1
        return f'{base}_{s.n}'

    def nop(s, n):
        while n > 0:
            k = min(n, 16)
            s(f's_nop {k-1}')
            n -= k

    def stamp(s, idx):
        if s.stamps:
            s(f's_memrealtime s[{64+2*idx}:{65+2*idx}]')

    def stamp_flush(s, nst=16):
        if not s.stamps:
            return
        s('s_waitcnt lgkmcnt(0)')
        s('s_mov_b64 exec, 1')
        s(f's_lshl_b32 s48, s2, 3')
        s(f's_add_u32 s48, s48, {sWAVE}')
        s(f's_lshl_b32 s48, s48, 7')
        s(f's_add_u32 s48, s48, {STAMPS}')
        s('v_mov_b32 v1, s48')
        for i in range(nst):
            s(f'v_mov_b32 v2, s{64+2*i}')
            s(f'v_mov_b32 v3, s{65+2*i}')
            s(f'global_store_dwordx2 v1, v[2:3], {S_WS} offset:{8*i}')
            s('s_nop 1')
        s('s_waitcnt vmcnt(0)')

    def addr(s, dst, src, off):
        d = int(dst[2:].split(':')[0]); sr = int(src[2:].split(':')[0])
        s(f's_add_u32 s{d}, s{sr}, {off}')
        s(f's_addc_u32 s{d+1}, s{sr+1}, 0')

    def set_exec(s, mask):
        if mask == (1 << 64) - 1:
            s('s_mov_b64 exec, -1')
        else:
            s(f's_mov_b32 exec_lo, {mask & 0xffffffff:#x}')
            s(f's_mov_b32 exec_hi, {mask >> 32:#x}')

    def wave_reduce(s, regs, tmps, op='add'):
        ins = {'add': 'v_add_f32', 'max': 'v_max_f32'}[op]
        n = len(regs)
        pad = max(0, 2 - (n - 1))
        s.nop(2)
        for ctl in ['quad_perm:[1,0,3,2]', 'quad_perm:[2,3,0,1]', 'row_half_mirror', 'row_mirror']:
            for r in regs:
                s(f'{ins}_dpp v{r}, v{r}, v{r} {ctl} row_mask:0xf bank_mask:0xf')
            s.nop(pad)
        s.row_reduce(regs, tmps, op)

    def row_reduce(s, regs, tmps, op='add'):
        ins = {'add': 'v_add_f32', 'max': 'v_max_f32'}[op]
        n = len(regs)
        for sw in ['v_permlane16_swap_b32', 'v_permlane32_swap_b32']:
            for r, t in zip(regs, tmps):
                s(f'v_mov_b32 v{t}, v{r}')
            s.nop(max(0, 2 - (n - 1)))
            for r, t in zip(regs, tmps):
                s(f'{sw} v{t}, v{r}')
            s.nop(1 if n == 1 else 0)
            for r, t in zip(regs, tmps):
                s(f'{ins} v{r}, v{r}, v{t}')
            s.nop(0)

    def check_tags(s, regs, t0, t1, done_label):
        tags = []
        for r in regs:
            tags += [r + 1, r + 3]
        if len(tags) == 2:
            s(f'v_cmp_eq_u32 vcc, {sTAG}, v{tags[0]}')
            s(f'v_cmp_eq_u32 s[46:47], {sTAG}, v{tags[1]}')
        else:
            s(f'v_min3_u32 v{t0}, v{tags[0]}, v{tags[1]}, v{tags[2]}')
            s(f'v_max3_u32 v{t1}, v{tags[0]}, v{tags[1]}, v{tags[2]}')
            rest = tags[3:]
            while rest:
                if len(rest) >= 2:
                    s(f'v_min3_u32 v{t0}, v{t0}, v{rest[0]}, v{rest[1]}')
                    s(f'v_max3_u32 v{t1}, v{t1}, v{rest[0]}, v{rest[1]}')
                    rest = rest[2:]
                else:
                    s(f'v_min_u32 v{t0}, v{t0}, v{rest[0]}')
                    s(f'v_max_u32 v{t1}, v{t1}, v{rest[0]}')
                    rest = rest[1:]
            s(f'v_cmp_eq_u32 vcc, {sTAG}, v{t0}')
            s(f'v_cmp_eq_u32 s[46:47], {sTAG}, v{t1}')
        s('s_and_b64 vcc, vcc, s[46:47]')
        s('s_cmp_eq_u64 vcc, exec')
        s(f's_cbranch_scc1 {done_label}')

    def poll(s, name, emit_loads, regs, t0, t1, first_hook=None, alt=None):
        top = s.uniq(name + '_top'); done = s.uniq(name + '_done'); fail = s.uniq(name + '_fail')
        s(f's_mov_b32 s50, 0')
        if first_hook is not None:
            emit_loads(alt[0] if alt else None)
            first_hook()
            s('s_waitcnt vmcnt(0)')
            s.check_tags(regs, t0, t1, done)
        s.label(top)
        if alt:
            s('s_add_u32 s50, s50, 1')
            s('s_and_b32 s51, s50, 7')
            s('s_cmp_eq_u32 s51, 0')
            s(f's_cselect_b64 s[44:45], {alt[1]}, {alt[0]}')
            emit_loads('s[44:45]')
        else:
            s('s_add_u32 s50, s50, 1')
            emit_loads(None)
        s('s_waitcnt vmcnt(0)')
        s.check_tags(regs, t0, t1, done)
        s(f's_cmp_lt_u32 s50, {POLL_LIMIT}')
        s(f's_cbranch_scc1 {top}')
        s(f's_mov_b64 s[46:47], exec')
        s('s_mov_b64 exec, 1')
        s(f'v_mov_b32 v{t0}, {4*(s.n % 60)}')
        s(f'v_mov_b32 v{t1}, {0x1000 + s.n}')
        s(f'global_store_dword v{t0}, v{t1}, {S_DBG}')
        s(f's_mov_b64 exec, s[46:47]')
        s.label(done)

    def begin_tail(s):
        s.main = s.L
        s.L = s.tail

    def end_tail(s):
        s.L = s.main

    def poll2(s, name, loads, masks, t0, t1, alt=None, hook=None):
        top = s.uniq(name + '_top'); done = s.uniq(name + '_done'); retry = s.uniq(name + '_retry')
        n = len(loads)
        assert len(masks) >= n
        s('s_mov_b32 s50, 0')
        for ins, tg, em in loads:
            if em is not None:
                s.set_exec(em)
            s(ins.format(base=alt[0] if alt else None))
            if em is not None:
                s('s_mov_b64 exec, -1')
        if hook is not None:
            hook()
        s.label(top)
        s('s_waitcnt vmcnt(0)')
        for k, (ins, tg, em) in enumerate(loads):
            s(f'v_cmp_ne_u32 {masks[k]}, {sTAG}, v{tg}')
        if n == 1:
            s(f's_cmp_lg_u64 {masks[0]}, 0')
        else:
            s(f's_or_b64 s[46:47], {masks[0]}, {masks[1]}')
            for k in range(2, n):
                s(f's_or_b64 s[46:47], s[46:47], {masks[k]}')
        s(f's_cbranch_scc1 {retry}')
        s.label(done)
        s.begin_tail()
        s.label(retry)
        s('s_add_u32 s50, s50, 1')
        if alt:
            s('s_and_b32 s51, s50, 7')
            s('s_cmp_eq_u32 s51, 0')
            s(f's_cselect_b64 s[44:45], {alt[1]}, {alt[0]}')
        for k, (ins, tg, em) in enumerate(loads):
            s(f's_mov_b64 exec, {masks[k]}')
            if n > 1:
                sk = s.uniq(name + '_sk')
                s(f's_cbranch_execz {sk}')
            s(ins.format(base='s[44:45]' if alt else None))
            if n > 1:
                s.label(sk)
        s('s_mov_b64 exec, -1')
        s(f's_cmp_lt_u32 s50, {POLL_LIMIT}')
        s(f's_cbranch_scc1 {top}')
        s('s_waitcnt vmcnt(0)')
        s('s_mov_b64 exec, 1')
        s(f'v_mov_b32 v{t0}, {4*(s.n % 60)}')
        s(f'v_mov_b32 v{t1}, {0x1000 + s.n}')
        s(f'global_store_dword v{t0}, v{t1}, {S_DBG}')
        s('s_mov_b64 exec, -1')
        s(f's_branch {done}')
        s.end_tail()

    def poll3(s, name, loads, masks, t0, t1, sets, pay, sp=12):
        top = s.uniq(name + '_top'); done = s.uniq(name + '_done'); retry = s.uniq(name + '_retry'); tmo = s.uniq(name + '_tmo')
        n = len(loads); k = len(sets)
        P = masks[:n]; T = masks[n:2 * n]
        assert len(masks) >= 2 * n
        for ins, cb, to, em in loads:
            if em is not None:
                s.set_exec(em)
            s(ins.format(d=f'{cb}:{cb+3}'))
            if em is not None:
                s('s_mov_b64 exec, -1')
        s('s_waitcnt vmcnt(0)')
        for i, (ins, cb, to, em) in enumerate(loads):
            s(f'v_cmp_ne_u32 {P[i]}, {sTAG}, v{cb+to}')
        if n == 1:
            s(f's_cmp_lg_u64 {P[0]}, 0')
        else:
            s(f's_or_b64 s[46:47], {P[0]}, {P[1]}')
            for i in range(2, n):
                s(f's_or_b64 s[46:47], s[46:47], {P[i]}')
        s(f's_cbranch_scc1 {retry}')
        s.label(done)
        s.begin_tail()
        s.label(retry)
        s('s_mov_b32 s50, 0')

        def issue(j):
            for i, (ins, cb, to, em) in enumerate(loads):
                s(f's_mov_b64 exec, {P[i]}')
                s(ins.format(d=f'{sets[j][i]}:{sets[j][i]+3}'))
            s('s_mov_b64 exec, -1')
        for j in range(k):
            issue(j)
            if j < k - 1:
                s.nop(16 * sp)
        s.label(top)
        for j in range(k):
            s(f's_waitcnt vmcnt({n*(k-1)})')
            for i, (ins, cb, to, em) in enumerate(loads):
                s(f'v_cmp_eq_u32 {T[i]}, {sTAG}, v{sets[j][i]+to}')
            for i, (ins, cb, to, em) in enumerate(loads):
                s(f's_and_b64 exec, {T[i]}, {P[i]}')
                for d in pay:
                    s(f'v_mov_b32 v{cb+d}, v{sets[j][i]+d}')
                s(f's_andn2_b64 {P[i]}, {P[i]}, exec')
            s('s_mov_b64 exec, -1')
            if n == 1:
                s(f's_cmp_lg_u64 {P[0]}, 0')
            else:
                s(f's_or_b64 s[46:47], {P[0]}, {P[1]}')
                for i in range(2, n):
                    s(f's_or_b64 s[46:47], s[46:47], {P[i]}')
            s(f's_cbranch_scc0 {done}')
            issue(j)
        s('s_add_u32 s50, s50, 1')
        s(f's_cmp_lt_u32 s50, {POLL_LIMIT // 2}')
        s(f's_cbranch_scc1 {top}')
        s('s_waitcnt vmcnt(0)')
        s('s_mov_b64 exec, 1')
        s(f'v_mov_b32 v{t0}, {4*(s.n % 60)}')
        s(f'v_mov_b32 v{t1}, {0x1000 + s.n}')
        s(f'global_store_dword v{t0}, v{t1}, {S_DBG}')
        s('s_mov_b64 exec, -1')
        s(f's_branch {done}')
        s.end_tail()

    def gate(s, name, vaddr, vtmp, limit=256, tagoff=12):
        top = s.uniq(name + '_gt'); done = s.uniq(name + '_gd')
        s('s_mov_b64 exec, 1')
        s('s_mov_b32 s50, 0')
        s.label(top)
        s(f'global_load_dword v{vtmp}, v{vaddr}, {S_WS} offset:{tagoff} sc1')
        s('s_add_u32 s50, s50, 1')
        s('s_waitcnt vmcnt(0)')
        s(f'v_cmp_ne_u32 vcc, {sTAG}, v{vtmp}')
        s('s_cmp_eq_u64 vcc, 0')
        s(f's_cbranch_scc1 {done}')
        s(f's_cmp_lt_u32 s50, {limit}')
        s(f's_cbranch_scc1 {top}')
        s.label(done)
        s('s_mov_b64 exec, -1')

    def text(s):
        return '\n'.join(s.L + s.tail + ['L_codeend:']) + '\n'


KAPPA = (128 ** -0.5) * 1.4426950408889634


def gen_sel(g, base, t0, t1):
    g(f'v_and_b32 v{t0}, 7, v0')
    g(f'v_and_b32 v{t1}, 1, v0')
    for par in range(2):
        lo = 0x0c0c0000 | ((2 * par + 1) << 8) | (2 * par)
        hi = ((2 * par + 1) << 24) | ((2 * par) << 16) | 0x0c0c
        g(f'v_cmp_eq_u32 vcc, 1, v{t1}')
        g(f'v_mov_b32 v{base+par}, {lo:#x}')
        g(f'v_mov_b32 v{base+2+par}, {hi:#x}')
        g(f'v_cndmask_b32 v{base+par}, v{base+par}, v{base+2+par}, vcc')
    g(f'v_lshrrev_b32 v{t0}, 1, v{t0}')
    g(f'v_mov_b32 v{t1}, 0x0c0c0c0c')
    for v in [3, 2, 1, 0]:
        g(f'v_cmp_eq_u32 vcc, {v}, v{t0}')
        g.nop(1)
        for par in range(2):
            g(f'v_cndmask_b32 v{base+2*v+par}, v{t1}, v{base+par}, vcc')


def gen_mask(g, base, t0, t1):
    g(f'v_and_b32 v{t0}, 7, v0')
    g(f'v_and_b32 v{t1}, 1, v0')
    g(f'v_cmp_eq_u32 vcc, 1, v{t1}')
    g(f'v_mov_b32 v{base}, 0xffff')
    g(f'v_mov_b32 v{base+1}, 0xffff0000')
    g(f'v_cndmask_b32 v{t1}, v{base}, v{base+1}, vcc')
    g(f'v_lshrrev_b32 v{t0}, 1, v{t0}')
    for v in range(4):
        g(f'v_cmp_eq_u32 vcc, {v}, v{t0}')
        g.nop(1)
        g(f'v_cndmask_b32 v{base+v}, 0, v{t1}, vcc')


def get_tag(g, vreg):
    g.nop(1)
    g(f'v_readfirstlane_b32 {sTAG}, v{vreg}')
    g.nop(4)
    g(f's_mul_i32 {sTAG}, {sTAG}, 5')
    g(f's_add_u32 {sTAG}, {sTAG}, 0x9E3779B9')


def rnd_bf16(g, r):
    g(f'v_cvt_pk_bf16_f32 v{r}, v{r}, v{r}')
    g(f'v_and_b32 v{r}, 0xffff0000, v{r}')


def ln_scalars(g, s1, s2, piv_sgpr, vm, vrs, t0):
    g(f's_mov_b32 s52, {f2u(1.0/640):#x}')
    g(f'v_mul_f32 v{s1}, s52, v{s1}')
    g(f'v_mul_f32 v{s2}, s52, v{s2}')
    g(f'v_fma_f32 v{s2}, -v{s1}, v{s1}, v{s2}')
    g(f'v_max_f32 v{s2}, 0, v{s2}')
    g(f'v_add_f32 v{vm}, {piv_sgpr}, v{s1}')
    rnd_bf16(g, vm)
    rnd_bf16(g, s2)
    g(f'v_add_f32 v{s2}, 0x3727c5ac, v{s2}')
    rnd_bf16(g, s2)
    g(f'v_sqrt_f32 v{s2}, v{s2}')
    g.nop(1)
    rnd_bf16(g, s2)
    g(f'v_rcp_f32 v{vrs}, v{s2}')
    g.nop(1)


def class_combine(g, d, out2=None):
    if out2 is None:
        out2 = d + 2
    for k in range(4):
        g(f'v_mov_b32_dpp v{d+k}, v{d+k} row_ror:8 row_mask:0xc bank_mask:0xf')
    g.nop(1)
    g(f'v_permlane32_swap_b32 v{d}, v{d+1}')
    g(f'v_permlane32_swap_b32 v{d+2}, v{d+3}')
    g.nop(1)
    g(f'v_add_f32 v{d}, v{d}, v{d+1}')
    g(f'v_add_f32 v{out2}, v{d+2}, v{d+3}')


def mode_store(g, ins_no_flag, smode):
    a = g.uniq('ms_slow'); b = g.uniq('ms_done')
    g(f's_cmp_eq_u32 {smode}, 1')
    g(f's_cbranch_scc0 {a}')
    for ins in ins_no_flag:
        g(ins)
    g.label(b)
    ex = [l for l in []]
    g.begin_tail()
    g.label(a)
    for ins in ins_no_flag:
        g(ins + ' sc1')
    g(f's_branch {b}')
    g.end_tail()


def own_tag(g, vreg):
    g(f'v_readfirstlane_b32 {sTAG}, v{vreg}')
    g.nop(4)
    g(f's_mul_i32 {sTAG}, {sTAG}, 5')
    g(f's_add_u32 {sTAG}, {sTAG}, 0x9E3779B9')


MA = ['s[10:11]', 's[12:13]', 's[14:15]', 's[18:19]', 's[20:21]', 's[22:23]', 's[24:25]', 's[26:27]']
MQ = ['s[10:11]', 's[12:13]', 's[14:15]', 's[4:5]', 's[20:21]', 's[96:97]', 's[98:99]', 's[100:101]']
MB = ['s[10:11]', 's[12:13]', 's[14:15]', 's[16:17]', 's[18:19]', 's[20:21]', 's[22:23]', 's[24:25]']


def build(stamps=False, stop_after=None, opts=()):
    g = Gen(stamps, stop_after)
    def optn(name, dflt):
        for o in opts:
            if o.startswith(name) and o[len(name):].isdigit():
                return int(o[len(name):])
        return dflt
    PK = optn('ppk', 3); SP = optn('ppsp', 12)
    sMODE = 's59'
    WS = S_WS
    g('s_cmp_ge_u32 s2, 256')
    g('s_cbranch_scc1 L_end')
    g('s_load_dwordx16 s[8:23], s[0:1], 0')
    g('s_load_dwordx8 s[24:31], s[0:1], 64')
    g('s_load_dwordx2 s[32:33], s[0:1], 96')
    g('s_getpc_b64 s[42:43]')
    g('v_lshlrev_b32 v1, 4, v0')
    g('global_load_dwordx4 v[232:235], v1, s[42:43]')
    g.stamp(0)
    g('v_lshrrev_b32 v1, 6, v0')
    g('v_and_b32 v0, 63, v0')
    g(f'v_readfirstlane_b32 {sWAVE}, v1')
    g(f's_and_b32 {sXCD}, s2, 7')
    g(f's_lshr_b32 {sR}, s2, 3')
    g(f's_lshr_b32 {sH}, {sR}, 3')
    g(f's_lshl_b32 s48, {sXCD}, 2')
    g(f's_add_u32 {sH}, {sH}, s48')
    g(f's_and_b32 {sJ}, {sR}, 7')
    g('v_mov_b32 v1, 0')
    g('v_lshlrev_b32 v3, 4, v0')
    g('v_and_b32 v7, 15, v0')
    g('v_lshrrev_b32 v6, 4, v0')
    g(f's_cmp_eq_u32 {sWAVE}, 1')
    g('s_cbranch_scc1 L_w1')
    g(f's_cmp_eq_u32 {sWAVE}, 0')
    g('s_cbranch_scc1 L_w0')

    def pre(tagwait=False):
        g(f's_and_b32 s55, {sR}, 1')
        g(f's_lshr_b32 s56, {sR}, 1')
        g('v_and_b32 v8, 7, v0')
        g('v_lshlrev_b32 v8, 1, v8')
        g(f's_lshl_b32 s48, {sWAVE}, 14')
        g(f's_add_u32 s48, s48, {L_TILE}')
        for tl in range(4):
            g(f'v_add_u32 v9, {4*tl}, v6')
            g('v_xor_b32 v9, v9, v8')
            g('v_lshlrev_b32 v9, 4, v9')
            g(f'v_lshl_add_u32 v{32+tl}, v7, 10, v9')
            g(f'v_add_u32 v{36+tl}, s48, v{32+tl}')
        g('v_lshrrev_b32 v9, 2, v0')
        g('v_lshlrev_b32 v9, 7, v9')
        g('v_and_b32 v11, 3, v0')
        g('v_lshl_add_u32 v9, v11, 3, v9')
        g('v_bfe_u32 v10, v0, 3, 2')
        g(f's_and_b32 s48, {sWAVE}, 3')
        g('v_xor_b32 v10, s48, v10')
        g('v_lshl_add_u32 v9, v10, 5, v9')
        g(f'v_add_u32 v40, {L_V}, v9')
        g('v_lshrrev_b32 v9, 3, v0')
        g('v_lshlrev_b32 v9, 10, v9')
        g('v_and_b32 v10, 7, v0')
        g('v_lshlrev_b32 v11, 1, v6')
        g('v_xor_b32 v10, v10, v11')
        g('v_lshl_add_u32 v41, v10, 4, v9')
        g(f's_lshl_b32 s48, {sXCD}, 19')
        g(f's_and_b32 s49, {sWAVE}, 3')
        g('s_lshl_b32 s49, s49, 16')
        g('s_add_u32 s48, s48, s49')
        g('s_lshl_b32 s49, s56, 7')
        g('s_add_u32 s48, s48, s49')
        g('s_waitcnt lgkmcnt(0)')
        g.addr('s[98:99]', S_CKV, 's48')
        g('v_lshrrev_b32 v9, 1, v0')
        g('v_and_b32 v10, 1, v0')
        g('v_lshlrev_b32 v10, 3, v10')
        for ih in range(2):
            g(f's_lshl_b32 s48, {sWAVE}, 1')
            g(f's_add_u32 s48, s48, {ih}')
            g('s_and_b32 s49, s48, 7')
            g('s_lshl_b32 s49, s49, 1')
            g('v_xor_b32 v11, s49, v9')
            g('v_lshl_add_u32 v11, v11, 4, v10')
            g('s_lshl_b32 s48, s48, 10')
            g(f's_add_u32 s48, s48, {L_QL}')
            g(f'v_add_u32 v{44+ih}, s48, v11')
        gen_mask(g, 240, 9, 10)
        g('v_lshlrev_b32 v46, 4, v7')
        g(f's_lshl_b32 s48, {sWAVE}, 2')
        g('v_add_u32 v47, s48, v46')
        g('v_lshlrev_b32 v57, 3, v0')
        g(f'v_add_u32 v42, {L_QL}, v3')
        g(f's_lshl_b32 s48, {sWAVE}, 11')
        g('v_add_u32 v56, s48, v42')
        g('v_lshlrev_b32 v43, 5, v7')
        g(f'v_add_u32 v43, {L_RED}, v43')
        g(f's_lshl_b32 s48, {sWAVE}, 2')
        g('v_add_u32 v59, s48, v43')
        g('s_lshl_b32 s48, s55, 15')
        g(f's_lshl_b32 s49, {sWAVE}, 12')
        g('s_add_u32 s48, s48, s49')
        g(f's_add_u32 s48, s48, {QA}')
        g('v_add_u32 v248, s48, v3')
        g(f's_lshl_b32 s48, {sXCD}, 16')
        g('s_lshl_b32 s49, s55, 15')
        g('s_add_u32 s48, s48, s49')
        g(f's_add_u32 s48, s48, {OPL}')
        g(f's_lshl_b32 s49, {sWAVE}, 12')
        g('s_add_u32 s49, s49, s48')
        g('v_add_u32 v246, s49, v3')
        g('s_lshl_b32 s49, s56, 12')
        g('s_add_u32 s48, s48, s49')
        g('v_add_u32 v251, s48, v3')
        g(f's_and_b32 s49, {sWAVE}, 3')
        g('s_lshl_b32 s49, s49, 10')
        g('v_add_u32 v58, s49, v251')
        g(f's_lshl_b32 s48, {sXCD}, 16')
        g('s_lshl_b32 s49, s55, 15')
        g('s_add_u32 s48, s48, s49')
        g('s_lshl_b32 s49, s56, 12')
        g('s_add_u32 s48, s48, s49')
        g(f's_and_b32 s49, {sWAVE}, 3')
        g('s_lshl_b32 s49, s49, 10')
        g('s_add_u32 s48, s48, s49')
        g(f's_add_u32 s48, s48, {OX}')
        g('v_lshlrev_b32 v244, 6, v7')
        g('v_lshl_add_u32 v244, v6, 4, v244')
        g('v_add_u32 v244, s48, v244')
        g(f's_lshl_b32 s48, {sXCD}, 9')
        g('s_lshl_b32 s49, s55, 8')
        g('s_add_u32 s48, s48, s49')
        g(f's_add_u32 s48, s48, {MLX}')
        g('v_add_u32 v250, s48, v3')
        g('s_mov_b32 s58, s56')
        g(f's_lshr_b32 s48, {sR}, 2')
        g(f's_lshl_b32 s49, {sXCD}, 2')
        g('s_add_u32 s61, s48, s49')
        g(f's_and_b32 s62, {sR}, 3')
        g('v_bfe_u32 v13, v0, 2, 3')
        g('s_lshr_b32 s48, s61, 4')
        g('s_lshl_b32 s48, s48, 5')
        g('s_lshl_b32 s49, s62, 3')
        g('s_add_u32 s48, s48, s49')
        g(f's_add_u32 s48, s48, {sWAVE}')
        g('s_lshl_b32 s48, s48, 10')
        g('s_and_b32 s49, s61, 15')
        g('s_lshl_b32 s49, s49, 6')
        g('s_add_u32 s48, s48, s49')
        g(f's_add_u32 s48, s48, {OX}')
        g('v_lshlrev_b32 v14, 16, v13')
        g('v_and_b32 v12, 3, v0')
        g('v_lshl_add_u32 v14, v12, 4, v14')
        g('v_add_u32 v245, s48, v14')
        g('s_lshl_b32 s48, s61, 4')
        g(f's_add_u32 s48, s48, {MLX}')
        g('v_lshlrev_b32 v14, 9, v13')
        g('v_add_u32 v14, s48, v14')
        g('v_cmp_le_u32 vcc, 32, v0')
        g.nop(1)
        g('v_cndmask_b32 v245, v245, v14, vcc')
        g('v_lshlrev_b32 v247, 5, v7')
        g('v_lshl_add_u32 v247, v6, 4, v247')
        g(f's_lshl_b32 s48, {sWAVE}, 9')
        g('v_add_u32 v247, s48, v247')
        g(f's_lshl_b32 s48, {sXCD}, 4')
        g(f's_add_u32 s48, s48, {sR}')
        g('s_lshl_b32 s48, s48, 9')
        g(f's_add_u32 s48, s48, {C4}')
        g('v_lshrrev_b32 v253, 1, v0')
        g('v_lshl_add_u32 v253, v253, 4, s48')
        g('s_lshl_b32 s48, s61, 8')
        g('s_lshl_b32 s49, s62, 3')
        g(f's_add_u32 s49, s49, {sWAVE}')
        g('s_lshl_b32 s49, s49, 17')
        g('s_add_u32 s48, s48, s49')
        g('s_waitcnt lgkmcnt(0)')
        g.addr('s[62:63]' if False else 's[96:97]', S_WUV, 's48')
        g('v_lshlrev_b32 v254, 13, v6')
        g('v_lshl_add_u32 v254, v7, 4, v254')
        if tagwait:
            g('s_waitcnt vmcnt(0)')
            own_tag(g, 2)
        g(f'global_load_dword v233, v245, {WS} sc1')
        pt = g.uniq('pt')
        g(f's_cmp_eq_u32 {sWAVE}, 5')
        g(f's_cbranch_scc0 {pt}')
        for kt in range(4):
            g(f'global_load_dword v{234+kt}, v251, {WS} offset:{1024*kt} sc1')
        g.label(pt)

    def dma(wsel=None):
        if optn('kdel', 0):
            lb = g.uniq('kdel')
            g(f's_mov_b32 s48, {optn("kdel", 0)}')
            g.label(lb)
            g('s_nop 15')
            g('s_nop 15')
            g('s_sub_u32 s48, s48, 1')
            g('s_cmp_gt_u32 s48, 0')
            g(f's_cbranch_scc1 {lb}')
        g(f's_lshr_b32 s56, {sR}, 1')
        g(f's_lshl_b32 s57, {sXCD}, 3')
        g('s_add_u32 s57, s57, s56')
        g('s_lshl_b32 s48, s57, 6')
        if 'rot' in opts:
            g(f's_and_b32 s49, {sR}, 1')
            g('s_lshl_b32 s49, s49, 2')
            g(f's_add_u32 s49, s49, {wsel or sWAVE}')
            g('s_and_b32 s49, s49, 7')
            g('s_lshl_b32 s49, s49, 3')
        else:
            g(f's_lshl_b32 s49, {wsel or sWAVE}, 3')
        g('s_add_u32 s48, s48, s49')
        g('s_lshl_b32 s48, s48, 10')
        g.addr('s[40:41]', S_CKV, 's48')
        g('s_lshl_b32 s49, s49, 10')
        g(f's_add_u32 s49, s49, {L_TILE}')
        g('s_mov_b32 m0, s49')
        for i in range(8):
            if i == 4:
                g('s_add_u32 s49, s49, 4096')
                g('s_mov_b32 m0, s49')
                g('s_add_u32 s40, s40, 4096')
                g('s_addc_u32 s41, s41, 0')
            g(f'v_xor_b32 v4, {32*i}, v3')
            g(f'global_load_lds_dwordx4 v4, s[40:41] offset:{1024*(i%4)}' + (' nt' if 'ckvnt' in opts else ''))

    def wuk_dma():
        g(f's_sub_u32 s54, {sR}, 16')
        g('s_lshr_b32 s48, s54, 2')
        g(f's_lshl_b32 s49, {sXCD}, 2')
        g('s_add_u32 s48, s48, s49')
        g('s_lshl_b32 s48, s48, 8')
        g('s_and_b32 s49, s54, 3')
        g('s_lshl_b32 s49, s49, 2')
        g(f's_add_u32 s49, s49, {sWAVE}')
        g('s_sub_u32 s49, s49, 4')
        g('s_lshl_b32 s49, s49, 18')
        g('s_add_u32 s48, s48, s49')
        g.addr('s[40:41]', S_WUK, 's48')
        g('v_xor_b32 v8, v7, v6')
        g('v_lshlrev_b32 v8, 4, v8')
        g('v_lshl_add_u32 v8, v6, 13, v8')
        for n in range(1, 4):
            g(f'v_xor_b32 v{8+n}, {64*n}, v8')
        g(f's_and_b32 s49, {sWAVE}, 3')
        g('s_lshl_b32 s49, s49, 13')
        g(f's_add_u32 m0, s49, {L_TILE}')
        g.nop(1)
        for n in range(8):
            g(f'global_load_lds_dwordx4 v{8+(n&3)}, s[40:41]' + ('' if 'wuknt0' in opts else ' nt'))
            if n < 7:
                g('s_add_u32 m0, m0, 1024')
                g('s_add_u32 s40, s40, 32768')
                g('s_addc_u32 s41, s41, 0')

    g('s_waitcnt lgkmcnt(0)')
    if 'bq' in opts:
        g('s_barrier')
    g(f's_cmp_ge_u32 {sWAVE}, 4')
    g('s_cbranch_scc0 L_e_nb')
    g(f's_cmp_ge_u32 {sR}, 16')
    g('s_cbranch_scc1 L_e_b')
    if 'fulldma' in opts:
        g(f's_sub_u32 s58, {sWAVE}, 4')
        dma('s58')
    if 'halfdma' in opts or 'fulldma' in opts:
        dma()
    g('s_branch L_e_nb')
    g.label('L_e_b')
    if 'wukb0' not in opts:
        wuk_dma()
    g.label('L_e_nb')
    g('s_waitcnt lgkmcnt(0)')
    g(f'global_load_dword v2, v1, {WS} sc1')
    g(f's_cmp_eq_u32 {sWAVE}, 3')
    g('s_cbranch_scc0 L_nw7')
    g(f's_and_b32 s48, {sR}, 15')
    g('s_lshl_b32 s48, s48, 10')
    g('s_add_u32 s48, s48, 8192')
    g(f's_min_u32 s48, s48, L_codeend-{KN}-1088')
    g('s_add_u32 s42, s42, s48')
    g('s_addc_u32 s43, s43, 0')
    g('global_load_dwordx4 v[236:239], v3, s[42:43]')
    g.label('L_nw7')
    g(f's_cmp_ge_u32 {sR}, 16')
    g('s_cbranch_scc0 L_pre')
    g.label('L_e_tag')
    g(f's_cmp_eq_u32 {sWAVE}, 2')
    g('s_cbranch_scc0 L_b0')
    g('s_waitcnt vmcnt(0)')
    own_tag(g, 2)
    g('s_getreg_b32 s48, hwreg(HW_REG_XCC_ID)')
    g('s_and_b32 s48, s48, 0xf')
    g('v_mov_b32 v12, s48')
    g(f'v_mov_b32 v15, {sTAG}')
    g(f's_lshl_b32 s48, {sXCD}, 5')
    g(f's_add_u32 s48, s48, {sR}')
    g('s_lshl_b32 s48, s48, 4')
    g(f's_add_u32 s48, s48, {XID}')
    g('v_mov_b32 v16, s48')
    g('s_mov_b64 exec, 1')
    g(f'global_store_dwordx4 v16, v[12:15], {WS} sc1')
    g('s_mov_b64 exec, -1')
    g('s_branch L_b0')

    g.label('L_w0')
    g('v_lshlrev_b32 v4, 2, v0')
    g('v_min_u32 v5, 39, v0')
    g('v_lshlrev_b32 v5, 2, v5')
    g(f's_mul_i32 s48, {sJ}, 160')
    g('v_add_u32 v5, s48, v5')
    g('s_waitcnt lgkmcnt(0)')
    for k in range(5):
        g(f'global_load_dword v{10+k}, v4, {S_X} offset:{256*k}')
    g(f'global_load_dword v15, v5, {S_X}')
    g(f'global_load_dword v2, v1, {WS} sc1')
    g(f's_mov_b32 s52, {f2u(1.0/640):#x}')
    if 'bq' in opts:
        g('s_barrier')
    g('s_waitcnt vmcnt(2)')
    g.stamp(1)
    for k in range(5):
        g(f'v_lshlrev_b32 v{16+2*k}, 16, v{10+k}')
        g(f'v_and_b32 v{17+2*k}, 0xffff0000, v{10+k}')
    g('v_readfirstlane_b32 s53, v16')
    g.nop(4)
    for k in range(10):
        g(f'v_subrev_f32 v{16+k}, s53, v{16+k}')
    g('v_pk_mul_f32 v[26:27], v[16:17], v[16:17]')
    g('v_pk_add_f32 v[28:29], v[16:17], v[18:19]')
    for k in range(1, 5):
        g(f'v_pk_fma_f32 v[26:27], v[{16+2*k}:{17+2*k}], v[{16+2*k}:{17+2*k}], v[26:27]')
        if k >= 2:
            g(f'v_pk_add_f32 v[28:29], v[28:29], v[{16+2*k}:{17+2*k}]')
    g('v_add_f32 v27, v26, v27')
    g('v_add_f32 v26, v28, v29')
    g.wave_reduce([26, 27], [28, 29])
    ln_scalars(g, 26, 27, 's53', 28, 29, 30)
    g('s_waitcnt vmcnt(1)')
    g('v_lshlrev_b32 v16, 16, v15')
    g('v_and_b32 v17, 0xffff0000, v15')
    g('v_sub_f32 v16, v16, v28')
    g('v_sub_f32 v17, v17, v28')
    g('v_cvt_pk_bf16_f32 v18, v16, v17')
    g('v_lshlrev_b32 v16, 16, v18')
    g('v_and_b32 v17, 0xffff0000, v18')
    g('v_mul_f32 v16, v16, v29')
    g('v_mul_f32 v17, v17, v29')
    g('v_cvt_pk_bf16_f32 v18, v16, v17')
    g(f'ds_write_b32 v4, v18 offset:{L_XN}')
    g('s_waitcnt lgkmcnt(0)')
    g.stamp(2)
    g('s_barrier')
    g('s_waitcnt vmcnt(0)')
    own_tag(g, 2)
    g(f's_cmp_ge_u32 {sR}, 16')
    g('s_cbranch_scc1 L_pathB')
    g('s_branch L_pre0')

    g.label('L_w1')
    g(f's_mov_b32 s49, {20*8192}')
    g('v_mul_lo_u32 v8, v6, s49')
    g('v_lshl_add_u32 v8, v7, 4, v8')
    g(f's_mul_i32 s48, {sJ}, {80*8192}')
    g(f's_lshl_b32 s49, {sH}, 8')
    g('s_add_u32 s48, s48, s49')
    g('s_waitcnt lgkmcnt(0)')
    g.addr('s[40:41]', S_WQ, 's48')
    for t in range(20):
        g(f'global_load_dwordx4 v[{80+4*t}:{83+4*t}], v8, s[40:41]' + ('' if 'wqnt0' in opts else ' nt'))
        if t < 19:
            g('s_add_u32 s40, s40, 8192')
            g('s_addc_u32 s41, s41, 0')
    g(f'global_load_dword v2, v1, {WS} sc1')
    if 'bq' in opts:
        g('s_barrier')
    g.stamp(1)
    gen_sel(g, 192, 16, 17)
    g(f's_lshl_b32 s48, {sH}, 3')
    g(f's_add_u32 s48, s48, {sJ}')
    g('s_lshl_b32 s48, s48, 10')
    g(f's_add_u32 s49, s48, {Q1L}')
    g.addr('s[44:45]', S_WS, 's49')
    g(f's_add_u32 s49, s48, {Q1G}')
    g.addr('s[46:47]', S_WS, 's49')
    g('v_mul_u32_u24 v19, 40, v6')
    g('s_mov_b32 s56, 0')
    g('s_mov_b32 s57, -1')
    g('s_barrier')
    for k in range(5):
        g(f'ds_read_b64 v[{16+2*k}:{17+2*k}], v19 offset:{L_XN+8*k}')
    g('s_waitcnt lgkmcnt(0)')

    def perms(t):
        a = 160 + 4 * (t % 4)
        for v in range(4):
            g(f'v_perm_b32 v{a+v}, v{16+t//2}, v{16+t//2}, v{192+2*v+(t&1)}')
    perms(0)
    perms(1)
    for t in range(20):
        if t + 2 < 20:
            perms(t + 2)
        g(f's_waitcnt vmcnt({19-t+1})')
        a = 160 + 4 * (t % 4)
        c = '0' if t == 0 else 'v[200:203]'
        g(f'v_mfma_f32_16x16x32_bf16 v[200:203], v[{a}:{a+3}], v[{80+4*t}:{83+4*t}], {c}')
        if t == 17:
            pass
    g('s_waitcnt vmcnt(0)')
    g(f'v_readfirstlane_b32 {sTAG}, v2')
    g.nop(4)
    g(f's_mul_i32 {sTAG}, {sTAG}, 5')
    g(f's_add_u32 {sTAG}, {sTAG}, 0x9E3779B9')
    g(f'v_mov_b32 v207, {sTAG}')
    g('v_cndmask_b32 v204, v200, v202, s[56:57]')
    g('v_cndmask_b32 v205, v201, v203, s[56:57]')
    if 'q1g' not in opts:
        g(f'global_store_dwordx4 v3, v[204:207], s[44:45]')
    g(f'global_store_dwordx4 v3, v[204:207], s[46:47] sc1')
    g.stamp(2)
    g(f's_cmp_ge_u32 {sR}, 16')
    g('s_cbranch_scc1 L_pathB')
    g('s_branch L_bp1')

    g.label('L_b0')
    g('s_barrier')
    g('s_waitcnt vmcnt(0)')
    own_tag(g, 2)
    if 'wukb0' in opts:
        g(f's_cmp_ge_u32 {sWAVE}, 4')
        g('s_cbranch_scc0 L_pathB')
        wuk_dma()
        g('s_waitcnt vmcnt(0)')
    g('s_branch L_pathB')

    g.label('L_pre')
    pre(tagwait=True)
    g(f's_cmp_eq_u32 {sWAVE}, 2')
    g('s_cbranch_scc0 L_pre_nx')
    g('s_getreg_b32 s48, hwreg(HW_REG_XCC_ID)')
    g('s_and_b32 s48, s48, 0xf')
    g('v_mov_b32 v12, s48')
    g(f'v_mov_b32 v15, {sTAG}')
    g(f's_lshl_b32 s48, {sXCD}, 5')
    g(f's_add_u32 s48, s48, {sR}')
    g('s_lshl_b32 s48, s48, 4')
    g(f's_add_u32 s48, s48, {XID}')
    g('v_mov_b32 v16, s48')
    g('s_mov_b64 exec, 1')
    g(f'global_store_dwordx4 v16, v[12:15], {WS} sc1')
    g('s_mov_b64 exec, -1')
    g.label('L_pre_nx')
    g('s_barrier')
    g.label('L_bp')
    g('s_barrier')
    if 'halfdma' in opts:
        g(f's_cmp_ge_u32 {sWAVE}, 4')
        g('s_cbranch_scc1 L_a_dmadone')
    if 'fulldma' not in opts:
        dma()
    g.stamp(13)
    g('s_branch L_a_dmadone')
    g.label('L_pre0')
    pre()
    g('s_branch L_bp')
    g.label('L_bp1')
    g('s_barrier')
    if 'fulldma' not in opts:
        dma()
    g.stamp(13)
    pre()
    g.label('L_a_dmadone')
    g(f's_cmp_eq_u32 {sWAVE}, 3')
    g('s_cbranch_scc0 L_a_nochk')
    g(f's_lshl_b32 s48, {sXCD}, 9')
    g(f's_add_u32 s48, s48, {XID}')
    g('v_and_b32 v9, 31, v0')
    g('v_lshlrev_b32 v9, 4, v9')
    g('v_add_u32 v9, s48, v9')
    g('s_getreg_b32 s52, hwreg(HW_REG_XCC_ID)')
    g('s_and_b32 s52, s52, 0xf')
    g('s_mov_b32 s50, 0')
    g(f's_mov_b32 {sMODE}, 0')
    g.label('L_a_chk')
    g(f'global_load_dwordx4 v[12:15], v9, {WS} sc1')
    g('s_add_u32 s50, s50, 1')
    g('s_waitcnt vmcnt(0)')
    g(f'v_cmp_eq_u32 vcc, {sTAG}, v15')
    g('s_cmp_eq_u64 vcc, exec')
    g('s_cbranch_scc1 L_a_chk_ok')
    g('s_cmp_lt_u32 s50, 64')
    g('s_cbranch_scc1 L_a_chk')
    g('s_branch L_a_chk_done')
    g.label('L_a_chk_ok')
    g('v_cmp_eq_u32 vcc, s52, v12')
    g('s_cmp_eq_u64 vcc, exec')
    g(f's_cselect_b32 {sMODE}, 1, 0')
    g.label('L_a_chk_done')
    g(f'v_mov_b32 v12, {sMODE}')
    g(f'ds_write_b32 v1, v12 offset:{L_MODE}')
    g.label('L_a_nochk')
    wuv_ins = []
    for tt in range(4):
        wuv_ins.append(f'global_load_dwordx4 v[{64+4*tt}:{67+4*tt}], v254, s[96:97]' + (' nt' if ('helper' not in opts or 'wuvnt' in opts) else ''))
        if tt < 3:
            wuv_ins.append('s_add_u32 s96, s96, 32768')
            wuv_ins.append('s_addc_u32 s97, s97, 0')
    g('s_waitcnt vmcnt(0) lgkmcnt(0)')
    g.stamp(3)
    g('s_barrier')
    FA = 96
    skip = g.uniq('skipfa')
    g(f's_cmp_lt_u32 {sWAVE}, 4')
    g(f's_cbranch_scc0 {skip}')
    for t in range(16):
        g(f'ds_read_b128 v[{FA+4*t}:{FA+4*t+3}], v{36+(t%4)} offset:{256*(t//4)}')
    g.label(skip)

    def vdma(half):
        g(f's_and_b32 s49, {sWAVE}, 3')
        g('s_lshl_b32 s49, s49, 13')
        g(f's_add_u32 m0, s49, {L_V + 32768 * half}')
        g.nop(1)
        for n in range(8):
            g('global_load_lds_dwordx4 v41, s[98:99]' + (' nt' if 'vnt' in opts else ''))
            if n < 7:
                g('s_add_u32 m0, m0, 1024')
                g('s_add_u32 s98, s98, 8192')
                g('s_addc_u32 s99, s99, 0')
        if half == 0:
            g(f's_add_u32 s98, s98, {8192 + 192 * 1024}')
            g('s_addc_u32 s99, s99, 0')
    g(f's_cmp_ge_u32 {sWAVE}, 4')
    g('s_cbranch_scc0 L_a_nv1')
    vdma(0)
    if 'vall' in opts:
        vdma(1)
    g.label('L_a_nv1')
    g(f'ds_read_b32 v12, v1 offset:{L_MODE}')
    g(f's_mov_b32 s63, {f2u(KAPPA):#x}')
    if 'ppqa' in opts:
        g.poll3('qa', [(f'global_load_dwordx4 v[{{d}}], v248, {WS} offset:{1024*i} sc1', 16 + 4 * i, 3, None) for i in range(4)], MA, 10, 11,
                [[b + 4 * i for i in range(4)] for b in (64, 160, 176)][:PK], (0, 1), optn('qasp', SP))
    else:
        g.poll2('qa', [(f'global_load_dwordx4 v[{16+4*i}:{19+4*i}], v248, {WS} offset:{1024*i} sc1', 19 + 4 * i, None) for i in range(4)], MA, 10, 11)
    for i in range(4):
        g(f'ds_write_b64 v{44+(i>>1)}, v[{16+4*i}:{17+4*i}] offset:{512*(i&1)}')
    g.stamp(4)
    g('s_waitcnt lgkmcnt(0)')
    g(f'v_readfirstlane_b32 {sMODE}, v12')
    g('s_barrier')
    g(f's_cmp_ge_u32 {sWAVE}, 4')
    g('s_cbranch_scc1 L_a_v')
    g.begin_tail()
    g.label('L_a_v')
    if 'vall' not in opts and 'vpost' not in opts:
        vdma(1)
    g('s_barrier')
    if 'vpost' in opts:
        vdma(1)
    g('s_waitcnt vmcnt(0)')
    g.stamp(6)
    g('s_barrier')
    VT = 96
    for kr in range(8):
        for s2 in range(2):
            for h in range(2):
                d = VT + 8 * kr + 4 * s2 + 2 * h
                g(f'ds_read_b64_tr_b16 v[{d}:{d+1}], v40 offset:{2048*(4*kr+2*s2+h)}')
    g(f'v_mov_b32 v51, {sTAG}')
    if 'px4' in opts:
        g('s_waitcnt lgkmcnt(0)')
        g('s_branch L_a_bxg')
    else:
        g('s_branch L_a_px')
    g.end_tail()
    qreg = [192 + 4 * t for t in range(8)] + [16 + 4 * t for t in range(4)] + [80 + 4 * t for t in range(4)]
    for t in range(16):
        g(f'ds_read_b128 v[{qreg[t]}:{qreg[t]+3}], v{32+(t%4)} offset:{L_QL+256*(t//4)}')
    g(f'v_mov_b32 v63, {sTAG}')
    for t in range(16):
        g(f's_waitcnt lgkmcnt({15-t})')
        c = '0' if t == 0 else 'v[48:51]'
        g(f'v_mfma_f32_16x16x32_bf16 v[48:51], v[{FA+4*t}:{FA+4*t+3}], v[{qreg[t]}:{qreg[t]+3}], {c}')
    g.nop(8)
    g('v_max_f32 v52, v48, v49')
    g('v_max3_f32 v52, v52, v50, v51')
    g.row_reduce([52], [53], 'max')
    g(f'ds_write_b32 v47, v52 offset:{L_MB}')
    g('s_waitcnt lgkmcnt(0)')
    g('s_barrier')
    g.stamp(12)
    g(f'ds_read_b128 v[52:55], v46 offset:{L_MB}')
    g('s_waitcnt lgkmcnt(0)')
    g('v_max_f32 v52, v52, v53')
    g('v_max3_f32 v52, v52, v54, v55')
    g('v_mul_f32 v62, s63, v52')
    for k in range(4):
        g(f'v_fma_f32 v{48+k}, v{48+k}, s63, -v62')
    for k in range(4):
        g(f'v_exp_f32 v{48+k}, v{48+k}')
    g.nop(1)
    g('v_cvt_pk_bf16_f32 v60, v48, v49')
    g('v_cvt_pk_bf16_f32 v61, v50, v51')
    mode_store(g, [f'global_store_dwordx4 v58, v[60:63], {WS}'], sMODE)
    g.stamp(5)
    if 'px4' in opts:
        PR = [16 + 4 * i for i in range(4)] + [64 + 4 * i for i in range(4)]
        g('v_add_u32 v247, 16384, v246') if False else None
        g('v_add_u32 v252, 16384, v246')
        g.poll2('px', [(f'global_load_dwordx4 v[{PR[i]}:{PR[i]+3}], {"v246" if i < 4 else "v252"}, {WS} offset:{1024*(i%4)} sc1', PR[i] + 3, None) for i in range(8)],
                MA, 10, 11, hook=lambda: g('s_barrier'))
        for i in range(8):
            g(f'ds_write_b64 v56, v[{PR[i]}:{PR[i]+1}] offset:{8192*(i>>2)+1024*((i&3)>>1)+8*(i&1)}')
        g.set_exec(0xffff)
        g('ds_write_b32 v59, v18')
        g('ds_write_b32 v59, v66 offset:16')
        g('s_mov_b64 exec, -1')
        g.stamp(10)
        g('s_waitcnt lgkmcnt(0)')
        g.label('L_a_bxg')
        g('s_barrier')
    else:
        g('s_barrier')
        g.label('L_a_px')
        g.poll2('px', [(f'global_load_dwordx4 v[{16+4*i}:{19+4*i}], v246, {WS} offset:{1024*i} sc1', 19 + 4 * i, None) for i in range(4)], MA, 10, 11)
        for i in range(4):
            g(f'ds_write_b64 v56, v[{16+4*i}:{17+4*i}] offset:{1024*(i>>1)+8*(i&1)}')
        g.set_exec(0xffff)
        g('ds_write_b32 v59, v18')
        g('s_mov_b64 exec, -1')
        g.stamp(10)
        g('s_waitcnt lgkmcnt(0)')
        g('s_barrier')
    BF = 160

    def pv(lwave):
        g('ds_read_b128 v[32:35], v43')
        g('ds_read_b128 v[36:39], v43 offset:16')
        def bread(q):
            g(f'ds_read_b128 v[{BF+4*q}:{BF+4*q+3}], v42 offset:{1024*q}')
        for q in range(12):
            bread(q)
        if lwave:
            for k in range(4):
                g(f'v_mov_b32 v{88+k}, 0x3f803f80')
        g('s_waitcnt lgkmcnt(12)')
        g('v_max3_f32 v20, v32, v33, v34')
        g('v_max3_f32 v20, v20, v35, v36')
        g('v_max3_f32 v20, v20, v37, v38')
        g('v_max_f32 v20, v20, v39')
        for k in range(8):
            g(f'v_sub_f32 v{32+k}, v{32+k}, v20')
        DS = [224, 228, 232]
        nf = 1 if lwave else 4

        def fma(k):
            d = DS[k % 3]
            for r in range(nf):
                if k == 0:
                    g(f'v_mul_f32 v{236+r}, v{d+r}, v32')
                else:
                    g(f'v_fma_f32 v{236+r}, v{d+r}, v{32+k}, v{236+r}')
        for k in range(8):
            g(f's_waitcnt lgkmcnt({min(10, 14-2*k)})')
            d = DS[k % 3]
            for s2 in range(2):
                a = '88:91' if lwave else f'{VT+8*k+4*s2}:{VT+8*k+4*s2+3}'
                c = '0' if s2 == 0 else f'v[{d}:{d+3}]'
                g(f'v_mfma_f32_16x16x32_bf16 v[{d}:{d+3}], v[{a}], v[{BF+8*k+4*s2}:{BF+8*k+4*s2+3}], {c}')
            if k < 2:
                bread(12 + 2 * k)
                bread(13 + 2 * k)
            g(f'v_exp_f32 v{32+k}, v{32+k}')
            if k >= 2:
                fma(k - 2)
                if lwave:
                    g.nop(3)
        if lwave:
            g.nop(4)
        fma(6)
        if lwave:
            g.nop(4)
        else:
            g.nop(1)
        fma(7)

    g(f's_cmp_lt_u32 {sWAVE}, 4')
    g('s_cbranch_scc1 L_a_lw')
    g.begin_tail()
    g.label('L_a_lw')
    g(f's_cmp_eq_u32 {sWAVE}, 0')
    g('s_cbranch_scc0 L_a_w2')
    g('s_cmp_eq_u32 s58, 0')
    g('s_cbranch_scc0 L_a_w2')
    pv(True)
    g('v_mov_b32 v21, v236')
    g(f'v_mov_b32 v23, {sTAG}')
    g.set_exec(0xffff)
    g(f'global_store_dwordx4 v250, v[20:23], {WS} sc1')
    g('s_mov_b64 exec, -1')
    g.label('L_a_w2')
    if 'wuvlate' not in opts:
        for ins in wuv_ins:
            g(ins)
    g('s_branch L_a_s4')
    g.end_tail()
    pv(False)
    g('v_cvt_pk_bf16_f32 v48, v236, v237')
    g('v_cvt_pk_bf16_f32 v49, v238, v239')
    g(f'global_store_dwordx4 v244, v[48:51], {WS} sc1')
    g.stamp(7)
    if 'wuvlate' not in opts:
        for ins in wuv_ins:
            g(ins)
    g.label('L_a_s4')
    g('s_barrier')
    if 'wuvlate' in opts:
        for ins in wuv_ins:
            g(ins)

    if 'ppox' in opts:
        g.poll3('ox', [(f'global_load_dwordx4 v[{{d}}], v245, {WS} sc1', 16, 3, None)], MA, 10, 11, [[96], [100], [104], [108]][:PK], (0, 1), optn('oxsp', SP))
    else:
        g.poll2('ox', [(f'global_load_dwordx4 v[16:19], v245, {WS} sc1', 19, None)], MA, 10, 11)
    g.stamp(8)
    g('v_max_f32_dpp v22, v16, v16 row_ror:4 row_mask:0xf bank_mask:0xf')
    g.nop(2)
    g('v_max_f32_dpp v22, v22, v22 row_ror:8 row_mask:0xf bank_mask:0xf')
    g.nop(1)
    g('v_mov_b32 v23, v22')
    g.nop(2)
    g('v_permlane16_swap_b32 v23, v22')
    g.nop(1)
    g('v_max_f32 v22, v22, v23')
    g('v_sub_f32 v24, v16, v22')
    g('v_exp_f32 v24, v24')
    g('v_permlane32_swap_b32 v16, v17')
    g.nop(1)
    g('v_mul_f32 v22, v24, v17')
    g('v_lshlrev_b32 v25, 16, v16')
    g('v_add_f32_dpp v22, v22, v22 row_ror:4 row_mask:0xf bank_mask:0xf')
    g('v_and_b32 v26, 0xffff0000, v16')
    g.nop(1)
    g('v_add_f32_dpp v22, v22, v22 row_ror:8 row_mask:0xf bank_mask:0xf')
    g.nop(1)
    g('v_mov_b32 v23, v22')
    g.nop(2)
    g('v_permlane16_swap_b32 v23, v22')
    g.nop(1)
    g('v_add_f32 v22, v22, v23')
    g('v_rcp_f32 v22, v22')
    g.nop(1)
    g('v_mul_f32 v24, v24, v22')
    g('v_mov_b32 v23, v24')
    g.nop(2)
    g('v_permlane32_swap_b32 v23, v24')
    g.nop(1)
    g('v_mul_f32 v25, v25, v24')
    g('v_mul_f32 v26, v26, v24')
    g.nop(2)
    g('v_permlane16_swap_b32 v25, v26')
    g.nop(1)
    g('v_add_f32 v25, v25, v26')
    g.nop(2)
    g('v_add_f32_dpp v25, v25, v25 row_ror:4 row_mask:0xf bank_mask:0xf')
    g.nop(2)
    g('v_add_f32_dpp v25, v25, v25 row_ror:8 row_mask:0xf bank_mask:0xf')
    g('v_cvt_pk_bf16_f32 v25, v25, v25')
    g.nop(2)

    def ands(tt):
        a = 84 + 4 * (tt % 2)
        for v in range(4):
            g(f'v_and_b32_dpp v{a+v}, v25, v{240+v} quad_perm:[{tt},{tt},{tt},{tt}] row_mask:0xf bank_mask:0xf')
    ands(0)
    for tt in range(4):
        if tt < 3:
            ands(tt + 1)
        else:
            g.nop(2)
        a = 84 + 4 * (tt % 2)
        c = '0' if tt == 0 else 'v[92:95]'
        g(f'v_mfma_f32_16x16x32_bf16 v[92:95], v[{a}:{a+3}], v[{64+4*tt}:{67+4*tt}], {c}')
    g.set_exec(0xffffffff)
    g.nop(6)
    g(f'ds_write_b128 v247, v[92:95] offset:{L_RED}')
    g('s_mov_b64 exec, -1')
    g('s_waitcnt lgkmcnt(0)')
    g('s_barrier')
    g(f's_cmp_eq_u32 {sWAVE}, 0')
    g('s_cbranch_scc0 L_a_red')
    for w in range(8):
        g(f'ds_read_b64 v[{32+2*w}:{33+2*w}], v57 offset:{L_RED+512*w}')
    g(f'v_mov_b32 v23, {sTAG}')
    g('s_waitcnt lgkmcnt(0)')
    g('v_pk_add_f32 v[32:33], v[32:33], v[34:35]')
    g('v_pk_add_f32 v[36:37], v[36:37], v[38:39]')
    g('v_pk_add_f32 v[40:41], v[40:41], v[42:43]')
    g('v_pk_add_f32 v[44:45], v[44:45], v[46:47]')
    g('v_pk_add_f32 v[32:33], v[32:33], v[36:37]')
    g('v_pk_add_f32 v[40:41], v[40:41], v[44:45]')
    g('v_pk_add_f32 v[32:33], v[32:33], v[40:41]')
    g('v_cvt_pk_bf16_f32 v20, v32, v33')
    g.nop(2)
    g('v_mov_b32_dpp v21, v20 row_shl:1 row_mask:0xf bank_mask:0xf')
    g.set_exec(0x5555555555555555)
    mode_store(g, [f'global_store_dwordx4 v253, v[20:23], {WS}'], sMODE)
    g('s_mov_b64 exec, -1')
    g.stamp(9)
    g.label('L_a_red')
    if 'wb' in opts:
        g(f's_cmp_eq_u32 {sWAVE}, 5')
        g('s_cbranch_scc0 L_a_nwb')
        g(f's_cmp_eq_u32 {sR}, 12')
        g('s_cbranch_scc0 L_a_nwb')
        g('buffer_wbl2 sc1')
        g('s_waitcnt vmcnt(0)')
        g.label('L_a_nwb')
    if stop_after == 4:
        g('s_branch L_fin')
    g(f's_cmp_eq_u32 {sWAVE}, 7')
    g('s_cbranch_scc0 L_fin')
    g(f's_cmp_lt_u32 {sR}, 10')
    g('s_cbranch_scc0 L_fin')
    g(f's_mul_i32 s55, {sXCD}, 10')
    g(f's_add_u32 s55, s55, {sR}')
    g('v_and_b32 v7, 3, v0')
    g('v_lshrrev_b32 v6, 5, v0')
    g('v_and_b32 v8, 1, v7')
    g('v_lshlrev_b32 v8, 2, v8')
    g('v_lshrrev_b32 v9, 1, v7')
    g('v_add_u32 v8, v8, v9')
    g('v_lshl_add_u32 v8, v6, 1, v8')
    g('s_lshl_b32 s48, s55, 3')
    g('v_add_u32 v31, s48, v8')
    g('v_lshlrev_b32 v31, 1, v31')
    g(f'global_load_ushort v30, v31, {S_X}')
    g('v_and_b32 v9, 7, v0')
    g('v_mul_u32_u24 v9, 2560, v9')
    g('v_bfe_u32 v10, v0, 3, 1')
    g('v_lshl_add_u32 v9, v10, 4, v9')
    g('s_lshr_b32 s48, s55, 4')
    g('s_lshl_b32 s48, s48, 9')
    g('s_and_b32 s49, s55, 15')
    g('s_lshl_b32 s49, s49, 5')
    g('s_add_u32 s48, s48, s49')
    g(f's_add_u32 s48, s48, {OUTP}')
    g('v_add_u32 v9, s48, v9')
    g('s_lshl_b32 s48, s55, 6')
    g(f's_add_u32 s48, s48, {O2P}')
    g('v_lshrrev_b32 v12, 2, v0')
    g('v_mul_u32_u24 v12, 5120, v12')
    g('v_lshl_add_u32 v12, v7, 4, v12')
    g('v_add_u32 v12, s48, v12')
    g(f'v_add_u32 v13, {16*5120}, v12')
    g(f'v_add_u32 v14, {32*5120}, v12')
    g(f'v_add_u32 v15, {48*5120}, v12')
    g(f'v_mov_b32 v44, {sTAG}')
    g('v_mov_b32 v46, 0')
    g('v_mov_b32 v47, 0')
    g(f'v_mov_b32 v19, {sTAG}')
    g('v_mov_b32 v16, 0')
    g('v_mov_b32 v17, 0')
    g('v_lshrrev_b32 v28, 2, v8')
    g('v_lshlrev_b32 v28, 5, v28')
    g('v_and_b32 v29, 3, v8')
    if 'ghf' in opts:
        g.gate('hf', 9, 10)
    g.poll2('hf', [(f'global_load_dwordx4 v[16:19], v9, {WS} sc1', 19, 0xffff)], MA, 10, 11)
    g('v_lshlrev_b32 v20, 16, v16')
    g('v_and_b32 v21, 0xffff0000, v16')
    g('v_lshlrev_b32 v22, 16, v17')
    g('v_and_b32 v23, 0xffff0000, v17')
    for ctl in ['quad_perm:[1,0,3,2]', 'quad_perm:[2,3,0,1]', 'row_half_mirror']:
        g.nop(1)
        for k in range(4):
            g(f'v_add_f32_dpp v{20+k}, v{20+k}, v{20+k} {ctl} row_mask:0xf bank_mask:0xf')
    g.nop(1)
    for k in range(4):
        g(f'ds_bpermute_b32 v{24+k}, v28, v{20+k}')
    g('s_waitcnt lgkmcnt(0)')
    g('v_cmp_eq_u32 vcc, 1, v29')
    g.nop(1)
    g('v_cndmask_b32 v24, v24, v25, vcc')
    g('v_cmp_eq_u32 vcc, 2, v29')
    g.nop(1)
    g('v_cndmask_b32 v24, v24, v26, vcc')
    g('v_cmp_eq_u32 vcc, 3, v29')
    g.nop(1)
    g('v_cndmask_b32 v16, v24, v27, vcc')
    rnd_bf16(g, 16)
    g('v_lshlrev_b32 v30, 16, v30')
    g('v_add_f32 v30, v30, v16')
    rnd_bf16(g, 30)
    if 'go2' in opts:
        g('s_sub_u32 s48, s55, 54')
        g('s_cmp_lt_u32 s55, 54')
        g('s_cselect_b32 s48, s55, s48')
        g('s_lshl_b32 s48, s48, 7')
        g(f's_add_u32 s48, s48, {PF}')
        g('v_mov_b32 v10, s48')
        g.gate('o2', 10, 11)
    if 'ppo2' in opts:
        g.poll3('o2', [(f'global_load_dwordx4 v[{{d}}], v{12+i}, {WS} sc1', 32 + 4 * i, 0, None if i < 3 else 0xffffff) for i in range(4)], MA, 10, 11,
                [[b + 4 * i for i in range(4)] for b in (48, 64, 112, 128)][:PK], (2, 3), optn('o2sp', SP))
    else:
        g.poll2('o2', [(f'global_load_dwordx4 v[{32+4*i}:{35+4*i}], v{12+i}, {WS} sc1', 32 + 4 * i, None) for i in range(3)] +
                [(f'global_load_dwordx4 v[44:47], v15, {WS} sc1', 44, 0xffffff)], MA, 10, 11)
    g.stamp(9)
    g('v_pk_add_f32 v[16:17], v[34:35], v[38:39]')
    g('v_pk_add_f32 v[18:19], v[42:43], v[46:47]')
    g('v_pk_add_f32 v[16:17], v[16:17], v[18:19]')
    g.nop(2)
    g('v_permlane32_swap_b32 v16, v17')
    g.nop(1)
    g('v_add_f32 v16, v16, v17')
    g('v_mov_b32 v17, v16')
    g.nop(2)
    g('v_permlane16_swap_b32 v17, v16')
    g.nop(1)
    g('v_add_f32 v16, v16, v17')
    g.nop(2)
    g('v_add_f32_dpp v16, v16, v16 row_ror:4 row_mask:0xf bank_mask:0xf')
    g.nop(2)
    g('v_add_f32_dpp v16, v16, v16 row_ror:8 row_mask:0xf bank_mask:0xf')
    rnd_bf16(g, 16)
    g('v_add_f32 v16, v16, v30')
    g('v_cvt_pk_bf16_f32 v16, v16, v16')
    g('s_mov_b32 exec_lo, 0xf')
    g('s_mov_b32 exec_hi, 0xf')
    g(f'global_store_short v31, v16, {S_OUT}')
    g('s_mov_b64 exec, -1')
    g('s_cmp_eq_u32 s55, 0')
    g('s_cbranch_scc0 L_fin')
    g('s_mov_b64 exec, 1')
    g(f'v_mov_b32 v2, {sTAG}')
    g(f'global_store_dword v1, v2, {WS} sc1')
    g('s_mov_b64 exec, -1')
    g('s_branch L_fin')

    g.label('L_pathB')
    g(f's_sub_u32 s54, {sR}, 16')
    g('s_lshr_b32 s48, s54, 2')
    g(f's_lshl_b32 s49, {sXCD}, 2')
    g('s_add_u32 s55, s48, s49')
    g(f's_cmp_eq_u32 {sWAVE}, 0')
    g('s_cbranch_scc0 L_b1')
    g('s_lshl_b32 s48, s55, 13')
    g(f's_add_u32 s49, s48, {Q1L}')
    g.addr('s[40:41]', S_WS, 's49')
    g(f's_add_u32 s49, s48, {Q1G}')
    g.addr('s[42:43]', S_WS, 's49')
    g('v_add_u32 v4, 4096, v3')
    g('v_and_b32 v14, 1, v6')
    g('v_lshlrev_b32 v14, 3, v14')
    g('v_lshl_add_u32 v14, v7, 4, v14')
    g('v_lshrrev_b32 v15, 1, v6')
    g('v_lshl_add_u32 v14, v15, 2, v14')
    g.poll2('q1', [(f'global_load_dwordx4 v[{32+4*k}:{35+4*k}], {"v3" if k < 4 else "v4"}, {{base}} offset:{1024*(k%4)} sc1', 35 + 4 * k, None) for k in range(8)],
            MQ, 10, 11, alt=('s[42:43]', 's[42:43]') if 'q1g' in opts else ('s[40:41]', 's[42:43]'))
    g.stamp(3)
    g('v_pk_add_f32 v[12:13], v[32:33], v[36:37]')
    g('v_pk_add_f32 v[10:11], v[40:41], v[44:45]')
    g('v_pk_add_f32 v[16:17], v[48:49], v[52:53]')
    g('v_pk_add_f32 v[18:19], v[56:57], v[60:61]')
    g('v_pk_add_f32 v[12:13], v[12:13], v[10:11]')
    g('v_pk_add_f32 v[16:17], v[16:17], v[18:19]')
    g('v_pk_add_f32 v[12:13], v[12:13], v[16:17]')
    g('v_cvt_pk_bf16_f32 v12, v12, v13')
    g(f'ds_write_b32 v14, v12 offset:{L_QB}')
    g('s_waitcnt lgkmcnt(0)')
    g('s_barrier')
    g('s_branch L_b2')
    g.label('L_b1')
    g('s_lshl_b32 s48, s55, 11')
    g('s_and_b32 s49, s54, 3')
    g('s_lshl_b32 s49, s49, 9')
    g('s_add_u32 s48, s48, s49')
    g(f's_and_b32 s49, {sWAVE}, 3')
    g('s_lshl_b32 s49, s49, 7')
    g('s_add_u32 s48, s48, s49')
    g(f's_add_u32 s48, s48, {QA}')
    g('v_lshlrev_b32 v9, 4, v6')
    g('v_lshl_add_u32 v104, v7, 6, v9')
    g('v_add_u32 v104, s48, v104')
    g(f'v_mov_b32 v103, {sTAG}')
    g('s_mov_b32 s56, 0x00020002')
    g('s_mov_b32 s57, 0x00020002')
    g(f's_cmp_ge_u32 {sWAVE}, 4')
    g('s_cbranch_scc0 L_b1x')
    g.begin_tail()
    g.label('L_b1x')
    g('s_barrier')
    g('s_branch L_b2')
    g.end_tail()
    g(f's_and_b32 s49, {sWAVE}, 3')
    g('s_lshl_b32 s49, s49, 13')
    g(f's_add_u32 s49, s49, {L_TILE}')
    g('v_lshl_add_u32 v12, v7, 8, s49')
    for t in range(4):
        g(f'v_add_u32 v13, {4*t}, v6')
        g('v_xor_b32 v13, v13, v7')
        g('v_lshl_add_u32 v13, v13, 4, v12')
        for tau in range(2):
            g(f'ds_read_b128 v[{64+16*tau+4*t}:{67+16*tau+4*t}], v13 offset:{4096*tau}')
    g('s_waitcnt lgkmcnt(0)')
    g('s_barrier')
    for t in range(4):
        g(f'ds_read_b128 v[{108+4*t}:{111+4*t}], v9 offset:{L_QB+64*t}')
    for t in range(4):
        g(f's_waitcnt lgkmcnt({3-t})')
        for tau in range(2):
            c = '0' if t == 0 else f'v[{96+8*tau}:{99+8*tau}]' if False else ('0' if t == 0 else f'v[{124+4*tau}:{127+4*tau}]')
            g(f'v_mfma_f32_16x16x32_bf16 v[{124+4*tau}:{127+4*tau}], v[{64+16*tau+4*t}:{67+16*tau+4*t}], v[{108+4*t}:{111+4*t}], {c}')
    g('s_mov_b32 exec_lo, 0x00030003')
    g('s_mov_b32 exec_hi, 0x00030003')
    g.nop(6)
    g('v_cvt_pk_bf16_f32 v96, v124, v125')
    g('v_cvt_pk_bf16_f32 v97, v126, v127')
    g('v_cvt_pk_bf16_f32 v98, v128, v129')
    g('v_cvt_pk_bf16_f32 v99, v130, v131')
    g('v_cndmask_b32 v100, v96, v98, s[56:57]')
    g('v_cndmask_b32 v101, v97, v99, s[56:57]')
    g(f'global_store_dwordx4 v104, v[100:103], {WS} sc1')
    g('s_mov_b64 exec, -1')
    g.stamp(4)
    g.label('L_b2')
    if stop_after in (2, 3, 4):
        g('s_branch L_fin')
    if 'pace' in opts or 'paceml' in opts:
        g(f's_cmp_eq_u32 {sWAVE}, 0')
        g('s_cbranch_scc0 L_b2p')
        if 'paceml' in opts:
            g('s_cmp_lt_u32 s54, 5')
            g('s_cbranch_scc1 L_b2p')
        g('v_lshrrev_b32 v12, 1, v0')
        g('v_lshlrev_b32 v12, 11, v12')
        g('v_and_b32 v13, 1, v0')
        g('v_lshl_add_u32 v12, v13, 10, v12')
        g(f'v_add_u32 v12, {QA + 1008}, v12')
        g('s_mov_b32 s50, 0')
        g.label('L_b2q')
        g(f'global_load_dwordx4 v[16:19], v12, {WS} sc1')
        g('s_add_u32 s50, s50, 1')
        g('s_waitcnt vmcnt(0)')
        g(f'v_cmp_ne_u32 vcc, {sTAG}, v19')
        g('s_cmp_eq_u64 vcc, 0')
        g('s_cbranch_scc1 L_b2p')
        g('s_cmp_lt_u32 s50, 64')
        g('s_cbranch_scc1 L_b2q')
        g.label('L_b2p')
    if 'pacepf' in opts:
        g(f's_cmp_eq_u32 {sWAVE}, 0')
        g('s_cbranch_scc0 L_b2u')
        g('s_cmp_lt_u32 s54, 5')
        g('s_cbranch_scc1 L_b2u')
        g(f's_lshl_b32 s48, {sXCD}, 8')
        g(f's_add_u32 s48, s48, {PF}')
        g('v_and_b32 v12, NPF, v0'.replace('NPF', str(int([o for o in opts if o.startswith('npf')][0][3:]) - 1 if any(o.startswith('npf') for o in opts) else 3)))
        g('v_lshl_add_u32 v12, v12, 4, s48')
        g('s_mov_b32 s50, 0')
        g.label('L_b2t')
        g(f'global_load_dwordx4 v[16:19], v12, {WS} sc1')
        g('s_add_u32 s50, s50, 1')
        g('s_waitcnt vmcnt(0)')
        g(f'v_cmp_ne_u32 vcc, {sTAG}, v19')
        g('s_cmp_eq_u64 vcc, 0')
        g('s_cbranch_scc1 L_b2u')
        g('s_cmp_lt_u32 s50, 256')
        g('s_cbranch_scc1 L_b2t')
        g.label('L_b2u')
    if 'pacemll' in opts:
        g(f's_cmp_eq_u32 {sWAVE}, 0')
        g('s_cbranch_scc0 L_b2r')
        g('s_cmp_lt_u32 s54, 5')
        g('s_cbranch_scc1 L_b2r')
        g(f's_lshl_b32 s48, {sXCD}, 12')
        g(f's_add_u32 s48, s48, {MLL}')
        g('v_add_u32 v12, s48, v3')
        g('s_mov_b32 s50, 0')
        g.label('L_b2s')
        g(f'global_load_dwordx4 v[16:19], v12, {WS} sc1')
        g('s_add_u32 s50, s50, 1')
        g('s_waitcnt vmcnt(0)')
        g(f'v_cmp_ne_u32 vcc, {sTAG}, v19')
        g('s_cmp_eq_u64 vcc, 0')
        g('s_cbranch_scc1 L_b2r')
        g('s_cmp_lt_u32 s50, 256')
        g('s_cbranch_scc1 L_b2s')
        g.label('L_b2r')
    g('s_barrier')
    g.stamp(5)
    g('v_lshrrev_b32 v8, 3, v7')
    g('v_and_b32 v9, 7, v0')
    g('v_lshl_add_u32 v10, v8, 2, v6')
    g('s_cmp_lt_u32 s54, 5')
    g('s_cbranch_scc1 L_b_wo')
    if 'helper' in opts:
        g('s_cmp_ge_u32 s54, 12')
        g('s_cbranch_scc1 L_b_help')
        g('s_sub_u32 s48, s54, 5')
        g(f's_mul_i32 s49, {sXCD}, 7')
        g('s_add_u32 s58, s49, s48')
        g('s_cmp_lt_u32 s58, 54')
        g('s_cbranch_scc0 L_fin')
        g('s_branch L_b_mlpld')
        g.label('L_b_help')
        g('s_sub_u32 s48, s54, 12')
        g(f's_lshl_b32 s49, {sXCD}, 2')
        g('s_add_u32 s48, s48, s49')
        g('s_lshl_b32 s48, s48, 8')
        g(f's_lshl_b32 s49, {sWAVE}, 19')
        g('s_add_u32 s48, s48, s49')
        g.addr('s[40:41]', S_WUV, 's48')
        g('v_lshlrev_b32 v11, 13, v6')
        g('v_lshl_add_u32 v11, v7, 4, v11')
        for t in range(16):
            g(f'global_load_dwordx4 v[{64+4*t}:{67+4*t}], v11, s[40:41]' + (' nt' if 'helpnt' in opts else ''))
            if t < 15:
                g('s_add_u32 s40, s40, 32768')
                g('s_addc_u32 s41, s41, 0')
        g('s_waitcnt vmcnt(0)')
        g.stamp(6)
        g('s_branch L_fin')
    else:
        g('s_sub_u32 s48, s54, 5')
        g('s_lshr_b32 s49, s48, 1')
        g('s_lshl_b32 s49, s49, 3')
        g(f's_add_u32 s49, s49, {sXCD}')
        g('s_cmp_lt_u32 s49, 27')
        g('s_cbranch_scc0 L_fin')
        g('s_lshl_b32 s49, s49, 1')
        g('s_and_b32 s48, s48, 1')
        g('s_add_u32 s58, s49, s48')
        g('s_branch L_b_mlpld')
    g.label('L_b_wo')
    g(f's_lshl_b32 s48, {sXCD}, 3')
    g(f's_add_u32 s48, s48, {sWAVE}')
    g(f's_mul_i32 s48, s48, {64*1280}')
    g('s_lshl_b32 s49, s54, 8')
    g('s_add_u32 s48, s48, s49')
    g.addr('s[40:41]', S_WO, 's48')
    g('v_mul_u32_u24 v11, 1280, v6')
    g('v_lshl_add_u32 v11, v7, 4, v11')
    for t in range(16):
        g(f'global_load_dwordx4 v[{32+4*t}:{35+4*t}], v11, s[40:41]' + ('' if 'wont0' in opts else ' nt'))
        if t < 15:
            g('s_add_u32 s40, s40, 5120')
            g('s_addc_u32 s41, s41, 0')
    gen_mask(g, 192, 16, 17)
    g(f's_lshr_b32 s48, {sWAVE}, 1')
    g('s_lshl_b32 s48, s48, 2')
    g(f's_lshl_b32 s49, {sXCD}, 4')
    g('s_add_u32 s48, s48, s49')
    g('s_lshl_b32 s48, s48, 9')
    g(f's_and_b32 s49, {sWAVE}, 1')
    g('s_lshl_b32 s49, s49, 8')
    g('s_add_u32 s48, s48, s49')
    g(f's_add_u32 s48, s48, {C4}')
    g('v_lshlrev_b32 v11, 9, v6')
    g('v_lshl_add_u32 v11, v7, 4, v11')
    g('v_add_u32 v11, s48, v11')
    g('v_lshlrev_b32 v26, 5, v7')
    g('v_lshl_add_u32 v26, v6, 4, v26')
    g(f's_lshl_b32 s48, {sWAVE}, 9')
    g('v_add_u32 v26, s48, v26')
    g('v_lshlrev_b32 v28, 3, v0')
    g(f's_mul_i32 s48, {sXCD}, 2560')
    g('s_lshl_b32 s49, s54, 9')
    g('s_add_u32 s48, s48, s49')
    g(f's_add_u32 s48, s48, {OUTP}')
    g('v_lshrrev_b32 v29, 1, v0')
    g('v_lshl_add_u32 v29, v29, 4, s48')
    g(f'v_mov_b32 v147, {sTAG}')
    if g.stamps:
        g.stamp(8)
        g('s_waitcnt vmcnt(0)')
        g.stamp(9)
    if 'gc4' in opts:
        g(f's_lshl_b32 s48, {sXCD}, 16')
        g('s_lshl_b32 s49, s54, 13')
        g('s_add_u32 s48, s48, s49')
        g(f's_lshl_b32 s49, {sWAVE}, 10')
        g('s_add_u32 s48, s48, s49')
        g(f's_add_u32 s48, s48, {OX}')
        g('v_mov_b32 v13, s48')
        g.gate('c4', 13, 14)
    g.poll2('c4', [(f'global_load_dwordx4 v[16:19], v11, {WS} sc1', 19, None)], MB, 13, 14)
    g.stamp(6)
    g('v_lshlrev_b32 v20, 16, v16')
    g('v_and_b32 v21, 0xffff0000, v16')
    g('v_lshlrev_b32 v22, 16, v17')
    g('v_and_b32 v23, 0xffff0000, v17')
    g.nop(1)
    g('v_permlane32_swap_b32 v20, v22')
    g('v_permlane32_swap_b32 v21, v23')
    g.nop(1)
    g('v_add_f32 v20, v20, v22')
    g('v_add_f32 v21, v21, v23')
    g.nop(2)
    g('v_permlane16_swap_b32 v20, v21')
    g.nop(1)
    g('v_add_f32 v20, v20, v21')
    g('v_cvt_pk_bf16_f32 v20, v20, v20')
    g.nop(2)

    def wands(t):
        a = 224 + 4 * (t % 4)
        for v in range(4):
            g(f'v_and_b32_dpp v{a+v}, v20, v{192+v} row_newbcast:{t} row_mask:0xf bank_mask:0xf')
    wands(0)
    wands(1)
    for t in range(16):
        if t + 2 < 16:
            wands(t + 2)
        a = 224 + 4 * (t % 4)
        c = '0' if t == 0 else 'v[200:203]'
        g(f'v_mfma_f32_16x16x32_bf16 v[200:203], v[{a}:{a+3}], v[{32+4*t}:{35+4*t}], {c}')
    g.set_exec(0xffffffff)
    g.nop(6)
    g(f'ds_write_b128 v26, v[200:203] offset:{L_RED}')
    g('s_mov_b64 exec, -1')
    g('s_waitcnt lgkmcnt(0)')
    g('s_barrier')
    g(f's_cmp_eq_u32 {sWAVE}, 0')
    g('s_cbranch_scc0 L_fin')
    for w in range(8):
        g(f'ds_read_b64 v[{160+2*w}:{161+2*w}], v28 offset:{L_RED+512*w}')
    g('s_waitcnt lgkmcnt(0)')
    g('v_pk_add_f32 v[160:161], v[160:161], v[162:163]')
    g('v_pk_add_f32 v[164:165], v[164:165], v[166:167]')
    g('v_pk_add_f32 v[168:169], v[168:169], v[170:171]')
    g('v_pk_add_f32 v[172:173], v[172:173], v[174:175]')
    g('v_pk_add_f32 v[160:161], v[160:161], v[164:165]')
    g('v_pk_add_f32 v[168:169], v[168:169], v[172:173]')
    g('v_pk_add_f32 v[160:161], v[160:161], v[168:169]')
    g('v_cvt_pk_bf16_f32 v144, v160, v161')
    g.nop(2)
    g('v_mov_b32_dpp v145, v144 row_shl:1 row_mask:0xf bank_mask:0xf')
    g.set_exec(0x5555555555555555)
    g(f'global_store_dwordx4 v29, v[144:147], {WS} sc1')
    g('s_mov_b64 exec, -1')
    g.stamp(7)
    g('s_branch L_fin')

    def gemv(n, src, wbase, d, ab=224, reuse=False, keep=False):
        ns = n if keep else 4
        def pm(t):
            a = ab + 4 * (t % ns)
            for v in range(4):
                g(f'v_perm_b32 v{a+v}, v{src+t//2}, v{src+t//2}, v{192+2*v+(t&1)}')
        if not reuse:
            pm(0)
            if n > 1:
                pm(1)
        for t in range(n):
            if not reuse and t + 2 < n:
                pm(t + 2)
            a = ab + 4 * (t % ns)
            c = '0' if t == 0 else f'v[{d}:{d+3}]'
            g(f'v_mfma_f32_16x16x32_bf16 v[{d}:{d+3}], v[{a}:{a+3}], v[{wbase+4*t}:{wbase+4*t+3}], {c}')

    g.label('L_b_mlpld')
    if stop_after == 5:
        g('s_branch L_fin')
    gen_sel(g, 192, 16, 17)
    if 'mlrot' in opts:
        g('s_and_b32 s57, s58, 1')
        g('s_lshl_b32 s57, s57, 2')
        g(f's_add_u32 s57, s57, {sWAVE}')
        g('s_and_b32 s57, s57, 7')
    else:
        g(f's_mov_b32 s57, {sWAVE}')
    g('v_and_b32 v26, 1, v6')
    g('v_lshlrev_b32 v26, 2, v26')
    g('v_lshl_add_u32 v26, v9, 3, v26')
    g('v_lshrrev_b32 v27, 1, v6')
    g('v_add_u32 v26, v26, v27')
    g('v_lshlrev_b32 v26, 2, v26')
    g(f's_lshl_b32 s48, {sWAVE}, 8')
    g('v_add_u32 v26, s48, v26')
    g('v_cmp_le_u32 vcc, 4, v9')
    g('v_mov_b32 v12, s22')
    g('v_mov_b32 v13, s24')
    g('v_mov_b32 v14, s23')
    g('v_mov_b32 v15, s25')
    g('v_cndmask_b32 v12, v12, v13, vcc')
    g('v_cndmask_b32 v13, v14, v15, vcc')
    g('v_and_b32 v14, 3, v0')
    g('v_lshlrev_b32 v14, 4, v14')
    g('s_lshl_b32 s48, s58, 6')
    g(f's_mul_i32 s49, s57, {80*3456}')
    g('s_add_u32 s48, s48, s49')
    g('v_add_u32 v14, s48, v14')
    g(f'v_mul_u32_u24 v15, {8*3456}, v10')
    g('v_add_u32 v15, v15, v14')
    g(f'v_mul_u32_u24 v16, {2*3456}, v10')
    g('v_add_u32 v16, v16, v14')
    g(f'v_add_u32 v16, {64*3456}, v16')
    for t in range(10):
        if t == 0:
            src = 15
        elif t == 8:
            src = 16
        g(f'v_add_co_u32 v18, vcc, v12, v{src}')
        g.nop(2)
        g('v_addc_co_u32 v19, vcc, 0, v13, vcc')
        g(f'global_load_dwordx4 v[{64+4*t}:{67+4*t}], v[18:19], off' + ('' if 'gunt0' in opts else ' sc0 nt' if 'gusc0' in opts else ' nt'))
        g(f'v_add_u32 v{src}, 3456, v{src}')
    g('s_lshl_b32 s48, s58, 5')
    g(f's_mul_i32 s48, s48, 1280')
    g(f's_lshl_b32 s49, {sWAVE}, 7')
    g('s_add_u32 s48, s48, s49')
    g.addr('s[40:41]', S_WD, 's48')
    g(f'v_mul_u32_u24 v11, {4*1280}, v10')
    g('v_lshl_add_u32 v11, v9, 4, v11')
    for t in range(4):
        g(f'global_load_dwordx4 v[{104+4*t}:{107+4*t}], v11, s[40:41] offset:{1280*t}' + ('' if 'wdnt0' in opts else ' nt'))
    g(f's_cmp_lt_u32 {sWAVE}, 2')
    g('s_cbranch_scc0 L_b_nod2')
    g('s_add_u32 s40, s40, 1024')
    g('s_addc_u32 s41, s41, 0')
    for t in range(4):
        g(f'global_load_dwordx4 v[{120+4*t}:{123+4*t}], v11, s[40:41] offset:{1280*t}' + ('' if 'wdnt0' in opts else ' nt'))
    g.label('L_b_nod2')
    g(f's_lshl_b32 s48, {sWAVE}, 8')
    g('s_min_u32 s48, s48, 1024')
    g('v_and_b32 v17, 31, v0')
    g('v_lshlrev_b32 v17, 3, v17')
    g('v_lshrrev_b32 v29, 5, v0')
    g('v_lshl_add_u32 v17, v29, 2, v17')
    g('v_add_u32 v143, s48, v17')
    g(f'global_load_dword v140, v143, {S_X}')
    g(f'global_load_ushort v141, v1, {S_X}')
    g.stamp(6)
    g('s_waitcnt vmcnt(0)')
    g.stamp(7)
    g('v_lshlrev_b32 v141, 16, v141')
    g.nop(1)
    g('v_readfirstlane_b32 s53, v141')
    gen_mask(g, 220, 16, 17)
    for v in range(4):
        g(f'v_and_b32 v{220+v}, 0x3f803f80, v{220+v}')
    g.nop(2)
    for t in range(10):
        c = '0' if t == 0 else 'v[200:203]'
        g(f'v_mfma_f32_16x16x32_bf16 v[200:203], v[220:223], v[{64+4*t}:{67+4*t}], {c}')
    g.nop(8)
    class_combine(g, 200)
    g.set_exec(0x00ff00ff00ff00ff)
    g('ds_write2_b32 v26, v200, v202 offset0:0 offset1:2')
    g('s_mov_b64 exec, -1')
    g('s_waitcnt lgkmcnt(0)')
    g('s_barrier')
    g('v_lshlrev_b32 v29, 2, v0')
    for w in range(8):
        g(f'ds_read_b32 v{160+w}, v29 offset:{256*w}')
    g('s_waitcnt lgkmcnt(0)')
    g('v_add_f32 v160, v160, v161')
    g('v_add_f32 v162, v162, v163')
    g('v_add_f32 v164, v164, v165')
    g('v_add_f32 v166, v166, v167')
    g('v_add_f32 v160, v160, v162')
    g('v_add_f32 v164, v164, v166')
    g('v_add_f32 v142, v160, v164')
    g('s_barrier')
    g('s_mul_i32 s48, s57, 160')
    g('v_lshlrev_b32 v27, 4, v10')
    g('v_add_u32 v27, s48, v27')
    g('v_lshlrev_b32 v28, 2, v10')
    g('v_add_u32 v28, s48, v28')
    g('v_lshlrev_b32 v30, 3, v10')
    g('v_and_b32 v31, 31, v0')
    g('v_lshlrev_b32 v31, 1, v31')
    g('v_lshlrev_b32 v14, 6, v9')
    g('v_lshl_add_u32 v14, v6, 4, v14')
    g(f's_mul_i32 s48, s58, 5120')
    g(f's_lshl_b32 s49, {sWAVE}, 9')
    g('s_add_u32 s48, s48, s49')
    g(f's_add_u32 s48, s48, {O2P}')
    g('v_add_u32 v14, s48, v14')
    g(f'v_add_u32 v15, {8*512}, v14')
    g(f'v_mov_b32 v202, {sTAG}')
    g(f's_lshl_b32 s48, {sWAVE}, 3')
    g('v_mov_b32 v144, s48')
    g(f's_cmp_lt_u32 {sWAVE}, 5')
    g('s_cbranch_scc0 L_m_b1')
    g(f's_lshl_b32 s48, {sWAVE}, 9')
    g(f's_add_u32 s48, s48, {OUTP}')
    g('v_lshrrev_b32 v152, 5, v0')
    g('v_mul_u32_u24 v152, 2560, v152')
    g('v_and_b32 v153, 31, v0')
    g('v_lshl_add_u32 v152, v153, 4, v152')
    g('v_add_u32 v152, s48, v152')
    for k in range(1, 4):
        g(f'v_add_u32 v{152+k}, {5120*k}, v152')
    g('v_lshlrev_b32 v148, 16, v140')
    g('v_and_b32 v149, 0xffff0000, v140')
    if 'goutp' in opts:
        g(f's_add_u32 s48, s58, {sWAVE}')
        g('s_and_b32 s48, s48, 15')
        g(f's_lshl_b32 s49, {sXCD}, 4')
        g('s_add_u32 s48, s48, s49')
        g('s_lshl_b32 s48, s48, 9')
        g(f's_add_u32 s48, s48, {C4}')
        g('v_mov_b32 v12, s48')
        g.gate('outp', 12, 13)
    if 'ppoutp' in opts:
        g.poll3('outp', [(f'global_load_dwordx4 v[{{d}}], v{152+k}, {WS} sc1', 160 + 4 * k, 3, None) for k in range(4)], MB, 12, 13,
                [[b + 4 * i for i in range(4)] for b in (32, 48, 240)][:PK], (0, 1), optn('outpsp', SP))
    else:
        g.poll2('outp', [(f'global_load_dwordx4 v[{160+4*k}:{163+4*k}], v{152+k}, {WS} sc1', 163 + 4 * k, None) for k in range(4)], MB, 12, 13)
    g.stamp(8)
    for k in range(4):
        g(f'v_lshlrev_b32 v{176+4*k}, 16, v{160+4*k}')
        g(f'v_and_b32 v{177+4*k}, 0xffff0000, v{160+4*k}')
        g(f'v_lshlrev_b32 v{178+4*k}, 16, v{161+4*k}')
        g(f'v_and_b32 v{179+4*k}, 0xffff0000, v{161+4*k}')
        if k == 1:
            g('v_pk_add_f32 v[176:177], v[176:177], v[180:181]')
            g('v_pk_add_f32 v[178:179], v[178:179], v[182:183]')
    g('v_pk_add_f32 v[184:185], v[184:185], v[188:189]')
    g('v_pk_add_f32 v[186:187], v[186:187], v[190:191]')
    g('v_pk_add_f32 v[176:177], v[176:177], v[184:185]')
    g('v_pk_add_f32 v[178:179], v[178:179], v[186:187]')
    g.nop(1)
    g('v_permlane32_swap_b32 v176, v178')
    g('v_permlane32_swap_b32 v177, v179')
    g.nop(1)
    g('v_add_f32 v16, v176, v178')
    g('v_add_f32 v17, v177, v179')
    g('v_cvt_pk_bf16_f32 v16, v16, v17')
    g('v_lshlrev_b32 v18, 16, v16')
    g('v_and_b32 v19, 0xffff0000, v16')
    g('v_pk_add_f32 v[18:19], v[18:19], v[148:149]')
    g('v_cvt_pk_bf16_f32 v16, v18, v19')
    g(f'ds_write_b32 v143, v16 offset:{L_HB}')
    g('v_lshlrev_b32 v18, 16, v16')
    g('v_and_b32 v19, 0xffff0000, v16')
    g('v_subrev_f32 v18, s53, v18')
    g('v_subrev_f32 v19, s53, v19')
    g('v_add_f32 v160, v18, v19')
    g('v_mul_f32 v161, v18, v18')
    g('v_fmac_f32 v161, v19, v19')
    g.wave_reduce([160, 161], [162, 163])
    g('s_mov_b64 exec, 1')
    g(f'ds_write_b64 v144, v[160:161] offset:{L_ST}')
    g('s_mov_b64 exec, -1')
    g('s_waitcnt lgkmcnt(0)')
    g.label('L_m_b1')
    g('s_barrier')
    g.stamp(9)
    g(f'ds_read_b128 v[176:179], v27 offset:{L_HB}')
    g(f'ds_read_b32 v180, v28 offset:{L_HB+128}')
    g(f's_cmp_eq_u32 {sWAVE}, 7')
    g('s_cbranch_scc1 L_m_st')
    g.begin_tail()
    g.label('L_m_st')
    g(f'ds_read_b128 v[160:163], v1 offset:{L_ST}')
    g(f'ds_read_b128 v[164:167], v1 offset:{L_ST+16}')
    g(f'ds_read_b64 v[168:169], v1 offset:{L_ST+32}')
    g('s_branch L_m_ns')
    g.end_tail()
    g.label('L_m_ns')
    g('s_waitcnt lgkmcnt(0)')
    gemv(10, 176, 64, 208)
    g.nop(8)
    class_combine(g, 208)
    g.set_exec(0x00ff00ff00ff00ff)
    g('ds_write2_b32 v26, v208, v210 offset0:0 offset1:2')
    g('s_mov_b64 exec, -1')
    g('s_waitcnt lgkmcnt(0)')
    g('s_barrier')
    g.stamp(10)
    if 'go2' in opts:
        g(f's_cmp_eq_u32 {sWAVE}, 6')
        g('s_cbranch_scc0 L_m_nf')
        g('s_lshl_b32 s48, s58, 7')
        g(f's_add_u32 s48, s48, {PF + 12}')
        g('v_mov_b32 v16, s48')
        g('s_mov_b64 exec, 1')
        g(f'global_store_dword v16, v202, {WS} sc1')
        g('s_mov_b64 exec, -1')
        g.label('L_m_nf')
    g(f's_cmp_eq_u32 {sWAVE}, 7')
    g('s_cbranch_scc0 L_m_b3')
    for w in range(8):
        g(f'ds_read_b32 v{184+w}, v29 offset:{256*w}')
    g('v_pk_add_f32 v[160:161], v[160:161], v[162:163]')
    g('v_pk_add_f32 v[164:165], v[164:165], v[166:167]')
    g('v_pk_add_f32 v[160:161], v[160:161], v[168:169]')
    g('v_pk_add_f32 v[160:161], v[160:161], v[164:165]')
    ln_scalars(g, 160, 161, 's53', 170, 171, 172)
    g('v_mul_f32 v170, v170, v142')
    g('s_waitcnt lgkmcnt(0)')
    g('v_pk_add_f32 v[184:185], v[184:185], v[186:187]')
    g('v_pk_add_f32 v[188:189], v[188:189], v[190:191]')
    g('v_pk_add_f32 v[184:185], v[184:185], v[188:189]')
    g('v_add_f32 v16, v184, v185')
    g('v_sub_f32 v16, v16, v170')
    g('v_mul_f32 v16, v16, v171')
    rnd_bf16(g, 16)
    g('v_mov_b32 v17, v16')
    g.nop(2)
    g('v_permlane32_swap_b32 v16, v17')
    g.nop(1)
    g('v_max_f32 v16, 0, v16')
    g('v_mul_f32 v16, v16, v17')
    g('v_cvt_pk_bf16_f32 v16, v16, v16')
    g(f'ds_write_b16 v31, v16 offset:{L_CB}')
    g('s_waitcnt lgkmcnt(0)')
    g.label('L_m_b3')
    g('s_barrier')
    g(f'ds_read_b64 v[16:17], v30 offset:{L_CB}')
    g('s_waitcnt lgkmcnt(0)')
    g.stamp(11)

    def down(base, vo, reuse=False):
        gemv(4, 16, base, 204, reuse=reuse, keep=True)
        g.nop(8)
        class_combine(g, 204, out2=205)
        g.set_exec(0x00ff00ff00ff00ff)
        g(f'global_store_dwordx4 v{vo}, v[202:205], {WS} sc1')
        g('s_mov_b64 exec, -1')
    down(104, 14)
    g(f's_cmp_lt_u32 {sWAVE}, 2')
    g('s_cbranch_scc0 L_m_done')
    down(120, 15, reuse=True)
    g.label('L_m_done')

    g.label('L_fin')
    g.stamp(15)
    g.stamp_flush()
    g.label('L_end')
    g('s_endpgm')
    body = g.text()

    hdr = open('cdna_kernels/' + KN[:-7] + '.s.ref').read().split('\n')
    head = []
    for line in hdr:
        if line.startswith('; @launch'):
            head.append(f'; @launch grid=(256,1,1) block=(512,1,1) lds={LDS_BYTES}')
        elif line.startswith(';'):
            head.append(line)
        else:
            break
    out = '\n'.join(head) + '\n'
    out += '.amdgcn_target "amdgcn-amd-amdhsa--gfx950"\n.text\n'
    out += f'.globl {KN}\n.p2align 8\n.type {KN},@function\n{KN}:\n'
    out += body
    out += f'''.section .rodata,"a"
.p2align 6
.amdhsa_kernel {KN}
  .amdhsa_next_free_vgpr 256
  .amdhsa_next_free_sgpr 102
  .amdhsa_accum_offset 256
  .amdhsa_group_segment_fixed_size 0
  .amdhsa_kernarg_size 104
  .amdhsa_user_sgpr_count 2
  .amdhsa_user_sgpr_kernarg_segment_ptr 1
  .amdhsa_system_sgpr_workgroup_id_x 1
.end_amdhsa_kernel
'''
    return out


if __name__ == '__main__':
    import argparse
    ap = argparse.ArgumentParser()
    ap.add_argument('-o', default='k.s')
    ap.add_argument('--stamps', action='store_true')
    ap.add_argument('--stop', type=int, default=None)
    ap.add_argument('--opts', default='')
    a = ap.parse_args()
    open(a.o, 'w').write(build(a.stamps, a.stop, tuple(a.opts.split(','))))
```

```python
import sys, struct

KN = 'sequential_preLN__compressed_kv_cla__glu_gated_reglu__decode_kernel'

EPOCH = 0
XID = 0x1000
PF = 0x3000
Q1L = 0x10000
Q1G = 0x50000
QA = 0x90000
MLL = 0xA0000
C4 = 0xA8000
MLX = 0xC8000
OUTP = 0xE8000
O2P = 0x100000
OX = 0x180000
OPL = 0x200000
QA8 = 0x280000
OUTP8 = 0x300000
OCS = 0x8000
STAMPS = 0x800000

L_XN = 0
L_QB = 256
L_MB = 512
L_LB = 768
L_PB = 1024
L_RED = 3072
L_CB = 7168
L_HB = 8192
L_ST = 9472
L_MODE = 9728
L_TAG = 9732
L_QL = 10240
L_V = 26624
L_TILE = 59392
LDS_BYTES = 124928

S_X, S_CKV, S_WQ, S_WUK, S_WUV, S_WO, S_WG, S_WU, S_WD, S_OUT, S_DBG, S_WS = (
    's[8:9]', 's[10:11]', 's[12:13]', 's[14:15]', 's[16:17]', 's[18:19]', 's[22:23]', 's[24:25]', 's[26:27]',
    's[28:29]', 's[30:31]', 's[32:33]')
sXCD, sR, sWAVE, sH, sJ, sTAG = 's34', 's35', 's36', 's37', 's38', 's39'
POLL_LIMIT = 1 << 17


def f2u(x):
    return struct.unpack('<I', struct.pack('<f', x))[0]


class Gen:
    def __init__(s, stamps=False, stop_after=None):
        s.L = []
        s.tail = []
        s.n = 0
        s.stamps = stamps
        s.stop_after = stop_after
        s.nstamp = 0

    def __call__(s, txt):
        for line in txt.strip('\n').split('\n'):
            line = line.strip()
            if line:
                s.L.append('    ' + line)

    def label(s, name):
        s.L.append(name + ':')

    def uniq(s, base):
        s.n += 1
        return f'{base}_{s.n}'

    def nop(s, n):
        while n > 0:
            k = min(n, 16)
            s(f's_nop {k-1}')
            n -= k

    def stamp(s, idx):
        if s.stamps:
            s(f's_memrealtime s[{64+2*idx}:{65+2*idx}]')

    def stamp_flush(s, nst=16):
        if not s.stamps:
            return
        s('s_waitcnt lgkmcnt(0)')
        s('s_mov_b64 exec, 1')
        s(f's_lshl_b32 s48, s2, 3')
        s(f's_add_u32 s48, s48, {sWAVE}')
        s(f's_lshl_b32 s48, s48, 7')
        s(f's_add_u32 s48, s48, {STAMPS}')
        s('v_mov_b32 v1, s48')
        for i in range(nst):
            s(f'v_mov_b32 v2, s{64+2*i}')
            s(f'v_mov_b32 v3, s{65+2*i}')
            s(f'global_store_dwordx2 v1, v[2:3], {S_WS} offset:{8*i}')
            s('s_nop 1')
        s('s_waitcnt vmcnt(0)')

    def addr(s, dst, src, off):
        d = int(dst[2:].split(':')[0]); sr = int(src[2:].split(':')[0])
        s(f's_add_u32 s{d}, s{sr}, {off}')
        s(f's_addc_u32 s{d+1}, s{sr+1}, 0')

    def set_exec(s, mask):
        if mask == (1 << 64) - 1:
            s('s_mov_b64 exec, -1')
        else:
            s(f's_mov_b32 exec_lo, {mask & 0xffffffff:#x}')
            s(f's_mov_b32 exec_hi, {mask >> 32:#x}')

    def wave_reduce(s, regs, tmps, op='add'):
        ins = {'add': 'v_add_f32', 'max': 'v_max_f32'}[op]
        n = len(regs)
        pad = max(0, 2 - (n - 1))
        s.nop(2)
        for ctl in ['quad_perm:[1,0,3,2]', 'quad_perm:[2,3,0,1]', 'row_half_mirror', 'row_mirror']:
            for r in regs:
                s(f'{ins}_dpp v{r}, v{r}, v{r} {ctl} row_mask:0xf bank_mask:0xf')
            s.nop(pad)
        s.row_reduce(regs, tmps, op)

    def row_reduce(s, regs, tmps, op='add'):
        ins = {'add': 'v_add_f32', 'max': 'v_max_f32'}[op]
        n = len(regs)
        for sw in ['v_permlane16_swap_b32', 'v_permlane32_swap_b32']:
            for r, t in zip(regs, tmps):
                s(f'v_mov_b32 v{t}, v{r}')
            s.nop(max(0, 2 - (n - 1)))
            for r, t in zip(regs, tmps):
                s(f'{sw} v{t}, v{r}')
            s.nop(1 if n == 1 else 0)
            for r, t in zip(regs, tmps):
                s(f'{ins} v{r}, v{r}, v{t}')
            s.nop(0)

    def check_tags(s, regs, t0, t1, done_label):
        tags = []
        for r in regs:
            tags += [r + 1, r + 3]
        if len(tags) == 2:
            s(f'v_cmp_eq_u32 vcc, {sTAG}, v{tags[0]}')
            s(f'v_cmp_eq_u32 s[46:47], {sTAG}, v{tags[1]}')
        else:
            s(f'v_min3_u32 v{t0}, v{tags[0]}, v{tags[1]}, v{tags[2]}')
            s(f'v_max3_u32 v{t1}, v{tags[0]}, v{tags[1]}, v{tags[2]}')
            rest = tags[3:]
            while rest:
                if len(rest) >= 2:
                    s(f'v_min3_u32 v{t0}, v{t0}, v{rest[0]}, v{rest[1]}')
                    s(f'v_max3_u32 v{t1}, v{t1}, v{rest[0]}, v{rest[1]}')
                    rest = rest[2:]
                else:
                    s(f'v_min_u32 v{t0}, v{t0}, v{rest[0]}')
                    s(f'v_max_u32 v{t1}, v{t1}, v{rest[0]}')
                    rest = rest[1:]
            s(f'v_cmp_eq_u32 vcc, {sTAG}, v{t0}')
            s(f'v_cmp_eq_u32 s[46:47], {sTAG}, v{t1}')
        s('s_and_b64 vcc, vcc, s[46:47]')
        s('s_cmp_eq_u64 vcc, exec')
        s(f's_cbranch_scc1 {done_label}')

    def poll(s, name, emit_loads, regs, t0, t1, first_hook=None, alt=None):
        top = s.uniq(name + '_top'); done = s.uniq(name + '_done'); fail = s.uniq(name + '_fail')
        s(f's_mov_b32 s50, 0')
        if first_hook is not None:
            emit_loads(alt[0] if alt else None)
            first_hook()
            s('s_waitcnt vmcnt(0)')
            s.check_tags(regs, t0, t1, done)
        s.label(top)
        if alt:
            s('s_add_u32 s50, s50, 1')
            s('s_and_b32 s51, s50, 7')
            s('s_cmp_eq_u32 s51, 0')
            s(f's_cselect_b64 s[44:45], {alt[1]}, {alt[0]}')
            emit_loads('s[44:45]')
        else:
            s('s_add_u32 s50, s50, 1')
            emit_loads(None)
        s('s_waitcnt vmcnt(0)')
        s.check_tags(regs, t0, t1, done)
        s(f's_cmp_lt_u32 s50, {POLL_LIMIT}')
        s(f's_cbranch_scc1 {top}')
        s(f's_mov_b64 s[46:47], exec')
        s('s_mov_b64 exec, 1')
        s(f'v_mov_b32 v{t0}, {4*(s.n % 60)}')
        s(f'v_mov_b32 v{t1}, {0x1000 + s.n}')
        s(f'global_store_dword v{t0}, v{t1}, {S_DBG}')
        s(f's_mov_b64 exec, s[46:47]')
        s.label(done)

    def begin_tail(s):
        s.main = s.L
        s.L = s.tail

    def end_tail(s):
        s.L = s.main

    def poll2(s, name, loads, masks, t0, t1, alt=None, hook=None):
        top = s.uniq(name + '_top'); done = s.uniq(name + '_done'); retry = s.uniq(name + '_retry')
        n = len(loads)
        assert len(masks) >= n
        s('s_mov_b32 s50, 0')
        for ins, tg, em in loads:
            if em is not None:
                s.set_exec(em)
            s(ins.format(base=alt[0] if alt else None))
            if em is not None:
                s('s_mov_b64 exec, -1')
        if hook is not None:
            hook()
        s.label(top)
        s('s_waitcnt vmcnt(0)')
        for k, (ins, tg, em) in enumerate(loads):
            s(f'v_cmp_ne_u32 {masks[k]}, {sTAG}, v{tg}')
        if n == 1:
            s(f's_cmp_lg_u64 {masks[0]}, 0')
        else:
            s(f's_or_b64 s[46:47], {masks[0]}, {masks[1]}')
            for k in range(2, n):
                s(f's_or_b64 s[46:47], s[46:47], {masks[k]}')
        s(f's_cbranch_scc1 {retry}')
        s.label(done)
        s.begin_tail()
        s.label(retry)
        s('s_add_u32 s50, s50, 1')
        if alt:
            s('s_and_b32 s51, s50, 7')
            s('s_cmp_eq_u32 s51, 0')
            s(f's_cselect_b64 s[44:45], {alt[1]}, {alt[0]}')
        for k, (ins, tg, em) in enumerate(loads):
            s(f's_mov_b64 exec, {masks[k]}')
            if n > 1:
                sk = s.uniq(name + '_sk')
                s(f's_cbranch_execz {sk}')
            s(ins.format(base='s[44:45]' if alt else None))
            if n > 1:
                s.label(sk)
        s('s_mov_b64 exec, -1')
        s(f's_cmp_lt_u32 s50, {POLL_LIMIT}')
        s(f's_cbranch_scc1 {top}')
        s('s_waitcnt vmcnt(0)')
        s('s_mov_b64 exec, 1')
        s(f'v_mov_b32 v{t0}, {4*(s.n % 60)}')
        s(f'v_mov_b32 v{t1}, {0x1000 + s.n}')
        s(f'global_store_dword v{t0}, v{t1}, {S_DBG}')
        s('s_mov_b64 exec, -1')
        s(f's_branch {done}')
        s.end_tail()

    def poll3(s, name, loads, masks, t0, t1, sets, pay, sp=12):
        top = s.uniq(name + '_top'); done = s.uniq(name + '_done'); retry = s.uniq(name + '_retry'); tmo = s.uniq(name + '_tmo')
        n = len(loads); k = len(sets)
        P = masks[:n]; T = masks[n:2 * n]
        assert len(masks) >= 2 * n
        for ins, cb, to, em in loads:
            if em is not None:
                s.set_exec(em)
            s(ins.format(d=f'{cb}:{cb+3}'))
            if em is not None:
                s('s_mov_b64 exec, -1')
        s('s_waitcnt vmcnt(0)')
        for i, (ins, cb, to, em) in enumerate(loads):
            s(f'v_cmp_ne_u32 {P[i]}, {sTAG}, v{cb+to}')
        if n == 1:
            s(f's_cmp_lg_u64 {P[0]}, 0')
        else:
            s(f's_or_b64 s[46:47], {P[0]}, {P[1]}')
            for i in range(2, n):
                s(f's_or_b64 s[46:47], s[46:47], {P[i]}')
        s(f's_cbranch_scc1 {retry}')
        s.label(done)
        s.begin_tail()
        s.label(retry)
        s('s_mov_b32 s50, 0')

        def issue(j):
            for i, (ins, cb, to, em) in enumerate(loads):
                s(f's_mov_b64 exec, {P[i]}')
                s(ins.format(d=f'{sets[j][i]}:{sets[j][i]+3}'))
            s('s_mov_b64 exec, -1')
        for j in range(k):
            issue(j)
            if j < k - 1:
                s.nop(16 * sp)
        s.label(top)
        for j in range(k):
            s(f's_waitcnt vmcnt({n*(k-1)})')
            for i, (ins, cb, to, em) in enumerate(loads):
                s(f'v_cmp_eq_u32 {T[i]}, {sTAG}, v{sets[j][i]+to}')
            for i, (ins, cb, to, em) in enumerate(loads):
                s(f's_and_b64 exec, {T[i]}, {P[i]}')
                for d in pay:
                    s(f'v_mov_b32 v{cb+d}, v{sets[j][i]+d}')
                s(f's_andn2_b64 {P[i]}, {P[i]}, exec')
            s('s_mov_b64 exec, -1')
            if n == 1:
                s(f's_cmp_lg_u64 {P[0]}, 0')
            else:
                s(f's_or_b64 s[46:47], {P[0]}, {P[1]}')
                for i in range(2, n):
                    s(f's_or_b64 s[46:47], s[46:47], {P[i]}')
            s(f's_cbranch_scc0 {done}')
            issue(j)
        s('s_add_u32 s50, s50, 1')
        s(f's_cmp_lt_u32 s50, {POLL_LIMIT // 2}')
        s(f's_cbranch_scc1 {top}')
        s('s_waitcnt vmcnt(0)')
        s('s_mov_b64 exec, 1')
        s(f'v_mov_b32 v{t0}, {4*(s.n % 60)}')
        s(f'v_mov_b32 v{t1}, {0x1000 + s.n}')
        s(f'global_store_dword v{t0}, v{t1}, {S_DBG}')
        s('s_mov_b64 exec, -1')
        s(f's_branch {done}')
        s.end_tail()

    def gate(s, name, vaddr, vtmp, limit=256, tagoff=12):
        top = s.uniq(name + '_gt'); done = s.uniq(name + '_gd')
        s('s_mov_b64 exec, 1')
        s('s_mov_b32 s50, 0')
        s.label(top)
        s(f'global_load_dword v{vtmp}, v{vaddr}, {S_WS} offset:{tagoff} sc1')
        s('s_add_u32 s50, s50, 1')
        s('s_waitcnt vmcnt(0)')
        s(f'v_cmp_ne_u32 vcc, {sTAG}, v{vtmp}')
        s('s_cmp_eq_u64 vcc, 0')
        s(f's_cbranch_scc1 {done}')
        s(f's_cmp_lt_u32 s50, {limit}')
        s(f's_cbranch_scc1 {top}')
        s.label(done)
        s('s_mov_b64 exec, -1')

    def text(s):
        return '\n'.join(s.L + s.tail + ['L_codeend:']) + '\n'


KAPPA = (128 ** -0.5) * 1.4426950408889634


def gen_sel(g, base, t0, t1):
    g(f'v_and_b32 v{t0}, 7, v0')
    g(f'v_and_b32 v{t1}, 1, v0')
    for par in range(2):
        lo = 0x0c0c0000 | ((2 * par + 1) << 8) | (2 * par)
        hi = ((2 * par + 1) << 24) | ((2 * par) << 16) | 0x0c0c
        g(f'v_cmp_eq_u32 vcc, 1, v{t1}')
        g(f'v_mov_b32 v{base+par}, {lo:#x}')
        g(f'v_mov_b32 v{base+2+par}, {hi:#x}')
        g(f'v_cndmask_b32 v{base+par}, v{base+par}, v{base+2+par}, vcc')
    g(f'v_lshrrev_b32 v{t0}, 1, v{t0}')
    g(f'v_mov_b32 v{t1}, 0x0c0c0c0c')
    for v in [3, 2, 1, 0]:
        g(f'v_cmp_eq_u32 vcc, {v}, v{t0}')
        g.nop(1)
        for par in range(2):
            g(f'v_cndmask_b32 v{base+2*v+par}, v{t1}, v{base+par}, vcc')


def gen_mask(g, base, t0, t1):
    g(f'v_and_b32 v{t0}, 7, v0')
    g(f'v_and_b32 v{t1}, 1, v0')
    g(f'v_cmp_eq_u32 vcc, 1, v{t1}')
    g(f'v_mov_b32 v{base}, 0xffff')
    g(f'v_mov_b32 v{base+1}, 0xffff0000')
    g(f'v_cndmask_b32 v{t1}, v{base}, v{base+1}, vcc')
    g(f'v_lshrrev_b32 v{t0}, 1, v{t0}')
    for v in range(4):
        g(f'v_cmp_eq_u32 vcc, {v}, v{t0}')
        g.nop(1)
        g(f'v_cndmask_b32 v{base+v}, 0, v{t1}, vcc')


def get_tag(g, vreg):
    g.nop(1)
    g(f'v_readfirstlane_b32 {sTAG}, v{vreg}')
    g.nop(4)
    g(f's_mul_i32 {sTAG}, {sTAG}, 5')
    g(f's_add_u32 {sTAG}, {sTAG}, 0x9E3779B9')


def rnd_bf16(g, r):
    g(f'v_cvt_pk_bf16_f32 v{r}, v{r}, v{r}')
    g(f'v_and_b32 v{r}, 0xffff0000, v{r}')


def ln_scalars(g, s1, s2, piv_sgpr, vm, vrs, t0):
    g(f's_mov_b32 s52, {f2u(1.0/640):#x}')
    g(f'v_mul_f32 v{s1}, s52, v{s1}')
    g(f'v_mul_f32 v{s2}, s52, v{s2}')
    g(f'v_fma_f32 v{s2}, -v{s1}, v{s1}, v{s2}')
    g(f'v_max_f32 v{s2}, 0, v{s2}')
    g(f'v_add_f32 v{vm}, {piv_sgpr}, v{s1}')
    rnd_bf16(g, vm)
    rnd_bf16(g, s2)
    g(f'v_add_f32 v{s2}, 0x3727c5ac, v{s2}')
    rnd_bf16(g, s2)
    g(f'v_sqrt_f32 v{s2}, v{s2}')
    g.nop(1)
    rnd_bf16(g, s2)
    g(f'v_rcp_f32 v{vrs}, v{s2}')
    g.nop(1)


def class_combine(g, d, out2=None):
    if out2 is None:
        out2 = d + 2
    for k in range(4):
        g(f'v_mov_b32_dpp v{d+k}, v{d+k} row_ror:8 row_mask:0xc bank_mask:0xf')
    g.nop(1)
    g(f'v_permlane32_swap_b32 v{d}, v{d+1}')
    g(f'v_permlane32_swap_b32 v{d+2}, v{d+3}')
    g.nop(1)
    g(f'v_add_f32 v{d}, v{d}, v{d+1}')
    g(f'v_add_f32 v{out2}, v{d+2}, v{d+3}')


def mode_store(g, ins_no_flag, smode):
    a = g.uniq('ms_slow'); b = g.uniq('ms_done')
    g(f's_cmp_eq_u32 {smode}, 1')
    g(f's_cbranch_scc0 {a}')
    for ins in ins_no_flag:
        g(ins)
    g.label(b)
    ex = [l for l in []]
    g.begin_tail()
    g.label(a)
    for ins in ins_no_flag:
        g(ins + ' sc1')
    g(f's_branch {b}')
    g.end_tail()


def own_tag(g, vreg):
    g(f'v_readfirstlane_b32 {sTAG}, v{vreg}')
    g.nop(4)
    g(f's_mul_i32 {sTAG}, {sTAG}, 5')
    g(f's_add_u32 {sTAG}, {sTAG}, 0x9E3779B9')


MA = ['s[10:11]', 's[12:13]', 's[14:15]', 's[18:19]', 's[20:21]', 's[22:23]', 's[24:25]', 's[26:27]']
MQ = ['s[10:11]', 's[12:13]', 's[14:15]', 's[4:5]', 's[20:21]', 's[96:97]', 's[98:99]', 's[100:101]']
MB = ['s[10:11]', 's[12:13]', 's[14:15]', 's[16:17]', 's[18:19]', 's[20:21]', 's[22:23]', 's[24:25]']


def build(stamps=False, stop_after=None, opts=()):
    g = Gen(stamps, stop_after)
    def optn(name, dflt):
        for o in opts:
            if o.startswith(name) and o[len(name):].isdigit():
                return int(o[len(name):])
        return dflt
    PK = optn('ppk', 3); SP = optn('ppsp', 12)
    sMODE = 's59'
    WS = S_WS
    g('s_cmp_ge_u32 s2, 256')
    g('s_cbranch_scc1 L_end')
    g('s_load_dwordx16 s[8:23], s[0:1], 0')
    g('s_load_dwordx8 s[24:31], s[0:1], 64')
    g('s_load_dwordx2 s[32:33], s[0:1], 96')
    g('s_getpc_b64 s[42:43]')
    g('v_lshlrev_b32 v1, 4, v0')
    g('global_load_dwordx4 v[232:235], v1, s[42:43]')
    g.stamp(0)
    g('v_lshrrev_b32 v1, 6, v0')
    g('v_and_b32 v0, 63, v0')
    g(f'v_readfirstlane_b32 {sWAVE}, v1')
    g(f's_and_b32 {sXCD}, s2, 7')
    g(f's_lshr_b32 {sR}, s2, 3')
    g(f's_lshr_b32 {sH}, {sR}, 3')
    g(f's_lshl_b32 s48, {sXCD}, 2')
    g(f's_add_u32 {sH}, {sH}, s48')
    g(f's_and_b32 {sJ}, {sR}, 7')
    g('v_mov_b32 v1, 0')
    g('v_lshlrev_b32 v3, 4, v0')
    g('v_and_b32 v7, 15, v0')
    g('v_lshrrev_b32 v6, 4, v0')
    SH = 'shift' in opts
    XWA = 7 if SH else 2
    XWB = 3 if SH else 2
    if SH:
        g(f's_cmp_ge_u32 {sXCD}, 4')
        g('s_cbranch_scc1 L_late')
        g(f's_cmp_eq_u32 {sWAVE}, 2')
        g('s_cbranch_scc0 L_nsh')
        g(f's_add_u32 {sH}, {sH}, 16')
        g('s_branch L_w1')
        g.label('L_nsh')
    g(f's_cmp_eq_u32 {sWAVE}, 1')
    g('s_cbranch_scc1 L_w1')
    g(f's_cmp_eq_u32 {sWAVE}, 0')
    g('s_cbranch_scc1 L_w0')

    def pre(tagwait=False):
        g(f's_and_b32 s55, {sR}, 1')
        g(f's_lshr_b32 s56, {sR}, 1')
        g('v_and_b32 v8, 7, v0')
        g('v_lshlrev_b32 v8, 1, v8')
        g(f's_lshl_b32 s48, {sWAVE}, 14')
        g(f's_add_u32 s48, s48, {L_TILE}')
        for tl in range(4):
            g(f'v_add_u32 v9, {4*tl}, v6')
            g('v_xor_b32 v9, v9, v8')
            g('v_lshlrev_b32 v9, 4, v9')
            g(f'v_lshl_add_u32 v{32+tl}, v7, 10, v9')
            g(f'v_add_u32 v{36+tl}, s48, v{32+tl}')
        g('v_lshrrev_b32 v9, 2, v0')
        g('v_lshlrev_b32 v9, 7, v9')
        g('v_and_b32 v11, 3, v0')
        g('v_lshl_add_u32 v9, v11, 3, v9')
        g('v_bfe_u32 v10, v0, 3, 2')
        g(f's_and_b32 s48, {sWAVE}, 3')
        g('v_xor_b32 v10, s48, v10')
        g('v_lshl_add_u32 v9, v10, 5, v9')
        g(f'v_add_u32 v40, {L_V}, v9')
        g('v_lshrrev_b32 v9, 3, v0')
        g('v_lshlrev_b32 v9, 10, v9')
        g('v_and_b32 v10, 7, v0')
        g('v_lshlrev_b32 v11, 1, v6')
        g('v_xor_b32 v10, v10, v11')
        g('v_lshl_add_u32 v41, v10, 4, v9')
        g(f's_lshl_b32 s48, {sXCD}, 19')
        g(f's_and_b32 s49, {sWAVE}, 3')
        g('s_lshl_b32 s49, s49, 16')
        g('s_add_u32 s48, s48, s49')
        g('s_lshl_b32 s49, s56, 7')
        g('s_add_u32 s48, s48, s49')
        g('s_waitcnt lgkmcnt(0)')
        g.addr('s[98:99]', S_CKV, 's48')
        g('v_lshrrev_b32 v9, 1, v0')
        g('v_and_b32 v10, 1, v0')
        g('v_lshlrev_b32 v10, 3, v10')
        for ih in range(2):
            g(f's_lshl_b32 s48, {sWAVE}, 1')
            g(f's_add_u32 s48, s48, {ih}')
            g('s_and_b32 s49, s48, 7')
            g('s_lshl_b32 s49, s49, 1')
            g('v_xor_b32 v11, s49, v9')
            g('v_lshl_add_u32 v11, v11, 4, v10')
            g('s_lshl_b32 s48, s48, 10')
            g(f's_add_u32 s48, s48, {L_QL}')
            g(f'v_add_u32 v{44+ih}, s48, v11')
        gen_mask(g, 240, 9, 10)
        g('v_lshlrev_b32 v46, 4, v7')
        g(f's_lshl_b32 s48, {sWAVE}, 2')
        g('v_add_u32 v47, s48, v46')
        g('v_lshlrev_b32 v57, 3, v0')
        g(f'v_add_u32 v42, {L_QL}, v3')
        g(f's_lshl_b32 s48, {sWAVE}, 11')
        g('v_add_u32 v56, s48, v42')
        g('v_lshlrev_b32 v43, 5, v7')
        g(f'v_add_u32 v43, {L_RED}, v43')
        g(f's_lshl_b32 s48, {sWAVE}, 2')
        g('v_add_u32 v59, s48, v43')
        g('s_lshl_b32 s48, s55, 15')
        g(f's_lshl_b32 s49, {sWAVE}, 12')
        g('s_add_u32 s48, s48, s49')
        if 'qa8' in opts:
            g(f's_lshl_b32 s49, {sXCD}, 16')
            g('s_add_u32 s48, s48, s49')
        g(f's_add_u32 s48, s48, {QA8 if "qa8" in opts else QA}')
        g('v_add_u32 v248, s48, v3')
        g(f's_lshl_b32 s48, {sXCD}, 16')
        g('s_lshl_b32 s49, s55, 15')
        g('s_add_u32 s48, s48, s49')
        g(f's_add_u32 s48, s48, {OPL}')
        g(f's_lshl_b32 s49, {sWAVE}, 12')
        g('s_add_u32 s49, s49, s48')
        g('v_add_u32 v246, s49, v3')
        g('s_lshl_b32 s49, s56, 12')
        g('s_add_u32 s48, s48, s49')
        g('v_add_u32 v251, s48, v3')
        g(f's_and_b32 s49, {sWAVE}, 3')
        g('s_lshl_b32 s49, s49, 10')
        g('v_add_u32 v58, s49, v251')
        g(f's_lshl_b32 s48, {sXCD}, 16')
        g('s_lshl_b32 s49, s55, 15')
        g('s_add_u32 s48, s48, s49')
        g('s_lshl_b32 s49, s56, 12')
        g('s_add_u32 s48, s48, s49')
        g(f's_and_b32 s49, {sWAVE}, 3')
        g('s_lshl_b32 s49, s49, 10')
        g('s_add_u32 s48, s48, s49')
        g(f's_add_u32 s48, s48, {OX}')
        g('v_lshlrev_b32 v244, 6, v7')
        g('v_lshl_add_u32 v244, v6, 4, v244')
        g('v_add_u32 v244, s48, v244')
        g(f's_lshl_b32 s48, {sXCD}, 9')
        g('s_lshl_b32 s49, s55, 8')
        g('s_add_u32 s48, s48, s49')
        g(f's_add_u32 s48, s48, {MLX}')
        g('v_add_u32 v250, s48, v3')
        g('s_mov_b32 s58, s56')
        g(f's_lshr_b32 s48, {sR}, 2')
        g(f's_lshl_b32 s49, {sXCD}, 2')
        g('s_add_u32 s61, s48, s49')
        g(f's_and_b32 s62, {sR}, 3')
        g('v_bfe_u32 v13, v0, 2, 3')
        g('s_lshr_b32 s48, s61, 4')
        g('s_lshl_b32 s48, s48, 5')
        g('s_lshl_b32 s49, s62, 3')
        g('s_add_u32 s48, s48, s49')
        g(f's_add_u32 s48, s48, {sWAVE}')
        g('s_lshl_b32 s48, s48, 10')
        g('s_and_b32 s49, s61, 15')
        g('s_lshl_b32 s49, s49, 6')
        g('s_add_u32 s48, s48, s49')
        g(f's_add_u32 s48, s48, {OX}')
        g('v_lshlrev_b32 v14, 16, v13')
        g('v_and_b32 v12, 3, v0')
        g('v_lshl_add_u32 v14, v12, 4, v14')
        g('v_add_u32 v245, s48, v14')
        g('s_lshl_b32 s48, s61, 4')
        g(f's_add_u32 s48, s48, {MLX}')
        g('v_lshlrev_b32 v14, 9, v13')
        g('v_add_u32 v14, s48, v14')
        g('v_cmp_le_u32 vcc, 32, v0')
        g.nop(1)
        g('v_cndmask_b32 v245, v245, v14, vcc')
        g('v_lshlrev_b32 v247, 5, v7')
        g('v_lshl_add_u32 v247, v6, 4, v247')
        g(f's_lshl_b32 s48, {sWAVE}, 9')
        g('v_add_u32 v247, s48, v247')
        g(f's_lshl_b32 s48, {sXCD}, 4')
        g(f's_add_u32 s48, s48, {sR}')
        g('s_lshl_b32 s48, s48, 9')
        g(f's_add_u32 s48, s48, {C4}')
        g('v_lshrrev_b32 v253, 1, v0')
        g('v_lshl_add_u32 v253, v253, 4, s48')
        g('s_lshl_b32 s48, s61, 8')
        g('s_lshl_b32 s49, s62, 3')
        g(f's_add_u32 s49, s49, {sWAVE}')
        g('s_lshl_b32 s49, s49, 17')
        g('s_add_u32 s48, s48, s49')
        g('s_waitcnt lgkmcnt(0)')
        g.addr('s[62:63]' if False else 's[96:97]', S_WUV, 's48')
        g('v_lshlrev_b32 v254, 13, v6')
        g('v_lshl_add_u32 v254, v7, 4, v254')
        if tagwait is not False:
            g(f's_waitcnt vmcnt({0 if tagwait is True else tagwait})')
            own_tag(g, 2)
        g(f'global_load_dword v233, v245, {WS} sc1')
        pt = g.uniq('pt')
        g(f's_cmp_eq_u32 {sWAVE}, 5')
        g(f's_cbranch_scc0 {pt}')
        for kt in range(4):
            g(f'global_load_dword v{234+kt}, v251, {WS} offset:{1024*kt} sc1')
        g.label(pt)

    def dma(wsel=None):
        if optn('kdel', 0):
            lb = g.uniq('kdel'); le = g.uniq('kdele')
            if 'kdlate' in opts:
                g(f's_cmp_lt_u32 {sXCD}, 4')
                g(f's_cbranch_scc1 {le}')
            g(f's_mov_b32 s48, {optn("kdel", 0)}')
            g.label(lb)
            g('s_nop 15')
            g('s_nop 15')
            g('s_sub_u32 s48, s48, 1')
            g('s_cmp_gt_u32 s48, 0')
            g(f's_cbranch_scc1 {lb}')
            g.label(le)
        g(f's_lshr_b32 s56, {sR}, 1')
        g(f's_lshl_b32 s57, {sXCD}, 3')
        g('s_add_u32 s57, s57, s56')
        g('s_lshl_b32 s48, s57, 6')
        if 'rot' in opts:
            g(f's_and_b32 s49, {sR}, 1')
            g('s_lshl_b32 s49, s49, 2')
            g(f's_add_u32 s49, s49, {wsel or sWAVE}')
            g('s_and_b32 s49, s49, 7')
            g('s_lshl_b32 s49, s49, 3')
        else:
            g(f's_lshl_b32 s49, {wsel or sWAVE}, 3')
        g('s_add_u32 s48, s48, s49')
        g('s_lshl_b32 s48, s48, 10')
        g.addr('s[40:41]', S_CKV, 's48')
        g('s_lshl_b32 s49, s49, 10')
        g(f's_add_u32 s49, s49, {L_TILE}')
        g('s_mov_b32 m0, s49')
        for i in range(8):
            if i == 4:
                g('s_add_u32 s49, s49, 4096')
                g('s_mov_b32 m0, s49')
                g('s_add_u32 s40, s40, 4096')
                g('s_addc_u32 s41, s41, 0')
            g(f'v_xor_b32 v4, {32*i}, v3')
            g(f'global_load_lds_dwordx4 v4, s[40:41] offset:{1024*(i%4)}' + (' nt' if 'ckvnt' in opts else ''))

    def wuk_dma():
        g(f's_sub_u32 s54, {sR}, 16')
        g('s_lshr_b32 s48, s54, 2')
        g(f's_lshl_b32 s49, {sXCD}, 2')
        g('s_add_u32 s48, s48, s49')
        g('s_lshl_b32 s48, s48, 8')
        g('s_and_b32 s49, s54, 3')
        g('s_lshl_b32 s49, s49, 2')
        g(f's_add_u32 s49, s49, {sWAVE}')
        g('s_sub_u32 s49, s49, 4')
        g('s_lshl_b32 s49, s49, 18')
        g('s_add_u32 s48, s48, s49')
        g.addr('s[40:41]', S_WUK, 's48')
        g('v_xor_b32 v8, v7, v6')
        g('v_lshlrev_b32 v8, 4, v8')
        g('v_lshl_add_u32 v8, v6, 13, v8')
        for n in range(1, 4):
            g(f'v_xor_b32 v{8+n}, {64*n}, v8')
        g(f's_and_b32 s49, {sWAVE}, 3')
        g('s_lshl_b32 s49, s49, 13')
        g(f's_add_u32 m0, s49, {L_TILE}')
        g.nop(1)
        for n in range(8):
            g(f'global_load_lds_dwordx4 v{8+(n&3)}, s[40:41]' + ('' if 'wuknt0' in opts else ' nt'))
            if n < 7:
                g('s_add_u32 m0, m0, 1024')
                g('s_add_u32 s40, s40, 32768')
                g('s_addc_u32 s41, s41, 0')

    g('s_waitcnt lgkmcnt(0)')
    if 'bq' in opts:
        g('s_barrier')
    g(f's_cmp_ge_u32 {sWAVE}, 4')
    g('s_cbranch_scc0 L_e_nb')
    g(f's_cmp_ge_u32 {sR}, 16')
    g('s_cbranch_scc1 L_e_b')
    if 'fulldma' in opts:
        g(f's_sub_u32 s58, {sWAVE}, 4')
        dma('s58')
    if 'halfdma' in opts or 'fulldma' in opts:
        dma()
    g('s_branch L_e_nb')
    g.label('L_e_b')
    if 'wukb0' not in opts:
        wuk_dma()
    g.label('L_e_nb')
    g('s_waitcnt lgkmcnt(0)')
    g(f'global_load_dword v2, v1, {WS} sc1')
    def codepf():
        lb = g.uniq('L_nw7')
        g(f's_cmp_eq_u32 {sWAVE}, 3')
        g(f's_cbranch_scc0 {lb}')
        g(f's_and_b32 s48, {sR}, 15')
        g('s_lshl_b32 s48, s48, 10')
        g('s_add_u32 s48, s48, 8192')
        g(f's_min_u32 s48, s48, L_codeend-{KN}-1088')
        g('s_add_u32 s42, s42, s48')
        g('s_addc_u32 s43, s43, 0')
        g('global_load_dwordx4 v[236:239], v3, s[42:43]')
        g.label(lb)

    def xidstore():
        g('s_getreg_b32 s48, hwreg(HW_REG_XCC_ID)')
        g('s_and_b32 s48, s48, 0xf')
        g('v_mov_b32 v12, s48')
        g(f'v_mov_b32 v15, {sTAG}')
        g(f's_lshl_b32 s48, {sXCD}, 5')
        g(f's_add_u32 s48, s48, {sR}')
        g('s_lshl_b32 s48, s48, 4')
        g(f's_add_u32 s48, s48, {XID}')
        g('v_mov_b32 v16, s48')
        g('s_mov_b64 exec, 1')
        g(f'global_store_dwordx4 v16, v[12:15], {WS} sc1')
        g('s_mov_b64 exec, -1')
    codepf()
    g(f's_cmp_ge_u32 {sR}, 16')
    g('s_cbranch_scc0 L_pre')
    g.label('L_e_tag')
    g(f's_cmp_eq_u32 {sWAVE}, {XWB}')
    g('s_cbranch_scc0 L_b0')
    g(f's_waitcnt vmcnt({1 if XWB == 3 else 0})')
    own_tag(g, 2)
    xidstore()
    g('s_branch L_b0')
    if SH:
        g.label('L_late')
        g('s_waitcnt lgkmcnt(0)')
        g(f'global_load_dword v2, v1, {WS} sc1')
        g(f's_cmp_ge_u32 {sR}, 16')
        g('s_cbranch_scc1 L_late_b')
        dma()
        g.stamp(13)
        codepf()
        pre(tagwait=8)
        g(f's_cmp_eq_u32 {sWAVE}, {XWA}')
        g('s_cbranch_scc0 L_a_dmadone')
        xidstore()
        g('s_branch L_a_dmadone')
        g.label('L_late_b')
        g(f's_cmp_ge_u32 {sWAVE}, 4')
        g('s_cbranch_scc0 L_late_b1')
        wuk_dma()
        g('s_waitcnt vmcnt(8)')
        own_tag(g, 2)
        g('s_waitcnt vmcnt(0)')
        g('s_branch L_pathB')
        g.label('L_late_b1')
        codepf()
        g('s_waitcnt vmcnt(1)')
        g(f's_cmp_eq_u32 {sWAVE}, 3')
        g('s_cbranch_scc1 L_late_b2')
        g('s_waitcnt vmcnt(0)')
        own_tag(g, 2)
        g('s_branch L_pathB')
        g.label('L_late_b2')
        own_tag(g, 2)
        xidstore()
        g('s_branch L_pathB')

    g.label('L_w0')
    g('v_lshlrev_b32 v4, 2, v0')
    g('v_min_u32 v5, 39, v0')
    g('v_lshlrev_b32 v5, 2, v5')
    g(f's_mul_i32 s48, {sJ}, 160')
    g('v_add_u32 v5, s48, v5')
    g('s_waitcnt lgkmcnt(0)')
    for k in range(5):
        g(f'global_load_dword v{10+k}, v4, {S_X} offset:{256*k}')
    g(f'global_load_dword v15, v5, {S_X}')
    g(f'global_load_dword v2, v1, {WS} sc1')
    g(f's_mov_b32 s52, {f2u(1.0/640):#x}')
    if 'bq' in opts:
        g('s_barrier')
    g('s_waitcnt vmcnt(2)')
    g.stamp(1)
    for k in range(5):
        g(f'v_lshlrev_b32 v{16+2*k}, 16, v{10+k}')
        g(f'v_and_b32 v{17+2*k}, 0xffff0000, v{10+k}')
    g('v_readfirstlane_b32 s53, v16')
    g.nop(4)
    for k in range(10):
        g(f'v_subrev_f32 v{16+k}, s53, v{16+k}')
    g('v_pk_mul_f32 v[26:27], v[16:17], v[16:17]')
    g('v_pk_add_f32 v[28:29], v[16:17], v[18:19]')
    for k in range(1, 5):
        g(f'v_pk_fma_f32 v[26:27], v[{16+2*k}:{17+2*k}], v[{16+2*k}:{17+2*k}], v[26:27]')
        if k >= 2:
            g(f'v_pk_add_f32 v[28:29], v[28:29], v[{16+2*k}:{17+2*k}]')
    g('v_add_f32 v27, v26, v27')
    g('v_add_f32 v26, v28, v29')
    g.wave_reduce([26, 27], [28, 29])
    ln_scalars(g, 26, 27, 's53', 28, 29, 30)
    g('s_waitcnt vmcnt(1)')
    g('v_lshlrev_b32 v16, 16, v15')
    g('v_and_b32 v17, 0xffff0000, v15')
    g('v_sub_f32 v16, v16, v28')
    g('v_sub_f32 v17, v17, v28')
    g('v_cvt_pk_bf16_f32 v18, v16, v17')
    g('v_lshlrev_b32 v16, 16, v18')
    g('v_and_b32 v17, 0xffff0000, v18')
    g('v_mul_f32 v16, v16, v29')
    g('v_mul_f32 v17, v17, v29')
    g('v_cvt_pk_bf16_f32 v18, v16, v17')
    g(f'ds_write_b32 v4, v18 offset:{L_XN}')
    g('s_waitcnt lgkmcnt(0)')
    g.stamp(2)
    g('s_barrier')
    g('s_waitcnt vmcnt(0)')
    own_tag(g, 2)
    g(f's_cmp_ge_u32 {sR}, 16')
    g('s_cbranch_scc1 L_pathB')
    g('s_branch L_pre0')

    g.label('L_w1')
    g(f's_mov_b32 s49, {20*8192}')
    g('v_mul_lo_u32 v8, v6, s49')
    g('v_lshl_add_u32 v8, v7, 4, v8')
    g(f's_mul_i32 s48, {sJ}, {80*8192}')
    g(f's_lshl_b32 s49, {sH}, 8')
    g('s_add_u32 s48, s48, s49')
    g('s_waitcnt lgkmcnt(0)')
    g.addr('s[40:41]', S_WQ, 's48')
    for t in range(20):
        g(f'global_load_dwordx4 v[{80+4*t}:{83+4*t}], v8, s[40:41]' + ('' if 'wqnt0' in opts else ' nt'))
        if t < 19:
            g('s_add_u32 s40, s40, 8192')
            g('s_addc_u32 s41, s41, 0')
    g(f'global_load_dword v2, v1, {WS} sc1')
    if 'bq' in opts:
        g('s_barrier')
    g.stamp(1)
    gen_sel(g, 192, 16, 17)
    g(f's_lshl_b32 s48, {sH}, 3')
    g(f's_add_u32 s48, s48, {sJ}')
    g('s_lshl_b32 s48, s48, 10')
    g(f's_add_u32 s49, s48, {Q1L}')
    g.addr('s[44:45]', S_WS, 's49')
    g(f's_add_u32 s49, s48, {Q1G}')
    g.addr('s[46:47]', S_WS, 's49')
    g('v_mul_u32_u24 v19, 40, v6')
    g('s_mov_b32 s56, 0')
    g('s_mov_b32 s57, -1')
    g('s_barrier')
    for k in range(5):
        g(f'ds_read_b64 v[{16+2*k}:{17+2*k}], v19 offset:{L_XN+8*k}')
    g('s_waitcnt lgkmcnt(0)')

    def perms(t):
        a = 160 + 4 * (t % 4)
        for v in range(4):
            g(f'v_perm_b32 v{a+v}, v{16+t//2}, v{16+t//2}, v{192+2*v+(t&1)}')
    perms(0)
    perms(1)
    for t in range(20):
        if t + 2 < 20:
            perms(t + 2)
        g(f's_waitcnt vmcnt({19-t+1})')
        a = 160 + 4 * (t % 4)
        c = '0' if t == 0 else 'v[200:203]'
        g(f'v_mfma_f32_16x16x32_bf16 v[200:203], v[{a}:{a+3}], v[{80+4*t}:{83+4*t}], {c}')
        if t == 17:
            pass
    g('s_waitcnt vmcnt(0)')
    g(f'v_readfirstlane_b32 {sTAG}, v2')
    g.nop(4)
    g(f's_mul_i32 {sTAG}, {sTAG}, 5')
    g(f's_add_u32 {sTAG}, {sTAG}, 0x9E3779B9')
    g(f'v_mov_b32 v207, {sTAG}')
    g('v_cndmask_b32 v204, v200, v202, s[56:57]')
    g('v_cndmask_b32 v205, v201, v203, s[56:57]')
    if 'q1g' not in opts:
        g(f'global_store_dwordx4 v3, v[204:207], s[44:45]')
    g(f'global_store_dwordx4 v3, v[204:207], s[46:47] sc1')
    g.stamp(2)
    g(f's_cmp_ge_u32 {sR}, 16')
    g('s_cbranch_scc1 L_pathB')
    g('s_branch L_bp1')

    g.label('L_b0')
    g('s_barrier')
    g('s_waitcnt vmcnt(0)')
    own_tag(g, 2)
    if 'wukb0' in opts:
        g(f's_cmp_ge_u32 {sWAVE}, 4')
        g('s_cbranch_scc0 L_pathB')
        wuk_dma()
        g('s_waitcnt vmcnt(0)')
    g('s_branch L_pathB')

    g.label('L_pre')
    pre(tagwait=True)
    g(f's_cmp_eq_u32 {sWAVE}, {XWA}')
    g('s_cbranch_scc0 L_pre_nx')
    xidstore()
    g.label('L_pre_nx')
    g('s_barrier')
    g.label('L_bp')
    g('s_barrier')
    if 'halfdma' in opts:
        g(f's_cmp_ge_u32 {sWAVE}, 4')
        g('s_cbranch_scc1 L_a_dmadone')
    if 'fulldma' not in opts:
        dma()
    g.stamp(13)
    g('s_branch L_a_dmadone')
    g.label('L_pre0')
    pre()
    g('s_branch L_bp')
    g.label('L_bp1')
    g('s_barrier')
    if 'fulldma' not in opts:
        dma()
    g.stamp(13)
    pre()
    g.label('L_a_dmadone')
    g(f's_cmp_eq_u32 {sWAVE}, 3')
    g('s_cbranch_scc0 L_a_nochk')
    g(f's_lshl_b32 s48, {sXCD}, 9')
    g(f's_add_u32 s48, s48, {XID}')
    g('v_and_b32 v9, 31, v0')
    g('v_lshlrev_b32 v9, 4, v9')
    g('v_add_u32 v9, s48, v9')
    g('s_getreg_b32 s52, hwreg(HW_REG_XCC_ID)')
    g('s_and_b32 s52, s52, 0xf')
    g('s_mov_b32 s50, 0')
    g(f's_mov_b32 {sMODE}, 0')
    g.label('L_a_chk')
    g(f'global_load_dwordx4 v[12:15], v9, {WS} sc1')
    g('s_add_u32 s50, s50, 1')
    g('s_waitcnt vmcnt(0)')
    g(f'v_cmp_eq_u32 vcc, {sTAG}, v15')
    g('s_cmp_eq_u64 vcc, exec')
    g('s_cbranch_scc1 L_a_chk_ok')
    g('s_cmp_lt_u32 s50, 64')
    g('s_cbranch_scc1 L_a_chk')
    g('s_branch L_a_chk_done')
    g.label('L_a_chk_ok')
    g('v_cmp_eq_u32 vcc, s52, v12')
    g('s_cmp_eq_u64 vcc, exec')
    g(f's_cselect_b32 {sMODE}, 1, 0')
    g.label('L_a_chk_done')
    g(f'v_mov_b32 v12, {sMODE}')
    g(f'ds_write_b32 v1, v12 offset:{L_MODE}')
    g.label('L_a_nochk')
    wuv_ins = []
    for tt in range(4):
        wuv_ins.append(f'global_load_dwordx4 v[{64+4*tt}:{67+4*tt}], v254, s[96:97]' + (' nt' if (('helper' not in opts and 'wuvnt0' not in opts) or 'wuvnt' in opts) else ''))
        if tt < 3:
            wuv_ins.append('s_add_u32 s96, s96, 32768')
            wuv_ins.append('s_addc_u32 s97, s97, 0')
    g('s_waitcnt vmcnt(0) lgkmcnt(0)')
    g.stamp(3)
    g('s_barrier')
    FA = 96
    skip = g.uniq('skipfa')
    g(f's_cmp_lt_u32 {sWAVE}, 4')
    g(f's_cbranch_scc0 {skip}')
    for t in range(16):
        g(f'ds_read_b128 v[{FA+4*t}:{FA+4*t+3}], v{36+(t%4)} offset:{256*(t//4)}')
    g.label(skip)

    def vdma(half):
        g(f's_and_b32 s49, {sWAVE}, 3')
        g('s_lshl_b32 s49, s49, 13')
        g(f's_add_u32 m0, s49, {L_V + 32768 * half}')
        g.nop(1)
        for n in range(8):
            g('global_load_lds_dwordx4 v41, s[98:99]' + (' nt' if 'vnt' in opts else ''))
            if n < 7:
                g('s_add_u32 m0, m0, 1024')
                g('s_add_u32 s98, s98, 8192')
                g('s_addc_u32 s99, s99, 0')
        if half == 0:
            g(f's_add_u32 s98, s98, {8192 + 192 * 1024}')
            g('s_addc_u32 s99, s99, 0')
    g(f's_cmp_ge_u32 {sWAVE}, 4')
    g('s_cbranch_scc0 L_a_nv1')
    vdma(0)
    if 'vall' in opts:
        vdma(1)
    g.label('L_a_nv1')
    g(f'ds_read_b32 v12, v1 offset:{L_MODE}')
    g(f's_mov_b32 s63, {f2u(KAPPA):#x}')
    if 'ppqa' in opts:
        g.poll3('qa', [(f'global_load_dwordx4 v[{{d}}], v248, {WS} offset:{1024*i} sc1', 16 + 4 * i, 3, None) for i in range(4)], MA, 10, 11,
                [[b + 4 * i for i in range(4)] for b in (64, 160, 176)][:PK], (0, 1), optn('qasp', SP))
    else:
        g.poll2('qa', [(f'global_load_dwordx4 v[{16+4*i}:{19+4*i}], v248, {WS} offset:{1024*i} sc1', 19 + 4 * i, None) for i in range(4)], MA, 10, 11)
    for i in range(4):
        g(f'ds_write_b64 v{44+(i>>1)}, v[{16+4*i}:{17+4*i}] offset:{512*(i&1)}')
    g.stamp(4)
    g('s_waitcnt lgkmcnt(0)')
    g(f'v_readfirstlane_b32 {sMODE}, v12')
    g('s_barrier')
    g(f's_cmp_ge_u32 {sWAVE}, 4')
    g('s_cbranch_scc1 L_a_v')
    g.begin_tail()
    g.label('L_a_v')
    if 'vall' not in opts and 'vpost' not in opts:
        vdma(1)
    g('s_barrier')
    if 'vpost' in opts:
        vdma(1)
    g('s_waitcnt vmcnt(0)')
    g.stamp(6)
    g('s_barrier')
    VT = 96
    for kr in range(8):
        for s2 in range(2):
            for h in range(2):
                d = VT + 8 * kr + 4 * s2 + 2 * h
                g(f'ds_read_b64_tr_b16 v[{d}:{d+1}], v40 offset:{2048*(4*kr+2*s2+h)}')
    g(f'v_mov_b32 v51, {sTAG}')
    if 'px4' in opts:
        g('s_waitcnt lgkmcnt(0)')
        g('s_branch L_a_bxg')
    else:
        g('s_branch L_a_px')
    g.end_tail()
    qreg = [192 + 4 * t for t in range(8)] + [16 + 4 * t for t in range(4)] + [80 + 4 * t for t in range(4)]
    for t in range(16):
        g(f'ds_read_b128 v[{qreg[t]}:{qreg[t]+3}], v{32+(t%4)} offset:{L_QL+256*(t//4)}')
    g(f'v_mov_b32 v63, {sTAG}')
    for t in range(16):
        g(f's_waitcnt lgkmcnt({15-t})')
        c = '0' if t == 0 else 'v[48:51]'
        g(f'v_mfma_f32_16x16x32_bf16 v[48:51], v[{FA+4*t}:{FA+4*t+3}], v[{qreg[t]}:{qreg[t]+3}], {c}')
    g.nop(8)
    g('v_max_f32 v52, v48, v49')
    g('v_max3_f32 v52, v52, v50, v51')
    g.row_reduce([52], [53], 'max')
    g(f'ds_write_b32 v47, v52 offset:{L_MB}')
    g('s_waitcnt lgkmcnt(0)')
    g('s_barrier')
    g.stamp(12)
    g(f'ds_read_b128 v[52:55], v46 offset:{L_MB}')
    g('s_waitcnt lgkmcnt(0)')
    g('v_max_f32 v52, v52, v53')
    g('v_max3_f32 v52, v52, v54, v55')
    g('v_mul_f32 v62, s63, v52')
    for k in range(4):
        g(f'v_fma_f32 v{48+k}, v{48+k}, s63, -v62')
    for k in range(4):
        g(f'v_exp_f32 v{48+k}, v{48+k}')
    g.nop(1)
    g('v_cvt_pk_bf16_f32 v60, v48, v49')
    g('v_cvt_pk_bf16_f32 v61, v50, v51')
    mode_store(g, [f'global_store_dwordx4 v58, v[60:63], {WS}'], sMODE)
    g.stamp(5)
    if 'px4' in opts:
        PR = [16 + 4 * i for i in range(4)] + [64 + 4 * i for i in range(4)]
        g('v_add_u32 v247, 16384, v246') if False else None
        g('v_add_u32 v252, 16384, v246')
        g.poll2('px', [(f'global_load_dwordx4 v[{PR[i]}:{PR[i]+3}], {"v246" if i < 4 else "v252"}, {WS} offset:{1024*(i%4)} sc1', PR[i] + 3, None) for i in range(8)],
                MA, 10, 11, hook=lambda: g('s_barrier'))
        for i in range(8):
            g(f'ds_write_b64 v56, v[{PR[i]}:{PR[i]+1}] offset:{8192*(i>>2)+1024*((i&3)>>1)+8*(i&1)}')
        g.set_exec(0xffff)
        g('ds_write_b32 v59, v18')
        g('ds_write_b32 v59, v66 offset:16')
        g('s_mov_b64 exec, -1')
        g.stamp(10)
        g('s_waitcnt lgkmcnt(0)')
        g.label('L_a_bxg')
        g('s_barrier')
    else:
        g('s_barrier')
        g.label('L_a_px')
        g.poll2('px', [(f'global_load_dwordx4 v[{16+4*i}:{19+4*i}], v246, {WS} offset:{1024*i} sc1', 19 + 4 * i, None) for i in range(4)], MA, 10, 11)
        for i in range(4):
            g(f'ds_write_b64 v56, v[{16+4*i}:{17+4*i}] offset:{1024*(i>>1)+8*(i&1)}')
        g.set_exec(0xffff)
        g('ds_write_b32 v59, v18')
        g('s_mov_b64 exec, -1')
        g.stamp(10)
        g('s_waitcnt lgkmcnt(0)')
        g('s_barrier')
    BF = 160

    def pv(lwave):
        g('ds_read_b128 v[32:35], v43')
        g('ds_read_b128 v[36:39], v43 offset:16')
        def bread(q):
            g(f'ds_read_b128 v[{BF+4*q}:{BF+4*q+3}], v42 offset:{1024*q}')
        for q in range(12):
            bread(q)
        if lwave:
            for k in range(4):
                g(f'v_mov_b32 v{88+k}, 0x3f803f80')
        g('s_waitcnt lgkmcnt(12)')
        g('v_max3_f32 v20, v32, v33, v34')
        g('v_max3_f32 v20, v20, v35, v36')
        g('v_max3_f32 v20, v20, v37, v38')
        g('v_max_f32 v20, v20, v39')
        for k in range(8):
            g(f'v_sub_f32 v{32+k}, v{32+k}, v20')
        DS = [224, 228, 232]
        nf = 1 if lwave else 4

        def fma(k):
            d = DS[k % 3]
            for r in range(nf):
                if k == 0:
                    g(f'v_mul_f32 v{236+r}, v{d+r}, v32')
                else:
                    g(f'v_fma_f32 v{236+r}, v{d+r}, v{32+k}, v{236+r}')
        for k in range(8):
            g(f's_waitcnt lgkmcnt({min(10, 14-2*k)})')
            d = DS[k % 3]
            for s2 in range(2):
                a = '88:91' if lwave else f'{VT+8*k+4*s2}:{VT+8*k+4*s2+3}'
                c = '0' if s2 == 0 else f'v[{d}:{d+3}]'
                g(f'v_mfma_f32_16x16x32_bf16 v[{d}:{d+3}], v[{a}], v[{BF+8*k+4*s2}:{BF+8*k+4*s2+3}], {c}')
            if k < 2:
                bread(12 + 2 * k)
                bread(13 + 2 * k)
            g(f'v_exp_f32 v{32+k}, v{32+k}')
            if k >= 2:
                fma(k - 2)
                if lwave:
                    g.nop(3)
        if lwave:
            g.nop(4)
        fma(6)
        if lwave:
            g.nop(4)
        else:
            g.nop(1)
        fma(7)

    g(f's_cmp_lt_u32 {sWAVE}, 4')
    g('s_cbranch_scc1 L_a_lw')
    g.begin_tail()
    g.label('L_a_lw')
    g(f's_cmp_eq_u32 {sWAVE}, 0')
    g('s_cbranch_scc0 L_a_w2')
    g('s_cmp_eq_u32 s58, 0')
    g('s_cbranch_scc0 L_a_w2')
    pv(True)
    g('v_mov_b32 v21, v236')
    g(f'v_mov_b32 v23, {sTAG}')
    g.set_exec(0xffff)
    g(f'global_store_dwordx4 v250, v[20:23], {WS} sc1')
    g('s_mov_b64 exec, -1')
    g.label('L_a_w2')
    if 'wuvlate' not in opts:
        for ins in wuv_ins:
            g(ins)
    g('s_branch L_a_s4')
    g.end_tail()
    pv(False)
    g('v_cvt_pk_bf16_f32 v48, v236, v237')
    g('v_cvt_pk_bf16_f32 v49, v238, v239')
    g(f'global_store_dwordx4 v244, v[48:51], {WS} sc1')
    g.stamp(7)
    if 'wuvlate' not in opts:
        for ins in wuv_ins:
            g(ins)
    g.label('L_a_s4')
    g('s_barrier')
    if 'wuvlate' in opts:
        for ins in wuv_ins:
            g(ins)

    if 'ppox' in opts:
        g.poll3('ox', [(f'global_load_dwordx4 v[{{d}}], v245, {WS} sc1', 16, 3, None)], MA, 10, 11, [[96], [100], [104], [108]][:PK], (0, 1), optn('oxsp', SP))
    else:
        g.poll2('ox', [(f'global_load_dwordx4 v[16:19], v245, {WS} sc1', 19, None)], MA, 10, 11)
    g.stamp(8)
    g('v_max_f32_dpp v22, v16, v16 row_ror:4 row_mask:0xf bank_mask:0xf')
    g.nop(2)
    g('v_max_f32_dpp v22, v22, v22 row_ror:8 row_mask:0xf bank_mask:0xf')
    g.nop(1)
    g('v_mov_b32 v23, v22')
    g.nop(2)
    g('v_permlane16_swap_b32 v23, v22')
    g.nop(1)
    g('v_max_f32 v22, v22, v23')
    g('v_sub_f32 v24, v16, v22')
    g('v_exp_f32 v24, v24')
    g('v_permlane32_swap_b32 v16, v17')
    g.nop(1)
    g('v_mul_f32 v22, v24, v17')
    g('v_lshlrev_b32 v25, 16, v16')
    g('v_add_f32_dpp v22, v22, v22 row_ror:4 row_mask:0xf bank_mask:0xf')
    g('v_and_b32 v26, 0xffff0000, v16')
    g.nop(1)
    g('v_add_f32_dpp v22, v22, v22 row_ror:8 row_mask:0xf bank_mask:0xf')
    g.nop(1)
    g('v_mov_b32 v23, v22')
    g.nop(2)
    g('v_permlane16_swap_b32 v23, v22')
    g.nop(1)
    g('v_add_f32 v22, v22, v23')
    g('v_rcp_f32 v22, v22')
    g.nop(1)
    g('v_mul_f32 v24, v24, v22')
    g('v_mov_b32 v23, v24')
    g.nop(2)
    g('v_permlane32_swap_b32 v23, v24')
    g.nop(1)
    g('v_mul_f32 v25, v25, v24')
    g('v_mul_f32 v26, v26, v24')
    g.nop(2)
    g('v_permlane16_swap_b32 v25, v26')
    g.nop(1)
    g('v_add_f32 v25, v25, v26')
    g.nop(2)
    g('v_add_f32_dpp v25, v25, v25 row_ror:4 row_mask:0xf bank_mask:0xf')
    g.nop(2)
    g('v_add_f32_dpp v25, v25, v25 row_ror:8 row_mask:0xf bank_mask:0xf')
    g('v_cvt_pk_bf16_f32 v25, v25, v25')
    g.nop(2)

    def ands(tt):
        a = 84 + 4 * (tt % 2)
        for v in range(4):
            g(f'v_and_b32_dpp v{a+v}, v25, v{240+v} quad_perm:[{tt},{tt},{tt},{tt}] row_mask:0xf bank_mask:0xf')
    ands(0)
    for tt in range(4):
        if tt < 3:
            ands(tt + 1)
        else:
            g.nop(2)
        a = 84 + 4 * (tt % 2)
        c = '0' if tt == 0 else 'v[92:95]'
        g(f'v_mfma_f32_16x16x32_bf16 v[92:95], v[{a}:{a+3}], v[{64+4*tt}:{67+4*tt}], {c}')
    g.set_exec(0xffffffff)
    g.nop(6)
    g(f'ds_write_b128 v247, v[92:95] offset:{L_RED}')
    g('s_mov_b64 exec, -1')
    g('s_waitcnt lgkmcnt(0)')
    g('s_barrier')
    g(f's_cmp_eq_u32 {sWAVE}, 0')
    g('s_cbranch_scc0 L_a_red')
    for w in range(8):
        g(f'ds_read_b64 v[{32+2*w}:{33+2*w}], v57 offset:{L_RED+512*w}')
    g(f'v_mov_b32 v23, {sTAG}')
    g('s_waitcnt lgkmcnt(0)')
    g('v_pk_add_f32 v[32:33], v[32:33], v[34:35]')
    g('v_pk_add_f32 v[36:37], v[36:37], v[38:39]')
    g('v_pk_add_f32 v[40:41], v[40:41], v[42:43]')
    g('v_pk_add_f32 v[44:45], v[44:45], v[46:47]')
    g('v_pk_add_f32 v[32:33], v[32:33], v[36:37]')
    g('v_pk_add_f32 v[40:41], v[40:41], v[44:45]')
    g('v_pk_add_f32 v[32:33], v[32:33], v[40:41]')
    g('v_cvt_pk_bf16_f32 v20, v32, v33')
    g.nop(2)
    g('v_mov_b32_dpp v21, v20 row_shl:1 row_mask:0xf bank_mask:0xf')
    g.set_exec(0x5555555555555555)
    mode_store(g, [f'global_store_dwordx4 v253, v[20:23], {WS}'], sMODE)
    g('s_mov_b64 exec, -1')
    g.stamp(9)
    g.label('L_a_red')
    if 'wb' in opts:
        g(f's_cmp_eq_u32 {sWAVE}, 5')
        g('s_cbranch_scc0 L_a_nwb')
        g(f's_cmp_eq_u32 {sR}, 12')
        g('s_cbranch_scc0 L_a_nwb')
        g('buffer_wbl2 sc1')
        g('s_waitcnt vmcnt(0)')
        g.label('L_a_nwb')
    if stop_after == 4:
        g('s_branch L_fin')
    g(f's_cmp_eq_u32 {sWAVE}, 7')
    g('s_cbranch_scc0 L_fin')
    g(f's_cmp_lt_u32 {sR}, 10')
    g('s_cbranch_scc0 L_fin')
    g(f's_mul_i32 s55, {sXCD}, 10')
    g(f's_add_u32 s55, s55, {sR}')
    g('v_and_b32 v7, 3, v0')
    g('v_lshrrev_b32 v6, 5, v0')
    g('v_and_b32 v8, 1, v7')
    g('v_lshlrev_b32 v8, 2, v8')
    g('v_lshrrev_b32 v9, 1, v7')
    g('v_add_u32 v8, v8, v9')
    g('v_lshl_add_u32 v8, v6, 1, v8')
    g('s_lshl_b32 s48, s55, 3')
    g('v_add_u32 v31, s48, v8')
    g('v_lshlrev_b32 v31, 1, v31')
    g(f'global_load_ushort v30, v31, {S_X}')
    g('v_and_b32 v9, 7, v0')
    g('v_mul_u32_u24 v9, 2560, v9')
    g('v_bfe_u32 v10, v0, 3, 1')
    g('v_lshl_add_u32 v9, v10, 4, v9')
    g('s_lshr_b32 s48, s55, 4')
    g('s_lshl_b32 s48, s48, 9')
    g('s_and_b32 s49, s55, 15')
    g('s_lshl_b32 s49, s49, 5')
    g('s_add_u32 s48, s48, s49')
    if 'outp8' in opts:
        g(f's_mul_i32 s49, {sXCD}, {OCS}')
        g('s_add_u32 s48, s48, s49')
    g(f's_add_u32 s48, s48, {OUTP8 if "outp8" in opts else OUTP}')
    g('v_add_u32 v9, s48, v9')
    g('s_lshl_b32 s48, s55, 6')
    g(f's_add_u32 s48, s48, {O2P}')
    g('v_lshrrev_b32 v12, 2, v0')
    g('v_mul_u32_u24 v12, 5120, v12')
    g('v_lshl_add_u32 v12, v7, 4, v12')
    g('v_add_u32 v12, s48, v12')
    g(f'v_add_u32 v13, {16*5120}, v12')
    g(f'v_add_u32 v14, {32*5120}, v12')
    g(f'v_add_u32 v15, {48*5120}, v12')
    g(f'v_mov_b32 v44, {sTAG}')
    g('v_mov_b32 v46, 0')
    g('v_mov_b32 v47, 0')
    g(f'v_mov_b32 v19, {sTAG}')
    g('v_mov_b32 v16, 0')
    g('v_mov_b32 v17, 0')
    g('v_lshrrev_b32 v28, 2, v8')
    g('v_lshlrev_b32 v28, 5, v28')
    g('v_and_b32 v29, 3, v8')
    if 'ghf' in opts:
        g.gate('hf', 9, 10)
    g.poll2('hf', [(f'global_load_dwordx4 v[16:19], v9, {WS} sc1', 19, 0xffff)], MA, 10, 11)
    g('v_lshlrev_b32 v20, 16, v16')
    g('v_and_b32 v21, 0xffff0000, v16')
    g('v_lshlrev_b32 v22, 16, v17')
    g('v_and_b32 v23, 0xffff0000, v17')
    for ctl in ['quad_perm:[1,0,3,2]', 'quad_perm:[2,3,0,1]', 'row_half_mirror']:
        g.nop(1)
        for k in range(4):
            g(f'v_add_f32_dpp v{20+k}, v{20+k}, v{20+k} {ctl} row_mask:0xf bank_mask:0xf')
    g.nop(1)
    for k in range(4):
        g(f'ds_bpermute_b32 v{24+k}, v28, v{20+k}')
    g('s_waitcnt lgkmcnt(0)')
    g('v_cmp_eq_u32 vcc, 1, v29')
    g.nop(1)
    g('v_cndmask_b32 v24, v24, v25, vcc')
    g('v_cmp_eq_u32 vcc, 2, v29')
    g.nop(1)
    g('v_cndmask_b32 v24, v24, v26, vcc')
    g('v_cmp_eq_u32 vcc, 3, v29')
    g.nop(1)
    g('v_cndmask_b32 v16, v24, v27, vcc')
    rnd_bf16(g, 16)
    g('v_lshlrev_b32 v30, 16, v30')
    g('v_add_f32 v30, v30, v16')
    rnd_bf16(g, 30)
    if 'go2' in opts:
        g('s_sub_u32 s48, s55, 54')
        g('s_cmp_lt_u32 s55, 54')
        g('s_cselect_b32 s48, s55, s48')
        g('s_lshl_b32 s48, s48, 7')
        g(f's_add_u32 s48, s48, {PF}')
        g('v_mov_b32 v10, s48')
        g.gate('o2', 10, 11)
    if 'ppo2' in opts:
        g.poll3('o2', [(f'global_load_dwordx4 v[{{d}}], v{12+i}, {WS} sc1', 32 + 4 * i, 0, None if i < 3 else 0xffffff) for i in range(4)], MA, 10, 11,
                [[b + 4 * i for i in range(4)] for b in (48, 64, 112, 128)][:PK], (2, 3), optn('o2sp', SP))
    else:
        g.poll2('o2', [(f'global_load_dwordx4 v[{32+4*i}:{35+4*i}], v{12+i}, {WS} sc1', 32 + 4 * i, None) for i in range(3)] +
                [(f'global_load_dwordx4 v[44:47], v15, {WS} sc1', 44, 0xffffff)], MA, 10, 11)
    g.stamp(9)
    g('v_pk_add_f32 v[16:17], v[34:35], v[38:39]')
    g('v_pk_add_f32 v[18:19], v[42:43], v[46:47]')
    g('v_pk_add_f32 v[16:17], v[16:17], v[18:19]')
    g.nop(2)
    g('v_permlane32_swap_b32 v16, v17')
    g.nop(1)
    g('v_add_f32 v16, v16, v17')
    g('v_mov_b32 v17, v16')
    g.nop(2)
    g('v_permlane16_swap_b32 v17, v16')
    g.nop(1)
    g('v_add_f32 v16, v16, v17')
    g.nop(2)
    g('v_add_f32_dpp v16, v16, v16 row_ror:4 row_mask:0xf bank_mask:0xf')
    g.nop(2)
    g('v_add_f32_dpp v16, v16, v16 row_ror:8 row_mask:0xf bank_mask:0xf')
    rnd_bf16(g, 16)
    g('v_add_f32 v16, v16, v30')
    g('v_cvt_pk_bf16_f32 v16, v16, v16')
    g('s_mov_b32 exec_lo, 0xf')
    g('s_mov_b32 exec_hi, 0xf')
    g(f'global_store_short v31, v16, {S_OUT}')
    g('s_mov_b64 exec, -1')
    g('s_cmp_eq_u32 s55, 0')
    g('s_cbranch_scc0 L_fin')
    g('s_mov_b64 exec, 1')
    g(f'v_mov_b32 v2, {sTAG}')
    g(f'global_store_dword v1, v2, {WS} sc1')
    g('s_mov_b64 exec, -1')
    g('s_branch L_fin')

    g.label('L_pathB')
    g(f's_sub_u32 s54, {sR}, 16')
    g('s_lshr_b32 s48, s54, 2')
    g(f's_lshl_b32 s49, {sXCD}, 2')
    g('s_add_u32 s55, s48, s49')
    g(f's_cmp_eq_u32 {sWAVE}, 0')
    g('s_cbranch_scc0 L_b1')
    g('s_lshl_b32 s48, s55, 13')
    if 'shift' in opts:
        g(f's_cmp_ge_u32 {sXCD}, 4')
        g(f's_cselect_b32 s49, {Q1G - Q1L}, 0')
        g('s_add_u32 s49, s48, s49')
        g(f's_add_u32 s49, s49, {Q1L}')
    else:
        g(f's_add_u32 s49, s48, {Q1L}')
    g.addr('s[40:41]', S_WS, 's49')
    g(f's_add_u32 s49, s48, {Q1G}')
    g.addr('s[42:43]', S_WS, 's49')
    g('v_add_u32 v4, 4096, v3')
    g('v_and_b32 v14, 1, v6')
    g('v_lshlrev_b32 v14, 3, v14')
    g('v_lshl_add_u32 v14, v7, 4, v14')
    g('v_lshrrev_b32 v15, 1, v6')
    g('v_lshl_add_u32 v14, v15, 2, v14')
    g.poll2('q1', [(f'global_load_dwordx4 v[{32+4*k}:{35+4*k}], {"v3" if k < 4 else "v4"}, {{base}} offset:{1024*(k%4)} sc1', 35 + 4 * k, None) for k in range(8)],
            MQ, 10, 11, alt=('s[42:43]', 's[42:43]') if 'q1g' in opts else ('s[40:41]', 's[42:43]'))
    g.stamp(3)
    g('v_pk_add_f32 v[12:13], v[32:33], v[36:37]')
    g('v_pk_add_f32 v[10:11], v[40:41], v[44:45]')
    g('v_pk_add_f32 v[16:17], v[48:49], v[52:53]')
    g('v_pk_add_f32 v[18:19], v[56:57], v[60:61]')
    g('v_pk_add_f32 v[12:13], v[12:13], v[10:11]')
    g('v_pk_add_f32 v[16:17], v[16:17], v[18:19]')
    g('v_pk_add_f32 v[12:13], v[12:13], v[16:17]')
    g('v_cvt_pk_bf16_f32 v12, v12, v13')
    g(f'ds_write_b32 v14, v12 offset:{L_QB}')
    g('s_waitcnt lgkmcnt(0)')
    g('s_barrier')
    g('s_branch L_b2')
    g.label('L_b1')
    g('s_lshl_b32 s48, s55, 11')
    g('s_and_b32 s49, s54, 3')
    g('s_lshl_b32 s49, s49, 9')
    g('s_add_u32 s48, s48, s49')
    g(f's_and_b32 s49, {sWAVE}, 3')
    g('s_lshl_b32 s49, s49, 7')
    g('s_add_u32 s48, s48, s49')
    g(f's_add_u32 s48, s48, {QA8 if "qa8" in opts else QA}')
    g('v_lshlrev_b32 v9, 4, v6')
    if 'qa8' in opts:
        g('v_and_b32 v104, 1, v7')
        g('v_lshl_add_u32 v104, v104, 6, v9')
        g('v_lshrrev_b32 v105, 1, v7')
        g('v_lshl_add_u32 v104, v105, 16, v104')
        g('s_mov_b32 s56, 0xaaaaaaaa')
        g('s_mov_b32 s57, 0xaaaaaaaa')
    else:
        g('v_lshl_add_u32 v104, v7, 6, v9')
        g('s_mov_b32 s56, 0x00020002')
        g('s_mov_b32 s57, 0x00020002')
    g('v_add_u32 v104, s48, v104')
    g(f'v_mov_b32 v103, {sTAG}')
    g(f's_cmp_ge_u32 {sWAVE}, 4')
    g('s_cbranch_scc0 L_b1x')
    g.begin_tail()
    g.label('L_b1x')
    g('s_barrier')
    g('s_branch L_b2')
    g.end_tail()
    g(f's_and_b32 s49, {sWAVE}, 3')
    g('s_lshl_b32 s49, s49, 13')
    g(f's_add_u32 s49, s49, {L_TILE}')
    g('v_lshl_add_u32 v12, v7, 8, s49')
    for t in range(4):
        g(f'v_add_u32 v13, {4*t}, v6')
        g('v_xor_b32 v13, v13, v7')
        g('v_lshl_add_u32 v13, v13, 4, v12')
        for tau in range(2):
            g(f'ds_read_b128 v[{64+16*tau+4*t}:{67+16*tau+4*t}], v13 offset:{4096*tau}')
    g('s_waitcnt lgkmcnt(0)')
    g('s_barrier')
    for t in range(4):
        g(f'ds_read_b128 v[{108+4*t}:{111+4*t}], v9 offset:{L_QB+64*t}')
    for t in range(4):
        g(f's_waitcnt lgkmcnt({3-t})')
        for tau in range(2):
            c = '0' if t == 0 else f'v[{96+8*tau}:{99+8*tau}]' if False else ('0' if t == 0 else f'v[{124+4*tau}:{127+4*tau}]')
            g(f'v_mfma_f32_16x16x32_bf16 v[{124+4*tau}:{127+4*tau}], v[{64+16*tau+4*t}:{67+16*tau+4*t}], v[{108+4*t}:{111+4*t}], {c}')
    if 'qa8' not in opts:
        g('s_mov_b32 exec_lo, 0x00030003')
        g('s_mov_b32 exec_hi, 0x00030003')
        g.nop(6)
    else:
        g.nop(8)
    g('v_cvt_pk_bf16_f32 v96, v124, v125')
    g('v_cvt_pk_bf16_f32 v97, v126, v127')
    g('v_cvt_pk_bf16_f32 v98, v128, v129')
    g('v_cvt_pk_bf16_f32 v99, v130, v131')
    g('v_cndmask_b32 v100, v96, v98, s[56:57]')
    g('v_cndmask_b32 v101, v97, v99, s[56:57]')
    g(f'global_store_dwordx4 v104, v[100:103], {WS} sc1')
    g('s_mov_b64 exec, -1')
    g.stamp(4)
    g.label('L_b2')
    if stop_after in (2, 3, 4):
        g('s_branch L_fin')
    if 'pace' in opts or 'paceml' in opts:
        g(f's_cmp_eq_u32 {sWAVE}, 0')
        g('s_cbranch_scc0 L_b2p')
        if 'paceml' in opts:
            g('s_cmp_lt_u32 s54, 5')
            g('s_cbranch_scc1 L_b2p')
        g('v_lshrrev_b32 v12, 1, v0')
        g('v_lshlrev_b32 v12, 11, v12')
        g('v_and_b32 v13, 1, v0')
        g('v_lshl_add_u32 v12, v13, 10, v12')
        g(f'v_add_u32 v12, {QA + 1008}, v12')
        g('s_mov_b32 s50, 0')
        g.label('L_b2q')
        g(f'global_load_dwordx4 v[16:19], v12, {WS} sc1')
        g('s_add_u32 s50, s50, 1')
        g('s_waitcnt vmcnt(0)')
        g(f'v_cmp_ne_u32 vcc, {sTAG}, v19')
        g('s_cmp_eq_u64 vcc, 0')
        g('s_cbranch_scc1 L_b2p')
        g('s_cmp_lt_u32 s50, 64')
        g('s_cbranch_scc1 L_b2q')
        g.label('L_b2p')
    if 'pacepf' in opts:
        g(f's_cmp_eq_u32 {sWAVE}, 0')
        g('s_cbranch_scc0 L_b2u')
        g('s_cmp_lt_u32 s54, 5')
        g('s_cbranch_scc1 L_b2u')
        g(f's_lshl_b32 s48, {sXCD}, 8')
        g(f's_add_u32 s48, s48, {PF}')
        g('v_and_b32 v12, NPF, v0'.replace('NPF', str(int([o for o in opts if o.startswith('npf')][0][3:]) - 1 if any(o.startswith('npf') for o in opts) else 3)))
        g('v_lshl_add_u32 v12, v12, 4, s48')
        g('s_mov_b32 s50, 0')
        g.label('L_b2t')
        g(f'global_load_dwordx4 v[16:19], v12, {WS} sc1')
        g('s_add_u32 s50, s50, 1')
        g('s_waitcnt vmcnt(0)')
        g(f'v_cmp_ne_u32 vcc, {sTAG}, v19')
        g('s_cmp_eq_u64 vcc, 0')
        g('s_cbranch_scc1 L_b2u')
        g('s_cmp_lt_u32 s50, 256')
        g('s_cbranch_scc1 L_b2t')
        g.label('L_b2u')
    if 'pacemll' in opts:
        g(f's_cmp_eq_u32 {sWAVE}, 0')
        g('s_cbranch_scc0 L_b2r')
        g('s_cmp_lt_u32 s54, 5')
        g('s_cbranch_scc1 L_b2r')
        g(f's_lshl_b32 s48, {sXCD}, 12')
        g(f's_add_u32 s48, s48, {MLL}')
        g('v_add_u32 v12, s48, v3')
        g('s_mov_b32 s50, 0')
        g.label('L_b2s')
        g(f'global_load_dwordx4 v[16:19], v12, {WS} sc1')
        g('s_add_u32 s50, s50, 1')
        g('s_waitcnt vmcnt(0)')
        g(f'v_cmp_ne_u32 vcc, {sTAG}, v19')
        g('s_cmp_eq_u64 vcc, 0')
        g('s_cbranch_scc1 L_b2r')
        g('s_cmp_lt_u32 s50, 256')
        g('s_cbranch_scc1 L_b2s')
        g.label('L_b2r')
    g('s_barrier')
    g.stamp(5)
    g('v_lshrrev_b32 v8, 3, v7')
    g('v_and_b32 v9, 7, v0')
    g('v_lshl_add_u32 v10, v8, 2, v6')
    g('s_cmp_lt_u32 s54, 5')
    g('s_cbranch_scc1 L_b_wo')
    if 'helper' in opts:
        g('s_cmp_ge_u32 s54, 12')
        g('s_cbranch_scc1 L_b_help')
        g('s_sub_u32 s48, s54, 5')
        g(f's_mul_i32 s49, {sXCD}, 7')
        g('s_add_u32 s58, s49, s48')
        g('s_cmp_lt_u32 s58, 54')
        g('s_cbranch_scc0 L_fin')
        g('s_branch L_b_mlpld')
        g.label('L_b_help')
        g('s_sub_u32 s48, s54, 12')
        g(f's_lshl_b32 s49, {sXCD}, 2')
        g('s_add_u32 s48, s48, s49')
        g('s_lshl_b32 s48, s48, 8')
        g(f's_lshl_b32 s49, {sWAVE}, 19')
        g('s_add_u32 s48, s48, s49')
        g.addr('s[40:41]', S_WUV, 's48')
        g('v_lshlrev_b32 v11, 13, v6')
        g('v_lshl_add_u32 v11, v7, 4, v11')
        for t in range(16):
            g(f'global_load_dwordx4 v[{64+4*t}:{67+4*t}], v11, s[40:41]' + (' nt' if 'helpnt' in opts else ''))
            if t < 15:
                g('s_add_u32 s40, s40, 32768')
                g('s_addc_u32 s41, s41, 0')
        g('s_waitcnt vmcnt(0)')
        g.stamp(6)
        g('s_branch L_fin')
    else:
        g('s_sub_u32 s48, s54, 5')
        g('s_lshr_b32 s49, s48, 1')
        g('s_lshl_b32 s49, s49, 3')
        g(f's_add_u32 s49, s49, {sXCD}')
        g('s_cmp_lt_u32 s49, 27')
        g('s_cbranch_scc0 L_fin')
        g('s_lshl_b32 s49, s49, 1')
        g('s_and_b32 s48, s48, 1')
        g('s_add_u32 s58, s49, s48')
        g('s_branch L_b_mlpld')
    g.label('L_b_wo')
    g(f's_lshl_b32 s48, {sXCD}, 3')
    g(f's_add_u32 s48, s48, {sWAVE}')
    g(f's_mul_i32 s48, s48, {64*1280}')
    g('s_lshl_b32 s49, s54, 8')
    g('s_add_u32 s48, s48, s49')
    g.addr('s[40:41]', S_WO, 's48')
    g('v_mul_u32_u24 v11, 1280, v6')
    g('v_lshl_add_u32 v11, v7, 4, v11')
    for t in range(16):
        g(f'global_load_dwordx4 v[{32+4*t}:{35+4*t}], v11, s[40:41]' + ('' if 'wont0' in opts else ' nt'))
        if t < 15:
            g('s_add_u32 s40, s40, 5120')
            g('s_addc_u32 s41, s41, 0')
    gen_mask(g, 192, 16, 17)
    g(f's_lshr_b32 s48, {sWAVE}, 1')
    g('s_lshl_b32 s48, s48, 2')
    g(f's_lshl_b32 s49, {sXCD}, 4')
    g('s_add_u32 s48, s48, s49')
    g('s_lshl_b32 s48, s48, 9')
    g(f's_and_b32 s49, {sWAVE}, 1')
    g('s_lshl_b32 s49, s49, 8')
    g('s_add_u32 s48, s48, s49')
    g(f's_add_u32 s48, s48, {C4}')
    g('v_lshlrev_b32 v11, 9, v6')
    g('v_lshl_add_u32 v11, v7, 4, v11')
    g('v_add_u32 v11, s48, v11')
    g('v_lshlrev_b32 v26, 5, v7')
    g('v_lshl_add_u32 v26, v6, 4, v26')
    g(f's_lshl_b32 s48, {sWAVE}, 9')
    g('v_add_u32 v26, s48, v26')
    g('v_lshlrev_b32 v28, 3, v0')
    g(f's_mul_i32 s48, {sXCD}, 2560')
    g('s_lshl_b32 s49, s54, 9')
    g('s_add_u32 s48, s48, s49')
    g(f's_add_u32 s48, s48, {OUTP8 if "outp8" in opts else OUTP}')
    g('v_lshrrev_b32 v29, 1, v0')
    g('v_lshl_add_u32 v29, v29, 4, s48')
    if 'outp8' in opts:
        g('v_and_b32 v96, 1, v0')
        g(f'v_mul_u32_u24 v96, {OCS}, v96')
        g('v_add_u32 v96, v96, v29')
        for k in range(1, 4):
            g(f'v_add_u32 v{96+k}, {2*OCS*k}, v96')
        g('s_mov_b32 s56, 0xaaaaaaaa')
        g('s_mov_b32 s57, 0xaaaaaaaa')
    g(f'v_mov_b32 v147, {sTAG}')
    if g.stamps:
        g.stamp(8)
        g('s_waitcnt vmcnt(0)')
        g.stamp(9)
    if 'gc4' in opts:
        g(f's_lshl_b32 s48, {sXCD}, 16')
        g('s_lshl_b32 s49, s54, 13')
        g('s_add_u32 s48, s48, s49')
        g(f's_lshl_b32 s49, {sWAVE}, 10')
        g('s_add_u32 s48, s48, s49')
        g(f's_add_u32 s48, s48, {OX}')
        g('v_mov_b32 v13, s48')
        g.gate('c4', 13, 14)
    g.poll2('c4', [(f'global_load_dwordx4 v[16:19], v11, {WS} sc1', 19, None)], MB, 13, 14)
    g.stamp(6)
    g('v_lshlrev_b32 v20, 16, v16')
    g('v_and_b32 v21, 0xffff0000, v16')
    g('v_lshlrev_b32 v22, 16, v17')
    g('v_and_b32 v23, 0xffff0000, v17')
    g.nop(1)
    g('v_permlane32_swap_b32 v20, v22')
    g('v_permlane32_swap_b32 v21, v23')
    g.nop(1)
    g('v_add_f32 v20, v20, v22')
    g('v_add_f32 v21, v21, v23')
    g.nop(2)
    g('v_permlane16_swap_b32 v20, v21')
    g.nop(1)
    g('v_add_f32 v20, v20, v21')
    g('v_cvt_pk_bf16_f32 v20, v20, v20')
    g.nop(2)

    def wands(t):
        a = 224 + 4 * (t % 4)
        for v in range(4):
            g(f'v_and_b32_dpp v{a+v}, v20, v{192+v} row_newbcast:{t} row_mask:0xf bank_mask:0xf')
    wands(0)
    wands(1)
    for t in range(16):
        if t + 2 < 16:
            wands(t + 2)
        a = 224 + 4 * (t % 4)
        c = '0' if t == 0 else 'v[200:203]'
        g(f'v_mfma_f32_16x16x32_bf16 v[200:203], v[{a}:{a+3}], v[{32+4*t}:{35+4*t}], {c}')
    g.set_exec(0xffffffff)
    g.nop(6)
    g(f'ds_write_b128 v26, v[200:203] offset:{L_RED}')
    g('s_mov_b64 exec, -1')
    g('s_waitcnt lgkmcnt(0)')
    g('s_barrier')
    g(f's_cmp_eq_u32 {sWAVE}, 0')
    g('s_cbranch_scc0 L_fin')
    for w in range(8):
        g(f'ds_read_b64 v[{160+2*w}:{161+2*w}], v28 offset:{L_RED+512*w}')
    g('s_waitcnt lgkmcnt(0)')
    g('v_pk_add_f32 v[160:161], v[160:161], v[162:163]')
    g('v_pk_add_f32 v[164:165], v[164:165], v[166:167]')
    g('v_pk_add_f32 v[168:169], v[168:169], v[170:171]')
    g('v_pk_add_f32 v[172:173], v[172:173], v[174:175]')
    g('v_pk_add_f32 v[160:161], v[160:161], v[164:165]')
    g('v_pk_add_f32 v[168:169], v[168:169], v[172:173]')
    g('v_pk_add_f32 v[160:161], v[160:161], v[168:169]')
    g('v_cvt_pk_bf16_f32 v144, v160, v161')
    g.nop(2)
    if 'outp8' in opts:
        g('v_mov_b32_dpp v161, v144 row_shl:1 row_mask:0xf bank_mask:0xf')
        g('v_mov_b32_dpp v162, v144 row_shr:1 row_mask:0xf bank_mask:0xf')
        g('v_cndmask_b32 v145, v161, v144, s[56:57]')
        g('v_cndmask_b32 v144, v144, v162, s[56:57]')
        for k in range(4):
            g(f'global_store_dwordx4 v{96+k}, v[144:147], {WS} sc1')
    else:
        g('v_mov_b32_dpp v145, v144 row_shl:1 row_mask:0xf bank_mask:0xf')
        g.set_exec(0x5555555555555555)
        g(f'global_store_dwordx4 v29, v[144:147], {WS} sc1')
        g('s_mov_b64 exec, -1')
    g.stamp(7)
    g('s_branch L_fin')

    def gemv(n, src, wbase, d, ab=224, reuse=False, keep=False):
        ns = n if keep else 4
        def pm(t):
            a = ab + 4 * (t % ns)
            for v in range(4):
                g(f'v_perm_b32 v{a+v}, v{src+t//2}, v{src+t//2}, v{192+2*v+(t&1)}')
        if not reuse:
            pm(0)
            if n > 1:
                pm(1)
        for t in range(n):
            if not reuse and t + 2 < n:
                pm(t + 2)
            a = ab + 4 * (t % ns)
            c = '0' if t == 0 else f'v[{d}:{d+3}]'
            g(f'v_mfma_f32_16x16x32_bf16 v[{d}:{d+3}], v[{a}:{a+3}], v[{wbase+4*t}:{wbase+4*t+3}], {c}')

    g.label('L_b_mlpld')
    if stop_after == 5:
        g('s_branch L_fin')
    gen_sel(g, 192, 16, 17)
    if 'mlrot' in opts:
        g('s_and_b32 s57, s58, 1')
        g('s_lshl_b32 s57, s57, 2')
        g(f's_add_u32 s57, s57, {sWAVE}')
        g('s_and_b32 s57, s57, 7')
    else:
        g(f's_mov_b32 s57, {sWAVE}')
    g('v_and_b32 v26, 1, v6')
    g('v_lshlrev_b32 v26, 2, v26')
    g('v_lshl_add_u32 v26, v9, 3, v26')
    g('v_lshrrev_b32 v27, 1, v6')
    g('v_add_u32 v26, v26, v27')
    g('v_lshlrev_b32 v26, 2, v26')
    g(f's_lshl_b32 s48, {sWAVE}, 8')
    g('v_add_u32 v26, s48, v26')
    g('v_cmp_le_u32 vcc, 4, v9')
    g('v_mov_b32 v12, s22')
    g('v_mov_b32 v13, s24')
    g('v_mov_b32 v14, s23')
    g('v_mov_b32 v15, s25')
    g('v_cndmask_b32 v12, v12, v13, vcc')
    g('v_cndmask_b32 v13, v14, v15, vcc')
    g('v_and_b32 v14, 3, v0')
    g('v_lshlrev_b32 v14, 4, v14')
    g('s_lshl_b32 s48, s58, 6')
    g(f's_mul_i32 s49, s57, {80*3456}')
    g('s_add_u32 s48, s48, s49')
    g('v_add_u32 v14, s48, v14')
    g(f'v_mul_u32_u24 v15, {8*3456}, v10')
    g('v_add_u32 v15, v15, v14')
    g(f'v_mul_u32_u24 v16, {2*3456}, v10')
    g('v_add_u32 v16, v16, v14')
    g(f'v_add_u32 v16, {64*3456}, v16')
    for t in range(10):
        if t == 0:
            src = 15
        elif t == 8:
            src = 16
        g(f'v_add_co_u32 v18, vcc, v12, v{src}')
        g.nop(2)
        g('v_addc_co_u32 v19, vcc, 0, v13, vcc')
        g(f'global_load_dwordx4 v[{64+4*t}:{67+4*t}], v[18:19], off' + ('' if 'gunt0' in opts else ' sc0 nt' if 'gusc0' in opts else ' nt'))
        g(f'v_add_u32 v{src}, 3456, v{src}')
    g('s_lshl_b32 s48, s58, 5')
    g(f's_mul_i32 s48, s48, 1280')
    g(f's_lshl_b32 s49, {sWAVE}, 7')
    g('s_add_u32 s48, s48, s49')
    g.addr('s[40:41]', S_WD, 's48')
    g(f'v_mul_u32_u24 v11, {4*1280}, v10')
    g('v_lshl_add_u32 v11, v9, 4, v11')
    for t in range(4):
        g(f'global_load_dwordx4 v[{104+4*t}:{107+4*t}], v11, s[40:41] offset:{1280*t}' + ('' if 'wdnt0' in opts else ' nt'))
    g(f's_cmp_lt_u32 {sWAVE}, 2')
    g('s_cbranch_scc0 L_b_nod2')
    g('s_add_u32 s40, s40, 1024')
    g('s_addc_u32 s41, s41, 0')
    for t in range(4):
        g(f'global_load_dwordx4 v[{120+4*t}:{123+4*t}], v11, s[40:41] offset:{1280*t}' + ('' if 'wdnt0' in opts else ' nt'))
    g.label('L_b_nod2')
    g(f's_lshl_b32 s48, {sWAVE}, 8')
    g('s_min_u32 s48, s48, 1024')
    g('v_and_b32 v17, 31, v0')
    g('v_lshlrev_b32 v17, 3, v17')
    g('v_lshrrev_b32 v29, 5, v0')
    g('v_lshl_add_u32 v17, v29, 2, v17')
    g('v_add_u32 v143, s48, v17')
    g(f'global_load_dword v140, v143, {S_X}')
    g(f'global_load_ushort v141, v1, {S_X}')
    g.stamp(6)
    g('s_waitcnt vmcnt(0)')
    g.stamp(7)
    g('v_lshlrev_b32 v141, 16, v141')
    g.nop(1)
    g('v_readfirstlane_b32 s53, v141')
    gen_mask(g, 220, 16, 17)
    for v in range(4):
        g(f'v_and_b32 v{220+v}, 0x3f803f80, v{220+v}')
    g.nop(2)
    for t in range(10):
        c = '0' if t == 0 else 'v[200:203]'
        g(f'v_mfma_f32_16x16x32_bf16 v[200:203], v[220:223], v[{64+4*t}:{67+4*t}], {c}')
    g.nop(8)
    class_combine(g, 200)
    g.set_exec(0x00ff00ff00ff00ff)
    g('ds_write2_b32 v26, v200, v202 offset0:0 offset1:2')
    g('s_mov_b64 exec, -1')
    g('s_waitcnt lgkmcnt(0)')
    g('s_barrier')
    g('v_lshlrev_b32 v29, 2, v0')
    for w in range(8):
        g(f'ds_read_b32 v{160+w}, v29 offset:{256*w}')
    g('s_waitcnt lgkmcnt(0)')
    g('v_add_f32 v160, v160, v161')
    g('v_add_f32 v162, v162, v163')
    g('v_add_f32 v164, v164, v165')
    g('v_add_f32 v166, v166, v167')
    g('v_add_f32 v160, v160, v162')
    g('v_add_f32 v164, v164, v166')
    g('v_add_f32 v142, v160, v164')
    g('s_barrier')
    g('s_mul_i32 s48, s57, 160')
    g('v_lshlrev_b32 v27, 4, v10')
    g('v_add_u32 v27, s48, v27')
    g('v_lshlrev_b32 v28, 2, v10')
    g('v_add_u32 v28, s48, v28')
    g('v_lshlrev_b32 v30, 3, v10')
    g('v_and_b32 v31, 31, v0')
    g('v_lshlrev_b32 v31, 1, v31')
    g('v_lshlrev_b32 v14, 6, v9')
    g('v_lshl_add_u32 v14, v6, 4, v14')
    g(f's_mul_i32 s48, s58, 5120')
    g(f's_lshl_b32 s49, {sWAVE}, 9')
    g('s_add_u32 s48, s48, s49')
    g(f's_add_u32 s48, s48, {O2P}')
    g('v_add_u32 v14, s48, v14')
    g(f'v_add_u32 v15, {8*512}, v14')
    g(f'v_mov_b32 v202, {sTAG}')
    g(f's_lshl_b32 s48, {sWAVE}, 3')
    g('v_mov_b32 v144, s48')
    g(f's_cmp_lt_u32 {sWAVE}, 5')
    g('s_cbranch_scc0 L_m_b1')
    g(f's_lshl_b32 s48, {sWAVE}, 9')
    if 'outp8' in opts:
        g(f's_mul_i32 s49, {sXCD}, {OCS}')
        g('s_add_u32 s48, s48, s49')
    g(f's_add_u32 s48, s48, {OUTP8 if "outp8" in opts else OUTP}')
    g('v_lshrrev_b32 v152, 5, v0')
    g('v_mul_u32_u24 v152, 2560, v152')
    g('v_and_b32 v153, 31, v0')
    g('v_lshl_add_u32 v152, v153, 4, v152')
    g('v_add_u32 v152, s48, v152')
    for k in range(1, 4):
        g(f'v_add_u32 v{152+k}, {5120*k}, v152')
    g('v_lshlrev_b32 v148, 16, v140')
    g('v_and_b32 v149, 0xffff0000, v140')
    if 'goutp' in opts:
        g(f's_add_u32 s48, s58, {sWAVE}')
        g('s_and_b32 s48, s48, 15')
        g(f's_lshl_b32 s49, {sXCD}, 4')
        g('s_add_u32 s48, s48, s49')
        g('s_lshl_b32 s48, s48, 9')
        g(f's_add_u32 s48, s48, {C4}')
        g('v_mov_b32 v12, s48')
        g.gate('outp', 12, 13)
    if 'ppoutp' in opts:
        g.poll3('outp', [(f'global_load_dwordx4 v[{{d}}], v{152+k}, {WS} sc1', 160 + 4 * k, 3, None) for k in range(4)], MB, 12, 13,
                [[b + 4 * i for i in range(4)] for b in (32, 48, 240)][:PK], (0, 1), optn('outpsp', SP))
    else:
        g.poll2('outp', [(f'global_load_dwordx4 v[{160+4*k}:{163+4*k}], v{152+k}, {WS} sc1', 163 + 4 * k, None) for k in range(4)], MB, 12, 13)
    g.stamp(8)
    for k in range(4):
        g(f'v_lshlrev_b32 v{176+4*k}, 16, v{160+4*k}')
        g(f'v_and_b32 v{177+4*k}, 0xffff0000, v{160+4*k}')
        g(f'v_lshlrev_b32 v{178+4*k}, 16, v{161+4*k}')
        g(f'v_and_b32 v{179+4*k}, 0xffff0000, v{161+4*k}')
        if k == 1:
            g('v_pk_add_f32 v[176:177], v[176:177], v[180:181]')
            g('v_pk_add_f32 v[178:179], v[178:179], v[182:183]')
    g('v_pk_add_f32 v[184:185], v[184:185], v[188:189]')
    g('v_pk_add_f32 v[186:187], v[186:187], v[190:191]')
    g('v_pk_add_f32 v[176:177], v[176:177], v[184:185]')
    g('v_pk_add_f32 v[178:179], v[178:179], v[186:187]')
    g.nop(1)
    g('v_permlane32_swap_b32 v176, v178')
    g('v_permlane32_swap_b32 v177, v179')
    g.nop(1)
    g('v_add_f32 v16, v176, v178')
    g('v_add_f32 v17, v177, v179')
    g('v_cvt_pk_bf16_f32 v16, v16, v17')
    g('v_lshlrev_b32 v18, 16, v16')
    g('v_and_b32 v19, 0xffff0000, v16')
    g('v_pk_add_f32 v[18:19], v[18:19], v[148:149]')
    g('v_cvt_pk_bf16_f32 v16, v18, v19')
    g(f'ds_write_b32 v143, v16 offset:{L_HB}')
    g('v_lshlrev_b32 v18, 16, v16')
    g('v_and_b32 v19, 0xffff0000, v16')
    g('v_subrev_f32 v18, s53, v18')
    g('v_subrev_f32 v19, s53, v19')
    g('v_add_f32 v160, v18, v19')
    g('v_mul_f32 v161, v18, v18')
    g('v_fmac_f32 v161, v19, v19')
    g.wave_reduce([160, 161], [162, 163])
    g('s_mov_b64 exec, 1')
    g(f'ds_write_b64 v144, v[160:161] offset:{L_ST}')
    g('s_mov_b64 exec, -1')
    g('s_waitcnt lgkmcnt(0)')
    g.label('L_m_b1')
    g('s_barrier')
    g.stamp(9)
    g(f'ds_read_b128 v[176:179], v27 offset:{L_HB}')
    g(f'ds_read_b32 v180, v28 offset:{L_HB+128}')
    g(f's_cmp_eq_u32 {sWAVE}, 7')
    g('s_cbranch_scc1 L_m_st')
    g.begin_tail()
    g.label('L_m_st')
    g(f'ds_read_b128 v[160:163], v1 offset:{L_ST}')
    g(f'ds_read_b128 v[164:167], v1 offset:{L_ST+16}')
    g(f'ds_read_b64 v[168:169], v1 offset:{L_ST+32}')
    g('s_branch L_m_ns')
    g.end_tail()
    g.label('L_m_ns')
    g('s_waitcnt lgkmcnt(0)')
    gemv(10, 176, 64, 208)
    g.nop(8)
    class_combine(g, 208)
    g.set_exec(0x00ff00ff00ff00ff)
    g('ds_write2_b32 v26, v208, v210 offset0:0 offset1:2')
    g('s_mov_b64 exec, -1')
    g('s_waitcnt lgkmcnt(0)')
    g('s_barrier')
    g.stamp(10)
    if 'go2' in opts:
        g(f's_cmp_eq_u32 {sWAVE}, 6')
        g('s_cbranch_scc0 L_m_nf')
        g('s_lshl_b32 s48, s58, 7')
        g(f's_add_u32 s48, s48, {PF + 12}')
        g('v_mov_b32 v16, s48')
        g('s_mov_b64 exec, 1')
        g(f'global_store_dword v16, v202, {WS} sc1')
        g('s_mov_b64 exec, -1')
        g.label('L_m_nf')
    g(f's_cmp_eq_u32 {sWAVE}, 7')
    g('s_cbranch_scc0 L_m_b3')
    for w in range(8):
        g(f'ds_read_b32 v{184+w}, v29 offset:{256*w}')
    g('v_pk_add_f32 v[160:161], v[160:161], v[162:163]')
    g('v_pk_add_f32 v[164:165], v[164:165], v[166:167]')
    g('v_pk_add_f32 v[160:161], v[160:161], v[168:169]')
    g('v_pk_add_f32 v[160:161], v[160:161], v[164:165]')
    ln_scalars(g, 160, 161, 's53', 170, 171, 172)
    g('v_mul_f32 v170, v170, v142')
    g('s_waitcnt lgkmcnt(0)')
    g('v_pk_add_f32 v[184:185], v[184:185], v[186:187]')
    g('v_pk_add_f32 v[188:189], v[188:189], v[190:191]')
    g('v_pk_add_f32 v[184:185], v[184:185], v[188:189]')
    g('v_add_f32 v16, v184, v185')
    g('v_sub_f32 v16, v16, v170')
    g('v_mul_f32 v16, v16, v171')
    rnd_bf16(g, 16)
    g('v_mov_b32 v17, v16')
    g.nop(2)
    g('v_permlane32_swap_b32 v16, v17')
    g.nop(1)
    g('v_max_f32 v16, 0, v16')
    g('v_mul_f32 v16, v16, v17')
    g('v_cvt_pk_bf16_f32 v16, v16, v16')
    g(f'ds_write_b16 v31, v16 offset:{L_CB}')
    g('s_waitcnt lgkmcnt(0)')
    g.label('L_m_b3')
    g('s_barrier')
    g(f'ds_read_b64 v[16:17], v30 offset:{L_CB}')
    g('s_waitcnt lgkmcnt(0)')
    g.stamp(11)

    def down(base, vo, reuse=False):
        gemv(4, 16, base, 204, reuse=reuse, keep=True)
        g.nop(8)
        class_combine(g, 204, out2=205)
        g.set_exec(0x00ff00ff00ff00ff)
        g(f'global_store_dwordx4 v{vo}, v[202:205], {WS} sc1')
        g('s_mov_b64 exec, -1')
    down(104, 14)
    g(f's_cmp_lt_u32 {sWAVE}, 2')
    g('s_cbranch_scc0 L_m_done')
    down(120, 15, reuse=True)
    g.label('L_m_done')

    g.label('L_fin')
    g.stamp(15)
    g.stamp_flush()
    g.label('L_end')
    g('s_endpgm')
    body = g.text()

    hdr = open('cdna_kernels/' + KN[:-7] + '.s.ref').read().split('\n')
    head = []
    for line in hdr:
        if line.startswith('; @launch'):
            head.append(f'; @launch grid=(256,1,1) block=(512,1,1) lds={LDS_BYTES}')
        elif line.startswith(';'):
            head.append(line)
        else:
            break
    out = '\n'.join(head) + '\n'
    out += '.amdgcn_target "amdgcn-amd-amdhsa--gfx950"\n.text\n'
    out += f'.globl {KN}\n.p2align 8\n.type {KN},@function\n{KN}:\n'
    out += body
    out += f'''.section .rodata,"a"
.p2align 6
.amdhsa_kernel {KN}
  .amdhsa_next_free_vgpr 256
  .amdhsa_next_free_sgpr 102
  .amdhsa_accum_offset 256
  .amdhsa_group_segment_fixed_size 0
  .amdhsa_kernarg_size 104
  .amdhsa_user_sgpr_count 2
  .amdhsa_user_sgpr_kernarg_segment_ptr 1
  .amdhsa_system_sgpr_workgroup_id_x 1
.end_amdhsa_kernel
'''
    return out


if __name__ == '__main__':
    import argparse
    ap = argparse.ArgumentParser()
    ap.add_argument('-o', default='k.s')
    ap.add_argument('--stamps', action='store_true')
    ap.add_argument('--stop', type=int, default=None)
    ap.add_argument('--opts', default='')
    a = ap.parse_args()
    open(a.o, 'w').write(build(a.stamps, a.stop, tuple(a.opts.split(','))))
```

```python
import sys, struct

KN = 'sequential_preLN__compressed_kv_cla__glu_gated_reglu__decode_kernel'

EPOCH = 0
XID = 0x1000
PF = 0x3000
Q1L = 0x10000
Q1G = 0x50000
QA = 0x90000
MLL = 0xA0000
C4 = 0xA8000
MLX = 0xC8000
OUTP = 0xE8000
O2P = 0x100000
OX = 0x180000
OPL = 0x200000
QA8 = 0x280000
OUTP8 = 0x300000
OCS = 0x8000
STAMPS = 0x800000

L_XN = 0
L_QB = 256
L_MB = 512
L_LB = 768
L_PB = 1024
L_RED = 3072
L_CB = 7168
L_HB = 8192
L_ST = 9472
L_MODE = 9728
L_TAG = 9732
L_QL = 10240
L_V = 26624
L_TILE = 59392
LDS_BYTES = 124928
L_W = 10240
L_D = L_W + 81920
LDS_BYTES2 = L_D + 40960

S_X, S_CKV, S_WQ, S_WUK, S_WUV, S_WO, S_WG, S_WU, S_WD, S_OUT, S_DBG, S_WS = (
    's[8:9]', 's[10:11]', 's[12:13]', 's[14:15]', 's[16:17]', 's[18:19]', 's[22:23]', 's[24:25]', 's[26:27]',
    's[28:29]', 's[30:31]', 's[32:33]')
sXCD, sR, sWAVE, sH, sJ, sTAG = 's34', 's35', 's36', 's37', 's38', 's39'
POLL_LIMIT = 1 << 17


def f2u(x):
    return struct.unpack('<I', struct.pack('<f', x))[0]


class Gen:
    def __init__(s, stamps=False, stop_after=None):
        s.L = []
        s.tail = []
        s.n = 0
        s.stamps = stamps
        s.stop_after = stop_after
        s.nstamp = 0

    def __call__(s, txt):
        for line in txt.strip('\n').split('\n'):
            line = line.strip()
            if line:
                s.L.append('    ' + line)

    def label(s, name):
        s.L.append(name + ':')

    def uniq(s, base):
        s.n += 1
        return f'{base}_{s.n}'

    def nop(s, n):
        while n > 0:
            k = min(n, 16)
            s(f's_nop {k-1}')
            n -= k

    def stamp(s, idx):
        if s.stamps:
            s(f's_memrealtime s[{64+2*idx}:{65+2*idx}]')

    def stamp_flush(s, nst=16):
        if not s.stamps:
            return
        s('s_waitcnt lgkmcnt(0)')
        s('s_mov_b64 exec, 1')
        s(f's_lshl_b32 s48, s2, 3')
        s(f's_add_u32 s48, s48, {sWAVE}')
        s(f's_lshl_b32 s48, s48, 7')
        s(f's_add_u32 s48, s48, {STAMPS}')
        s('v_mov_b32 v1, s48')
        for i in range(nst):
            s(f'v_mov_b32 v2, s{64+2*i}')
            s(f'v_mov_b32 v3, s{65+2*i}')
            s(f'global_store_dwordx2 v1, v[2:3], {S_WS} offset:{8*i}')
            s('s_nop 1')
        s('s_waitcnt vmcnt(0)')

    def addr(s, dst, src, off):
        d = int(dst[2:].split(':')[0]); sr = int(src[2:].split(':')[0])
        s(f's_add_u32 s{d}, s{sr}, {off}')
        s(f's_addc_u32 s{d+1}, s{sr+1}, 0')

    def set_exec(s, mask):
        if mask == (1 << 64) - 1:
            s('s_mov_b64 exec, -1')
        else:
            s(f's_mov_b32 exec_lo, {mask & 0xffffffff:#x}')
            s(f's_mov_b32 exec_hi, {mask >> 32:#x}')

    def wave_reduce(s, regs, tmps, op='add'):
        ins = {'add': 'v_add_f32', 'max': 'v_max_f32'}[op]
        n = len(regs)
        pad = max(0, 2 - (n - 1))
        s.nop(2)
        for ctl in ['quad_perm:[1,0,3,2]', 'quad_perm:[2,3,0,1]', 'row_half_mirror', 'row_mirror']:
            for r in regs:
                s(f'{ins}_dpp v{r}, v{r}, v{r} {ctl} row_mask:0xf bank_mask:0xf')
            s.nop(pad)
        s.row_reduce(regs, tmps, op)

    def row_reduce(s, regs, tmps, op='add'):
        ins = {'add': 'v_add_f32', 'max': 'v_max_f32'}[op]
        n = len(regs)
        for sw in ['v_permlane16_swap_b32', 'v_permlane32_swap_b32']:
            for r, t in zip(regs, tmps):
                s(f'v_mov_b32 v{t}, v{r}')
            s.nop(max(0, 2 - (n - 1)))
            for r, t in zip(regs, tmps):
                s(f'{sw} v{t}, v{r}')
            s.nop(1 if n == 1 else 0)
            for r, t in zip(regs, tmps):
                s(f'{ins} v{r}, v{r}, v{t}')
            s.nop(0)

    def check_tags(s, regs, t0, t1, done_label):
        tags = []
        for r in regs:
            tags += [r + 1, r + 3]
        if len(tags) == 2:
            s(f'v_cmp_eq_u32 vcc, {sTAG}, v{tags[0]}')
            s(f'v_cmp_eq_u32 s[46:47], {sTAG}, v{tags[1]}')
        else:
            s(f'v_min3_u32 v{t0}, v{tags[0]}, v{tags[1]}, v{tags[2]}')
            s(f'v_max3_u32 v{t1}, v{tags[0]}, v{tags[1]}, v{tags[2]}')
            rest = tags[3:]
            while rest:
                if len(rest) >= 2:
                    s(f'v_min3_u32 v{t0}, v{t0}, v{rest[0]}, v{rest[1]}')
                    s(f'v_max3_u32 v{t1}, v{t1}, v{rest[0]}, v{rest[1]}')
                    rest = rest[2:]
                else:
                    s(f'v_min_u32 v{t0}, v{t0}, v{rest[0]}')
                    s(f'v_max_u32 v{t1}, v{t1}, v{rest[0]}')
                    rest = rest[1:]
            s(f'v_cmp_eq_u32 vcc, {sTAG}, v{t0}')
            s(f'v_cmp_eq_u32 s[46:47], {sTAG}, v{t1}')
        s('s_and_b64 vcc, vcc, s[46:47]')
        s('s_cmp_eq_u64 vcc, exec')
        s(f's_cbranch_scc1 {done_label}')

    def poll(s, name, emit_loads, regs, t0, t1, first_hook=None, alt=None):
        top = s.uniq(name + '_top'); done = s.uniq(name + '_done'); fail = s.uniq(name + '_fail')
        s(f's_mov_b32 s50, 0')
        if first_hook is not None:
            emit_loads(alt[0] if alt else None)
            first_hook()
            s('s_waitcnt vmcnt(0)')
            s.check_tags(regs, t0, t1, done)
        s.label(top)
        if alt:
            s('s_add_u32 s50, s50, 1')
            s('s_and_b32 s51, s50, 7')
            s('s_cmp_eq_u32 s51, 0')
            s(f's_cselect_b64 s[44:45], {alt[1]}, {alt[0]}')
            emit_loads('s[44:45]')
        else:
            s('s_add_u32 s50, s50, 1')
            emit_loads(None)
        s('s_waitcnt vmcnt(0)')
        s.check_tags(regs, t0, t1, done)
        s(f's_cmp_lt_u32 s50, {POLL_LIMIT}')
        s(f's_cbranch_scc1 {top}')
        s(f's_mov_b64 s[46:47], exec')
        s('s_mov_b64 exec, 1')
        s(f'v_mov_b32 v{t0}, {4*(s.n % 60)}')
        s(f'v_mov_b32 v{t1}, {0x1000 + s.n}')
        s(f'global_store_dword v{t0}, v{t1}, {S_DBG}')
        s(f's_mov_b64 exec, s[46:47]')
        s.label(done)

    def begin_tail(s):
        s.main = s.L
        s.L = s.tail

    def end_tail(s):
        s.L = s.main

    def poll2(s, name, loads, masks, t0, t1, alt=None, hook=None):
        top = s.uniq(name + '_top'); done = s.uniq(name + '_done'); retry = s.uniq(name + '_retry')
        n = len(loads)
        assert len(masks) >= n
        s('s_mov_b32 s50, 0')
        for ins, tg, em in loads:
            if em is not None:
                s.set_exec(em)
            s(ins.format(base=alt[0] if alt else None))
            if em is not None:
                s('s_mov_b64 exec, -1')
        if hook is not None:
            hook()
        s.label(top)
        s('s_waitcnt vmcnt(0)')
        for k, (ins, tg, em) in enumerate(loads):
            s(f'v_cmp_ne_u32 {masks[k]}, {sTAG}, v{tg}')
        if n == 1:
            s(f's_cmp_lg_u64 {masks[0]}, 0')
        else:
            s(f's_or_b64 s[46:47], {masks[0]}, {masks[1]}')
            for k in range(2, n):
                s(f's_or_b64 s[46:47], s[46:47], {masks[k]}')
        s(f's_cbranch_scc1 {retry}')
        s.label(done)
        s.begin_tail()
        s.label(retry)
        s('s_add_u32 s50, s50, 1')
        if alt:
            s('s_and_b32 s51, s50, 7')
            s('s_cmp_eq_u32 s51, 0')
            s(f's_cselect_b64 s[44:45], {alt[1]}, {alt[0]}')
        for k, (ins, tg, em) in enumerate(loads):
            s(f's_mov_b64 exec, {masks[k]}')
            if n > 1:
                sk = s.uniq(name + '_sk')
                s(f's_cbranch_execz {sk}')
            s(ins.format(base='s[44:45]' if alt else None))
            if n > 1:
                s.label(sk)
        s('s_mov_b64 exec, -1')
        s(f's_cmp_lt_u32 s50, {POLL_LIMIT}')
        s(f's_cbranch_scc1 {top}')
        s('s_waitcnt vmcnt(0)')
        s('s_mov_b64 exec, 1')
        s(f'v_mov_b32 v{t0}, {4*(s.n % 60)}')
        s(f'v_mov_b32 v{t1}, {0x1000 + s.n}')
        s(f'global_store_dword v{t0}, v{t1}, {S_DBG}')
        s('s_mov_b64 exec, -1')
        s(f's_branch {done}')
        s.end_tail()

    def poll3(s, name, loads, masks, t0, t1, sets, pay, sp=12):
        top = s.uniq(name + '_top'); done = s.uniq(name + '_done'); retry = s.uniq(name + '_retry'); tmo = s.uniq(name + '_tmo')
        n = len(loads); k = len(sets)
        P = masks[:n]; T = masks[n:2 * n]
        assert len(masks) >= 2 * n
        for ins, cb, to, em in loads:
            if em is not None:
                s.set_exec(em)
            s(ins.format(d=f'{cb}:{cb+3}'))
            if em is not None:
                s('s_mov_b64 exec, -1')
        s('s_waitcnt vmcnt(0)')
        for i, (ins, cb, to, em) in enumerate(loads):
            s(f'v_cmp_ne_u32 {P[i]}, {sTAG}, v{cb+to}')
        if n == 1:
            s(f's_cmp_lg_u64 {P[0]}, 0')
        else:
            s(f's_or_b64 s[46:47], {P[0]}, {P[1]}')
            for i in range(2, n):
                s(f's_or_b64 s[46:47], s[46:47], {P[i]}')
        s(f's_cbranch_scc1 {retry}')
        s.label(done)
        s.begin_tail()
        s.label(retry)
        s('s_mov_b32 s50, 0')

        def issue(j):
            for i, (ins, cb, to, em) in enumerate(loads):
                s(f's_mov_b64 exec, {P[i]}')
                s(ins.format(d=f'{sets[j][i]}:{sets[j][i]+3}'))
            s('s_mov_b64 exec, -1')
        for j in range(k):
            issue(j)
            if j < k - 1:
                s.nop(16 * sp)
        s.label(top)
        for j in range(k):
            s(f's_waitcnt vmcnt({n*(k-1)})')
            for i, (ins, cb, to, em) in enumerate(loads):
                s(f'v_cmp_eq_u32 {T[i]}, {sTAG}, v{sets[j][i]+to}')
            for i, (ins, cb, to, em) in enumerate(loads):
                s(f's_and_b64 exec, {T[i]}, {P[i]}')
                for d in pay:
                    s(f'v_mov_b32 v{cb+d}, v{sets[j][i]+d}')
                s(f's_andn2_b64 {P[i]}, {P[i]}, exec')
            s('s_mov_b64 exec, -1')
            if n == 1:
                s(f's_cmp_lg_u64 {P[0]}, 0')
            else:
                s(f's_or_b64 s[46:47], {P[0]}, {P[1]}')
                for i in range(2, n):
                    s(f's_or_b64 s[46:47], s[46:47], {P[i]}')
            s(f's_cbranch_scc0 {done}')
            issue(j)
        s('s_add_u32 s50, s50, 1')
        s(f's_cmp_lt_u32 s50, {POLL_LIMIT // 2}')
        s(f's_cbranch_scc1 {top}')
        s('s_waitcnt vmcnt(0)')
        s('s_mov_b64 exec, 1')
        s(f'v_mov_b32 v{t0}, {4*(s.n % 60)}')
        s(f'v_mov_b32 v{t1}, {0x1000 + s.n}')
        s(f'global_store_dword v{t0}, v{t1}, {S_DBG}')
        s('s_mov_b64 exec, -1')
        s(f's_branch {done}')
        s.end_tail()

    def gate(s, name, vaddr, vtmp, limit=256, tagoff=12):
        top = s.uniq(name + '_gt'); done = s.uniq(name + '_gd')
        s('s_mov_b64 exec, 1')
        s('s_mov_b32 s50, 0')
        s.label(top)
        s(f'global_load_dword v{vtmp}, v{vaddr}, {S_WS} offset:{tagoff} sc1')
        s('s_add_u32 s50, s50, 1')
        s('s_waitcnt vmcnt(0)')
        s(f'v_cmp_ne_u32 vcc, {sTAG}, v{vtmp}')
        s('s_cmp_eq_u64 vcc, 0')
        s(f's_cbranch_scc1 {done}')
        s(f's_cmp_lt_u32 s50, {limit}')
        s(f's_cbranch_scc1 {top}')
        s.label(done)
        s('s_mov_b64 exec, -1')

    def text(s):
        return '\n'.join(s.L + s.tail + ['L_codeend:']) + '\n'


KAPPA = (128 ** -0.5) * 1.4426950408889634


def gen_sel(g, base, t0, t1):
    g(f'v_and_b32 v{t0}, 7, v0')
    g(f'v_and_b32 v{t1}, 1, v0')
    for par in range(2):
        lo = 0x0c0c0000 | ((2 * par + 1) << 8) | (2 * par)
        hi = ((2 * par + 1) << 24) | ((2 * par) << 16) | 0x0c0c
        g(f'v_cmp_eq_u32 vcc, 1, v{t1}')
        g(f'v_mov_b32 v{base+par}, {lo:#x}')
        g(f'v_mov_b32 v{base+2+par}, {hi:#x}')
        g(f'v_cndmask_b32 v{base+par}, v{base+par}, v{base+2+par}, vcc')
    g(f'v_lshrrev_b32 v{t0}, 1, v{t0}')
    g(f'v_mov_b32 v{t1}, 0x0c0c0c0c')
    for v in [3, 2, 1, 0]:
        g(f'v_cmp_eq_u32 vcc, {v}, v{t0}')
        g.nop(1)
        for par in range(2):
            g(f'v_cndmask_b32 v{base+2*v+par}, v{t1}, v{base+par}, vcc')


def gen_mask(g, base, t0, t1):
    g(f'v_and_b32 v{t0}, 7, v0')
    g(f'v_and_b32 v{t1}, 1, v0')
    g(f'v_cmp_eq_u32 vcc, 1, v{t1}')
    g(f'v_mov_b32 v{base}, 0xffff')
    g(f'v_mov_b32 v{base+1}, 0xffff0000')
    g(f'v_cndmask_b32 v{t1}, v{base}, v{base+1}, vcc')
    g(f'v_lshrrev_b32 v{t0}, 1, v{t0}')
    for v in range(4):
        g(f'v_cmp_eq_u32 vcc, {v}, v{t0}')
        g.nop(1)
        g(f'v_cndmask_b32 v{base+v}, 0, v{t1}, vcc')


def get_tag(g, vreg):
    g.nop(1)
    g(f'v_readfirstlane_b32 {sTAG}, v{vreg}')
    g.nop(4)
    g(f's_mul_i32 {sTAG}, {sTAG}, 5')
    g(f's_add_u32 {sTAG}, {sTAG}, 0x9E3779B9')


def rnd_bf16(g, r):
    g(f'v_cvt_pk_bf16_f32 v{r}, v{r}, v{r}')
    g(f'v_and_b32 v{r}, 0xffff0000, v{r}')


def ln_scalars(g, s1, s2, piv_sgpr, vm, vrs, t0):
    g(f's_mov_b32 s52, {f2u(1.0/640):#x}')
    g(f'v_mul_f32 v{s1}, s52, v{s1}')
    g(f'v_mul_f32 v{s2}, s52, v{s2}')
    g(f'v_fma_f32 v{s2}, -v{s1}, v{s1}, v{s2}')
    g(f'v_max_f32 v{s2}, 0, v{s2}')
    g(f'v_add_f32 v{vm}, {piv_sgpr}, v{s1}')
    rnd_bf16(g, vm)
    rnd_bf16(g, s2)
    g(f'v_add_f32 v{s2}, 0x3727c5ac, v{s2}')
    rnd_bf16(g, s2)
    g(f'v_sqrt_f32 v{s2}, v{s2}')
    g.nop(1)
    rnd_bf16(g, s2)
    g(f'v_rcp_f32 v{vrs}, v{s2}')
    g.nop(1)


def class_combine(g, d, out2=None):
    if out2 is None:
        out2 = d + 2
    for k in range(4):
        g(f'v_mov_b32_dpp v{d+k}, v{d+k} row_ror:8 row_mask:0xc bank_mask:0xf')
    g.nop(1)
    g(f'v_permlane32_swap_b32 v{d}, v{d+1}')
    g(f'v_permlane32_swap_b32 v{d+2}, v{d+3}')
    g.nop(1)
    g(f'v_add_f32 v{d}, v{d}, v{d+1}')
    g(f'v_add_f32 v{out2}, v{d+2}, v{d+3}')


def mode_store(g, ins_no_flag, smode):
    a = g.uniq('ms_slow'); b = g.uniq('ms_done')
    g(f's_cmp_eq_u32 {smode}, 1')
    g(f's_cbranch_scc0 {a}')
    for ins in ins_no_flag:
        g(ins)
    g.label(b)
    ex = [l for l in []]
    g.begin_tail()
    g.label(a)
    for ins in ins_no_flag:
        g(ins + ' sc1')
    g(f's_branch {b}')
    g.end_tail()


def own_tag(g, vreg):
    g(f'v_readfirstlane_b32 {sTAG}, v{vreg}')
    g.nop(4)
    g(f's_mul_i32 {sTAG}, {sTAG}, 5')
    g(f's_add_u32 {sTAG}, {sTAG}, 0x9E3779B9')


MA = ['s[10:11]', 's[12:13]', 's[14:15]', 's[18:19]', 's[20:21]', 's[22:23]', 's[24:25]', 's[26:27]']
MQ = ['s[10:11]', 's[12:13]', 's[14:15]', 's[4:5]', 's[20:21]', 's[96:97]', 's[98:99]', 's[100:101]']
MB = ['s[10:11]', 's[12:13]', 's[14:15]', 's[16:17]', 's[18:19]', 's[20:21]', 's[22:23]', 's[24:25]']


def build(stamps=False, stop_after=None, opts=()):
    g = Gen(stamps, stop_after)
    def optn(name, dflt):
        for o in opts:
            if o.startswith(name) and o[len(name):].isdigit():
                return int(o[len(name):])
        return dflt
    PK = optn('ppk', 3); SP = optn('ppsp', 12)
    sMODE = 's59'
    WS = S_WS
    g('s_cmp_ge_u32 s2, 256')
    g('s_cbranch_scc1 L_end')
    g('s_load_dwordx16 s[8:23], s[0:1], 0')
    g('s_load_dwordx8 s[24:31], s[0:1], 64')
    g('s_load_dwordx2 s[32:33], s[0:1], 96')
    g('s_getpc_b64 s[42:43]')
    g('v_lshlrev_b32 v1, 4, v0')
    g('global_load_dwordx4 v[232:235], v1, s[42:43]')
    g.stamp(0)
    g('v_lshrrev_b32 v1, 6, v0')
    g('v_and_b32 v0, 63, v0')
    g(f'v_readfirstlane_b32 {sWAVE}, v1')
    g(f's_and_b32 {sXCD}, s2, 7')
    g(f's_lshr_b32 {sR}, s2, 3')
    g(f's_lshr_b32 {sH}, {sR}, 3')
    g(f's_lshl_b32 s48, {sXCD}, 2')
    g(f's_add_u32 {sH}, {sH}, s48')
    g(f's_and_b32 {sJ}, {sR}, 7')
    g('v_mov_b32 v1, 0')
    g('v_lshlrev_b32 v3, 4, v0')
    g('v_and_b32 v7, 15, v0')
    g('v_lshrrev_b32 v6, 4, v0')
    SH = 'shift' in opts
    XWA = 7 if SH else 2
    XWB = 3 if SH else 2
    if SH:
        g(f's_cmp_ge_u32 {sXCD}, 4')
        g('s_cbranch_scc1 L_late')
        g(f's_cmp_eq_u32 {sWAVE}, 2')
        g('s_cbranch_scc0 L_nsh')
        g(f's_add_u32 {sH}, {sH}, 16')
        g('s_branch L_w1')
        g.label('L_nsh')
    g(f's_cmp_eq_u32 {sWAVE}, 1')
    g('s_cbranch_scc1 L_w1')
    g(f's_cmp_eq_u32 {sWAVE}, 0')
    g('s_cbranch_scc1 L_w0')

    def pre(tagwait=False):
        g(f's_and_b32 s55, {sR}, 1')
        g(f's_lshr_b32 s56, {sR}, 1')
        g('v_and_b32 v8, 7, v0')
        g('v_lshlrev_b32 v8, 1, v8')
        g(f's_lshl_b32 s48, {sWAVE}, 14')
        g(f's_add_u32 s48, s48, {L_TILE}')
        for tl in range(4):
            g(f'v_add_u32 v9, {4*tl}, v6')
            g('v_xor_b32 v9, v9, v8')
            g('v_lshlrev_b32 v9, 4, v9')
            g(f'v_lshl_add_u32 v{32+tl}, v7, 10, v9')
            g(f'v_add_u32 v{36+tl}, s48, v{32+tl}')
        g('v_lshrrev_b32 v9, 2, v0')
        g('v_lshlrev_b32 v9, 7, v9')
        g('v_and_b32 v11, 3, v0')
        g('v_lshl_add_u32 v9, v11, 3, v9')
        g('v_bfe_u32 v10, v0, 3, 2')
        g(f's_and_b32 s48, {sWAVE}, 3')
        g('v_xor_b32 v10, s48, v10')
        g('v_lshl_add_u32 v9, v10, 5, v9')
        g(f'v_add_u32 v40, {L_V}, v9')
        g('v_lshrrev_b32 v9, 3, v0')
        g('v_lshlrev_b32 v9, 10, v9')
        g('v_and_b32 v10, 7, v0')
        g('v_lshlrev_b32 v11, 1, v6')
        g('v_xor_b32 v10, v10, v11')
        g('v_lshl_add_u32 v41, v10, 4, v9')
        g(f's_lshl_b32 s48, {sXCD}, 19')
        g(f's_and_b32 s49, {sWAVE}, 3')
        g('s_lshl_b32 s49, s49, 16')
        g('s_add_u32 s48, s48, s49')
        g('s_lshl_b32 s49, s56, 7')
        g('s_add_u32 s48, s48, s49')
        g('s_waitcnt lgkmcnt(0)')
        g.addr('s[98:99]', S_CKV, 's48')
        g('v_lshrrev_b32 v9, 1, v0')
        g('v_and_b32 v10, 1, v0')
        g('v_lshlrev_b32 v10, 3, v10')
        for ih in range(2):
            g(f's_lshl_b32 s48, {sWAVE}, 1')
            g(f's_add_u32 s48, s48, {ih}')
            g('s_and_b32 s49, s48, 7')
            g('s_lshl_b32 s49, s49, 1')
            g('v_xor_b32 v11, s49, v9')
            g('v_lshl_add_u32 v11, v11, 4, v10')
            g('s_lshl_b32 s48, s48, 10')
            g(f's_add_u32 s48, s48, {L_QL}')
            g(f'v_add_u32 v{44+ih}, s48, v11')
        gen_mask(g, 240, 9, 10)
        g('v_lshlrev_b32 v46, 4, v7')
        g(f's_lshl_b32 s48, {sWAVE}, 2')
        g('v_add_u32 v47, s48, v46')
        g('v_lshlrev_b32 v57, 3, v0')
        g(f'v_add_u32 v42, {L_QL}, v3')
        g(f's_lshl_b32 s48, {sWAVE}, 11')
        g('v_add_u32 v56, s48, v42')
        g('v_lshlrev_b32 v43, 5, v7')
        g(f'v_add_u32 v43, {L_RED}, v43')
        g(f's_lshl_b32 s48, {sWAVE}, 2')
        g('v_add_u32 v59, s48, v43')
        g('s_lshl_b32 s48, s55, 15')
        g(f's_lshl_b32 s49, {sWAVE}, 12')
        g('s_add_u32 s48, s48, s49')
        if 'qa8' in opts:
            g(f's_lshl_b32 s49, {sXCD}, 16')
            g('s_add_u32 s48, s48, s49')
        g(f's_add_u32 s48, s48, {QA8 if "qa8" in opts else QA}')
        g('v_add_u32 v248, s48, v3')
        g(f's_lshl_b32 s48, {sXCD}, 16')
        g('s_lshl_b32 s49, s55, 15')
        g('s_add_u32 s48, s48, s49')
        g(f's_add_u32 s48, s48, {OPL}')
        g(f's_lshl_b32 s49, {sWAVE}, 12')
        g('s_add_u32 s49, s49, s48')
        g('v_add_u32 v246, s49, v3')
        g('s_lshl_b32 s49, s56, 12')
        g('s_add_u32 s48, s48, s49')
        g('v_add_u32 v251, s48, v3')
        g(f's_and_b32 s49, {sWAVE}, 3')
        g('s_lshl_b32 s49, s49, 10')
        g('v_add_u32 v58, s49, v251')
        g(f's_lshl_b32 s48, {sXCD}, 16')
        g('s_lshl_b32 s49, s55, 15')
        g('s_add_u32 s48, s48, s49')
        g('s_lshl_b32 s49, s56, 12')
        g('s_add_u32 s48, s48, s49')
        g(f's_and_b32 s49, {sWAVE}, 3')
        g('s_lshl_b32 s49, s49, 10')
        g('s_add_u32 s48, s48, s49')
        g(f's_add_u32 s48, s48, {OX}')
        g('v_lshlrev_b32 v244, 6, v7')
        g('v_lshl_add_u32 v244, v6, 4, v244')
        g('v_add_u32 v244, s48, v244')
        g(f's_lshl_b32 s48, {sXCD}, 9')
        g('s_lshl_b32 s49, s55, 8')
        g('s_add_u32 s48, s48, s49')
        g(f's_add_u32 s48, s48, {MLX}')
        g('v_add_u32 v250, s48, v3')
        g('s_mov_b32 s58, s56')
        g(f's_lshr_b32 s48, {sR}, 2')
        g(f's_lshl_b32 s49, {sXCD}, 2')
        g('s_add_u32 s61, s48, s49')
        g(f's_and_b32 s62, {sR}, 3')
        g('v_bfe_u32 v13, v0, 2, 3')
        g('s_lshr_b32 s48, s61, 4')
        g('s_lshl_b32 s48, s48, 5')
        g('s_lshl_b32 s49, s62, 3')
        g('s_add_u32 s48, s48, s49')
        g(f's_add_u32 s48, s48, {sWAVE}')
        g('s_lshl_b32 s48, s48, 10')
        g('s_and_b32 s49, s61, 15')
        g('s_lshl_b32 s49, s49, 6')
        g('s_add_u32 s48, s48, s49')
        g(f's_add_u32 s48, s48, {OX}')
        g('v_lshlrev_b32 v14, 16, v13')
        g('v_and_b32 v12, 3, v0')
        g('v_lshl_add_u32 v14, v12, 4, v14')
        g('v_add_u32 v245, s48, v14')
        g('s_lshl_b32 s48, s61, 4')
        g(f's_add_u32 s48, s48, {MLX}')
        g('v_lshlrev_b32 v14, 9, v13')
        g('v_add_u32 v14, s48, v14')
        g('v_cmp_le_u32 vcc, 32, v0')
        g.nop(1)
        g('v_cndmask_b32 v245, v245, v14, vcc')
        g('v_lshlrev_b32 v247, 5, v7')
        g('v_lshl_add_u32 v247, v6, 4, v247')
        g(f's_lshl_b32 s48, {sWAVE}, 9')
        g('v_add_u32 v247, s48, v247')
        g(f's_lshl_b32 s48, {sXCD}, 4')
        g(f's_add_u32 s48, s48, {sR}')
        g('s_lshl_b32 s48, s48, 9')
        g(f's_add_u32 s48, s48, {C4}')
        g('v_lshrrev_b32 v253, 1, v0')
        g('v_lshl_add_u32 v253, v253, 4, s48')
        g('s_lshl_b32 s48, s61, 8')
        g('s_lshl_b32 s49, s62, 3')
        g(f's_add_u32 s49, s49, {sWAVE}')
        g('s_lshl_b32 s49, s49, 17')
        g('s_add_u32 s48, s48, s49')
        g('s_waitcnt lgkmcnt(0)')
        g.addr('s[62:63]' if False else 's[96:97]', S_WUV, 's48')
        g('v_lshlrev_b32 v254, 13, v6')
        g('v_lshl_add_u32 v254, v7, 4, v254')
        if tagwait is not False:
            g(f's_waitcnt vmcnt({0 if tagwait is True else tagwait})')
            own_tag(g, 2)
        g(f'global_load_dword v233, v245, {WS} sc1')
        pt = g.uniq('pt')
        g(f's_cmp_eq_u32 {sWAVE}, 5')
        g(f's_cbranch_scc0 {pt}')
        for kt in range(4):
            g(f'global_load_dword v{234+kt}, v251, {WS} offset:{1024*kt} sc1')
        g.label(pt)

    def dma(wsel=None):
        if optn('kdel', 0):
            lb = g.uniq('kdel'); le = g.uniq('kdele')
            if 'kdlate' in opts:
                g(f's_cmp_lt_u32 {sXCD}, 4')
                g(f's_cbranch_scc1 {le}')
            g(f's_mov_b32 s48, {optn("kdel", 0)}')
            g.label(lb)
            g('s_nop 15')
            g('s_nop 15')
            g('s_sub_u32 s48, s48, 1')
            g('s_cmp_gt_u32 s48, 0')
            g(f's_cbranch_scc1 {lb}')
            g.label(le)
        g(f's_lshr_b32 s56, {sR}, 1')
        g(f's_lshl_b32 s57, {sXCD}, 3')
        g('s_add_u32 s57, s57, s56')
        g('s_lshl_b32 s48, s57, 6')
        if 'rot' in opts:
            g(f's_and_b32 s49, {sR}, 1')
            g('s_lshl_b32 s49, s49, 2')
            g(f's_add_u32 s49, s49, {wsel or sWAVE}')
            g('s_and_b32 s49, s49, 7')
            g('s_lshl_b32 s49, s49, 3')
        else:
            g(f's_lshl_b32 s49, {wsel or sWAVE}, 3')
        g('s_add_u32 s48, s48, s49')
        g('s_lshl_b32 s48, s48, 10')
        g.addr('s[40:41]', S_CKV, 's48')
        g('s_lshl_b32 s49, s49, 10')
        g(f's_add_u32 s49, s49, {L_TILE}')
        g('s_mov_b32 m0, s49')
        for i in range(8):
            if i == 4:
                g('s_add_u32 s49, s49, 4096')
                g('s_mov_b32 m0, s49')
                g('s_add_u32 s40, s40, 4096')
                g('s_addc_u32 s41, s41, 0')
            g(f'v_xor_b32 v4, {32*i}, v3')
            g(f'global_load_lds_dwordx4 v4, s[40:41] offset:{1024*(i%4)}' + (' nt' if 'ckvnt' in opts else ''))

    def wuk_dma():
        g(f's_sub_u32 s54, {sR}, 16')
        g('s_lshr_b32 s48, s54, 2')
        g(f's_lshl_b32 s49, {sXCD}, 2')
        g('s_add_u32 s48, s48, s49')
        g('s_lshl_b32 s48, s48, 8')
        g('s_and_b32 s49, s54, 3')
        g('s_lshl_b32 s49, s49, 2')
        g(f's_add_u32 s49, s49, {sWAVE}')
        g('s_sub_u32 s49, s49, 4')
        g('s_lshl_b32 s49, s49, 18')
        g('s_add_u32 s48, s48, s49')
        g.addr('s[40:41]', S_WUK, 's48')
        g('v_xor_b32 v8, v7, v6')
        g('v_lshlrev_b32 v8, 4, v8')
        g('v_lshl_add_u32 v8, v6, 13, v8')
        for n in range(1, 4):
            g(f'v_xor_b32 v{8+n}, {64*n}, v8')
        g(f's_and_b32 s49, {sWAVE}, 3')
        g('s_lshl_b32 s49, s49, 13')
        g(f's_add_u32 m0, s49, {L_TILE}')
        g.nop(1)
        for n in range(8):
            g(f'global_load_lds_dwordx4 v{8+(n&3)}, s[40:41]' + ('' if 'wuknt0' in opts else ' nt'))
            if n < 7:
                g('s_add_u32 m0, m0, 1024')
                g('s_add_u32 s40, s40, 32768')
                g('s_addc_u32 s41, s41, 0')

    g('s_waitcnt lgkmcnt(0)')
    if 'bq' in opts:
        g('s_barrier')
    g(f's_cmp_ge_u32 {sWAVE}, 4')
    g('s_cbranch_scc0 L_e_nb')
    g(f's_cmp_ge_u32 {sR}, 16')
    g('s_cbranch_scc1 L_e_b')
    if 'fulldma' in opts:
        g(f's_sub_u32 s58, {sWAVE}, 4')
        dma('s58')
    if 'halfdma' in opts or 'fulldma' in opts:
        dma()
    g('s_branch L_e_nb')
    g.label('L_e_b')
    if 'wukb0' not in opts:
        wuk_dma()
    g.label('L_e_nb')
    g('s_waitcnt lgkmcnt(0)')
    g(f'global_load_dword v2, v1, {WS} sc1')
    def codepf():
        lb = g.uniq('L_nw7')
        g(f's_cmp_eq_u32 {sWAVE}, 3')
        g(f's_cbranch_scc0 {lb}')
        g(f's_and_b32 s48, {sR}, 15')
        g('s_lshl_b32 s48, s48, 10')
        g('s_add_u32 s48, s48, 8192')
        g(f's_min_u32 s48, s48, L_codeend-{KN}-1088')
        g('s_add_u32 s42, s42, s48')
        g('s_addc_u32 s43, s43, 0')
        g('global_load_dwordx4 v[236:239], v3, s[42:43]')
        g.label(lb)

    def xidstore():
        g('s_getreg_b32 s48, hwreg(HW_REG_XCC_ID)')
        g('s_and_b32 s48, s48, 0xf')
        g('v_mov_b32 v12, s48')
        g(f'v_mov_b32 v15, {sTAG}')
        g(f's_lshl_b32 s48, {sXCD}, 5')
        g(f's_add_u32 s48, s48, {sR}')
        g('s_lshl_b32 s48, s48, 4')
        g(f's_add_u32 s48, s48, {XID}')
        g('v_mov_b32 v16, s48')
        g('s_mov_b64 exec, 1')
        g(f'global_store_dwordx4 v16, v[12:15], {WS} sc1')
        g('s_mov_b64 exec, -1')
    codepf()
    g(f's_cmp_ge_u32 {sR}, 16')
    g('s_cbranch_scc0 L_pre')
    g.label('L_e_tag')
    g(f's_cmp_eq_u32 {sWAVE}, {XWB}')
    g('s_cbranch_scc0 L_b0')
    if 'tlbpt' in opts:
        g(f's_cmp_ge_u32 {sR}, {optn("tlbr", 28)}')
        g('s_cbranch_scc0 L_ntp')
        g('v_lshlrev_b32 v20, 21, v0')
        g('s_mov_b64 exec, 7')
        bufs = [(S_WUK, 4194304), (S_CKV, 4194304), (S_WUV, 4194304), (S_WO, 5242880), (S_WG, 2211840), (S_WU, 2211840), (S_WD, 2211840)]
        for k, (b, sz) in enumerate(bufs):
            g(f'v_min_u32 v21, {sz - 4}, v20')
            g(f'global_load_dword v{24+k}, v21, {b}')
        g('s_mov_b64 exec, -1')
        g('s_waitcnt vmcnt(7)')
        g('s_branch L_tp')
        g.label('L_ntp')
        g('s_waitcnt vmcnt(0)')
        g.label('L_tp')
    else:
        g(f's_waitcnt vmcnt({1 if XWB == 3 else 0})')
    own_tag(g, 2)
    xidstore()
    g('s_branch L_b0')
    if SH:
        g.label('L_late')
        g('s_waitcnt lgkmcnt(0)')
        g(f'global_load_dword v2, v1, {WS} sc1')
        g(f's_cmp_ge_u32 {sR}, 16')
        g('s_cbranch_scc1 L_late_b')
        dma()
        g.stamp(13)
        codepf()
        pre(tagwait=8)
        g(f's_cmp_eq_u32 {sWAVE}, {XWA}')
        g('s_cbranch_scc0 L_a_dmadone')
        xidstore()
        g('s_branch L_a_dmadone')
        g.label('L_late_b')
        g(f's_cmp_ge_u32 {sWAVE}, 4')
        g('s_cbranch_scc0 L_late_b1')
        wuk_dma()
        g('s_waitcnt vmcnt(8)')
        own_tag(g, 2)
        g('s_waitcnt vmcnt(0)')
        g('s_branch L_pathB')
        g.label('L_late_b1')
        codepf()
        g('s_waitcnt vmcnt(1)')
        g(f's_cmp_eq_u32 {sWAVE}, 3')
        g('s_cbranch_scc1 L_late_b2')
        g('s_waitcnt vmcnt(0)')
        own_tag(g, 2)
        g('s_branch L_pathB')
        g.label('L_late_b2')
        own_tag(g, 2)
        xidstore()
        g('s_branch L_pathB')

    g.label('L_w0')
    g('v_lshlrev_b32 v4, 2, v0')
    g('v_min_u32 v5, 39, v0')
    g('v_lshlrev_b32 v5, 2, v5')
    g(f's_mul_i32 s48, {sJ}, 160')
    g('v_add_u32 v5, s48, v5')
    g('s_waitcnt lgkmcnt(0)')
    for k in range(5):
        g(f'global_load_dword v{10+k}, v4, {S_X} offset:{256*k}')
    g(f'global_load_dword v15, v5, {S_X}')
    g(f'global_load_dword v2, v1, {WS} sc1')
    g(f's_mov_b32 s52, {f2u(1.0/640):#x}')
    if 'bq' in opts:
        g('s_barrier')
    g('s_waitcnt vmcnt(2)')
    g.stamp(1)
    for k in range(5):
        g(f'v_lshlrev_b32 v{16+2*k}, 16, v{10+k}')
        g(f'v_and_b32 v{17+2*k}, 0xffff0000, v{10+k}')
    g('v_readfirstlane_b32 s53, v16')
    g.nop(4)
    for k in range(10):
        g(f'v_subrev_f32 v{16+k}, s53, v{16+k}')
    g('v_pk_mul_f32 v[26:27], v[16:17], v[16:17]')
    g('v_pk_add_f32 v[28:29], v[16:17], v[18:19]')
    for k in range(1, 5):
        g(f'v_pk_fma_f32 v[26:27], v[{16+2*k}:{17+2*k}], v[{16+2*k}:{17+2*k}], v[26:27]')
        if k >= 2:
            g(f'v_pk_add_f32 v[28:29], v[28:29], v[{16+2*k}:{17+2*k}]')
    g('v_add_f32 v27, v26, v27')
    g('v_add_f32 v26, v28, v29')
    g.wave_reduce([26, 27], [28, 29])
    ln_scalars(g, 26, 27, 's53', 28, 29, 30)
    g('s_waitcnt vmcnt(1)')
    g('v_lshlrev_b32 v16, 16, v15')
    g('v_and_b32 v17, 0xffff0000, v15')
    g('v_sub_f32 v16, v16, v28')
    g('v_sub_f32 v17, v17, v28')
    g('v_cvt_pk_bf16_f32 v18, v16, v17')
    g('v_lshlrev_b32 v16, 16, v18')
    g('v_and_b32 v17, 0xffff0000, v18')
    g('v_mul_f32 v16, v16, v29')
    g('v_mul_f32 v17, v17, v29')
    g('v_cvt_pk_bf16_f32 v18, v16, v17')
    g(f'ds_write_b32 v4, v18 offset:{L_XN}')
    g('s_waitcnt lgkmcnt(0)')
    g.stamp(2)
    g('s_barrier')
    g('s_waitcnt vmcnt(0)')
    own_tag(g, 2)
    g(f's_cmp_ge_u32 {sR}, 16')
    g('s_cbranch_scc1 L_pathB')
    g('s_branch L_pre0')

    g.label('L_w1')
    g(f's_mov_b32 s49, {20*8192}')
    g('v_mul_lo_u32 v8, v6, s49')
    g('v_lshl_add_u32 v8, v7, 4, v8')
    g(f's_mul_i32 s48, {sJ}, {80*8192}')
    g(f's_lshl_b32 s49, {sH}, 8')
    g('s_add_u32 s48, s48, s49')
    g('s_waitcnt lgkmcnt(0)')
    g.addr('s[40:41]', S_WQ, 's48')
    for t in range(20):
        g(f'global_load_dwordx4 v[{80+4*t}:{83+4*t}], v8, s[40:41]' + ('' if 'wqnt0' in opts else ' nt'))
        if t < 19:
            g('s_add_u32 s40, s40, 8192')
            g('s_addc_u32 s41, s41, 0')
    g(f'global_load_dword v2, v1, {WS} sc1')
    if 'bq' in opts:
        g('s_barrier')
    g.stamp(1)
    gen_sel(g, 192, 16, 17)
    g(f's_lshl_b32 s48, {sH}, 3')
    g(f's_add_u32 s48, s48, {sJ}')
    g('s_lshl_b32 s48, s48, 10')
    g(f's_add_u32 s49, s48, {Q1L}')
    g.addr('s[44:45]', S_WS, 's49')
    g(f's_add_u32 s49, s48, {Q1G}')
    g.addr('s[46:47]', S_WS, 's49')
    g('v_mul_u32_u24 v19, 40, v6')
    g('s_mov_b32 s56, 0')
    g('s_mov_b32 s57, -1')
    g('s_barrier')
    for k in range(5):
        g(f'ds_read_b64 v[{16+2*k}:{17+2*k}], v19 offset:{L_XN+8*k}')
    g('s_waitcnt lgkmcnt(0)')

    def perms(t):
        a = 160 + 4 * (t % 4)
        for v in range(4):
            g(f'v_perm_b32 v{a+v}, v{16+t//2}, v{16+t//2}, v{192+2*v+(t&1)}')
    perms(0)
    perms(1)
    for t in range(20):
        if t + 2 < 20:
            perms(t + 2)
        g(f's_waitcnt vmcnt({19-t+1})')
        a = 160 + 4 * (t % 4)
        c = '0' if t == 0 else 'v[200:203]'
        g(f'v_mfma_f32_16x16x32_bf16 v[200:203], v[{a}:{a+3}], v[{80+4*t}:{83+4*t}], {c}')
        if t == 17:
            pass
    g('s_waitcnt vmcnt(0)')
    g(f'v_readfirstlane_b32 {sTAG}, v2')
    g.nop(4)
    g(f's_mul_i32 {sTAG}, {sTAG}, 5')
    g(f's_add_u32 {sTAG}, {sTAG}, 0x9E3779B9')
    g(f'v_mov_b32 v207, {sTAG}')
    g('v_cndmask_b32 v204, v200, v202, s[56:57]')
    g('v_cndmask_b32 v205, v201, v203, s[56:57]')
    if 'q1g' not in opts:
        g(f'global_store_dwordx4 v3, v[204:207], s[44:45]')
    g(f'global_store_dwordx4 v3, v[204:207], s[46:47] sc1')
    g.stamp(2)
    g(f's_cmp_ge_u32 {sR}, 16')
    g('s_cbranch_scc1 L_pathB')
    g('s_branch L_bp1')

    g.label('L_b0')
    g('s_barrier')
    g('s_waitcnt vmcnt(0)')
    own_tag(g, 2)
    if 'wukb0' in opts:
        g(f's_cmp_ge_u32 {sWAVE}, 4')
        g('s_cbranch_scc0 L_pathB')
        wuk_dma()
        g('s_waitcnt vmcnt(0)')
    g('s_branch L_pathB')

    g.label('L_pre')
    pre(tagwait=True)
    g(f's_cmp_eq_u32 {sWAVE}, {XWA}')
    g('s_cbranch_scc0 L_pre_nx')
    xidstore()
    g.label('L_pre_nx')
    g('s_barrier')
    g.label('L_bp')
    g('s_barrier')
    if 'halfdma' in opts:
        g(f's_cmp_ge_u32 {sWAVE}, 4')
        g('s_cbranch_scc1 L_a_dmadone')
    if 'fulldma' not in opts:
        dma()
    g.stamp(13)
    g('s_branch L_a_dmadone')
    g.label('L_pre0')
    pre()
    g('s_branch L_bp')
    g.label('L_bp1')
    g('s_barrier')
    if 'fulldma' not in opts:
        dma()
    g.stamp(13)
    pre()
    g.label('L_a_dmadone')
    g(f's_cmp_eq_u32 {sWAVE}, 3')
    g('s_cbranch_scc0 L_a_nochk')
    g(f's_lshl_b32 s48, {sXCD}, 9')
    g(f's_add_u32 s48, s48, {XID}')
    g('v_and_b32 v9, 31, v0')
    g('v_lshlrev_b32 v9, 4, v9')
    g('v_add_u32 v9, s48, v9')
    g('s_getreg_b32 s52, hwreg(HW_REG_XCC_ID)')
    g('s_and_b32 s52, s52, 0xf')
    g('s_mov_b32 s50, 0')
    g(f's_mov_b32 {sMODE}, 0')
    g.label('L_a_chk')
    g(f'global_load_dwordx4 v[12:15], v9, {WS} sc1')
    g('s_add_u32 s50, s50, 1')
    g('s_waitcnt vmcnt(0)')
    g(f'v_cmp_eq_u32 vcc, {sTAG}, v15')
    g('s_cmp_eq_u64 vcc, exec')
    g('s_cbranch_scc1 L_a_chk_ok')
    g('s_cmp_lt_u32 s50, 64')
    g('s_cbranch_scc1 L_a_chk')
    g('s_branch L_a_chk_done')
    g.label('L_a_chk_ok')
    g('v_cmp_eq_u32 vcc, s52, v12')
    g('s_cmp_eq_u64 vcc, exec')
    g(f's_cselect_b32 {sMODE}, 1, 0')
    g.label('L_a_chk_done')
    g(f'v_mov_b32 v12, {sMODE}')
    g(f'ds_write_b32 v1, v12 offset:{L_MODE}')
    g.label('L_a_nochk')
    wuv_ins = []
    for tt in range(4):
        wuv_ins.append(f'global_load_dwordx4 v[{64+4*tt}:{67+4*tt}], v254, s[96:97]' + (' nt' if (('helper' not in opts and 'wuvnt0' not in opts) or 'wuvnt' in opts) else ''))
        if tt < 3:
            wuv_ins.append('s_add_u32 s96, s96, 32768')
            wuv_ins.append('s_addc_u32 s97, s97, 0')
    g('s_waitcnt vmcnt(0) lgkmcnt(0)')
    g.stamp(3)
    g('s_barrier')
    FA = 96
    skip = g.uniq('skipfa')
    g(f's_cmp_lt_u32 {sWAVE}, 4')
    g(f's_cbranch_scc0 {skip}')
    for t in range(16):
        g(f'ds_read_b128 v[{FA+4*t}:{FA+4*t+3}], v{36+(t%4)} offset:{256*(t//4)}')
    g.label(skip)

    def vdma(half):
        g(f's_and_b32 s49, {sWAVE}, 3')
        g('s_lshl_b32 s49, s49, 13')
        g(f's_add_u32 m0, s49, {L_V + 32768 * half}')
        g.nop(1)
        for n in range(8):
            g('global_load_lds_dwordx4 v41, s[98:99]' + (' nt' if 'vnt' in opts else ''))
            if n < 7:
                g('s_add_u32 m0, m0, 1024')
                g('s_add_u32 s98, s98, 8192')
                g('s_addc_u32 s99, s99, 0')
        if half == 0:
            g(f's_add_u32 s98, s98, {8192 + 192 * 1024}')
            g('s_addc_u32 s99, s99, 0')
    if 'vb4' not in opts and 'vaft' not in opts:
        g(f's_cmp_ge_u32 {sWAVE}, 4')
        g('s_cbranch_scc0 L_a_nv1')
        vdma(0)
        if 'vall' in opts:
            vdma(1)
        g.label('L_a_nv1')
    g(f'ds_read_b32 v12, v1 offset:{L_MODE}')
    g(f's_mov_b32 s63, {f2u(KAPPA):#x}')
    if 'ppqa' in opts:
        g.poll3('qa', [(f'global_load_dwordx4 v[{{d}}], v248, {WS} offset:{1024*i} sc1', 16 + 4 * i, 3, None) for i in range(4)], MA, 10, 11,
                [[b + 4 * i for i in range(4)] for b in (64, 160, 176)][:PK], (0, 1), optn('qasp', SP))
    else:
        g.poll2('qa', [(f'global_load_dwordx4 v[{16+4*i}:{19+4*i}], v248, {WS} offset:{1024*i} sc1', 19 + 4 * i, None) for i in range(4)], MA, 10, 11)
    for i in range(4):
        g(f'ds_write_b64 v{44+(i>>1)}, v[{16+4*i}:{17+4*i}] offset:{512*(i&1)}')
    g.stamp(4)
    if 'vaft' in opts:
        g(f's_cmp_ge_u32 {sWAVE}, 4')
        g('s_cbranch_scc0 L_a_nv2')
        vdma(0)
        g.label('L_a_nv2')
    g('s_waitcnt lgkmcnt(0)')
    g(f'v_readfirstlane_b32 {sMODE}, v12')
    g('s_barrier')
    g(f's_cmp_ge_u32 {sWAVE}, 4')
    g('s_cbranch_scc1 L_a_v')
    g.begin_tail()
    g.label('L_a_v')
    if 'vb4' in opts:
        vdma(0)
    if 'vall' not in opts and 'vpost' not in opts:
        vdma(1)
    g('s_barrier')
    if 'vpost' in opts:
        vdma(1)
    g('s_waitcnt vmcnt(0)')
    g.stamp(6)
    g('s_barrier')
    VT = 96
    for kr in range(8):
        for s2 in range(2):
            for h in range(2):
                d = VT + 8 * kr + 4 * s2 + 2 * h
                g(f'ds_read_b64_tr_b16 v[{d}:{d+1}], v40 offset:{2048*(4*kr+2*s2+h)}')
    g(f'v_mov_b32 v51, {sTAG}')
    if 'px4' in opts:
        g('s_waitcnt lgkmcnt(0)')
        g('s_branch L_a_bxg')
    else:
        g('s_branch L_a_px')
    g.end_tail()
    qreg = [192 + 4 * t for t in range(8)] + [16 + 4 * t for t in range(4)] + [80 + 4 * t for t in range(4)]
    for t in range(16):
        g(f'ds_read_b128 v[{qreg[t]}:{qreg[t]+3}], v{32+(t%4)} offset:{L_QL+256*(t//4)}')
    g(f'v_mov_b32 v63, {sTAG}')
    for t in range(16):
        g(f's_waitcnt lgkmcnt({15-t})')
        c = '0' if t == 0 else 'v[48:51]'
        g(f'v_mfma_f32_16x16x32_bf16 v[48:51], v[{FA+4*t}:{FA+4*t+3}], v[{qreg[t]}:{qreg[t]+3}], {c}')
    g.nop(8)
    g('v_max_f32 v52, v48, v49')
    g('v_max3_f32 v52, v52, v50, v51')
    g.row_reduce([52], [53], 'max')
    g(f'ds_write_b32 v47, v52 offset:{L_MB}')
    g('s_waitcnt lgkmcnt(0)')
    g('s_barrier')
    g.stamp(12)
    g(f'ds_read_b128 v[52:55], v46 offset:{L_MB}')
    g('s_waitcnt lgkmcnt(0)')
    g('v_max_f32 v52, v52, v53')
    g('v_max3_f32 v52, v52, v54, v55')
    g('v_mul_f32 v62, s63, v52')
    for k in range(4):
        g(f'v_fma_f32 v{48+k}, v{48+k}, s63, -v62')
    for k in range(4):
        g(f'v_exp_f32 v{48+k}, v{48+k}')
    g.nop(1)
    g('v_cvt_pk_bf16_f32 v60, v48, v49')
    g('v_cvt_pk_bf16_f32 v61, v50, v51')
    mode_store(g, [f'global_store_dwordx4 v58, v[60:63], {WS}'], sMODE)
    g.stamp(5)
    if 'px4' in opts:
        PR = [16 + 4 * i for i in range(4)] + [64 + 4 * i for i in range(4)]
        g('v_add_u32 v247, 16384, v246') if False else None
        g('v_add_u32 v252, 16384, v246')
        g.poll2('px', [(f'global_load_dwordx4 v[{PR[i]}:{PR[i]+3}], {"v246" if i < 4 else "v252"}, {WS} offset:{1024*(i%4)} sc1', PR[i] + 3, None) for i in range(8)],
                MA, 10, 11, hook=lambda: g('s_barrier'))
        for i in range(8):
            g(f'ds_write_b64 v56, v[{PR[i]}:{PR[i]+1}] offset:{8192*(i>>2)+1024*((i&3)>>1)+8*(i&1)}')
        g.set_exec(0xffff)
        g('ds_write_b32 v59, v18')
        g('ds_write_b32 v59, v66 offset:16')
        g('s_mov_b64 exec, -1')
        g.stamp(10)
        g('s_waitcnt lgkmcnt(0)')
        g.label('L_a_bxg')
        g('s_barrier')
    else:
        g('s_barrier')
        g.label('L_a_px')
        g.poll2('px', [(f'global_load_dwordx4 v[{16+4*i}:{19+4*i}], v246, {WS} offset:{1024*i} sc1', 19 + 4 * i, None) for i in range(4)], MA, 10, 11)
        for i in range(4):
            g(f'ds_write_b64 v56, v[{16+4*i}:{17+4*i}] offset:{1024*(i>>1)+8*(i&1)}')
        g.set_exec(0xffff)
        g('ds_write_b32 v59, v18')
        g('s_mov_b64 exec, -1')
        g.stamp(10)
        g('s_waitcnt lgkmcnt(0)')
        g('s_barrier')
    BF = 160

    def pv(lwave):
        g('ds_read_b128 v[32:35], v43')
        g('ds_read_b128 v[36:39], v43 offset:16')
        def bread(q):
            g(f'ds_read_b128 v[{BF+4*q}:{BF+4*q+3}], v42 offset:{1024*q}')
        for q in range(12):
            bread(q)
        if lwave:
            for k in range(4):
                g(f'v_mov_b32 v{88+k}, 0x3f803f80')
        g('s_waitcnt lgkmcnt(12)')
        g('v_max3_f32 v20, v32, v33, v34')
        g('v_max3_f32 v20, v20, v35, v36')
        g('v_max3_f32 v20, v20, v37, v38')
        g('v_max_f32 v20, v20, v39')
        for k in range(8):
            g(f'v_sub_f32 v{32+k}, v{32+k}, v20')
        DS = [224, 228, 232]
        nf = 1 if lwave else 4

        def fma(k):
            d = DS[k % 3]
            for r in range(nf):
                if k == 0:
                    g(f'v_mul_f32 v{236+r}, v{d+r}, v32')
                else:
                    g(f'v_fma_f32 v{236+r}, v{d+r}, v{32+k}, v{236+r}')
        for k in range(8):
            g(f's_waitcnt lgkmcnt({min(10, 14-2*k)})')
            d = DS[k % 3]
            for s2 in range(2):
                a = '88:91' if lwave else f'{VT+8*k+4*s2}:{VT+8*k+4*s2+3}'
                c = '0' if s2 == 0 else f'v[{d}:{d+3}]'
                g(f'v_mfma_f32_16x16x32_bf16 v[{d}:{d+3}], v[{a}], v[{BF+8*k+4*s2}:{BF+8*k+4*s2+3}], {c}')
            if k < 2:
                bread(12 + 2 * k)
                bread(13 + 2 * k)
            g(f'v_exp_f32 v{32+k}, v{32+k}')
            if k >= 2:
                fma(k - 2)
                if lwave:
                    g.nop(3)
        if lwave:
            g.nop(4)
        fma(6)
        if lwave:
            g.nop(4)
        else:
            g.nop(1)
        fma(7)

    g(f's_cmp_lt_u32 {sWAVE}, 4')
    g('s_cbranch_scc1 L_a_lw')
    g.begin_tail()
    g.label('L_a_lw')
    g(f's_cmp_eq_u32 {sWAVE}, 0')
    g('s_cbranch_scc0 L_a_w2')
    g('s_cmp_eq_u32 s58, 0')
    g('s_cbranch_scc0 L_a_w2')
    pv(True)
    g('v_mov_b32 v21, v236')
    g(f'v_mov_b32 v23, {sTAG}')
    g.set_exec(0xffff)
    g(f'global_store_dwordx4 v250, v[20:23], {WS} sc1')
    g('s_mov_b64 exec, -1')
    g.label('L_a_w2')
    if 'wuvlate' not in opts:
        for ins in wuv_ins:
            g(ins)
    g('s_branch L_a_s4')
    g.end_tail()
    pv(False)
    g('v_cvt_pk_bf16_f32 v48, v236, v237')
    g('v_cvt_pk_bf16_f32 v49, v238, v239')
    g(f'global_store_dwordx4 v244, v[48:51], {WS} sc1')
    g.stamp(7)
    if 'wuvlate' not in opts:
        for ins in wuv_ins:
            g(ins)
    g.label('L_a_s4')
    g('s_barrier')
    if 'wuvlate' in opts:
        for ins in wuv_ins:
            g(ins)

    if 'ppox' in opts:
        g.poll3('ox', [(f'global_load_dwordx4 v[{{d}}], v245, {WS} sc1', 16, 3, None)], MA, 10, 11, [[96], [100], [104], [108]][:PK], (0, 1), optn('oxsp', SP))
    else:
        g.poll2('ox', [(f'global_load_dwordx4 v[16:19], v245, {WS} sc1', 19, None)], MA, 10, 11)
    g.stamp(8)
    g('v_max_f32_dpp v22, v16, v16 row_ror:4 row_mask:0xf bank_mask:0xf')
    g.nop(2)
    g('v_max_f32_dpp v22, v22, v22 row_ror:8 row_mask:0xf bank_mask:0xf')
    g.nop(1)
    g('v_mov_b32 v23, v22')
    g.nop(2)
    g('v_permlane16_swap_b32 v23, v22')
    g.nop(1)
    g('v_max_f32 v22, v22, v23')
    g('v_sub_f32 v24, v16, v22')
    g('v_exp_f32 v24, v24')
    g('v_permlane32_swap_b32 v16, v17')
    g.nop(1)
    g('v_mul_f32 v22, v24, v17')
    g('v_lshlrev_b32 v25, 16, v16')
    g('v_add_f32_dpp v22, v22, v22 row_ror:4 row_mask:0xf bank_mask:0xf')
    g('v_and_b32 v26, 0xffff0000, v16')
    g.nop(1)
    g('v_add_f32_dpp v22, v22, v22 row_ror:8 row_mask:0xf bank_mask:0xf')
    g.nop(1)
    g('v_mov_b32 v23, v22')
    g.nop(2)
    g('v_permlane16_swap_b32 v23, v22')
    g.nop(1)
    g('v_add_f32 v22, v22, v23')
    g('v_rcp_f32 v22, v22')
    g.nop(1)
    g('v_mul_f32 v24, v24, v22')
    g('v_mov_b32 v23, v24')
    g.nop(2)
    g('v_permlane32_swap_b32 v23, v24')
    g.nop(1)
    g('v_mul_f32 v25, v25, v24')
    g('v_mul_f32 v26, v26, v24')
    g.nop(2)
    g('v_permlane16_swap_b32 v25, v26')
    g.nop(1)
    g('v_add_f32 v25, v25, v26')
    g.nop(2)
    g('v_add_f32_dpp v25, v25, v25 row_ror:4 row_mask:0xf bank_mask:0xf')
    g.nop(2)
    g('v_add_f32_dpp v25, v25, v25 row_ror:8 row_mask:0xf bank_mask:0xf')
    g('v_cvt_pk_bf16_f32 v25, v25, v25')
    g.nop(2)

    def ands(tt):
        a = 84 + 4 * (tt % 2)
        for v in range(4):
            g(f'v_and_b32_dpp v{a+v}, v25, v{240+v} quad_perm:[{tt},{tt},{tt},{tt}] row_mask:0xf bank_mask:0xf')
    ands(0)
    for tt in range(4):
        if tt < 3:
            ands(tt + 1)
        else:
            g.nop(2)
        a = 84 + 4 * (tt % 2)
        c = '0' if tt == 0 else 'v[92:95]'
        g(f'v_mfma_f32_16x16x32_bf16 v[92:95], v[{a}:{a+3}], v[{64+4*tt}:{67+4*tt}], {c}')
    g.set_exec(0xffffffff)
    g.nop(6)
    g(f'ds_write_b128 v247, v[92:95] offset:{L_RED}')
    g('s_mov_b64 exec, -1')
    g('s_waitcnt lgkmcnt(0)')
    g('s_barrier')
    g(f's_cmp_eq_u32 {sWAVE}, 0')
    g('s_cbranch_scc0 L_a_red')
    for w in range(8):
        g(f'ds_read_b64 v[{32+2*w}:{33+2*w}], v57 offset:{L_RED+512*w}')
    g(f'v_mov_b32 v23, {sTAG}')
    g('s_waitcnt lgkmcnt(0)')
    g('v_pk_add_f32 v[32:33], v[32:33], v[34:35]')
    g('v_pk_add_f32 v[36:37], v[36:37], v[38:39]')
    g('v_pk_add_f32 v[40:41], v[40:41], v[42:43]')
    g('v_pk_add_f32 v[44:45], v[44:45], v[46:47]')
    g('v_pk_add_f32 v[32:33], v[32:33], v[36:37]')
    g('v_pk_add_f32 v[40:41], v[40:41], v[44:45]')
    g('v_pk_add_f32 v[32:33], v[32:33], v[40:41]')
    g('v_cvt_pk_bf16_f32 v20, v32, v33')
    g.nop(2)
    g('v_mov_b32_dpp v21, v20 row_shl:1 row_mask:0xf bank_mask:0xf')
    g.set_exec(0x5555555555555555)
    mode_store(g, [f'global_store_dwordx4 v253, v[20:23], {WS}'], sMODE)
    g('s_mov_b64 exec, -1')
    g.stamp(9)
    g.label('L_a_red')
    if 'wb' in opts:
        g(f's_cmp_eq_u32 {sWAVE}, 5')
        g('s_cbranch_scc0 L_a_nwb')
        g(f's_cmp_eq_u32 {sR}, 12')
        g('s_cbranch_scc0 L_a_nwb')
        g('buffer_wbl2 sc1')
        g('s_waitcnt vmcnt(0)')
        g.label('L_a_nwb')
    if stop_after == 4:
        g('s_branch L_fin')
    g(f's_cmp_eq_u32 {sWAVE}, 7')
    g('s_cbranch_scc0 L_fin')
    g(f's_cmp_lt_u32 {sR}, 10')
    g('s_cbranch_scc0 L_fin')
    g(f's_mul_i32 s55, {sXCD}, 10')
    g(f's_add_u32 s55, s55, {sR}')
    g('v_and_b32 v7, 3, v0')
    g('v_lshrrev_b32 v6, 5, v0')
    if 'mlp2' in opts:
        g('v_lshl_add_u32 v8, v7, 1, v6')
    else:
        g('v_and_b32 v8, 1, v7')
        g('v_lshlrev_b32 v8, 2, v8')
        g('v_lshrrev_b32 v9, 1, v7')
        g('v_add_u32 v8, v8, v9')
        g('v_lshl_add_u32 v8, v6, 1, v8')
    g('s_lshl_b32 s48, s55, 3')
    g('v_add_u32 v31, s48, v8')
    g('v_lshlrev_b32 v31, 1, v31')
    g(f'global_load_ushort v30, v31, {S_X}')
    g('v_and_b32 v9, 7, v0')
    g('v_mul_u32_u24 v9, 2560, v9')
    g('v_bfe_u32 v10, v0, 3, 1')
    g('v_lshl_add_u32 v9, v10, 4, v9')
    g('s_lshr_b32 s48, s55, 4')
    g('s_lshl_b32 s48, s48, 9')
    g('s_and_b32 s49, s55, 15')
    g('s_lshl_b32 s49, s49, 5')
    g('s_add_u32 s48, s48, s49')
    if 'outp8' in opts:
        g(f's_mul_i32 s49, {sXCD}, {OCS}')
        g('s_add_u32 s48, s48, s49')
    g(f's_add_u32 s48, s48, {OUTP8 if "outp8" in opts else OUTP}')
    g('v_add_u32 v9, s48, v9')
    g('s_lshl_b32 s48, s55, 6')
    g(f's_add_u32 s48, s48, {O2P}')
    g('v_lshrrev_b32 v12, 2, v0')
    g('v_mul_u32_u24 v12, 5120, v12')
    g('v_lshl_add_u32 v12, v7, 4, v12')
    g('v_add_u32 v12, s48, v12')
    g(f'v_add_u32 v13, {16*5120}, v12')
    g(f'v_add_u32 v14, {32*5120}, v12')
    g(f'v_add_u32 v15, {48*5120}, v12')
    g(f'v_mov_b32 v44, {sTAG}')
    g('v_mov_b32 v46, 0')
    g('v_mov_b32 v47, 0')
    g(f'v_mov_b32 v19, {sTAG}')
    g('v_mov_b32 v16, 0')
    g('v_mov_b32 v17, 0')
    g('v_lshrrev_b32 v28, 2, v8')
    g('v_lshlrev_b32 v28, 5, v28')
    g('v_and_b32 v29, 3, v8')
    if 'ghf' in opts:
        g.gate('hf', 9, 10)
    g.poll2('hf', [(f'global_load_dwordx4 v[16:19], v9, {WS} sc1', 19, 0xffff)], MA, 10, 11)
    g('v_lshlrev_b32 v20, 16, v16')
    g('v_and_b32 v21, 0xffff0000, v16')
    g('v_lshlrev_b32 v22, 16, v17')
    g('v_and_b32 v23, 0xffff0000, v17')
    for ctl in ['quad_perm:[1,0,3,2]', 'quad_perm:[2,3,0,1]', 'row_half_mirror']:
        g.nop(1)
        for k in range(4):
            g(f'v_add_f32_dpp v{20+k}, v{20+k}, v{20+k} {ctl} row_mask:0xf bank_mask:0xf')
    g.nop(1)
    for k in range(4):
        g(f'ds_bpermute_b32 v{24+k}, v28, v{20+k}')
    g('s_waitcnt lgkmcnt(0)')
    g('v_cmp_eq_u32 vcc, 1, v29')
    g.nop(1)
    g('v_cndmask_b32 v24, v24, v25, vcc')
    g('v_cmp_eq_u32 vcc, 2, v29')
    g.nop(1)
    g('v_cndmask_b32 v24, v24, v26, vcc')
    g('v_cmp_eq_u32 vcc, 3, v29')
    g.nop(1)
    g('v_cndmask_b32 v16, v24, v27, vcc')
    rnd_bf16(g, 16)
    g('v_lshlrev_b32 v30, 16, v30')
    g('v_add_f32 v30, v30, v16')
    rnd_bf16(g, 30)
    if 'go2' in opts:
        g('s_sub_u32 s48, s55, 54')
        g('s_cmp_lt_u32 s55, 54')
        g('s_cselect_b32 s48, s55, s48')
        g('s_lshl_b32 s48, s48, 7')
        g(f's_add_u32 s48, s48, {PF}')
        g('v_mov_b32 v10, s48')
        g.gate('o2', 10, 11)
    if 'ppo2' in opts:
        g.poll3('o2', [(f'global_load_dwordx4 v[{{d}}], v{12+i}, {WS} sc1', 32 + 4 * i, 0, None if i < 3 else 0xffffff) for i in range(4)], MA, 10, 11,
                [[b + 4 * i for i in range(4)] for b in (48, 64, 112, 128)][:PK], (2, 3), optn('o2sp', SP))
    else:
        g.poll2('o2', [(f'global_load_dwordx4 v[{32+4*i}:{35+4*i}], v{12+i}, {WS} sc1', 32 + 4 * i, None) for i in range(3)] +
                [(f'global_load_dwordx4 v[44:47], v15, {WS} sc1', 44, 0xffffff)], MA, 10, 11)
    g.stamp(9)
    g('v_pk_add_f32 v[16:17], v[34:35], v[38:39]')
    g('v_pk_add_f32 v[18:19], v[42:43], v[46:47]')
    g('v_pk_add_f32 v[16:17], v[16:17], v[18:19]')
    g.nop(2)
    g('v_permlane32_swap_b32 v16, v17')
    g.nop(1)
    g('v_add_f32 v16, v16, v17')
    g('v_mov_b32 v17, v16')
    g.nop(2)
    g('v_permlane16_swap_b32 v17, v16')
    g.nop(1)
    g('v_add_f32 v16, v16, v17')
    g.nop(2)
    g('v_add_f32_dpp v16, v16, v16 row_ror:4 row_mask:0xf bank_mask:0xf')
    g.nop(2)
    g('v_add_f32_dpp v16, v16, v16 row_ror:8 row_mask:0xf bank_mask:0xf')
    rnd_bf16(g, 16)
    g('v_add_f32 v16, v16, v30')
    g('v_cvt_pk_bf16_f32 v16, v16, v16')
    g('s_mov_b32 exec_lo, 0xf')
    g('s_mov_b32 exec_hi, 0xf')
    g(f'global_store_short v31, v16, {S_OUT}')
    g('s_mov_b64 exec, -1')
    g('s_cmp_eq_u32 s55, 0')
    g('s_cbranch_scc0 L_fin')
    g('s_mov_b64 exec, 1')
    g(f'v_mov_b32 v2, {sTAG}')
    g(f'global_store_dword v1, v2, {WS} sc1')
    g('s_mov_b64 exec, -1')
    g('s_branch L_fin')

    g.label('L_pathB')
    g(f's_sub_u32 s54, {sR}, 16')
    g('s_lshr_b32 s48, s54, 2')
    g(f's_lshl_b32 s49, {sXCD}, 2')
    g('s_add_u32 s55, s48, s49')
    g(f's_cmp_eq_u32 {sWAVE}, 0')
    g('s_cbranch_scc0 L_b1')
    g('s_lshl_b32 s48, s55, 13')
    if 'shift' in opts:
        g(f's_cmp_ge_u32 {sXCD}, 4')
        g(f's_cselect_b32 s49, {Q1G - Q1L}, 0')
        g('s_add_u32 s49, s48, s49')
        g(f's_add_u32 s49, s49, {Q1L}')
    else:
        g(f's_add_u32 s49, s48, {Q1L}')
    g.addr('s[40:41]', S_WS, 's49')
    g(f's_add_u32 s49, s48, {Q1G}')
    g.addr('s[42:43]', S_WS, 's49')
    g('v_add_u32 v4, 4096, v3')
    g('v_and_b32 v14, 1, v6')
    g('v_lshlrev_b32 v14, 3, v14')
    g('v_lshl_add_u32 v14, v7, 4, v14')
    g('v_lshrrev_b32 v15, 1, v6')
    g('v_lshl_add_u32 v14, v15, 2, v14')
    g.poll2('q1', [(f'global_load_dwordx4 v[{32+4*k}:{35+4*k}], {"v3" if k < 4 else "v4"}, {{base}} offset:{1024*(k%4)} sc1', 35 + 4 * k, None) for k in range(8)],
            MQ, 10, 11, alt=('s[42:43]', 's[42:43]') if 'q1g' in opts else ('s[40:41]', 's[42:43]'))
    g.stamp(3)
    g('v_pk_add_f32 v[12:13], v[32:33], v[36:37]')
    g('v_pk_add_f32 v[10:11], v[40:41], v[44:45]')
    g('v_pk_add_f32 v[16:17], v[48:49], v[52:53]')
    g('v_pk_add_f32 v[18:19], v[56:57], v[60:61]')
    g('v_pk_add_f32 v[12:13], v[12:13], v[10:11]')
    g('v_pk_add_f32 v[16:17], v[16:17], v[18:19]')
    g('v_pk_add_f32 v[12:13], v[12:13], v[16:17]')
    g('v_cvt_pk_bf16_f32 v12, v12, v13')
    g(f'ds_write_b32 v14, v12 offset:{L_QB}')
    g('s_waitcnt lgkmcnt(0)')
    g('s_barrier')
    g('s_branch L_b2')
    g.label('L_b1')
    g('s_lshl_b32 s48, s55, 11')
    g('s_and_b32 s49, s54, 3')
    g('s_lshl_b32 s49, s49, 9')
    g('s_add_u32 s48, s48, s49')
    g(f's_and_b32 s49, {sWAVE}, 3')
    g('s_lshl_b32 s49, s49, 7')
    g('s_add_u32 s48, s48, s49')
    g(f's_add_u32 s48, s48, {QA8 if "qa8" in opts else QA}')
    g('v_lshlrev_b32 v9, 4, v6')
    if 'qa8' in opts:
        g('v_and_b32 v104, 1, v7')
        g('v_lshl_add_u32 v104, v104, 6, v9')
        g('v_lshrrev_b32 v105, 1, v7')
        g('v_lshl_add_u32 v104, v105, 16, v104')
        g('s_mov_b32 s56, 0xaaaaaaaa')
        g('s_mov_b32 s57, 0xaaaaaaaa')
    else:
        g('v_lshl_add_u32 v104, v7, 6, v9')
        g('s_mov_b32 s56, 0x00020002')
        g('s_mov_b32 s57, 0x00020002')
    g('v_add_u32 v104, s48, v104')
    g(f'v_mov_b32 v103, {sTAG}')
    g(f's_cmp_ge_u32 {sWAVE}, 4')
    g('s_cbranch_scc0 L_b1x')
    g.begin_tail()
    g.label('L_b1x')
    g('s_barrier')
    g('s_branch L_b2')
    g.end_tail()
    g(f's_and_b32 s49, {sWAVE}, 3')
    g('s_lshl_b32 s49, s49, 13')
    g(f's_add_u32 s49, s49, {L_TILE}')
    g('v_lshl_add_u32 v12, v7, 8, s49')
    for t in range(4):
        g(f'v_add_u32 v13, {4*t}, v6')
        g('v_xor_b32 v13, v13, v7')
        g('v_lshl_add_u32 v13, v13, 4, v12')
        for tau in range(2):
            g(f'ds_read_b128 v[{64+16*tau+4*t}:{67+16*tau+4*t}], v13 offset:{4096*tau}')
    g('s_waitcnt lgkmcnt(0)')
    g('s_barrier')
    for t in range(4):
        g(f'ds_read_b128 v[{108+4*t}:{111+4*t}], v9 offset:{L_QB+64*t}')
    for t in range(4):
        g(f's_waitcnt lgkmcnt({3-t})')
        for tau in range(2):
            c = '0' if t == 0 else f'v[{96+8*tau}:{99+8*tau}]' if False else ('0' if t == 0 else f'v[{124+4*tau}:{127+4*tau}]')
            g(f'v_mfma_f32_16x16x32_bf16 v[{124+4*tau}:{127+4*tau}], v[{64+16*tau+4*t}:{67+16*tau+4*t}], v[{108+4*t}:{111+4*t}], {c}')
    if 'qa8' not in opts:
        g('s_mov_b32 exec_lo, 0x00030003')
        g('s_mov_b32 exec_hi, 0x00030003')
        g.nop(6)
    else:
        g.nop(8)
    g('v_cvt_pk_bf16_f32 v96, v124, v125')
    g('v_cvt_pk_bf16_f32 v97, v126, v127')
    g('v_cvt_pk_bf16_f32 v98, v128, v129')
    g('v_cvt_pk_bf16_f32 v99, v130, v131')
    g('v_cndmask_b32 v100, v96, v98, s[56:57]')
    g('v_cndmask_b32 v101, v97, v99, s[56:57]')
    g(f'global_store_dwordx4 v104, v[100:103], {WS} sc1')
    g('s_mov_b64 exec, -1')
    g.stamp(4)
    g.label('L_b2')
    if stop_after in (2, 3, 4):
        g('s_branch L_fin')
    if 'pace' in opts or 'paceml' in opts or 'pacem2' in opts or 'pacem3' in opts:
        g(f's_cmp_eq_u32 {sWAVE}, 0')
        g('s_cbranch_scc0 L_b2p')
        if 'paceml' in opts or 'pacem2' in opts:
            g('s_cmp_lt_u32 s54, 5')
            g('s_cbranch_scc1 L_b2p')
        if 'pacem2' in opts or 'pacem3' in opts:
            g('s_cmp_ge_u32 s54, 12')
            g('s_cbranch_scc1 L_b2p')
        g('v_lshrrev_b32 v12, 1, v0')
        g('v_lshlrev_b32 v12, 11, v12')
        g('v_and_b32 v13, 1, v0')
        g('v_lshl_add_u32 v12, v13, 10, v12')
        g(f'v_add_u32 v12, {QA + 1008}, v12')
        g('s_mov_b32 s50, 0')
        g.label('L_b2q')
        g(f'global_load_dwordx4 v[16:19], v12, {WS} sc1')
        g('s_add_u32 s50, s50, 1')
        g('s_waitcnt vmcnt(0)')
        g(f'v_cmp_ne_u32 vcc, {sTAG}, v19')
        g('s_cmp_eq_u64 vcc, 0')
        g('s_cbranch_scc1 L_b2p')
        g('s_cmp_lt_u32 s50, 64')
        g('s_cbranch_scc1 L_b2q')
        g.label('L_b2p')
    if 'pacepf' in opts:
        g(f's_cmp_eq_u32 {sWAVE}, 0')
        g('s_cbranch_scc0 L_b2u')
        g('s_cmp_lt_u32 s54, 5')
        g('s_cbranch_scc1 L_b2u')
        g(f's_lshl_b32 s48, {sXCD}, 8')
        g(f's_add_u32 s48, s48, {PF}')
        g('v_and_b32 v12, NPF, v0'.replace('NPF', str(int([o for o in opts if o.startswith('npf')][0][3:]) - 1 if any(o.startswith('npf') for o in opts) else 3)))
        g('v_lshl_add_u32 v12, v12, 4, s48')
        g('s_mov_b32 s50, 0')
        g.label('L_b2t')
        g(f'global_load_dwordx4 v[16:19], v12, {WS} sc1')
        g('s_add_u32 s50, s50, 1')
        g('s_waitcnt vmcnt(0)')
        g(f'v_cmp_ne_u32 vcc, {sTAG}, v19')
        g('s_cmp_eq_u64 vcc, 0')
        g('s_cbranch_scc1 L_b2u')
        g('s_cmp_lt_u32 s50, 256')
        g('s_cbranch_scc1 L_b2t')
        g.label('L_b2u')
    if 'pacemll' in opts:
        g(f's_cmp_eq_u32 {sWAVE}, 0')
        g('s_cbranch_scc0 L_b2r')
        g('s_cmp_lt_u32 s54, 5')
        g('s_cbranch_scc1 L_b2r')
        g(f's_lshl_b32 s48, {sXCD}, 12')
        g(f's_add_u32 s48, s48, {MLL}')
        g('v_add_u32 v12, s48, v3')
        g('s_mov_b32 s50, 0')
        g.label('L_b2s')
        g(f'global_load_dwordx4 v[16:19], v12, {WS} sc1')
        g('s_add_u32 s50, s50, 1')
        g('s_waitcnt vmcnt(0)')
        g(f'v_cmp_ne_u32 vcc, {sTAG}, v19')
        g('s_cmp_eq_u64 vcc, 0')
        g('s_cbranch_scc1 L_b2r')
        g('s_cmp_lt_u32 s50, 256')
        g('s_cbranch_scc1 L_b2s')
        g.label('L_b2r')
    g('s_barrier')
    g.stamp(5)
    g('v_lshrrev_b32 v8, 3, v7')
    g('v_and_b32 v9, 7, v0')
    g('v_lshl_add_u32 v10, v8, 2, v6')
    g('s_cmp_lt_u32 s54, 5')
    g('s_cbranch_scc1 L_b_wo')
    if 'helper' in opts:
        g('s_cmp_ge_u32 s54, 12')
        g('s_cbranch_scc1 L_b_help')
        g('s_sub_u32 s48, s54, 5')
        g(f's_mul_i32 s49, {sXCD}, 7')
        g('s_add_u32 s58, s49, s48')
        g('s_cmp_lt_u32 s58, 54')
        g('s_cbranch_scc0 L_fin')
        g('s_branch L_b_mlpld')
        g.label('L_b_help')
        g('s_sub_u32 s48, s54, 12')
        g(f's_lshl_b32 s49, {sXCD}, 2')
        g('s_add_u32 s48, s48, s49')
        g('s_lshl_b32 s48, s48, 8')
        g(f's_lshl_b32 s49, {sWAVE}, 19')
        g('s_add_u32 s48, s48, s49')
        g.addr('s[40:41]', S_WUV, 's48')
        g('v_lshlrev_b32 v11, 13, v6')
        g('v_lshl_add_u32 v11, v7, 4, v11')
        for t in range(16):
            g(f'global_load_dwordx4 v[{64+4*t}:{67+4*t}], v11, s[40:41]' + (' nt' if 'helpnt' in opts else ''))
            if t < 15:
                g('s_add_u32 s40, s40, 32768')
                g('s_addc_u32 s41, s41, 0')
        g('s_waitcnt vmcnt(0)')
        g.stamp(6)
        g('s_branch L_fin')
    else:
        g('s_sub_u32 s48, s54, 5')
        g('s_lshr_b32 s49, s48, 1')
        g('s_lshl_b32 s49, s49, 3')
        g(f's_add_u32 s49, s49, {sXCD}')
        g('s_cmp_lt_u32 s49, 27')
        g('s_cbranch_scc0 L_fin')
        g('s_lshl_b32 s49, s49, 1')
        g('s_and_b32 s48, s48, 1')
        g('s_add_u32 s58, s49, s48')
        g('s_branch L_b_mlpld')
    g.label('L_b_wo')
    g(f's_lshl_b32 s48, {sXCD}, 3')
    g(f's_add_u32 s48, s48, {sWAVE}')
    g(f's_mul_i32 s48, s48, {64*1280}')
    g('s_lshl_b32 s49, s54, 8')
    g('s_add_u32 s48, s48, s49')
    g.addr('s[40:41]', S_WO, 's48')
    g('v_mul_u32_u24 v11, 1280, v6')
    g('v_lshl_add_u32 v11, v7, 4, v11')
    for t in range(16):
        g(f'global_load_dwordx4 v[{32+4*t}:{35+4*t}], v11, s[40:41]' + ('' if 'wont0' in opts else ' nt'))
        if t < 15:
            g('s_add_u32 s40, s40, 5120')
            g('s_addc_u32 s41, s41, 0')
    gen_mask(g, 192, 16, 17)
    g(f's_lshr_b32 s48, {sWAVE}, 1')
    g('s_lshl_b32 s48, s48, 2')
    g(f's_lshl_b32 s49, {sXCD}, 4')
    g('s_add_u32 s48, s48, s49')
    g('s_lshl_b32 s48, s48, 9')
    g(f's_and_b32 s49, {sWAVE}, 1')
    g('s_lshl_b32 s49, s49, 8')
    g('s_add_u32 s48, s48, s49')
    g(f's_add_u32 s48, s48, {C4}')
    g('v_lshlrev_b32 v11, 9, v6')
    g('v_lshl_add_u32 v11, v7, 4, v11')
    g('v_add_u32 v11, s48, v11')
    g('v_lshlrev_b32 v26, 5, v7')
    g('v_lshl_add_u32 v26, v6, 4, v26')
    g(f's_lshl_b32 s48, {sWAVE}, 9')
    g('v_add_u32 v26, s48, v26')
    g('v_lshlrev_b32 v28, 3, v0')
    g(f's_mul_i32 s48, {sXCD}, 2560')
    g('s_lshl_b32 s49, s54, 9')
    g('s_add_u32 s48, s48, s49')
    g(f's_add_u32 s48, s48, {OUTP8 if "outp8" in opts else OUTP}')
    g('v_lshrrev_b32 v29, 1, v0')
    g('v_lshl_add_u32 v29, v29, 4, s48')
    if 'outp8' in opts:
        g('v_and_b32 v96, 1, v0')
        g(f'v_mul_u32_u24 v96, {OCS}, v96')
        g('v_add_u32 v96, v96, v29')
        for k in range(1, 4):
            g(f'v_add_u32 v{96+k}, {2*OCS*k}, v96')
        g('s_mov_b32 s56, 0xaaaaaaaa')
        g('s_mov_b32 s57, 0xaaaaaaaa')
    g(f'v_mov_b32 v147, {sTAG}')
    if g.stamps:
        g.stamp(8)
        g('s_waitcnt vmcnt(0)')
        g.stamp(9)
    if 'gc4' in opts:
        g(f's_lshl_b32 s48, {sXCD}, 16')
        g('s_lshl_b32 s49, s54, 13')
        g('s_add_u32 s48, s48, s49')
        g(f's_lshl_b32 s49, {sWAVE}, 10')
        g('s_add_u32 s48, s48, s49')
        g(f's_add_u32 s48, s48, {OX}')
        g('v_mov_b32 v13, s48')
        g.gate('c4', 13, 14)
    g.poll2('c4', [(f'global_load_dwordx4 v[16:19], v11, {WS} sc1', 19, None)], MB, 13, 14)
    g.stamp(6)
    g('v_lshlrev_b32 v20, 16, v16')
    g('v_and_b32 v21, 0xffff0000, v16')
    g('v_lshlrev_b32 v22, 16, v17')
    g('v_and_b32 v23, 0xffff0000, v17')
    g.nop(1)
    g('v_permlane32_swap_b32 v20, v22')
    g('v_permlane32_swap_b32 v21, v23')
    g.nop(1)
    g('v_add_f32 v20, v20, v22')
    g('v_add_f32 v21, v21, v23')
    g.nop(2)
    g('v_permlane16_swap_b32 v20, v21')
    g.nop(1)
    g('v_add_f32 v20, v20, v21')
    g('v_cvt_pk_bf16_f32 v20, v20, v20')
    g.nop(2)

    def wands(t):
        a = 224 + 4 * (t % 4)
        for v in range(4):
            g(f'v_and_b32_dpp v{a+v}, v20, v{192+v} row_newbcast:{t} row_mask:0xf bank_mask:0xf')
    wands(0)
    wands(1)
    for t in range(16):
        if t + 2 < 16:
            wands(t + 2)
        a = 224 + 4 * (t % 4)
        c = '0' if t == 0 else 'v[200:203]'
        g(f'v_mfma_f32_16x16x32_bf16 v[200:203], v[{a}:{a+3}], v[{32+4*t}:{35+4*t}], {c}')
    g.set_exec(0xffffffff)
    g.nop(6)
    g(f'ds_write_b128 v26, v[200:203] offset:{L_RED}')
    g('s_mov_b64 exec, -1')
    g('s_waitcnt lgkmcnt(0)')
    g('s_barrier')
    g(f's_cmp_eq_u32 {sWAVE}, 0')
    g('s_cbranch_scc0 L_fin')
    for w in range(8):
        g(f'ds_read_b64 v[{160+2*w}:{161+2*w}], v28 offset:{L_RED+512*w}')
    g('s_waitcnt lgkmcnt(0)')
    g('v_pk_add_f32 v[160:161], v[160:161], v[162:163]')
    g('v_pk_add_f32 v[164:165], v[164:165], v[166:167]')
    g('v_pk_add_f32 v[168:169], v[168:169], v[170:171]')
    g('v_pk_add_f32 v[172:173], v[172:173], v[174:175]')
    g('v_pk_add_f32 v[160:161], v[160:161], v[164:165]')
    g('v_pk_add_f32 v[168:169], v[168:169], v[172:173]')
    g('v_pk_add_f32 v[160:161], v[160:161], v[168:169]')
    g('v_cvt_pk_bf16_f32 v144, v160, v161')
    g.nop(2)
    if 'outp8' in opts:
        g('v_mov_b32_dpp v161, v144 row_shl:1 row_mask:0xf bank_mask:0xf')
        g('v_mov_b32_dpp v162, v144 row_shr:1 row_mask:0xf bank_mask:0xf')
        g('v_cndmask_b32 v145, v161, v144, s[56:57]')
        g('v_cndmask_b32 v144, v144, v162, s[56:57]')
        for k in range(4):
            g(f'global_store_dwordx4 v{96+k}, v[144:147], {WS} sc1')
    else:
        g('v_mov_b32_dpp v145, v144 row_shl:1 row_mask:0xf bank_mask:0xf')
        g.set_exec(0x5555555555555555)
        g(f'global_store_dwordx4 v29, v[144:147], {WS} sc1')
        g('s_mov_b64 exec, -1')
    g.stamp(7)
    g('s_branch L_fin')

    def gemv(n, src, wbase, d, ab=224, reuse=False, keep=False):
        ns = n if keep else 4
        def pm(t):
            a = ab + 4 * (t % ns)
            for v in range(4):
                g(f'v_perm_b32 v{a+v}, v{src+t//2}, v{src+t//2}, v{192+2*v+(t&1)}')
        if not reuse:
            pm(0)
            if n > 1:
                pm(1)
        for t in range(n):
            if not reuse and t + 2 < n:
                pm(t + 2)
            a = ab + 4 * (t % ns)
            c = '0' if t == 0 else f'v[{d}:{d+3}]'
            g(f'v_mfma_f32_16x16x32_bf16 v[{d}:{d+3}], v[{a}:{a+3}], v[{wbase+4*t}:{wbase+4*t+3}], {c}')

    def mlp2():
        AF = 64; BFm = 144; DF = [224, 228, 232, 236, 32]
        M1, M2, M3 = 's[60:61]', 's[62:63]', 's[96:97]'
        DM = ['s[98:99]', 's[100:101]', 's[4:5]', 's[6:7]', 's[56:57]']
        HS = 's[40:41]'

        def smask(pair, m32):
            a = int(pair[2:].split(':')[0])
            g(f's_mov_b32 s{a}, {m32:#x}')
            g(f's_mov_b32 s{a+1}, {m32:#x}')
        g('v_and_b32 v8, 7, v0')
        g('v_xor_b32 v8, v8, v6')
        g('v_cmp_le_u32 vcc, 4, v8')
        g('v_mov_b32 v12, s22')
        g('v_mov_b32 v13, s24')
        g('v_mov_b32 v14, s23')
        g('v_mov_b32 v15, s25')
        g('v_cndmask_b32 v18, v12, v13, vcc')
        g('v_cndmask_b32 v19, v14, v15, vcc')
        g('v_and_b32 v9, 3, v8')
        g('v_lshlrev_b32 v9, 4, v9')
        g('v_lshrrev_b32 v10, 3, v0')
        g('v_mul_u32_u24 v10, 3456, v10')
        g('v_add_u32 v10, v10, v9')
        g('s_lshl_b32 s48, s58, 6')
        g(f's_mul_i32 s49, {sWAVE}, {80*3456}')
        g('s_add_u32 s48, s48, s49')
        g('v_add_u32 v10, s48, v10')
        g('v_add_co_u32 v18, vcc, v18, v10')
        g(f's_mul_i32 s49, {sWAVE}, 10240')
        g(f's_add_u32 m0, s49, {L_W}')
        g('v_addc_co_u32 v19, vcc, 0, v19, vcc')
        g.nop(1)
        for n in range(10):
            g('global_load_lds_dwordx4 v[18:19], off')
            if n < 9:
                g(f'v_add_co_u32 v18, vcc, {8*3456}, v18')
                g('s_add_u32 m0, m0, 1024')
                g.nop(1)
                g('v_addc_co_u32 v19, vcc, 0, v19, vcc')
                g.nop(1)
        g(f's_mul_i32 s55, {sWAVE}, 5')
        g('s_mul_i32 s49, s58, 40960')
        for n in range(5):
            g(f's_add_u32 s48, s55, {n}')
            g('s_lshl_b32 s48, s48, 6')
            g('v_add_u32 v20, s48, v0')
            g('v_mul_u32_u24 v21, 3277, v20')
            g('v_lshrrev_b32 v21, 18, v21')
            g('v_mul_u32_u24 v22, 80, v21')
            g('v_sub_u32 v22, v20, v22')
            g('v_and_b32 v23, 7, v21')
            g('v_lshlrev_b32 v23, 1, v23')
            g('v_xor_b32 v22, v22, v23')
            g('v_mul_u32_u24 v21, 1280, v21')
            g('v_lshl_add_u32 v21, v22, 4, v21')
            g('v_add_u32 v21, s49, v21')
            g('s_lshl_b32 s48, s48, 4')
            g(f's_add_u32 m0, s48, {L_D}')
            g.nop(1)
            g(f'global_load_lds_dwordx4 v21, {S_WD}')
        g(f's_lshl_b32 s48, {sWAVE}, 6')
        g('s_min_u32 s48, s48, 256')
        g('v_and_b32 v17, 31, v0')
        g('v_lshlrev_b32 v17, 1, v17')
        g('v_lshrrev_b32 v29, 5, v0')
        g('v_add_u32 v17, v17, v29')
        g('v_add_u32 v17, s48, v17')
        g('v_lshlrev_b32 v244, 2, v17')
        g(f'global_load_dword v240, v244, {S_X}')
        g(f'global_load_ushort v241, v1, {S_X}')
        g.stamp(6)
        g('v_and_b32 v20, 0xfffffff0, v17')
        g('v_bfe_u32 v21, v17, 1, 2')
        g('v_lshl_add_u32 v20, v21, 2, v20')
        g('v_bfe_u32 v21, v17, 3, 1')
        g('v_lshl_add_u32 v20, v21, 1, v20')
        g('v_and_b32 v21, 1, v17')
        g('v_add_u32 v20, v20, v21')
        g('v_lshlrev_b32 v245, 2, v20')
        g('v_lshrrev_b32 v8, 2, v0')
        g('v_and_b32 v9, 3, v0')
        g('v_and_b32 v10, 1, v9')
        g('v_lshlrev_b32 v10, 2, v10')
        g(f's_and_b32 s48, {sWAVE}, 3')
        g('v_add_u32 v10, s48, v10')
        g('v_bfe_u32 v11, v8, 1, 2')
        g('v_xor_b32 v10, v10, v11')
        g('v_lshlrev_b32 v10, 4, v10')
        g('v_lshl_add_u32 v10, v8, 7, v10')
        g('v_lshrrev_b32 v11, 1, v9')
        g('v_lshl_add_u32 v10, v11, 3, v10')
        g(f'v_add_u32 v24, {L_W}, v10')
        g(f'v_add_u32 v25, {L_W + 40960}, v10')
        g('v_and_b32 v12, 7, v8')
        g('v_lshlrev_b32 v12, 1, v12')
        g('v_mul_u32_u24 v13, 1280, v8')
        g('v_and_b32 v14, 1, v9')
        g('v_lshl_add_u32 v13, v14, 3, v13')
        g('v_lshl_add_u32 v13, v11, 4, v13')
        g(f'v_add_u32 v13, {L_D}, v13')
        g(f's_mul_i32 s55, {sWAVE}, 10')
        for n in range(5):
            g(f's_add_u32 s48, s55, {2*n}')
            g('s_and_b32 s49, s48, 15')
            g('s_andn2_b32 s48, s48, 15')
            g('v_xor_b32 v14, s49, v12')
            g('v_add_u32 v14, s48, v14')
            g(f'v_lshl_add_u32 v{26+n if n < 3 else 34+n}, v14, 4, v13')
        DA = [26, 27, 28, 37, 38]
        g('v_lshlrev_b32 v31, 4, v6')
        g(f's_and_b32 s48, {sWAVE}, 1')
        g('s_lshl_b32 s48, s48, 4')
        g(f's_lshr_b32 s49, {sWAVE}, 1')
        g('s_and_b32 s49, s49, 1')
        g('s_lshl_b32 s49, s49, 2')
        g('s_add_u32 s48, s48, s49')
        g('v_lshrrev_b32 v20, 5, v0')
        g('v_lshlrev_b32 v20, 3, v20')
        g('v_and_b32 v21, 3, v0')
        g('v_add_u32 v20, v20, v21')
        g('v_add_u32 v20, s48, v20')
        g('v_lshlrev_b32 v39, 1, v20')
        g('v_cmp_le_u32 vcc, 5, v7')
        g('v_subrev_u32 v20, 5, v7')
        g('v_mov_b32 v21, 16')
        g('v_cndmask_b32 v20, v7, v20, vcc')
        g('v_cndmask_b32 v21, 0, v21, vcc')
        g('v_lshl_add_u32 v20, v20, 7, v21')
        g('v_lshl_add_u32 v20, v6, 5, v20')
        g('s_mul_i32 s48, s58, 5120')
        g(f's_mul_i32 s49, {sWAVE}, 640')
        g('s_add_u32 s48, s48, s49')
        g(f's_add_u32 s48, s48, {O2P}')
        g('v_add_u32 v30, s48, v20')
        g(f'v_mov_b32 v58, {sTAG}')
        g(f's_lshl_b32 s48, {sWAVE}, 3')
        g('v_mov_b32 v246, s48')
        smask(M1, 0x22222222); smask(M2, 0x44444444); smask(M3, 0x88888888)
        for n in range(5):
            m16 = (1 << n) | (1 << (n + 5))
            smask(DM[n], m16 | (m16 << 16))
        smask(HS, 0x03e003e0)
        g('s_mov_b32 s51, 0')
        M3X = 'm3' in opts
        M5 = 'm5' in opts
        Z = [8, 9, 10, 11, 14]
        if M5:
            g(f'v_mov_b32 v20, {L_ST + 48}')
            g(f'v_add_u32 v21, {L_CB}, v31')
            for n in range(5):
                g(f'v_cndmask_b32 v{Z[n]}, v20, v21, {DM[n]}')
            g(f's_cmp_eq_u32 {sWAVE}, 5')
            g('s_cbranch_scc0 L_m3_nz')
            for k in range(4):
                g(f'v_mov_b32 v{20+k}, 0')
            g('s_mov_b64 exec, 1')
            g(f'ds_write_b128 v1, v[20:23] offset:{L_ST + 48}')
            g('s_mov_b64 exec, -1')
            g('s_waitcnt lgkmcnt(0)')
            g.label('L_m3_nz')
        if M3X:
            g(f'v_mov_b32 v20, {L_ST + 16}')
            g(f'v_add_u32 v21, {L_CB}, v31')
            for n in range(5):
                g(f'v_cndmask_b32 v{Z[n]}, v20, v21, {DM[n]}')
            g(f's_cmp_eq_u32 {sWAVE}, 5')
            g('s_cbranch_scc0 L_m3_nz')
            for k in range(4):
                g(f'v_mov_b32 v{20+k}, 0')
            g('s_mov_b64 exec, 3')
            g(f'ds_write_b128 v3, v[20:23] offset:{L_ST}')
            g('s_mov_b64 exec, -1')
            g('s_waitcnt lgkmcnt(0)')
            g.label('L_m3_nz')
        g('s_waitcnt vmcnt(0)')
        g.stamp(7)
        g('s_barrier')
        g('v_lshlrev_b32 v241, 16, v241')
        for n in range(5):
            g(f'ds_read_b64_tr_b16 v[{DF[n]}:{DF[n]+1}], v{DA[n]}')
            g(f'ds_read_b64_tr_b16 v[{DF[n]+2}:{DF[n]+3}], v{DA[n]} offset:20480')
        g('v_readfirstlane_b32 s53, v241')
        g(f's_cmp_lt_u32 {sWAVE}, 4')
        g('s_cbranch_scc0 L_m2_nw')
        for t in range(20):
            for h in range(2):
                off = 4096 * t + 2048 * h
                base = 24 if off < 40960 else 25
                g(f'ds_read_b64_tr_b16 v[{AF+4*t+2*h}:{AF+4*t+2*h+1}], v{base} offset:{off % 40960}')
        for k in range(4):
            g(f'v_mov_b32 v{48+k}, 0x3f803f80')
        g('s_waitcnt lgkmcnt(0)')
        for t in range(20):
            c = '0' if t == 0 else 'v[44:47]'
            g(f'v_mfma_f32_16x16x32_bf16 v[44:47], v[{AF+4*t}:{AF+4*t+3}], v[48:51], {c}')
        g.nop(8)
        g(f'v_cndmask_b32 v36, v44, v45, {M1}')
        g(f'v_cndmask_b32 v36, v36, v46, {M2}')
        g(f'v_cndmask_b32 v36, v36, v47, {M3}')
        g.label('L_m2_nw')
        g(f's_cmp_lt_u32 {sWAVE}, 5')
        g('s_cbranch_scc0 L_m2_b1')
        g(f's_lshl_b32 s48, {sWAVE}, 9')
        g(f's_add_u32 s48, s48, {OUTP}')
        g('v_lshrrev_b32 v247, 5, v0')
        g('v_mul_u32_u24 v247, 2560, v247')
        g('v_and_b32 v248, 31, v0')
        g('v_lshl_add_u32 v247, v248, 4, v247')
        g('v_add_u32 v247, s48, v247')
        for k in range(1, 4):
            g(f'v_add_u32 v{247+k}, {5120*k}, v247')
        g('v_lshlrev_b32 v242, 16, v240')
        g('v_and_b32 v243, 0xffff0000, v240')
        g.poll2('outp', [(f'global_load_dwordx4 v[{160+4*k}:{163+4*k}], v{247+k}, {WS} sc1', 163 + 4 * k, None) for k in range(4)], MB, 12, 13)
        g.stamp(8)
        for k in range(4):
            g(f'v_lshlrev_b32 v{176+4*k}, 16, v{160+4*k}')
            g(f'v_and_b32 v{177+4*k}, 0xffff0000, v{160+4*k}')
            g(f'v_lshlrev_b32 v{178+4*k}, 16, v{161+4*k}')
            g(f'v_and_b32 v{179+4*k}, 0xffff0000, v{161+4*k}')
            if k == 1:
                g('v_pk_add_f32 v[176:177], v[176:177], v[180:181]')
                g('v_pk_add_f32 v[178:179], v[178:179], v[182:183]')
        g('v_pk_add_f32 v[184:185], v[184:185], v[188:189]')
        g('v_pk_add_f32 v[186:187], v[186:187], v[190:191]')
        g('v_pk_add_f32 v[176:177], v[176:177], v[184:185]')
        g('v_pk_add_f32 v[178:179], v[178:179], v[186:187]')
        g.nop(1)
        g('v_permlane32_swap_b32 v176, v178')
        g('v_permlane32_swap_b32 v177, v179')
        g.nop(1)
        g('v_add_f32 v16, v176, v178')
        g('v_add_f32 v17, v177, v179')
        g('v_cvt_pk_bf16_f32 v16, v16, v17')
        g('v_lshlrev_b32 v18, 16, v16')
        g('v_and_b32 v19, 0xffff0000, v16')
        g('v_pk_add_f32 v[18:19], v[18:19], v[242:243]')
        g('v_cvt_pk_bf16_f32 v16, v18, v19')
        g(f'ds_write_b32 v245, v16 offset:{L_HB}')
        if not M3X:
            g('v_lshlrev_b32 v18, 16, v16')
            g('v_and_b32 v19, 0xffff0000, v16')
            g('v_subrev_f32 v18, s53, v18')
            g('v_subrev_f32 v19, s53, v19')
            g('v_add_f32 v160, v18, v19')
            g('v_mul_f32 v161, v18, v18')
            g('v_fmac_f32 v161, v19, v19')
            g.wave_reduce([160, 161], [162, 163])
            g('s_mov_b64 exec, 1')
            g(f'ds_write_b64 v246, v[160:161] offset:{L_ST}')
            g('s_mov_b64 exec, -1')
        g('s_waitcnt lgkmcnt(0)')
        g.label('L_m2_b1')
        g(f's_mov_b32 s52, {f2u(1.0/640):#x}')
        g('s_barrier')
        g.stamp(9)
        g(f's_cmp_lt_u32 {sWAVE}, 4')
        g(f's_cbranch_scc0 {"L_m3_hi" if M3X else "L_m2_b3"}')
        if M3X:
            g.begin_tail()
            g.label('L_m3_hi')
            g(f's_cmp_eq_u32 {sWAVE}, 5')
            g('s_cbranch_scc0 L_m2_b3')
            g('v_lshlrev_b32 v21, 2, v0')
            g(f'ds_read_b128 v[16:19], v3 offset:{L_HB}')
            g(f'ds_read_b32 v20, v21 offset:{L_HB + 1024}')
            g('v_mov_b32 v74, s53')
            g('v_mov_b32 v75, s53')
            g('s_waitcnt lgkmcnt(0)')
            for k in range(5):
                g(f'v_lshlrev_b32 v{64+2*k}, 16, v{16+k}')
                g(f'v_and_b32 v{65+2*k}, 0xffff0000, v{16+k}')
            for k in range(5):
                g(f'v_pk_add_f32 v[{64+2*k}:{65+2*k}], v[{64+2*k}:{65+2*k}], v[74:75] neg_lo:[0,1] neg_hi:[0,1]')
            g('v_pk_mul_f32 v[76:77], v[64:65], v[64:65]')
            g('v_pk_add_f32 v[78:79], v[64:65], v[66:67]')
            for k in range(1, 5):
                g(f'v_pk_fma_f32 v[76:77], v[{64+2*k}:{65+2*k}], v[{64+2*k}:{65+2*k}], v[76:77]')
                if k >= 2:
                    g(f'v_pk_add_f32 v[78:79], v[78:79], v[{64+2*k}:{65+2*k}]')
            g('v_add_f32 v77, v76, v77')
            g('v_add_f32 v76, v78, v79')
            g.wave_reduce([76, 77], [78, 79])
            ln_scalars(g, 76, 77, 's53', 80, 81, 84)
            g(f'v_mov_b32 v82, {sTAG}')
            g('s_mov_b64 exec, 1')
            g(f'ds_write_b128 v1, v[80:83] offset:{L_ST}')
            g('s_mov_b64 exec, -1')
            g('s_waitcnt lgkmcnt(0)')
            g('s_branch L_m2_b3')
            g.end_tail()
            for t in range(12):
                g(f'ds_read_b128 v[{BFm+4*t}:{BFm+4*t+3}], v31 offset:{L_HB+64*t}')
            for t in range(20):
                if t in (0, 1, 2, 3, 4, 6, 8, 10, 12, 14, 16, 18):
                    need = t if t < 4 else t + 1
                    g(f's_waitcnt lgkmcnt({min(19, t+11) - need + (1 if t > 14 else 0)})')
                acc = 40 + 4 * (t & 1)
                c = '0' if t < 2 else f'v[{acc}:{acc+3}]'
                if t == 0 and 'm2st' in opts:
                    g.stamp(12)
                g(f'v_mfma_f32_16x16x32_bf16 v[{acc}:{acc+3}], v[{AF+4*t}:{AF+4*t+3}], v[{BFm+4*t}:{BFm+4*t+3}], {c}')
                if t + 12 <= 19:
                    g(f'ds_read_b128 v[{BFm+4*(t+12)}:{BFm+4*(t+12)+3}], v31 offset:{L_HB+64*(t+12)}')
                if t == 14:
                    g(f'ds_read_b128 v[48:51], v1 offset:{L_ST}')
            if 'm2st' in opts:
                g.stamp(13)
            g.label('L_m3_chk')
            g('s_waitcnt lgkmcnt(0)')
            g(f'v_cmp_ne_u32 vcc, {sTAG}, v50')
            g('v_mul_f32 v48, v48, v36')
            g('s_cbranch_vccnz L_m3_re')
            g.begin_tail()
            g.label('L_m3_re')
            g(f'ds_read_b128 v[48:51], v1 offset:{L_ST}')
            g('s_add_u32 s51, s51, 1')
            g(f's_cmp_lt_u32 s51, {1 << 20}')
            g('s_cbranch_scc1 L_m3_chk')
            g('s_waitcnt lgkmcnt(0)')
            g('s_branch L_m3_go')
            g.end_tail()
            g.label('L_m3_go')
            g.nop(4)
            g('v_pk_add_f32 v[40:41], v[40:41], v[44:45]')
            g('v_pk_add_f32 v[42:43], v[42:43], v[46:47]')
            g(f'v_cndmask_b32 v16, v40, v41, {M1}')
            g(f'v_cndmask_b32 v16, v16, v42, {M2}')
            g(f'v_cndmask_b32 v16, v16, v43, {M3}')
            g('v_sub_f32 v16, v16, v48')
            g('v_mul_f32 v16, v16, v49')
            rnd_bf16(g, 16)
            g('v_mov_b32 v17, v16')
            g.nop(2)
            g('v_permlane16_swap_b32 v16, v17')
            g.nop(1)
            g('v_max_f32 v16, 0, v16')
            g('v_mul_f32 v16, v16, v17')
            g('v_cvt_pk_bf16_f32 v16, v16, v16')
            g('s_mov_b32 exec_lo, 0xf')
            g('s_mov_b32 exec_hi, 0xf')
            g(f'ds_write_b16 v39, v16 offset:{L_CB}')
            if 'm2st' in opts:
                g.stamp(14)
            g('s_mov_b64 exec, -1')
            g('s_waitcnt lgkmcnt(0)')
            g.label('L_m2_b3')
            g('s_barrier')
            g.stamp(10)
            for n in range(5):
                g(f'ds_read_b128 v[{BFm+4*n}:{BFm+4*n+3}], v{Z[n]}')
            for n in range(5):
                g(f's_waitcnt lgkmcnt({4-n})')
                c = '0' if n == 0 else 'v[40:43]'
                g(f'v_mfma_f32_16x16x32_bf16 v[40:43], v[{DF[n]}:{DF[n]+3}], v[{BFm+4*n}:{BFm+4*n+3}], {c}')
            g.stamp(11)
            g('s_mov_b32 exec_lo, 0x03ff03ff')
            g('s_mov_b32 exec_hi, 0x03ff03ff')
            g.nop(6)
            g(f'v_cndmask_b32 v60, v40, v42, {HS}')
            g(f'v_cndmask_b32 v61, v41, v43, {HS}')
            g(f'global_store_dwordx4 v30, v[58:61], {WS} sc1')
            g('s_mov_b64 exec, -1')
            if g.stamps:
                g.stamp(15)
                g('s_barrier')
                g('s_branch L_fin2')
            g('s_branch L_fin')
            return
        if 'm2x' in opts:
            g('s_mov_b32 exec_lo, 0x000f000f')
            g('s_mov_b32 exec_hi, 0x000f000f')
        M6 = 'm6' in opts
        if M5:
            for t in range(12 if M6 else 10):
                g(f'ds_read_b128 v[{BFm+4*t}:{BFm+4*t+3}], v31 offset:{L_HB+64*t}')
        g(f'ds_read_b128 v[48:51], v1 offset:{L_ST}')
        g(f'ds_read_b128 v[52:55], v1 offset:{L_ST+16}')
        g(f'ds_read_b64 v[56:57], v1 offset:{L_ST+32}')
        for t in range(12 if not M5 else 0):
            g(f'ds_read_b128 v[{BFm+4*t}:{BFm+4*t+3}], v31 offset:{L_HB+64*t}')
        g2 = Gen()
        g2('v_pk_add_f32 v[48:49], v[48:49], v[50:51]')
        g2('v_pk_add_f32 v[52:53], v[52:53], v[54:55]')
        g2('v_pk_add_f32 v[48:49], v[48:49], v[56:57]')
        g2('v_pk_add_f32 v[48:49], v[48:49], v[52:53]')
        ln_scalars(g2, 48, 49, 's53', 50, 51, 52)
        g2('v_mul_f32 v50, v50, v36')
        chunks = [[]]
        for ln in g2.L:
            if 's_nop' in ln:
                chunks.append([])
                continue
            if len(chunks[-1]) >= 2:
                chunks.append([])
            chunks[-1].append(ln.strip())
        chunks = [c for c in chunks if c]
        if M6:
            sl = {
                4: ['v_pk_add_f32 v[48:49], v[48:49], v[50:51]', 'v_pk_add_f32 v[52:53], v[52:53], v[54:55]'],
                5: ['v_pk_add_f32 v[48:49], v[48:49], v[56:57]'],
                6: ['v_pk_add_f32 v[48:49], v[48:49], v[52:53]'],
                7: ['v_mul_f32 v48, s52, v48', 'v_mul_f32 v49, s52, v49'],
                8: ['v_fma_f32 v49, -v48, v48, v49', 'v_add_f32 v50, s53, v48'],
                9: ['v_max_f32 v49, 0, v49', 'v_cvt_pk_bf16_f32 v50, v50, v50'],
                10: ['v_cvt_pk_bf16_f32 v49, v49, v49', 'v_and_b32 v50, 0xffff0000, v50'],
                11: ['v_and_b32 v49, 0xffff0000, v49', 'v_mul_f32 v50, v50, v36'],
                12: ['v_add_f32 v49, 0x3727c5ac, v49'],
                13: ['v_cvt_pk_bf16_f32 v49, v49, v49'],
                14: ['v_and_b32 v49, 0xffff0000, v49'],
                15: ['v_sqrt_f32 v49, v49'],
                16: ['v_cvt_pk_bf16_f32 v49, v49, v49'],
                17: ['v_and_b32 v49, 0xffff0000, v49'],
                18: ['v_rcp_f32 v51, v49'],
            }
            waits = {0: 14, 1: 14, 2: 14, 3: 14, 4: 4, 12: 6, 14: 4, 16: 2, 18: 0}
            for t in range(20):
                if t in waits:
                    g(f's_waitcnt lgkmcnt({waits[t]})')
                acc = 40 + 4 * (t & 1)
                c = '0' if t < 2 else f'v[{acc}:{acc+3}]'
                if t == 0 and 'm2st' in opts:
                    g.stamp(12)
                g(f'v_mfma_f32_16x16x32_bf16 v[{acc}:{acc+3}], v[{AF+4*t}:{AF+4*t+3}], v[{BFm+4*t}:{BFm+4*t+3}], {c}')
                if t == 19 and 'm2st' in opts:
                    g.stamp(13)
                if t < 8:
                    g(f'ds_read_b128 v[{BFm+4*(t+12)}:{BFm+4*(t+12)+3}], v31 offset:{L_HB+64*(t+12)}')
                for ln in sl.get(t, []):
                    g(ln)
        elif M5:
            flat = [ln.strip() for ln in g2.L]
            flat = [ln for ln in flat if 's_nop' not in ln]
            slots = {t: [] for t in range(20)}
            t = 4
            for ln in flat:
                cap = 1 if t < 10 else 2
                if len(slots[t]) >= cap or (slots[t] and slots[t][-1].startswith(('v_sqrt', 'v_rcp'))):
                    t += 1
                slots[t].append(ln)
            assert t <= 19
            order = [f'B{i}' for i in range(10)] + ['S0', 'S1', 'S2'] + [f'B{i}' for i in range(10, 20)]
            for t in range(20):
                issued = 13 + min(t, 10)
                need = order.index(f'B{t}')
                if t == 4:
                    need = max(need, order.index('S2'))
                if t <= 4 or t % 2 == 0:
                    if t > 4:
                        nx = order.index(f'B{min(t+1, 19)}')
                        if nx < issued:
                            need = max(need, nx)
                    g(f's_waitcnt lgkmcnt({issued - need - 1})')
                elif order.index(f'B{t}') >= 13 + min(t - 1, 10):
                    g(f's_waitcnt lgkmcnt({issued - need - 1})')
                acc = 40 + 4 * (t & 1)
                c = '0' if t < 2 else f'v[{acc}:{acc+3}]'
                if t == 0 and 'm2st' in opts:
                    g.stamp(12)
                g(f'v_mfma_f32_16x16x32_bf16 v[{acc}:{acc+3}], v[{AF+4*t}:{AF+4*t+3}], v[{BFm+4*t}:{BFm+4*t+3}], {c}')
                if t == 19 and 'm2st' in opts:
                    g.stamp(13)
                if t < 10:
                    g(f'ds_read_b128 v[{BFm+4*(t+10)}:{BFm+4*(t+10)+3}], v31 offset:{L_HB+64*(t+10)}')
                for ln in slots[t]:
                    g(ln)
        assert M5 or len(chunks) <= 19, len(chunks)
        for t in range(20 if not M5 else 0):
            g(f's_waitcnt lgkmcnt({min(19, t+11) - t})')
            acc = 40 + 4 * (t & 1)
            c = '0' if t < 2 else f'v[{acc}:{acc+3}]'
            if t == 0 and 'm2st' in opts:
                g.stamp(12)
            g(f'v_mfma_f32_16x16x32_bf16 v[{acc}:{acc+3}], v[{AF+4*t}:{AF+4*t+3}], v[{BFm+4*t}:{BFm+4*t+3}], {c}')
            if t == 19 and 'm2st' in opts:
                g.stamp(13)
            if t + 12 <= 19:
                g(f'ds_read_b128 v[{BFm+4*(t+12)}:{BFm+4*(t+12)+3}], v31 offset:{L_HB+64*(t+12)}')
            if t < len(chunks):
                for ln in chunks[t]:
                    g(ln)
        g.nop(8)
        g('v_pk_add_f32 v[40:41], v[40:41], v[44:45]')
        g('v_pk_add_f32 v[42:43], v[42:43], v[46:47]')
        g(f'v_cndmask_b32 v16, v40, v41, {M1}')
        g(f'v_cndmask_b32 v16, v16, v42, {M2}')
        g(f'v_cndmask_b32 v16, v16, v43, {M3}')
        g('v_sub_f32 v16, v16, v50')
        g('v_mul_f32 v16, v16, v51')
        rnd_bf16(g, 16)
        g('v_mov_b32 v17, v16')
        g.nop(2)
        g('v_permlane16_swap_b32 v16, v17')
        g.nop(1)
        g('v_max_f32 v16, 0, v16')
        g('v_mul_f32 v16, v16, v17')
        g('v_cvt_pk_bf16_f32 v16, v16, v16')
        g('s_mov_b32 exec_lo, 0xf')
        g('s_mov_b32 exec_hi, 0xf')
        g(f'ds_write_b16 v39, v16 offset:{L_CB}')
        if 'm2st' in opts:
            g.stamp(14)
        g('s_mov_b64 exec, -1')
        g('s_waitcnt lgkmcnt(0)')
        g.label('L_m2_b3')
        g('s_barrier')
        g.stamp(10)
        if M5:
            for n in range(5):
                g(f'ds_read_b128 v[{BFm+4*n}:{BFm+4*n+3}], v{Z[n]}')
            for n in range(5):
                g(f's_waitcnt lgkmcnt({4-n})')
                c = '0' if n == 0 else 'v[40:43]'
                g(f'v_mfma_f32_16x16x32_bf16 v[40:43], v[{DF[n]}:{DF[n]+3}], v[{BFm+4*n}:{BFm+4*n+3}], {c}')
            g.stamp(11)
        else:
            g(f'ds_read_b128 v[16:19], v31 offset:{L_CB}')
            g('s_waitcnt lgkmcnt(0)')
            g.stamp(11)
        SETS = [44, 48, 52]

        def mk(n):
            a = SETS[n % 3]
            for k in range(4):
                g(f'v_cndmask_b32 v{a+k}, 0, v{16+k}, {DM[n]}')
        if not M5:
            mk(0)
            mk(1)
        for n in range(5 if not M5 else 0):
            c = '0' if n == 0 else 'v[40:43]'
            a = SETS[n % 3]
            g(f'v_mfma_f32_16x16x32_bf16 v[40:43], v[{DF[n]}:{DF[n]+3}], v[{a}:{a+3}], {c}')
            if n + 2 < 5:
                mk(n + 2)
        g('s_mov_b32 exec_lo, 0x03ff03ff')
        g('s_mov_b32 exec_hi, 0x03ff03ff')
        g.nop(6)
        g(f'v_cndmask_b32 v60, v40, v42, {HS}')
        g(f'v_cndmask_b32 v61, v41, v43, {HS}')
        g(f'global_store_dwordx4 v30, v[58:61], {WS} sc1')
        g('s_mov_b64 exec, -1')
        if g.stamps:
            g.stamp(15)
            g('s_barrier')
            g('s_branch L_fin2')
        g('s_branch L_fin')

    g.label('L_b_mlpld')
    if stop_after == 5:
        g('s_branch L_fin')
    if 'mlp2' in opts:
        mlp2()
    def mlp1():
        gen_sel(g, 192, 16, 17)
        if 'mlrot' in opts:
            g('s_and_b32 s57, s58, 1')
            g('s_lshl_b32 s57, s57, 2')
            g(f's_add_u32 s57, s57, {sWAVE}')
            g('s_and_b32 s57, s57, 7')
        else:
            g(f's_mov_b32 s57, {sWAVE}')
        g('v_and_b32 v26, 1, v6')
        g('v_lshlrev_b32 v26, 2, v26')
        g('v_lshl_add_u32 v26, v9, 3, v26')
        g('v_lshrrev_b32 v27, 1, v6')
        g('v_add_u32 v26, v26, v27')
        g('v_lshlrev_b32 v26, 2, v26')
        g(f's_lshl_b32 s48, {sWAVE}, 8')
        g('v_add_u32 v26, s48, v26')
        g('v_cmp_le_u32 vcc, 4, v9')
        g('v_mov_b32 v12, s22')
        g('v_mov_b32 v13, s24')
        g('v_mov_b32 v14, s23')
        g('v_mov_b32 v15, s25')
        g('v_cndmask_b32 v12, v12, v13, vcc')
        g('v_cndmask_b32 v13, v14, v15, vcc')
        g('v_and_b32 v14, 3, v0')
        g('v_lshlrev_b32 v14, 4, v14')
        g('s_lshl_b32 s48, s58, 6')
        g(f's_mul_i32 s49, s57, {80*3456}')
        g('s_add_u32 s48, s48, s49')
        g('v_add_u32 v14, s48, v14')
        g(f'v_mul_u32_u24 v15, {8*3456}, v10')
        g('v_add_u32 v15, v15, v14')
        g(f'v_mul_u32_u24 v16, {2*3456}, v10')
        g('v_add_u32 v16, v16, v14')
        g(f'v_add_u32 v16, {64*3456}, v16')
        for t in range(10):
            if t == 0:
                src = 15
            elif t == 8:
                src = 16
            g(f'v_add_co_u32 v18, vcc, v12, v{src}')
            g.nop(2)
            g('v_addc_co_u32 v19, vcc, 0, v13, vcc')
            g(f'global_load_dwordx4 v[{64+4*t}:{67+4*t}], v[18:19], off' + ('' if 'gunt0' in opts else ' sc0 nt' if 'gusc0' in opts else ' nt'))
            g(f'v_add_u32 v{src}, 3456, v{src}')
        g('s_lshl_b32 s48, s58, 5')
        g(f's_mul_i32 s48, s48, 1280')
        g(f's_lshl_b32 s49, {sWAVE}, 7')
        g('s_add_u32 s48, s48, s49')
        g.addr('s[40:41]', S_WD, 's48')
        g(f'v_mul_u32_u24 v11, {4*1280}, v10')
        g('v_lshl_add_u32 v11, v9, 4, v11')
        for t in range(4):
            g(f'global_load_dwordx4 v[{104+4*t}:{107+4*t}], v11, s[40:41] offset:{1280*t}' + ('' if 'wdnt0' in opts else ' nt'))
        g(f's_cmp_lt_u32 {sWAVE}, 2')
        g('s_cbranch_scc0 L_b_nod2')
        g('s_add_u32 s40, s40, 1024')
        g('s_addc_u32 s41, s41, 0')
        for t in range(4):
            g(f'global_load_dwordx4 v[{120+4*t}:{123+4*t}], v11, s[40:41] offset:{1280*t}' + ('' if 'wdnt0' in opts else ' nt'))
        g.label('L_b_nod2')
        g(f's_lshl_b32 s48, {sWAVE}, 8')
        g('s_min_u32 s48, s48, 1024')
        g('v_and_b32 v17, 31, v0')
        g('v_lshlrev_b32 v17, 3, v17')
        g('v_lshrrev_b32 v29, 5, v0')
        g('v_lshl_add_u32 v17, v29, 2, v17')
        g('v_add_u32 v143, s48, v17')
        g(f'global_load_dword v140, v143, {S_X}')
        g(f'global_load_ushort v141, v1, {S_X}')
        g.stamp(6)
        g('s_waitcnt vmcnt(0)')
        g.stamp(7)
        g('v_lshlrev_b32 v141, 16, v141')
        g.nop(1)
        g('v_readfirstlane_b32 s53, v141')
        gen_mask(g, 220, 16, 17)
        for v in range(4):
            g(f'v_and_b32 v{220+v}, 0x3f803f80, v{220+v}')
        g.nop(2)
        for t in range(10):
            c = '0' if t == 0 else 'v[200:203]'
            g(f'v_mfma_f32_16x16x32_bf16 v[200:203], v[220:223], v[{64+4*t}:{67+4*t}], {c}')
        g.nop(8)
        class_combine(g, 200)
        g.set_exec(0x00ff00ff00ff00ff)
        g('ds_write2_b32 v26, v200, v202 offset0:0 offset1:2')
        g('s_mov_b64 exec, -1')
        g('s_waitcnt lgkmcnt(0)')
        g('s_barrier')
        g('v_lshlrev_b32 v29, 2, v0')
        for w in range(8):
            g(f'ds_read_b32 v{160+w}, v29 offset:{256*w}')
        g('s_waitcnt lgkmcnt(0)')
        g('v_add_f32 v160, v160, v161')
        g('v_add_f32 v162, v162, v163')
        g('v_add_f32 v164, v164, v165')
        g('v_add_f32 v166, v166, v167')
        g('v_add_f32 v160, v160, v162')
        g('v_add_f32 v164, v164, v166')
        g('v_add_f32 v142, v160, v164')
        g('s_barrier')
        g('s_mul_i32 s48, s57, 160')
        g('v_lshlrev_b32 v27, 4, v10')
        g('v_add_u32 v27, s48, v27')
        g('v_lshlrev_b32 v28, 2, v10')
        g('v_add_u32 v28, s48, v28')
        g('v_lshlrev_b32 v30, 3, v10')
        g('v_and_b32 v31, 31, v0')
        g('v_lshlrev_b32 v31, 1, v31')
        g('v_lshlrev_b32 v14, 6, v9')
        g('v_lshl_add_u32 v14, v6, 4, v14')
        g(f's_mul_i32 s48, s58, 5120')
        g(f's_lshl_b32 s49, {sWAVE}, 9')
        g('s_add_u32 s48, s48, s49')
        g(f's_add_u32 s48, s48, {O2P}')
        g('v_add_u32 v14, s48, v14')
        g(f'v_add_u32 v15, {8*512}, v14')
        g(f'v_mov_b32 v202, {sTAG}')
        g(f's_lshl_b32 s48, {sWAVE}, 3')
        g('v_mov_b32 v144, s48')
        g(f's_cmp_lt_u32 {sWAVE}, 5')
        g('s_cbranch_scc0 L_m_b1')
        g(f's_lshl_b32 s48, {sWAVE}, 9')
        if 'outp8' in opts:
            g(f's_mul_i32 s49, {sXCD}, {OCS}')
            g('s_add_u32 s48, s48, s49')
        g(f's_add_u32 s48, s48, {OUTP8 if "outp8" in opts else OUTP}')
        g('v_lshrrev_b32 v152, 5, v0')
        g('v_mul_u32_u24 v152, 2560, v152')
        g('v_and_b32 v153, 31, v0')
        g('v_lshl_add_u32 v152, v153, 4, v152')
        g('v_add_u32 v152, s48, v152')
        for k in range(1, 4):
            g(f'v_add_u32 v{152+k}, {5120*k}, v152')
        g('v_lshlrev_b32 v148, 16, v140')
        g('v_and_b32 v149, 0xffff0000, v140')
        if 'goutp' in opts:
            g(f's_add_u32 s48, s58, {sWAVE}')
            g('s_and_b32 s48, s48, 15')
            g(f's_lshl_b32 s49, {sXCD}, 4')
            g('s_add_u32 s48, s48, s49')
            g('s_lshl_b32 s48, s48, 9')
            g(f's_add_u32 s48, s48, {C4}')
            g('v_mov_b32 v12, s48')
            g.gate('outp', 12, 13)
        if 'ppoutp' in opts:
            g.poll3('outp', [(f'global_load_dwordx4 v[{{d}}], v{152+k}, {WS} sc1', 160 + 4 * k, 3, None) for k in range(4)], MB, 12, 13,
                    [[b + 4 * i for i in range(4)] for b in (32, 48, 240)][:PK], (0, 1), optn('outpsp', SP))
        else:
            g.poll2('outp', [(f'global_load_dwordx4 v[{160+4*k}:{163+4*k}], v{152+k}, {WS} sc1', 163 + 4 * k, None) for k in range(4)], MB, 12, 13)
        g.stamp(8)
        for k in range(4):
            g(f'v_lshlrev_b32 v{176+4*k}, 16, v{160+4*k}')
            g(f'v_and_b32 v{177+4*k}, 0xffff0000, v{160+4*k}')
            g(f'v_lshlrev_b32 v{178+4*k}, 16, v{161+4*k}')
            g(f'v_and_b32 v{179+4*k}, 0xffff0000, v{161+4*k}')
            if k == 1:
                g('v_pk_add_f32 v[176:177], v[176:177], v[180:181]')
                g('v_pk_add_f32 v[178:179], v[178:179], v[182:183]')
        g('v_pk_add_f32 v[184:185], v[184:185], v[188:189]')
        g('v_pk_add_f32 v[186:187], v[186:187], v[190:191]')
        g('v_pk_add_f32 v[176:177], v[176:177], v[184:185]')
        g('v_pk_add_f32 v[178:179], v[178:179], v[186:187]')
        g.nop(1)
        g('v_permlane32_swap_b32 v176, v178')
        g('v_permlane32_swap_b32 v177, v179')
        g.nop(1)
        g('v_add_f32 v16, v176, v178')
        g('v_add_f32 v17, v177, v179')
        g('v_cvt_pk_bf16_f32 v16, v16, v17')
        g('v_lshlrev_b32 v18, 16, v16')
        g('v_and_b32 v19, 0xffff0000, v16')
        g('v_pk_add_f32 v[18:19], v[18:19], v[148:149]')
        g('v_cvt_pk_bf16_f32 v16, v18, v19')
        g(f'ds_write_b32 v143, v16 offset:{L_HB}')
        g('v_lshlrev_b32 v18, 16, v16')
        g('v_and_b32 v19, 0xffff0000, v16')
        g('v_subrev_f32 v18, s53, v18')
        g('v_subrev_f32 v19, s53, v19')
        g('v_add_f32 v160, v18, v19')
        g('v_mul_f32 v161, v18, v18')
        g('v_fmac_f32 v161, v19, v19')
        g.wave_reduce([160, 161], [162, 163])
        g('s_mov_b64 exec, 1')
        g(f'ds_write_b64 v144, v[160:161] offset:{L_ST}')
        g('s_mov_b64 exec, -1')
        g('s_waitcnt lgkmcnt(0)')
        g.label('L_m_b1')
        g('s_barrier')
        g.stamp(9)
        g(f'ds_read_b128 v[176:179], v27 offset:{L_HB}')
        g(f'ds_read_b32 v180, v28 offset:{L_HB+128}')
        g(f's_cmp_eq_u32 {sWAVE}, 7')
        g('s_cbranch_scc1 L_m_st')
        g.begin_tail()
        g.label('L_m_st')
        g(f'ds_read_b128 v[160:163], v1 offset:{L_ST}')
        g(f'ds_read_b128 v[164:167], v1 offset:{L_ST+16}')
        g(f'ds_read_b64 v[168:169], v1 offset:{L_ST+32}')
        g('s_branch L_m_ns')
        g.end_tail()
        g.label('L_m_ns')
        g('s_waitcnt lgkmcnt(0)')
        gemv(10, 176, 64, 208)
        g.nop(8)
        class_combine(g, 208)
        g.set_exec(0x00ff00ff00ff00ff)
        g('ds_write2_b32 v26, v208, v210 offset0:0 offset1:2')
        g('s_mov_b64 exec, -1')
        g('s_waitcnt lgkmcnt(0)')
        g('s_barrier')
        g.stamp(10)
        if 'go2' in opts:
            g(f's_cmp_eq_u32 {sWAVE}, 6')
            g('s_cbranch_scc0 L_m_nf')
            g('s_lshl_b32 s48, s58, 7')
            g(f's_add_u32 s48, s48, {PF + 12}')
            g('v_mov_b32 v16, s48')
            g('s_mov_b64 exec, 1')
            g(f'global_store_dword v16, v202, {WS} sc1')
            g('s_mov_b64 exec, -1')
            g.label('L_m_nf')
        g(f's_cmp_eq_u32 {sWAVE}, 7')
        g('s_cbranch_scc0 L_m_b3')
        for w in range(8):
            g(f'ds_read_b32 v{184+w}, v29 offset:{256*w}')
        g('v_pk_add_f32 v[160:161], v[160:161], v[162:163]')
        g('v_pk_add_f32 v[164:165], v[164:165], v[166:167]')
        g('v_pk_add_f32 v[160:161], v[160:161], v[168:169]')
        g('v_pk_add_f32 v[160:161], v[160:161], v[164:165]')
        ln_scalars(g, 160, 161, 's53', 170, 171, 172)
        g('v_mul_f32 v170, v170, v142')
        g('s_waitcnt lgkmcnt(0)')
        g('v_pk_add_f32 v[184:185], v[184:185], v[186:187]')
        g('v_pk_add_f32 v[188:189], v[188:189], v[190:191]')
        g('v_pk_add_f32 v[184:185], v[184:185], v[188:189]')
        g('v_add_f32 v16, v184, v185')
        g('v_sub_f32 v16, v16, v170')
        g('v_mul_f32 v16, v16, v171')
        rnd_bf16(g, 16)
        g('v_mov_b32 v17, v16')
        g.nop(2)
        g('v_permlane32_swap_b32 v16, v17')
        g.nop(1)
        g('v_max_f32 v16, 0, v16')
        g('v_mul_f32 v16, v16, v17')
        g('v_cvt_pk_bf16_f32 v16, v16, v16')
        g(f'ds_write_b16 v31, v16 offset:{L_CB}')
        g('s_waitcnt lgkmcnt(0)')
        g.label('L_m_b3')
        g('s_barrier')
        g(f'ds_read_b64 v[16:17], v30 offset:{L_CB}')
        g('s_waitcnt lgkmcnt(0)')
        g.stamp(11)

        def down(base, vo, reuse=False):
            gemv(4, 16, base, 204, reuse=reuse, keep=True)
            g.nop(8)
            class_combine(g, 204, out2=205)
            g.set_exec(0x00ff00ff00ff00ff)
            g(f'global_store_dwordx4 v{vo}, v[202:205], {WS} sc1')
            g('s_mov_b64 exec, -1')
        down(104, 14)
        g(f's_cmp_lt_u32 {sWAVE}, 2')
        g('s_cbranch_scc0 L_m_done')
        down(120, 15, reuse=True)
        g.label('L_m_done')
    if 'mlp2' not in opts:
        mlp1()
        if g.stamps:
            g.stamp(15)
            g('s_barrier')
            g('s_branch L_fin2')

    g.label('L_fin')
    g.stamp(15)
    g.label('L_fin2')
    g.stamp_flush()
    g.label('L_end')
    g('s_endpgm')
    body = g.text()

    hdr = open('cdna_kernels/' + KN[:-7] + '.s.ref').read().split('\n')
    head = []
    for line in hdr:
        if line.startswith('; @launch'):
            head.append(f'; @launch grid=(256,1,1) block=(512,1,1) lds={LDS_BYTES2 if "mlp2" in opts else LDS_BYTES}')
        elif line.startswith(';'):
            head.append(line)
        else:
            break
    out = '\n'.join(head) + '\n'
    out += '.amdgcn_target "amdgcn-amd-amdhsa--gfx950"\n.text\n'
    out += f'.globl {KN}\n.p2align 8\n.type {KN},@function\n{KN}:\n'
    out += body
    out += f'''.section .rodata,"a"
.p2align 6
.amdhsa_kernel {KN}
  .amdhsa_next_free_vgpr 256
  .amdhsa_next_free_sgpr 102
  .amdhsa_accum_offset 256
  .amdhsa_group_segment_fixed_size 0
  .amdhsa_kernarg_size 104
  .amdhsa_user_sgpr_count 2
  .amdhsa_user_sgpr_kernarg_segment_ptr 1
  .amdhsa_system_sgpr_workgroup_id_x 1
.end_amdhsa_kernel
'''
    return out


if __name__ == '__main__':
    import argparse
    ap = argparse.ArgumentParser()
    ap.add_argument('-o', default='k.s')
    ap.add_argument('--stamps', action='store_true')
    ap.add_argument('--stop', type=int, default=None)
    ap.add_argument('--opts', default='')
    a = ap.parse_args()
    open(a.o, 'w').write(build(a.stamps, a.stop, tuple(a.opts.split(','))))
```

```python
import sys, struct

KN = 'sequential_preLN__compressed_kv_cla__glu_gated_reglu__decode_kernel'

EPOCH = 0
XID = 0x1000
PF = 0x3000
Q1L = 0x10000
Q1G = 0x50000
QA = 0x90000
MLL = 0xA0000
C4 = 0xA8000
MLX = 0xC8000
OUTP = 0xE8000
O2P = 0x100000
OX = 0x180000
OPL = 0x200000
QA8 = 0x280000
OUTP8 = 0x300000
OCS = 0x8000
STAMPS = 0x800000

L_XN = 0
L_QB = 256
L_MB = 512
L_LB = 768
L_PB = 1024
L_RED = 3072
L_CB = 7168
L_HB = 8192
L_ST = 9472
L_MODE = 9728
L_TAG = 9732
L_QL = 10240
L_V = 26624
L_TILE = 59392
LDS_BYTES = 124928
L_W = 10240
L_D = L_W + 81920
LDS_BYTES2 = L_D + 40960

S_X, S_CKV, S_WQ, S_WUK, S_WUV, S_WO, S_WG, S_WU, S_WD, S_OUT, S_DBG, S_WS = (
    's[8:9]', 's[10:11]', 's[12:13]', 's[14:15]', 's[16:17]', 's[18:19]', 's[22:23]', 's[24:25]', 's[26:27]',
    's[28:29]', 's[30:31]', 's[32:33]')
sXCD, sR, sWAVE, sH, sJ, sTAG = 's34', 's35', 's36', 's37', 's38', 's39'
POLL_LIMIT = 1 << 17


def f2u(x):
    return struct.unpack('<I', struct.pack('<f', x))[0]


class Gen:
    def __init__(s, stamps=False, stop_after=None):
        s.L = []
        s.tail = []
        s.n = 0
        s.stamps = stamps
        s.stop_after = stop_after
        s.nstamp = 0

    def __call__(s, txt):
        for line in txt.strip('\n').split('\n'):
            line = line.strip()
            if line:
                s.L.append('    ' + line)

    def label(s, name):
        s.L.append(name + ':')

    def uniq(s, base):
        s.n += 1
        return f'{base}_{s.n}'

    def nop(s, n):
        while n > 0:
            k = min(n, 16)
            s(f's_nop {k-1}')
            n -= k

    def stamp(s, idx):
        if s.stamps:
            s(f's_memrealtime s[{64+2*idx}:{65+2*idx}]')

    def stamp_flush(s, nst=16):
        if not s.stamps:
            return
        s('s_waitcnt lgkmcnt(0)')
        s('s_mov_b64 exec, 1')
        s(f's_lshl_b32 s48, s2, 3')
        s(f's_add_u32 s48, s48, {sWAVE}')
        s(f's_lshl_b32 s48, s48, 7')
        s(f's_add_u32 s48, s48, {STAMPS}')
        s('v_mov_b32 v1, s48')
        for i in range(nst):
            s(f'v_mov_b32 v2, s{64+2*i}')
            s(f'v_mov_b32 v3, s{65+2*i}')
            s(f'global_store_dwordx2 v1, v[2:3], {S_WS} offset:{8*i}')
            s('s_nop 1')
        s('s_waitcnt vmcnt(0)')

    def addr(s, dst, src, off):
        d = int(dst[2:].split(':')[0]); sr = int(src[2:].split(':')[0])
        s(f's_add_u32 s{d}, s{sr}, {off}')
        s(f's_addc_u32 s{d+1}, s{sr+1}, 0')

    def set_exec(s, mask):
        if mask == (1 << 64) - 1:
            s('s_mov_b64 exec, -1')
        else:
            s(f's_mov_b32 exec_lo, {mask & 0xffffffff:#x}')
            s(f's_mov_b32 exec_hi, {mask >> 32:#x}')

    def wave_reduce(s, regs, tmps, op='add'):
        ins = {'add': 'v_add_f32', 'max': 'v_max_f32'}[op]
        n = len(regs)
        pad = max(0, 2 - (n - 1))
        s.nop(2)
        for ctl in ['quad_perm:[1,0,3,2]', 'quad_perm:[2,3,0,1]', 'row_half_mirror', 'row_mirror']:
            for r in regs:
                s(f'{ins}_dpp v{r}, v{r}, v{r} {ctl} row_mask:0xf bank_mask:0xf')
            s.nop(pad)
        s.row_reduce(regs, tmps, op)

    def row_reduce(s, regs, tmps, op='add'):
        ins = {'add': 'v_add_f32', 'max': 'v_max_f32'}[op]
        n = len(regs)
        for sw in ['v_permlane16_swap_b32', 'v_permlane32_swap_b32']:
            for r, t in zip(regs, tmps):
                s(f'v_mov_b32 v{t}, v{r}')
            s.nop(max(0, 2 - (n - 1)))
            for r, t in zip(regs, tmps):
                s(f'{sw} v{t}, v{r}')
            s.nop(1 if n == 1 else 0)
            for r, t in zip(regs, tmps):
                s(f'{ins} v{r}, v{r}, v{t}')
            s.nop(0)

    def check_tags(s, regs, t0, t1, done_label):
        tags = []
        for r in regs:
            tags += [r + 1, r + 3]
        if len(tags) == 2:
            s(f'v_cmp_eq_u32 vcc, {sTAG}, v{tags[0]}')
            s(f'v_cmp_eq_u32 s[46:47], {sTAG}, v{tags[1]}')
        else:
            s(f'v_min3_u32 v{t0}, v{tags[0]}, v{tags[1]}, v{tags[2]}')
            s(f'v_max3_u32 v{t1}, v{tags[0]}, v{tags[1]}, v{tags[2]}')
            rest = tags[3:]
            while rest:
                if len(rest) >= 2:
                    s(f'v_min3_u32 v{t0}, v{t0}, v{rest[0]}, v{rest[1]}')
                    s(f'v_max3_u32 v{t1}, v{t1}, v{rest[0]}, v{rest[1]}')
                    rest = rest[2:]
                else:
                    s(f'v_min_u32 v{t0}, v{t0}, v{rest[0]}')
                    s(f'v_max_u32 v{t1}, v{t1}, v{rest[0]}')
                    rest = rest[1:]
            s(f'v_cmp_eq_u32 vcc, {sTAG}, v{t0}')
            s(f'v_cmp_eq_u32 s[46:47], {sTAG}, v{t1}')
        s('s_and_b64 vcc, vcc, s[46:47]')
        s('s_cmp_eq_u64 vcc, exec')
        s(f's_cbranch_scc1 {done_label}')

    def poll(s, name, emit_loads, regs, t0, t1, first_hook=None, alt=None):
        top = s.uniq(name + '_top'); done = s.uniq(name + '_done'); fail = s.uniq(name + '_fail')
        s(f's_mov_b32 s50, 0')
        if first_hook is not None:
            emit_loads(alt[0] if alt else None)
            first_hook()
            s('s_waitcnt vmcnt(0)')
            s.check_tags(regs, t0, t1, done)
        s.label(top)
        if alt:
            s('s_add_u32 s50, s50, 1')
            s('s_and_b32 s51, s50, 7')
            s('s_cmp_eq_u32 s51, 0')
            s(f's_cselect_b64 s[44:45], {alt[1]}, {alt[0]}')
            emit_loads('s[44:45]')
        else:
            s('s_add_u32 s50, s50, 1')
            emit_loads(None)
        s('s_waitcnt vmcnt(0)')
        s.check_tags(regs, t0, t1, done)
        s(f's_cmp_lt_u32 s50, {POLL_LIMIT}')
        s(f's_cbranch_scc1 {top}')
        s(f's_mov_b64 s[46:47], exec')
        s('s_mov_b64 exec, 1')
        s(f'v_mov_b32 v{t0}, {4*(s.n % 60)}')
        s(f'v_mov_b32 v{t1}, {0x1000 + s.n}')
        s(f'global_store_dword v{t0}, v{t1}, {S_DBG}')
        s(f's_mov_b64 exec, s[46:47]')
        s.label(done)

    def begin_tail(s):
        s.main = s.L
        s.L = s.tail

    def end_tail(s):
        s.L = s.main

    def poll2(s, name, loads, masks, t0, t1, alt=None, hook=None):
        top = s.uniq(name + '_top'); done = s.uniq(name + '_done'); retry = s.uniq(name + '_retry')
        n = len(loads)
        assert len(masks) >= n
        s('s_mov_b32 s50, 0')
        for ins, tg, em in loads:
            if em is not None:
                s.set_exec(em)
            s(ins.format(base=alt[0] if alt else None))
            if em is not None:
                s('s_mov_b64 exec, -1')
        if hook is not None:
            hook()
        s.label(top)
        s('s_waitcnt vmcnt(0)')
        for k, (ins, tg, em) in enumerate(loads):
            s(f'v_cmp_ne_u32 {masks[k]}, {sTAG}, v{tg}')
        if n == 1:
            s(f's_cmp_lg_u64 {masks[0]}, 0')
        else:
            s(f's_or_b64 s[46:47], {masks[0]}, {masks[1]}')
            for k in range(2, n):
                s(f's_or_b64 s[46:47], s[46:47], {masks[k]}')
        s(f's_cbranch_scc1 {retry}')
        s.label(done)
        s.begin_tail()
        s.label(retry)
        s('s_add_u32 s50, s50, 1')
        if alt:
            s('s_and_b32 s51, s50, 7')
            s('s_cmp_eq_u32 s51, 0')
            s(f's_cselect_b64 s[44:45], {alt[1]}, {alt[0]}')
        for k, (ins, tg, em) in enumerate(loads):
            s(f's_mov_b64 exec, {masks[k]}')
            if n > 1:
                sk = s.uniq(name + '_sk')
                s(f's_cbranch_execz {sk}')
            s(ins.format(base='s[44:45]' if alt else None))
            if n > 1:
                s.label(sk)
        s('s_mov_b64 exec, -1')
        s(f's_cmp_lt_u32 s50, {POLL_LIMIT}')
        s(f's_cbranch_scc1 {top}')
        s('s_waitcnt vmcnt(0)')
        s('s_mov_b64 exec, 1')
        s(f'v_mov_b32 v{t0}, {4*(s.n % 60)}')
        s(f'v_mov_b32 v{t1}, {0x1000 + s.n}')
        s(f'global_store_dword v{t0}, v{t1}, {S_DBG}')
        s('s_mov_b64 exec, -1')
        s(f's_branch {done}')
        s.end_tail()

    def poll3(s, name, loads, masks, t0, t1, sets, pay, sp=12):
        top = s.uniq(name + '_top'); done = s.uniq(name + '_done'); retry = s.uniq(name + '_retry'); tmo = s.uniq(name + '_tmo')
        n = len(loads); k = len(sets)
        P = masks[:n]; T = masks[n:2 * n]
        assert len(masks) >= 2 * n
        for ins, cb, to, em in loads:
            if em is not None:
                s.set_exec(em)
            s(ins.format(d=f'{cb}:{cb+3}'))
            if em is not None:
                s('s_mov_b64 exec, -1')
        s('s_waitcnt vmcnt(0)')
        for i, (ins, cb, to, em) in enumerate(loads):
            s(f'v_cmp_ne_u32 {P[i]}, {sTAG}, v{cb+to}')
        if n == 1:
            s(f's_cmp_lg_u64 {P[0]}, 0')
        else:
            s(f's_or_b64 s[46:47], {P[0]}, {P[1]}')
            for i in range(2, n):
                s(f's_or_b64 s[46:47], s[46:47], {P[i]}')
        s(f's_cbranch_scc1 {retry}')
        s.label(done)
        s.begin_tail()
        s.label(retry)
        s('s_mov_b32 s50, 0')

        def issue(j):
            for i, (ins, cb, to, em) in enumerate(loads):
                s(f's_mov_b64 exec, {P[i]}')
                s(ins.format(d=f'{sets[j][i]}:{sets[j][i]+3}'))
            s('s_mov_b64 exec, -1')
        for j in range(k):
            issue(j)
            if j < k - 1:
                s.nop(16 * sp)
        s.label(top)
        for j in range(k):
            s(f's_waitcnt vmcnt({n*(k-1)})')
            for i, (ins, cb, to, em) in enumerate(loads):
                s(f'v_cmp_eq_u32 {T[i]}, {sTAG}, v{sets[j][i]+to}')
            for i, (ins, cb, to, em) in enumerate(loads):
                s(f's_and_b64 exec, {T[i]}, {P[i]}')
                for d in pay:
                    s(f'v_mov_b32 v{cb+d}, v{sets[j][i]+d}')
                s(f's_andn2_b64 {P[i]}, {P[i]}, exec')
            s('s_mov_b64 exec, -1')
            if n == 1:
                s(f's_cmp_lg_u64 {P[0]}, 0')
            else:
                s(f's_or_b64 s[46:47], {P[0]}, {P[1]}')
                for i in range(2, n):
                    s(f's_or_b64 s[46:47], s[46:47], {P[i]}')
            s(f's_cbranch_scc0 {done}')
            issue(j)
        s('s_add_u32 s50, s50, 1')
        s(f's_cmp_lt_u32 s50, {POLL_LIMIT // 2}')
        s(f's_cbranch_scc1 {top}')
        s('s_waitcnt vmcnt(0)')
        s('s_mov_b64 exec, 1')
        s(f'v_mov_b32 v{t0}, {4*(s.n % 60)}')
        s(f'v_mov_b32 v{t1}, {0x1000 + s.n}')
        s(f'global_store_dword v{t0}, v{t1}, {S_DBG}')
        s('s_mov_b64 exec, -1')
        s(f's_branch {done}')
        s.end_tail()

    def gate(s, name, vaddr, vtmp, limit=256, tagoff=12):
        top = s.uniq(name + '_gt'); done = s.uniq(name + '_gd')
        s('s_mov_b64 exec, 1')
        s('s_mov_b32 s50, 0')
        s.label(top)
        s(f'global_load_dword v{vtmp}, v{vaddr}, {S_WS} offset:{tagoff} sc1')
        s('s_add_u32 s50, s50, 1')
        s('s_waitcnt vmcnt(0)')
        s(f'v_cmp_ne_u32 vcc, {sTAG}, v{vtmp}')
        s('s_cmp_eq_u64 vcc, 0')
        s(f's_cbranch_scc1 {done}')
        s(f's_cmp_lt_u32 s50, {limit}')
        s(f's_cbranch_scc1 {top}')
        s.label(done)
        s('s_mov_b64 exec, -1')

    def text(s):
        return '\n'.join(s.L + s.tail + ['L_codeend:']) + '\n'


KAPPA = (128 ** -0.5) * 1.4426950408889634


def gen_sel(g, base, t0, t1):
    g(f'v_and_b32 v{t0}, 7, v0')
    g(f'v_and_b32 v{t1}, 1, v0')
    for par in range(2):
        lo = 0x0c0c0000 | ((2 * par + 1) << 8) | (2 * par)
        hi = ((2 * par + 1) << 24) | ((2 * par) << 16) | 0x0c0c
        g(f'v_cmp_eq_u32 vcc, 1, v{t1}')
        g(f'v_mov_b32 v{base+par}, {lo:#x}')
        g(f'v_mov_b32 v{base+2+par}, {hi:#x}')
        g(f'v_cndmask_b32 v{base+par}, v{base+par}, v{base+2+par}, vcc')
    g(f'v_lshrrev_b32 v{t0}, 1, v{t0}')
    g(f'v_mov_b32 v{t1}, 0x0c0c0c0c')
    for v in [3, 2, 1, 0]:
        g(f'v_cmp_eq_u32 vcc, {v}, v{t0}')
        g.nop(1)
        for par in range(2):
            g(f'v_cndmask_b32 v{base+2*v+par}, v{t1}, v{base+par}, vcc')


def gen_mask(g, base, t0, t1):
    g(f'v_and_b32 v{t0}, 7, v0')
    g(f'v_and_b32 v{t1}, 1, v0')
    g(f'v_cmp_eq_u32 vcc, 1, v{t1}')
    g(f'v_mov_b32 v{base}, 0xffff')
    g(f'v_mov_b32 v{base+1}, 0xffff0000')
    g(f'v_cndmask_b32 v{t1}, v{base}, v{base+1}, vcc')
    g(f'v_lshrrev_b32 v{t0}, 1, v{t0}')
    for v in range(4):
        g(f'v_cmp_eq_u32 vcc, {v}, v{t0}')
        g.nop(1)
        g(f'v_cndmask_b32 v{base+v}, 0, v{t1}, vcc')


def get_tag(g, vreg):
    g.nop(1)
    g(f'v_readfirstlane_b32 {sTAG}, v{vreg}')
    g.nop(4)
    g(f's_mul_i32 {sTAG}, {sTAG}, 5')
    g(f's_add_u32 {sTAG}, {sTAG}, 0x9E3779B9')


def rnd_bf16(g, r):
    g(f'v_cvt_pk_bf16_f32 v{r}, v{r}, v{r}')
    g(f'v_and_b32 v{r}, 0xffff0000, v{r}')


def ln_scalars(g, s1, s2, piv_sgpr, vm, vrs, t0):
    g(f's_mov_b32 s52, {f2u(1.0/640):#x}')
    g(f'v_mul_f32 v{s1}, s52, v{s1}')
    g(f'v_mul_f32 v{s2}, s52, v{s2}')
    g(f'v_fma_f32 v{s2}, -v{s1}, v{s1}, v{s2}')
    g(f'v_max_f32 v{s2}, 0, v{s2}')
    g(f'v_add_f32 v{vm}, {piv_sgpr}, v{s1}')
    rnd_bf16(g, vm)
    rnd_bf16(g, s2)
    g(f'v_add_f32 v{s2}, 0x3727c5ac, v{s2}')
    rnd_bf16(g, s2)
    g(f'v_sqrt_f32 v{s2}, v{s2}')
    g.nop(1)
    rnd_bf16(g, s2)
    g(f'v_rcp_f32 v{vrs}, v{s2}')
    g.nop(1)


def class_combine(g, d, out2=None):
    if out2 is None:
        out2 = d + 2
    for k in range(4):
        g(f'v_mov_b32_dpp v{d+k}, v{d+k} row_ror:8 row_mask:0xc bank_mask:0xf')
    g.nop(1)
    g(f'v_permlane32_swap_b32 v{d}, v{d+1}')
    g(f'v_permlane32_swap_b32 v{d+2}, v{d+3}')
    g.nop(1)
    g(f'v_add_f32 v{d}, v{d}, v{d+1}')
    g(f'v_add_f32 v{out2}, v{d+2}, v{d+3}')


def mode_store(g, ins_no_flag, smode):
    a = g.uniq('ms_slow'); b = g.uniq('ms_done')
    g(f's_cmp_eq_u32 {smode}, 1')
    g(f's_cbranch_scc0 {a}')
    for ins in ins_no_flag:
        g(ins)
    g.label(b)
    ex = [l for l in []]
    g.begin_tail()
    g.label(a)
    for ins in ins_no_flag:
        g(ins + ' sc1')
    g(f's_branch {b}')
    g.end_tail()


def own_tag(g, vreg):
    g(f'v_readfirstlane_b32 {sTAG}, v{vreg}')
    g.nop(4)
    g(f's_mul_i32 {sTAG}, {sTAG}, 5')
    g(f's_add_u32 {sTAG}, {sTAG}, 0x9E3779B9')


MA = ['s[10:11]', 's[12:13]', 's[14:15]', 's[18:19]', 's[20:21]', 's[22:23]', 's[24:25]', 's[26:27]']
MQ = ['s[10:11]', 's[12:13]', 's[14:15]', 's[4:5]', 's[20:21]', 's[96:97]', 's[98:99]', 's[100:101]']
MB = ['s[10:11]', 's[12:13]', 's[14:15]', 's[16:17]', 's[18:19]', 's[20:21]', 's[22:23]', 's[24:25]']


def build(stamps=False, stop_after=None, opts=()):
    g = Gen(stamps, stop_after)
    def optn(name, dflt):
        for o in opts:
            if o.startswith(name) and o[len(name):].isdigit():
                return int(o[len(name):])
        return dflt
    PK = optn('ppk', 3); SP = optn('ppsp', 12)
    sMODE = 's59'
    WS = S_WS
    g('s_cmp_ge_u32 s2, 256')
    g('s_cbranch_scc1 L_end')
    g('s_load_dwordx16 s[8:23], s[0:1], 0')
    g('s_load_dwordx8 s[24:31], s[0:1], 64')
    g('s_load_dwordx2 s[32:33], s[0:1], 96')
    g('s_getpc_b64 s[42:43]')
    g('v_lshlrev_b32 v1, 4, v0')
    g('global_load_dwordx4 v[232:235], v1, s[42:43]')
    g.stamp(0)
    g('v_lshrrev_b32 v1, 6, v0')
    g('v_and_b32 v0, 63, v0')
    g(f'v_readfirstlane_b32 {sWAVE}, v1')
    g(f's_and_b32 {sXCD}, s2, 7')
    g(f's_lshr_b32 {sR}, s2, 3')
    g(f's_lshr_b32 {sH}, {sR}, 3')
    g(f's_lshl_b32 s48, {sXCD}, 2')
    g(f's_add_u32 {sH}, {sH}, s48')
    g(f's_and_b32 {sJ}, {sR}, 7')
    g('v_mov_b32 v1, 0')
    g('v_lshlrev_b32 v3, 4, v0')
    g('v_and_b32 v7, 15, v0')
    g('v_lshrrev_b32 v6, 4, v0')
    SH = 'shift' in opts
    XWA = 7 if SH else 2
    XWB = 3 if SH else 2
    if SH:
        g(f's_cmp_ge_u32 {sXCD}, 4')
        g('s_cbranch_scc1 L_late')
        g(f's_cmp_eq_u32 {sWAVE}, 2')
        g('s_cbranch_scc0 L_nsh')
        g(f's_add_u32 {sH}, {sH}, 16')
        g('s_branch L_w1')
        g.label('L_nsh')
    g(f's_cmp_eq_u32 {sWAVE}, 1')
    g('s_cbranch_scc1 L_w1')
    g(f's_cmp_eq_u32 {sWAVE}, 0')
    g('s_cbranch_scc1 L_w0')

    def pre(tagwait=False):
        g(f's_and_b32 s55, {sR}, 1')
        g(f's_lshr_b32 s56, {sR}, 1')
        g('v_and_b32 v8, 7, v0')
        g('v_lshlrev_b32 v8, 1, v8')
        g(f's_lshl_b32 s48, {sWAVE}, 14')
        g(f's_add_u32 s48, s48, {L_TILE}')
        for tl in range(4):
            g(f'v_add_u32 v9, {4*tl}, v6')
            g('v_xor_b32 v9, v9, v8')
            g('v_lshlrev_b32 v9, 4, v9')
            g(f'v_lshl_add_u32 v{32+tl}, v7, 10, v9')
            g(f'v_add_u32 v{36+tl}, s48, v{32+tl}')
        g('v_lshrrev_b32 v9, 2, v0')
        g('v_lshlrev_b32 v9, 7, v9')
        g('v_and_b32 v11, 3, v0')
        g('v_lshl_add_u32 v9, v11, 3, v9')
        g('v_bfe_u32 v10, v0, 3, 2')
        g(f's_and_b32 s48, {sWAVE}, 3')
        g('v_xor_b32 v10, s48, v10')
        g('v_lshl_add_u32 v9, v10, 5, v9')
        g(f'v_add_u32 v40, {L_V}, v9')
        g('v_lshrrev_b32 v9, 3, v0')
        g('v_lshlrev_b32 v9, 10, v9')
        g('v_and_b32 v10, 7, v0')
        g('v_lshlrev_b32 v11, 1, v6')
        g('v_xor_b32 v10, v10, v11')
        g('v_lshl_add_u32 v41, v10, 4, v9')
        g(f's_lshl_b32 s48, {sXCD}, 19')
        g(f's_and_b32 s49, {sWAVE}, 3')
        g('s_lshl_b32 s49, s49, 16')
        g('s_add_u32 s48, s48, s49')
        g('s_lshl_b32 s49, s56, 7')
        g('s_add_u32 s48, s48, s49')
        g('s_waitcnt lgkmcnt(0)')
        g.addr('s[98:99]', S_CKV, 's48')
        g('v_lshrrev_b32 v9, 1, v0')
        g('v_and_b32 v10, 1, v0')
        g('v_lshlrev_b32 v10, 3, v10')
        for ih in range(2):
            g(f's_lshl_b32 s48, {sWAVE}, 1')
            g(f's_add_u32 s48, s48, {ih}')
            g('s_and_b32 s49, s48, 7')
            g('s_lshl_b32 s49, s49, 1')
            g('v_xor_b32 v11, s49, v9')
            g('v_lshl_add_u32 v11, v11, 4, v10')
            g('s_lshl_b32 s48, s48, 10')
            g(f's_add_u32 s48, s48, {L_QL}')
            g(f'v_add_u32 v{44+ih}, s48, v11')
        gen_mask(g, 240, 9, 10)
        g('v_lshlrev_b32 v46, 4, v7')
        g(f's_lshl_b32 s48, {sWAVE}, 2')
        g('v_add_u32 v47, s48, v46')
        g('v_lshlrev_b32 v57, 3, v0')
        g(f'v_add_u32 v42, {L_QL}, v3')
        g(f's_lshl_b32 s48, {sWAVE}, 11')
        g('v_add_u32 v56, s48, v42')
        g('v_lshlrev_b32 v43, 5, v7')
        g(f'v_add_u32 v43, {L_RED}, v43')
        g(f's_lshl_b32 s48, {sWAVE}, 2')
        g('v_add_u32 v59, s48, v43')
        g('s_lshl_b32 s48, s55, 15')
        g(f's_lshl_b32 s49, {sWAVE}, 12')
        g('s_add_u32 s48, s48, s49')
        if 'qa8' in opts:
            g(f's_lshl_b32 s49, {sXCD}, 16')
            g('s_add_u32 s48, s48, s49')
        g(f's_add_u32 s48, s48, {QA8 if "qa8" in opts else QA}')
        g('v_add_u32 v248, s48, v3')
        g(f's_lshl_b32 s48, {sXCD}, 16')
        g('s_lshl_b32 s49, s55, 15')
        g('s_add_u32 s48, s48, s49')
        g(f's_add_u32 s48, s48, {OPL}')
        g(f's_lshl_b32 s49, {sWAVE}, 12')
        g('s_add_u32 s49, s49, s48')
        g('v_add_u32 v246, s49, v3')
        g('s_lshl_b32 s49, s56, 12')
        g('s_add_u32 s48, s48, s49')
        g('v_add_u32 v251, s48, v3')
        g(f's_and_b32 s49, {sWAVE}, 3')
        g('s_lshl_b32 s49, s49, 10')
        g('v_add_u32 v58, s49, v251')
        g(f's_lshl_b32 s48, {sXCD}, 16')
        g('s_lshl_b32 s49, s55, 15')
        g('s_add_u32 s48, s48, s49')
        g('s_lshl_b32 s49, s56, 12')
        g('s_add_u32 s48, s48, s49')
        g(f's_and_b32 s49, {sWAVE}, 3')
        g('s_lshl_b32 s49, s49, 10')
        g('s_add_u32 s48, s48, s49')
        g(f's_add_u32 s48, s48, {OX}')
        g('v_lshlrev_b32 v244, 6, v7')
        g('v_lshl_add_u32 v244, v6, 4, v244')
        g('v_add_u32 v244, s48, v244')
        g(f's_lshl_b32 s48, {sXCD}, 9')
        g('s_lshl_b32 s49, s55, 8')
        g('s_add_u32 s48, s48, s49')
        g(f's_add_u32 s48, s48, {MLX}')
        g('v_add_u32 v250, s48, v3')
        g('s_mov_b32 s58, s56')
        g(f's_lshr_b32 s48, {sR}, 2')
        g(f's_lshl_b32 s49, {sXCD}, 2')
        g('s_add_u32 s61, s48, s49')
        g(f's_and_b32 s62, {sR}, 3')
        g('v_bfe_u32 v13, v0, 2, 3')
        g('s_lshr_b32 s48, s61, 4')
        g('s_lshl_b32 s48, s48, 5')
        g('s_lshl_b32 s49, s62, 3')
        g('s_add_u32 s48, s48, s49')
        g(f's_add_u32 s48, s48, {sWAVE}')
        g('s_lshl_b32 s48, s48, 10')
        g('s_and_b32 s49, s61, 15')
        g('s_lshl_b32 s49, s49, 6')
        g('s_add_u32 s48, s48, s49')
        g(f's_add_u32 s48, s48, {OX}')
        g('v_lshlrev_b32 v14, 16, v13')
        g('v_and_b32 v12, 3, v0')
        g('v_lshl_add_u32 v14, v12, 4, v14')
        g('v_add_u32 v245, s48, v14')
        g('s_lshl_b32 s48, s61, 4')
        g(f's_add_u32 s48, s48, {MLX}')
        g('v_lshlrev_b32 v14, 9, v13')
        g('v_add_u32 v14, s48, v14')
        g('v_cmp_le_u32 vcc, 32, v0')
        g.nop(1)
        g('v_cndmask_b32 v245, v245, v14, vcc')
        g('v_lshlrev_b32 v247, 5, v7')
        g('v_lshl_add_u32 v247, v6, 4, v247')
        g(f's_lshl_b32 s48, {sWAVE}, 9')
        g('v_add_u32 v247, s48, v247')
        g(f's_lshl_b32 s48, {sXCD}, 4')
        g(f's_add_u32 s48, s48, {sR}')
        g('s_lshl_b32 s48, s48, 9')
        g(f's_add_u32 s48, s48, {C4}')
        g('v_lshrrev_b32 v253, 1, v0')
        g('v_lshl_add_u32 v253, v253, 4, s48')
        g('s_lshl_b32 s48, s61, 8')
        g('s_lshl_b32 s49, s62, 3')
        g(f's_add_u32 s49, s49, {sWAVE}')
        g('s_lshl_b32 s49, s49, 17')
        g('s_add_u32 s48, s48, s49')
        g('s_waitcnt lgkmcnt(0)')
        g.addr('s[62:63]' if False else 's[96:97]', S_WUV, 's48')
        g('v_lshlrev_b32 v254, 13, v6')
        g('v_lshl_add_u32 v254, v7, 4, v254')
        if tagwait is not False:
            g(f's_waitcnt vmcnt({0 if tagwait is True else tagwait})')
            own_tag(g, 2)
        g(f'global_load_dword v233, v245, {WS} sc1')
        pt = g.uniq('pt')
        g(f's_cmp_eq_u32 {sWAVE}, 5')
        g(f's_cbranch_scc0 {pt}')
        for kt in range(4):
            g(f'global_load_dword v{234+kt}, v251, {WS} offset:{1024*kt} sc1')
        g.label(pt)

    def dma(wsel=None):
        if optn('kdel', 0):
            lb = g.uniq('kdel'); le = g.uniq('kdele')
            if 'kdlate' in opts:
                g(f's_cmp_lt_u32 {sXCD}, 4')
                g(f's_cbranch_scc1 {le}')
            g(f's_mov_b32 s48, {optn("kdel", 0)}')
            g.label(lb)
            g('s_nop 15')
            g('s_nop 15')
            g('s_sub_u32 s48, s48, 1')
            g('s_cmp_gt_u32 s48, 0')
            g(f's_cbranch_scc1 {lb}')
            g.label(le)
        g(f's_lshr_b32 s56, {sR}, 1')
        g(f's_lshl_b32 s57, {sXCD}, 3')
        g('s_add_u32 s57, s57, s56')
        g('s_lshl_b32 s48, s57, 6')
        if 'rot' in opts:
            g(f's_and_b32 s49, {sR}, 1')
            g('s_lshl_b32 s49, s49, 2')
            g(f's_add_u32 s49, s49, {wsel or sWAVE}')
            g('s_and_b32 s49, s49, 7')
            g('s_lshl_b32 s49, s49, 3')
        else:
            g(f's_lshl_b32 s49, {wsel or sWAVE}, 3')
        g('s_add_u32 s48, s48, s49')
        g('s_lshl_b32 s48, s48, 10')
        g.addr('s[40:41]', S_CKV, 's48')
        g('s_lshl_b32 s49, s49, 10')
        g(f's_add_u32 s49, s49, {L_TILE}')
        g('s_mov_b32 m0, s49')
        for i in range(8):
            if i == 4:
                g('s_add_u32 s49, s49, 4096')
                g('s_mov_b32 m0, s49')
                g('s_add_u32 s40, s40, 4096')
                g('s_addc_u32 s41, s41, 0')
            g(f'v_xor_b32 v4, {32*i}, v3')
            g(f'global_load_lds_dwordx4 v4, s[40:41] offset:{1024*(i%4)}' + (' nt' if 'ckvnt' in opts else ''))

    def wuk_dma():
        g(f's_sub_u32 s54, {sR}, 16')
        g('s_lshr_b32 s48, s54, 2')
        g(f's_lshl_b32 s49, {sXCD}, 2')
        g('s_add_u32 s48, s48, s49')
        g('s_lshl_b32 s48, s48, 8')
        g('s_and_b32 s49, s54, 3')
        g('s_lshl_b32 s49, s49, 2')
        g(f's_add_u32 s49, s49, {sWAVE}')
        g('s_sub_u32 s49, s49, 4')
        g('s_lshl_b32 s49, s49, 18')
        g('s_add_u32 s48, s48, s49')
        g.addr('s[40:41]', S_WUK, 's48')
        g('v_xor_b32 v8, v7, v6')
        g('v_lshlrev_b32 v8, 4, v8')
        g('v_lshl_add_u32 v8, v6, 13, v8')
        for n in range(1, 4):
            g(f'v_xor_b32 v{8+n}, {64*n}, v8')
        g(f's_and_b32 s49, {sWAVE}, 3')
        g('s_lshl_b32 s49, s49, 13')
        g(f's_add_u32 m0, s49, {L_TILE}')
        g.nop(1)
        for n in range(8):
            g(f'global_load_lds_dwordx4 v{8+(n&3)}, s[40:41]' + ('' if 'wuknt0' in opts else ' nt'))
            if n < 7:
                g('s_add_u32 m0, m0, 1024')
                g('s_add_u32 s40, s40, 32768')
                g('s_addc_u32 s41, s41, 0')

    g('s_waitcnt lgkmcnt(0)')
    if 'bq' in opts:
        g('s_barrier')
    g(f's_cmp_ge_u32 {sWAVE}, 4')
    g('s_cbranch_scc0 L_e_nb')
    g(f's_cmp_ge_u32 {sR}, 16')
    g('s_cbranch_scc1 L_e_b')
    if 'fulldma' in opts:
        g(f's_sub_u32 s58, {sWAVE}, 4')
        dma('s58')
    if 'halfdma' in opts or 'fulldma' in opts:
        dma()
    g('s_branch L_e_nb')
    g.label('L_e_b')
    if 'wukb0' not in opts:
        wuk_dma()
    g.label('L_e_nb')
    g('s_waitcnt lgkmcnt(0)')
    g(f'global_load_dword v2, v1, {WS} sc1')
    def codepf():
        lb = g.uniq('L_nw7')
        g(f's_cmp_eq_u32 {sWAVE}, 3')
        g(f's_cbranch_scc0 {lb}')
        g(f's_and_b32 s48, {sR}, 15')
        g('s_lshl_b32 s48, s48, 10')
        g('s_add_u32 s48, s48, 8192')
        g(f's_min_u32 s48, s48, L_codeend-{KN}-1088')
        g('s_add_u32 s42, s42, s48')
        g('s_addc_u32 s43, s43, 0')
        g('global_load_dwordx4 v[236:239], v3, s[42:43]')
        g.label(lb)

    def xidstore():
        g('s_getreg_b32 s48, hwreg(HW_REG_XCC_ID)')
        g('s_and_b32 s48, s48, 0xf')
        g('v_mov_b32 v12, s48')
        g(f'v_mov_b32 v15, {sTAG}')
        g(f's_lshl_b32 s48, {sXCD}, 5')
        g(f's_add_u32 s48, s48, {sR}')
        g('s_lshl_b32 s48, s48, 4')
        g(f's_add_u32 s48, s48, {XID}')
        g('v_mov_b32 v16, s48')
        g('s_mov_b64 exec, 1')
        g(f'global_store_dwordx4 v16, v[12:15], {WS} sc1')
        g('s_mov_b64 exec, -1')
    codepf()
    g(f's_cmp_ge_u32 {sR}, 16')
    g('s_cbranch_scc0 L_pre')
    g.label('L_e_tag')
    g(f's_cmp_eq_u32 {sWAVE}, {XWB}')
    g('s_cbranch_scc0 L_b0')
    if 'tlbpt' in opts:
        g(f's_cmp_ge_u32 {sR}, {optn("tlbr", 28)}')
        g('s_cbranch_scc0 L_ntp')
        g('v_lshlrev_b32 v20, 21, v0')
        g('s_mov_b64 exec, 7')
        bufs = [(S_WUK, 4194304), (S_CKV, 4194304), (S_WUV, 4194304), (S_WO, 5242880), (S_WG, 2211840), (S_WU, 2211840), (S_WD, 2211840)]
        for k, (b, sz) in enumerate(bufs):
            g(f'v_min_u32 v21, {sz - 4}, v20')
            g(f'global_load_dword v{24+k}, v21, {b}')
        g('s_mov_b64 exec, -1')
        g('s_waitcnt vmcnt(7)')
        g('s_branch L_tp')
        g.label('L_ntp')
        g('s_waitcnt vmcnt(0)')
        g.label('L_tp')
    else:
        g(f's_waitcnt vmcnt({1 if XWB == 3 else 0})')
    own_tag(g, 2)
    xidstore()
    g('s_branch L_b0')
    if SH:
        g.label('L_late')
        g('s_waitcnt lgkmcnt(0)')
        g(f'global_load_dword v2, v1, {WS} sc1')
        g(f's_cmp_ge_u32 {sR}, 16')
        g('s_cbranch_scc1 L_late_b')
        dma()
        g.stamp(13)
        codepf()
        pre(tagwait=8)
        g(f's_cmp_eq_u32 {sWAVE}, {XWA}')
        g('s_cbranch_scc0 L_a_dmadone')
        xidstore()
        g('s_branch L_a_dmadone')
        g.label('L_late_b')
        g(f's_cmp_ge_u32 {sWAVE}, 4')
        g('s_cbranch_scc0 L_late_b1')
        wuk_dma()
        g('s_waitcnt vmcnt(8)')
        own_tag(g, 2)
        g('s_waitcnt vmcnt(0)')
        g('s_branch L_pathB')
        g.label('L_late_b1')
        codepf()
        g('s_waitcnt vmcnt(1)')
        g(f's_cmp_eq_u32 {sWAVE}, 3')
        g('s_cbranch_scc1 L_late_b2')
        g('s_waitcnt vmcnt(0)')
        own_tag(g, 2)
        g('s_branch L_pathB')
        g.label('L_late_b2')
        own_tag(g, 2)
        xidstore()
        g('s_branch L_pathB')

    g.label('L_w0')
    g('v_lshlrev_b32 v4, 2, v0')
    g('v_min_u32 v5, 39, v0')
    g('v_lshlrev_b32 v5, 2, v5')
    g(f's_mul_i32 s48, {sJ}, 160')
    g('v_add_u32 v5, s48, v5')
    g('s_waitcnt lgkmcnt(0)')
    for k in range(5):
        g(f'global_load_dword v{10+k}, v4, {S_X} offset:{256*k}')
    g(f'global_load_dword v15, v5, {S_X}')
    g(f'global_load_dword v2, v1, {WS} sc1')
    g(f's_mov_b32 s52, {f2u(1.0/640):#x}')
    if 'bq' in opts:
        g('s_barrier')
    g('s_waitcnt vmcnt(2)')
    g.stamp(1)
    for k in range(5):
        g(f'v_lshlrev_b32 v{16+2*k}, 16, v{10+k}')
        g(f'v_and_b32 v{17+2*k}, 0xffff0000, v{10+k}')
    g('v_readfirstlane_b32 s53, v16')
    g.nop(4)
    for k in range(10):
        g(f'v_subrev_f32 v{16+k}, s53, v{16+k}')
    g('v_pk_mul_f32 v[26:27], v[16:17], v[16:17]')
    g('v_pk_add_f32 v[28:29], v[16:17], v[18:19]')
    for k in range(1, 5):
        g(f'v_pk_fma_f32 v[26:27], v[{16+2*k}:{17+2*k}], v[{16+2*k}:{17+2*k}], v[26:27]')
        if k >= 2:
            g(f'v_pk_add_f32 v[28:29], v[28:29], v[{16+2*k}:{17+2*k}]')
    g('v_add_f32 v27, v26, v27')
    g('v_add_f32 v26, v28, v29')
    g.wave_reduce([26, 27], [28, 29])
    ln_scalars(g, 26, 27, 's53', 28, 29, 30)
    g('s_waitcnt vmcnt(1)')
    g('v_lshlrev_b32 v16, 16, v15')
    g('v_and_b32 v17, 0xffff0000, v15')
    g('v_sub_f32 v16, v16, v28')
    g('v_sub_f32 v17, v17, v28')
    g('v_cvt_pk_bf16_f32 v18, v16, v17')
    g('v_lshlrev_b32 v16, 16, v18')
    g('v_and_b32 v17, 0xffff0000, v18')
    g('v_mul_f32 v16, v16, v29')
    g('v_mul_f32 v17, v17, v29')
    g('v_cvt_pk_bf16_f32 v18, v16, v17')
    g(f'ds_write_b32 v4, v18 offset:{L_XN}')
    g('s_waitcnt lgkmcnt(0)')
    g.stamp(2)
    g('s_barrier')
    g('s_waitcnt vmcnt(0)')
    own_tag(g, 2)
    g(f's_cmp_ge_u32 {sR}, 16')
    g('s_cbranch_scc1 L_pathB')
    g('s_branch L_pre0')

    g.label('L_w1')
    g(f's_mov_b32 s49, {20*8192}')
    g('v_mul_lo_u32 v8, v6, s49')
    g('v_lshl_add_u32 v8, v7, 4, v8')
    g(f's_mul_i32 s48, {sJ}, {80*8192}')
    g(f's_lshl_b32 s49, {sH}, 8')
    g('s_add_u32 s48, s48, s49')
    g('s_waitcnt lgkmcnt(0)')
    g.addr('s[40:41]', S_WQ, 's48')
    for t in range(20):
        g(f'global_load_dwordx4 v[{80+4*t}:{83+4*t}], v8, s[40:41]' + ('' if 'wqnt0' in opts else ' nt'))
        if t < 19:
            g('s_add_u32 s40, s40, 8192')
            g('s_addc_u32 s41, s41, 0')
    g(f'global_load_dword v2, v1, {WS} sc1')
    if 'bq' in opts:
        g('s_barrier')
    g.stamp(1)
    gen_sel(g, 192, 16, 17)
    g(f's_lshl_b32 s48, {sH}, 3')
    g(f's_add_u32 s48, s48, {sJ}')
    g('s_lshl_b32 s48, s48, 10')
    g(f's_add_u32 s49, s48, {Q1L}')
    g.addr('s[44:45]', S_WS, 's49')
    g(f's_add_u32 s49, s48, {Q1G}')
    g.addr('s[46:47]', S_WS, 's49')
    g('v_mul_u32_u24 v19, 40, v6')
    g('s_mov_b32 s56, 0')
    g('s_mov_b32 s57, -1')
    g('s_barrier')
    for k in range(5):
        g(f'ds_read_b64 v[{16+2*k}:{17+2*k}], v19 offset:{L_XN+8*k}')
    g('s_waitcnt lgkmcnt(0)')

    def perms(t):
        a = 160 + 4 * (t % 4)
        for v in range(4):
            g(f'v_perm_b32 v{a+v}, v{16+t//2}, v{16+t//2}, v{192+2*v+(t&1)}')
    perms(0)
    perms(1)
    for t in range(20):
        if t + 2 < 20:
            perms(t + 2)
        g(f's_waitcnt vmcnt({19-t+1})')
        a = 160 + 4 * (t % 4)
        c = '0' if t == 0 else 'v[200:203]'
        g(f'v_mfma_f32_16x16x32_bf16 v[200:203], v[{a}:{a+3}], v[{80+4*t}:{83+4*t}], {c}')
        if t == 17:
            pass
    g('s_waitcnt vmcnt(0)')
    g(f'v_readfirstlane_b32 {sTAG}, v2')
    g.nop(4)
    g(f's_mul_i32 {sTAG}, {sTAG}, 5')
    g(f's_add_u32 {sTAG}, {sTAG}, 0x9E3779B9')
    g(f'v_mov_b32 v207, {sTAG}')
    g('v_cndmask_b32 v204, v200, v202, s[56:57]')
    g('v_cndmask_b32 v205, v201, v203, s[56:57]')
    if 'q1g' not in opts:
        g(f'global_store_dwordx4 v3, v[204:207], s[44:45]')
    g(f'global_store_dwordx4 v3, v[204:207], s[46:47] sc1')
    g.stamp(2)
    g(f's_cmp_ge_u32 {sR}, 16')
    g('s_cbranch_scc1 L_pathB')
    g('s_branch L_bp1')

    g.label('L_b0')
    g('s_barrier')
    g('s_waitcnt vmcnt(0)')
    own_tag(g, 2)
    if 'wukb0' in opts:
        g(f's_cmp_ge_u32 {sWAVE}, 4')
        g('s_cbranch_scc0 L_pathB')
        wuk_dma()
        g('s_waitcnt vmcnt(0)')
    g('s_branch L_pathB')

    g.label('L_pre')
    pre(tagwait=True)
    g(f's_cmp_eq_u32 {sWAVE}, {XWA}')
    g('s_cbranch_scc0 L_pre_nx')
    xidstore()
    g.label('L_pre_nx')
    g('s_barrier')
    g.label('L_bp')
    g('s_barrier')
    if 'halfdma' in opts:
        g(f's_cmp_ge_u32 {sWAVE}, 4')
        g('s_cbranch_scc1 L_a_dmadone')
    if 'fulldma' not in opts:
        dma()
    g.stamp(13)
    g('s_branch L_a_dmadone')
    g.label('L_pre0')
    pre()
    g('s_branch L_bp')
    g.label('L_bp1')
    g('s_barrier')
    if 'fulldma' not in opts:
        dma()
    g.stamp(13)
    pre()
    g.label('L_a_dmadone')
    g(f's_cmp_eq_u32 {sWAVE}, 3')
    g('s_cbranch_scc0 L_a_nochk')
    g(f's_lshl_b32 s48, {sXCD}, 9')
    g(f's_add_u32 s48, s48, {XID}')
    g('v_and_b32 v9, 31, v0')
    g('v_lshlrev_b32 v9, 4, v9')
    g('v_add_u32 v9, s48, v9')
    g('s_getreg_b32 s52, hwreg(HW_REG_XCC_ID)')
    g('s_and_b32 s52, s52, 0xf')
    g('s_mov_b32 s50, 0')
    g(f's_mov_b32 {sMODE}, 0')
    g.label('L_a_chk')
    g(f'global_load_dwordx4 v[12:15], v9, {WS} sc1')
    g('s_add_u32 s50, s50, 1')
    g('s_waitcnt vmcnt(0)')
    g(f'v_cmp_eq_u32 vcc, {sTAG}, v15')
    g('s_cmp_eq_u64 vcc, exec')
    g('s_cbranch_scc1 L_a_chk_ok')
    g('s_cmp_lt_u32 s50, 64')
    g('s_cbranch_scc1 L_a_chk')
    g('s_branch L_a_chk_done')
    g.label('L_a_chk_ok')
    g('v_cmp_eq_u32 vcc, s52, v12')
    g('s_cmp_eq_u64 vcc, exec')
    g(f's_cselect_b32 {sMODE}, 1, 0')
    g.label('L_a_chk_done')
    g(f'v_mov_b32 v12, {sMODE}')
    g(f'ds_write_b32 v1, v12 offset:{L_MODE}')
    g.label('L_a_nochk')
    wuv_ins = []
    for tt in range(4):
        wuv_ins.append(f'global_load_dwordx4 v[{64+4*tt}:{67+4*tt}], v254, s[96:97]' + (' nt' if (('helper' not in opts and 'wuvnt0' not in opts) or 'wuvnt' in opts) else ''))
        if tt < 3:
            wuv_ins.append('s_add_u32 s96, s96, 32768')
            wuv_ins.append('s_addc_u32 s97, s97, 0')
    g('s_waitcnt vmcnt(0) lgkmcnt(0)')
    g.stamp(3)
    g('s_barrier')
    FA = 96
    skip = g.uniq('skipfa')
    g(f's_cmp_lt_u32 {sWAVE}, 4')
    g(f's_cbranch_scc0 {skip}')
    for t in range(16):
        g(f'ds_read_b128 v[{FA+4*t}:{FA+4*t+3}], v{36+(t%4)} offset:{256*(t//4)}')
    g.label(skip)

    def vdma(half):
        g(f's_and_b32 s49, {sWAVE}, 3')
        g('s_lshl_b32 s49, s49, 13')
        g(f's_add_u32 m0, s49, {L_V + 32768 * half}')
        g.nop(1)
        for n in range(8):
            g('global_load_lds_dwordx4 v41, s[98:99]' + (' nt' if 'vnt' in opts else ''))
            if n < 7:
                g('s_add_u32 m0, m0, 1024')
                g('s_add_u32 s98, s98, 8192')
                g('s_addc_u32 s99, s99, 0')
        if half == 0:
            g(f's_add_u32 s98, s98, {8192 + 192 * 1024}')
            g('s_addc_u32 s99, s99, 0')
    if 'vb4' not in opts and 'vaft' not in opts:
        g(f's_cmp_ge_u32 {sWAVE}, 4')
        g('s_cbranch_scc0 L_a_nv1')
        vdma(0)
        if 'vall' in opts:
            vdma(1)
        g.label('L_a_nv1')
    g(f'ds_read_b32 v12, v1 offset:{L_MODE}')
    g(f's_mov_b32 s63, {f2u(KAPPA):#x}')
    if 'ppqa' in opts:
        g.poll3('qa', [(f'global_load_dwordx4 v[{{d}}], v248, {WS} offset:{1024*i} sc1', 16 + 4 * i, 3, None) for i in range(4)], MA, 10, 11,
                [[b + 4 * i for i in range(4)] for b in (64, 160, 176)][:PK], (0, 1), optn('qasp', SP))
    else:
        g.poll2('qa', [(f'global_load_dwordx4 v[{16+4*i}:{19+4*i}], v248, {WS} offset:{1024*i} sc1', 19 + 4 * i, None) for i in range(4)], MA, 10, 11)
    for i in range(4):
        g(f'ds_write_b64 v{44+(i>>1)}, v[{16+4*i}:{17+4*i}] offset:{512*(i&1)}')
    g.stamp(4)
    if 'vaft' in opts:
        g(f's_cmp_ge_u32 {sWAVE}, 4')
        g('s_cbranch_scc0 L_a_nv2')
        vdma(0)
        g.label('L_a_nv2')
    g('s_waitcnt lgkmcnt(0)')
    g(f'v_readfirstlane_b32 {sMODE}, v12')
    g('s_barrier')
    g(f's_cmp_ge_u32 {sWAVE}, 4')
    g('s_cbranch_scc1 L_a_v')
    g.begin_tail()
    g.label('L_a_v')
    if 'vb4' in opts:
        vdma(0)
    if 'vall' not in opts and 'vpost' not in opts:
        vdma(1)
    g('s_barrier')
    if 'vpost' in opts:
        vdma(1)
    g('s_waitcnt vmcnt(0)')
    g.stamp(6)
    g('s_barrier')
    VT = 96
    for kr in range(8):
        for s2 in range(2):
            for h in range(2):
                d = VT + 8 * kr + 4 * s2 + 2 * h
                g(f'ds_read_b64_tr_b16 v[{d}:{d+1}], v40 offset:{2048*(4*kr+2*s2+h)}')
    g(f'v_mov_b32 v51, {sTAG}')
    if 'px4' in opts:
        g('s_waitcnt lgkmcnt(0)')
        g('s_branch L_a_bxg')
    else:
        g('s_branch L_a_px')
    g.end_tail()
    qreg = [192 + 4 * t for t in range(8)] + [16 + 4 * t for t in range(4)] + [80 + 4 * t for t in range(4)]
    for t in range(16):
        g(f'ds_read_b128 v[{qreg[t]}:{qreg[t]+3}], v{32+(t%4)} offset:{L_QL+256*(t//4)}')
    g(f'v_mov_b32 v63, {sTAG}')
    if 's2acc' in opts:
        for t in range(16):
            g(f's_waitcnt lgkmcnt({15-t})')
            acc = 48 if t % 2 == 0 else 52
            c = '0' if t < 2 else f'v[{acc}:{acc+3}]'
            g(f'v_mfma_f32_16x16x32_bf16 v[{acc}:{acc+3}], v[{FA+4*t}:{FA+4*t+3}], v[{qreg[t]}:{qreg[t]+3}], {c}')
        g.nop(8)
        g('v_pk_add_f32 v[48:49], v[48:49], v[52:53]')
        g('v_pk_add_f32 v[50:51], v[50:51], v[54:55]')
    else:
        for t in range(16):
            g(f's_waitcnt lgkmcnt({15-t})')
            c = '0' if t == 0 else 'v[48:51]'
            g(f'v_mfma_f32_16x16x32_bf16 v[48:51], v[{FA+4*t}:{FA+4*t+3}], v[{qreg[t]}:{qreg[t]+3}], {c}')
        g.nop(8)
    g('v_max_f32 v52, v48, v49')
    g('v_max3_f32 v52, v52, v50, v51')
    g.row_reduce([52], [53], 'max')
    g(f'ds_write_b32 v47, v52 offset:{L_MB}')
    g('s_waitcnt lgkmcnt(0)')
    g('s_barrier')
    g.stamp(12)
    g(f'ds_read_b128 v[52:55], v46 offset:{L_MB}')
    g('s_waitcnt lgkmcnt(0)')
    g('v_max_f32 v52, v52, v53')
    g('v_max3_f32 v52, v52, v54, v55')
    g('v_mul_f32 v62, s63, v52')
    for k in range(4):
        g(f'v_fma_f32 v{48+k}, v{48+k}, s63, -v62')
    for k in range(4):
        g(f'v_exp_f32 v{48+k}, v{48+k}')
    g.nop(1)
    g('v_cvt_pk_bf16_f32 v60, v48, v49')
    g('v_cvt_pk_bf16_f32 v61, v50, v51')
    mode_store(g, [f'global_store_dwordx4 v58, v[60:63], {WS}'], sMODE)
    g.stamp(5)
    if 'px4' in opts:
        PR = [16 + 4 * i for i in range(4)] + [64 + 4 * i for i in range(4)]
        g('v_add_u32 v247, 16384, v246') if False else None
        g('v_add_u32 v252, 16384, v246')
        g.poll2('px', [(f'global_load_dwordx4 v[{PR[i]}:{PR[i]+3}], {"v246" if i < 4 else "v252"}, {WS} offset:{1024*(i%4)} sc1', PR[i] + 3, None) for i in range(8)],
                MA, 10, 11, hook=lambda: g('s_barrier'))
        for i in range(8):
            g(f'ds_write_b64 v56, v[{PR[i]}:{PR[i]+1}] offset:{8192*(i>>2)+1024*((i&3)>>1)+8*(i&1)}')
        g.set_exec(0xffff)
        g('ds_write_b32 v59, v18')
        g('ds_write_b32 v59, v66 offset:16')
        g('s_mov_b64 exec, -1')
        g.stamp(10)
        g('s_waitcnt lgkmcnt(0)')
        g.label('L_a_bxg')
        g('s_barrier')
    else:
        g('s_barrier')
        g.label('L_a_px')
        g.poll2('px', [(f'global_load_dwordx4 v[{16+4*i}:{19+4*i}], v246, {WS} offset:{1024*i} sc1', 19 + 4 * i, None) for i in range(4)], MA, 10, 11)
        for i in range(4):
            g(f'ds_write_b64 v56, v[{16+4*i}:{17+4*i}] offset:{1024*(i>>1)+8*(i&1)}')
        g.set_exec(0xffff)
        g('ds_write_b32 v59, v18')
        g('s_mov_b64 exec, -1')
        g.stamp(10)
        g('s_waitcnt lgkmcnt(0)')
        g('s_barrier')
        if 'pvst' in opts:
            g.stamp(11)
    BF = 160

    def pv(lwave):
        g('ds_read_b128 v[32:35], v43')
        g('ds_read_b128 v[36:39], v43 offset:16')
        def bread(q):
            g(f'ds_read_b128 v[{BF+4*q}:{BF+4*q+3}], v42 offset:{1024*q}')
        for q in range(12):
            bread(q)
        if lwave:
            for k in range(4):
                g(f'v_mov_b32 v{88+k}, 0x3f803f80')
        g('s_waitcnt lgkmcnt(12)')
        g('v_max3_f32 v20, v32, v33, v34')
        g('v_max3_f32 v20, v20, v35, v36')
        g('v_max3_f32 v20, v20, v37, v38')
        g('v_max_f32 v20, v20, v39')
        for k in range(8):
            g(f'v_sub_f32 v{32+k}, v{32+k}, v20')
        DS = [224, 228, 232]
        nf = 1 if lwave else 4

        def fma(k):
            d = DS[k % 3]
            for r in range(nf):
                if k == 0:
                    g(f'v_mul_f32 v{236+r}, v{d+r}, v32')
                else:
                    g(f'v_fma_f32 v{236+r}, v{d+r}, v{32+k}, v{236+r}')
        for k in range(8):
            g(f's_waitcnt lgkmcnt({min(10, 14-2*k)})')
            if k == 0 and 'pvst' in opts and not lwave:
                g.stamp(12)
            d = DS[k % 3]
            for s2 in range(2):
                a = '88:91' if lwave else f'{VT+8*k+4*s2}:{VT+8*k+4*s2+3}'
                c = '0' if s2 == 0 else f'v[{d}:{d+3}]'
                g(f'v_mfma_f32_16x16x32_bf16 v[{d}:{d+3}], v[{a}], v[{BF+8*k+4*s2}:{BF+8*k+4*s2+3}], {c}')
            if k < 2:
                bread(12 + 2 * k)
                bread(13 + 2 * k)
            g(f'v_exp_f32 v{32+k}, v{32+k}')
            if k >= 2:
                fma(k - 2)
                if lwave:
                    g.nop(3)
        if 'pvst' in opts and not lwave:
            g.stamp(14)
        if lwave:
            g.nop(4)
        fma(6)
        if lwave:
            g.nop(4)
        else:
            g.nop(1)
        fma(7)

    def pv2(lwave):
        DS4 = [224, 228, 232, 24]
        issued = []
        done = [-1]
        cnt = [0]
        mpos = {}

        def E(ins):
            g(ins)
            cnt[0] += 1

        def NOP(n):
            g.nop(n)
            cnt[0] += n

        def lds(name, ins):
            E(ins)
            issued.append(name)

        def need(name):
            i = issued.index(name)
            if i > done[0]:
                E(f's_waitcnt lgkmcnt({len(issued) - 1 - i})')
                done[0] = i

        def bread(q):
            lds(f'B{q}', f'ds_read_b128 v[{BF+4*q}:{BF+4*q+3}], v42 offset:{1024*q}')

        def mf(k, s2):
            need(f'B{2*k+s2}')
            d = DS4[k % 4]
            a = '88:91' if lwave else f'{VT+8*k+4*s2}:{VT+8*k+4*s2+3}'
            c = '0' if s2 == 0 else f'v[{d}:{d+3}]'
            E(f'v_mfma_f32_16x16x32_bf16 v[{d}:{d+3}], v[{a}], v[{BF+8*k+4*s2}:{BF+8*k+4*s2+3}], {c}')
            mpos[(k, s2)] = cnt[0]

        def fma(k):
            dist = cnt[0] - mpos[(k, 1)]
            if dist < 8:
                NOP(8 - dist)
            d = DS4[k % 4]
            if lwave:
                if k == 0:
                    E(f'v_mul_f32 v236, v{d}, v32')
                else:
                    E(f'v_fma_f32 v236, v{d}, v{32+k}, v236')
                return
            kp = k & ~1
            sel = 'op_sel:[0,1,0] op_sel_hi:[1,1,1]' if k & 1 else 'op_sel_hi:[1,0,1]'
            sel2 = 'op_sel:[0,1] op_sel_hi:[1,1]' if k & 1 else 'op_sel_hi:[1,0]'
            for r in (0, 2):
                if k == 0:
                    E(f'v_pk_mul_f32 v[{236+r}:{237+r}], v[{d+r}:{d+r+1}], v[{kp+32}:{kp+33}] {sel2}')
                else:
                    E(f'v_pk_fma_f32 v[{236+r}:{237+r}], v[{d+r}:{d+r+1}], v[{kp+32}:{kp+33}], v[{236+r}:{237+r}] {sel}')

        def sub(k):
            E(f'v_sub_f32 v{32+k}, v{32+k}, v20')

        def ex(k):
            E(f'v_exp_f32 v{32+k}, v{32+k}')
        for q in range(4):
            bread(q)
        lds('MT0', 'ds_read_b128 v[32:35], v43')
        lds('MT1', 'ds_read_b128 v[36:39], v43 offset:16')
        for q in range(4, 12):
            bread(q)
        if lwave:
            for k in range(4):
                E(f'v_mov_b32 v{88+k}, 0x3f803f80')
            NOP(2)
        if 'pvst' in opts and not lwave:
            need('B0')
            g.stamp(12)
        mf(0, 0); bread(12)
        mf(1, 0); bread(13)
        mf(0, 1); bread(14)
        mf(1, 1); bread(15)
        need('MT1')
        E('v_max3_f32 v20, v32, v33, v34')
        E('v_max3_f32 v21, v35, v36, v37')
        E('v_max_f32 v22, v38, v39')
        mf(2, 0)
        E('v_max3_f32 v20, v20, v21, v22')
        sub(0); sub(1)
        mf(3, 0)
        ex(0); ex(1); sub(2)
        mf(2, 1)
        sub(3); fma(0)
        mf(3, 1)
        fma(1); ex(2)
        mf(4, 0)
        ex(3); sub(4); sub(5)
        mf(5, 0)
        ex(4); ex(5); sub(6)
        mf(4, 1)
        fma(2); sub(7)
        mf(5, 1)
        fma(3); ex(6)
        mf(6, 0)
        ex(7); fma(4)
        mf(7, 0)
        fma(5)
        mf(6, 1)
        mf(7, 1)
        if 'pvst' in opts and not lwave:
            g.stamp(14)
        fma(6)
        fma(7)
    if 'pv2' in opts:
        pv = pv2

    g(f's_cmp_lt_u32 {sWAVE}, 4')
    g('s_cbranch_scc1 L_a_lw')
    g.begin_tail()
    g.label('L_a_lw')
    g(f's_cmp_eq_u32 {sWAVE}, 0')
    g('s_cbranch_scc0 L_a_w2')
    g('s_cmp_eq_u32 s58, 0')
    g('s_cbranch_scc0 L_a_w2')
    pv(True)
    g('v_mov_b32 v21, v236')
    g(f'v_mov_b32 v23, {sTAG}')
    g.set_exec(0xffff)
    g(f'global_store_dwordx4 v250, v[20:23], {WS} sc1')
    g('s_mov_b64 exec, -1')
    g.label('L_a_w2')
    if 'wuvlate' not in opts:
        for ins in wuv_ins:
            g(ins)
    g('s_branch L_a_s4')
    g.end_tail()
    pv(False)
    g('v_cvt_pk_bf16_f32 v48, v236, v237')
    g('v_cvt_pk_bf16_f32 v49, v238, v239')
    g(f'global_store_dwordx4 v244, v[48:51], {WS} sc1')
    g.stamp(7)
    if 'wuvlate' not in opts:
        for ins in wuv_ins:
            g(ins)
    g.label('L_a_s4')
    g('s_barrier')
    if 'wuvlate' in opts:
        for ins in wuv_ins:
            g(ins)

    if 'ppox' in opts:
        g.poll3('ox', [(f'global_load_dwordx4 v[{{d}}], v245, {WS} sc1', 16, 3, None)], MA, 10, 11, [[96], [100], [104], [108]][:PK], (0, 1), optn('oxsp', SP))
    else:
        g.poll2('ox', [(f'global_load_dwordx4 v[16:19], v245, {WS} sc1', 19, None)], MA, 10, 11)
    g.stamp(8)
    g('v_max_f32_dpp v22, v16, v16 row_ror:4 row_mask:0xf bank_mask:0xf')
    g.nop(2)
    g('v_max_f32_dpp v22, v22, v22 row_ror:8 row_mask:0xf bank_mask:0xf')
    g.nop(1)
    g('v_mov_b32 v23, v22')
    g.nop(2)
    g('v_permlane16_swap_b32 v23, v22')
    g.nop(1)
    g('v_max_f32 v22, v22, v23')
    g('v_sub_f32 v24, v16, v22')
    g('v_exp_f32 v24, v24')
    DN = 'dnorm' in opts
    if DN:
        g('v_permlane32_swap_b32 v16, v17')
        g('v_mov_b32 v23, v24')
        g('v_lshlrev_b32 v25, 16, v16')
        g('v_and_b32 v26, 0xffff0000, v16')
        g('v_mul_f32 v22, v24, v17')
        g('v_permlane32_swap_b32 v23, v24')
        g.nop(1)
        g('v_mul_f32 v25, v25, v24')
        g('v_mul_f32 v26, v26, v24')
        g('v_add_f32_dpp v22, v22, v22 row_ror:4 row_mask:0xf bank_mask:0xf')
        g.nop(1)
        g('v_permlane16_swap_b32 v25, v26')
        g('v_add_f32_dpp v22, v22, v22 row_ror:8 row_mask:0xf bank_mask:0xf')
        g('v_add_f32 v25, v25, v26')
        g('v_mov_b32 v23, v22')
        g.nop(1)
        g('v_add_f32_dpp v25, v25, v25 row_ror:4 row_mask:0xf bank_mask:0xf')
        g('v_permlane16_swap_b32 v23, v22')
        g.nop(1)
        g('v_add_f32_dpp v25, v25, v25 row_ror:8 row_mask:0xf bank_mask:0xf')
        g('v_add_f32 v22, v22, v23')
        g('v_cvt_pk_bf16_f32 v25, v25, v25')
        g('v_rcp_f32 v22, v22')
        g.nop(1)
    else:
        g('v_permlane32_swap_b32 v16, v17')
        g.nop(1)
        g('v_mul_f32 v22, v24, v17')
        g('v_lshlrev_b32 v25, 16, v16')
        g('v_add_f32_dpp v22, v22, v22 row_ror:4 row_mask:0xf bank_mask:0xf')
        g('v_and_b32 v26, 0xffff0000, v16')
        g.nop(1)
        g('v_add_f32_dpp v22, v22, v22 row_ror:8 row_mask:0xf bank_mask:0xf')
        g.nop(1)
        g('v_mov_b32 v23, v22')
        g.nop(2)
        g('v_permlane16_swap_b32 v23, v22')
        g.nop(1)
        g('v_add_f32 v22, v22, v23')
        g('v_rcp_f32 v22, v22')
        g.nop(1)
        g('v_mul_f32 v24, v24, v22')
        g('v_mov_b32 v23, v24')
        g.nop(2)
        g('v_permlane32_swap_b32 v23, v24')
        g.nop(1)
        g('v_mul_f32 v25, v25, v24')
        g('v_mul_f32 v26, v26, v24')
        g.nop(2)
        g('v_permlane16_swap_b32 v25, v26')
        g.nop(1)
        g('v_add_f32 v25, v25, v26')
        g.nop(2)
        g('v_add_f32_dpp v25, v25, v25 row_ror:4 row_mask:0xf bank_mask:0xf')
        g.nop(2)
        g('v_add_f32_dpp v25, v25, v25 row_ror:8 row_mask:0xf bank_mask:0xf')
        g('v_cvt_pk_bf16_f32 v25, v25, v25')
        g.nop(2)

    def ands(tt):
        a = 84 + 4 * (tt % 2)
        for v in range(4):
            g(f'v_and_b32_dpp v{a+v}, v25, v{240+v} quad_perm:[{tt},{tt},{tt},{tt}] row_mask:0xf bank_mask:0xf')
    ands(0)
    for tt in range(4):
        if tt < 3:
            ands(tt + 1)
        else:
            g.nop(2)
        a = 84 + 4 * (tt % 2)
        c = '0' if tt == 0 else 'v[92:95]'
        g(f'v_mfma_f32_16x16x32_bf16 v[92:95], v[{a}:{a+3}], v[{64+4*tt}:{67+4*tt}], {c}')
    g.set_exec(0xffffffff)
    g.nop(6)
    g(f'ds_write_b128 v247, v[92:95] offset:{L_RED}')
    g('s_mov_b64 exec, -1')
    g('s_waitcnt lgkmcnt(0)')
    g('s_barrier')
    g(f's_cmp_eq_u32 {sWAVE}, 0')
    g('s_cbranch_scc0 L_a_red')
    for w in range(8):
        g(f'ds_read_b64 v[{32+2*w}:{33+2*w}], v57 offset:{L_RED+512*w}')
    if DN:
        g('v_readlane_b32 s48, v22, 32')
    g(f'v_mov_b32 v23, {sTAG}')
    g('s_waitcnt lgkmcnt(0)')
    g('v_pk_add_f32 v[32:33], v[32:33], v[34:35]')
    g('v_pk_add_f32 v[36:37], v[36:37], v[38:39]')
    g('v_pk_add_f32 v[40:41], v[40:41], v[42:43]')
    g('v_pk_add_f32 v[44:45], v[44:45], v[46:47]')
    g('v_pk_add_f32 v[32:33], v[32:33], v[36:37]')
    g('v_pk_add_f32 v[40:41], v[40:41], v[44:45]')
    g('v_pk_add_f32 v[32:33], v[32:33], v[40:41]')
    if DN:
        g('v_mul_f32 v32, s48, v32')
        g('v_mul_f32 v33, s48, v33')
    g('v_cvt_pk_bf16_f32 v20, v32, v33')
    g.nop(2)
    g('v_mov_b32_dpp v21, v20 row_shl:1 row_mask:0xf bank_mask:0xf')
    g.set_exec(0x5555555555555555)
    mode_store(g, [f'global_store_dwordx4 v253, v[20:23], {WS}'], sMODE)
    g('s_mov_b64 exec, -1')
    g.stamp(9)
    g.label('L_a_red')
    if 'wb' in opts:
        g(f's_cmp_eq_u32 {sWAVE}, 5')
        g('s_cbranch_scc0 L_a_nwb')
        g(f's_cmp_eq_u32 {sR}, 12')
        g('s_cbranch_scc0 L_a_nwb')
        g('buffer_wbl2 sc1')
        g('s_waitcnt vmcnt(0)')
        g.label('L_a_nwb')
    if stop_after == 4:
        g('s_branch L_fin')
    g(f's_cmp_eq_u32 {sWAVE}, 7')
    g('s_cbranch_scc0 L_fin')
    g(f's_cmp_lt_u32 {sR}, 10')
    g('s_cbranch_scc0 L_fin')
    g(f's_mul_i32 s55, {sXCD}, 10')
    g(f's_add_u32 s55, s55, {sR}')
    g('v_and_b32 v7, 3, v0')
    g('v_lshrrev_b32 v6, 5, v0')
    if 'mlp2' in opts:
        g('v_lshl_add_u32 v8, v7, 1, v6')
    else:
        g('v_and_b32 v8, 1, v7')
        g('v_lshlrev_b32 v8, 2, v8')
        g('v_lshrrev_b32 v9, 1, v7')
        g('v_add_u32 v8, v8, v9')
        g('v_lshl_add_u32 v8, v6, 1, v8')
    g('s_lshl_b32 s48, s55, 3')
    g('v_add_u32 v31, s48, v8')
    g('v_lshlrev_b32 v31, 1, v31')
    g(f'global_load_ushort v30, v31, {S_X}')
    g('v_and_b32 v9, 7, v0')
    g('v_mul_u32_u24 v9, 2560, v9')
    g('v_bfe_u32 v10, v0, 3, 1')
    g('v_lshl_add_u32 v9, v10, 4, v9')
    g('s_lshr_b32 s48, s55, 4')
    g('s_lshl_b32 s48, s48, 9')
    g('s_and_b32 s49, s55, 15')
    g('s_lshl_b32 s49, s49, 5')
    g('s_add_u32 s48, s48, s49')
    if 'outp8' in opts:
        g(f's_mul_i32 s49, {sXCD}, {OCS}')
        g('s_add_u32 s48, s48, s49')
    g(f's_add_u32 s48, s48, {OUTP8 if "outp8" in opts else OUTP}')
    g('v_add_u32 v9, s48, v9')
    g('s_lshl_b32 s48, s55, 6')
    g(f's_add_u32 s48, s48, {O2P}')
    g('v_lshrrev_b32 v12, 2, v0')
    g('v_mul_u32_u24 v12, 5120, v12')
    g('v_lshl_add_u32 v12, v7, 4, v12')
    g('v_add_u32 v12, s48, v12')
    g(f'v_add_u32 v13, {16*5120}, v12')
    g(f'v_add_u32 v14, {32*5120}, v12')
    g(f'v_add_u32 v15, {48*5120}, v12')
    g(f'v_mov_b32 v44, {sTAG}')
    g('v_mov_b32 v46, 0')
    g('v_mov_b32 v47, 0')
    g(f'v_mov_b32 v19, {sTAG}')
    g('v_mov_b32 v16, 0')
    g('v_mov_b32 v17, 0')
    g('v_lshrrev_b32 v28, 2, v8')
    g('v_lshlrev_b32 v28, 5, v28')
    g('v_and_b32 v29, 3, v8')
    if 'ghf' in opts:
        g.gate('hf', 9, 10)
    g.poll2('hf', [(f'global_load_dwordx4 v[16:19], v9, {WS} sc1', 19, 0xffff)], MA, 10, 11)
    g('v_lshlrev_b32 v20, 16, v16')
    g('v_and_b32 v21, 0xffff0000, v16')
    g('v_lshlrev_b32 v22, 16, v17')
    g('v_and_b32 v23, 0xffff0000, v17')
    for ctl in ['quad_perm:[1,0,3,2]', 'quad_perm:[2,3,0,1]', 'row_half_mirror']:
        g.nop(1)
        for k in range(4):
            g(f'v_add_f32_dpp v{20+k}, v{20+k}, v{20+k} {ctl} row_mask:0xf bank_mask:0xf')
    g.nop(1)
    for k in range(4):
        g(f'ds_bpermute_b32 v{24+k}, v28, v{20+k}')
    g('s_waitcnt lgkmcnt(0)')
    g('v_cmp_eq_u32 vcc, 1, v29')
    g.nop(1)
    g('v_cndmask_b32 v24, v24, v25, vcc')
    g('v_cmp_eq_u32 vcc, 2, v29')
    g.nop(1)
    g('v_cndmask_b32 v24, v24, v26, vcc')
    g('v_cmp_eq_u32 vcc, 3, v29')
    g.nop(1)
    g('v_cndmask_b32 v16, v24, v27, vcc')
    rnd_bf16(g, 16)
    g('v_lshlrev_b32 v30, 16, v30')
    g('v_add_f32 v30, v30, v16')
    rnd_bf16(g, 30)
    if 'go2' in opts:
        g('s_sub_u32 s48, s55, 54')
        g('s_cmp_lt_u32 s55, 54')
        g('s_cselect_b32 s48, s55, s48')
        g('s_lshl_b32 s48, s48, 7')
        g(f's_add_u32 s48, s48, {PF}')
        g('v_mov_b32 v10, s48')
        g.gate('o2', 10, 11)
    if 'ppo2' in opts:
        g.poll3('o2', [(f'global_load_dwordx4 v[{{d}}], v{12+i}, {WS} sc1', 32 + 4 * i, 0, None if i < 3 else 0xffffff) for i in range(4)], MA, 10, 11,
                [[b + 4 * i for i in range(4)] for b in (48, 64, 112, 128)][:PK], (2, 3), optn('o2sp', SP))
    else:
        g.poll2('o2', [(f'global_load_dwordx4 v[{32+4*i}:{35+4*i}], v{12+i}, {WS} sc1', 32 + 4 * i, None) for i in range(3)] +
                [(f'global_load_dwordx4 v[44:47], v15, {WS} sc1', 44, 0xffffff)], MA, 10, 11)
    g.stamp(9)
    g('v_pk_add_f32 v[16:17], v[34:35], v[38:39]')
    g('v_pk_add_f32 v[18:19], v[42:43], v[46:47]')
    g('v_pk_add_f32 v[16:17], v[16:17], v[18:19]')
    g.nop(2)
    g('v_permlane32_swap_b32 v16, v17')
    g.nop(1)
    g('v_add_f32 v16, v16, v17')
    g('v_mov_b32 v17, v16')
    g.nop(2)
    g('v_permlane16_swap_b32 v17, v16')
    g.nop(1)
    g('v_add_f32 v16, v16, v17')
    g.nop(2)
    g('v_add_f32_dpp v16, v16, v16 row_ror:4 row_mask:0xf bank_mask:0xf')
    g.nop(2)
    g('v_add_f32_dpp v16, v16, v16 row_ror:8 row_mask:0xf bank_mask:0xf')
    rnd_bf16(g, 16)
    g('v_add_f32 v16, v16, v30')
    g('v_cvt_pk_bf16_f32 v16, v16, v16')
    g('s_mov_b32 exec_lo, 0xf')
    g('s_mov_b32 exec_hi, 0xf')
    g(f'global_store_short v31, v16, {S_OUT}')
    g('s_mov_b64 exec, -1')
    g('s_cmp_eq_u32 s55, 0')
    g('s_cbranch_scc0 L_fin')
    g('s_mov_b64 exec, 1')
    g(f'v_mov_b32 v2, {sTAG}')
    g(f'global_store_dword v1, v2, {WS} sc1')
    g('s_mov_b64 exec, -1')
    g('s_branch L_fin')

    g.label('L_pathB')
    g(f's_sub_u32 s54, {sR}, 16')
    g('s_lshr_b32 s48, s54, 2')
    g(f's_lshl_b32 s49, {sXCD}, 2')
    g('s_add_u32 s55, s48, s49')
    g(f's_cmp_eq_u32 {sWAVE}, 0')
    g('s_cbranch_scc0 L_b1')
    g('s_lshl_b32 s48, s55, 13')
    if 'shift' in opts:
        g(f's_cmp_ge_u32 {sXCD}, 4')
        g(f's_cselect_b32 s49, {Q1G - Q1L}, 0')
        g('s_add_u32 s49, s48, s49')
        g(f's_add_u32 s49, s49, {Q1L}')
    else:
        g(f's_add_u32 s49, s48, {Q1L}')
    g.addr('s[40:41]', S_WS, 's49')
    g(f's_add_u32 s49, s48, {Q1G}')
    g.addr('s[42:43]', S_WS, 's49')
    g('v_add_u32 v4, 4096, v3')
    g('v_and_b32 v14, 1, v6')
    g('v_lshlrev_b32 v14, 3, v14')
    g('v_lshl_add_u32 v14, v7, 4, v14')
    g('v_lshrrev_b32 v15, 1, v6')
    g('v_lshl_add_u32 v14, v15, 2, v14')
    g.poll2('q1', [(f'global_load_dwordx4 v[{32+4*k}:{35+4*k}], {"v3" if k < 4 else "v4"}, {{base}} offset:{1024*(k%4)} sc1', 35 + 4 * k, None) for k in range(8)],
            MQ, 10, 11, alt=('s[42:43]', 's[42:43]') if 'q1g' in opts else ('s[40:41]', 's[42:43]'))
    g.stamp(3)
    g('v_pk_add_f32 v[12:13], v[32:33], v[36:37]')
    g('v_pk_add_f32 v[10:11], v[40:41], v[44:45]')
    g('v_pk_add_f32 v[16:17], v[48:49], v[52:53]')
    g('v_pk_add_f32 v[18:19], v[56:57], v[60:61]')
    g('v_pk_add_f32 v[12:13], v[12:13], v[10:11]')
    g('v_pk_add_f32 v[16:17], v[16:17], v[18:19]')
    g('v_pk_add_f32 v[12:13], v[12:13], v[16:17]')
    g('v_cvt_pk_bf16_f32 v12, v12, v13')
    g(f'ds_write_b32 v14, v12 offset:{L_QB}')
    g('s_waitcnt lgkmcnt(0)')
    g('s_barrier')
    g('s_branch L_b2')
    g.label('L_b1')
    g('s_lshl_b32 s48, s55, 11')
    g('s_and_b32 s49, s54, 3')
    g('s_lshl_b32 s49, s49, 9')
    g('s_add_u32 s48, s48, s49')
    g(f's_and_b32 s49, {sWAVE}, 3')
    g('s_lshl_b32 s49, s49, 7')
    g('s_add_u32 s48, s48, s49')
    g(f's_add_u32 s48, s48, {QA8 if "qa8" in opts else QA}')
    g('v_lshlrev_b32 v9, 4, v6')
    if 'qa8' in opts:
        g('v_and_b32 v104, 1, v7')
        g('v_lshl_add_u32 v104, v104, 6, v9')
        g('v_lshrrev_b32 v105, 1, v7')
        g('v_lshl_add_u32 v104, v105, 16, v104')
        g('s_mov_b32 s56, 0xaaaaaaaa')
        g('s_mov_b32 s57, 0xaaaaaaaa')
    else:
        g('v_lshl_add_u32 v104, v7, 6, v9')
        g('s_mov_b32 s56, 0x00020002')
        g('s_mov_b32 s57, 0x00020002')
    g('v_add_u32 v104, s48, v104')
    g(f'v_mov_b32 v103, {sTAG}')
    g(f's_cmp_ge_u32 {sWAVE}, 4')
    g('s_cbranch_scc0 L_b1x')
    g.begin_tail()
    g.label('L_b1x')
    g('s_barrier')
    g('s_branch L_b2')
    g.end_tail()
    g(f's_and_b32 s49, {sWAVE}, 3')
    g('s_lshl_b32 s49, s49, 13')
    g(f's_add_u32 s49, s49, {L_TILE}')
    g('v_lshl_add_u32 v12, v7, 8, s49')
    for t in range(4):
        g(f'v_add_u32 v13, {4*t}, v6')
        g('v_xor_b32 v13, v13, v7')
        g('v_lshl_add_u32 v13, v13, 4, v12')
        for tau in range(2):
            g(f'ds_read_b128 v[{64+16*tau+4*t}:{67+16*tau+4*t}], v13 offset:{4096*tau}')
    g('s_waitcnt lgkmcnt(0)')
    g('s_barrier')
    for t in range(4):
        g(f'ds_read_b128 v[{108+4*t}:{111+4*t}], v9 offset:{L_QB+64*t}')
    for t in range(4):
        g(f's_waitcnt lgkmcnt({3-t})')
        for tau in range(2):
            c = '0' if t == 0 else f'v[{96+8*tau}:{99+8*tau}]' if False else ('0' if t == 0 else f'v[{124+4*tau}:{127+4*tau}]')
            g(f'v_mfma_f32_16x16x32_bf16 v[{124+4*tau}:{127+4*tau}], v[{64+16*tau+4*t}:{67+16*tau+4*t}], v[{108+4*t}:{111+4*t}], {c}')
    if 'qa8' not in opts:
        g('s_mov_b32 exec_lo, 0x00030003')
        g('s_mov_b32 exec_hi, 0x00030003')
        g.nop(6)
    else:
        g.nop(8)
    g('v_cvt_pk_bf16_f32 v96, v124, v125')
    g('v_cvt_pk_bf16_f32 v97, v126, v127')
    g('v_cvt_pk_bf16_f32 v98, v128, v129')
    g('v_cvt_pk_bf16_f32 v99, v130, v131')
    g('v_cndmask_b32 v100, v96, v98, s[56:57]')
    g('v_cndmask_b32 v101, v97, v99, s[56:57]')
    g(f'global_store_dwordx4 v104, v[100:103], {WS} sc1')
    g('s_mov_b64 exec, -1')
    g.stamp(4)
    g.label('L_b2')
    if stop_after in (2, 3, 4):
        g('s_branch L_fin')
    if 'pace' in opts or 'paceml' in opts or 'pacem2' in opts or 'pacem3' in opts:
        g(f's_cmp_eq_u32 {sWAVE}, 0')
        g('s_cbranch_scc0 L_b2p')
        if 'paceml' in opts or 'pacem2' in opts:
            g('s_cmp_lt_u32 s54, 5')
            g('s_cbranch_scc1 L_b2p')
        if 'pacem2' in opts or 'pacem3' in opts:
            g('s_cmp_ge_u32 s54, 12')
            g('s_cbranch_scc1 L_b2p')
        g('v_lshrrev_b32 v12, 1, v0')
        g('v_lshlrev_b32 v12, 11, v12')
        g('v_and_b32 v13, 1, v0')
        g('v_lshl_add_u32 v12, v13, 10, v12')
        g(f'v_add_u32 v12, {QA + 1008}, v12')
        g('s_mov_b32 s50, 0')
        g.label('L_b2q')
        g(f'global_load_dwordx4 v[16:19], v12, {WS} sc1')
        g('s_add_u32 s50, s50, 1')
        g('s_waitcnt vmcnt(0)')
        g(f'v_cmp_ne_u32 vcc, {sTAG}, v19')
        g('s_cmp_eq_u64 vcc, 0')
        g('s_cbranch_scc1 L_b2p')
        g('s_cmp_lt_u32 s50, 64')
        g('s_cbranch_scc1 L_b2q')
        g.label('L_b2p')
    if 'pacepf' in opts:
        g(f's_cmp_eq_u32 {sWAVE}, 0')
        g('s_cbranch_scc0 L_b2u')
        g('s_cmp_lt_u32 s54, 5')
        g('s_cbranch_scc1 L_b2u')
        g(f's_lshl_b32 s48, {sXCD}, 8')
        g(f's_add_u32 s48, s48, {PF}')
        g('v_and_b32 v12, NPF, v0'.replace('NPF', str(int([o for o in opts if o.startswith('npf')][0][3:]) - 1 if any(o.startswith('npf') for o in opts) else 3)))
        g('v_lshl_add_u32 v12, v12, 4, s48')
        g('s_mov_b32 s50, 0')
        g.label('L_b2t')
        g(f'global_load_dwordx4 v[16:19], v12, {WS} sc1')
        g('s_add_u32 s50, s50, 1')
        g('s_waitcnt vmcnt(0)')
        g(f'v_cmp_ne_u32 vcc, {sTAG}, v19')
        g('s_cmp_eq_u64 vcc, 0')
        g('s_cbranch_scc1 L_b2u')
        g('s_cmp_lt_u32 s50, 256')
        g('s_cbranch_scc1 L_b2t')
        g.label('L_b2u')
    if 'pacemll' in opts:
        g(f's_cmp_eq_u32 {sWAVE}, 0')
        g('s_cbranch_scc0 L_b2r')
        g('s_cmp_lt_u32 s54, 5')
        g('s_cbranch_scc1 L_b2r')
        g(f's_lshl_b32 s48, {sXCD}, 12')
        g(f's_add_u32 s48, s48, {MLL}')
        g('v_add_u32 v12, s48, v3')
        g('s_mov_b32 s50, 0')
        g.label('L_b2s')
        g(f'global_load_dwordx4 v[16:19], v12, {WS} sc1')
        g('s_add_u32 s50, s50, 1')
        g('s_waitcnt vmcnt(0)')
        g(f'v_cmp_ne_u32 vcc, {sTAG}, v19')
        g('s_cmp_eq_u64 vcc, 0')
        g('s_cbranch_scc1 L_b2r')
        g('s_cmp_lt_u32 s50, 256')
        g('s_cbranch_scc1 L_b2s')
        g.label('L_b2r')
    g('s_barrier')
    g.stamp(5)
    g('v_lshrrev_b32 v8, 3, v7')
    g('v_and_b32 v9, 7, v0')
    g('v_lshl_add_u32 v10, v8, 2, v6')
    g('s_cmp_lt_u32 s54, 5')
    g('s_cbranch_scc1 L_b_wo')
    if 'helper' in opts:
        g('s_cmp_ge_u32 s54, 12')
        g('s_cbranch_scc1 L_b_help')
        g('s_sub_u32 s48, s54, 5')
        g(f's_mul_i32 s49, {sXCD}, 7')
        g('s_add_u32 s58, s49, s48')
        g('s_cmp_lt_u32 s58, 54')
        g('s_cbranch_scc0 L_fin')
        g('s_branch L_b_mlpld')
        g.label('L_b_help')
        g('s_sub_u32 s48, s54, 12')
        g(f's_lshl_b32 s49, {sXCD}, 2')
        g('s_add_u32 s48, s48, s49')
        g('s_lshl_b32 s48, s48, 8')
        g(f's_lshl_b32 s49, {sWAVE}, 19')
        g('s_add_u32 s48, s48, s49')
        g.addr('s[40:41]', S_WUV, 's48')
        g('v_lshlrev_b32 v11, 13, v6')
        g('v_lshl_add_u32 v11, v7, 4, v11')
        for t in range(16):
            g(f'global_load_dwordx4 v[{64+4*t}:{67+4*t}], v11, s[40:41]' + (' nt' if 'helpnt' in opts else ''))
            if t < 15:
                g('s_add_u32 s40, s40, 32768')
                g('s_addc_u32 s41, s41, 0')
        g('s_waitcnt vmcnt(0)')
        g.stamp(6)
        g('s_branch L_fin')
    else:
        g('s_sub_u32 s48, s54, 5')
        g('s_lshr_b32 s49, s48, 1')
        g('s_lshl_b32 s49, s49, 3')
        g(f's_add_u32 s49, s49, {sXCD}')
        g('s_cmp_lt_u32 s49, 27')
        g('s_cbranch_scc0 L_fin')
        g('s_lshl_b32 s49, s49, 1')
        g('s_and_b32 s48, s48, 1')
        g('s_add_u32 s58, s49, s48')
        g('s_branch L_b_mlpld')
    g.label('L_b_wo')
    g(f's_lshl_b32 s48, {sXCD}, 3')
    g(f's_add_u32 s48, s48, {sWAVE}')
    g(f's_mul_i32 s48, s48, {64*1280}')
    g('s_lshl_b32 s49, s54, 8')
    g('s_add_u32 s48, s48, s49')
    g.addr('s[40:41]', S_WO, 's48')
    g('v_mul_u32_u24 v11, 1280, v6')
    g('v_lshl_add_u32 v11, v7, 4, v11')
    for t in range(16):
        g(f'global_load_dwordx4 v[{32+4*t}:{35+4*t}], v11, s[40:41]' + ('' if 'wont0' in opts else ' nt'))
        if t < 15:
            g('s_add_u32 s40, s40, 5120')
            g('s_addc_u32 s41, s41, 0')
    gen_mask(g, 192, 16, 17)
    g(f's_lshr_b32 s48, {sWAVE}, 1')
    g('s_lshl_b32 s48, s48, 2')
    g(f's_lshl_b32 s49, {sXCD}, 4')
    g('s_add_u32 s48, s48, s49')
    g('s_lshl_b32 s48, s48, 9')
    g(f's_and_b32 s49, {sWAVE}, 1')
    g('s_lshl_b32 s49, s49, 8')
    g('s_add_u32 s48, s48, s49')
    g(f's_add_u32 s48, s48, {C4}')
    g('v_lshlrev_b32 v11, 9, v6')
    g('v_lshl_add_u32 v11, v7, 4, v11')
    g('v_add_u32 v11, s48, v11')
    g('v_lshlrev_b32 v26, 5, v7')
    g('v_lshl_add_u32 v26, v6, 4, v26')
    g(f's_lshl_b32 s48, {sWAVE}, 9')
    g('v_add_u32 v26, s48, v26')
    g('v_lshlrev_b32 v28, 3, v0')
    g(f's_mul_i32 s48, {sXCD}, 2560')
    g('s_lshl_b32 s49, s54, 9')
    g('s_add_u32 s48, s48, s49')
    g(f's_add_u32 s48, s48, {OUTP8 if "outp8" in opts else OUTP}')
    g('v_lshrrev_b32 v29, 1, v0')
    g('v_lshl_add_u32 v29, v29, 4, s48')
    if 'outp8' in opts:
        g('v_and_b32 v96, 1, v0')
        g(f'v_mul_u32_u24 v96, {OCS}, v96')
        g('v_add_u32 v96, v96, v29')
        for k in range(1, 4):
            g(f'v_add_u32 v{96+k}, {2*OCS*k}, v96')
        g('s_mov_b32 s56, 0xaaaaaaaa')
        g('s_mov_b32 s57, 0xaaaaaaaa')
    g(f'v_mov_b32 v147, {sTAG}')
    if g.stamps:
        g.stamp(8)
        g('s_waitcnt vmcnt(0)')
        g.stamp(9)
    if 'gc4' in opts:
        g(f's_lshl_b32 s48, {sXCD}, 16')
        g('s_lshl_b32 s49, s54, 13')
        g('s_add_u32 s48, s48, s49')
        g(f's_lshl_b32 s49, {sWAVE}, 10')
        g('s_add_u32 s48, s48, s49')
        g(f's_add_u32 s48, s48, {OX}')
        g('v_mov_b32 v13, s48')
        g.gate('c4', 13, 14)
    g.poll2('c4', [(f'global_load_dwordx4 v[16:19], v11, {WS} sc1', 19, None)], MB, 13, 14)
    g.stamp(6)
    g('v_lshlrev_b32 v20, 16, v16')
    g('v_and_b32 v21, 0xffff0000, v16')
    g('v_lshlrev_b32 v22, 16, v17')
    g('v_and_b32 v23, 0xffff0000, v17')
    g.nop(1)
    g('v_permlane32_swap_b32 v20, v22')
    g('v_permlane32_swap_b32 v21, v23')
    g.nop(1)
    g('v_add_f32 v20, v20, v22')
    g('v_add_f32 v21, v21, v23')
    g.nop(2)
    g('v_permlane16_swap_b32 v20, v21')
    g.nop(1)
    g('v_add_f32 v20, v20, v21')
    g('v_cvt_pk_bf16_f32 v20, v20, v20')
    g.nop(2)

    def wands(t):
        a = 224 + 4 * (t % 4)
        for v in range(4):
            g(f'v_and_b32_dpp v{a+v}, v20, v{192+v} row_newbcast:{t} row_mask:0xf bank_mask:0xf')
    wands(0)
    wands(1)
    for t in range(16):
        if t + 2 < 16:
            wands(t + 2)
        a = 224 + 4 * (t % 4)
        c = '0' if t == 0 else 'v[200:203]'
        g(f'v_mfma_f32_16x16x32_bf16 v[200:203], v[{a}:{a+3}], v[{32+4*t}:{35+4*t}], {c}')
    g.set_exec(0xffffffff)
    g.nop(6)
    g(f'ds_write_b128 v26, v[200:203] offset:{L_RED}')
    g('s_mov_b64 exec, -1')
    g('s_waitcnt lgkmcnt(0)')
    g('s_barrier')
    g(f's_cmp_eq_u32 {sWAVE}, 0')
    g('s_cbranch_scc0 L_fin')
    for w in range(8):
        g(f'ds_read_b64 v[{160+2*w}:{161+2*w}], v28 offset:{L_RED+512*w}')
    g('s_waitcnt lgkmcnt(0)')
    g('v_pk_add_f32 v[160:161], v[160:161], v[162:163]')
    g('v_pk_add_f32 v[164:165], v[164:165], v[166:167]')
    g('v_pk_add_f32 v[168:169], v[168:169], v[170:171]')
    g('v_pk_add_f32 v[172:173], v[172:173], v[174:175]')
    g('v_pk_add_f32 v[160:161], v[160:161], v[164:165]')
    g('v_pk_add_f32 v[168:169], v[168:169], v[172:173]')
    g('v_pk_add_f32 v[160:161], v[160:161], v[168:169]')
    g('v_cvt_pk_bf16_f32 v144, v160, v161')
    g.nop(2)
    if 'outp8' in opts:
        g('v_mov_b32_dpp v161, v144 row_shl:1 row_mask:0xf bank_mask:0xf')
        g('v_mov_b32_dpp v162, v144 row_shr:1 row_mask:0xf bank_mask:0xf')
        g('v_cndmask_b32 v145, v161, v144, s[56:57]')
        g('v_cndmask_b32 v144, v144, v162, s[56:57]')
        for k in range(4):
            g(f'global_store_dwordx4 v{96+k}, v[144:147], {WS} sc1')
    else:
        g('v_mov_b32_dpp v145, v144 row_shl:1 row_mask:0xf bank_mask:0xf')
        g.set_exec(0x5555555555555555)
        g(f'global_store_dwordx4 v29, v[144:147], {WS} sc1')
        g('s_mov_b64 exec, -1')
    g.stamp(7)
    g('s_branch L_fin')

    def gemv(n, src, wbase, d, ab=224, reuse=False, keep=False):
        ns = n if keep else 4
        def pm(t):
            a = ab + 4 * (t % ns)
            for v in range(4):
                g(f'v_perm_b32 v{a+v}, v{src+t//2}, v{src+t//2}, v{192+2*v+(t&1)}')
        if not reuse:
            pm(0)
            if n > 1:
                pm(1)
        for t in range(n):
            if not reuse and t + 2 < n:
                pm(t + 2)
            a = ab + 4 * (t % ns)
            c = '0' if t == 0 else f'v[{d}:{d+3}]'
            g(f'v_mfma_f32_16x16x32_bf16 v[{d}:{d+3}], v[{a}:{a+3}], v[{wbase+4*t}:{wbase+4*t+3}], {c}')

    def mlp2():
        AF = 64; BFm = 144; DF = [224, 228, 232, 236, 32]
        M1, M2, M3 = 's[60:61]', 's[62:63]', 's[96:97]'
        DM = ['s[98:99]', 's[100:101]', 's[4:5]', 's[6:7]', 's[56:57]']
        HS = 's[40:41]'

        def smask(pair, m32):
            a = int(pair[2:].split(':')[0])
            g(f's_mov_b32 s{a}, {m32:#x}')
            g(f's_mov_b32 s{a+1}, {m32:#x}')
        g('v_and_b32 v8, 7, v0')
        g('v_xor_b32 v8, v8, v6')
        g('v_cmp_le_u32 vcc, 4, v8')
        g('v_mov_b32 v12, s22')
        g('v_mov_b32 v13, s24')
        g('v_mov_b32 v14, s23')
        g('v_mov_b32 v15, s25')
        g('v_cndmask_b32 v18, v12, v13, vcc')
        g('v_cndmask_b32 v19, v14, v15, vcc')
        g('v_and_b32 v9, 3, v8')
        g('v_lshlrev_b32 v9, 4, v9')
        g('v_lshrrev_b32 v10, 3, v0')
        g('v_mul_u32_u24 v10, 3456, v10')
        g('v_add_u32 v10, v10, v9')
        g('s_lshl_b32 s48, s58, 6')
        g(f's_mul_i32 s49, {sWAVE}, {80*3456}')
        g('s_add_u32 s48, s48, s49')
        g('v_add_u32 v10, s48, v10')
        g('v_add_co_u32 v18, vcc, v18, v10')
        g(f's_mul_i32 s49, {sWAVE}, 10240')
        g(f's_add_u32 m0, s49, {L_W}')
        g('v_addc_co_u32 v19, vcc, 0, v19, vcc')
        g.nop(1)
        for n in range(10):
            g('global_load_lds_dwordx4 v[18:19], off')
            if n < 9:
                g(f'v_add_co_u32 v18, vcc, {8*3456}, v18')
                g('s_add_u32 m0, m0, 1024')
                g.nop(1)
                g('v_addc_co_u32 v19, vcc, 0, v19, vcc')
                g.nop(1)
        g(f's_mul_i32 s55, {sWAVE}, 5')
        g('s_mul_i32 s49, s58, 40960')
        for n in range(5):
            g(f's_add_u32 s48, s55, {n}')
            g('s_lshl_b32 s48, s48, 6')
            g('v_add_u32 v20, s48, v0')
            g('v_mul_u32_u24 v21, 3277, v20')
            g('v_lshrrev_b32 v21, 18, v21')
            g('v_mul_u32_u24 v22, 80, v21')
            g('v_sub_u32 v22, v20, v22')
            g('v_and_b32 v23, 7, v21')
            g('v_lshlrev_b32 v23, 1, v23')
            g('v_xor_b32 v22, v22, v23')
            g('v_mul_u32_u24 v21, 1280, v21')
            g('v_lshl_add_u32 v21, v22, 4, v21')
            g('v_add_u32 v21, s49, v21')
            g('s_lshl_b32 s48, s48, 4')
            g(f's_add_u32 m0, s48, {L_D}')
            g.nop(1)
            g(f'global_load_lds_dwordx4 v21, {S_WD}')
        g(f's_lshl_b32 s48, {sWAVE}, 6')
        g('s_min_u32 s48, s48, 256')
        g('v_and_b32 v17, 31, v0')
        g('v_lshlrev_b32 v17, 1, v17')
        g('v_lshrrev_b32 v29, 5, v0')
        g('v_add_u32 v17, v17, v29')
        g('v_add_u32 v17, s48, v17')
        g('v_lshlrev_b32 v244, 2, v17')
        g(f'global_load_dword v240, v244, {S_X}')
        g(f'global_load_ushort v241, v1, {S_X}')
        g.stamp(6)
        g('v_and_b32 v20, 0xfffffff0, v17')
        g('v_bfe_u32 v21, v17, 1, 2')
        g('v_lshl_add_u32 v20, v21, 2, v20')
        g('v_bfe_u32 v21, v17, 3, 1')
        g('v_lshl_add_u32 v20, v21, 1, v20')
        g('v_and_b32 v21, 1, v17')
        g('v_add_u32 v20, v20, v21')
        g('v_lshlrev_b32 v245, 2, v20')
        g('v_lshrrev_b32 v8, 2, v0')
        g('v_and_b32 v9, 3, v0')
        g('v_and_b32 v10, 1, v9')
        g('v_lshlrev_b32 v10, 2, v10')
        g(f's_and_b32 s48, {sWAVE}, 3')
        g('v_add_u32 v10, s48, v10')
        g('v_bfe_u32 v11, v8, 1, 2')
        g('v_xor_b32 v10, v10, v11')
        g('v_lshlrev_b32 v10, 4, v10')
        g('v_lshl_add_u32 v10, v8, 7, v10')
        g('v_lshrrev_b32 v11, 1, v9')
        g('v_lshl_add_u32 v10, v11, 3, v10')
        g(f'v_add_u32 v24, {L_W}, v10')
        g(f'v_add_u32 v25, {L_W + 40960}, v10')
        g('v_and_b32 v12, 7, v8')
        g('v_lshlrev_b32 v12, 1, v12')
        g('v_mul_u32_u24 v13, 1280, v8')
        g('v_and_b32 v14, 1, v9')
        g('v_lshl_add_u32 v13, v14, 3, v13')
        g('v_lshl_add_u32 v13, v11, 4, v13')
        g(f'v_add_u32 v13, {L_D}, v13')
        g(f's_mul_i32 s55, {sWAVE}, 10')
        for n in range(5):
            g(f's_add_u32 s48, s55, {2*n}')
            g('s_and_b32 s49, s48, 15')
            g('s_andn2_b32 s48, s48, 15')
            g('v_xor_b32 v14, s49, v12')
            g('v_add_u32 v14, s48, v14')
            g(f'v_lshl_add_u32 v{26+n if n < 3 else 34+n}, v14, 4, v13')
        DA = [26, 27, 28, 37, 38]
        g('v_lshlrev_b32 v31, 4, v6')
        g(f's_and_b32 s48, {sWAVE}, 1')
        g('s_lshl_b32 s48, s48, 4')
        g(f's_lshr_b32 s49, {sWAVE}, 1')
        g('s_and_b32 s49, s49, 1')
        g('s_lshl_b32 s49, s49, 2')
        g('s_add_u32 s48, s48, s49')
        g('v_lshrrev_b32 v20, 5, v0')
        g('v_lshlrev_b32 v20, 3, v20')
        g('v_and_b32 v21, 3, v0')
        g('v_add_u32 v20, v20, v21')
        g('v_add_u32 v20, s48, v20')
        g('v_lshlrev_b32 v39, 1, v20')
        g('v_cmp_le_u32 vcc, 5, v7')
        g('v_subrev_u32 v20, 5, v7')
        g('v_mov_b32 v21, 16')
        g('v_cndmask_b32 v20, v7, v20, vcc')
        g('v_cndmask_b32 v21, 0, v21, vcc')
        g('v_lshl_add_u32 v20, v20, 7, v21')
        g('v_lshl_add_u32 v20, v6, 5, v20')
        g('s_mul_i32 s48, s58, 5120')
        g(f's_mul_i32 s49, {sWAVE}, 640')
        g('s_add_u32 s48, s48, s49')
        g(f's_add_u32 s48, s48, {O2P}')
        g('v_add_u32 v30, s48, v20')
        g(f'v_mov_b32 v58, {sTAG}')
        g(f's_lshl_b32 s48, {sWAVE}, 3')
        g('v_mov_b32 v246, s48')
        smask(M1, 0x22222222); smask(M2, 0x44444444); smask(M3, 0x88888888)
        for n in range(5):
            m16 = (1 << n) | (1 << (n + 5))
            smask(DM[n], m16 | (m16 << 16))
        smask(HS, 0x03e003e0)
        g('s_mov_b32 s51, 0')
        M3X = 'm3' in opts
        M5 = 'm5' in opts
        Z = [8, 9, 10, 11, 14]
        if M5:
            g(f'v_mov_b32 v20, {L_ST + 48}')
            g(f'v_add_u32 v21, {L_CB}, v31')
            for n in range(5):
                g(f'v_cndmask_b32 v{Z[n]}, v20, v21, {DM[n]}')
            g(f's_cmp_eq_u32 {sWAVE}, 5')
            g('s_cbranch_scc0 L_m3_nz')
            for k in range(4):
                g(f'v_mov_b32 v{20+k}, 0')
            g('s_mov_b64 exec, 1')
            g(f'ds_write_b128 v1, v[20:23] offset:{L_ST + 48}')
            g('s_mov_b64 exec, -1')
            g('s_waitcnt lgkmcnt(0)')
            g.label('L_m3_nz')
        if M3X:
            g(f'v_mov_b32 v20, {L_ST + 16}')
            g(f'v_add_u32 v21, {L_CB}, v31')
            for n in range(5):
                g(f'v_cndmask_b32 v{Z[n]}, v20, v21, {DM[n]}')
            g(f's_cmp_eq_u32 {sWAVE}, 5')
            g('s_cbranch_scc0 L_m3_nz')
            for k in range(4):
                g(f'v_mov_b32 v{20+k}, 0')
            g('s_mov_b64 exec, 3')
            g(f'ds_write_b128 v3, v[20:23] offset:{L_ST}')
            g('s_mov_b64 exec, -1')
            g('s_waitcnt lgkmcnt(0)')
            g.label('L_m3_nz')
        g('s_waitcnt vmcnt(0)')
        g.stamp(7)
        g('s_barrier')
        g('v_lshlrev_b32 v241, 16, v241')
        for n in range(5):
            g(f'ds_read_b64_tr_b16 v[{DF[n]}:{DF[n]+1}], v{DA[n]}')
            g(f'ds_read_b64_tr_b16 v[{DF[n]+2}:{DF[n]+3}], v{DA[n]} offset:20480')
        g('v_readfirstlane_b32 s53, v241')
        g(f's_cmp_lt_u32 {sWAVE}, 4')
        g('s_cbranch_scc0 L_m2_nw')
        for t in range(20):
            for h in range(2):
                off = 4096 * t + 2048 * h
                base = 24 if off < 40960 else 25
                g(f'ds_read_b64_tr_b16 v[{AF+4*t+2*h}:{AF+4*t+2*h+1}], v{base} offset:{off % 40960}')
        for k in range(4):
            g(f'v_mov_b32 v{48+k}, 0x3f803f80')
        g('s_waitcnt lgkmcnt(0)')
        for t in range(20):
            c = '0' if t == 0 else 'v[44:47]'
            g(f'v_mfma_f32_16x16x32_bf16 v[44:47], v[{AF+4*t}:{AF+4*t+3}], v[48:51], {c}')
        g.nop(8)
        g(f'v_cndmask_b32 v36, v44, v45, {M1}')
        g(f'v_cndmask_b32 v36, v36, v46, {M2}')
        g(f'v_cndmask_b32 v36, v36, v47, {M3}')
        g.label('L_m2_nw')
        g(f's_cmp_lt_u32 {sWAVE}, 5')
        g('s_cbranch_scc0 L_m2_b1')
        g(f's_lshl_b32 s48, {sWAVE}, 9')
        g(f's_add_u32 s48, s48, {OUTP}')
        g('v_lshrrev_b32 v247, 5, v0')
        g('v_mul_u32_u24 v247, 2560, v247')
        g('v_and_b32 v248, 31, v0')
        g('v_lshl_add_u32 v247, v248, 4, v247')
        g('v_add_u32 v247, s48, v247')
        for k in range(1, 4):
            g(f'v_add_u32 v{247+k}, {5120*k}, v247')
        g('v_lshlrev_b32 v242, 16, v240')
        g('v_and_b32 v243, 0xffff0000, v240')
        g.poll2('outp', [(f'global_load_dwordx4 v[{160+4*k}:{163+4*k}], v{247+k}, {WS} sc1', 163 + 4 * k, None) for k in range(4)], MB, 12, 13)
        g.stamp(8)
        for k in range(4):
            g(f'v_lshlrev_b32 v{176+4*k}, 16, v{160+4*k}')
            g(f'v_and_b32 v{177+4*k}, 0xffff0000, v{160+4*k}')
            g(f'v_lshlrev_b32 v{178+4*k}, 16, v{161+4*k}')
            g(f'v_and_b32 v{179+4*k}, 0xffff0000, v{161+4*k}')
            if k == 1:
                g('v_pk_add_f32 v[176:177], v[176:177], v[180:181]')
                g('v_pk_add_f32 v[178:179], v[178:179], v[182:183]')
        g('v_pk_add_f32 v[184:185], v[184:185], v[188:189]')
        g('v_pk_add_f32 v[186:187], v[186:187], v[190:191]')
        g('v_pk_add_f32 v[176:177], v[176:177], v[184:185]')
        g('v_pk_add_f32 v[178:179], v[178:179], v[186:187]')
        g.nop(1)
        g('v_permlane32_swap_b32 v176, v178')
        g('v_permlane32_swap_b32 v177, v179')
        g.nop(1)
        g('v_add_f32 v16, v176, v178')
        g('v_add_f32 v17, v177, v179')
        g('v_cvt_pk_bf16_f32 v16, v16, v17')
        g('v_lshlrev_b32 v18, 16, v16')
        g('v_and_b32 v19, 0xffff0000, v16')
        g('v_pk_add_f32 v[18:19], v[18:19], v[242:243]')
        g('v_cvt_pk_bf16_f32 v16, v18, v19')
        g(f'ds_write_b32 v245, v16 offset:{L_HB}')
        if not M3X:
            g('v_lshlrev_b32 v18, 16, v16')
            g('v_and_b32 v19, 0xffff0000, v16')
            g('v_subrev_f32 v18, s53, v18')
            g('v_subrev_f32 v19, s53, v19')
            g('v_add_f32 v160, v18, v19')
            g('v_mul_f32 v161, v18, v18')
            g('v_fmac_f32 v161, v19, v19')
            g.wave_reduce([160, 161], [162, 163])
            g('s_mov_b64 exec, 1')
            g(f'ds_write_b64 v246, v[160:161] offset:{L_ST}')
            g('s_mov_b64 exec, -1')
        g('s_waitcnt lgkmcnt(0)')
        g.label('L_m2_b1')
        g(f's_mov_b32 s52, {f2u(1.0/640):#x}')
        g('s_barrier')
        g.stamp(9)
        g(f's_cmp_lt_u32 {sWAVE}, 4')
        g(f's_cbranch_scc0 {"L_m3_hi" if M3X else "L_m2_b3"}')
        if M3X:
            g.begin_tail()
            g.label('L_m3_hi')
            g(f's_cmp_eq_u32 {sWAVE}, 5')
            g('s_cbranch_scc0 L_m2_b3')
            g('v_lshlrev_b32 v21, 2, v0')
            g(f'ds_read_b128 v[16:19], v3 offset:{L_HB}')
            g(f'ds_read_b32 v20, v21 offset:{L_HB + 1024}')
            g('v_mov_b32 v74, s53')
            g('v_mov_b32 v75, s53')
            g('s_waitcnt lgkmcnt(0)')
            for k in range(5):
                g(f'v_lshlrev_b32 v{64+2*k}, 16, v{16+k}')
                g(f'v_and_b32 v{65+2*k}, 0xffff0000, v{16+k}')
            for k in range(5):
                g(f'v_pk_add_f32 v[{64+2*k}:{65+2*k}], v[{64+2*k}:{65+2*k}], v[74:75] neg_lo:[0,1] neg_hi:[0,1]')
            g('v_pk_mul_f32 v[76:77], v[64:65], v[64:65]')
            g('v_pk_add_f32 v[78:79], v[64:65], v[66:67]')
            for k in range(1, 5):
                g(f'v_pk_fma_f32 v[76:77], v[{64+2*k}:{65+2*k}], v[{64+2*k}:{65+2*k}], v[76:77]')
                if k >= 2:
                    g(f'v_pk_add_f32 v[78:79], v[78:79], v[{64+2*k}:{65+2*k}]')
            g('v_add_f32 v77, v76, v77')
            g('v_add_f32 v76, v78, v79')
            g.wave_reduce([76, 77], [78, 79])
            ln_scalars(g, 76, 77, 's53', 80, 81, 84)
            g(f'v_mov_b32 v82, {sTAG}')
            g('s_mov_b64 exec, 1')
            g(f'ds_write_b128 v1, v[80:83] offset:{L_ST}')
            g('s_mov_b64 exec, -1')
            g('s_waitcnt lgkmcnt(0)')
            g('s_branch L_m2_b3')
            g.end_tail()
            for t in range(12):
                g(f'ds_read_b128 v[{BFm+4*t}:{BFm+4*t+3}], v31 offset:{L_HB+64*t}')
            for t in range(20):
                if t in (0, 1, 2, 3, 4, 6, 8, 10, 12, 14, 16, 18):
                    need = t if t < 4 else t + 1
                    g(f's_waitcnt lgkmcnt({min(19, t+11) - need + (1 if t > 14 else 0)})')
                acc = 40 + 4 * (t & 1)
                c = '0' if t < 2 else f'v[{acc}:{acc+3}]'
                if t == 0 and 'm2st' in opts:
                    g.stamp(12)
                g(f'v_mfma_f32_16x16x32_bf16 v[{acc}:{acc+3}], v[{AF+4*t}:{AF+4*t+3}], v[{BFm+4*t}:{BFm+4*t+3}], {c}')
                if t + 12 <= 19:
                    g(f'ds_read_b128 v[{BFm+4*(t+12)}:{BFm+4*(t+12)+3}], v31 offset:{L_HB+64*(t+12)}')
                if t == 14:
                    g(f'ds_read_b128 v[48:51], v1 offset:{L_ST}')
            if 'm2st' in opts:
                g.stamp(13)
            g.label('L_m3_chk')
            g('s_waitcnt lgkmcnt(0)')
            g(f'v_cmp_ne_u32 vcc, {sTAG}, v50')
            g('v_mul_f32 v48, v48, v36')
            g('s_cbranch_vccnz L_m3_re')
            g.begin_tail()
            g.label('L_m3_re')
            g(f'ds_read_b128 v[48:51], v1 offset:{L_ST}')
            g('s_add_u32 s51, s51, 1')
            g(f's_cmp_lt_u32 s51, {1 << 20}')
            g('s_cbranch_scc1 L_m3_chk')
            g('s_waitcnt lgkmcnt(0)')
            g('s_branch L_m3_go')
            g.end_tail()
            g.label('L_m3_go')
            g.nop(4)
            g('v_pk_add_f32 v[40:41], v[40:41], v[44:45]')
            g('v_pk_add_f32 v[42:43], v[42:43], v[46:47]')
            g(f'v_cndmask_b32 v16, v40, v41, {M1}')
            g(f'v_cndmask_b32 v16, v16, v42, {M2}')
            g(f'v_cndmask_b32 v16, v16, v43, {M3}')
            g('v_sub_f32 v16, v16, v48')
            g('v_mul_f32 v16, v16, v49')
            rnd_bf16(g, 16)
            g('v_mov_b32 v17, v16')
            g.nop(2)
            g('v_permlane16_swap_b32 v16, v17')
            g.nop(1)
            g('v_max_f32 v16, 0, v16')
            g('v_mul_f32 v16, v16, v17')
            g('v_cvt_pk_bf16_f32 v16, v16, v16')
            g('s_mov_b32 exec_lo, 0xf')
            g('s_mov_b32 exec_hi, 0xf')
            g(f'ds_write_b16 v39, v16 offset:{L_CB}')
            if 'm2st' in opts:
                g.stamp(14)
            g('s_mov_b64 exec, -1')
            g('s_waitcnt lgkmcnt(0)')
            g.label('L_m2_b3')
            g('s_barrier')
            g.stamp(10)
            for n in range(5):
                g(f'ds_read_b128 v[{BFm+4*n}:{BFm+4*n+3}], v{Z[n]}')
            for n in range(5):
                g(f's_waitcnt lgkmcnt({4-n})')
                c = '0' if n == 0 else 'v[40:43]'
                g(f'v_mfma_f32_16x16x32_bf16 v[40:43], v[{DF[n]}:{DF[n]+3}], v[{BFm+4*n}:{BFm+4*n+3}], {c}')
            g.stamp(11)
            g('s_mov_b32 exec_lo, 0x03ff03ff')
            g('s_mov_b32 exec_hi, 0x03ff03ff')
            g.nop(6)
            g(f'v_cndmask_b32 v60, v40, v42, {HS}')
            g(f'v_cndmask_b32 v61, v41, v43, {HS}')
            g(f'global_store_dwordx4 v30, v[58:61], {WS} sc1')
            g('s_mov_b64 exec, -1')
            if g.stamps:
                g.stamp(15)
                g('s_barrier')
                g('s_branch L_fin2')
            g('s_branch L_fin')
            return
        if 'm2x' in opts:
            g('s_mov_b32 exec_lo, 0x000f000f')
            g('s_mov_b32 exec_hi, 0x000f000f')
        M6 = 'm6' in opts
        if M5:
            for t in range(12 if M6 else 10):
                g(f'ds_read_b128 v[{BFm+4*t}:{BFm+4*t+3}], v31 offset:{L_HB+64*t}')
        g(f'ds_read_b128 v[48:51], v1 offset:{L_ST}')
        g(f'ds_read_b128 v[52:55], v1 offset:{L_ST+16}')
        g(f'ds_read_b64 v[56:57], v1 offset:{L_ST+32}')
        for t in range(12 if not M5 else 0):
            g(f'ds_read_b128 v[{BFm+4*t}:{BFm+4*t+3}], v31 offset:{L_HB+64*t}')
        g2 = Gen()
        g2('v_pk_add_f32 v[48:49], v[48:49], v[50:51]')
        g2('v_pk_add_f32 v[52:53], v[52:53], v[54:55]')
        g2('v_pk_add_f32 v[48:49], v[48:49], v[56:57]')
        g2('v_pk_add_f32 v[48:49], v[48:49], v[52:53]')
        ln_scalars(g2, 48, 49, 's53', 50, 51, 52)
        g2('v_mul_f32 v50, v50, v36')
        chunks = [[]]
        for ln in g2.L:
            if 's_nop' in ln:
                chunks.append([])
                continue
            if len(chunks[-1]) >= 2:
                chunks.append([])
            chunks[-1].append(ln.strip())
        chunks = [c for c in chunks if c]
        if M6:
            sl = {
                4: ['v_pk_add_f32 v[48:49], v[48:49], v[50:51]', 'v_pk_add_f32 v[52:53], v[52:53], v[54:55]'],
                5: ['v_pk_add_f32 v[48:49], v[48:49], v[56:57]'],
                6: ['v_pk_add_f32 v[48:49], v[48:49], v[52:53]'],
                7: ['v_mul_f32 v48, s52, v48', 'v_mul_f32 v49, s52, v49'],
                8: ['v_fma_f32 v49, -v48, v48, v49', 'v_add_f32 v50, s53, v48'],
                9: ['v_max_f32 v49, 0, v49', 'v_cvt_pk_bf16_f32 v50, v50, v50'],
                10: ['v_cvt_pk_bf16_f32 v49, v49, v49', 'v_and_b32 v50, 0xffff0000, v50'],
                11: ['v_and_b32 v49, 0xffff0000, v49', 'v_mul_f32 v50, v50, v36'],
                12: ['v_add_f32 v49, 0x3727c5ac, v49'],
                13: ['v_cvt_pk_bf16_f32 v49, v49, v49'],
                14: ['v_and_b32 v49, 0xffff0000, v49'],
                15: ['v_sqrt_f32 v49, v49'],
                16: ['v_cvt_pk_bf16_f32 v49, v49, v49'],
                17: ['v_and_b32 v49, 0xffff0000, v49'],
                18: ['v_rcp_f32 v51, v49'],
            }
            waits = {0: 14, 1: 14, 2: 14, 3: 14, 4: 4, 12: 6, 14: 4, 16: 2, 18: 0}
            for t in range(20):
                if t in waits:
                    g(f's_waitcnt lgkmcnt({waits[t]})')
                acc = 40 + 4 * (t & 1)
                c = '0' if t < 2 else f'v[{acc}:{acc+3}]'
                if t == 0 and 'm2st' in opts:
                    g.stamp(12)
                g(f'v_mfma_f32_16x16x32_bf16 v[{acc}:{acc+3}], v[{AF+4*t}:{AF+4*t+3}], v[{BFm+4*t}:{BFm+4*t+3}], {c}')
                if t == 19 and 'm2st' in opts:
                    g.stamp(13)
                if t < 8:
                    g(f'ds_read_b128 v[{BFm+4*(t+12)}:{BFm+4*(t+12)+3}], v31 offset:{L_HB+64*(t+12)}')
                for ln in sl.get(t, []):
                    g(ln)
        elif M5:
            flat = [ln.strip() for ln in g2.L]
            flat = [ln for ln in flat if 's_nop' not in ln]
            slots = {t: [] for t in range(20)}
            t = 4
            for ln in flat:
                cap = 1 if t < 10 else 2
                if len(slots[t]) >= cap or (slots[t] and slots[t][-1].startswith(('v_sqrt', 'v_rcp'))):
                    t += 1
                slots[t].append(ln)
            assert t <= 19
            order = [f'B{i}' for i in range(10)] + ['S0', 'S1', 'S2'] + [f'B{i}' for i in range(10, 20)]
            for t in range(20):
                issued = 13 + min(t, 10)
                need = order.index(f'B{t}')
                if t == 4:
                    need = max(need, order.index('S2'))
                if t <= 4 or t % 2 == 0:
                    if t > 4:
                        nx = order.index(f'B{min(t+1, 19)}')
                        if nx < issued:
                            need = max(need, nx)
                    g(f's_waitcnt lgkmcnt({issued - need - 1})')
                elif order.index(f'B{t}') >= 13 + min(t - 1, 10):
                    g(f's_waitcnt lgkmcnt({issued - need - 1})')
                acc = 40 + 4 * (t & 1)
                c = '0' if t < 2 else f'v[{acc}:{acc+3}]'
                if t == 0 and 'm2st' in opts:
                    g.stamp(12)
                g(f'v_mfma_f32_16x16x32_bf16 v[{acc}:{acc+3}], v[{AF+4*t}:{AF+4*t+3}], v[{BFm+4*t}:{BFm+4*t+3}], {c}')
                if t == 19 and 'm2st' in opts:
                    g.stamp(13)
                if t < 10:
                    g(f'ds_read_b128 v[{BFm+4*(t+10)}:{BFm+4*(t+10)+3}], v31 offset:{L_HB+64*(t+10)}')
                for ln in slots[t]:
                    g(ln)
        assert M5 or len(chunks) <= 19, len(chunks)
        for t in range(20 if not M5 else 0):
            g(f's_waitcnt lgkmcnt({min(19, t+11) - t})')
            acc = 40 + 4 * (t & 1)
            c = '0' if t < 2 else f'v[{acc}:{acc+3}]'
            if t == 0 and 'm2st' in opts:
                g.stamp(12)
            g(f'v_mfma_f32_16x16x32_bf16 v[{acc}:{acc+3}], v[{AF+4*t}:{AF+4*t+3}], v[{BFm+4*t}:{BFm+4*t+3}], {c}')
            if t == 19 and 'm2st' in opts:
                g.stamp(13)
            if t + 12 <= 19:
                g(f'ds_read_b128 v[{BFm+4*(t+12)}:{BFm+4*(t+12)+3}], v31 offset:{L_HB+64*(t+12)}')
            if t < len(chunks):
                for ln in chunks[t]:
                    g(ln)
        g.nop(8)
        g('v_pk_add_f32 v[40:41], v[40:41], v[44:45]')
        g('v_pk_add_f32 v[42:43], v[42:43], v[46:47]')
        g(f'v_cndmask_b32 v16, v40, v41, {M1}')
        g(f'v_cndmask_b32 v16, v16, v42, {M2}')
        g(f'v_cndmask_b32 v16, v16, v43, {M3}')
        g('v_sub_f32 v16, v16, v50')
        g('v_mul_f32 v16, v16, v51')
        rnd_bf16(g, 16)
        g('v_mov_b32 v17, v16')
        g.nop(2)
        g('v_permlane16_swap_b32 v16, v17')
        g.nop(1)
        g('v_max_f32 v16, 0, v16')
        g('v_mul_f32 v16, v16, v17')
        g('v_cvt_pk_bf16_f32 v16, v16, v16')
        g('s_mov_b32 exec_lo, 0xf')
        g('s_mov_b32 exec_hi, 0xf')
        g(f'ds_write_b16 v39, v16 offset:{L_CB}')
        if 'm2st' in opts:
            g.stamp(14)
        g('s_mov_b64 exec, -1')
        g('s_waitcnt lgkmcnt(0)')
        g.label('L_m2_b3')
        g('s_barrier')
        g.stamp(10)
        if M5:
            for n in range(5):
                g(f'ds_read_b128 v[{BFm+4*n}:{BFm+4*n+3}], v{Z[n]}')
            for n in range(5):
                g(f's_waitcnt lgkmcnt({4-n})')
                c = '0' if n == 0 else 'v[40:43]'
                g(f'v_mfma_f32_16x16x32_bf16 v[40:43], v[{DF[n]}:{DF[n]+3}], v[{BFm+4*n}:{BFm+4*n+3}], {c}')
            g.stamp(11)
        else:
            g(f'ds_read_b128 v[16:19], v31 offset:{L_CB}')
            g('s_waitcnt lgkmcnt(0)')
            g.stamp(11)
        SETS = [44, 48, 52]

        def mk(n):
            a = SETS[n % 3]
            for k in range(4):
                g(f'v_cndmask_b32 v{a+k}, 0, v{16+k}, {DM[n]}')
        if not M5:
            mk(0)
            mk(1)
        for n in range(5 if not M5 else 0):
            c = '0' if n == 0 else 'v[40:43]'
            a = SETS[n % 3]
            g(f'v_mfma_f32_16x16x32_bf16 v[40:43], v[{DF[n]}:{DF[n]+3}], v[{a}:{a+3}], {c}')
            if n + 2 < 5:
                mk(n + 2)
        g('s_mov_b32 exec_lo, 0x03ff03ff')
        g('s_mov_b32 exec_hi, 0x03ff03ff')
        g.nop(6)
        g(f'v_cndmask_b32 v60, v40, v42, {HS}')
        g(f'v_cndmask_b32 v61, v41, v43, {HS}')
        g(f'global_store_dwordx4 v30, v[58:61], {WS} sc1')
        g('s_mov_b64 exec, -1')
        if g.stamps:
            g.stamp(15)
            g('s_barrier')
            g('s_branch L_fin2')
        g('s_branch L_fin')

    g.label('L_b_mlpld')
    if stop_after == 5:
        g('s_branch L_fin')
    if 'mlp2' in opts:
        mlp2()
    def mlp1():
        gen_sel(g, 192, 16, 17)
        if 'mlrot' in opts:
            g('s_and_b32 s57, s58, 1')
            g('s_lshl_b32 s57, s57, 2')
            g(f's_add_u32 s57, s57, {sWAVE}')
            g('s_and_b32 s57, s57, 7')
        else:
            g(f's_mov_b32 s57, {sWAVE}')
        g('v_and_b32 v26, 1, v6')
        g('v_lshlrev_b32 v26, 2, v26')
        g('v_lshl_add_u32 v26, v9, 3, v26')
        g('v_lshrrev_b32 v27, 1, v6')
        g('v_add_u32 v26, v26, v27')
        g('v_lshlrev_b32 v26, 2, v26')
        g(f's_lshl_b32 s48, {sWAVE}, 8')
        g('v_add_u32 v26, s48, v26')
        g('v_cmp_le_u32 vcc, 4, v9')
        g('v_mov_b32 v12, s22')
        g('v_mov_b32 v13, s24')
        g('v_mov_b32 v14, s23')
        g('v_mov_b32 v15, s25')
        g('v_cndmask_b32 v12, v12, v13, vcc')
        g('v_cndmask_b32 v13, v14, v15, vcc')
        g('v_and_b32 v14, 3, v0')
        g('v_lshlrev_b32 v14, 4, v14')
        g('s_lshl_b32 s48, s58, 6')
        g(f's_mul_i32 s49, s57, {80*3456}')
        g('s_add_u32 s48, s48, s49')
        g('v_add_u32 v14, s48, v14')
        g(f'v_mul_u32_u24 v15, {8*3456}, v10')
        g('v_add_u32 v15, v15, v14')
        g(f'v_mul_u32_u24 v16, {2*3456}, v10')
        g('v_add_u32 v16, v16, v14')
        g(f'v_add_u32 v16, {64*3456}, v16')
        for t in range(10):
            if t == 0:
                src = 15
            elif t == 8:
                src = 16
            g(f'v_add_co_u32 v18, vcc, v12, v{src}')
            g.nop(2)
            g('v_addc_co_u32 v19, vcc, 0, v13, vcc')
            g(f'global_load_dwordx4 v[{64+4*t}:{67+4*t}], v[18:19], off' + ('' if 'gunt0' in opts else ' sc0 nt' if 'gusc0' in opts else ' nt'))
            g(f'v_add_u32 v{src}, 3456, v{src}')
        g('s_lshl_b32 s48, s58, 5')
        g(f's_mul_i32 s48, s48, 1280')
        g(f's_lshl_b32 s49, {sWAVE}, 7')
        g('s_add_u32 s48, s48, s49')
        g.addr('s[40:41]', S_WD, 's48')
        g(f'v_mul_u32_u24 v11, {4*1280}, v10')
        g('v_lshl_add_u32 v11, v9, 4, v11')
        for t in range(4):
            g(f'global_load_dwordx4 v[{104+4*t}:{107+4*t}], v11, s[40:41] offset:{1280*t}' + ('' if 'wdnt0' in opts else ' nt'))
        g(f's_cmp_lt_u32 {sWAVE}, 2')
        g('s_cbranch_scc0 L_b_nod2')
        g('s_add_u32 s40, s40, 1024')
        g('s_addc_u32 s41, s41, 0')
        for t in range(4):
            g(f'global_load_dwordx4 v[{120+4*t}:{123+4*t}], v11, s[40:41] offset:{1280*t}' + ('' if 'wdnt0' in opts else ' nt'))
        g.label('L_b_nod2')
        g(f's_lshl_b32 s48, {sWAVE}, 8')
        g('s_min_u32 s48, s48, 1024')
        g('v_and_b32 v17, 31, v0')
        g('v_lshlrev_b32 v17, 3, v17')
        g('v_lshrrev_b32 v29, 5, v0')
        g('v_lshl_add_u32 v17, v29, 2, v17')
        g('v_add_u32 v143, s48, v17')
        g(f'global_load_dword v140, v143, {S_X}')
        g(f'global_load_ushort v141, v1, {S_X}')
        g.stamp(6)
        g('s_waitcnt vmcnt(0)')
        g.stamp(7)
        g('v_lshlrev_b32 v141, 16, v141')
        g.nop(1)
        g('v_readfirstlane_b32 s53, v141')
        gen_mask(g, 220, 16, 17)
        for v in range(4):
            g(f'v_and_b32 v{220+v}, 0x3f803f80, v{220+v}')
        g.nop(2)
        for t in range(10):
            c = '0' if t == 0 else 'v[200:203]'
            g(f'v_mfma_f32_16x16x32_bf16 v[200:203], v[220:223], v[{64+4*t}:{67+4*t}], {c}')
        g.nop(8)
        class_combine(g, 200)
        g.set_exec(0x00ff00ff00ff00ff)
        g('ds_write2_b32 v26, v200, v202 offset0:0 offset1:2')
        g('s_mov_b64 exec, -1')
        g('s_waitcnt lgkmcnt(0)')
        g('s_barrier')
        g('v_lshlrev_b32 v29, 2, v0')
        for w in range(8):
            g(f'ds_read_b32 v{160+w}, v29 offset:{256*w}')
        g('s_waitcnt lgkmcnt(0)')
        g('v_add_f32 v160, v160, v161')
        g('v_add_f32 v162, v162, v163')
        g('v_add_f32 v164, v164, v165')
        g('v_add_f32 v166, v166, v167')
        g('v_add_f32 v160, v160, v162')
        g('v_add_f32 v164, v164, v166')
        g('v_add_f32 v142, v160, v164')
        g('s_barrier')
        g('s_mul_i32 s48, s57, 160')
        g('v_lshlrev_b32 v27, 4, v10')
        g('v_add_u32 v27, s48, v27')
        g('v_lshlrev_b32 v28, 2, v10')
        g('v_add_u32 v28, s48, v28')
        g('v_lshlrev_b32 v30, 3, v10')
        g('v_and_b32 v31, 31, v0')
        g('v_lshlrev_b32 v31, 1, v31')
        g('v_lshlrev_b32 v14, 6, v9')
        g('v_lshl_add_u32 v14, v6, 4, v14')
        g(f's_mul_i32 s48, s58, 5120')
        g(f's_lshl_b32 s49, {sWAVE}, 9')
        g('s_add_u32 s48, s48, s49')
        g(f's_add_u32 s48, s48, {O2P}')
        g('v_add_u32 v14, s48, v14')
        g(f'v_add_u32 v15, {8*512}, v14')
        g(f'v_mov_b32 v202, {sTAG}')
        g(f's_lshl_b32 s48, {sWAVE}, 3')
        g('v_mov_b32 v144, s48')
        g(f's_cmp_lt_u32 {sWAVE}, 5')
        g('s_cbranch_scc0 L_m_b1')
        g(f's_lshl_b32 s48, {sWAVE}, 9')
        if 'outp8' in opts:
            g(f's_mul_i32 s49, {sXCD}, {OCS}')
            g('s_add_u32 s48, s48, s49')
        g(f's_add_u32 s48, s48, {OUTP8 if "outp8" in opts else OUTP}')
        g('v_lshrrev_b32 v152, 5, v0')
        g('v_mul_u32_u24 v152, 2560, v152')
        g('v_and_b32 v153, 31, v0')
        g('v_lshl_add_u32 v152, v153, 4, v152')
        g('v_add_u32 v152, s48, v152')
        for k in range(1, 4):
            g(f'v_add_u32 v{152+k}, {5120*k}, v152')
        g('v_lshlrev_b32 v148, 16, v140')
        g('v_and_b32 v149, 0xffff0000, v140')
        if 'goutp' in opts:
            g(f's_add_u32 s48, s58, {sWAVE}')
            g('s_and_b32 s48, s48, 15')
            g(f's_lshl_b32 s49, {sXCD}, 4')
            g('s_add_u32 s48, s48, s49')
            g('s_lshl_b32 s48, s48, 9')
            g(f's_add_u32 s48, s48, {C4}')
            g('v_mov_b32 v12, s48')
            g.gate('outp', 12, 13)
        if 'ppoutp' in opts:
            g.poll3('outp', [(f'global_load_dwordx4 v[{{d}}], v{152+k}, {WS} sc1', 160 + 4 * k, 3, None) for k in range(4)], MB, 12, 13,
                    [[b + 4 * i for i in range(4)] for b in (32, 48, 240)][:PK], (0, 1), optn('outpsp', SP))
        else:
            g.poll2('outp', [(f'global_load_dwordx4 v[{160+4*k}:{163+4*k}], v{152+k}, {WS} sc1', 163 + 4 * k, None) for k in range(4)], MB, 12, 13)
        g.stamp(8)
        for k in range(4):
            g(f'v_lshlrev_b32 v{176+4*k}, 16, v{160+4*k}')
            g(f'v_and_b32 v{177+4*k}, 0xffff0000, v{160+4*k}')
            g(f'v_lshlrev_b32 v{178+4*k}, 16, v{161+4*k}')
            g(f'v_and_b32 v{179+4*k}, 0xffff0000, v{161+4*k}')
            if k == 1:
                g('v_pk_add_f32 v[176:177], v[176:177], v[180:181]')
                g('v_pk_add_f32 v[178:179], v[178:179], v[182:183]')
        g('v_pk_add_f32 v[184:185], v[184:185], v[188:189]')
        g('v_pk_add_f32 v[186:187], v[186:187], v[190:191]')
        g('v_pk_add_f32 v[176:177], v[176:177], v[184:185]')
        g('v_pk_add_f32 v[178:179], v[178:179], v[186:187]')
        g.nop(1)
        g('v_permlane32_swap_b32 v176, v178')
        g('v_permlane32_swap_b32 v177, v179')
        g.nop(1)
        g('v_add_f32 v16, v176, v178')
        g('v_add_f32 v17, v177, v179')
        g('v_cvt_pk_bf16_f32 v16, v16, v17')
        g('v_lshlrev_b32 v18, 16, v16')
        g('v_and_b32 v19, 0xffff0000, v16')
        g('v_pk_add_f32 v[18:19], v[18:19], v[148:149]')
        g('v_cvt_pk_bf16_f32 v16, v18, v19')
        g(f'ds_write_b32 v143, v16 offset:{L_HB}')
        g('v_lshlrev_b32 v18, 16, v16')
        g('v_and_b32 v19, 0xffff0000, v16')
        g('v_subrev_f32 v18, s53, v18')
        g('v_subrev_f32 v19, s53, v19')
        g('v_add_f32 v160, v18, v19')
        g('v_mul_f32 v161, v18, v18')
        g('v_fmac_f32 v161, v19, v19')
        g.wave_reduce([160, 161], [162, 163])
        g('s_mov_b64 exec, 1')
        g(f'ds_write_b64 v144, v[160:161] offset:{L_ST}')
        g('s_mov_b64 exec, -1')
        g('s_waitcnt lgkmcnt(0)')
        g.label('L_m_b1')
        g('s_barrier')
        g.stamp(9)
        g(f'ds_read_b128 v[176:179], v27 offset:{L_HB}')
        g(f'ds_read_b32 v180, v28 offset:{L_HB+128}')
        g(f's_cmp_eq_u32 {sWAVE}, 7')
        g('s_cbranch_scc1 L_m_st')
        g.begin_tail()
        g.label('L_m_st')
        g(f'ds_read_b128 v[160:163], v1 offset:{L_ST}')
        g(f'ds_read_b128 v[164:167], v1 offset:{L_ST+16}')
        g(f'ds_read_b64 v[168:169], v1 offset:{L_ST+32}')
        g('s_branch L_m_ns')
        g.end_tail()
        g.label('L_m_ns')
        g('s_waitcnt lgkmcnt(0)')
        gemv(10, 176, 64, 208)
        g.nop(8)
        class_combine(g, 208)
        g.set_exec(0x00ff00ff00ff00ff)
        g('ds_write2_b32 v26, v208, v210 offset0:0 offset1:2')
        g('s_mov_b64 exec, -1')
        g('s_waitcnt lgkmcnt(0)')
        g('s_barrier')
        g.stamp(10)
        if 'go2' in opts:
            g(f's_cmp_eq_u32 {sWAVE}, 6')
            g('s_cbranch_scc0 L_m_nf')
            g('s_lshl_b32 s48, s58, 7')
            g(f's_add_u32 s48, s48, {PF + 12}')
            g('v_mov_b32 v16, s48')
            g('s_mov_b64 exec, 1')
            g(f'global_store_dword v16, v202, {WS} sc1')
            g('s_mov_b64 exec, -1')
            g.label('L_m_nf')
        g(f's_cmp_eq_u32 {sWAVE}, 7')
        g('s_cbranch_scc0 L_m_b3')
        for w in range(8):
            g(f'ds_read_b32 v{184+w}, v29 offset:{256*w}')
        g('v_pk_add_f32 v[160:161], v[160:161], v[162:163]')
        g('v_pk_add_f32 v[164:165], v[164:165], v[166:167]')
        g('v_pk_add_f32 v[160:161], v[160:161], v[168:169]')
        g('v_pk_add_f32 v[160:161], v[160:161], v[164:165]')
        ln_scalars(g, 160, 161, 's53', 170, 171, 172)
        g('v_mul_f32 v170, v170, v142')
        g('s_waitcnt lgkmcnt(0)')
        g('v_pk_add_f32 v[184:185], v[184:185], v[186:187]')
        g('v_pk_add_f32 v[188:189], v[188:189], v[190:191]')
        g('v_pk_add_f32 v[184:185], v[184:185], v[188:189]')
        g('v_add_f32 v16, v184, v185')
        g('v_sub_f32 v16, v16, v170')
        g('v_mul_f32 v16, v16, v171')
        rnd_bf16(g, 16)
        g('v_mov_b32 v17, v16')
        g.nop(2)
        g('v_permlane32_swap_b32 v16, v17')
        g.nop(1)
        g('v_max_f32 v16, 0, v16')
        g('v_mul_f32 v16, v16, v17')
        g('v_cvt_pk_bf16_f32 v16, v16, v16')
        g(f'ds_write_b16 v31, v16 offset:{L_CB}')
        g('s_waitcnt lgkmcnt(0)')
        g.label('L_m_b3')
        g('s_barrier')
        g(f'ds_read_b64 v[16:17], v30 offset:{L_CB}')
        g('s_waitcnt lgkmcnt(0)')
        g.stamp(11)

        def down(base, vo, reuse=False):
            gemv(4, 16, base, 204, reuse=reuse, keep=True)
            g.nop(8)
            class_combine(g, 204, out2=205)
            g.set_exec(0x00ff00ff00ff00ff)
            g(f'global_store_dwordx4 v{vo}, v[202:205], {WS} sc1')
            g('s_mov_b64 exec, -1')
        down(104, 14)
        g(f's_cmp_lt_u32 {sWAVE}, 2')
        g('s_cbranch_scc0 L_m_done')
        down(120, 15, reuse=True)
        g.label('L_m_done')
    if 'mlp2' not in opts:
        mlp1()
        if g.stamps:
            g.stamp(15)
            g('s_barrier')
            g('s_branch L_fin2')

    g.label('L_fin')
    g.stamp(15)
    g.label('L_fin2')
    g.stamp_flush()
    g.label('L_end')
    g('s_endpgm')
    body = g.text()

    hdr = open('cdna_kernels/' + KN[:-7] + '.s.ref').read().split('\n')
    head = []
    for line in hdr:
        if line.startswith('; @launch'):
            head.append(f'; @launch grid=(256,1,1) block=(512,1,1) lds={LDS_BYTES2 if "mlp2" in opts else LDS_BYTES}')
        elif line.startswith(';'):
            head.append(line)
        else:
            break
    out = '\n'.join(head) + '\n'
    out += '.amdgcn_target "amdgcn-amd-amdhsa--gfx950"\n.text\n'
    out += f'.globl {KN}\n.p2align 8\n.type {KN},@function\n{KN}:\n'
    out += body
    out += f'''.section .rodata,"a"
.p2align 6
.amdhsa_kernel {KN}
  .amdhsa_next_free_vgpr 256
  .amdhsa_next_free_sgpr 102
  .amdhsa_accum_offset 256
  .amdhsa_group_segment_fixed_size 0
  .amdhsa_kernarg_size 104
  .amdhsa_user_sgpr_count 2
  .amdhsa_user_sgpr_kernarg_segment_ptr 1
  .amdhsa_system_sgpr_workgroup_id_x 1
.end_amdhsa_kernel
'''
    return out


if __name__ == '__main__':
    import argparse
    ap = argparse.ArgumentParser()
    ap.add_argument('-o', default='k.s')
    ap.add_argument('--stamps', action='store_true')
    ap.add_argument('--stop', type=int, default=None)
    ap.add_argument('--opts', default='')
    a = ap.parse_args()
    open(a.o, 'w').write(build(a.stamps, a.stop, tuple(a.opts.split(','))))
```
